```python
import torch

def _softmax(x, axis=-1):
    return torch.softmax(x, dim=axis)
def _gelu(x):
    return torch.nn.functional.gelu(x, approximate="tanh")
def _silu(x):
    return torch.nn.functional.silu(x)
def _sigmoid(x):
    return torch.sigmoid(x)
def _layernorm(x, axis=-1, eps=1e-5):
    m = x.mean(dim=axis, keepdim=True)
    v = x.var(dim=axis, keepdim=True, unbiased=False)
    return (x - m) / torch.sqrt(v + eps)
def _scatter_add(tgt, idx, src, axis=0):
    return tgt.clone().index_add_(axis, idx, src)
def _segment_sum(src, seg, n):
    out = torch.zeros((n,) + src.shape[1:], dtype=src.dtype)
    return out.index_add_(0, seg, src)
def _pad(x, pw):
    flat = tuple(v for pair in reversed(pw) for v in pair)
    return torch.nn.functional.pad(x, flat)

kernel_name = 'gather_scatter__mpnn_edge_mlp__graph'

def setup_inputs():

    _w = (lambda a: (lambda t: t.to(torch.bfloat16) if t.is_floating_point() else t)(torch.as_tensor(a)))
    N, deg, D, De = 10000, 32, 128, max(4, 1)
    E = N * deg
    return {
        "x": _w((lambda *s: torch.randn(*s, dtype=torch.bfloat16) * 0.05)(N, D)),
        "e_attr": _w((lambda *s: torch.randn(*s, dtype=torch.bfloat16) * 0.4)(E, De)),
        "src": _w((lambda lo, hi, *s: torch.randint(lo, hi, s))(0, N, E).to(torch.int64)),
        "dst": _w((lambda lo, hi, *s: torch.randint(lo, hi, s))(0, N, E).to(torch.int64)),
        "w_msg": _w((lambda *s: torch.randn(*s, dtype=torch.bfloat16) * 0.4)(2 * D + De, D)),
        "w_upd": _w((lambda *s: torch.randn(*s, dtype=torch.bfloat16) * 0.05)(2 * D, D)),
    }

def reference(x, e_attr, src, dst, w_msg, w_upd):
    N, D = x.shape
    m_in = torch.concatenate([x[src], x[dst], e_attr], axis=-1)
    msg = _silu(m_in @ w_msg)
    agg = _segment_sum(msg, dst, N)
    return _silu(torch.concatenate([x, agg], axis=-1) @ w_upd)
```

```python
import sys, struct

N = 10000; E = 320000
NG = 256
EPW = 1250
REC_STRIDE = 15104
WS_P = 0
WS_REC = 0x280000
WS_T = 0x630000
WS_F = 0x670000
NGEMM = 209
LOG2E = 1.4426950408889634
def f2u(x): return struct.unpack("<I", struct.pack("<f", x))[0]
NLOG2E = f2u(-LOG2E)
NLN2 = f2u(-0.6931471805599453)

class Asm:
    def __init__(self): self.l = []
    def __call__(self, s):
        for ln in s.strip("\n").split("\n"):
            ln = ln.strip()
            if ln: self.l.append(ln if ln.endswith(":") else "    " + ln)
    def text(self): return "\n".join(self.l) + "\n"

OPT = dict(a.split("=") if "=" in a else (a, "1") for a in sys.argv[2:])

def dpp_scan(a, v):
    for sh in (1, 2, 4, 8):
        a(f"s_nop 1\nv_add_u32_dpp v{v}, v{v}, v{v} row_shr:{sh} row_mask:0xf bank_mask:0xf bound_ctrl:0")
    a(f"s_nop 1\nv_add_u32_dpp v{v}, v{v}, v{v} row_bcast:15 row_mask:0xa bank_mask:0xf")
    a(f"s_nop 1\nv_add_u32_dpp v{v}, v{v}, v{v} row_bcast:31 row_mask:0xc bank_mask:0xf")

K1_HIST = 0; K1_OFFS = 2560; K1_STAGE = 4096
K1_W = 0; K1_X = 32768; K1_LDS = 45056
def k1():
    a = Asm()
    a(f"""
mpnn_prep_kernel:
    s_cmp_ge_u32 s2, {NG + NGEMM}
    s_cbranch_scc1 K1_END
    s_cmp_ge_u32 s2, {NG}
    s_cbranch_scc1 K1_GEMM
    s_load_dwordx4 s[4:7], s[0:1], 8
    s_load_dwordx2 s[8:9], s[0:1], 24
    s_load_dwordx2 s[10:11], s[0:1], 64
    s_mul_i32 s12, s2, {EPW*4}
    v_lshlrev_b32 v1, 2, v0
    v_lshl_add_u32 v2, v0, 3, s12
    v_lshlrev_b32 v3, 1, v2
    v_mov_b32 v12, 0
    v_mov_b32 v13, 1
    s_movk_i32 s13, 625
    s_mov_b32 s14, 214749
    ds_write_b32 v1, v12 offset:{K1_HIST}
    v_cmp_gt_u32 vcc, s13, v0
    s_and_saveexec_b64 s[20:21], vcc
    s_mov_b64 s[22:23], exec
    s_waitcnt lgkmcnt(0)
    global_load_dwordx2 v[4:5], v2, s[8:9]
    global_load_dwordx2 v[6:7], v2, s[6:7]
    global_load_dwordx4 v[8:11], v3, s[4:5]
    s_barrier
    s_waitcnt vmcnt(2)
    v_mul_u32_u24 v14, s14, v4
    v_mul_u32_u24 v15, s14, v5
    v_lshrrev_b32 v14, 23, v14
    v_lshrrev_b32 v15, 23, v15
    v_lshlrev_b32 v16, 2, v14
    v_lshlrev_b32 v17, 2, v15
    ds_add_rtn_u32 v18, v16, v13 offset:{K1_HIST}
    ds_add_rtn_u32 v19, v17, v13 offset:{K1_HIST}
    v_mad_u32_u24 v14, v14, s13, 15
    v_mad_u32_u24 v15, v15, s13, 15
    v_lshrrev_b32 v14, 4, v14
    v_lshrrev_b32 v15, 4, v15
    v_sub_u32 v14, v4, v14
    v_sub_u32 v15, v5, v15
    s_mov_b64 exec, -1
    v_and_b32 v20, 63, v0
    v_lshlrev_b32 v21, 4, v20
    s_waitcnt lgkmcnt(0)
    s_barrier
    ds_read_b128 v[24:27], v21 offset:{K1_HIST}
    s_waitcnt lgkmcnt(0)
    v_add_u32 v28, v24, v25
    v_add3_u32 v28, v28, v26, v27
    v_mov_b32 v29, v28
    """)
    dpp_scan(a, 29)
    a(f"""
    v_sub_u32 v32, v29, v28
    v_add_u32 v33, v32, v24
    v_add_u32 v34, v33, v25
    v_add_u32 v35, v34, v26
    ds_write_b128 v21, v[32:35] offset:{K1_OFFS}
    v_readfirstlane_b32 s15, v0
    s_waitcnt lgkmcnt(0)
    s_mov_b64 exec, s[22:23]
    ds_read_b32 v22, v16 offset:{K1_OFFS}
    ds_read_b32 v23, v17 offset:{K1_OFFS}
    s_mov_b64 exec, -1
    s_cmp_ge_u32 s15, 64
    s_cbranch_scc1 K1_NOT
    s_and_b32 s16, s2, 7
    s_lshl_b32 s16, s16, 5
    s_lshr_b32 s17, s2, 3
    s_add_u32 s16, s16, s17
    s_lshl_b32 s16, s16, 2
    s_add_u32 s16, s16, {WS_T}
    v_lshl_add_u32 v30, v20, 12, s16
    v_lshl_or_b32 v36, v24, 16, v32
    v_lshl_or_b32 v37, v25, 16, v33
    v_lshl_or_b32 v38, v26, 16, v34
    v_lshl_or_b32 v39, v27, 16, v35
    global_store_dword v30, v36, s[10:11]
    global_store_dword v30, v37, s[10:11] offset:1024
    global_store_dword v30, v38, s[10:11] offset:2048
    global_store_dword v30, v39, s[10:11] offset:3072
K1_NOT:
    s_mov_b64 exec, s[22:23]
    s_movk_i32 s16, {K1_STAGE}
    s_waitcnt lgkmcnt(0)
    v_add_u32 v22, v22, v18
    v_add_u32 v23, v23, v19
    v_mad_u32_u24 v22, v22, 12, s16
    v_mad_u32_u24 v23, v23, 12, s16
    s_cmp_ge_u32 s15, 64
    s_cbranch_scc1 K1_W0
    s_waitcnt vmcnt(4)
    s_branch K1_W1
K1_W0:
    s_waitcnt vmcnt(0)
K1_W1:
    v_lshl_or_b32 v6, v14, 18, v6
    v_lshl_or_b32 v7, v15, 18, v7
    ds_write2_b32 v22, v8, v9 offset0:0 offset1:1
    ds_write_b32 v22, v6 offset:8
    ds_write2_b32 v23, v10, v11 offset0:0 offset1:1
    ds_write_b32 v23, v7 offset:8
    s_mov_b64 exec, -1
    s_mul_i32 s16, s2, {REC_STRIDE}
    s_add_u32 s16, s16, {WS_REC}
    v_lshlrev_b32 v21, 4, v0
    v_add_u32 v30, s16, v21
    v_add_u32 v31, 10240, v30
    s_movk_i32 s13, 298
    v_cmp_gt_u32 vcc, s13, v0
    s_waitcnt lgkmcnt(0)
    s_barrier
    ds_read_b128 v[24:27], v21 offset:{K1_STAGE}
    s_and_saveexec_b64 s[20:21], vcc
    s_cbranch_execz K1_S1
    ds_read_b128 v[32:35], v21 offset:{K1_STAGE + 10240}
    s_waitcnt lgkmcnt(0)
    global_store_dwordx4 v31, v[32:35], s[10:11]
K1_S1:
    s_mov_b64 exec, -1
    s_waitcnt lgkmcnt(0)
    global_store_dwordx4 v30, v[24:27], s[10:11]
    s_endpgm
    """)
    a(f"""
K1_GEMM:
    s_load_dwordx2 s[4:5], s[0:1], 0
    s_load_dwordx4 s[8:11], s[0:1], 32
    s_load_dwordx2 s[6:7], s[0:1], 64
    s_sub_u32 s3, s2, {NG}
    v_lshrrev_b32 v1, 6, v0
    v_and_b32 v2, 63, v0
    v_readfirstlane_b32 s24, v1
    v_lshrrev_b32 v3, 4, v2
    v_and_b32 v4, 15, v2
    s_waitcnt lgkmcnt(0)
    s_mov_b32 s12, s4
    s_and_b32 s13, s5, 0xffff
    s_mov_b32 s14, {N*256}
    s_mov_b32 s15, 0x20000
    s_mov_b32 s16, s8
    s_and_b32 s17, s9, 0xffff
    s_mov_b32 s18, {260*256}
    s_mov_b32 s19, 0x20000
    s_mov_b32 s20, s6
    s_and_b32 s21, s7, 0xffff
    s_mov_b32 s22, {N*256}
    s_mov_b32 s23, 0x20000
    s_cmp_ge_u32 s24, 8
    s_cbranch_scc1 K1_XDMA
    s_lshl_b32 s25, s24, 12
    v_lshlrev_b32 v5, 1, v3
    v_xor_b32 v5, v5, v4
    v_xor_b32 v6, 8, v5
    v_lshlrev_b32 v5, 4, v5
    v_lshlrev_b32 v6, 4, v6
    v_lshl_add_u32 v7, v3, 8, s25
    v_add_u32 v5, v5, v7
    v_add_u32 v6, v6, v7
    s_add_u32 s26, s25, {K1_W}
    s_mov_b32 m0, s26
    s_nop 0
    buffer_load_dwordx4 v5, s[16:19], 0 offen lds
    buffer_load_dwordx4 v5, s[16:19], 0 offen offset:1024 lds
    buffer_load_dwordx4 v6, s[16:19], 0 offen offset:2048 lds
    buffer_load_dwordx4 v6, s[16:19], 0 offen offset:3072 lds
    s_cmp_eq_u32 s24, 7
    s_cbranch_scc0 K1_DMADONE
    s_cmp_ge_u32 s3, 97
    s_cbranch_scc1 K1_DMADONE
    s_cmp_eq_u32 s3, 96
    s_cbranch_scc1 K1_F3
    s_lshr_b32 s26, s3, 5
    s_bfe_u32 s27, s3, 0x30002
    s_and_b32 s28, s3, 3
    s_lshl_b32 s29, s28, 5
    v_lshlrev_b32 v8, 3, v3
    s_cmp_eq_u32 s26, 2
    s_cbranch_scc0 K1_FK
    s_and_b32 s29, s28, 1
    s_lshl_b32 s29, s29, 5
    s_lshr_b32 s30, s28, 1
    s_lshl_b32 s30, s30, 4
    s_add_u32 s29, s29, s30
    v_lshrrev_b32 v8, 1, v3
    v_lshlrev_b32 v8, 6, v8
    v_and_b32 v9, 1, v3
    v_lshl_add_u32 v8, v9, 3, v8
K1_FK:
    s_cmp_eq_u32 s26, 1
    s_cselect_b32 s30, 0, 128
    s_add_u32 s29, s29, s30
    s_cmp_eq_u32 s26, 0
    s_cselect_b32 s36, s8, s10
    s_cselect_b32 s37, s9, s11
    v_add_u32 v8, s29, v8
    v_lshlrev_b32 v8, 8, v8
    s_lshl_b32 s27, s27, 5
    v_lshl_add_u32 v9, v4, 1, s27
    v_add_u32 v8, v8, v9
    """)
    for s in range(8):
        a(f"global_load_ushort v{16 + s}, v8, s[36:37] offset:{s*256}")
    a("s_waitcnt vmcnt(0)")
    for q in range(4):
        a(f"v_lshl_or_b32 v{12+q}, v{17+2*q}, 16, v{16+2*q}")
    a(f"""
    s_branch K1_FST
K1_F3:
    v_and_b32 v8, 31, v2
    v_lshrrev_b32 v9, 4, v8
    v_lshlrev_b32 v9, 6, v9
    v_lshrrev_b32 v10, 5, v2
    v_lshl_add_u32 v9, v10, 5, v9
    v_add_u32 v9, v9, v4
    v_lshlrev_b32 v9, 1, v9
    v_add_u32 v8, {256*256}, v9
    """)
    for s in range(8):
        a(f"global_load_ushort v{16 + s}, v8, s[8:9] offset:{(s & 3)*256 + (s >> 2)*32}")
    a(f"s_mov_b32 s26, {NLOG2E:#x}\ns_waitcnt vmcnt(0)")
    for s in range(8):
        a(f"v_lshlrev_b32 v{16+s}, 16, v{16+s}\nv_mul_f32 v{16+s}, s26, v{16+s}")
    for q in range(4):
        a(f"v_cvt_pk_bf16_f32 v{12+q}, v{16+2*q}, v{17+2*q}")
    a(f"""
K1_FST:
    s_lshl_b32 s26, s3, 10
    s_add_u32 s26, s26, {WS_F}
    v_lshl_add_u32 v8, v2, 4, s26
    global_store_dwordx4 v8, v[12:15], s[6:7]
    s_branch K1_DMADONE
K1_XDMA:
    s_sub_u32 s25, s24, 8
    s_mul_i32 s25, s25, 24
    s_mul_i32 s26, s3, 48
    v_add_u32 v5, s25, v3
    s_lshl_b32 s27, s25, 8
    s_add_u32 s27, s27, {K1_X}
    """)
    for i in range(6):
        a(f"""
        v_add_u32 v6, {4*i}, v5
        v_xor_b32 v7, v6, v4
        v_and_b32 v7, 15, v7
        v_add_u32 v6, s26, v6
        v_lshlrev_b32 v6, 8, v6
        v_lshl_add_u32 v6, v7, 4, v6
        s_add_u32 s28, s27, {1024*i}
        s_mov_b32 m0, s28
        s_nop 0
        buffer_load_dwordx4 v6, s[12:15], 0 offen lds
        """)
    a(f"""
K1_DMADONE:
    s_lshr_b32 s25, s24, 1
    s_and_b32 s26, s24, 1
    s_lshl_b32 s27, s25, 12
    s_add_u32 s27, s27, {K1_X}
    v_xor_b32 v5, v3, v4
    v_lshlrev_b32 v5, 4, v5
    v_lshl_add_u32 v5, v4, 8, v5
    v_add_u32 v40, s27, v5
    v_xor_b32 v41, 64, v40
    v_xor_b32 v42, 128, v40
    v_xor_b32 v43, 192, v40
    v_bfe_u32 v5, v2, 2, 2
    v_and_b32 v6, 1, v3
    v_lshl_or_b32 v6, v6, 2, v5
    v_lshlrev_b32 v6, 1, v6
    v_bfe_u32 v7, v2, 1, 1
    s_lshl_b32 s28, s26, 3
    v_or_b32 v7, s28, v7
    v_xor_b32 v6, v6, v7
    v_lshlrev_b32 v6, 4, v6
    v_and_b32 v7, 1, v2
    v_lshl_add_u32 v6, v7, 3, v6
    v_lshl_add_u32 v5, v3, 3, v5
    v_lshl_add_u32 v44, v5, 8, v6
    v_xor_b32 v45, 32, v44
    v_xor_b32 v46, 64, v44
    v_xor_b32 v47, 96, v44
    s_waitcnt vmcnt(0)
    s_barrier
    s_cmp_ge_u32 s24, 6
    s_cbranch_scc1 K1_END
    """)
    for ks in range(4):
        a(f"ds_read_b128 v[{48+4*ks}:{51+4*ks}], v{40+ks}")
    def breads(ks):
        b = 8 + 16*(ks & 1)
        for i in range(4):
            for h in range(2):
                a(f"ds_read_b64_tr_b16 v[{b+4*i+2*h}:{b+4*i+2*h+1}], v{44+i} offset:{K1_W + 8192*ks + 1024*h}")
    breads(0)
    for ks in range(4):
        if ks < 3:
            breads(ks+1)
            a("s_waitcnt lgkmcnt(8)")
        else:
            a("s_waitcnt lgkmcnt(0)")
        b = 8 + 16*(ks & 1)
        for i in range(4):
            c = "0" if ks == 0 else f"v[{64+4*i}:{67+4*i}]"
            a(f"v_mfma_f32_16x16x32_bf16 v[{64+4*i}:{67+4*i}], v[{48+4*ks}:{51+4*ks}], v[{b+4*i}:{b+4*i+3}], {c}")
    a(f"""
    s_mul_i32 s27, s3, 48
    s_lshl_b32 s28, s25, 4
    s_add_u32 s27, s27, s28
    s_lshl_b32 s27, s27, 8
    s_lshl_b32 s28, s26, 7
    s_add_u32 s27, s27, s28
    v_lshlrev_b32 v5, 10, v3
    v_lshl_add_u32 v5, v4, 3, v5
    v_add_u32 v5, s27, v5
    s_mov_b32 s28, {NLOG2E:#x}
    s_nop 4
    """)
    for q in range(8):
        a(f"v_pk_mul_f32 v[{64+2*q}:{65+2*q}], v[{64+2*q}:{65+2*q}], s[28:29] op_sel_hi:[1,0]")
    for r in range(4):
        a(f"v_cvt_pk_bf16_f32 v{8+2*r}, v{64+r}, v{68+r}\nv_cvt_pk_bf16_f32 v{9+2*r}, v{72+r}, v{76+r}")
        a(f"buffer_store_dwordx2 v[{8+2*r}:{9+2*r}], v5, s[20:23], 0 offen offset:{256*r}")
    a("K1_END:\ns_endpgm")
    return a.text()

RING = 0
QS = 65536
AGS = 528
AGG = QS + 40*512
CNT = AGG + 40*AGS
FLG = CNT + 256
ZEND = AGG + 21504
CAP = 2048
ES = ZEND
SS = ES + CAP*8
K2_LDS = SS + CAP*2 + 256
RMAX = 5
D0, D1, QR, BP, AE, ID, W3 = 0, 16, 32, 48, 56, 60, 68
VU, VA, NUM, DEN, NANC, MAXC = 72, 74, 76, 78, 80, 82
EAD, SAD, PAD, IX0, IX1, QAD, AAD, L8, L4, NCNT, TID, TW = 83, 84, 85, 86, 88, 90, 91, 92, 93, 94, 95, 96
RAD, RCNT = 97, 98
UA = 100
K2_VGPR = 112
sP, sX, sO = 8, 12, 16
sWS = 20; sWV = 22; sSTART = 23; sR0 = 24; sR = 25; sMODE = 26; sLEFT = 27; sREM = 28; sCNT = 29; sNODE = 30; sRUN = 31
sNZ = 32; sM0 = 34; sM1 = 36; sONE = 38; sRING = 40; sRING2 = 41; sTT = 42; sT0 = 43; sTMP = 44
sEX = 50

def mainloop(a, safe):
    L = "S" if safe else "F"
    def edge(d, e):
        t = d + 2*e
        if not safe:
            a(f"""
            v_exp_f32 v{VU}, v{t}
            v_exp_f32 v{VU+1}, v{t+1}
            v_pk_fma_f32 v[{VA}:{VA+1}], v[{t}:{t+1}], v[{DEN}:{DEN+1}], v[{NUM}:{NUM+1}]
            v_pk_fma_f32 v[{DEN}:{DEN+1}], v[{DEN}:{DEN+1}], v[{VU}:{VU+1}], v[{DEN}:{DEN+1}]
            v_pk_fma_f32 v[{NUM}:{NUM+1}], v[{NUM}:{NUM+1}], v[{VU}:{VU+1}], v[{VA}:{VA+1}]
            """)
        else:
            a(f"""
            v_exp_f32 v{VU}, v{t}
            v_exp_f32 v{VU+1}, v{t+1}
            s_nop 0
            v_pk_add_f32 v[{VU}:{VU+1}], v[{VU}:{VU+1}], 1.0 op_sel_hi:[1,0]
            v_rcp_f32 v{VU}, v{VU}
            v_rcp_f32 v{VU+1}, v{VU+1}
            s_nop 0
            v_pk_fma_f32 v[{NUM}:{NUM+1}], v[{t}:{t+1}], v[{VU}:{VU+1}], v[{NUM}:{NUM+1}]
            """)
    def flush():
        if not safe:
            a(f"""
            v_rcp_f32 v{VU}, v{DEN}
            v_rcp_f32 v{VU+1}, v{DEN+1}
            v_max3_f32 v{MAXC}, v{MAXC}, v{DEN}, v{DEN+1}
            v_pk_mul_f32 v[{VA}:{VA+1}], v[{NUM}:{NUM+1}], v[{VU}:{VU+1}]
            v_mov_b64 v[{DEN}:{DEN+1}], s[{sONE}:{sONE+1}]
            v_mov_b64 v[{NUM}:{NUM+1}], 0
            ds_add_f32 v{AAD}, v{VA}
            ds_add_f32 v{AAD}, v{VA+1} offset:256
            v_pk_fma_f32 v[{NANC}:{NANC+1}], v[{VA}:{VA+1}], 0, v[{NANC}:{NANC+1}] op_sel_hi:[1,0,1]
            """)
        else:
            a(f"""
            v_mov_b64 v[{VA}:{VA+1}], v[{NUM}:{NUM+1}]
            v_mov_b64 v[{NUM}:{NUM+1}], 0
            ds_add_f32 v{AAD}, v{VA}
            ds_add_f32 v{AAD}, v{VA+1} offset:256
            """)
    def breads(slot, eoff):
        for q in range(4):
            a(f"ds_read_b64 v[{BP+2*q}:{BP+2*q+1}], v{PAD} offset:{slot*2048 + q*512}")
        a(f"""
        s_mov_b64 exec, s[{sM0}:{sM0+1}]
        ds_read_b64 v[{AE}:{AE+1}], v{EAD} offset:{eoff}
        s_mov_b64 exec, s[{sM1}:{sM1+1}]
        ds_read_b64 v[{AE+2}:{AE+3}], v{EAD} offset:{eoff}
        s_mov_b64 exec, -1
        """)
    def idxreads(soff):
        a(f"ds_read_u16 v{IX0}, v{SAD} offset:{soff}\nds_read_u16 v{IX1}, v{SAD} offset:{soff+8}")
    def qreads():
        for q in range(8):
            a(f"ds_read_b64 v[{QR+2*q}:{QR+2*q+1}], v{QAD}")
    def mfmas(d):
        a(f"""
        v_mfma_f32_32x32x16_bf16 v[{d}:{d+15}], v[{AE}:{AE+3}], v[{W3}:{W3+3}], v[{QR}:{QR+15}]
        v_mfma_f32_32x32x16_bf16 v[{d}:{d+15}], v[{ID}:{ID+3}], v[{BP}:{BP+3}], v[{d}:{d+15}]
        v_mfma_f32_32x32x16_bf16 v[{d}:{d+15}], v[{ID+4}:{ID+7}], v[{BP+4}:{BP+7}], v[{d}:{d+15}]
        """)
    def dma(slot):
        base = sRING if slot == 0 else sRING2
        a(f"""
        s_mov_b32 m0, s{base}
        s_add_u32 s{sTMP}, s{base}, 1024
        buffer_load_dwordx4 v[{IX0}:{IX0+1}], s[{sP}:{sP+3}], 0 idxen offen lds
        s_mov_b32 m0, s{sTMP}
        s_nop 0
        buffer_load_dwordx4 v[{IX1}:{IX1+1}], s[{sP}:{sP+3}], 0 idxen offen lds
        """)
    a(f"""
{L}_START:
    v_mov_b64 v[{DEN}:{DEN+1}], s[{sONE}:{sONE+1}]
    v_mov_b64 v[{NUM}:{NUM+1}], 0
    s_mov_b32 s{sRUN}, 0
    """)
    idxreads(0)
    qreads()
    a("s_waitcnt lgkmcnt(8)")
    dma(0)
    idxreads(16)
    a(f"s_waitcnt lgkmcnt(0)\ns_cmp_lt_u32 s{sLEFT}, 2\ns_cbranch_scc1 {L}_P1")
    dma(1)
    idxreads(32)
    a(f"s_waitcnt vmcnt(2)\ns_branch {L}_P2\n{L}_P1:\ns_waitcnt vmcnt(0)\n{L}_P2:")
    breads(0, 0)
    a("s_waitcnt lgkmcnt(0)")
    mfmas(D0)
    a(f"s_cmp_lt_u32 s{sLEFT}, 3\ns_cbranch_scc1 {L}_L0B")
    dma(0)
    a(f"s_branch {L}_L0B")
    for b in range(2):
        dc, dn = (D0, D1) if b == 0 else (D1, D0)
        nxt = f"{L}_L{1-b}"
        a(f"{L}_L{b}:")
        if b == 0:
            a(f"v_add_u32 v{EAD}, 128, v{EAD}\nv_add_u32 v{SAD}, 32, v{SAD}\n{L}_L0B:")
        a(f"""
        s_sub_u32 s{sLEFT}, s{sLEFT}, 1
        s_cmp_lt_u32 s{sLEFT}, 2
        s_cbranch_scc1 {L}_TAIL{b}
        s_waitcnt vmcnt(2)
{L}_RD{b}:
        """)
        breads(1-b, 64*(b+1))
        idxreads(16*(b+3))
        a(f"""
        s_cmp_le_u32 s{sREM}, 8
        s_cbranch_scc1 {L}_END{b}
        s_sub_u32 s{sREM}, s{sREM}, 8
        """)
        for e in range(8): edge(dc, e)
        a("s_waitcnt lgkmcnt(0)")
        mfmas(dn)
        a(f"s_cmp_lt_u32 s{sLEFT}, 3\ns_cbranch_scc1 {L}_ND{b}")
        dma(1-b)
        a(f"""
{L}_ND{b}:
        s_add_u32 s{sRUN}, s{sRUN}, 1
        s_cmp_lt_u32 s{sRUN}, 8
        s_cbranch_scc1 {nxt}
        s_mov_b32 s{sRUN}, 0
        """)
        flush()
        a(f"s_branch {nxt}")
        a(f"""
{L}_TAIL{b}:
        s_waitcnt vmcnt(0)
        s_cmp_lg_u32 s{sLEFT}, 0
        s_cbranch_scc1 {L}_RD{b}
        s_min_u32 s{sCNT}, s{sREM}, 8
        s_nop 7
        s_branch {L}_DISP{b}
{L}_END{b}:
        s_mov_b32 s{sCNT}, s{sREM}
        s_bitset0_b64 s[{sNZ}:{sNZ+1}], s{sNODE}
        s_ff1_i32_b64 s{sNODE}, s[{sNZ}:{sNZ+1}]
        s_lshl_b32 s{sTMP}, s{sNODE}, 9
        v_readlane_b32 s{sREM}, v{NCNT}, s{sNODE}
        v_add_u32 v{QAD}, s{sTMP}, v{L8}
        """)
        qreads()
        a(f"""
{L}_DISP{b}:
        s_cmp_gt_u32 s{sCNT}, 4
        s_cbranch_scc1 {L}_DH{b}
        s_cmp_gt_u32 s{sCNT}, 2
        s_cbranch_scc1 {L}_D34_{b}
        s_cmp_eq_u32 s{sCNT}, 2
        s_cbranch_scc1 {L}_V{b}_2
        s_branch {L}_V{b}_1
{L}_D34_{b}:
        s_cmp_eq_u32 s{sCNT}, 4
        s_cbranch_scc1 {L}_V{b}_4
        s_branch {L}_V{b}_3
{L}_DH{b}:
        s_cmp_gt_u32 s{sCNT}, 6
        s_cbranch_scc1 {L}_D78_{b}
        s_cmp_eq_u32 s{sCNT}, 6
        s_cbranch_scc1 {L}_V{b}_6
        s_branch {L}_V{b}_5
{L}_D78_{b}:
        s_cmp_eq_u32 s{sCNT}, 7
        s_cbranch_scc1 {L}_V{b}_7
        """)
        for c in range(8, 0, -1):
            a(f"{L}_V{b}_{c}:")
            edge(dc, c-1)
        a(f"s_cmp_eq_u32 s{sLEFT}, 0\ns_cbranch_scc1 {L}_FIN")
        a("s_waitcnt lgkmcnt(0)")
        mfmas(dn)
        a(f"s_cmp_lt_u32 s{sLEFT}, 3\ns_cbranch_scc1 {L}_NE{b}")
        dma(1-b)
        a(f"{L}_NE{b}:")
        flush()
        a(f"""
        s_mul_i32 s{sTMP}, s{sNODE}, {AGS}
        s_mov_b32 s{sRUN}, 0
        v_add_u32 v{AAD}, s{sTMP}, v{L4}
        s_branch {nxt}
        """)
    a(f"{L}_FIN:")
    flush()
    a("s_branch K2_MAINDONE")

def k2():
    a = Asm()
    a(f"""
mpnn_edge_kernel:
    s_cmp_ge_u32 s2, {NG}
    s_cbranch_scc1 K2_END
    s_load_dwordx2 s[4:5], s[0:1], 0
    s_load_dwordx2 s[6:7], s[0:1], 48
    s_load_dwordx2 s[{sWS}:{sWS+1}], s[0:1], 64
    v_mov_b32 v{TID}, v0
    v_lshrrev_b32 v1, 6, v0
    v_and_b32 v2, 63, v0
    v_readfirstlane_b32 s{sWV}, v1
    s_mul_i32 s3, s2, 625
    s_add_u32 s{sSTART}, s3, 15
    s_lshr_b32 s{sSTART}, s{sSTART}, 4
    s_add_u32 s3, s3, {625+15}
    s_lshr_b32 s3, s3, 4
    s_lshl_b32 s{sTMP}, s2, 10
    s_add_u32 s{sTMP}, s{sTMP}, {WS_T}
    v_and_b32 v3, 0x3fc, v0
    v_add_u32 v3, s{sTMP}, v3
    v_lshrrev_b32 v4, 4, v2
    v_and_b32 v5, 15, v2
    s_lshl_b32 s{sTMP+1}, s{sWV}, 2
    v_add_u32 v6, s{sTMP+1}, v4
    v_xor_b32 v7, v6, v5
    v_and_b32 v7, 15, v7
    v_add_u32 v6, s{sSTART}, v6
    v_lshlrev_b32 v6, 8, v6
    v_lshl_add_u32 v6, v7, 4, v6
    s_lshl_b32 s{sRING}, s{sWV}, 12
    s_add_u32 s{sRING2}, s{sRING}, 2048
    s_add_u32 s{sTMP+2}, s{sRING}, {WS_F}
    v_lshl_add_u32 v7, v2, 4, s{sTMP+2}
    s_mov_b32 s{sTMP+2}, {WS_F + 96*1024}
    v_lshl_add_u32 v8, v2, 4, s{sTMP+2}
    s_lshl_b32 s{sTMP+2}, s{sWV}, 10
    s_mov_b32 m0, s{sTMP+2}
    s_waitcnt lgkmcnt(0)
    global_load_dword v{TW}, v3, s[{sWS}:{sWS+1}]
    s_mov_b32 s{sX}, s4
    s_and_b32 s{sX+1}, s5, 0xffff
    s_mov_b32 s{sX+2}, {N*256}
    s_mov_b32 s{sX+3}, 0x20000
    s_cmp_ge_u32 s{sWV}, 12
    s_cbranch_scc1 K2_NOX
    buffer_load_dwordx4 v6, s[{sX}:{sX+3}], 0 offen lds
K2_NOX:
    global_load_dwordx4 v[16:19], v7, s[{sWS}:{sWS+1}]
    global_load_dwordx4 v[20:23], v7, s[{sWS}:{sWS+1}] offset:1024
    global_load_dwordx4 v[24:27], v7, s[{sWS}:{sWS+1}] offset:2048
    global_load_dwordx4 v[28:31], v7, s[{sWS}:{sWS+1}] offset:3072
    global_load_dwordx4 v[{W3}:{W3+3}], v8, s[{sWS}:{sWS+1}]
    s_mov_b32 s{sP}, s{sWS}
    s_and_b32 s{sP+1}, s{sWS+1}, 0xffff
    s_or_b32 s{sP+1}, s{sP+1}, {256 << 16}
    s_mov_b32 s{sP+2}, {N}
    s_mov_b32 s{sP+3}, 0x20000
    s_mov_b32 s{sO}, s6
    s_and_b32 s{sO+1}, s7, 0xffff
    s_lshl_b32 s{sO+2}, s3, 8
    s_mov_b32 s{sO+3}, 0x20000
    s_mov_b32 s{sMODE}, 0
    s_mov_b32 s{sONE}, 1.0
    s_mov_b32 s{sONE+1}, 1.0
    v_lshlrev_b32 v9, 3, v2
    v_add_u32 v{L8}, {QS}, v9
    v_add_u32 v{PAD}, s{sRING}, v9
    v_lshlrev_b32 v9, 2, v2
    v_add_u32 v{L4}, {AGG}, v9
    v_lshlrev_b32 v{IX0+1}, 4, v5
    v_lshlrev_b32 v{IX1+1}, 4, v5
    ; m = l&31, hk = l>>5, e = 2*(m>>3) + ((m>>1)&1), H = (m>>2)&1, c0 = m&1
    v_lshrrev_b32 v9, 5, v2
    v_bfe_u32 v10, v2, 2, 1
    v_and_b32 v11, 1, v2
    v_bfe_u32 v12, v2, 1, 1
    v_bfe_u32 v13, v2, 3, 2
    v_lshl_add_u32 v13, v13, 1, v12
    v_mov_b32 v{AE}, 0
    v_mov_b32 v{AE+1}, 0
    v_mov_b32 v{AE+2}, 0
    v_mov_b32 v{AE+3}, 0
    v_xor_b32 v14, v9, v10
    v_lshl_add_u32 v14, v14, 1, v11
    v_cmp_eq_u32 s[{sM0}:{sM0+1}], 0, v14
    v_cmp_eq_u32 s[{sM1}:{sM1+1}], 1, v14
    v_lshlrev_b32 v99, 3, v13
    v_lshlrev_b32 v14, 4, v11
    v_mov_b32 v15, 0x3f80
    v_lshlrev_b32 v14, v14, v15
    v_cmp_eq_u32 vcc, v9, v12
    v_lshrrev_b32 v15, 1, v13
    v_lshl_add_u32 v15, v15, 1, v10
    v_cndmask_b32 v14, 0, v14, vcc
    """)
    for q in range(8):
        a(f"v_cmp_eq_u32 vcc, {q}, v15\ns_nop 1\nv_cndmask_b32 v{ID+q}, 0, v14, vcc")
    a(f"""
    v_lshrrev_b32 v9, 7, v{TID}
    v_bfe_u32 v10, v{TID}, 2, 5
    v_lshl_add_u32 v9, v10, 3, v9
    s_movk_i32 s{sTMP}, {REC_STRIDE}
    v_mul_u32_u24 v9, s{sTMP}, v9
    v_and_b32 v10, 3, v{TID}
    v_mad_u32_u24 v9, v10, 12, v9
    v_add_u32 v{RAD}, {WS_REC}, v9
K2_RESTART:
    s_mov_b32 s{sR0}, 0
    s_mov_b32 s{sR}, {RMAX}
    v_mov_b32 v{NANC}, 0
    v_mov_b32 v{NANC+1}, 0
    v_mov_b32 v{MAXC}, 0
    v_lshlrev_b32 v9, 4, v{TID}
    v_add_u32 v9, {AGG}, v9
    v_mov_b32 v32, 0
    v_mov_b32 v33, 0
    v_mov_b32 v34, 0
    v_mov_b32 v35, 0
    ds_write_b128 v9, v[32:35]
    s_cmp_ge_u32 s{sWV}, 5
    s_cbranch_scc1 K2_Z1
    ds_write_b128 v9, v[32:35] offset:16384
K2_Z1:
K2_PASS:
    v_lshlrev_b32 v9, 2, v{TID}
    v_add_u32 v9, {SS}, v9
    v_mov_b32 v10, -1
    ds_write_b32 v9, v10
    s_waitcnt vmcnt(5)
    v_and_b32 v9, 0xffff, v{TW}
    v_lshrrev_b32 v{RCNT}, 16, v{TW}
    s_lshl_b32 s{sTMP}, s{sR0}, 2
    v_add_u32 v9, s{sTMP}, v9
    v_mad_u32_u24 v9, v9, 12, v{RAD}
    s_add_u32 s{sTMP+1}, s{sR0}, s{sR}
    s_lshl_b32 s{sTMP+1}, s{sTMP+1}, 2
    v_min_u32 v10, s{sTMP+1}, v{RCNT}
    v_and_b32 v11, 3, v{TID}
    v_add_u32 v11, s{sTMP}, v11
    v_sub_u32 v10, v10, v11
    """)
    for r in range(RMAX):
        a(f"v_cmp_lt_i32 s[{sEX+2*r}:{sEX+2*r+1}], {4*r}, v10")
    a("s_nop 0")
    for r in range(RMAX):
        a(f"s_mov_b64 exec, s[{sEX+2*r}:{sEX+2*r+1}]\nglobal_load_dwordx3 v[{32+4*r}:{34+4*r}], v9, s[{sWS}:{sWS+1}] offset:{48*r}")
    a(f"""
    s_mov_b64 exec, -1
    v_cmp_lt_u32 vcc, s{sTMP+1}, v{RCNT}
    s_waitcnt vmcnt({RMAX}) lgkmcnt(0)
    s_barrier
    s_cbranch_vccz K2_NOMORE
    v_mov_b32 v9, {FLG}
    v_mov_b32 v10, 1
    ds_write_b32 v9, v10
K2_NOMORE:
    s_or_b32 s{sTMP}, s{sR0}, s{sMODE}
    s_cmp_eq_u32 s{sR}, {RMAX}
    s_cselect_b32 s{sTMP}, s{sTMP}, 1
    s_cmp_lg_u32 s{sTMP}, 0
    s_cbranch_scc1 K2_NOGEMM
    v_and_b32 v2, 63, v{TID}
    v_lshrrev_b32 v4, 4, v2
    v_and_b32 v5, 15, v2
    v_xor_b32 v9, v4, v5
    v_lshlrev_b32 v9, 4, v9
    v_lshl_add_u32 v9, v5, 8, v9
    v_xor_b32 v10, 64, v9
    v_xor_b32 v11, 128, v9
    v_xor_b32 v12, 192, v9
    """)
    a("v_mov_b32 v52, v9\nv_mov_b32 v53, v10\nv_mov_b32 v54, v11\nv_mov_b32 v55, v12")
    for rt in range(3):
        for ks in range(4):
            a(f"ds_read_b128 v[{4*ks}:{4*ks+3}], v{52+ks} offset:{RING + rt*4096}")
        for ks in range(4):
            a(f"s_waitcnt lgkmcnt({3-ks})")
            c = "0" if ks == 0 else f"v[{UA+4*rt}:{UA+4*rt+3}]"
            a(f"v_mfma_f32_16x16x32_bf16 v[{UA+4*rt}:{UA+4*rt+3}], v[{4*ks}:{4*ks+3}], v[{16+4*ks}:{19+4*ks}], {c}")
    a(f"""
    s_cmp_ge_u32 s{sWV}, 8
    s_cbranch_scc1 K2_NOGEMM
    s_lshr_b32 s{sTMP}, s{sWV}, 2
    s_lshl_b32 s{sTMP}, s{sTMP}, 7
    s_bfe_u32 s{sTMP+1}, s{sWV}, 0x10001
    s_lshl_b32 s{sTMP+1}, s{sTMP+1}, 8
    s_add_u32 s{sTMP}, s{sTMP}, s{sTMP+1}
    s_and_b32 s{sTMP+1}, s{sWV}, 1
    s_lshl_b32 s{sTMP+1}, s{sTMP+1}, 2
    s_add_u32 s{sTMP}, s{sTMP}, s{sTMP+1}
    s_add_u32 s{sTMP}, s{sTMP}, {QS}
    v_and_b32 v2, 63, v{TID}
    v_lshrrev_b32 v4, 4, v2
    v_and_b32 v5, 15, v2
    v_lshlrev_b32 v4, 11, v4
    v_lshl_add_u32 v4, v5, 3, v4
    v_add_u32 v4, s{sTMP}, v4
    s_mov_b32 s{sTMP+2}, {NLOG2E:#x}
    s_nop 1
    """)
    for q in range(6):
        a(f"v_pk_mul_f32 v[{UA+2*q}:{UA+2*q+1}], v[{UA+2*q}:{UA+2*q+1}], s[{sTMP+2}:{sTMP+3}] op_sel_hi:[1,0]")
    for rt in range(3):
        if rt == 2: a("s_mov_b32 exec_hi, 0")
        for r in range(4):
            a(f"ds_write_b32 v4, v{UA+4*rt+r} offset:{rt*8192 + r*512}")
    a(f"""
    s_mov_b64 exec, -1
K2_NOGEMM:
    v_mov_b32 v13, 1
    s_waitcnt vmcnt(0)
    """)
    for r in range(RMAX):
        a(f"""
        s_mov_b64 exec, s[{sEX+2*r}:{sEX+2*r+1}]
        s_cbranch_execz K2_HD
        v_lshrrev_b32 v{r}, 16, v{34+4*r}
        v_add_u32 v14, {CNT}, v{r}
        ds_add_rtn_u32 v{35+4*r}, v14, v13
        """)
    a(f"""
K2_HD:
    s_mov_b64 exec, -1
    v_subrev_u32 v9, {AGG - CNT}, v{L4}
    s_waitcnt lgkmcnt(0)
    s_barrier
    ds_read_b32 v{NCNT}, v9
    s_waitcnt lgkmcnt(0)
    v_add_u32 v10, 7, v{NCNT}
    v_lshrrev_b32 v10, 3, v10
    v_mov_b32 v11, v10
    """)
    dpp_scan(a, 11)
    a(f"""
    v_sub_u32 v12, v11, v10
    v_lshlrev_b32 v15, 3, v12
    v_readlane_b32 s{sTT}, v11, 63
    v_cmp_ne_u32 s[{sNZ}:{sNZ+1}], 0, v{NCNT}
    s_cmp_gt_u32 s{sTT}, {CAP//8}
    s_cbranch_scc1 K2_SHRINK
    """)
    for r in range(RMAX):
        a(f"ds_bpermute_b32 v{16+r}, v{r}, v15")
    a(f"""
    s_mul_i32 s{sT0}, s{sTT}, s{sWV}
    s_add_u32 s{sTMP}, s{sT0}, s{sTT}
    s_lshr_b32 s{sT0}, s{sT0}, 4
    s_lshr_b32 s{sTMP}, s{sTMP}, 4
    s_sub_u32 s{sLEFT}, s{sTMP}, s{sT0}
    v_cmp_ge_u32 vcc, s{sT0}, v11
    s_bcnt1_i32_b64 s{sNODE}, vcc
    s_min_u32 s{sNODE}, s{sNODE}, 63
    s_lshr_b64 s[{sNZ}:{sNZ+1}], s[{sNZ}:{sNZ+1}], s{sNODE}
    s_lshl_b64 s[{sNZ}:{sNZ+1}], s[{sNZ}:{sNZ+1}], s{sNODE}
    v_readlane_b32 s{sREM}, v{NCNT}, s{sNODE}
    v_readlane_b32 s{sTMP}, v12, s{sNODE}
    s_sub_u32 s{sTMP}, s{sT0}, s{sTMP}
    s_lshl_b32 s{sTMP}, s{sTMP}, 3
    s_sub_u32 s{sREM}, s{sREM}, s{sTMP}
    s_lshl_b32 s{sTMP}, s{sNODE}, 9
    v_add_u32 v{QAD}, s{sTMP}, v{L8}
    s_mul_i32 s{sTMP}, s{sNODE}, {AGS}
    v_add_u32 v{AAD}, s{sTMP}, v{L4}
    s_lshl_b32 s{sTMP}, s{sT0}, 6
    s_add_u32 s{sTMP}, s{sTMP}, {ES}
    v_add_u32 v{EAD}, s{sTMP}, v99
    s_lshl_b32 s{sTMP}, s{sT0}, 4
    s_add_u32 s{sTMP}, s{sTMP}, {SS}
    v_bfe_u32 v9, v{TID}, 4, 2
    v_lshl_add_u32 v{SAD}, v9, 1, s{sTMP}
    s_mov_b32 s{sTMP}, {ES}
    s_mov_b32 s{sTMP+1}, {SS}
    s_waitcnt lgkmcnt(0)
    """)
    for r in range(RMAX):
        a(f"""
        s_mov_b64 exec, s[{sEX+2*r}:{sEX+2*r+1}]
        s_cbranch_execz K2_SD
        v_add_u32 v9, v{16+r}, v{35+4*r}
        v_lshl_add_u32 v10, v9, 3, s{sTMP}
        v_lshl_add_u32 v9, v9, 1, s{sTMP+1}
        ds_write_b64 v10, v[{32+4*r}:{33+4*r}]
        ds_write_b16 v9, v{34+4*r}
        """)
    a(f"""
K2_SD:
    s_mov_b64 exec, -1
    s_waitcnt lgkmcnt(0)
    s_barrier
    s_cmp_eq_u32 s{sLEFT}, 0
    s_cbranch_scc1 K2_MAINDONE
    s_cmp_lg_u32 s{sMODE}, 0
    s_cbranch_scc1 S_START
    """)
    mainloop(a, False)
    mainloop(a, True)
    a(f"""
K2_SHRINK:
    s_mov_b32 s{sR}, 1
K2_REINIT:
    s_barrier
    v_subrev_u32 v9, {AGG - CNT}, v{L4}
    v_mov_b32 v10, 0
    ds_write_b32 v9, v10
    ds_write_b32 v9, v10 offset:64
    s_branch K2_PASS
K2_MAINDONE:
    s_cmp_lt_u32 s{sWV}, 8
    s_cbranch_scc1 K2_NOFA
    s_lshl_b32 s{sTMP}, s{sWV}, 12
    s_add_u32 s{sTMP}, s{sTMP}, {WS_F + 32*1024}
    v_and_b32 v16, 63, v{TID}
    v_lshl_add_u32 v16, v16, 4, s{sTMP}
    global_load_dwordx4 v[0:3], v16, s[{sWS}:{sWS+1}]
    global_load_dwordx4 v[4:7], v16, s[{sWS}:{sWS+1}] offset:1024
    global_load_dwordx4 v[8:11], v16, s[{sWS}:{sWS+1}] offset:2048
    global_load_dwordx4 v[12:15], v16, s[{sWS}:{sWS+1}] offset:3072
K2_NOFA:
    v_mov_b32 v17, {f2u(2.0**120):#x}
    v_add_f32 v18, v{NANC}, v{NANC+1}
    v_cmp_nle_f32 vcc, v{MAXC}, v17
    v_cmp_u_f32 s[{sTMP}:{sTMP+1}], v18, v18
    v_mov_b32 v19, {FLG}
    v_mov_b32 v20, 1
    s_or_b64 vcc, vcc, s[{sTMP}:{sTMP+1}]
    s_cbranch_scc0 K2_NOOVF
    ds_write_b32 v19, v20 offset:4
K2_NOOVF:
    v_lshrrev_b32 v21, 4, v{TID}
    v_and_b32 v22, 15, v{TID}
    s_movk_i32 s{sTMP}, {AGS}
    v_mul_u32_u24 v23, s{sTMP}, v21
    v_lshl_add_u32 v23, v22, 5, v23
    v_add_u32 v23, {AGG}, v23
    v_xor_b32 v24, v21, v22
    v_and_b32 v24, 15, v24
    v_lshlrev_b32 v24, 4, v24
    v_lshl_add_u32 v24, v21, 8, v24
    s_mov_b32 s{sTMP+2}, {NLN2:#x}
    s_waitcnt lgkmcnt(0)
    s_barrier
    ds_read_b64 v[26:27], v19
    s_cmp_ge_u32 s{sWV}, 10
    s_cbranch_scc1 K2_NOCV
    ds_read_b128 v[28:31], v23
    ds_read_b128 v[32:35], v23 offset:16
    s_waitcnt lgkmcnt(0)
    """)
    for q in range(4):
        a(f"v_pk_mul_f32 v[{28+2*q}:{29+2*q}], v[{28+2*q}:{29+2*q}], s[{sTMP+2}:{sTMP+3}] op_sel_hi:[1,0]")
    for q in range(4):
        a(f"v_cvt_pk_bf16_f32 v{28+q}, v{28+2*q}, v{29+2*q}")
    a(f"""
    ds_write_b128 v24, v[28:31] offset:{RING}
K2_NOCV:
    s_waitcnt lgkmcnt(0)
    v_readfirstlane_b32 s{sTMP}, v26
    v_readfirstlane_b32 s{sTMP+1}, v27
    s_cmp_lg_u32 s{sTMP+1}, 0
    s_cbranch_scc1 K2_GOSAFE
    s_cmp_lg_u32 s{sTMP}, 0
    s_cbranch_scc1 K2_NEXTPASS
    s_barrier
    s_cmp_lt_u32 s{sWV}, 8
    s_cbranch_scc1 K2_END
    v_and_b32 v16, 63, v{TID}
    v_lshrrev_b32 v17, 4, v16
    v_and_b32 v18, 15, v16
    v_xor_b32 v64, v17, v18
    v_lshlrev_b32 v64, 4, v64
    v_lshl_add_u32 v64, v18, 8, v64
    v_xor_b32 v65, 64, v64
    v_xor_b32 v66, 128, v64
    v_xor_b32 v67, 192, v64
    s_lshl_b32 s{sTMP}, s{sSTART}, 8
    s_sub_u32 s{sTMP+1}, s{sWV}, 8
    s_lshl_b32 s{sTMP+1}, s{sTMP+1}, 5
    s_add_u32 s{sTMP}, s{sTMP}, s{sTMP+1}
    v_lshlrev_b32 v68, 10, v17
    v_lshl_add_u32 v68, v18, 1, v68
    v_add_u32 v68, s{sTMP}, v68
    v_add_u32 v69, 4096, v68
    v_add_u32 v70, 8192, v68
    """)
    for rt in range(3):
        for ks in range(4):
            a(f"ds_read_b128 v[{16+16*rt+4*ks}:{19+16*rt+4*ks}], v{64+ks} offset:{RING + rt*4096}")
    a(f"s_mov_b32 s{sTMP+2}, {NLOG2E:#x}\ns_waitcnt vmcnt(0)")
    for rt in range(3):
        for ks in range(4):
            a(f"s_waitcnt lgkmcnt({11 - 4*rt - ks})")
            a(f"v_mfma_f32_16x16x32_bf16 v[{UA+4*rt}:{UA+4*rt+3}], v[{16+16*rt+4*ks}:{19+16*rt+4*ks}], v[{4*ks}:{4*ks+3}], v[{UA+4*rt}:{UA+4*rt+3}]")
    a("s_nop 1")
    for rt in range(3):
        u = UA + 4*rt
        a(f"""
        v_pk_mul_f32 v[16:17], v[{u}:{u+1}], s[{sTMP+2}:{sTMP+3}] op_sel_hi:[1,0]
        v_pk_mul_f32 v[18:19], v[{u+2}:{u+3}], s[{sTMP+2}:{sTMP+3}] op_sel_hi:[1,0]
        v_exp_f32 v16, v16
        v_exp_f32 v17, v17
        v_exp_f32 v18, v18
        v_exp_f32 v19, v19
        v_pk_add_f32 v[16:17], v[16:17], 1.0 op_sel_hi:[1,0]
        v_pk_add_f32 v[18:19], v[18:19], 1.0 op_sel_hi:[1,0]
        v_rcp_f32 v16, v16
        v_rcp_f32 v17, v17
        v_rcp_f32 v18, v18
        v_rcp_f32 v19, v19
        v_pk_mul_f32 v[16:17], v[16:17], v[{u}:{u+1}]
        v_pk_mul_f32 v[18:19], v[18:19], v[{u+2}:{u+3}]
        v_cvt_pk_bf16_f32 v{20+2*rt}, v16, v17
        v_cvt_pk_bf16_f32 v{21+2*rt}, v18, v19
        buffer_store_short v{20+2*rt}, v{68+rt}, s[{sO}:{sO+3}], 0 offen
        buffer_store_short_d16_hi v{20+2*rt}, v{68+rt}, s[{sO}:{sO+3}], 0 offen offset:256
        buffer_store_short v{21+2*rt}, v{68+rt}, s[{sO}:{sO+3}], 0 offen offset:512
        buffer_store_short_d16_hi v{21+2*rt}, v{68+rt}, s[{sO}:{sO+3}], 0 offen offset:768
        """)
    a(f"""
K2_END:
    s_endpgm
K2_NEXTPASS:
    s_add_u32 s{sR0}, s{sR0}, s{sR}
    s_waitcnt vmcnt(0)
    s_branch K2_REINIT
K2_GOSAFE:
    s_mov_b32 s{sMODE}, 1
    s_waitcnt vmcnt(0)
    s_barrier
    s_branch K2_RESTART
    """)
    return a.text()

HEADER = """; Kernarg layout for this problem (72 bytes, ptrs only, base s[0:1]):
"""
def desc(name, vgpr, sgpr):
    return f""".p2align 6
.amdhsa_kernel {name}
  .amdhsa_next_free_vgpr {vgpr}
  .amdhsa_next_free_sgpr {sgpr}
  .amdhsa_accum_offset {(vgpr+3)//4*4}
  .amdhsa_group_segment_fixed_size 0
  .amdhsa_kernarg_size 72
  .amdhsa_user_sgpr_count 2
  .amdhsa_user_sgpr_kernarg_segment_ptr 1
  .amdhsa_system_sgpr_workgroup_id_x 1
.end_amdhsa_kernel
"""
def main():
    s = HEADER
    s += f"; @launch kernel=mpnn_prep_kernel grid=({NG+NGEMM},1,1) block=(640,1,1) lds={K1_LDS}\n"
    s += f"; @launch kernel=mpnn_edge_kernel grid=({NG},1,1) block=(1024,1,1) lds={K2_LDS}\n"
    s += '.amdgcn_target "amdgcn-amd-amdhsa--gfx950"\n.text\n'
    for name, body in (("mpnn_prep_kernel", k1()), ("mpnn_edge_kernel", k2())):
        s += f".globl {name}\n.p2align 8\n.type {name},@function\n" + body
    s += '.section .rodata,"a"\n' + desc("mpnn_prep_kernel", 80, 48) + desc("mpnn_edge_kernel", K2_VGPR, 64)
    open(sys.argv[1], "w").write(s)
main()
```

```python
import sys, struct

N = 10000; E = 320000
NG = 256
EPW = 1280
REC_STRIDE = 15360
WS_P = 0
WS_REC = 0x280000
WS_T = 0x640000
WS_F = 0x6C0000
NGEMM = 209
LOG2E = 1.4426950408889634
def f2u(x): return struct.unpack("<I", struct.pack("<f", x))[0]
NLOG2E = f2u(-LOG2E)
NLN2 = f2u(-0.6931471805599453)

class Asm:
    def __init__(self): self.l = []
    def __call__(self, s):
        for ln in s.strip("\n").split("\n"):
            ln = ln.strip()
            if ln.startswith("@stamp"): stamp(self, int(ln.split()[1])); continue
            if ln.startswith("@rt"): stamp_rt(self, int(ln.split()[1])); continue
            if ln.startswith("@store"):
                p = ln.split(); stamp_store(self, int(p[1]), int(p[2]), int(p[3])); continue
            if ln: self.l.append(ln if ln.endswith(":") else "    " + ln)
    def text(self): return "\n".join(self.l) + "\n"

OPT = dict(a.split("=") if "=" in a else (a, "1") for a in sys.argv[2:])

DIAG = "diag" in OPT
WS_DIAG = 0x800000
def stamp(a, i):
    if DIAG: a(f"s_memtime s[{64+2*i}:{65+2*i}]\ns_waitcnt lgkmcnt(0)")
def stamp_rt(a, i):
    if DIAG: a(f"s_memrealtime s[{64+2*i}:{65+2*i}]\ns_waitcnt lgkmcnt(0)")
def stamp_store(a, wsreg, tidv, base, n=16):
    if not DIAG: return
    a(f"s_waitcnt vmcnt(0)")
    stamp(a, n-2); stamp_rt(a, n-1)
    a(f"s_mov_b64 exec, -1\nv_lshrrev_b32 v1, 6, v{tidv}\ns_lshl_b32 s3, s2, 4\nv_add_u32 v1, s3, v1\nv_lshlrev_b32 v1, 6, v1\nv_add_u32 v1, {base}, v1")
    for i in range(n):
        a(f"v_mov_b32 v2, s{64+2*i}\nglobal_store_dword v1, v2, s[{wsreg}:{wsreg+1}] offset:{4*i}")
def dpp_scan(a, v):
    for sh in (1, 2, 4, 8):
        a(f"s_nop 1\nv_add_u32_dpp v{v}, v{v}, v{v} row_shr:{sh} row_mask:0xf bank_mask:0xf bound_ctrl:0")
    a(f"s_nop 1\nv_add_u32_dpp v{v}, v{v}, v{v} row_bcast:15 row_mask:0xa bank_mask:0xf")
    a(f"s_nop 1\nv_add_u32_dpp v{v}, v{v}, v{v} row_bcast:31 row_mask:0xc bank_mask:0xf")

CNT = 0; FLG = 256; NON = 272
CAP = 2048
SS = 512
QS = SS + CAP*2 + 256
ES = QS + 40*512
AGG = ES + CAP*8
RING = 82944
STAGE = RING + 65536
LDS_BYTES = STAGE + 15360
W1S = RING; W2S = RING + 32768; WTS = AGG; XS = ES
HIST = ES + 12288; OFFS = HIST + 1024; W3S = OFFS + 1024
RMAX = 5
NPROD = E // EPW
D0, D1, QR, VU, BP, AE, ID, W3 = 0, 16, 32, 48, 64, 72, 76, 84
VA, NUM, DEN, NANC, MAXC = 88, 90, 92, 94, 96
EAD, SAD, PAD, IX0, IX1, QAD, AAD, L8, NCNT, TID, TW = 97, 98, 99, 100, 102, 104, 105, 106, 107, 108, 109
RAD, E8 = 110, 111
UA = 112
G2 = 124; VG = 125; VJ = 126; VL = 127
NVGPR = 128
sWS = 20; sWV = 22; sSTART = 23
sX = 24; sW = 28; sP = 24; sO = 28; sREC = 4; sW2 = 40
sR0 = 8; sR = 9; sMODE = 10; sLEFT = 11; sREM = 12; sNODE = 14; sCNT = 16; sRUN = 17; sTT = 18; sT0 = 19
sNZ = 32; sM0 = 34; sM1 = 36; sONE = 38; sRING = 40; sTMP = 44; sG = 49
sEX = 50
sNON = 60
sEND = 62; sSPIN = 63
SPINMAX = 400000
KN = "gather_scatter__mpnn_edge_mlp__graph_kernel"

def mainloop(a, safe):
    L = "S" if safe else "F"
    def ex(d, k):
        if "x_novalu" in OPT: a("s_nop 0"); return
        a(f"v_exp_f32 v{VU+k}, v{d+k}")
    def pk(d, e):
        t = d + 2*e; u = VU + 2*e
        if "x_novalu" in OPT: return
        if not safe:
            a(f"""
            v_pk_fma_f32 v[{VA}:{VA+1}], v[{t}:{t+1}], v[{DEN}:{DEN+1}], v[{NUM}:{NUM+1}]
            v_pk_fma_f32 v[{DEN}:{DEN+1}], v[{DEN}:{DEN+1}], v[{u}:{u+1}], v[{DEN}:{DEN+1}]
            v_pk_fma_f32 v[{NUM}:{NUM+1}], v[{NUM}:{NUM+1}], v[{u}:{u+1}], v[{VA}:{VA+1}]
            """)
        else:
            a(f"""
            v_pk_add_f32 v[{u}:{u+1}], v[{u}:{u+1}], 1.0 op_sel_hi:[1,0]
            v_rcp_f32 v{u}, v{u}
            v_rcp_f32 v{u+1}, v{u+1}
            s_nop 0
            v_pk_fma_f32 v[{NUM}:{NUM+1}], v[{t}:{t+1}], v[{u}:{u+1}], v[{NUM}:{NUM+1}]
            """)
    def flush():
        if not safe:
            a(f"""
            v_rcp_f32 v{VU}, v{DEN}
            v_rcp_f32 v{VU+1}, v{DEN+1}
            v_max3_f32 v{MAXC}, v{MAXC}, v{DEN}, v{DEN+1}
            v_pk_mul_f32 v[{VA}:{VA+1}], v[{NUM}:{NUM+1}], v[{VU}:{VU+1}]
            v_mov_b64 v[{DEN}:{DEN+1}], s[{sONE}:{sONE+1}]
            v_mov_b64 v[{NUM}:{NUM+1}], 0
            v_cvt_f64_f32 v[{VU}:{VU+1}], v{VA}
            v_cvt_f64_f32 v[{VU+2}:{VU+3}], v{VA+1}
            v_pk_fma_f32 v[{NANC}:{NANC+1}], v[{VA}:{VA+1}], 0, v[{NANC}:{NANC+1}] op_sel_hi:[1,0,1]
            """)
        else:
            a(f"""
            v_cvt_f64_f32 v[{VU}:{VU+1}], v{NUM}
            v_cvt_f64_f32 v[{VU+2}:{VU+3}], v{NUM+1}
            v_mov_b64 v[{NUM}:{NUM+1}], 0
            """)
        a(f"ds_add_f64 v{AAD}, v[{VU}:{VU+1}] offset:{AGG}\nds_add_f64 v{AAD}, v[{VU+2}:{VU+3}] offset:{AGG+512}")
    def breads(slot, eoff):
        if "x_nolds" in OPT: return
        for q in range(4):
            a(f"ds_read_b64 v[{BP+2*q}:{BP+2*q+1}], v{PAD} offset:{slot*2048 + q*512}")
        a(f"""
        s_mov_b64 exec, s[{sM0}:{sM0+1}]
        ds_read_b64 v[{AE}:{AE+1}], v{EAD} offset:{ES+eoff}
        s_mov_b64 exec, s[{sM1}:{sM1+1}]
        ds_read_b64 v[{AE+2}:{AE+3}], v{EAD} offset:{ES+eoff}
        s_mov_b64 exec, -1
        """)
    def idxreads(soff):
        a(f"ds_read_u16 v{IX0}, v{SAD} offset:{SS+soff}\nds_read_u16 v{IX1}, v{SAD} offset:{SS+soff+8}")
    def qreads():
        for q in range(8):
            a(f"ds_read_b64 v[{QR+2*q}:{QR+2*q+1}], v{QAD} offset:{QS}")
    def mfma(d, k):
        if "x_nomfma" in OPT: return
        if k == 0: a(f"v_mfma_f32_32x32x16_bf16 v[{d}:{d+15}], v[{AE}:{AE+3}], v[{W3}:{W3+3}], v[{QR}:{QR+15}]")
        else: a(f"v_mfma_f32_32x32x16_bf16 v[{d}:{d+15}], v[{ID+4*k-4}:{ID+4*k-1}], v[{BP+4*k-4}:{BP+4*k-1}], v[{d}:{d+15}]")
    def dma(slot, f1="s_nop 0", f2="s_nop 0"):
        if "x_nodma" in OPT: a(f1 + "\n" + f2); return
        a(f"""
        s_mov_b32 m0, s{sRING+2*slot}
        {f1}
        buffer_load_dwordx4 v[{IX0}:{IX0+1}], s[{sP}:{sP+3}], 0 idxen offen sc1 lds
        s_mov_b32 m0, s{sRING+2*slot+1}
        {f2}
        buffer_load_dwordx4 v[{IX1}:{IX1+1}], s[{sP}:{sP+3}], 0 idxen offen sc1 lds
        """)
    def advance(rdst, ndst, nsrc):
        a(f"""
        s_bitset0_b64 s[{sNZ}:{sNZ+1}], s{nsrc}
        s_ff1_i32_b64 s{ndst}, s[{sNZ}:{sNZ+1}]
        v_readlane_b32 s{rdst}, v{NCNT}, s{ndst}
        v_lshl_add_u32 v{QAD}, s{ndst}, 9, v{L8}
        """)
        qreads()
    def tree(name, labels):
        a(f"""
{name}:
        s_cmp_gt_u32 s{sCNT}, 3
        s_cbranch_scc1 {name}_H
        s_cmp_eq_u32 s{sCNT}, 2
        s_cbranch_scc1 {labels[2]}
        s_cmp_eq_u32 s{sCNT}, 3
        s_cbranch_scc1 {labels[3]}
        s_branch {labels[1]}
{name}_H:
        s_cmp_gt_u32 s{sCNT}, 5
        s_cbranch_scc1 {name}_HH
        s_cmp_eq_u32 s{sCNT}, 4
        s_cbranch_scc1 {labels[4]}
        s_branch {labels[5]}
{name}_HH:
        s_cmp_eq_u32 s{sCNT}, 6
        s_cbranch_scc1 {labels[6]}
        s_branch {labels[7]}
        """)
    R = (sREM, sREM+1); Nn = (sNODE, sNODE+1)
    a(f"""
{L}_START:
    {"s_setprio 3" if "noprio" not in OPT else ""}
    v_mov_b64 v[{DEN}:{DEN+1}], s[{sONE}:{sONE+1}]
    v_mov_b64 v[{NUM}:{NUM+1}], 0
    s_min_u32 s{sRUN}, s{sLEFT}, 8
    s_sub_u32 s{sRUN}, s{sRUN}, 1
    """)
    idxreads(0)
    qreads()
    a("s_waitcnt lgkmcnt(8)")
    dma(0)
    idxreads(16)
    a("s_waitcnt lgkmcnt(0)")
    dma(1)
    idxreads(32)
    a("s_waitcnt vmcnt(2)")
    breads(0, 0)
    a("s_waitcnt lgkmcnt(0)\n@stamp 9")
    dma(0)
    for k in range(3): mfma(D0, k)
    a("s_waitcnt vmcnt(2)")
    breads(1, 64)
    idxreads(48)
    a(f"""
    s_mov_b32 s{Nn[1]}, s{Nn[0]}
    s_sub_u32 s{R[1]}, s{R[0]}, 8
    s_cmp_le_u32 s{R[0]}, 8
    s_cbranch_scc0 {L}_L0B
    """)
    advance(R[1], Nn[1], Nn[0])
    a(f"s_branch {L}_L0B")
    for b in range(2):
        dc, dn = (D0, D1) if b == 0 else (D1, D0)
        nxt = f"{L}_L{1-b}"
        a(f"{L}_NODMA{b}:")
        if "noprio" not in OPT:
            a(f"""
            s_setprio 2
            s_cmp_eq_u32 s{sLEFT}, 2
            s_cbranch_scc1 {L}_PR{b}
            s_setprio 1
            s_cmp_eq_u32 s{sLEFT}, 1
            s_cbranch_scc1 {L}_PR{b}
            s_setprio 0
{L}_PR{b}:
            """)
        a(f"s_min_u32 s{sCNT}, s{R[b]}, 9\ns_waitcnt vmcnt(0)\ns_cmp_lt_u32 s{sCNT}, 8\ns_branch {L}_XB{b}")
        a(f"{L}_ADV{b}:")
        advance(R[b], Nn[b], Nn[1-b])
        a(f"s_branch {L}_BACK{b}")
        tree(f"{L}_XD{b}", {c: f"{L}_XS{b}_{c}" for c in range(1, 8)})
        for c in range(1, 8):
            a(f"{L}_XS{b}_{c}:")
            mfma(dn, 0)
            if c <= 5: mfma(dn, 1)
            if c <= 2: mfma(dn, 2)
            a(f"s_branch {L}_X{b}_{c}")
        tree(f"{L}_YD{b}", {c: f"{L}_Y{b}_{c}" for c in range(1, 8)})
        a(f"{L}_FL{b}:")
        flush()
        a(f"""
        s_cmp_eq_u32 s{sLEFT}, 0
        s_cbranch_scc1 K2_MAINDONE
        s_min_u32 s{sRUN}, s{sLEFT}, 8
        s_sub_u32 s{sRUN}, s{sRUN}, 1
        v_lshl_add_u32 v{AAD}, s{Nn[1-b]}, 10, v{L8}
        s_branch {nxt}
        """)
    for b in range(2):
        dc, dn = (D0, D1) if b == 0 else (D1, D0)
        nxt = f"{L}_L{1-b}"
        a(f"{L}_L{b}:")
        if b == 0:
            a(f"v_add_u32 v{EAD}, 128, v{EAD}\nv_add_u32 v{SAD}, 32, v{SAD}\n{L}_L0B:")
        a(f"""
        s_sub_u32 s{sLEFT}, s{sLEFT}, 1
        s_cmp_lt_u32 s{sLEFT}, 3
        s_waitcnt lgkmcnt(0)
        s_cbranch_scc1 {L}_NODMA{b}
        """)
        dma(1-b, f"s_min_u32 s{sCNT}, s{R[b]}, 9", f"s_cmp_lt_u32 s{sCNT}, 8")
        a(f"{L}_XB{b}:\ns_cbranch_scc1 {L}_XD{b}")
        mfma(dn, 0)
        for e in range(7, -1, -1):
            if e < 7 and e != 2: a(f"{L}_X{b}_{e+1}:")
            if e == 2:
                a(f"{L}_X{b}_3:")
                mfma(dn, 2)
            ex(dc, 2*e+1)
            if e == 5: mfma(dn, 1)
            ex(dc, 2*e)
        a("s_waitcnt vmcnt(2)")
        breads(b, 64*(b+2))
        idxreads(16*(b+4))
        a(f"""
        s_mov_b32 s{Nn[b]}, s{Nn[1-b]}
        s_sub_u32 s{R[b]}, s{R[1-b]}, 8
        s_cmp_le_u32 s{R[1-b]}, 8
        s_cbranch_scc1 {L}_ADV{b}
{L}_BACK{b}:
        s_cmp_lt_u32 s{sCNT}, 8
        s_cbranch_scc1 {L}_YD{b}
        """)
        for e in range(7, -1, -1):
            if e < 7: a(f"{L}_Y{b}_{e+1}:")
            pk(dc, e)
        a(f"""
        s_cmp_lt_u32 s{sCNT}, 9
        s_cbranch_scc1 {L}_FL{b}
        s_sub_u32 s{sRUN}, s{sRUN}, 1
        s_cbranch_scc1 {L}_FL{b}
        """)
        if b == 1: a(f"s_branch {nxt}")


def kernel():
    a = Asm()
    a(f"""
{KN}:
    s_cmp_ge_u32 s2, {NG}
    s_cbranch_scc1 K_END
    @rt 0
    @stamp 1
    s_load_dwordx16 s[4:19], s[0:1], 0
    s_load_dwordx2 s[{sWS}:{sWS+1}], s[0:1], 64
    v_mov_b32 v{TID}, v0
    v_lshrrev_b32 v1, 6, v0
    v_and_b32 v{VL}, 63, v0
    v_readfirstlane_b32 s{sWV}, v1
    s_and_b32 s{sG}, s2, 7
    s_lshl_b32 s{sG}, s{sG}, 5
    s_lshr_b32 s3, s2, 3
    s_or_b32 s{sG}, s{sG}, s3
    s_cmp_ge_u32 s{sWV}, 5
    s_cbranch_scc1 A_N1
    s_cmp_lt_u32 s{sG}, {NPROD}
    s_cselect_b32 s3, s{sG}, 0
    s_cselect_b64 s[{sEX}:{sEX+1}], -1, 0
    s_mul_i32 s3, s3, {EPW*4}
    v_lshl_add_u32 v8, v0, 4, s3
    v_lshlrev_b32 v9, 1, v8
    s_waitcnt lgkmcnt(0)
    global_load_dwordx4 v[12:15], v8, s[10:11]
    global_load_dwordx4 v[16:19], v8, s[8:9]
    global_load_dwordx4 v[20:23], v9, s[6:7]
    global_load_dwordx4 v[24:27], v9, s[6:7] offset:16
A_N1:
    v_lshrrev_b32 v{VG}, 4, v{VL}
    v_and_b32 v{VJ}, 15, v{VL}
    s_mul_i32 s3, s{sG}, 625
    s_add_u32 s{sSTART}, s3, 15
    s_lshr_b32 s{sSTART}, s{sSTART}, 4
    s_add_u32 s{sEND}, s3, {625+15}
    s_lshr_b32 s{sEND}, s{sEND}, 4
    v_lshlrev_b32 v6, 1, v{VG}
    v_xor_b32 v6, v6, v{VJ}
    v_lshlrev_b32 v6, 4, v6
    v_lshl_add_u32 v6, v{VG}, 8, v6
    v_xor_b32 v7, 128, v6
    s_cmp_lt_u32 s{sWV}, 5
    s_cbranch_scc1 A_Z
    s_cmp_ge_u32 s{sWV}, 13
    s_cbranch_scc1 A_G13
    s_sub_u32 s{sTMP}, s{sWV}, 5
    s_lshl_b32 s{sTMP}, s{sTMP}, 12
    s_add_u32 s{sTMP+1}, s{sTMP}, {W1S}
    s_mov_b32 m0, s{sTMP+1}
    s_waitcnt lgkmcnt(0)
    s_mov_b32 s{sW}, s12
    s_and_b32 s{sW+1}, s13, 0xffff
    s_mov_b32 s{sW+2}, 65536
    s_mov_b32 s{sW+3}, 0x20000
    buffer_load_dwordx4 v6, s[{sW}:{sW+3}], s{sTMP} offen lds
    buffer_load_dwordx4 v6, s[{sW}:{sW+3}], s{sTMP} offen offset:1024 lds
    buffer_load_dwordx4 v7, s[{sW}:{sW+3}], s{sTMP} offen offset:2048 lds
    buffer_load_dwordx4 v7, s[{sW}:{sW+3}], s{sTMP} offen offset:3072 lds
    s_branch A_Z
A_G13:
    s_cmp_eq_u32 s{sWV}, 15
    s_cbranch_scc1 A_G15
    s_sub_u32 s{sTMP}, s{sWV}, 13
    s_mul_i32 s{sTMP}, s{sTMP}, 20
    v_add_u32 v8, s{sTMP}, v{VG}
    s_lshl_b32 s{sTMP+1}, s{sTMP}, 8
    s_add_u32 s{sTMP+1}, s{sTMP+1}, {XS}
    s_lshl_b32 s{sTMP+2}, s{sSTART}, 8
    s_waitcnt lgkmcnt(0)
    s_mov_b32 s{sX}, s4
    s_and_b32 s{sX+1}, s5, 0xffff
    s_mov_b32 s{sX+2}, {N*256}
    s_mov_b32 s{sX+3}, 0x20000
    """)
    for i in range(5):
        a(f"""
        s_mov_b32 m0, s{sTMP+1}
        v_xor_b32 v9, v8, v{VJ}
        v_and_b32 v9, 15, v9
        v_lshlrev_b32 v9, 4, v9
        v_lshl_add_u32 v9, v8, 8, v9
        buffer_load_dwordx4 v9, s[{sX}:{sX+3}], s{sTMP+2} offen lds
        """)
        if i < 4: a(f"v_add_u32 v8, 4, v8\ns_add_u32 s{sTMP+1}, s{sTMP+1}, 1024")
    a(f"""
    s_branch A_Z
A_G15:
    s_waitcnt lgkmcnt(0)
    s_cmp_lg_u32 s2, 0
    s_cbranch_scc1 A_NOPUBN
    s_memrealtime s[{sNON}:{sNON+1}]
    v_mov_b32 v8, 0
    s_waitcnt lgkmcnt(0)
    s_or_b32 s{sNON}, s{sNON}, 1
    v_mov_b32 v10, s{sNON}
    v_mov_b32 v11, s{sNON+1}
    s_mov_b64 exec, 1
    global_store_dwordx2 v8, v[10:11], s[18:19] sc1
    s_mov_b64 exec, -1
A_NOPUBN:
    v_bfe_u32 v9, v{VL}, 4, 1
    v_lshlrev_b32 v9, 6, v9
    v_lshrrev_b32 v10, 5, v{VL}
    v_lshl_add_u32 v9, v10, 5, v9
    v_add_u32 v9, v9, v{VJ}
    v_lshlrev_b32 v9, 1, v9
    v_add_u32 v8, {256*256}, v9
    """)
    for s in range(8):
        a(f"global_load_ushort v{16 + s}, v8, s[12:13] offset:{(s & 3)*256 + (s >> 2)*32}")
    a(f"""
    s_and_b32 s{sTMP}, s{sG}, 1
    s_lshl_b32 s{sTMP}, s{sTMP}, 3
    s_bfe_u32 s{sTMP+1}, s{sG}, 0x10001
    s_lshl_b32 s{sTMP+1}, s{sTMP+1}, 6
    s_add_u32 s{sTMP}, s{sTMP}, s{sTMP+1}
    s_add_u32 s{sTMP}, s{sTMP}, 128
    s_lshl_b32 s{sTMP}, s{sTMP}, 8
    s_bfe_u32 s{sTMP+1}, s{sG}, 0x30002
    s_lshl_b32 s{sTMP+1}, s{sTMP+1}, 5
    s_add_u32 s{sTMP}, s{sTMP}, s{sTMP+1}
    v_lshlrev_b32 v8, 9, v{VG}
    v_lshl_add_u32 v8, v{VJ}, 1, v8
    v_add_u32 v8, s{sTMP}, v8
    v_add_u32 v9, {32*256}, v8
    v_add_u32 v10, {16*256}, v8
    v_add_u32 v11, {48*256}, v8
    s_cmp_ge_u32 s{sG}, 32
    s_cbranch_scc1 A_Z
    """)
    for s in range(8):
        a(f"global_load_ushort v{24 + s}, v{8 + (s >> 1)}, s[14:15] offset:{(s & 1)*256}")
    a(f"""
A_Z:
    v_lshlrev_b32 v5, 2, v{TID}
    v_mov_b32 v2, -1
    ds_write_b32 v5, v2 offset:{SS}
    s_cmp_ge_u32 s{sWV}, 5
    s_cbranch_scc1 A_NOZ
    s_mov_b32 s{sTMP}, {HIST}
    s_cmp_eq_u32 s{sWV}, 4
    s_cselect_b32 s{sTMP}, {CNT - 1024}, s{sTMP}
    v_add_u32 v3, s{sTMP}, v5
    v_mov_b32 v2, 0
    ds_write_b32 v3, v2
    ds_write_b32 v2, v2 offset:{FLG}
    ds_write_b32 v2, v2 offset:{FLG+4}
A_NOZ:
    s_lshl_b32 s{sTMP}, s{sWV}, 12
    s_add_u32 s{sTMP+1}, s{sTMP}, 32768
    s_sub_u32 s{sTMP+2}, s{sTMP}, 32768
    s_add_u32 s{sTMP+3}, s{sTMP}, {W2S}
    s_add_u32 s{sTMP}, s{sTMP+2}, {WTS}
    s_cmp_lt_u32 s{sWV}, 8
    s_cselect_b32 s{sW2}, s12, s14
    s_cselect_b32 s{sW2+1}, s13, s15
    s_cselect_b32 s{sTMP+1}, s{sTMP+1}, s{sTMP+2}
    s_cselect_b32 s{sTMP}, s{sTMP+3}, s{sTMP}
    s_and_b32 s{sW2+1}, s{sW2+1}, 0xffff
    s_mov_b32 s{sW2+2}, 65536
    s_mov_b32 s{sW2+3}, 0x20000
    s_mov_b32 m0, s{sTMP}
    s_waitcnt lgkmcnt(0)
    @stamp 2
    s_barrier
    buffer_load_dwordx4 v6, s[{sW2}:{sW2+3}], s{sTMP+1} offen lds
    buffer_load_dwordx4 v6, s[{sW2}:{sW2+3}], s{sTMP+1} offen offset:1024 lds
    buffer_load_dwordx4 v7, s[{sW2}:{sW2+3}], s{sTMP+1} offen offset:2048 lds
    buffer_load_dwordx4 v7, s[{sW2}:{sW2+3}], s{sTMP+1} offen offset:3072 lds
    ; m = l&31, hk = l>>5, e = 2*(m>>3) + ((m>>1)&1), H = (m>>2)&1, c0 = m&1
    v_lshlrev_b32 v{L8}, 3, v{VL}
    v_lshlrev_b32 v{IX0+1}, 4, v{VJ}
    v_lshlrev_b32 v{IX1+1}, 4, v{VJ}
    v_lshlrev_b32 v{G2}, 1, v{VG}
    v_lshrrev_b32 v1, 5, v{VL}
    v_bfe_u32 v2, v{VL}, 2, 1
    v_and_b32 v3, 1, v{VL}
    v_bfe_u32 v4, v{VL}, 1, 1
    v_bfe_u32 v5, v{VL}, 3, 2
    v_lshl_add_u32 v5, v5, 1, v4
    v_mov_b64 v[{AE}:{AE+1}], 0
    v_mov_b64 v[{AE+2}:{AE+3}], 0
    v_xor_b32 v6, v1, v2
    v_lshl_add_u32 v6, v6, 1, v3
    v_cmp_eq_u32 s[{sM0}:{sM0+1}], 0, v6
    v_cmp_eq_u32 s[{sM1}:{sM1+1}], 1, v6
    v_lshlrev_b32 v{E8}, 3, v5
    v_lshlrev_b32 v6, 4, v3
    v_mov_b32 v7, 0x3f80
    v_lshlrev_b32 v6, v6, v7
    v_cmp_eq_u32 vcc, v1, v4
    v_lshrrev_b32 v7, 1, v5
    v_lshl_add_u32 v7, v7, 1, v2
    v_cndmask_b32 v6, 0, v6, vcc
    """)
    for q in range(8):
        a(f"v_cmp_eq_u32 vcc, {q}, v7\ns_nop 1\nv_cndmask_b32 v{ID+q}, 0, v6, vcc")
    a(f"""
    v_lshrrev_b32 v1, 2, v{TID}
    s_movk_i32 s{sTMP}, {REC_STRIDE}
    v_mul_u32_u24 v2, s{sTMP}, v1
    v_and_b32 v3, 3, v{TID}
    v_mad_u32_u24 v{RAD}, v3, 12, v2
    s_lshl_b32 s{sTMP}, s{sG}, 3
    s_add_u32 s{sTMP}, s{sTMP}, {WS_T}
    v_lshl_add_u32 v{EAD}, v1, 11, s{sTMP}
    v_xor_b32 v1, v{VG}, v{VJ}
    v_lshlrev_b32 v1, 4, v1
    v_lshl_add_u32 v{VA}, v{VJ}, 8, v1
    v_xor_b32 v{VA+1}, 64, v{VA}
    v_xor_b32 v{VA+2}, 128, v{VA}
    v_xor_b32 v{VA+3}, 192, v{VA}
    v_bfe_u32 v1, v{VL}, 2, 2
    v_and_b32 v2, 1, v{VG}
    v_lshl_or_b32 v2, v2, 2, v1
    v_lshlrev_b32 v2, 1, v2
    v_bfe_u32 v3, v{VL}, 1, 1
    v_xor_b32 v2, v2, v3
    v_lshlrev_b32 v2, 4, v2
    v_and_b32 v3, 1, v{VL}
    v_lshl_add_u32 v2, v3, 3, v2
    v_lshl_add_u32 v1, v{VG}, 3, v1
    v_lshl_add_u32 v{VA+4}, v1, 8, v2
    s_cmp_ge_u32 s{sWV}, 5
    s_cbranch_scc1 A_G2
    s_movk_i32 s{sTMP}, 625
    s_mov_b32 s{sTMP+1}, 214749
    v_mov_b32 v1, 1
    v_lshlrev_b32 v2, 4, v{VL}
    s_mov_b64 exec, s[{sEX}:{sEX+1}]
    s_waitcnt vmcnt(7)
    """)
    for i in range(4):
        a(f"v_mul_u32_u24 v{28+i}, s{sTMP+1}, v{12+i}")
    for i in range(4):
        a(f"v_lshrrev_b32 v{28+i}, 23, v{28+i}\nv_lshlrev_b32 v{32+i}, 2, v{28+i}\nds_add_rtn_u32 v{36+i}, v{32+i}, v1 offset:{HIST}")
    for i in range(4):
        a(f"v_mad_u32_u24 v{28+i}, v{28+i}, s{sTMP}, 15\nv_lshrrev_b32 v{28+i}, 4, v{28+i}\nv_sub_u32 v{28+i}, v{12+i}, v{28+i}")
    a(f"""
    s_mov_b64 exec, -1
    s_waitcnt lgkmcnt(0)
    @stamp 3
    s_barrier
    ds_read_b128 v[40:43], v2 offset:{HIST}
    s_waitcnt lgkmcnt(0)
    v_add_u32 v44, v40, v41
    v_add3_u32 v44, v44, v42, v43
    v_mov_b32 v45, v44
    """)
    dpp_scan(a, 45)
    a(f"""
    v_sub_u32 v48, v45, v44
    v_add_u32 v49, v48, v40
    v_add_u32 v50, v49, v41
    v_add_u32 v51, v50, v42
    ds_write_b128 v2, v[48:51] offset:{OFFS}
    s_mov_b64 exec, s[{sEX}:{sEX+1}]
    s_mov_b32 s{sTMP}, {STAGE}
    s_waitcnt lgkmcnt(0)
    """)
    for i in range(4):
        a(f"ds_read_b32 v{40+i}, v{32+i} offset:{OFFS}")
    a("s_waitcnt vmcnt(6)")
    for i in range(4):
        a(f"v_lshl_or_b32 v{16+i}, v{28+i}, 18, v{16+i}")
    a("s_waitcnt vmcnt(4)")
    for i in range(4):
        a(f"""
        s_waitcnt lgkmcnt({3-i if i == 0 else 3-i+2*i})
        v_add_u32 v{40+i}, v{40+i}, v{36+i}
        v_mad_u32_u24 v{40+i}, v{40+i}, 12, s{sTMP}
        ds_write2_b32 v{40+i}, v{20+2*i}, v{21+2*i} offset0:0 offset1:1
        ds_write_b32 v{40+i}, v{16+i} offset:8
        """)
    a(f"""
    s_mov_b64 exec, -1
    s_waitcnt vmcnt(0)
    s_branch A_JOIN
A_G2:
    s_cmp_ge_u32 s{sWV}, 11
    s_cbranch_scc1 A_G11
    s_sub_u32 s{sTMP}, s{sWV}, 5
    s_and_b32 s{sTMP+1}, s{sTMP}, 1
    s_lshr_b32 s{sTMP}, s{sTMP}, 1
    s_lshl_b32 s{sTMP+2}, s{sTMP}, 12
    v_add_u32 v0, s{sTMP+2}, v{VA}
    v_add_u32 v1, s{sTMP+2}, v{VA+1}
    v_add_u32 v2, s{sTMP+2}, v{VA+2}
    v_add_u32 v3, s{sTMP+2}, v{VA+3}
    s_lshl_b32 s{sTMP+1}, s{sTMP+1}, 7
    v_xor_b32 v4, s{sTMP+1}, v{VA+4}
    v_add_u32 v4, {W1S}, v4
    v_xor_b32 v5, 32, v4
    v_xor_b32 v6, 64, v4
    v_xor_b32 v7, 96, v4
    s_add_u32 s{sTMP+2}, s{sTMP+2}, s{sTMP+1}
    s_lshl_b32 s{sTMP+1}, s{sSTART}, 8
    s_add_u32 s{sTMP+2}, s{sTMP+2}, s{sTMP+1}
    v_lshlrev_b32 v{VA+5}, 10, v{VG}
    v_lshl_add_u32 v{VA+5}, v{VJ}, 3, v{VA+5}
    v_add_u32 v{VA+5}, s{sTMP+2}, v{VA+5}
    s_mov_b32 s{sTMP+2}, {NLOG2E:#x}
    s_waitcnt vmcnt(4)
    @stamp 3
    s_barrier
    """)
    for ks in range(4):
        a(f"ds_read_b128 v[{40+4*ks}:{43+4*ks}], v{ks} offset:{XS}")
    def breads(ks):
        b = 8 + 16*(ks & 1)
        for i in range(4):
            for h in range(2):
                a(f"ds_read_b64_tr_b16 v[{b+4*i+2*h}:{b+4*i+2*h+1}], v{4+i} offset:{8192*ks + 1024*h}")
    breads(0)
    for ks in range(4):
        if ks < 3:
            breads(ks+1)
            a("s_waitcnt lgkmcnt(8)")
        else:
            a("s_waitcnt lgkmcnt(0)")
        b = 8 + 16*(ks & 1)
        for i in range(4):
            c = "0" if ks == 0 else f"v[{56+4*i}:{59+4*i}]"
            a(f"v_mfma_f32_16x16x32_bf16 v[{56+4*i}:{59+4*i}], v[{40+4*ks}:{43+4*ks}], v[{b+4*i}:{b+4*i+3}], {c}")
    a(f"""
    s_cmp_eq_u32 s{sTMP}, 2
    s_cselect_b32 exec_hi, 0, -1
    s_nop 5
    """)
    for q in range(8):
        a(f"v_pk_mul_f32 v[{56+2*q}:{57+2*q}], v[{56+2*q}:{57+2*q}], s[{sTMP+2}:{sTMP+3}] op_sel_hi:[1,0]")
    for r in range(4):
        a(f"v_cvt_pk_bf16_f32 v{8+2*r}, v{56+r}, v{60+r}\nv_cvt_pk_bf16_f32 v{9+2*r}, v{64+r}, v{68+r}")
        a(f"global_store_dwordx2 v{VA+5}, v[{8+2*r}:{9+2*r}], s[{sWS}:{sWS+1}] offset:{256*r} sc1")
    a(f"""
    s_mov_b64 exec, -1
    s_waitcnt vmcnt(4)
    s_branch A_JOIN
A_G11:
    s_cmp_eq_u32 s{sWV}, 15
    s_cbranch_scc1 A_G15B
    s_waitcnt vmcnt(4)
    @stamp 3
    s_barrier
    s_waitcnt vmcnt(0)
    s_branch A_JOIN
A_G15B:
    @stamp 3
    s_barrier
    v_mov_b32 v8, 0
    s_mov_b32 s{sSPIN}, {SPINMAX}
A_NLOOP:
    global_load_dwordx2 v[10:11], v8, s[18:19] sc1
    s_sub_u32 s{sSPIN}, s{sSPIN}, 1
    s_cbranch_scc1 A_NDONE
    s_waitcnt vmcnt(0)
    v_cmp_eq_u32 vcc, 0, v10
    s_cbranch_vccnz A_NLOOP
A_NDONE:
    s_waitcnt vmcnt(0)
    v_lshlrev_b32 v11, 22, v11
    ds_write_b64 v8, v[10:11] offset:{NON}
    s_mov_b32 s{sTMP}, {NLOG2E:#x}
    """)
    for s in range(8):
        a(f"v_lshlrev_b32 v{16+s}, 16, v{16+s}\nv_mul_f32 v{16+s}, s{sTMP}, v{16+s}")
    for q in range(4):
        a(f"v_cvt_pk_bf16_f32 v{12+q}, v{16+2*q}, v{17+2*q}")
    a(f"""
    v_lshlrev_b32 v8, 4, v{VL}
    ds_write_b128 v8, v[12:15] offset:{W3S}
    s_cmp_ge_u32 s{sG}, 32
    s_cbranch_scc1 A_JOIN
    """)
    for q in range(4):
        a(f"v_lshl_or_b32 v{32+q}, v{25+2*q}, 16, v{24+2*q}")
    a(f"""
    s_lshl_b32 s{sTMP}, s{sG}, 10
    s_add_u32 s{sTMP}, s{sTMP}, {WS_F}
    v_add_u32 v8, s{sTMP}, v8
    global_store_dwordx4 v8, v[32:35], s[{sWS}:{sWS+1}] sc1
A_JOIN:
    v_lshlrev_b32 v0, 4, v{TID}
    s_mul_i32 s{sTMP}, s{sG}, {REC_STRIDE}
    s_add_u32 s{sTMP}, s{sTMP}, {WS_REC}
    v_add_u32 v1, s{sTMP}, v0
    v_add_u32 v0, {STAGE}, v0
    v_mov_b32 v2, 0
    v_lshlrev_b32 v3, 4, v{VL}
    s_and_b32 s{sTMP}, s{sWV}, 7
    s_lshl_b32 s{sTMP}, s{sTMP}, 5
    v_xor_b32 v{VA+4}, s{sTMP}, v{VA+4}
    s_mov_b32 s{sTMP+1}, {WTS}
    s_cmp_lt_u32 s{sWV}, 8
    s_cselect_b32 s{sTMP}, {W2S}, s{sTMP+1}
    v_add_u32 v{VA+4}, s{sTMP}, v{VA+4}
    s_waitcnt lgkmcnt(0)
    @stamp 4
    s_barrier
    s_cmp_eq_u32 s{sWV}, 15
    s_cbranch_scc1 A_C2
    ds_read_b128 v[4:7], v0
    s_waitcnt lgkmcnt(0)
    global_store_dwordx4 v1, v[4:7], s[{sWS}:{sWS+1}] sc1
A_C2:
    ds_read_b64 v[8:9], v2 offset:{NON}
    ds_read_b128 v[{W3}:{W3+3}], v3 offset:{W3S}
    """)
    for ks in range(4):
        for h in range(2):
            a(f"ds_read_b64_tr_b16 v[{16+4*ks+2*h}:{17+4*ks+2*h}], v{VA+4} offset:{8192*ks + 1024*h}")
    for rt in range(3):
        base = 48 if rt & 1 else 32
        for ks in range(4):
            a(f"ds_read_b128 v[{base+4*ks}:{base+4*ks+3}], v{VA+ks} offset:{XS + rt*4096}")
        if rt == 0: continue
        a("s_waitcnt lgkmcnt(4)")
        pb = 48 if (rt-1) & 1 else 32
        for ks in range(4):
            c = "0" if ks == 0 else f"v[{UA+4*(rt-1)}:{UA+4*(rt-1)+3}]"
            a(f"v_mfma_f32_16x16x32_bf16 v[{UA+4*(rt-1)}:{UA+4*(rt-1)+3}], v[{pb+4*ks}:{pb+4*ks+3}], v[{16+4*ks}:{19+4*ks}], {c}")
    a("s_waitcnt lgkmcnt(0)")
    for ks in range(4):
        c = "0" if ks == 0 else f"v[{UA+8}:{UA+11}]"
        a(f"v_mfma_f32_16x16x32_bf16 v[{UA+8}:{UA+11}], v[{32+4*ks}:{35+4*ks}], v[{16+4*ks}:{19+4*ks}], {c}")
    a(f"""
    v_readfirstlane_b32 s{sNON}, v8
    v_readfirstlane_b32 s{sNON+1}, v9
    s_mov_b32 s{sO}, s16
    s_and_b32 s{sO+1}, s17, 0xffff
    s_lshl_b32 s{sO+2}, s{sEND}, 8
    s_mov_b32 s{sO+3}, 0x20000
    s_mov_b32 s{sP}, s{sWS}
    s_and_b32 s{sP+1}, s{sWS+1}, 0xffff
    s_or_b32 s{sP+1}, s{sP+1}, {256 << 16}
    s_mov_b32 s{sP+2}, {N}
    s_mov_b32 s{sP+3}, 0x20000
    s_add_u32 s{sREC}, s{sWS}, {WS_REC}
    s_addc_u32 s{sREC+1}, s{sWS+1}, 0
    s_and_b32 s{sREC+1}, s{sREC+1}, 0xffff
    s_mov_b32 s{sREC+2}, {NG*REC_STRIDE}
    s_mov_b32 s{sREC+3}, 0x20000
    s_mov_b32 s{sMODE}, 0
    s_mov_b32 s{sONE}, 1.0
    s_mov_b32 s{sONE+1}, 1.0
    s_lshl_b32 s{sRING}, s{sWV}, 12
    s_add_u32 s{sRING}, s{sRING}, {RING}
    s_add_u32 s{sRING+1}, s{sRING}, 1024
    s_add_u32 s{sRING+2}, s{sRING}, 2048
    s_add_u32 s{sRING+3}, s{sRING}, 3072
    v_add_u32 v{PAD}, s{sRING}, v{L8}
    s_cmp_ge_u32 s{sWV}, 8
    s_cbranch_scc1 A_NOQ
    s_lshr_b32 s{sTMP}, s{sWV}, 2
    s_lshl_b32 s{sTMP}, s{sTMP}, 7
    s_bfe_u32 s{sTMP+1}, s{sWV}, 0x10001
    s_lshl_b32 s{sTMP+1}, s{sTMP+1}, 8
    s_add_u32 s{sTMP}, s{sTMP}, s{sTMP+1}
    s_and_b32 s{sTMP+1}, s{sWV}, 1
    s_lshl_b32 s{sTMP+1}, s{sTMP+1}, 2
    s_add_u32 s{sTMP}, s{sTMP}, s{sTMP+1}
    v_lshlrev_b32 v8, 11, v{VG}
    v_lshl_add_u32 v8, v{VJ}, 3, v8
    v_add_u32 v8, s{sTMP}, v8
    s_mov_b32 s{sTMP+2}, {NLOG2E:#x}
    """)
    for q in range(6):
        a(f"v_pk_mul_f32 v[{UA+2*q}:{UA+2*q+1}], v[{UA+2*q}:{UA+2*q+1}], s[{sTMP+2}:{sTMP+3}] op_sel_hi:[1,0]")
    for rt in range(3):
        if rt == 2: a("s_mov_b32 exec_hi, 0")
        for r in range(4):
            a(f"ds_write_b32 v8, v{UA+4*rt+r} offset:{QS + rt*8192 + r*512}")
    a(f"""
    s_mov_b64 exec, -1
A_NOQ:
    s_cmp_lt_u32 s{sWV}, 14
    s_cbranch_scc1 A_NOT
    v_lshlrev_b32 v8, 3, v{TID}
    ds_read_b64 v[10:11], v8 offset:{OFFS - 896*8}
    ds_read_b64 v[12:13], v8 offset:{HIST - 896*8}
    s_lshl_b32 s{sTMP}, s{sG}, 11
    s_add_u32 s{sTMP}, s{sTMP}, {WS_T - 896*16}
    v_lshl_add_u32 v8, v8, 1, s{sTMP}
    v_mov_b32 v5, s{sNON}
    v_mov_b32 v7, s{sNON}
    s_waitcnt lgkmcnt(0)
    v_lshl_or_b32 v4, v12, 11, v10
    v_lshl_or_b32 v6, v13, 11, v11
    v_or_b32 v4, s{sNON+1}, v4
    v_or_b32 v6, s{sNON+1}, v6
A_NOT:
    s_waitcnt vmcnt(0)
    @stamp 5
    s_barrier
    s_cmp_lt_u32 s{sWV}, 14
    s_cbranch_scc1 A_NOPUB
    global_store_dwordx4 v8, v[4:7], s[{sWS}:{sWS+1}] sc1
A_NOPUB:
    v_mov_b32 v16, v{EAD}
K2_RESTART:
    s_mov_b32 s{sR0}, 0
    s_mov_b32 s{sR}, {RMAX}
    v_mov_b64 v[{NANC}:{NANC+1}], 0
    v_mov_b32 v{MAXC}, 0
    v_lshlrev_b32 v9, 4, v{TID}
    v_mov_b64 v[32:33], 0
    v_mov_b64 v[34:35], 0
    ds_write_b128 v9, v[32:35] offset:{AGG}
    ds_write_b128 v9, v[32:35] offset:{AGG+16384}
    s_cmp_ge_u32 s{sWV}, 8
    s_cbranch_scc1 K2_Z1
    v_add_u32 v9, 32768, v9
    ds_write_b128 v9, v[32:35] offset:{AGG}
K2_Z1:
    s_cmp_lg_u32 s{sMODE}, 0
    s_cbranch_scc1 K2_REINIT
    s_mov_b32 s{sSPIN}, {SPINMAX}
    v_mov_b32 v19, 0x3fffff
    @stamp 6
T_LOOP:
    global_load_dwordx2 v[20:21], v16, s[{sWS}:{sWS+1}] sc1
    s_sub_u32 s{sSPIN}, s{sSPIN}, 1
    s_cbranch_scc1 T_DONE
    s_waitcnt vmcnt(0)
    v_xor_b32 v{TW}, s{sNON+1}, v20
    v_cmp_ne_u32 vcc, s{sNON}, v21
    v_cmp_lt_u32 s[{sTMP}:{sTMP+1}], v19, v{TW}
    s_or_b64 vcc, vcc, s[{sTMP}:{sTMP+1}]
    s_cbranch_scc1 T_LOOP
T_DONE:
    s_waitcnt vmcnt(0)
    @stamp 7
K2_PASS:
    v_and_b32 v9, 0x7ff, v{TW}
    v_bfe_u32 v15, v{TW}, 11, 11
    s_lshl_b32 s{sTMP}, s{sR0}, 2
    v_add_u32 v9, s{sTMP}, v9
    v_mad_u32_u24 v9, v9, 12, v{RAD}
    s_add_u32 s{sTMP+1}, s{sR0}, s{sR}
    s_lshl_b32 s{sTMP+1}, s{sTMP+1}, 2
    v_min_u32 v10, s{sTMP+1}, v15
    v_and_b32 v11, 3, v{TID}
    v_add_u32 v11, s{sTMP}, v11
    v_sub_u32 v10, v10, v11
    """)
    for r in range(RMAX):
        a(f"v_cmp_lt_i32 s[{sEX+2*r}:{sEX+2*r+1}], {4*r}, v10")
    a(f"v_cmp_lt_u32 vcc, s{sTMP+1}, v15")
    for r in range(RMAX):
        a(f"s_mov_b64 exec, s[{sEX+2*r}:{sEX+2*r+1}]")
        if r >= 2: a("s_cbranch_execz K2_LD")
        a(f"buffer_load_dwordx3 v[{32+4*r}:{34+4*r}], v9, s[{sREC}:{sREC+3}], 0 offen offset:{48*r} sc1")
    a(f"""
K2_LD:
    s_mov_b64 exec, -1
    v_mov_b32 v13, 1
    v_lshrrev_b32 v14, 1, v{L8}
    s_cbranch_vccz K2_NOMORE
    v_mov_b32 v9, 0
    ds_write_b32 v9, v13 offset:{FLG}
K2_NOMORE:
    s_waitcnt vmcnt(0)
    @stamp 8
    """)
    for r in range(RMAX):
        a(f"""
        s_mov_b64 exec, s[{sEX+2*r}:{sEX+2*r+1}]
        s_cbranch_execz K2_HD
        v_lshrrev_b32 v{r}, 16, v{34+4*r}
        ds_add_rtn_u32 v{35+4*r}, v{r}, v13 offset:{CNT}
        """)
    NPF = int(OPT.get("pf", 0))
    a("K2_HD:\ns_mov_b64 exec, -1")
    if NPF:
        a(f"""
        s_and_b32 s{sTMP}, s{sG}, 31
        s_mul_i32 s{sTMP}, s{sTMP}, 625
        s_mul_i32 s{sTMP+2}, s{sWV}, 40
        s_add_u32 s{sTMP}, s{sTMP}, s{sTMP+2}
        s_lshl_b32 s{sTMP}, s{sTMP}, 7
        v_lshl_add_u32 v12, v{L8}, 4, s{sTMP}
        v_min_u32 v12, {N*256 - 128}, v12
        """)
    a(f"""
    s_waitcnt lgkmcnt(0)
    s_barrier
    ds_read_b32 v{NCNT}, v14 offset:{CNT}
    """)
    if NPF:
        a(f"s_mov_b32 exec_hi, 0xff\nglobal_load_dword v{VA}, v12, s[{sWS}:{sWS+1}] sc1\ns_mov_b64 exec, -1")
    a(f"""
    s_waitcnt lgkmcnt(0)
    v_add_u32 v10, 7, v{NCNT}
    v_lshrrev_b32 v10, 3, v10
    v_cmp_ne_u32 s[{sNZ}:{sNZ+1}], 0, v{NCNT}
    v_mov_b32 v11, v10
    """)
    dpp_scan(a, 11)
    a(f"""
    v_sub_u32 v12, v11, v10
    v_lshlrev_b32 v15, 3, v12
    v_readlane_b32 s{sTT}, v11, 63
    """)
    for r in range(RMAX):
        a(f"ds_bpermute_b32 v{16+r}, v{r}, v15")
    a(f"""
    v_add_u32 v12, v15, v{NCNT}
    s_cmp_gt_u32 s{sTT}, {CAP//8}
    s_cbranch_scc1 K2_SHRINK
    s_mul_i32 s{sT0}, s{sTT}, s{sWV}
    s_add_u32 s{sTMP}, s{sT0}, s{sTT}
    s_lshr_b32 s{sT0}, s{sT0}, 4
    s_lshr_b32 s{sTMP}, s{sTMP}, 4
    v_cmp_ge_u32 vcc, s{sT0}, v11
    s_sub_u32 s{sLEFT}, s{sTMP}, s{sT0}
    s_or_b32 s{sNZ+1}, s{sNZ+1}, 0xc0000000
    s_waitcnt lgkmcnt(0)
    """)
    for r in range(RMAX):
        a(f"""
        s_mov_b64 exec, s[{sEX+2*r}:{sEX+2*r+1}]
        s_cbranch_execz K2_SD
        v_add_lshl_u32 v10, v{16+r}, v{35+4*r}, 3
        v_add_lshl_u32 v9, v{16+r}, v{35+4*r}, 1
        ds_write_b64 v10, v[{32+4*r}:{33+4*r}] offset:{ES}
        ds_write_b16 v9, v{34+4*r} offset:{SS}
        """)
    a(f"""
K2_SD:
    s_mov_b64 exec, -1
    s_bcnt1_i32_b64 s{sNODE}, vcc
    s_min_u32 s{sNODE}, s{sNODE}, 61
    s_lshr_b64 s[{sNZ}:{sNZ+1}], s[{sNZ}:{sNZ+1}], s{sNODE}
    s_lshl_b64 s[{sNZ}:{sNZ+1}], s[{sNZ}:{sNZ+1}], s{sNODE}
    v_readlane_b32 s{sREM}, v12, s{sNODE}
    v_lshl_add_u32 v{QAD}, s{sNODE}, 9, v{L8}
    v_lshl_add_u32 v{AAD}, s{sNODE}, 10, v{L8}
    v_lshl_add_u32 v{EAD}, s{sT0}, 6, v{E8}
    v_lshl_add_u32 v{SAD}, s{sT0}, 4, v{G2}
    s_lshl_b32 s{sTMP}, s{sT0}, 3
    s_sub_u32 s{sREM}, s{sREM}, s{sTMP}
    s_waitcnt lgkmcnt(0)
    s_barrier
    @stamp 10
    s_cmp_eq_u32 s{sLEFT}, 0
    s_cbranch_scc1 K2_MAINDONE
    s_cmp_lg_u32 s{sMODE}, 0
    s_cbranch_scc1 S_START
    """)
    mainloop(a, False)
    a(f"""
K2_MAINDONE:
    @stamp 11
    s_waitcnt vmcnt(0)
    s_cmp_lt_u32 s{sWV}, 8
    s_cbranch_scc1 K2_NOFA
    s_lshl_b32 s{sTMP}, s{sWV}, 12
    s_add_u32 s{sTMP}, s{sTMP}, {WS_F - 32*1024}
    v_lshl_add_u32 v16, v{L8}, 1, s{sTMP}
    global_load_dwordx4 v[0:3], v16, s[{sWS}:{sWS+1}] sc1
    global_load_dwordx4 v[4:7], v16, s[{sWS}:{sWS+1}] offset:1024 sc1
    global_load_dwordx4 v[8:11], v16, s[{sWS}:{sWS+1}] offset:2048 sc1
    global_load_dwordx4 v[12:15], v16, s[{sWS}:{sWS+1}] offset:3072 sc1
K2_NOFA:
    v_mov_b32 v17, {f2u(2.0**120):#x}
    v_add_f32 v18, v{NANC}, v{NANC+1}
    v_cmp_nle_f32 vcc, v{MAXC}, v17
    v_cmp_u_f32 s[{sTMP}:{sTMP+1}], v18, v18
    v_mov_b32 v19, 0
    v_mov_b32 v20, 1
    s_or_b64 vcc, vcc, s[{sTMP}:{sTMP+1}]
    s_cbranch_scc0 K2_NOOVF
    ds_write_b32 v19, v20 offset:{FLG+4}
K2_NOOVF:
    v_lshrrev_b32 v21, 4, v{TID}
    v_and_b32 v22, 15, v{TID}
    v_lshlrev_b32 v23, 10, v21
    v_lshl_add_u32 v23, v22, 4, v23
    v_xor_b32 v24, v21, v22
    v_and_b32 v24, 15, v24
    v_lshlrev_b32 v24, 4, v24
    v_lshl_add_u32 v24, v21, 8, v24
    s_mov_b32 s{sTMP+2}, {NLN2:#x}
    s_waitcnt lgkmcnt(0)
    s_barrier
    @stamp 12
    ds_read_b64 v[26:27], v19 offset:{FLG}
    s_cmp_ge_u32 s{sWV}, 10
    s_cbranch_scc1 K2_NOCV
    ds_read_b128 v[36:39], v23 offset:{AGG}
    ds_read_b128 v[40:43], v23 offset:{AGG+256}
    ds_read_b128 v[44:47], v23 offset:{AGG+512}
    ds_read_b128 v[48:51], v23 offset:{AGG+768}
    """)
    for q in range(4):
        a(f"s_waitcnt lgkmcnt({3-q})\nv_cvt_f32_f64 v{28+2*q}, v[{36+4*q}:{37+4*q}]\nv_cvt_f32_f64 v{29+2*q}, v[{38+4*q}:{39+4*q}]")
    for q in range(4):
        a(f"v_pk_mul_f32 v[{28+2*q}:{29+2*q}], v[{28+2*q}:{29+2*q}], s[{sTMP+2}:{sTMP+3}] op_sel_hi:[1,0]")
    for q in range(4):
        a(f"v_cvt_pk_bf16_f32 v{28+q}, v{28+2*q}, v{29+2*q}")
    a(f"""
    ds_write_b128 v24, v[28:31] offset:{ES}
K2_NOCV:
    s_waitcnt lgkmcnt(0)
    v_readfirstlane_b32 s{sTMP}, v26
    v_readfirstlane_b32 s{sTMP+1}, v27
    s_cmp_lg_u32 s{sTMP+1}, 0
    s_cbranch_scc1 K2_GOSAFE
K2_NOSAFE:
    s_cmp_lg_u32 s{sTMP}, 0
    s_cbranch_scc1 K2_NEXTPASS
    s_barrier
    s_cmp_lt_u32 s{sWV}, 8
    s_cbranch_scc1 K2_END2
    v_bfe_u32 v17, v{TID}, 4, 2
    v_and_b32 v18, 15, v{TID}
    v_xor_b32 v64, v17, v18
    v_lshlrev_b32 v64, 4, v64
    v_lshl_add_u32 v64, v18, 8, v64
    v_xor_b32 v65, 64, v64
    v_xor_b32 v66, 128, v64
    v_xor_b32 v67, 192, v64
    s_lshl_b32 s{sTMP}, s{sSTART}, 8
    s_sub_u32 s{sTMP+1}, s{sWV}, 8
    s_lshl_b32 s{sTMP+1}, s{sTMP+1}, 5
    s_add_u32 s{sTMP}, s{sTMP}, s{sTMP+1}
    v_lshlrev_b32 v68, 10, v17
    v_lshl_add_u32 v68, v18, 1, v68
    v_add_u32 v68, s{sTMP}, v68
    v_add_u32 v69, 4096, v68
    v_add_u32 v70, 8192, v68
    """)
    for rt in range(3):
        for ks in range(4):
            a(f"ds_read_b128 v[{16+16*rt+4*ks}:{19+16*rt+4*ks}], v{64+ks} offset:{ES + rt*4096}")
    a(f"s_mov_b32 s{sTMP+2}, {NLOG2E:#x}\ns_waitcnt vmcnt(0)")
    for rt in range(3):
        for ks in range(4):
            a(f"s_waitcnt lgkmcnt({11 - 4*rt - ks})")
            a(f"v_mfma_f32_16x16x32_bf16 v[{UA+4*rt}:{UA+4*rt+3}], v[{16+16*rt+4*ks}:{19+16*rt+4*ks}], v[{4*ks}:{4*ks+3}], v[{UA+4*rt}:{UA+4*rt+3}]")
    a("s_nop 1")
    for rt in range(3):
        u = UA + 4*rt
        a(f"""
        v_pk_mul_f32 v[16:17], v[{u}:{u+1}], s[{sTMP+2}:{sTMP+3}] op_sel_hi:[1,0]
        v_pk_mul_f32 v[18:19], v[{u+2}:{u+3}], s[{sTMP+2}:{sTMP+3}] op_sel_hi:[1,0]
        v_exp_f32 v16, v16
        v_exp_f32 v17, v17
        v_exp_f32 v18, v18
        v_exp_f32 v19, v19
        v_pk_add_f32 v[16:17], v[16:17], 1.0 op_sel_hi:[1,0]
        v_pk_add_f32 v[18:19], v[18:19], 1.0 op_sel_hi:[1,0]
        v_rcp_f32 v16, v16
        v_rcp_f32 v17, v17
        v_rcp_f32 v18, v18
        v_rcp_f32 v19, v19
        v_pk_mul_f32 v[16:17], v[16:17], v[{u}:{u+1}]
        v_pk_mul_f32 v[18:19], v[18:19], v[{u+2}:{u+3}]
        v_cvt_pk_bf16_f32 v{20+2*rt}, v16, v17
        v_cvt_pk_bf16_f32 v{21+2*rt}, v18, v19
        buffer_store_short v{20+2*rt}, v{68+rt}, s[{sO}:{sO+3}], 0 offen
        buffer_store_short_d16_hi v{20+2*rt}, v{68+rt}, s[{sO}:{sO+3}], 0 offen offset:256
        buffer_store_short v{21+2*rt}, v{68+rt}, s[{sO}:{sO+3}], 0 offen offset:512
        buffer_store_short_d16_hi v{21+2*rt}, v{68+rt}, s[{sO}:{sO+3}], 0 offen offset:768
        """)
    a(f"""
K2_END2:
    @store {sWS} {TID} {WS_DIAG}
K_END:
    s_endpgm
K2_SHRINK:
    s_mov_b32 s{sR}, 1
    s_waitcnt lgkmcnt(0)
K2_REINIT:
    s_barrier
    v_lshrrev_b32 v9, 1, v{L8}
    v_mov_b32 v10, 0
    ds_write_b32 v9, v10 offset:{CNT}
    ds_write_b32 v10, v10 offset:{FLG}
    ds_write_b32 v10, v10 offset:{FLG+4}
    v_lshlrev_b32 v9, 2, v{TID}
    v_mov_b32 v10, -1
    ds_write_b32 v9, v10 offset:{SS}
    s_waitcnt lgkmcnt(0)
    s_barrier
    s_branch K2_PASS
K2_NEXTPASS:
    s_add_u32 s{sR0}, s{sR0}, s{sR}
    s_waitcnt vmcnt(0)
    s_branch K2_REINIT
K2_GOSAFE:
    s_cmp_lg_u32 s{sMODE}, 0
    s_cbranch_scc1 K2_NOSAFE
    s_mov_b32 s{sMODE}, 1
    s_waitcnt vmcnt(0)
    s_barrier
    s_branch K2_RESTART
    """)
    mainloop(a, True)
    return a.text()

HEADER = """; Kernarg layout for this problem (72 bytes, ptrs only, base s[0:1]):
"""
def desc(name, vgpr, sgpr):
    return f""".p2align 6
.amdhsa_kernel {name}
  .amdhsa_next_free_vgpr {vgpr}
  .amdhsa_next_free_sgpr {sgpr}
  .amdhsa_accum_offset {(vgpr+3)//4*4}
  .amdhsa_group_segment_fixed_size 0
  .amdhsa_kernarg_size 72
  .amdhsa_user_sgpr_count 2
  .amdhsa_user_sgpr_kernarg_segment_ptr 1
  .amdhsa_system_sgpr_workgroup_id_x 1
.end_amdhsa_kernel
"""
def main():
    s = HEADER
    s += f"; @launch grid=({NG},1,1) block=(1024,1,1) lds={LDS_BYTES}\n"
    s += '.amdgcn_target "amdgcn-amd-amdhsa--gfx950"\n.text\n'
    s += f".globl {KN}\n.p2align 8\n.type {KN},@function\n" + kernel()
    s += '.section .rodata,"a"\n' + desc(KN, NVGPR, 96 if DIAG else 64)
    open(sys.argv[1], "w").write(s)
main()
```

```python
import sys, struct

N = 10000; E = 320000
NG = 256
EPW = 1280
REC_STRIDE = 15360
WS_P = 0
WS_REC = 0x280000
WS_T = 0x640000
WS_F = 0x6C0000
NGEMM = 209
LOG2E = 1.4426950408889634
def f2u(x): return struct.unpack("<I", struct.pack("<f", x))[0]
NLOG2E = f2u(-LOG2E)
NLN2 = f2u(-0.6931471805599453)

class Asm:
    def __init__(self): self.l = []
    def __call__(self, s):
        for ln in s.strip("\n").split("\n"):
            ln = ln.strip()
            if ln.startswith("@stamp"): stamp(self, int(ln.split()[1])); continue
            if ln.startswith("@rt"): stamp_rt(self, int(ln.split()[1])); continue
            if ln.startswith("@store"):
                p = ln.split(); stamp_store(self, int(p[1]), int(p[2]), int(p[3])); continue
            if ln: self.l.append(ln if ln.endswith(":") else "    " + ln)
    def text(self): return "\n".join(self.l) + "\n"

OPT = dict(a.split("=") if "=" in a else (a, "1") for a in sys.argv[2:])

DIAG = "diag" in OPT
WS_DIAG = 0x800000
AMP = int(OPT.get("amp", 0))
def stamp(a, i):
    if AMP and i in (1, AMP): a(f"s_memrealtime s[{64+2*(i != 1)}:{65+2*(i != 1)}]\ns_waitcnt lgkmcnt(0)")
    if DIAG: a(f"s_memtime s[{64+2*i}:{65+2*i}]\ns_waitcnt lgkmcnt(0)")
def stamp_rt(a, i):
    if DIAG: a(f"s_memrealtime s[{64+2*i}:{65+2*i}]\ns_waitcnt lgkmcnt(0)")
def stamp_store(a, wsreg, tidv, base, n=16):
    if AMP:
        a("s_waitcnt vmcnt(0)")
        stamp(a, 14)
        a(f"""
        s_cmp_lg_u32 s2, 0
        s_cbranch_scc1 AMP_DONE
        s_sub_u32 s66, s66, s64
        s_lshl_b32 s66, s66, 2
        s_memrealtime s[68:69]
        s_waitcnt lgkmcnt(0)
AMP_LOOP:
        s_memrealtime s[70:71]
        s_waitcnt lgkmcnt(0)
        s_sub_u32 s70, s70, s68
        s_cmp_lt_u32 s70, s66
        s_cbranch_scc1 AMP_LOOP
AMP_DONE:
        """)
    if not DIAG: return
    a(f"s_waitcnt vmcnt(0)")
    stamp(a, n-2); stamp_rt(a, n-1)
    a(f"s_mov_b64 exec, -1\nv_lshrrev_b32 v1, 6, v{tidv}\ns_lshl_b32 s3, s2, 4\nv_add_u32 v1, s3, v1\nv_lshlrev_b32 v1, 6, v1\nv_add_u32 v1, {base}, v1")
    for i in range(n):
        a(f"v_mov_b32 v2, s{64+2*i}\nglobal_store_dword v1, v2, s[{wsreg}:{wsreg+1}] offset:{4*i}")
def dpp_scan(a, v):
    for sh in (1, 2, 4, 8):
        a(f"s_nop 1\nv_add_u32_dpp v{v}, v{v}, v{v} row_shr:{sh} row_mask:0xf bank_mask:0xf bound_ctrl:0")
    a(f"s_nop 1\nv_add_u32_dpp v{v}, v{v}, v{v} row_bcast:15 row_mask:0xa bank_mask:0xf")
    a(f"s_nop 1\nv_add_u32_dpp v{v}, v{v}, v{v} row_bcast:31 row_mask:0xc bank_mask:0xf")

CNT = 0; FLG = 256; NON = 272
CAP = 2048
SS = 512
QS = SS + CAP*2 + 256
ES = QS + 40*512
AGG = ES + CAP*8
RING = 82944
STAGE = RING + 65536
LDS_BYTES = STAGE + 15360
W1S = RING; W2S = RING + 32768; WTS = AGG; XS = ES
HIST = ES + 12288; OFFS = HIST + 1024; W3S = OFFS + 1024
RMAX = 5
NPROD = E // EPW
D0, D1, QR, VU, BP, AE, ID, W3 = 0, 16, 32, 48, 64, 72, 76, 84
VA, NUM, DEN, NANC, MAXC = 88, 90, 92, 94, 96
EAD, SAD, PAD, IX0, IX1, QAD, AAD, L8, NCNT, TID, TW = 97, 98, 99, 100, 102, 104, 105, 106, 107, 108, 109
RAD, E8 = 110, 111
UA = 112
G2 = 124; VG = 125; VJ = 126; VL = 127
NVGPR = 128
sWS = 20; sWV = 22; sSTART = 23
sX = 24; sW = 28; sP = 24; sO = 28; sREC = 4; sW2 = 40
sR0 = 8; sR = 9; sMODE = 10; sLEFT = 11; sREM = 12; sNODE = 14; sCNT = 16; sRUN = 17; sTT = 18; sT0 = 19
sNZ = 32; sM0 = 34; sM1 = 36; sONE = 38; sRING = 40; sTMP = 44; sG = 49
sEX = 50
sNON = 60
sEND = 62; sSPIN = 63
SPINMAX = 400000
KN = "gather_scatter__mpnn_edge_mlp__graph_kernel"

def mainloop(a, safe):
    L = "S" if safe else "F"
    def ex(d, k):
        if "x_novalu" in OPT: a("s_nop 0"); return
        a(f"v_exp_f32 v{VU+k}, v{d+k}")
    def pk(d, e):
        t = d + 2*e; u = VU + 2*e
        if "x_novalu" in OPT: return
        if not safe:
            a(f"""
            v_pk_fma_f32 v[{VA}:{VA+1}], v[{t}:{t+1}], v[{DEN}:{DEN+1}], v[{NUM}:{NUM+1}]
            v_pk_fma_f32 v[{DEN}:{DEN+1}], v[{DEN}:{DEN+1}], v[{u}:{u+1}], v[{DEN}:{DEN+1}]
            v_pk_fma_f32 v[{NUM}:{NUM+1}], v[{NUM}:{NUM+1}], v[{u}:{u+1}], v[{VA}:{VA+1}]
            """)
        else:
            a(f"""
            v_pk_add_f32 v[{u}:{u+1}], v[{u}:{u+1}], 1.0 op_sel_hi:[1,0]
            v_rcp_f32 v{u}, v{u}
            v_rcp_f32 v{u+1}, v{u+1}
            s_nop 0
            v_pk_fma_f32 v[{NUM}:{NUM+1}], v[{t}:{t+1}], v[{u}:{u+1}], v[{NUM}:{NUM+1}]
            """)
    def flush():
        if not safe:
            a(f"""
            v_rcp_f32 v{VU}, v{DEN}
            v_rcp_f32 v{VU+1}, v{DEN+1}
            v_max3_f32 v{MAXC}, v{MAXC}, v{DEN}, v{DEN+1}
            v_pk_mul_f32 v[{VA}:{VA+1}], v[{NUM}:{NUM+1}], v[{VU}:{VU+1}]
            v_mov_b64 v[{DEN}:{DEN+1}], s[{sONE}:{sONE+1}]
            v_mov_b64 v[{NUM}:{NUM+1}], 0
            v_cvt_f64_f32 v[{VU}:{VU+1}], v{VA}
            v_cvt_f64_f32 v[{VU+2}:{VU+3}], v{VA+1}
            v_pk_fma_f32 v[{NANC}:{NANC+1}], v[{VA}:{VA+1}], 0, v[{NANC}:{NANC+1}] op_sel_hi:[1,0,1]
            """)
        else:
            a(f"""
            v_cvt_f64_f32 v[{VU}:{VU+1}], v{NUM}
            v_cvt_f64_f32 v[{VU+2}:{VU+3}], v{NUM+1}
            v_mov_b64 v[{NUM}:{NUM+1}], 0
            """)
        a(f"ds_add_f64 v{AAD}, v[{VU}:{VU+1}] offset:{AGG}\nds_add_f64 v{AAD}, v[{VU+2}:{VU+3}] offset:{AGG+512}")
    def breads(slot, eoff):
        if "x_nolds" in OPT: return
        for q in range(4):
            a(f"ds_read_b64 v[{BP+2*q}:{BP+2*q+1}], v{PAD} offset:{slot*2048 + q*512}")
        a(f"""
        s_mov_b64 exec, s[{sM0}:{sM0+1}]
        ds_read_b64 v[{AE}:{AE+1}], v{EAD} offset:{ES+eoff}
        s_mov_b64 exec, s[{sM1}:{sM1+1}]
        ds_read_b64 v[{AE+2}:{AE+3}], v{EAD} offset:{ES+eoff}
        s_mov_b64 exec, -1
        """)
    def idxreads(soff):
        a(f"ds_read_u16 v{IX0}, v{SAD} offset:{SS+soff}\nds_read_u16 v{IX1}, v{SAD} offset:{SS+soff+8}")
    def qreads():
        for q in range(8):
            a(f"ds_read_b64 v[{QR+2*q}:{QR+2*q+1}], v{QAD} offset:{QS}")
    def mfma(d, k):
        if "x_nomfma" in OPT: return
        if k == 0: a(f"v_mfma_f32_32x32x16_bf16 v[{d}:{d+15}], v[{AE}:{AE+3}], v[{W3}:{W3+3}], v[{QR}:{QR+15}]")
        else: a(f"v_mfma_f32_32x32x16_bf16 v[{d}:{d+15}], v[{ID+4*k-4}:{ID+4*k-1}], v[{BP+4*k-4}:{BP+4*k-1}], v[{d}:{d+15}]")
    def dma(slot, f1="s_nop 0", f2="s_nop 0"):
        if "x_nodma" in OPT: a(f1 + "\n" + f2); return
        a(f"""
        s_mov_b32 m0, s{sRING+2*slot}
        {f1}
        buffer_load_dwordx4 v[{IX0}:{IX0+1}], s[{sP}:{sP+3}], 0 idxen offen sc1 lds
        s_mov_b32 m0, s{sRING+2*slot+1}
        {f2}
        buffer_load_dwordx4 v[{IX1}:{IX1+1}], s[{sP}:{sP+3}], 0 idxen offen sc1 lds
        """)
    def advance(rdst, ndst, nsrc):
        a(f"""
        s_bitset0_b64 s[{sNZ}:{sNZ+1}], s{nsrc}
        s_ff1_i32_b64 s{ndst}, s[{sNZ}:{sNZ+1}]
        v_readlane_b32 s{rdst}, v{NCNT}, s{ndst}
        v_lshl_add_u32 v{QAD}, s{ndst}, 9, v{L8}
        """)
        qreads()
    def tree(name, labels):
        a(f"""
{name}:
        s_cmp_gt_u32 s{sCNT}, 3
        s_cbranch_scc1 {name}_H
        s_cmp_eq_u32 s{sCNT}, 2
        s_cbranch_scc1 {labels[2]}
        s_cmp_eq_u32 s{sCNT}, 3
        s_cbranch_scc1 {labels[3]}
        s_branch {labels[1]}
{name}_H:
        s_cmp_gt_u32 s{sCNT}, 5
        s_cbranch_scc1 {name}_HH
        s_cmp_eq_u32 s{sCNT}, 4
        s_cbranch_scc1 {labels[4]}
        s_branch {labels[5]}
{name}_HH:
        s_cmp_eq_u32 s{sCNT}, 6
        s_cbranch_scc1 {labels[6]}
        s_branch {labels[7]}
        """)
    R = (sREM, sREM+1); Nn = (sNODE, sNODE+1)
    a(f"""
{L}_START:
    {"s_setprio 3" if "noprio" not in OPT else ""}
    v_mov_b64 v[{DEN}:{DEN+1}], s[{sONE}:{sONE+1}]
    v_mov_b64 v[{NUM}:{NUM+1}], 0
    s_min_u32 s{sRUN}, s{sLEFT}, 8
    s_sub_u32 s{sRUN}, s{sRUN}, 1
    """)
    idxreads(0)
    qreads()
    a("s_waitcnt lgkmcnt(8)")
    dma(0)
    idxreads(16)
    a("s_waitcnt lgkmcnt(0)")
    dma(1)
    idxreads(32)
    a("s_waitcnt vmcnt(2)")
    breads(0, 0)
    a("s_waitcnt lgkmcnt(0)\n@stamp 9")
    dma(0)
    for k in range(3): mfma(D0, k)
    a("s_waitcnt vmcnt(2)")
    breads(1, 64)
    idxreads(48)
    a(f"""
    s_mov_b32 s{Nn[1]}, s{Nn[0]}
    s_sub_u32 s{R[1]}, s{R[0]}, 8
    s_cmp_le_u32 s{R[0]}, 8
    s_cbranch_scc0 {L}_L0B
    """)
    advance(R[1], Nn[1], Nn[0])
    a(f"s_branch {L}_L0B")
    for b in range(2):
        dc, dn = (D0, D1) if b == 0 else (D1, D0)
        nxt = f"{L}_L{1-b}"
        a(f"{L}_NODMA{b}:")
        if "noprio" not in OPT:
            a(f"""
            s_setprio 2
            s_cmp_eq_u32 s{sLEFT}, 2
            s_cbranch_scc1 {L}_PR{b}
            s_setprio 1
            s_cmp_eq_u32 s{sLEFT}, 1
            s_cbranch_scc1 {L}_PR{b}
            s_setprio 0
{L}_PR{b}:
            """)
        a(f"s_min_u32 s{sCNT}, s{R[b]}, 9\ns_waitcnt vmcnt(0)\ns_cmp_lt_u32 s{sCNT}, 8\ns_branch {L}_XB{b}")
        a(f"{L}_ADV{b}:")
        advance(R[b], Nn[b], Nn[1-b])
        a(f"s_branch {L}_BACK{b}")
        tree(f"{L}_XD{b}", {c: f"{L}_XS{b}_{c}" for c in range(1, 8)})
        for c in range(1, 8):
            a(f"{L}_XS{b}_{c}:")
            mfma(dn, 0)
            if c <= 5: mfma(dn, 1)
            if c <= 2: mfma(dn, 2)
            a(f"s_branch {L}_X{b}_{c}")
        tree(f"{L}_YD{b}", {c: f"{L}_Y{b}_{c}" for c in range(1, 8)})
        a(f"{L}_FL{b}:")
        flush()
        a(f"""
        s_cmp_eq_u32 s{sLEFT}, 0
        s_cbranch_scc1 K2_MAINDONE
        s_min_u32 s{sRUN}, s{sLEFT}, 8
        s_sub_u32 s{sRUN}, s{sRUN}, 1
        v_lshl_add_u32 v{AAD}, s{Nn[1-b]}, 10, v{L8}
        s_branch {nxt}
        """)
    for b in range(2):
        dc, dn = (D0, D1) if b == 0 else (D1, D0)
        nxt = f"{L}_L{1-b}"
        a(f"{L}_L{b}:")
        if b == 0:
            a(f"v_add_u32 v{EAD}, 128, v{EAD}\nv_add_u32 v{SAD}, 32, v{SAD}\n{L}_L0B:")
        a(f"""
        s_sub_u32 s{sLEFT}, s{sLEFT}, 1
        s_cmp_lt_u32 s{sLEFT}, 3
        s_waitcnt lgkmcnt(0)
        s_cbranch_scc1 {L}_NODMA{b}
        """)
        dma(1-b, f"s_min_u32 s{sCNT}, s{R[b]}, 9", f"s_cmp_lt_u32 s{sCNT}, 8")
        a(f"{L}_XB{b}:\ns_cbranch_scc1 {L}_XD{b}")
        mfma(dn, 0)
        for e in range(7, -1, -1):
            if e < 7 and e != 2: a(f"{L}_X{b}_{e+1}:")
            if e == 2:
                a(f"{L}_X{b}_3:")
                mfma(dn, 2)
            ex(dc, 2*e+1)
            if e == 5: mfma(dn, 1)
            ex(dc, 2*e)
        a("s_waitcnt vmcnt(2)")
        breads(b, 64*(b+2))
        idxreads(16*(b+4))
        a(f"""
        s_mov_b32 s{Nn[b]}, s{Nn[1-b]}
        s_sub_u32 s{R[b]}, s{R[1-b]}, 8
        s_cmp_le_u32 s{R[1-b]}, 8
        s_cbranch_scc1 {L}_ADV{b}
{L}_BACK{b}:
        s_cmp_lt_u32 s{sCNT}, 8
        s_cbranch_scc1 {L}_YD{b}
        """)
        for e in range(7, -1, -1):
            if e < 7: a(f"{L}_Y{b}_{e+1}:")
            pk(dc, e)
        a(f"""
        s_cmp_lt_u32 s{sCNT}, 9
        s_cbranch_scc1 {L}_FL{b}
        s_sub_u32 s{sRUN}, s{sRUN}, 1
        s_cbranch_scc1 {L}_FL{b}
        """)
        if b == 1: a(f"s_branch {nxt}")


def kernel():
    a = Asm()
    a(f"""
{KN}:
    s_cmp_ge_u32 s2, {NG}
    s_cbranch_scc1 K_END
    @rt 0
    @stamp 1
    s_load_dwordx16 s[4:19], s[0:1], 0
    s_load_dwordx2 s[{sWS}:{sWS+1}], s[0:1], 64
    v_mov_b32 v{TID}, v0
    v_lshrrev_b32 v1, 6, v0
    v_and_b32 v{VL}, 63, v0
    v_readfirstlane_b32 s{sWV}, v1
    s_and_b32 s{sG}, s2, 7
    s_lshl_b32 s{sG}, s{sG}, 5
    s_lshr_b32 s3, s2, 3
    s_or_b32 s{sG}, s{sG}, s3
    s_cmp_ge_u32 s{sWV}, 5
    s_cbranch_scc1 A_N1
    s_cmp_lt_u32 s{sG}, {NPROD}
    s_cselect_b32 s3, s{sG}, 0
    s_cselect_b64 s[{sEX}:{sEX+1}], -1, 0
    s_mul_i32 s3, s3, {EPW*4}
    v_lshl_add_u32 v8, v0, 4, s3
    v_lshlrev_b32 v9, 1, v8
    s_waitcnt lgkmcnt(0)
    global_load_dwordx4 v[12:15], v8, s[10:11]
    global_load_dwordx4 v[16:19], v8, s[8:9]
    global_load_dwordx4 v[20:23], v9, s[6:7]
    global_load_dwordx4 v[24:27], v9, s[6:7] offset:16
A_N1:
    v_lshrrev_b32 v{VG}, 4, v{VL}
    v_and_b32 v{VJ}, 15, v{VL}
    s_mul_i32 s3, s{sG}, 625
    s_add_u32 s{sSTART}, s3, 15
    s_lshr_b32 s{sSTART}, s{sSTART}, 4
    s_add_u32 s{sEND}, s3, {625+15}
    s_lshr_b32 s{sEND}, s{sEND}, 4
    v_lshlrev_b32 v6, 1, v{VG}
    v_xor_b32 v6, v6, v{VJ}
    v_lshlrev_b32 v6, 4, v6
    v_lshl_add_u32 v6, v{VG}, 8, v6
    v_xor_b32 v7, 128, v6
    s_cmp_lt_u32 s{sWV}, 5
    s_cbranch_scc1 A_Z
    s_cmp_ge_u32 s{sWV}, 13
    s_cbranch_scc1 A_G13
    s_sub_u32 s{sTMP}, s{sWV}, 5
    s_lshl_b32 s{sTMP}, s{sTMP}, 12
    s_add_u32 s{sTMP+1}, s{sTMP}, {W1S}
    s_mov_b32 m0, s{sTMP+1}
    s_waitcnt lgkmcnt(0)
    s_mov_b32 s{sW}, s12
    s_and_b32 s{sW+1}, s13, 0xffff
    s_mov_b32 s{sW+2}, 65536
    s_mov_b32 s{sW+3}, 0x20000
    buffer_load_dwordx4 v6, s[{sW}:{sW+3}], s{sTMP} offen lds
    buffer_load_dwordx4 v6, s[{sW}:{sW+3}], s{sTMP} offen offset:1024 lds
    buffer_load_dwordx4 v7, s[{sW}:{sW+3}], s{sTMP} offen offset:2048 lds
    buffer_load_dwordx4 v7, s[{sW}:{sW+3}], s{sTMP} offen offset:3072 lds
    s_branch A_Z
A_G13:
    s_cmp_eq_u32 s{sWV}, 15
    s_cbranch_scc1 A_G15
    s_sub_u32 s{sTMP}, s{sWV}, 13
    s_mul_i32 s{sTMP}, s{sTMP}, 20
    v_add_u32 v8, s{sTMP}, v{VG}
    s_lshl_b32 s{sTMP+1}, s{sTMP}, 8
    s_add_u32 s{sTMP+1}, s{sTMP+1}, {XS}
    s_lshl_b32 s{sTMP+2}, s{sSTART}, 8
    s_waitcnt lgkmcnt(0)
    s_mov_b32 s{sX}, s4
    s_and_b32 s{sX+1}, s5, 0xffff
    s_mov_b32 s{sX+2}, {N*256}
    s_mov_b32 s{sX+3}, 0x20000
    """)
    for i in range(5):
        a(f"""
        s_mov_b32 m0, s{sTMP+1}
        v_xor_b32 v9, v8, v{VJ}
        v_and_b32 v9, 15, v9
        v_lshlrev_b32 v9, 4, v9
        v_lshl_add_u32 v9, v8, 8, v9
        buffer_load_dwordx4 v9, s[{sX}:{sX+3}], s{sTMP+2} offen lds
        """)
        if i < 4: a(f"v_add_u32 v8, 4, v8\ns_add_u32 s{sTMP+1}, s{sTMP+1}, 1024")
    a(f"""
    s_branch A_Z
A_G15:
    s_waitcnt lgkmcnt(0)
    s_cmp_lg_u32 s2, 0
    s_cbranch_scc1 A_NOPUBN
    s_memrealtime s[{sNON}:{sNON+1}]
    v_mov_b32 v8, 0
    s_waitcnt lgkmcnt(0)
    s_or_b32 s{sNON}, s{sNON}, 1
    v_mov_b32 v10, s{sNON}
    v_mov_b32 v11, s{sNON+1}
    s_mov_b64 exec, 1
    global_store_dwordx2 v8, v[10:11], s[18:19] sc1
    s_mov_b64 exec, -1
A_NOPUBN:
    v_bfe_u32 v9, v{VL}, 4, 1
    v_lshlrev_b32 v9, 6, v9
    v_lshrrev_b32 v10, 5, v{VL}
    v_lshl_add_u32 v9, v10, 5, v9
    v_add_u32 v9, v9, v{VJ}
    v_lshlrev_b32 v9, 1, v9
    v_add_u32 v8, {256*256}, v9
    """)
    for s in range(8):
        a(f"global_load_ushort v{16 + s}, v8, s[12:13] offset:{(s & 3)*256 + (s >> 2)*32}")
    a(f"""
    s_and_b32 s{sTMP}, s{sG}, 1
    s_lshl_b32 s{sTMP}, s{sTMP}, 3
    s_bfe_u32 s{sTMP+1}, s{sG}, 0x10001
    s_lshl_b32 s{sTMP+1}, s{sTMP+1}, 6
    s_add_u32 s{sTMP}, s{sTMP}, s{sTMP+1}
    s_add_u32 s{sTMP}, s{sTMP}, 128
    s_lshl_b32 s{sTMP}, s{sTMP}, 8
    s_bfe_u32 s{sTMP+1}, s{sG}, 0x30002
    s_lshl_b32 s{sTMP+1}, s{sTMP+1}, 5
    s_add_u32 s{sTMP}, s{sTMP}, s{sTMP+1}
    v_lshlrev_b32 v8, 9, v{VG}
    v_lshl_add_u32 v8, v{VJ}, 1, v8
    v_add_u32 v8, s{sTMP}, v8
    v_add_u32 v9, {32*256}, v8
    v_add_u32 v10, {16*256}, v8
    v_add_u32 v11, {48*256}, v8
    s_cmp_ge_u32 s{sG}, 32
    s_cbranch_scc1 A_Z
    """)
    for s in range(8):
        a(f"global_load_ushort v{24 + s}, v{8 + (s >> 1)}, s[14:15] offset:{(s & 1)*256}")
    a(f"""
A_Z:
    v_lshlrev_b32 v5, 2, v{TID}
    v_mov_b32 v2, -1
    ds_write_b32 v5, v2 offset:{SS}
    s_cmp_ge_u32 s{sWV}, 5
    s_cbranch_scc1 A_NOZ
    s_mov_b32 s{sTMP}, {HIST}
    s_cmp_eq_u32 s{sWV}, 4
    s_cselect_b32 s{sTMP}, {CNT - 1024}, s{sTMP}
    v_add_u32 v3, s{sTMP}, v5
    v_mov_b32 v2, 0
    ds_write_b32 v3, v2
    ds_write_b32 v2, v2 offset:{FLG}
    ds_write_b32 v2, v2 offset:{FLG+4}
A_NOZ:
    s_lshl_b32 s{sTMP}, s{sWV}, 12
    s_add_u32 s{sTMP+1}, s{sTMP}, 32768
    s_sub_u32 s{sTMP+2}, s{sTMP}, 32768
    s_add_u32 s{sTMP+3}, s{sTMP}, {W2S}
    s_add_u32 s{sTMP}, s{sTMP+2}, {WTS}
    s_cmp_lt_u32 s{sWV}, 8
    s_cselect_b32 s{sW2}, s12, s14
    s_cselect_b32 s{sW2+1}, s13, s15
    s_cselect_b32 s{sTMP+1}, s{sTMP+1}, s{sTMP+2}
    s_cselect_b32 s{sTMP}, s{sTMP+3}, s{sTMP}
    s_and_b32 s{sW2+1}, s{sW2+1}, 0xffff
    s_mov_b32 s{sW2+2}, 65536
    s_mov_b32 s{sW2+3}, 0x20000
    s_mov_b32 m0, s{sTMP}
    s_waitcnt lgkmcnt(0)
    @stamp 2
    s_barrier
    buffer_load_dwordx4 v6, s[{sW2}:{sW2+3}], s{sTMP+1} offen lds
    buffer_load_dwordx4 v6, s[{sW2}:{sW2+3}], s{sTMP+1} offen offset:1024 lds
    buffer_load_dwordx4 v7, s[{sW2}:{sW2+3}], s{sTMP+1} offen offset:2048 lds
    buffer_load_dwordx4 v7, s[{sW2}:{sW2+3}], s{sTMP+1} offen offset:3072 lds
    ; m = l&31, hk = l>>5, e = 2*(m>>3) + ((m>>1)&1), H = (m>>2)&1, c0 = m&1
    v_lshlrev_b32 v{L8}, 3, v{VL}
    v_lshlrev_b32 v{IX0+1}, 4, v{VJ}
    v_lshlrev_b32 v{IX1+1}, 4, v{VJ}
    v_lshlrev_b32 v{G2}, 1, v{VG}
    v_lshrrev_b32 v1, 5, v{VL}
    v_bfe_u32 v2, v{VL}, 2, 1
    v_and_b32 v3, 1, v{VL}
    v_bfe_u32 v4, v{VL}, 1, 1
    v_bfe_u32 v5, v{VL}, 3, 2
    v_lshl_add_u32 v5, v5, 1, v4
    v_mov_b64 v[{AE}:{AE+1}], 0
    v_mov_b64 v[{AE+2}:{AE+3}], 0
    v_xor_b32 v6, v1, v2
    v_lshl_add_u32 v6, v6, 1, v3
    v_cmp_eq_u32 s[{sM0}:{sM0+1}], 0, v6
    v_cmp_eq_u32 s[{sM1}:{sM1+1}], 1, v6
    v_lshlrev_b32 v{E8}, 3, v5
    v_lshlrev_b32 v6, 4, v3
    v_mov_b32 v7, 0x3f80
    v_lshlrev_b32 v6, v6, v7
    v_cmp_eq_u32 vcc, v1, v4
    v_lshrrev_b32 v7, 1, v5
    v_lshl_add_u32 v7, v7, 1, v2
    v_cndmask_b32 v6, 0, v6, vcc
    """)
    for q in range(8):
        a(f"v_cmp_eq_u32 vcc, {q}, v7\ns_nop 1\nv_cndmask_b32 v{ID+q}, 0, v6, vcc")
    a(f"""
    v_lshrrev_b32 v1, 2, v{TID}
    s_movk_i32 s{sTMP}, {REC_STRIDE}
    v_mul_u32_u24 v2, s{sTMP}, v1
    v_and_b32 v3, 3, v{TID}
    v_mad_u32_u24 v{RAD}, v3, 12, v2
    s_lshl_b32 s{sTMP}, s{sG}, 3
    s_add_u32 s{sTMP}, s{sTMP}, {WS_T}
    v_lshl_add_u32 v{EAD}, v1, 11, s{sTMP}
    v_xor_b32 v1, v{VG}, v{VJ}
    v_lshlrev_b32 v1, 4, v1
    v_lshl_add_u32 v{VA}, v{VJ}, 8, v1
    v_xor_b32 v{VA+1}, 64, v{VA}
    v_xor_b32 v{VA+2}, 128, v{VA}
    v_xor_b32 v{VA+3}, 192, v{VA}
    v_bfe_u32 v1, v{VL}, 2, 2
    v_and_b32 v2, 1, v{VG}
    v_lshl_or_b32 v2, v2, 2, v1
    v_lshlrev_b32 v2, 1, v2
    v_bfe_u32 v3, v{VL}, 1, 1
    v_xor_b32 v2, v2, v3
    v_lshlrev_b32 v2, 4, v2
    v_and_b32 v3, 1, v{VL}
    v_lshl_add_u32 v2, v3, 3, v2
    v_lshl_add_u32 v1, v{VG}, 3, v1
    v_lshl_add_u32 v{VA+4}, v1, 8, v2
    s_cmp_ge_u32 s{sWV}, 5
    s_cbranch_scc1 A_G2
    s_movk_i32 s{sTMP}, 625
    s_mov_b32 s{sTMP+1}, 214749
    v_mov_b32 v1, 1
    v_lshlrev_b32 v2, 4, v{VL}
    s_mov_b64 exec, s[{sEX}:{sEX+1}]
    s_waitcnt vmcnt(7)
    """)
    for i in range(4):
        a(f"v_mul_u32_u24 v{28+i}, s{sTMP+1}, v{12+i}")
    for i in range(4):
        a(f"v_lshrrev_b32 v{28+i}, 23, v{28+i}\nv_lshlrev_b32 v{32+i}, 2, v{28+i}\nds_add_rtn_u32 v{36+i}, v{32+i}, v1 offset:{HIST}")
    for i in range(4):
        a(f"v_mad_u32_u24 v{28+i}, v{28+i}, s{sTMP}, 15\nv_lshrrev_b32 v{28+i}, 4, v{28+i}\nv_sub_u32 v{28+i}, v{12+i}, v{28+i}")
    a(f"""
    s_mov_b64 exec, -1
    s_waitcnt lgkmcnt(0)
    @stamp 3
    s_barrier
    ds_read_b128 v[40:43], v2 offset:{HIST}
    s_waitcnt lgkmcnt(0)
    v_add_u32 v44, v40, v41
    v_add3_u32 v44, v44, v42, v43
    v_mov_b32 v45, v44
    """)
    dpp_scan(a, 45)
    a(f"""
    v_sub_u32 v48, v45, v44
    v_add_u32 v49, v48, v40
    v_add_u32 v50, v49, v41
    v_add_u32 v51, v50, v42
    ds_write_b128 v2, v[48:51] offset:{OFFS}
    s_mov_b64 exec, s[{sEX}:{sEX+1}]
    s_mov_b32 s{sTMP}, {STAGE}
    s_waitcnt lgkmcnt(0)
    """)
    for i in range(4):
        a(f"ds_read_b32 v{40+i}, v{32+i} offset:{OFFS}")
    a("s_waitcnt vmcnt(6)")
    for i in range(4):
        a(f"v_lshl_or_b32 v{16+i}, v{28+i}, 18, v{16+i}")
    a("s_waitcnt vmcnt(4)")
    for i in range(4):
        a(f"""
        s_waitcnt lgkmcnt({3-i if i == 0 else 3-i+2*i})
        v_add_u32 v{40+i}, v{40+i}, v{36+i}
        v_mad_u32_u24 v{40+i}, v{40+i}, 12, s{sTMP}
        ds_write2_b32 v{40+i}, v{20+2*i}, v{21+2*i} offset0:0 offset1:1
        ds_write_b32 v{40+i}, v{16+i} offset:8
        """)
    a(f"""
    s_mov_b64 exec, -1
    s_waitcnt vmcnt(0)
    s_branch A_JOIN
A_G2:
    s_cmp_ge_u32 s{sWV}, 11
    s_cbranch_scc1 A_G11
    s_sub_u32 s{sTMP}, s{sWV}, 5
    s_and_b32 s{sTMP+1}, s{sTMP}, 1
    s_lshr_b32 s{sTMP}, s{sTMP}, 1
    s_lshl_b32 s{sTMP+2}, s{sTMP}, 12
    v_add_u32 v0, s{sTMP+2}, v{VA}
    v_add_u32 v1, s{sTMP+2}, v{VA+1}
    v_add_u32 v2, s{sTMP+2}, v{VA+2}
    v_add_u32 v3, s{sTMP+2}, v{VA+3}
    s_lshl_b32 s{sTMP+1}, s{sTMP+1}, 7
    v_xor_b32 v4, s{sTMP+1}, v{VA+4}
    v_add_u32 v4, {W1S}, v4
    v_xor_b32 v5, 32, v4
    v_xor_b32 v6, 64, v4
    v_xor_b32 v7, 96, v4
    s_add_u32 s{sTMP+2}, s{sTMP+2}, s{sTMP+1}
    s_lshl_b32 s{sTMP+1}, s{sSTART}, 8
    s_add_u32 s{sTMP+2}, s{sTMP+2}, s{sTMP+1}
    v_lshlrev_b32 v{VA+5}, 10, v{VG}
    v_lshl_add_u32 v{VA+5}, v{VJ}, 3, v{VA+5}
    v_add_u32 v{VA+5}, s{sTMP+2}, v{VA+5}
    s_mov_b32 s{sTMP+2}, {NLOG2E:#x}
    s_waitcnt vmcnt(4)
    @stamp 3
    s_barrier
    """)
    for ks in range(4):
        a(f"ds_read_b128 v[{40+4*ks}:{43+4*ks}], v{ks} offset:{XS}")
    def breads(ks):
        b = 8 + 16*(ks & 1)
        for i in range(4):
            for h in range(2):
                a(f"ds_read_b64_tr_b16 v[{b+4*i+2*h}:{b+4*i+2*h+1}], v{4+i} offset:{8192*ks + 1024*h}")
    breads(0)
    for ks in range(4):
        if ks < 3:
            breads(ks+1)
            a("s_waitcnt lgkmcnt(8)")
        else:
            a("s_waitcnt lgkmcnt(0)")
        b = 8 + 16*(ks & 1)
        for i in range(4):
            c = "0" if ks == 0 else f"v[{56+4*i}:{59+4*i}]"
            a(f"v_mfma_f32_16x16x32_bf16 v[{56+4*i}:{59+4*i}], v[{40+4*ks}:{43+4*ks}], v[{b+4*i}:{b+4*i+3}], {c}")
    a(f"""
    s_cmp_eq_u32 s{sTMP}, 2
    s_cselect_b32 exec_hi, 0, -1
    s_nop 5
    """)
    for q in range(8):
        a(f"v_pk_mul_f32 v[{56+2*q}:{57+2*q}], v[{56+2*q}:{57+2*q}], s[{sTMP+2}:{sTMP+3}] op_sel_hi:[1,0]")
    for r in range(4):
        a(f"v_cvt_pk_bf16_f32 v{8+2*r}, v{56+r}, v{60+r}\nv_cvt_pk_bf16_f32 v{9+2*r}, v{64+r}, v{68+r}")
        a(f"global_store_dwordx2 v{VA+5}, v[{8+2*r}:{9+2*r}], s[{sWS}:{sWS+1}] offset:{256*r} sc1")
    a(f"""
    s_mov_b64 exec, -1
    s_waitcnt vmcnt(4)
    s_branch A_JOIN
A_G11:
    s_cmp_eq_u32 s{sWV}, 15
    s_cbranch_scc1 A_G15B
    s_waitcnt vmcnt(4)
    @stamp 3
    s_barrier
    s_waitcnt vmcnt(0)
    s_branch A_JOIN
A_G15B:
    @stamp 3
    s_barrier
    v_mov_b32 v8, 0
    s_mov_b32 s{sSPIN}, {SPINMAX}
A_NLOOP:
    global_load_dwordx2 v[10:11], v8, s[18:19] sc1
    s_sub_u32 s{sSPIN}, s{sSPIN}, 1
    s_cbranch_scc1 A_NDONE
    s_waitcnt vmcnt(0)
    v_cmp_eq_u32 vcc, 0, v10
    s_cbranch_vccnz A_NLOOP
A_NDONE:
    s_waitcnt vmcnt(0)
    v_lshlrev_b32 v11, 22, v11
    ds_write_b64 v8, v[10:11] offset:{NON}
    s_mov_b32 s{sTMP}, {NLOG2E:#x}
    """)
    for s in range(8):
        a(f"v_lshlrev_b32 v{16+s}, 16, v{16+s}\nv_mul_f32 v{16+s}, s{sTMP}, v{16+s}")
    for q in range(4):
        a(f"v_cvt_pk_bf16_f32 v{12+q}, v{16+2*q}, v{17+2*q}")
    a(f"""
    v_lshlrev_b32 v8, 4, v{VL}
    ds_write_b128 v8, v[12:15] offset:{W3S}
    s_cmp_ge_u32 s{sG}, 32
    s_cbranch_scc1 A_JOIN
    """)
    for q in range(4):
        a(f"v_lshl_or_b32 v{32+q}, v{25+2*q}, 16, v{24+2*q}")
    a(f"""
    s_lshl_b32 s{sTMP}, s{sG}, 10
    s_add_u32 s{sTMP}, s{sTMP}, {WS_F}
    v_add_u32 v8, s{sTMP}, v8
    global_store_dwordx4 v8, v[32:35], s[{sWS}:{sWS+1}] sc1
A_JOIN:
    v_lshlrev_b32 v0, 4, v{TID}
    s_mul_i32 s{sTMP}, s{sG}, {REC_STRIDE}
    s_add_u32 s{sTMP}, s{sTMP}, {WS_REC}
    v_add_u32 v1, s{sTMP}, v0
    v_add_u32 v0, {STAGE}, v0
    v_mov_b32 v2, 0
    v_lshlrev_b32 v3, 4, v{VL}
    s_and_b32 s{sTMP}, s{sWV}, 7
    s_lshl_b32 s{sTMP}, s{sTMP}, 5
    v_xor_b32 v{VA+4}, s{sTMP}, v{VA+4}
    s_mov_b32 s{sTMP+1}, {WTS}
    s_cmp_lt_u32 s{sWV}, 8
    s_cselect_b32 s{sTMP}, {W2S}, s{sTMP+1}
    v_add_u32 v{VA+4}, s{sTMP}, v{VA+4}
    s_waitcnt lgkmcnt(0)
    @stamp 4
    s_barrier
    s_cmp_eq_u32 s{sWV}, 15
    s_cbranch_scc1 A_C2
    ds_read_b128 v[4:7], v0
    s_waitcnt lgkmcnt(0)
    global_store_dwordx4 v1, v[4:7], s[{sWS}:{sWS+1}] sc1
A_C2:
    ds_read_b64 v[8:9], v2 offset:{NON}
    ds_read_b128 v[{W3}:{W3+3}], v3 offset:{W3S}
    """)
    for ks in range(4):
        for h in range(2):
            a(f"ds_read_b64_tr_b16 v[{16+4*ks+2*h}:{17+4*ks+2*h}], v{VA+4} offset:{8192*ks + 1024*h}")
    for rt in range(3):
        base = 48 if rt & 1 else 32
        for ks in range(4):
            a(f"ds_read_b128 v[{base+4*ks}:{base+4*ks+3}], v{VA+ks} offset:{XS + rt*4096}")
        if rt == 0: continue
        a("s_waitcnt lgkmcnt(4)")
        pb = 48 if (rt-1) & 1 else 32
        for ks in range(4):
            c = "0" if ks == 0 else f"v[{UA+4*(rt-1)}:{UA+4*(rt-1)+3}]"
            a(f"v_mfma_f32_16x16x32_bf16 v[{UA+4*(rt-1)}:{UA+4*(rt-1)+3}], v[{pb+4*ks}:{pb+4*ks+3}], v[{16+4*ks}:{19+4*ks}], {c}")
    a("s_waitcnt lgkmcnt(0)")
    for ks in range(4):
        c = "0" if ks == 0 else f"v[{UA+8}:{UA+11}]"
        a(f"v_mfma_f32_16x16x32_bf16 v[{UA+8}:{UA+11}], v[{32+4*ks}:{35+4*ks}], v[{16+4*ks}:{19+4*ks}], {c}")
    a(f"""
    v_readfirstlane_b32 s{sNON}, v8
    v_readfirstlane_b32 s{sNON+1}, v9
    s_mov_b32 s{sO}, s16
    s_and_b32 s{sO+1}, s17, 0xffff
    s_lshl_b32 s{sO+2}, s{sEND}, 8
    s_mov_b32 s{sO+3}, 0x20000
    s_mov_b32 s{sP}, s{sWS}
    s_and_b32 s{sP+1}, s{sWS+1}, 0xffff
    s_or_b32 s{sP+1}, s{sP+1}, {256 << 16}
    s_mov_b32 s{sP+2}, {N}
    s_mov_b32 s{sP+3}, 0x20000
    s_add_u32 s{sREC}, s{sWS}, {WS_REC}
    s_addc_u32 s{sREC+1}, s{sWS+1}, 0
    s_and_b32 s{sREC+1}, s{sREC+1}, 0xffff
    s_mov_b32 s{sREC+2}, {NG*REC_STRIDE}
    s_mov_b32 s{sREC+3}, 0x20000
    s_mov_b32 s{sMODE}, 0
    s_mov_b32 s{sONE}, 1.0
    s_mov_b32 s{sONE+1}, 1.0
    s_lshl_b32 s{sRING}, s{sWV}, 12
    s_add_u32 s{sRING}, s{sRING}, {RING}
    s_add_u32 s{sRING+1}, s{sRING}, 1024
    s_add_u32 s{sRING+2}, s{sRING}, 2048
    s_add_u32 s{sRING+3}, s{sRING}, 3072
    v_add_u32 v{PAD}, s{sRING}, v{L8}
    s_cmp_ge_u32 s{sWV}, 8
    s_cbranch_scc1 A_NOQ
    s_lshr_b32 s{sTMP}, s{sWV}, 2
    s_lshl_b32 s{sTMP}, s{sTMP}, 7
    s_bfe_u32 s{sTMP+1}, s{sWV}, 0x10001
    s_lshl_b32 s{sTMP+1}, s{sTMP+1}, 8
    s_add_u32 s{sTMP}, s{sTMP}, s{sTMP+1}
    s_and_b32 s{sTMP+1}, s{sWV}, 1
    s_lshl_b32 s{sTMP+1}, s{sTMP+1}, 2
    s_add_u32 s{sTMP}, s{sTMP}, s{sTMP+1}
    v_lshlrev_b32 v8, 11, v{VG}
    v_lshl_add_u32 v8, v{VJ}, 3, v8
    v_add_u32 v8, s{sTMP}, v8
    s_mov_b32 s{sTMP+2}, {NLOG2E:#x}
    """)
    for q in range(6):
        a(f"v_pk_mul_f32 v[{UA+2*q}:{UA+2*q+1}], v[{UA+2*q}:{UA+2*q+1}], s[{sTMP+2}:{sTMP+3}] op_sel_hi:[1,0]")
    for rt in range(3):
        if rt == 2: a("s_mov_b32 exec_hi, 0")
        for r in range(4):
            a(f"ds_write_b32 v8, v{UA+4*rt+r} offset:{QS + rt*8192 + r*512}")
    a(f"""
    s_mov_b64 exec, -1
A_NOQ:
    s_cmp_lt_u32 s{sWV}, 14
    s_cbranch_scc1 A_NOT
    v_lshlrev_b32 v8, 3, v{TID}
    ds_read_b64 v[10:11], v8 offset:{OFFS - 896*8}
    ds_read_b64 v[12:13], v8 offset:{HIST - 896*8}
    s_lshl_b32 s{sTMP}, s{sG}, 11
    s_add_u32 s{sTMP}, s{sTMP}, {WS_T - 896*16}
    v_lshl_add_u32 v8, v8, 1, s{sTMP}
    v_mov_b32 v5, s{sNON}
    v_mov_b32 v7, s{sNON}
    s_waitcnt lgkmcnt(0)
    v_lshl_or_b32 v4, v12, 11, v10
    v_lshl_or_b32 v6, v13, 11, v11
    v_or_b32 v4, s{sNON+1}, v4
    v_or_b32 v6, s{sNON+1}, v6
A_NOT:
    s_waitcnt vmcnt(0)
    @stamp 5
    s_barrier
    s_cmp_lt_u32 s{sWV}, 14
    s_cbranch_scc1 A_NOPUB
    global_store_dwordx4 v8, v[4:7], s[{sWS}:{sWS+1}] sc1
A_NOPUB:
    v_mov_b32 v16, v{EAD}
K2_RESTART:
    s_mov_b32 s{sR0}, 0
    s_mov_b32 s{sR}, {RMAX}
    v_mov_b64 v[{NANC}:{NANC+1}], 0
    v_mov_b32 v{MAXC}, 0
    v_lshlrev_b32 v9, 4, v{TID}
    v_mov_b64 v[32:33], 0
    v_mov_b64 v[34:35], 0
    ds_write_b128 v9, v[32:35] offset:{AGG}
    ds_write_b128 v9, v[32:35] offset:{AGG+16384}
    s_cmp_ge_u32 s{sWV}, 8
    s_cbranch_scc1 K2_Z1
    v_add_u32 v9, 32768, v9
    ds_write_b128 v9, v[32:35] offset:{AGG}
K2_Z1:
    s_cmp_lg_u32 s{sMODE}, 0
    s_cbranch_scc1 K2_REINIT
    s_mov_b32 s{sSPIN}, {SPINMAX}
    v_mov_b32 v19, 0x3fffff
    @stamp 6
T_LOOP:
    global_load_dwordx2 v[20:21], v16, s[{sWS}:{sWS+1}] sc1
    s_sub_u32 s{sSPIN}, s{sSPIN}, 1
    s_cbranch_scc1 T_DONE
    s_waitcnt vmcnt(0)
    v_xor_b32 v{TW}, s{sNON+1}, v20
    v_cmp_ne_u32 vcc, s{sNON}, v21
    v_cmp_lt_u32 s[{sTMP}:{sTMP+1}], v19, v{TW}
    s_or_b64 vcc, vcc, s[{sTMP}:{sTMP+1}]
    s_cbranch_scc1 T_LOOP
T_DONE:
    s_waitcnt vmcnt(0)
    @stamp 7
K2_PASS:
    v_and_b32 v9, 0x7ff, v{TW}
    v_bfe_u32 v15, v{TW}, 11, 11
    s_lshl_b32 s{sTMP}, s{sR0}, 2
    v_add_u32 v9, s{sTMP}, v9
    v_mad_u32_u24 v9, v9, 12, v{RAD}
    s_add_u32 s{sTMP+1}, s{sR0}, s{sR}
    s_lshl_b32 s{sTMP+1}, s{sTMP+1}, 2
    v_min_u32 v10, s{sTMP+1}, v15
    v_and_b32 v11, 3, v{TID}
    v_add_u32 v11, s{sTMP}, v11
    v_sub_u32 v10, v10, v11
    """)
    for r in range(RMAX):
        a(f"v_cmp_lt_i32 s[{sEX+2*r}:{sEX+2*r+1}], {4*r}, v10")
    a(f"v_cmp_lt_u32 vcc, s{sTMP+1}, v15")
    for r in range(RMAX):
        a(f"s_mov_b64 exec, s[{sEX+2*r}:{sEX+2*r+1}]")
        if r >= 2: a("s_cbranch_execz K2_LD")
        a(f"buffer_load_dwordx3 v[{32+4*r}:{34+4*r}], v9, s[{sREC}:{sREC+3}], 0 offen offset:{48*r} sc1")
    a(f"""
K2_LD:
    s_mov_b64 exec, -1
    v_mov_b32 v13, 1
    v_lshrrev_b32 v14, 1, v{L8}
    s_cbranch_vccz K2_NOMORE
    v_mov_b32 v9, 0
    ds_write_b32 v9, v13 offset:{FLG}
K2_NOMORE:
    s_waitcnt vmcnt(0)
    @stamp 8
    """)
    for r in range(RMAX):
        a(f"""
        s_mov_b64 exec, s[{sEX+2*r}:{sEX+2*r+1}]
        s_cbranch_execz K2_HD
        v_lshrrev_b32 v{r}, 16, v{34+4*r}
        ds_add_rtn_u32 v{35+4*r}, v{r}, v13 offset:{CNT}
        """)
    NPF = int(OPT.get("pf", 0))
    a("K2_HD:\ns_mov_b64 exec, -1")
    if NPF:
        a(f"""
        s_and_b32 s{sTMP}, s{sG}, 31
        s_mul_i32 s{sTMP}, s{sTMP}, 625
        s_mul_i32 s{sTMP+2}, s{sWV}, 40
        s_add_u32 s{sTMP}, s{sTMP}, s{sTMP+2}
        s_lshl_b32 s{sTMP}, s{sTMP}, 7
        v_lshl_add_u32 v12, v{L8}, 4, s{sTMP}
        v_min_u32 v12, {N*256 - 128}, v12
        """)
    a(f"""
    s_waitcnt lgkmcnt(0)
    s_barrier
    ds_read_b32 v{NCNT}, v14 offset:{CNT}
    """)
    if NPF:
        a(f"s_mov_b32 exec_hi, 0xff\nglobal_load_dword v{VA}, v12, s[{sWS}:{sWS+1}] sc1\ns_mov_b64 exec, -1")
    a(f"""
    s_waitcnt lgkmcnt(0)
    v_add_u32 v10, 7, v{NCNT}
    v_lshrrev_b32 v10, 3, v10
    v_cmp_ne_u32 s[{sNZ}:{sNZ+1}], 0, v{NCNT}
    v_mov_b32 v11, v10
    """)
    dpp_scan(a, 11)
    a(f"""
    v_sub_u32 v12, v11, v10
    v_lshlrev_b32 v15, 3, v12
    v_readlane_b32 s{sTT}, v11, 63
    """)
    for r in range(RMAX):
        a(f"ds_bpermute_b32 v{16+r}, v{r}, v15")
    a(f"""
    v_add_u32 v12, v15, v{NCNT}
    s_cmp_gt_u32 s{sTT}, {CAP//8}
    s_cbranch_scc1 K2_SHRINK
    s_mul_i32 s{sT0}, s{sTT}, s{sWV}
    s_add_u32 s{sTMP}, s{sT0}, s{sTT}
    s_lshr_b32 s{sT0}, s{sT0}, 4
    s_lshr_b32 s{sTMP}, s{sTMP}, 4
    v_cmp_ge_u32 vcc, s{sT0}, v11
    s_sub_u32 s{sLEFT}, s{sTMP}, s{sT0}
    s_or_b32 s{sNZ+1}, s{sNZ+1}, 0xc0000000
    s_waitcnt lgkmcnt(0)
    """)
    for r in range(RMAX):
        a(f"""
        s_mov_b64 exec, s[{sEX+2*r}:{sEX+2*r+1}]
        s_cbranch_execz K2_SD
        v_add_lshl_u32 v10, v{16+r}, v{35+4*r}, 3
        v_add_lshl_u32 v9, v{16+r}, v{35+4*r}, 1
        ds_write_b64 v10, v[{32+4*r}:{33+4*r}] offset:{ES}
        ds_write_b16 v9, v{34+4*r} offset:{SS}
        """)
    a(f"""
K2_SD:
    s_mov_b64 exec, -1
    s_bcnt1_i32_b64 s{sNODE}, vcc
    s_min_u32 s{sNODE}, s{sNODE}, 61
    s_lshr_b64 s[{sNZ}:{sNZ+1}], s[{sNZ}:{sNZ+1}], s{sNODE}
    s_lshl_b64 s[{sNZ}:{sNZ+1}], s[{sNZ}:{sNZ+1}], s{sNODE}
    v_readlane_b32 s{sREM}, v12, s{sNODE}
    v_lshl_add_u32 v{QAD}, s{sNODE}, 9, v{L8}
    v_lshl_add_u32 v{AAD}, s{sNODE}, 10, v{L8}
    v_lshl_add_u32 v{EAD}, s{sT0}, 6, v{E8}
    v_lshl_add_u32 v{SAD}, s{sT0}, 4, v{G2}
    s_lshl_b32 s{sTMP}, s{sT0}, 3
    s_sub_u32 s{sREM}, s{sREM}, s{sTMP}
    s_waitcnt lgkmcnt(0)
    s_barrier
    @stamp 10
    s_cmp_eq_u32 s{sLEFT}, 0
    s_cbranch_scc1 K2_MAINDONE
    s_cmp_lg_u32 s{sMODE}, 0
    s_cbranch_scc1 S_START
    """)
    mainloop(a, False)
    a(f"""
K2_MAINDONE:
    @stamp 11
    s_waitcnt vmcnt(0)
    s_cmp_lt_u32 s{sWV}, 8
    s_cbranch_scc1 K2_NOFA
    s_lshl_b32 s{sTMP}, s{sWV}, 12
    s_add_u32 s{sTMP}, s{sTMP}, {WS_F - 32*1024}
    v_lshl_add_u32 v16, v{L8}, 1, s{sTMP}
    global_load_dwordx4 v[0:3], v16, s[{sWS}:{sWS+1}] sc1
    global_load_dwordx4 v[4:7], v16, s[{sWS}:{sWS+1}] offset:1024 sc1
    global_load_dwordx4 v[8:11], v16, s[{sWS}:{sWS+1}] offset:2048 sc1
    global_load_dwordx4 v[12:15], v16, s[{sWS}:{sWS+1}] offset:3072 sc1
K2_NOFA:
    v_mov_b32 v17, {f2u(2.0**120):#x}
    v_add_f32 v18, v{NANC}, v{NANC+1}
    v_cmp_nle_f32 vcc, v{MAXC}, v17
    v_cmp_u_f32 s[{sTMP}:{sTMP+1}], v18, v18
    v_mov_b32 v19, 0
    v_mov_b32 v20, 1
    s_or_b64 vcc, vcc, s[{sTMP}:{sTMP+1}]
    s_cbranch_scc0 K2_NOOVF
    ds_write_b32 v19, v20 offset:{FLG+4}
K2_NOOVF:
    v_lshrrev_b32 v21, 4, v{TID}
    v_and_b32 v22, 15, v{TID}
    v_lshlrev_b32 v23, 10, v21
    v_lshl_add_u32 v23, v22, 4, v23
    v_xor_b32 v24, v21, v22
    v_and_b32 v24, 15, v24
    v_lshlrev_b32 v24, 4, v24
    v_lshl_add_u32 v24, v21, 8, v24
    s_mov_b32 s{sTMP+2}, {NLN2:#x}
    s_waitcnt lgkmcnt(0)
    s_barrier
    @stamp 12
    ds_read_b64 v[26:27], v19 offset:{FLG}
    s_cmp_ge_u32 s{sWV}, 10
    s_cbranch_scc1 K2_NOCV
    ds_read_b128 v[36:39], v23 offset:{AGG}
    ds_read_b128 v[40:43], v23 offset:{AGG+256}
    ds_read_b128 v[44:47], v23 offset:{AGG+512}
    ds_read_b128 v[48:51], v23 offset:{AGG+768}
    """)
    for q in range(4):
        a(f"s_waitcnt lgkmcnt({3-q})\nv_cvt_f32_f64 v{28+2*q}, v[{36+4*q}:{37+4*q}]\nv_cvt_f32_f64 v{29+2*q}, v[{38+4*q}:{39+4*q}]")
    for q in range(4):
        a(f"v_pk_mul_f32 v[{28+2*q}:{29+2*q}], v[{28+2*q}:{29+2*q}], s[{sTMP+2}:{sTMP+3}] op_sel_hi:[1,0]")
    for q in range(4):
        a(f"v_cvt_pk_bf16_f32 v{28+q}, v{28+2*q}, v{29+2*q}")
    a(f"""
    ds_write_b128 v24, v[28:31] offset:{ES}
K2_NOCV:
    s_waitcnt lgkmcnt(0)
    v_readfirstlane_b32 s{sTMP}, v26
    v_readfirstlane_b32 s{sTMP+1}, v27
    s_cmp_lg_u32 s{sTMP+1}, 0
    s_cbranch_scc1 K2_GOSAFE
K2_NOSAFE:
    s_cmp_lg_u32 s{sTMP}, 0
    s_cbranch_scc1 K2_NEXTPASS
    s_barrier
    s_cmp_lt_u32 s{sWV}, 8
    s_cbranch_scc1 K2_END2
    v_bfe_u32 v17, v{TID}, 4, 2
    v_and_b32 v18, 15, v{TID}
    v_xor_b32 v64, v17, v18
    v_lshlrev_b32 v64, 4, v64
    v_lshl_add_u32 v64, v18, 8, v64
    v_xor_b32 v65, 64, v64
    v_xor_b32 v66, 128, v64
    v_xor_b32 v67, 192, v64
    s_lshl_b32 s{sTMP}, s{sSTART}, 8
    s_sub_u32 s{sTMP+1}, s{sWV}, 8
    s_lshl_b32 s{sTMP+1}, s{sTMP+1}, 5
    s_add_u32 s{sTMP}, s{sTMP}, s{sTMP+1}
    v_lshlrev_b32 v68, 10, v17
    v_lshl_add_u32 v68, v18, 1, v68
    v_add_u32 v68, s{sTMP}, v68
    v_add_u32 v69, 4096, v68
    v_add_u32 v70, 8192, v68
    """)
    for rt in range(3):
        for ks in range(4):
            a(f"ds_read_b128 v[{16+16*rt+4*ks}:{19+16*rt+4*ks}], v{64+ks} offset:{ES + rt*4096}")
    a(f"s_mov_b32 s{sTMP+2}, {NLOG2E:#x}\ns_waitcnt vmcnt(0)")
    for rt in range(3):
        for ks in range(4):
            a(f"s_waitcnt lgkmcnt({11 - 4*rt - ks})")
            a(f"v_mfma_f32_16x16x32_bf16 v[{UA+4*rt}:{UA+4*rt+3}], v[{16+16*rt+4*ks}:{19+16*rt+4*ks}], v[{4*ks}:{4*ks+3}], v[{UA+4*rt}:{UA+4*rt+3}]")
    a("s_nop 1")
    for rt in range(3):
        u = UA + 4*rt
        a(f"""
        v_pk_mul_f32 v[16:17], v[{u}:{u+1}], s[{sTMP+2}:{sTMP+3}] op_sel_hi:[1,0]
        v_pk_mul_f32 v[18:19], v[{u+2}:{u+3}], s[{sTMP+2}:{sTMP+3}] op_sel_hi:[1,0]
        v_exp_f32 v16, v16
        v_exp_f32 v17, v17
        v_exp_f32 v18, v18
        v_exp_f32 v19, v19
        v_pk_add_f32 v[16:17], v[16:17], 1.0 op_sel_hi:[1,0]
        v_pk_add_f32 v[18:19], v[18:19], 1.0 op_sel_hi:[1,0]
        v_rcp_f32 v16, v16
        v_rcp_f32 v17, v17
        v_rcp_f32 v18, v18
        v_rcp_f32 v19, v19
        v_pk_mul_f32 v[16:17], v[16:17], v[{u}:{u+1}]
        v_pk_mul_f32 v[18:19], v[18:19], v[{u+2}:{u+3}]
        v_cvt_pk_bf16_f32 v{20+2*rt}, v16, v17
        v_cvt_pk_bf16_f32 v{21+2*rt}, v18, v19
        buffer_store_short v{20+2*rt}, v{68+rt}, s[{sO}:{sO+3}], 0 offen
        buffer_store_short_d16_hi v{20+2*rt}, v{68+rt}, s[{sO}:{sO+3}], 0 offen offset:256
        buffer_store_short v{21+2*rt}, v{68+rt}, s[{sO}:{sO+3}], 0 offen offset:512
        buffer_store_short_d16_hi v{21+2*rt}, v{68+rt}, s[{sO}:{sO+3}], 0 offen offset:768
        """)
    a(f"""
K2_END2:
    @store {sWS} {TID} {WS_DIAG}
K_END:
    s_endpgm
K2_SHRINK:
    s_mov_b32 s{sR}, 1
    s_waitcnt lgkmcnt(0)
K2_REINIT:
    s_barrier
    v_lshrrev_b32 v9, 1, v{L8}
    v_mov_b32 v10, 0
    ds_write_b32 v9, v10 offset:{CNT}
    ds_write_b32 v10, v10 offset:{FLG}
    ds_write_b32 v10, v10 offset:{FLG+4}
    v_lshlrev_b32 v9, 2, v{TID}
    v_mov_b32 v10, -1
    ds_write_b32 v9, v10 offset:{SS}
    s_waitcnt lgkmcnt(0)
    s_barrier
    s_branch K2_PASS
K2_NEXTPASS:
    s_add_u32 s{sR0}, s{sR0}, s{sR}
    s_waitcnt vmcnt(0)
    s_branch K2_REINIT
K2_GOSAFE:
    s_cmp_lg_u32 s{sMODE}, 0
    s_cbranch_scc1 K2_NOSAFE
    s_mov_b32 s{sMODE}, 1
    s_waitcnt vmcnt(0)
    s_barrier
    s_branch K2_RESTART
    """)
    mainloop(a, True)
    return a.text()

HEADER = """; Kernarg layout for this problem (72 bytes, ptrs only, base s[0:1]):
"""
def desc(name, vgpr, sgpr):
    return f""".p2align 6
.amdhsa_kernel {name}
  .amdhsa_next_free_vgpr {vgpr}
  .amdhsa_next_free_sgpr {sgpr}
  .amdhsa_accum_offset {(vgpr+3)//4*4}
  .amdhsa_group_segment_fixed_size 0
  .amdhsa_kernarg_size 72
  .amdhsa_user_sgpr_count 2
  .amdhsa_user_sgpr_kernarg_segment_ptr 1
  .amdhsa_system_sgpr_workgroup_id_x 1
.end_amdhsa_kernel
"""
def main():
    s = HEADER
    s += f"; @launch grid=({NG},1,1) block=(1024,1,1) lds={LDS_BYTES}\n"
    s += '.amdgcn_target "amdgcn-amd-amdhsa--gfx950"\n.text\n'
    s += f".globl {KN}\n.p2align 8\n.type {KN},@function\n" + kernel()
    s += '.section .rodata,"a"\n' + desc(KN, NVGPR, 96 if (DIAG or AMP) else 64)
    open(sys.argv[1], "w").write(s)
main()
```

```python
import sys, struct

N = 10000; E = 320000
NG = 256
EPW = 1280
REC_STRIDE = 15360
WS_P = 0
WS_REC = 0x280000
WS_T = 0x640000
WS_F = 0xA40000
NGEMM = 209
LOG2E = 1.4426950408889634
def f2u(x): return struct.unpack("<I", struct.pack("<f", x))[0]
NLOG2E = f2u(-LOG2E)
NLN2 = f2u(-0.6931471805599453)

class Asm:
    def __init__(self): self.l = []
    def __call__(self, s):
        for ln in s.strip("\n").split("\n"):
            ln = ln.strip()
            if ln.startswith("@stamp"): stamp(self, int(ln.split()[1])); continue
            if ln.startswith("@rt"): stamp_rt(self, int(ln.split()[1])); continue
            if ln.startswith("@store"):
                p = ln.split(); stamp_store(self, int(p[1]), int(p[2]), int(p[3])); continue
            if ln: self.l.append(ln if ln.endswith(":") else "    " + ln)
    def text(self): return "\n".join(self.l) + "\n"

OPT = dict(a.split("=") if "=" in a else (a, "1") for a in sys.argv[2:])

DIAG = "diag" in OPT
WS_DIAG = 0xB00000
AMP = int(OPT.get("amp", 0))
def stamp(a, i):
    if AMP and i in (1, AMP): a(f"s_memrealtime s[{64+2*(i != 1)}:{65+2*(i != 1)}]\ns_waitcnt lgkmcnt(0)")
    if DIAG: a(f"{'s_memrealtime' if OPT['diag'] == 'rt' else 's_memtime'} s[{64+2*i}:{65+2*i}]\ns_waitcnt lgkmcnt(0)")
def stamp_rt(a, i):
    if DIAG: a(f"s_memrealtime s[{64+2*i}:{65+2*i}]\ns_waitcnt lgkmcnt(0)")
def stamp_store(a, wsreg, tidv, base, n=16):
    if AMP:
        a("s_waitcnt vmcnt(0)")
        stamp(a, 14)
        a(f"""
        s_cmp_lg_u32 s2, 0
        s_cbranch_scc1 AMP_DONE
        s_sub_u32 s66, s66, s64
        s_lshl_b32 s66, s66, 2
        s_memrealtime s[68:69]
        s_waitcnt lgkmcnt(0)
AMP_LOOP:
        s_memrealtime s[70:71]
        s_waitcnt lgkmcnt(0)
        s_sub_u32 s70, s70, s68
        s_cmp_lt_u32 s70, s66
        s_cbranch_scc1 AMP_LOOP
AMP_DONE:
        """)
    if not DIAG: return
    a(f"s_waitcnt vmcnt(0)")
    stamp(a, n-2); stamp_rt(a, n-1)
    a(f"s_mov_b64 exec, -1\nv_lshrrev_b32 v1, 6, v{tidv}\ns_lshl_b32 s3, s2, 4\nv_add_u32 v1, s3, v1\nv_lshlrev_b32 v1, 6, v1\nv_add_u32 v1, {base}, v1")
    for i in range(n):
        a(f"v_mov_b32 v2, s{64+2*i}\nglobal_store_dword v1, v2, s[{wsreg}:{wsreg+1}] offset:{4*i}")
def dpp_scan(a, v):
    for sh in (1, 2, 4, 8):
        a(f"s_nop 1\nv_add_u32_dpp v{v}, v{v}, v{v} row_shr:{sh} row_mask:0xf bank_mask:0xf bound_ctrl:0")
    a(f"s_nop 1\nv_add_u32_dpp v{v}, v{v}, v{v} row_bcast:15 row_mask:0xa bank_mask:0xf")
    a(f"s_nop 1\nv_add_u32_dpp v{v}, v{v}, v{v} row_bcast:31 row_mask:0xc bank_mask:0xf")

CNT = 0; FLG = 256; NON = 272
CAP = 2048
SS = 512
QS = SS + CAP*2 + 256
ES = QS + 40*512
AGG = ES + CAP*8
RING = 82944
STAGE = RING + 65536
LDS_BYTES = STAGE + 15360
W1S = RING; W2S = RING + 32768; WTS = RING; XS = ES
HIST = ES + 12288; OFFS = HIST + 1024; W3S = OFFS + 1024
RMAX = 5
NPROD = E // EPW
D0, D1, QR, VU, BP, AE, ID, W3 = 0, 16, 32, 48, 64, 72, 76, 84
VA, NUM, DEN, NANC, MAXC = 88, 90, 92, 94, 96
EAD, SAD, PAD, IX0, IX1, QAD, AAD, L8, NCNT, TID, TW = 97, 98, 99, 100, 102, 104, 105, 106, 107, 108, 109
RAD, E8 = 110, 111
UA = 112
G2 = 124; VG = 125; VJ = 126; VL = 127
NVGPR = 128
sWS = 20; sWV = 22; sSTART = 23
sX = 24; sW = 28; sP = 24; sO = 28; sREC = 4; sW2 = 40
sR0 = 8; sR = 9; sMODE = 10; sLEFT = 11; sREM = 12; sNODE = 14; sCNT = 16; sRUN = 17; sTT = 18; sT0 = 19
sNZ = 32; sM0 = 34; sM1 = 36; sONE = 38; sRING = 40; sTMP = 44; sG = 49
sEX = 50
sNON = 60
sEND = 62; sSPIN = 63; sCM = 52; sEV = 48; sFIRST = 3; sW2O = 11
PST_F = OPT.get('pst', 'sc1').replace('+', ' ')
PF2 = int(OPT.get('pf2', 12))
POLL_F = OPT.get('poll', 'sc1').replace('+', ' ')
TGW = 'tgw' in OPT
TST_F = OPT.get('tst', 'sc1').replace('+', ' ')
NREP = int(OPT.get('rep', 1))
PFK = int(OPT.get('pfk', 0))
SPINMAX = 400000
KN = "gather_scatter__mpnn_edge_mlp__graph_kernel"

def mainloop(a, safe):
    L = "S" if safe else "F"
    def ex(d, k):
        if "x_novalu" in OPT: a("s_nop 0"); return
        a(f"v_exp_f32 v{VU+k}, v{d+k}")
    def pk(d, e):
        t = d + 2*e; u = VU + 2*e
        if "x_novalu" in OPT: return
        if not safe:
            a(f"""
            v_pk_fma_f32 v[{VA}:{VA+1}], v[{t}:{t+1}], v[{DEN}:{DEN+1}], v[{NUM}:{NUM+1}]
            v_pk_fma_f32 v[{DEN}:{DEN+1}], v[{DEN}:{DEN+1}], v[{u}:{u+1}], v[{DEN}:{DEN+1}]
            v_pk_fma_f32 v[{NUM}:{NUM+1}], v[{NUM}:{NUM+1}], v[{u}:{u+1}], v[{VA}:{VA+1}]
            """)
        else:
            a(f"""
            v_pk_add_f32 v[{u}:{u+1}], v[{u}:{u+1}], 1.0 op_sel_hi:[1,0]
            v_rcp_f32 v{u}, v{u}
            v_rcp_f32 v{u+1}, v{u+1}
            s_nop 0
            v_pk_fma_f32 v[{NUM}:{NUM+1}], v[{t}:{t+1}], v[{u}:{u+1}], v[{NUM}:{NUM+1}]
            """)
    def flush():
        if not safe:
            a(f"""
            v_rcp_f32 v{VU}, v{DEN}
            v_rcp_f32 v{VU+1}, v{DEN+1}
            v_max3_f32 v{MAXC}, v{MAXC}, v{DEN}, v{DEN+1}
            v_pk_mul_f32 v[{VA}:{VA+1}], v[{NUM}:{NUM+1}], v[{VU}:{VU+1}]
            v_mov_b64 v[{DEN}:{DEN+1}], s[{sONE}:{sONE+1}]
            v_mov_b64 v[{NUM}:{NUM+1}], 0
            v_cvt_f64_f32 v[{VU}:{VU+1}], v{VA}
            v_cvt_f64_f32 v[{VU+2}:{VU+3}], v{VA+1}
            v_pk_fma_f32 v[{NANC}:{NANC+1}], v[{VA}:{VA+1}], 0, v[{NANC}:{NANC+1}] op_sel_hi:[1,0,1]
            """)
        else:
            a(f"""
            v_cvt_f64_f32 v[{VU}:{VU+1}], v{NUM}
            v_cvt_f64_f32 v[{VU+2}:{VU+3}], v{NUM+1}
            v_mov_b64 v[{NUM}:{NUM+1}], 0
            """)
        a(f"ds_add_f64 v{AAD}, v[{VU}:{VU+1}] offset:{AGG}\nds_add_f64 v{AAD}, v[{VU+2}:{VU+3}] offset:{AGG+512}")
    def breads(slot, eoff):
        if "x_nolds" in OPT: return
        for q in range(4):
            a(f"ds_read_b64 v[{BP+2*q}:{BP+2*q+1}], v{PAD} offset:{slot*2048 + q*512}")
        a(f"""
        s_mov_b64 exec, s[{sM0}:{sM0+1}]
        ds_read_b64 v[{AE}:{AE+1}], v{EAD} offset:{ES+eoff}
        s_mov_b64 exec, s[{sM1}:{sM1+1}]
        ds_read_b64 v[{AE+2}:{AE+3}], v{EAD} offset:{ES+eoff}
        s_mov_b64 exec, -1
        """)
    def idxreads(soff):
        a(f"ds_read_u16 v{IX0}, v{SAD} offset:{SS+soff}\nds_read_u16 v{IX1}, v{SAD} offset:{SS+soff+8}")
    def qreads():
        for q in range(8):
            a(f"ds_read_b64 v[{QR+2*q}:{QR+2*q+1}], v{QAD} offset:{QS}")
    def mfma(d, k):
        if "x_nomfma" in OPT: return
        if k == 0: a(f"v_mfma_f32_32x32x16_bf16 v[{d}:{d+15}], v[{AE}:{AE+3}], v[{W3}:{W3+3}], v[{QR}:{QR+15}]")
        else: a(f"v_mfma_f32_32x32x16_bf16 v[{d}:{d+15}], v[{ID+4*k-4}:{ID+4*k-1}], v[{BP+4*k-4}:{BP+4*k-1}], v[{d}:{d+15}]")
    def dma(slot, f1="s_nop 0", f2="s_nop 0"):
        if "x_nodma" in OPT: a(f1 + "\n" + f2); return
        a(f"""
        s_mov_b32 m0, s{sRING+2*slot}
        {f1}
        buffer_load_dwordx4 v[{IX0}:{IX0+1}], s[{sP}:{sP+3}], 0 idxen offen sc1 lds
        s_mov_b32 m0, s{sRING+2*slot+1}
        {f2}
        buffer_load_dwordx4 v[{IX1}:{IX1+1}], s[{sP}:{sP+3}], 0 idxen offen sc1 lds
        """)
    def advance(rdst, ndst, nsrc):
        a(f"""
        s_bitset0_b64 s[{sNZ}:{sNZ+1}], s{nsrc}
        s_ff1_i32_b64 s{ndst}, s[{sNZ}:{sNZ+1}]
        v_readlane_b32 s{rdst}, v{NCNT}, s{ndst}
        v_lshl_add_u32 v{QAD}, s{ndst}, 9, v{L8}
        """)
        qreads()
    def tree(name, labels):
        a(f"""
{name}:
        s_cmp_gt_u32 s{sCNT}, 3
        s_cbranch_scc1 {name}_H
        s_cmp_eq_u32 s{sCNT}, 2
        s_cbranch_scc1 {labels[2]}
        s_cmp_eq_u32 s{sCNT}, 3
        s_cbranch_scc1 {labels[3]}
        s_branch {labels[1]}
{name}_H:
        s_cmp_gt_u32 s{sCNT}, 5
        s_cbranch_scc1 {name}_HH
        s_cmp_eq_u32 s{sCNT}, 4
        s_cbranch_scc1 {labels[4]}
        s_branch {labels[5]}
{name}_HH:
        s_cmp_eq_u32 s{sCNT}, 6
        s_cbranch_scc1 {labels[6]}
        s_branch {labels[7]}
        """)
    R = (sREM, sREM+1); Nn = (sNODE, sNODE+1)
    a(f"""
{L}_START:
    s_setprio 3
    s_mov_b32 s{sEV}, {int(OPT.get("ev", 6))}
    v_mov_b64 v[{DEN}:{DEN+1}], s[{sONE}:{sONE+1}]
    v_mov_b64 v[{NUM}:{NUM+1}], 0
    s_min_u32 s{sRUN}, s{sLEFT}, 8
    s_sub_u32 s{sRUN}, s{sRUN}, 1
    """)
    idxreads(0)
    qreads()
    a("s_waitcnt lgkmcnt(8)")
    dma(0)
    idxreads(16)
    a("s_waitcnt lgkmcnt(0)")
    dma(1)
    idxreads(32)
    a("s_waitcnt vmcnt(2)")
    breads(0, 0)
    a("s_waitcnt lgkmcnt(0)\n@stamp 9")
    dma(0)
    for k in range(3): mfma(D0, k)
    a("s_waitcnt vmcnt(2)")
    breads(1, 64)
    idxreads(48)
    a(f"""
    s_mov_b32 s{Nn[1]}, s{Nn[0]}
    s_sub_u32 s{R[1]}, s{R[0]}, 8
    s_cmp_le_u32 s{R[0]}, 8
    s_cbranch_scc0 {L}_L0B
    """)
    advance(R[1], Nn[1], Nn[0])
    a(f"s_branch {L}_L0B")
    for b in range(2):
        dc, dn = (D0, D1) if b == 0 else (D1, D0)
        nxt = f"{L}_L{1-b}"
        a(f"""
{L}_NODMA{b}:
        s_setprio 2
        s_mov_b32 s{sEV}, 3
        s_cmp_ge_u32 s{sLEFT}, 3
        s_cbranch_scc1 {L}_DMA{b}
        s_setprio 1
        s_cmp_lg_u32 s{sLEFT}, 0
        s_cbranch_scc1 {L}_PR{b}
        s_setprio 0
{L}_PR{b}:
        """)
        a(f"s_min_u32 s{sCNT}, s{R[b]}, 9\ns_waitcnt vmcnt(0)\ns_cmp_lt_u32 s{sCNT}, 8\ns_branch {L}_XB{b}")
        a(f"{L}_ADV{b}:")
        advance(R[b], Nn[b], Nn[1-b])
        a(f"s_branch {L}_BACK{b}")
        tree(f"{L}_XD{b}", {c: f"{L}_XS{b}_{c}" for c in range(1, 8)})
        for c in range(1, 8):
            a(f"{L}_XS{b}_{c}:")
            mfma(dn, 0)
            if c <= 5: mfma(dn, 1)
            if c <= 2: mfma(dn, 2)
            a(f"s_branch {L}_X{b}_{c}")
        tree(f"{L}_YD{b}", {c: f"{L}_Y{b}_{c}" for c in range(1, 8)})
        a(f"{L}_FL{b}:")
        flush()
        a(f"""
        s_cmp_eq_u32 s{sLEFT}, 0
        s_cbranch_scc1 K2_MAINDONE
        s_min_u32 s{sRUN}, s{sLEFT}, 8
        s_sub_u32 s{sRUN}, s{sRUN}, 1
        v_lshl_add_u32 v{AAD}, s{Nn[1-b]}, 10, v{L8}
        s_branch {nxt}
        """)
    for b in range(2):
        dc, dn = (D0, D1) if b == 0 else (D1, D0)
        nxt = f"{L}_L{1-b}"
        a(f"{L}_L{b}:")
        if b == 0:
            a(f"v_add_u32 v{EAD}, 128, v{EAD}\nv_add_u32 v{SAD}, 32, v{SAD}\n{L}_L0B:")
        a(f"""
        s_sub_u32 s{sLEFT}, s{sLEFT}, 1
        s_cmp_lt_u32 s{sLEFT}, s{sEV}
        s_waitcnt lgkmcnt(0)
        s_cbranch_scc1 {L}_NODMA{b}
{L}_DMA{b}:
        """)
        dma(1-b, f"s_min_u32 s{sCNT}, s{R[b]}, 9", f"s_cmp_lt_u32 s{sCNT}, 8")
        a(f"{L}_XB{b}:\ns_cbranch_scc1 {L}_XD{b}")
        mfma(dn, 0)
        for e in range(7, -1, -1):
            if e < 7 and e != 2: a(f"{L}_X{b}_{e+1}:")
            if e == 2:
                a(f"{L}_X{b}_3:")
                mfma(dn, 2)
            ex(dc, 2*e+1)
            if e == 5: mfma(dn, 1)
            ex(dc, 2*e)
        a("s_waitcnt vmcnt(2)")
        breads(b, 64*(b+2))
        idxreads(16*(b+4))
        a(f"""
        s_mov_b32 s{Nn[b]}, s{Nn[1-b]}
        s_sub_u32 s{R[b]}, s{R[1-b]}, 8
        s_cmp_le_u32 s{R[1-b]}, 8
        s_cbranch_scc1 {L}_ADV{b}
{L}_BACK{b}:
        s_cmp_lt_u32 s{sCNT}, 8
        s_cbranch_scc1 {L}_YD{b}
        """)
        for e in range(7, -1, -1):
            if e < 7: a(f"{L}_Y{b}_{e+1}:")
            pk(dc, e)
        a(f"""
        s_cmp_lt_u32 s{sCNT}, 9
        s_cbranch_scc1 {L}_FL{b}
        s_sub_u32 s{sRUN}, s{sRUN}, 1
        s_cbranch_scc1 {L}_FL{b}
        """)
        if b == 1: a(f"s_branch {nxt}")


def consts(a):
    a(f"""
    ; m = l&31, hk = l>>5, e = 2*(m>>3) + ((m>>1)&1), H = (m>>2)&1, c0 = m&1
    v_lshlrev_b32 v{L8}, 3, v{VL}
    v_lshlrev_b32 v{IX0+1}, 4, v{VJ}
    v_lshlrev_b32 v{IX1+1}, 4, v{VJ}
    v_lshlrev_b32 v{G2}, 1, v{VG}
    v_lshrrev_b32 v1, 5, v{VL}
    v_bfe_u32 v2, v{VL}, 2, 1
    v_and_b32 v3, 1, v{VL}
    v_bfe_u32 v4, v{VL}, 1, 1
    v_bfe_u32 v5, v{VL}, 3, 2
    v_lshl_add_u32 v5, v5, 1, v4
    v_mov_b64 v[{AE}:{AE+1}], 0
    v_mov_b64 v[{AE+2}:{AE+3}], 0
    v_xor_b32 v{ID}, v1, v2
    v_lshl_add_u32 v{ID}, v{ID}, 1, v3
    v_cmp_eq_u32 s[{sM0}:{sM0+1}], 0, v{ID}
    v_cmp_eq_u32 s[{sM1}:{sM1+1}], 1, v{ID}
    v_cmp_eq_u32 vcc, v1, v4
    v_lshlrev_b32 v{E8}, 3, v5
    v_lshlrev_b32 v3, 4, v3
    v_lshlrev_b32 v3, v3, v{W3}
    v_lshrrev_b32 v5, 1, v5
    v_lshl_add_u32 v5, v5, 1, v2
    v_cndmask_b32 v3, 0, v3, vcc
    """)
    for h in range(2):
        for q in range(4): a(f"v_cmp_eq_u32 s[{64 - 64 + sCM + 2*q}:{sCM + 2*q + 1}], {4*h+q}, v5")
        if h == 0: a(f"v_lshrrev_b32 v1, 2, v{TID}")
        else: a(f"v_and_b32 v2, 3, v{TID}")
        for q in range(4): a(f"v_cndmask_b32 v{ID+4*h+q}, 0, v3, s[{sCM + 2*q}:{sCM + 2*q + 1}]")
    a(f"""
    s_movk_i32 s{sTMP}, {REC_STRIDE}
    v_mul_u32_u24 v3, s{sTMP}, v1
    v_mad_u32_u24 v{RAD}, v2, 12, v3
    s_lshl_b32 s{sTMP}, s{sG}, {11 if TGW else 3}
    s_add_u32 s{sTMP}, s{sTMP}, {WS_T}
    v_lshl_add_u32 v{AAD}, v1, {3 if TGW else 11}, s{sTMP}
    v_xor_b32 v1, v{VG}, v{VJ}
    v_lshlrev_b32 v1, 4, v1
    v_lshl_add_u32 v{VA}, v{VJ}, 8, v1
    v_xor_b32 v{VA+1}, 64, v{VA}
    v_xor_b32 v{VA+2}, 128, v{VA}
    v_xor_b32 v{VA+3}, 192, v{VA}
    v_bfe_u32 v1, v{VL}, 2, 2
    v_and_b32 v2, 1, v{VG}
    v_lshl_or_b32 v2, v2, 2, v1
    v_bfe_u32 v3, v{VL}, 1, 1
    v_lshl_or_b32 v2, v2, 1, v3
    v_and_b32 v3, 1, v{VL}
    v_lshl_or_b32 v2, v2, 1, v3
    v_lshl_add_u32 v1, v{VG}, 3, v1
    v_lshlrev_b32 v1, 8, v1
    v_lshl_add_u32 v{VA+4}, v2, 3, v1
    """)
def wdma(a, srd, soff, v=6):
    a(f"""
    buffer_load_dwordx4 v{v}, s[{srd}:{srd+3}], s{soff} offen lds
    buffer_load_dwordx4 v{v}, s[{srd}:{srd+3}], s{soff} offen offset:1024 lds
    buffer_load_dwordx4 v{v+1}, s[{srd}:{srd+3}], s{soff} offen offset:2048 lds
    buffer_load_dwordx4 v{v+1}, s[{srd}:{srd+3}], s{soff} offen offset:3072 lds
    """)
def w2job(a, sj):
    a(f"""
    s_lshl_b32 s{sTMP}, s{sj}, 12
    s_add_u32 s{sTMP+1}, s{sTMP}, 32768
    s_sub_u32 s{sTMP+2}, s{sTMP}, 32768
    s_add_u32 s{sTMP+3}, s{sTMP}, {W2S}
    s_add_u32 s{sTMP}, s{sTMP+2}, {WTS}
    s_cmp_lt_u32 s{sj}, 8
    s_cselect_b32 s{sW2}, s12, s14
    s_cselect_b32 s{sW2+1}, s13, s15
    s_cselect_b32 s{sW2O}, s{sTMP+1}, s{sTMP+2}
    s_cselect_b32 m0, s{sTMP+3}, s{sTMP}
    s_and_b32 s{sW2+1}, s{sW2+1}, 0xffff
    """)

def ugemm(a):
    for ks in range(4):
        a(f"ds_read_b128 v[{52+4*ks}:{55+4*ks}], v{VA+ks} offset:{XS}")
        for h in range(2):
            a(f"ds_read_b64_tr_b16 v[{16+4*ks+2*h}:{17+4*ks+2*h}], v{VA+4} offset:{8192*ks + 1024*h}")
    def um(rt, xb):
        for ks in range(4):
            c = "0" if ks == 0 else f"v[{UA+4*rt}:{UA+4*rt+3}]"
            a(f"v_mfma_f32_16x16x32_bf16 v[{UA+4*rt}:{UA+4*rt+3}], v[{16+4*ks}:{19+4*ks}], v[{xb[ks]}:{xb[ks]+3}], {c}")
    XB1 = (0, 4, 8, 68)
    for ks in range(4):
        a(f"ds_read_b128 v[{XB1[ks]}:{XB1[ks]+3}], v{VA+ks} offset:{XS + 4096}")
    a("s_waitcnt lgkmcnt(4)")
    um(0, (52, 56, 60, 64))
    for ks in range(4):
        a(f"ds_read_b128 v[{52+4*ks}:{55+4*ks}], v{VA+ks} offset:{XS + 8192}")
    a("s_waitcnt lgkmcnt(4)")
    um(1, XB1)
    a("s_waitcnt lgkmcnt(0)")
    um(2, (52, 56, 60, 64))
    a(f"s_mov_b32 s{sTMP+2}, {NLOG2E:#x}\ns_nop 2")
    for q in range(6):
        if q == 4: a("s_nop 1")
        a(f"v_pk_mul_f32 v[{UA+2*q}:{UA+2*q+1}], v[{UA+2*q}:{UA+2*q+1}], s[{sTMP+2}:{sTMP+3}] op_sel_hi:[1,0]")

def kernel():
    a = Asm()
    a(f"""
{KN}:
    s_cmp_ge_u32 s2, {NG}
    s_cbranch_scc1 K_END
    @rt 0
    @stamp 1
    s_load_dwordx16 s[4:19], s[0:1], 0
    s_load_dwordx2 s[{sWS}:{sWS+1}], s[0:1], 64
    v_mov_b32 v{TID}, v0
    v_lshrrev_b32 v1, 6, v0
    v_and_b32 v{VL}, 63, v0
    v_readfirstlane_b32 s{sWV}, v1
    s_and_b32 s{sG}, s2, 7
    s_lshl_b32 s{sG}, s{sG}, 5
    s_lshr_b32 s3, s2, 3
    s_or_b32 s{sG}, s{sG}, s3
    v_lshrrev_b32 v{VG}, 4, v{VL}
    v_and_b32 v{VJ}, 15, v{VL}
    s_mul_i32 s3, s{sG}, 625
    s_add_u32 s{sSTART}, s3, 15
    s_lshr_b32 s{sSTART}, s{sSTART}, 4
    s_add_u32 s{sEND}, s3, {625+15}
    s_lshr_b32 s{sEND}, s{sEND}, 4
    v_mov_b32 v{W3}, 0x3f80
    s_cmp_ge_u32 s{sWV}, 5
    s_cbranch_scc1 A_N1
    s_cmp_lt_u32 s{sG}, {NPROD}
    s_cselect_b32 s3, s{sG}, 0
    s_cselect_b64 s[{sEX}:{sEX+1}], -1, 0
    s_mul_i32 s3, s3, {EPW*4}
    v_lshl_add_u32 v8, v0, 4, s3
    v_lshlrev_b32 v9, 1, v8
    s_lshl_b32 s{sTMP}, s{sWV}, 3
    v_add_u32 v1, s{sTMP}, v{VG}
    v_xor_b32 v2, v1, v{VJ}
    v_and_b32 v2, 15, v2
    v_lshlrev_b32 v2, 4, v2
    v_lshl_add_u32 v2, v1, 8, v2
    v_xor_b32 v3, 64, v2
    s_lshl_b32 s{sTMP}, s{sWV}, 11
    s_add_u32 m0, s{sTMP}, {XS}
    s_lshl_b32 s{sTMP+2}, s{sSTART}, 8
    s_mov_b32 s{sX+2}, {N*256}
    s_mov_b32 s{sX+3}, 0x20000
    s_waitcnt lgkmcnt(0)
    global_load_dwordx4 v[12:15], v8, s[10:11]
    s_mov_b32 s{sX}, s4
    s_and_b32 s{sX+1}, s5, 0xffff
    buffer_load_dwordx4 v2, s[{sX}:{sX+3}], s{sTMP+2} offen lds
    buffer_load_dwordx4 v3, s[{sX}:{sX+3}], s{sTMP+2} offen offset:1024 lds
    s_movk_i32 s{sTMP}, 625
    s_mov_b32 s{sTMP+1}, 214749
    v_mov_b32 v1, 1
    v_lshlrev_b32 v10, 4, v{VL}
    @stamp 2
    s_barrier
    s_waitcnt vmcnt(2)
    global_load_dwordx4 v[16:19], v8, s[8:9]
    global_load_dwordx4 v[20:23], v9, s[6:7]
    global_load_dwordx4 v[24:27], v9, s[6:7] offset:16
    s_mov_b64 exec, s[{sEX}:{sEX+1}]
    """)
    for i in range(4):
        a(f"v_mul_u32_u24 v{28+i}, s{sTMP+1}, v{12+i}")
    for i in range(4):
        a(f"v_lshrrev_b32 v{28+i}, 23, v{28+i}\nv_lshlrev_b32 v{32+i}, 2, v{28+i}\nds_add_rtn_u32 v{36+i}, v{32+i}, v1 offset:{HIST}")
    for i in range(4):
        a(f"v_mad_u32_u24 v{28+i}, v{28+i}, s{sTMP}, 15\nv_lshrrev_b32 v{28+i}, 4, v{28+i}\nv_sub_u32 v{28+i}, v{12+i}, v{28+i}")
    a("s_mov_b64 exec, -1")
    consts(a)
    a(f"""
    s_waitcnt vmcnt(3) lgkmcnt(0)
    @stamp 3
    s_barrier
    ds_read_b128 v[40:43], v10 offset:{HIST}
    s_waitcnt lgkmcnt(0)
    v_add_u32 v44, v40, v41
    v_add3_u32 v44, v44, v42, v43
    v_mov_b32 v45, v44
    """)
    dpp_scan(a, 45)
    a(f"""
    v_sub_u32 v48, v45, v44
    v_add_u32 v49, v48, v40
    v_add_u32 v50, v49, v41
    v_add_u32 v51, v50, v42
    ds_write_b128 v10, v[48:51] offset:{OFFS}
    s_mov_b64 exec, s[{sEX}:{sEX+1}]
    s_mov_b32 s{sTMP}, {STAGE}
    s_waitcnt lgkmcnt(0)
    """)
    for i in range(4):
        a(f"ds_read_b32 v{40+i}, v{32+i} offset:{OFFS}")
    a("s_waitcnt vmcnt(2)")
    for i in range(4):
        a(f"v_lshl_or_b32 v{16+i}, v{28+i}, 18, v{16+i}")
    a("s_waitcnt vmcnt(0)")
    for i in range(4):
        a(f"""
        s_waitcnt lgkmcnt({3+i})
        v_add_u32 v{40+i}, v{40+i}, v{36+i}
        v_mad_u32_u24 v{40+i}, v{40+i}, 12, s{sTMP}
        ds_write2_b32 v{40+i}, v{20+2*i}, v{21+2*i} offset0:0 offset1:1
        ds_write_b32 v{40+i}, v{16+i} offset:8
        """)
    a(f"""
    s_mov_b64 exec, -1
    s_branch A_JOIN
A_N1:
    ; ================= waves 5..15
    v_lshlrev_b32 v6, 1, v{VG}
    v_xor_b32 v6, v6, v{VJ}
    v_lshlrev_b32 v6, 4, v6
    v_lshl_add_u32 v6, v{VG}, 8, v6
    v_xor_b32 v7, 128, v6
    v_mov_b32 v8, 0
    s_mov_b32 s{sW2+2}, 65536
    s_mov_b32 s{sW2+3}, 0x20000
    s_cmp_ge_u32 s{sWV}, 10
    s_cbranch_scc1 A_N10
    s_mov_b32 s{sTMP}, {HIST - 320*4}
    s_cmp_eq_u32 s{sWV}, 9
    s_cselect_b32 s{sTMP}, {CNT - 576*4}, s{sTMP}
    v_lshl_add_u32 v3, v0, 2, s{sTMP}
    v_mov_b32 v2, 0
    ds_write_b32 v3, v2
    ds_write_b32 v2, v2 offset:{FLG}
    ds_write_b32 v2, v2 offset:{FLG+4}
    s_branch A_B0
A_N10:
    s_cmp_ge_u32 s{sWV}, 14
    s_cbranch_scc1 A_N14
    v_lshlrev_b32 v3, 4, v0
    v_add_u32 v3, {SS - 640*16}, v3
    v_mov_b64 v[8:9], -1
    v_mov_b64 v[10:11], -1
    ds_write_b128 v3, v[8:11]
    s_branch A_B0
A_N14:
    s_and_b32 s{sTMP}, s{sG}, 31
    s_mul_i32 s{sTMP}, s{sTMP}, {17*128}
    v_lshl_add_u32 v3, v{VL}, 7, s{sTMP}
    v_min_u32 v3, {511*128}, v3
    s_waitcnt lgkmcnt(0)
    s_cmp_eq_u32 s{sWV}, 14
    s_cselect_b32 s{sTMP+2}, s12, s14
    s_cselect_b32 s{sTMP+3}, s13, s15
    s_mov_b64 exec, 0x1ffff
    global_load_dword v40, v3, s[{sTMP+2}:{sTMP+3}]
    s_mov_b64 exec, -1
    s_cbranch_scc1 A_B0
    s_cmp_lg_u32 s2, 0
    s_cbranch_scc1 A_B0
    s_memrealtime s[{sNON}:{sNON+1}]
    v_mov_b32 v8, 0
    s_waitcnt lgkmcnt(0)
    s_or_b32 s{sNON}, s{sNON}, 1
    v_mov_b32 v10, s{sNON}
    v_mov_b32 v11, s{sNON+1}
    s_mov_b64 exec, 1
    global_store_dwordx2 v8, v[10:11], s[18:19] sc1
    s_mov_b64 exec, -1
A_B0:
    s_sub_u32 s3, s{sWV}, 5
    s_lshl_b32 s{sTMP}, s3, 12
    s_add_u32 m0, s{sTMP}, {W1S}
    s_waitcnt lgkmcnt(0)
    s_mov_b32 s{sW2}, s12
    s_and_b32 s{sW2+1}, s13, 0xffff
    @stamp 2
    s_barrier
    s_cmp_ge_u32 s{sWV}, 13
    s_cbranch_scc1 A_NOW1
    """)
    wdma(a, sW2, sTMP)
    a(f"""
A_NOW1:
    """)
    if 'prew' in OPT:
        a(f"""
        s_sub_u32 s{sTMP}, s{sWV}, 13
        s_cmp_gt_u32 s{sTMP}, 1
        s_cbranch_scc1 A_NOPREW
        v_lshlrev_b32 v1, 4, v{TID}
        s_lshl_b32 s{sTMP}, s{sG}, 11
        s_add_u32 s{sTMP}, s{sTMP}, {WS_T - 832*16}
        v_add_u32 v1, s{sTMP}, v1
        v_mov_b64 v[2:3], 0
        v_mov_b64 v[4:5], 0
        """)
        for r in range(NREP):
            a(f"global_store_dwordx4 v1, v[2:5], s[{sWS}:{sWS+1}] sc1")
            if r < NREP - 1: a("v_add_u32 v1, 0x80000, v1")
        a("s_nop 1\nA_NOPREW:")
    a(f"""
    s_cmp_eq_u32 s{sWV}, 15
    s_cbranch_scc0 A_NO15
    v_bfe_u32 v9, v{VL}, 4, 1
    v_lshlrev_b32 v9, 6, v9
    v_lshrrev_b32 v10, 5, v{VL}
    v_lshl_add_u32 v9, v10, 5, v9
    v_add_u32 v9, v9, v{VJ}
    v_lshlrev_b32 v9, 1, v9
    v_add_u32 v8, {256*256}, v9
    """)
    for s in range(8):
        a(f"global_load_ushort v{16 + s}, v8, s[12:13] offset:{(s & 3)*256 + (s >> 2)*32}")
    a(f"""
    s_cmp_ge_u32 s{sG}, 32
    s_cbranch_scc1 A_NO15
    s_and_b32 s{sTMP}, s{sG}, 1
    s_lshl_b32 s{sTMP}, s{sTMP}, 3
    s_bfe_u32 s{sTMP+1}, s{sG}, 0x10001
    s_lshl_b32 s{sTMP+1}, s{sTMP+1}, 6
    s_add_u32 s{sTMP}, s{sTMP}, s{sTMP+1}
    s_add_u32 s{sTMP}, s{sTMP}, 128
    s_lshl_b32 s{sTMP}, s{sTMP}, 8
    s_bfe_u32 s{sTMP+1}, s{sG}, 0x30002
    s_lshl_b32 s{sTMP+1}, s{sTMP+1}, 5
    s_add_u32 s{sTMP}, s{sTMP}, s{sTMP+1}
    v_lshlrev_b32 v8, 9, v{VG}
    v_lshl_add_u32 v8, v{VJ}, 1, v8
    v_add_u32 v8, s{sTMP}, v8
    v_add_u32 v9, {32*256}, v8
    v_add_u32 v10, {16*256}, v8
    v_add_u32 v11, {48*256}, v8
    """)
    for s in range(8):
        a(f"global_load_ushort v{24 + s}, v{8 + (s >> 1)}, s[14:15] offset:{(s & 1)*256}")
    a("A_NO15:")
    consts(a)
    a(f"""
    s_cmp_ge_u32 s{sWV}, 11
    s_cbranch_scc1 A_G11
    ; ================= waves 5..10: P = -log2e * x @ W1 for this group's rows (rt = (wv-5)>>1, hf = (wv-5)&1)
    s_and_b32 s{sTMP+1}, s3, 1
    s_lshr_b32 s{sTMP}, s3, 1
    s_lshl_b32 s{sTMP+2}, s{sTMP}, 12
    v_add_u32 v0, s{sTMP+2}, v{VA}
    v_add_u32 v1, s{sTMP+2}, v{VA+1}
    v_add_u32 v2, s{sTMP+2}, v{VA+2}
    v_add_u32 v3, s{sTMP+2}, v{VA+3}
    s_lshl_b32 s{sTMP+1}, s{sTMP+1}, 7
    v_xor_b32 v4, s{sTMP+1}, v{VA+4}
    v_add_u32 v4, {W1S}, v4
    v_xor_b32 v5, 32, v4
    v_xor_b32 v6, 64, v4
    v_xor_b32 v7, 96, v4
    s_add_u32 s{sTMP+2}, s{sTMP+2}, s{sTMP+1}
    s_lshl_b32 s{sTMP+1}, s{sSTART}, 8
    s_add_u32 s{sTMP+2}, s{sTMP+2}, s{sTMP+1}
    v_lshlrev_b32 v{VA+5}, 10, v{VG}
    v_lshl_add_u32 v{VA+5}, v{VJ}, 3, v{VA+5}
    v_add_u32 v{VA+5}, s{sTMP+2}, v{VA+5}
    s_mov_b32 s{sTMP+2}, {NLOG2E:#x}
    s_waitcnt vmcnt(0)
    @stamp 3
    s_barrier
    s_setprio 1
    """)
    def breads(ks):
        b = 8 + 16*(ks & 1)
        a(f"ds_read_b128 v[{40+4*ks}:{43+4*ks}], v{ks} offset:{XS}")
        for i in range(4):
            for h in range(2):
                a(f"ds_read_b64_tr_b16 v[{b+4*i+2*h}:{b+4*i+2*h+1}], v{4+i} offset:{8192*ks + 1024*h}")
    breads(0)
    for ks in range(4):
        if ks < 3:
            breads(ks+1)
            a("s_waitcnt lgkmcnt(9)")
        else:
            a("s_waitcnt lgkmcnt(0)")
        b = 8 + 16*(ks & 1)
        for i in range(4):
            c = "0" if ks == 0 else f"v[{56+4*i}:{59+4*i}]"
            a(f"v_mfma_f32_16x16x32_bf16 v[{56+4*i}:{59+4*i}], v[{40+4*ks}:{43+4*ks}], v[{b+4*i}:{b+4*i+3}], {c}")
    a(f"""
    s_cmp_eq_u32 s{sTMP}, 2
    s_cselect_b32 exec_hi, 0, -1
    s_nop 5
    """)
    for q in range(8):
        a(f"v_pk_mul_f32 v[{56+2*q}:{57+2*q}], v[{56+2*q}:{57+2*q}], s[{sTMP+2}:{sTMP+3}] op_sel_hi:[1,0]")
    for r in range(4):
        a(f"v_cvt_pk_bf16_f32 v{8+2*r}, v{56+r}, v{60+r}\nv_cvt_pk_bf16_f32 v{9+2*r}, v{64+r}, v{68+r}")
        a(f"global_store_dwordx2 v{VA+5}, v[{8+2*r}:{9+2*r}], s[{sWS}:{sWS+1}] offset:{256*r} {PST_F}")
    a(f"""
    s_mov_b64 exec, -1
    s_setprio 0
    s_branch A_JOIN
A_G11:
    s_cmp_eq_u32 s{sWV}, 15
    s_cbranch_scc1 A_G15B
    v_lshlrev_b32 v1, 4, v{TID}
    v_add_u32 v1, {AGG - 704*16}, v1
    v_mov_b64 v[2:3], 0
    v_mov_b64 v[4:5], 0
    """)
    for k in range(10): a(f"ds_write_b128 v1, v[2:5] offset:{4096*k}")
    a(f"""
    s_waitcnt vmcnt(0)
    @stamp 3
    s_barrier
    s_branch A_JOIN
A_G15B:
    @stamp 3
    s_barrier
    v_mov_b32 v8, 0
    s_mov_b32 s{sSPIN}, {SPINMAX}
A_NLOOP:
    global_load_dwordx2 v[10:11], v8, s[18:19] sc1
    s_sub_u32 s{sSPIN}, s{sSPIN}, 1
    s_cbranch_scc1 A_NDONE
    s_waitcnt vmcnt(0)
    v_cmp_eq_u32 vcc, 0, v10
    s_cbranch_vccnz A_NLOOP
A_NDONE:
    s_waitcnt vmcnt(0)
    v_lshlrev_b32 v11, 22, v11
    ds_write_b64 v8, v[10:11] offset:{NON}
    s_mov_b32 s{sTMP}, {NLOG2E:#x}
    """)
    for s in range(8):
        a(f"v_lshlrev_b32 v{16+s}, 16, v{16+s}\nv_mul_f32 v{16+s}, s{sTMP}, v{16+s}")
    for q in range(4):
        a(f"v_cvt_pk_bf16_f32 v{12+q}, v{16+2*q}, v{17+2*q}")
    a(f"""
    v_lshlrev_b32 v8, 4, v{VL}
    ds_write_b128 v8, v[12:15] offset:{W3S}
    s_cmp_ge_u32 s{sG}, 32
    s_cbranch_scc1 A_JOIN
    """)
    for q in range(4):
        a(f"v_lshl_or_b32 v{32+q}, v{25+2*q}, 16, v{24+2*q}")
    a(f"""
    s_lshl_b32 s{sTMP}, s{sG}, 10
    s_add_u32 s{sTMP}, s{sTMP}, {WS_F}
    v_add_u32 v8, s{sTMP}, v8
    global_store_dwordx4 v8, v[32:35], s[{sWS}:{sWS+1}] sc1
A_JOIN:
    v_lshlrev_b32 v0, 4, v{TID}
    s_mul_i32 s{sTMP}, s{sG}, {REC_STRIDE}
    s_add_u32 s{sTMP}, s{sTMP}, {WS_REC}
    v_add_u32 v1, s{sTMP}, v0
    v_add_u32 v0, {STAGE}, v0
    v_mov_b32 v2, 0
    v_lshlrev_b32 v3, 4, v{VL}
    v_lshlrev_b32 v14, 1, v{VG}
    v_xor_b32 v14, v14, v{VJ}
    v_lshlrev_b32 v14, 4, v14
    v_lshl_add_u32 v14, v{VG}, 8, v14
    v_xor_b32 v15, 128, v14
    s_mov_b32 s{sW2+2}, 65536
    s_mov_b32 s{sW2+3}, 0x20000
    s_lshl_b32 s{sTMP}, s{sWV}, 5
    v_xor_b32 v{VA+4}, s{sTMP}, v{VA+4}
    v_add_u32 v{VA+5}, {W2S}, v{VA+4}
    v_add_u32 v{VA+4}, {WTS}, v{VA+4}
    s_waitcnt lgkmcnt(0)
    @stamp 4
    s_barrier
    s_cmp_eq_u32 s{sWV}, 15
    s_cbranch_scc1 A_C2
    ds_read_b128 v[4:7], v0
    s_waitcnt lgkmcnt(0)
    global_store_dwordx4 v1, v[4:7], s[{sWS}:{sWS+1}] sc1
A_C2:
    """)
    w2job(a, sWV)
    a(f"""
    s_barrier
    s_cmp_ge_u32 s{sWV}, 8
    s_cbranch_scc1 A_C3
    """)
    wdma(a, sW2, sW2O, 14)
    a(f"""
A_C3:
    ds_read_b64 v[{SAD}:{SAD+1}], v2 offset:{NON}
    ds_read_b128 v[{W3}:{W3+3}], v3 offset:{W3S}
    s_mov_b32 s{sO}, s16
    s_and_b32 s{sO+1}, s17, 0xffff
    s_lshl_b32 s{sO+2}, s{sEND}, 8
    s_mov_b32 s{sO+3}, 0x20000
    s_mov_b32 s{sP}, s{sWS}
    s_and_b32 s{sP+1}, s{sWS+1}, 0xffff
    s_or_b32 s{sP+1}, s{sP+1}, {256 << 16}
    s_mov_b32 s{sP+2}, {N}
    s_mov_b32 s{sP+3}, 0x20000
    s_add_u32 s{sREC}, s{sWS}, {WS_REC}
    s_addc_u32 s{sREC+1}, s{sWS+1}, 0
    s_and_b32 s{sREC+1}, s{sREC+1}, 0xffff
    s_mov_b32 s{sREC+2}, {NG*REC_STRIDE}
    s_mov_b32 s{sREC+3}, 0x20000
    s_mov_b32 s{sMODE}, 0
    s_mov_b32 s{sONE}, 1.0
    s_mov_b32 s{sONE+1}, 1.0
    s_waitcnt lgkmcnt(0)
    v_readfirstlane_b32 s{sNON}, v{SAD}
    v_readfirstlane_b32 s{sNON+1}, v{SAD+1}
    s_cmp_lt_u32 s{sWV}, 14
    s_cbranch_scc1 A_NOT
    ; waves 14, 15: granules (start | count<<11 | tag<<22, tag) of groups 2t, 2t+1 (t = tid - 896)
    v_lshlrev_b32 v8, 3, v{TID}
    ds_read_b64 v[10:11], v8 offset:{OFFS - 896*8}
    ds_read_b64 v[12:13], v8 offset:{HIST - 896*8}
    s_lshl_b32 s{sTMP}, s{sG}, {3 if TGW else 11}
    s_add_u32 s{sTMP}, s{sTMP}, {WS_T - 896*(4096 if TGW else 16)}
    v_lshl_add_u32 v8, v8, {9 if TGW else 1}, s{sTMP}
    v_mov_b32 v5, s{sNON}
    v_mov_b32 v7, s{sNON}
    s_waitcnt lgkmcnt(0)
    v_lshl_or_b32 v4, v12, 11, v10
    v_lshl_or_b32 v6, v13, 11, v11
    v_or_b32 v4, s{sNON+1}, v4
    v_or_b32 v6, s{sNON+1}, v6
A_NOT:
    s_cmp_lt_u32 s{sWV}, 8
    s_cbranch_scc1 A_WT4
    s_waitcnt vmcnt(0)
A_WT4:
    s_waitcnt vmcnt(4)
    @stamp 5
    s_barrier
    s_cmp_lt_u32 s{sWV}, 14
    s_cbranch_scc1 A_NOPUB
    """)
    for r in range(NREP):
        a(f"global_store_dwordx4 v8, v[4:7], s[{sWS}:{sWS+1}] sc1")
        if r < NREP - 1: a("v_add_u32 v8, 0x80000, v8")
    a(f"""
A_NOPUB:
    s_cmp_ge_u32 s{sWV}, 8
    s_cbranch_scc1 A_W2OK
    s_waitcnt vmcnt(0)
A_W2OK:
    s_barrier
    s_cbranch_scc0 A_Q
    """)
    wdma(a, sW2, sW2O, 14)
    a(f"""
A_Q:
    s_cbranch_scc1 A_NOQU
    """)
    QA = (64, 68, 94)
    for ks in range(4):
        a(f"ds_read_b128 v[{32+4*ks}:{35+4*ks}], v{VA+ks} offset:{XS}")
        for h in range(2):
            a(f"ds_read_b64_tr_b16 v[{16+4*ks+2*h}:{17+4*ks+2*h}], v{VA+5} offset:{8192*ks + 1024*h}")
    for rt in (1, 2):
        for ks in range(4):
            a(f"ds_read_b128 v[{(48 if rt == 1 else 0)+4*ks}:{(48 if rt == 1 else 0)+4*ks+3}], v{VA+ks} offset:{XS + 4096*rt}")
    for rt in range(3):
        a(f"s_waitcnt lgkmcnt({8 - 4*rt})")
        xb = (32, 48, 0)[rt]
        for ks in range(4):
            c = "0" if ks == 0 else f"v[{QA[rt]}:{QA[rt]+3}]"
            a(f"v_mfma_f32_16x16x32_bf16 v[{QA[rt]}:{QA[rt]+3}], v[{xb+4*ks}:{xb+4*ks+3}], v[{16+4*ks}:{19+4*ks}], {c}")
    a(f"""
    s_lshr_b32 s{sTMP}, s{sWV}, 2
    s_lshl_b32 s{sTMP}, s{sTMP}, 7
    s_bfe_u32 s{sTMP+1}, s{sWV}, 0x10001
    s_lshl_b32 s{sTMP+1}, s{sTMP+1}, 8
    s_add_u32 s{sTMP}, s{sTMP}, s{sTMP+1}
    s_and_b32 s{sTMP+1}, s{sWV}, 1
    s_lshl_b32 s{sTMP+1}, s{sTMP+1}, 2
    s_add_u32 s{sTMP}, s{sTMP}, s{sTMP+1}
    v_lshlrev_b32 v8, 11, v{VG}
    v_lshl_add_u32 v8, v{VJ}, 3, v8
    v_add_u32 v8, s{sTMP}, v8
    s_mov_b32 s{sTMP+2}, {NLOG2E:#x}
    """)
    for rt in range(3):
        for q in range(2):
            a(f"v_pk_mul_f32 v[{QA[rt]+2*q}:{QA[rt]+2*q+1}], v[{QA[rt]+2*q}:{QA[rt]+2*q+1}], s[{sTMP+2}:{sTMP+3}] op_sel_hi:[1,0]")
        if rt == 2: a("s_mov_b32 exec_hi, 0")
        for r in range(4):
            a(f"ds_write_b32 v8, v{QA[rt]+r} offset:{QS + rt*8192 + r*512}")
    a(f"""
    s_mov_b64 exec, -1
    """)
    if 'uearly' in OPT: ugemm(a)
    a(f"""
A_NOQU:
    s_lshl_b32 s{sRING}, s{sWV}, 12
    s_add_u32 s{sRING}, s{sRING}, {RING}
    s_add_u32 s{sRING+1}, s{sRING}, 1024
    s_add_u32 s{sRING+2}, s{sRING}, 2048
    s_add_u32 s{sRING+3}, s{sRING}, 3072
    v_add_u32 v{PAD}, s{sRING}, v{L8}
    s_waitcnt vmcnt(0)
    @stamp 13
    {'s_barrier' if 'noqbar' not in OPT else ''}
    v_mov_b32 v16, v{AAD}
    """)
    if PFK:
        a(f"s_mov_b64 exec, {(1 << PFK) - 1:#x}\nglobal_load_dword v18, v17, s[{sWS}:{sWS+1}] sc1\ns_mov_b64 exec, -1")
    a(f"""
    s_mov_b32 s{sR0}, 0
    s_mov_b32 s{sR}, {RMAX}
    s_mov_b32 s{sFIRST}, 1
    v_mov_b64 v[{NANC}:{NANC+1}], 0
    v_mov_b32 v{MAXC}, 0
    s_mov_b32 s{sSPIN}, {SPINMAX}
    v_mov_b32 v19, 0x3fffff
    @stamp 6
    s_mov_b32 s{sEV}, {NREP - 1}
T_LOOP:
    global_load_dwordx2 v[20:21], v16, s[{sWS}:{sWS+1}] sc1
    s_sub_u32 s{sSPIN}, s{sSPIN}, 1
    s_cbranch_scc1 T_DONE
    s_cmp_eq_u32 s{sEV}, 0
    s_cbranch_scc1 T_LAST
    s_sub_u32 s{sEV}, s{sEV}, 1
    v_add_u32 v16, 0x80000, v16
T_LAST:
    s_waitcnt vmcnt(0)
    v_xor_b32 v{TW}, s{sNON+1}, v20
    v_cmp_ne_u32 vcc, s{sNON}, v21
    v_cmp_lt_u32 s[{sTMP}:{sTMP+1}], v19, v{TW}
    s_or_b64 exec, vcc, s[{sTMP}:{sTMP+1}]
    s_cbranch_scc0 T_DONE
    {f"s_sleep {OPT['sleep']}" if "sleep" in OPT else ""}
    s_branch T_LOOP
T_DONE:
    s_mov_b64 exec, -1
    s_waitcnt vmcnt(0)
    @stamp 7
K2_PASS:
    v_and_b32 v9, 0x7ff, v{TW}
    v_bfe_u32 v15, v{TW}, 11, 11
    s_lshl_b32 s{sTMP}, s{sR0}, 2
    v_add_u32 v9, s{sTMP}, v9
    v_mad_u32_u24 v9, v9, 12, v{RAD}
    s_add_u32 s{sTMP+1}, s{sR0}, s{sR}
    s_lshl_b32 s{sTMP+1}, s{sTMP+1}, 2
    v_min_u32 v10, s{sTMP+1}, v15
    v_and_b32 v11, 3, v{TID}
    v_add_u32 v11, s{sTMP}, v11
    v_sub_u32 v10, v10, v11
    """)
    for r in range(RMAX):
        a(f"v_cmp_lt_i32 s[{sEX+2*r}:{sEX+2*r+1}], {4*r}, v10")
    a(f"v_cmp_lt_u32 vcc, s{sTMP+1}, v15")
    for r in range(RMAX):
        a(f"s_mov_b64 exec, s[{sEX+2*r}:{sEX+2*r+1}]")
        if r >= 2: a("s_cbranch_execz K2_LD")
        a(f"buffer_load_dwordx3 v[{32+4*r}:{34+4*r}], v9, s[{sREC}:{sREC+3}], 0 offen offset:{48*r} sc1")
    a(f"""
K2_LD:
    s_mov_b64 exec, -1
    v_mov_b32 v13, 1
    v_lshrrev_b32 v14, 1, v{L8}
    s_cbranch_vccz K2_NOMORE
    v_mov_b32 v9, 0
    ds_write_b32 v9, v13 offset:{FLG}
K2_NOMORE:
    s_cmp_lt_u32 s{sWV}, 8
    s_cselect_b32 s{sTMP}, s{sFIRST}, 0
    s_cmp_eq_u32 s{sTMP}, 0
    s_mov_b32 s{sFIRST}, 0
    s_cbranch_scc1 K2_NOU
    """)
    if 'uearly' not in OPT: ugemm(a)
    a(f"""
K2_NOU:
    s_waitcnt vmcnt(0)
    @stamp 8
    """)
    if PF2:
        a(f"""
        s_and_b32 s{sTMP}, s{sG}, 31
        s_lshl_b32 s{sTMP}, s{sTMP}, 4
        s_add_u32 s{sTMP}, s{sTMP}, s{sWV}
        s_lshr_b32 s{sTMP+1}, s{sG}, 5
        s_lshl_b32 s{sTMP+1}, s{sTMP+1}, 6
        s_add_u32 s{sTMP}, s{sTMP}, s{sTMP+1}
        s_and_b32 s{sTMP}, s{sTMP}, 511
        s_mul_i32 s{sTMP}, s{sTMP}, {39*128}
        v_lshl_add_u32 v12, v{L8}, 4, s{sTMP}
        s_mov_b64 exec, {(1 << PF2) - 1:#x}
        global_load_dword v{VA+5}, v12, s[{sWS}:{sWS+1}] sc1
        """)
    a(f"""
    """)
    for r in range(RMAX):
        a(f"""
        s_mov_b64 exec, s[{sEX+2*r}:{sEX+2*r+1}]
        s_cbranch_execz K2_HD
        v_lshrrev_b32 v{r}, 16, v{34+4*r}
        ds_add_rtn_u32 v{35+4*r}, v{r}, v13 offset:{CNT}
        """)
    NPF = int(OPT.get("pf", 0))
    a("K2_HD:\ns_mov_b64 exec, -1")
    if NPF:
        a(f"""
        s_and_b32 s{sTMP}, s{sG}, 31
        s_mul_i32 s{sTMP}, s{sTMP}, 625
        s_mul_i32 s{sTMP+2}, s{sWV}, 40
        s_add_u32 s{sTMP}, s{sTMP}, s{sTMP+2}
        s_lshl_b32 s{sTMP}, s{sTMP}, 7
        v_lshl_add_u32 v12, v{L8}, 4, s{sTMP}
        v_min_u32 v12, {N*256 - 128}, v12
        """)
    a(f"""
    s_waitcnt lgkmcnt(0)
    s_barrier
    ds_read_b32 v{NCNT}, v14 offset:{CNT}
    """)
    if NPF:
        a(f"s_mov_b32 exec_hi, 0xff\nglobal_load_dword v{VA}, v12, s[{sWS}:{sWS+1}] sc1\ns_mov_b64 exec, -1")
    a(f"""
    s_waitcnt lgkmcnt(0)
    v_add_u32 v10, 7, v{NCNT}
    v_lshrrev_b32 v10, 3, v10
    v_cmp_ne_u32 s[{sNZ}:{sNZ+1}], 0, v{NCNT}
    v_mov_b32 v11, v10
    """)
    dpp_scan(a, 11)
    a(f"""
    v_sub_u32 v12, v11, v10
    v_lshlrev_b32 v15, 3, v12
    v_readlane_b32 s{sTT}, v11, 63
    """)
    for r in range(RMAX):
        a(f"ds_bpermute_b32 v{16+r}, v{r}, v15")
    a(f"""
    v_add_u32 v12, v15, v{NCNT}
    s_cmp_gt_u32 s{sTT}, {CAP//8}
    s_cbranch_scc1 K2_SHRINK
    s_mul_i32 s{sT0}, s{sTT}, s{sWV}
    s_add_u32 s{sTMP}, s{sT0}, s{sTT}
    s_lshr_b32 s{sT0}, s{sT0}, 4
    s_lshr_b32 s{sTMP}, s{sTMP}, 4
    v_cmp_ge_u32 vcc, s{sT0}, v11
    s_sub_u32 s{sLEFT}, s{sTMP}, s{sT0}
    s_or_b32 s{sNZ+1}, s{sNZ+1}, 0xc0000000
    s_waitcnt lgkmcnt(0)
    """)
    for r in range(RMAX):
        a(f"""
        s_mov_b64 exec, s[{sEX+2*r}:{sEX+2*r+1}]
        s_cbranch_execz K2_SD
        v_add_lshl_u32 v10, v{16+r}, v{35+4*r}, 3
        v_add_lshl_u32 v9, v{16+r}, v{35+4*r}, 1
        ds_write_b64 v10, v[{32+4*r}:{33+4*r}] offset:{ES}
        ds_write_b16 v9, v{34+4*r} offset:{SS}
        """)
    a(f"""
K2_SD:
    s_mov_b64 exec, -1
    s_bcnt1_i32_b64 s{sNODE}, vcc
    s_min_u32 s{sNODE}, s{sNODE}, 61
    s_lshr_b64 s[{sNZ}:{sNZ+1}], s[{sNZ}:{sNZ+1}], s{sNODE}
    s_lshl_b64 s[{sNZ}:{sNZ+1}], s[{sNZ}:{sNZ+1}], s{sNODE}
    v_readlane_b32 s{sREM}, v12, s{sNODE}
    v_lshl_add_u32 v{QAD}, s{sNODE}, 9, v{L8}
    v_lshl_add_u32 v{AAD}, s{sNODE}, 10, v{L8}
    v_lshl_add_u32 v{EAD}, s{sT0}, 6, v{E8}
    v_lshl_add_u32 v{SAD}, s{sT0}, 4, v{G2}
    s_lshl_b32 s{sTMP}, s{sT0}, 3
    s_sub_u32 s{sREM}, s{sREM}, s{sTMP}
    s_waitcnt lgkmcnt(0)
    s_barrier
    @stamp 10
    s_cmp_eq_u32 s{sLEFT}, 0
    s_cbranch_scc1 K2_MAINDONE
    s_cmp_lg_u32 s{sMODE}, 0
    s_cbranch_scc1 S_START
    """)
    mainloop(a, False)
    a(f"""
K2_MAINDONE:
    @stamp 11
    s_waitcnt vmcnt(0)
    s_cmp_ge_u32 s{sWV}, 8
    s_cbranch_scc1 K2_NOFA
    s_lshl_b32 s{sTMP}, s{sWV}, 12
    s_add_u32 s{sTMP}, s{sTMP}, {WS_F}
    v_lshl_add_u32 v16, v{L8}, 1, s{sTMP}
    global_load_dwordx4 v[0:3], v16, s[{sWS}:{sWS+1}] sc1
    global_load_dwordx4 v[4:7], v16, s[{sWS}:{sWS+1}] offset:1024 sc1
    global_load_dwordx4 v[8:11], v16, s[{sWS}:{sWS+1}] offset:2048 sc1
    global_load_dwordx4 v[12:15], v16, s[{sWS}:{sWS+1}] offset:3072 sc1
K2_NOFA:
    v_mov_b32 v17, {f2u(2.0**120):#x}
    v_add_f32 v18, v{NANC}, v{NANC+1}
    v_cmp_nle_f32 vcc, v{MAXC}, v17
    v_cmp_u_f32 s[{sTMP}:{sTMP+1}], v18, v18
    v_mov_b32 v19, 0
    v_mov_b32 v20, 1
    s_or_b64 vcc, vcc, s[{sTMP}:{sTMP+1}]
    s_cbranch_scc0 K2_NOOVF
    ds_write_b32 v19, v20 offset:{FLG+4}
K2_NOOVF:
    v_lshrrev_b32 v21, 4, v{TID}
    v_and_b32 v22, 15, v{TID}
    v_lshlrev_b32 v23, 10, v21
    v_lshl_add_u32 v23, v22, 4, v23
    v_xor_b32 v24, v21, v22
    v_and_b32 v24, 15, v24
    v_lshlrev_b32 v24, 4, v24
    v_lshl_add_u32 v24, v21, 8, v24
    s_waitcnt lgkmcnt(0)
    s_barrier
    @stamp 12
    ds_read_b64 v[26:27], v19 offset:{FLG}
    s_cmp_ge_u32 s{sWV}, 10
    s_cbranch_scc1 K2_NOCV
    ds_read_b128 v[36:39], v23 offset:{AGG}
    ds_read_b128 v[40:43], v23 offset:{AGG+256}
    ds_read_b128 v[44:47], v23 offset:{AGG+512}
    ds_read_b128 v[48:51], v23 offset:{AGG+768}
    """)
    for q in range(4):
        a(f"s_waitcnt lgkmcnt({3-q})\nv_cvt_f32_f64 v{28+2*q}, v[{36+4*q}:{37+4*q}]\nv_cvt_f32_f64 v{29+2*q}, v[{38+4*q}:{39+4*q}]")
    for q in range(4):
        a(f"v_cvt_pk_bf16_f32 v{28+q}, v{28+2*q}, v{29+2*q}")
    a(f"""
    ds_write_b128 v24, v[28:31] offset:{ES}
K2_NOCV:
    s_waitcnt lgkmcnt(0)
    v_readfirstlane_b32 s{sTMP}, v26
    v_readfirstlane_b32 s{sTMP+1}, v27
    s_cmp_lg_u32 s{sTMP+1}, 0
    s_cbranch_scc1 K2_GOSAFE
K2_NOSAFE:
    s_cmp_lg_u32 s{sTMP}, 0
    s_cbranch_scc1 K2_NEXTPASS
    s_barrier
    s_cmp_ge_u32 s{sWV}, 10
    s_cbranch_scc1 K2_END2
    s_cmp_ge_u32 s{sWV}, 8
    s_cbranch_scc1 K2_OUT
    v_xor_b32 v64, v{VG}, v{VJ}
    v_lshlrev_b32 v64, 4, v64
    v_lshl_add_u32 v64, v{VJ}, 8, v64
    v_xor_b32 v65, 64, v64
    v_xor_b32 v66, 128, v64
    v_xor_b32 v67, 192, v64
    """)
    for rt in range(3):
        for ks in range(4):
            a(f"ds_read_b128 v[{16+16*rt+4*ks}:{19+16*rt+4*ks}], v{64+ks} offset:{ES + rt*4096}")
    a(f"""
    ; staging address: row*256 + ((2*ct + (g>>1)) ^ j)*16 + (g&1)*8, row = 16*rt + j
    s_lshl_b32 s{sTMP}, s{sWV}, 1
    v_lshrrev_b32 v68, 1, v{VG}
    v_or_b32 v68, s{sTMP}, v68
    v_xor_b32 v68, v68, v{VJ}
    v_and_b32 v69, 1, v{VG}
    v_lshl_or_b32 v68, v68, 1, v69
    v_lshlrev_b32 v68, 3, v68
    v_lshl_add_u32 v68, v{VJ}, 8, v68
    s_mov_b32 s{sTMP+2}, {f2u(-LOG2E/(1+float(OPT.get("eps", 0)))):#x}
    s_waitcnt vmcnt(0)
    """)
    for rt in range(3):
        for ks in range(4):
            a(f"s_waitcnt lgkmcnt({11 - 4*rt - ks})")
            a(f"v_mfma_f32_16x16x32_bf16 v[{UA+4*rt}:{UA+4*rt+3}], v[{4*ks}:{4*ks+3}], v[{16+16*rt+4*ks}:{19+16*rt+4*ks}], v[{UA+4*rt}:{UA+4*rt+3}]")
    a("s_nop 1")
    for rt in range(3):
        u = UA + 4*rt
        a(f"""
        v_exp_f32 v16, v{u}
        v_exp_f32 v17, v{u+1}
        v_exp_f32 v18, v{u+2}
        v_exp_f32 v19, v{u+3}
        v_pk_fma_f32 v[16:17], v[16:17], s[{sTMP+2}:{sTMP+3}], s[{sTMP+2}:{sTMP+3}] op_sel_hi:[1,0,0]
        v_pk_fma_f32 v[18:19], v[18:19], s[{sTMP+2}:{sTMP+3}], s[{sTMP+2}:{sTMP+3}] op_sel_hi:[1,0,0]
        v_rcp_f32 v16, v16
        v_rcp_f32 v17, v17
        v_rcp_f32 v18, v18
        v_rcp_f32 v19, v19
        v_pk_mul_f32 v[16:17], v[16:17], v[{u}:{u+1}]
        v_pk_mul_f32 v[18:19], v[18:19], v[{u+2}:{u+3}]
        v_cvt_pk_bf16_f32 v{20+2*rt}, v16, v17
        v_cvt_pk_bf16_f32 v{21+2*rt}, v18, v19
        ds_write_b64 v68, v[{20+2*rt}:{21+2*rt}] offset:{QS + rt*4096}
        """)
    a(f"""
K2_OUT:
    v_lshrrev_b32 v28, 4, v{TID}
    v_xor_b32 v29, v28, v{VJ}
    v_and_b32 v29, 15, v29
    v_lshlrev_b32 v29, 4, v29
    v_lshl_add_u32 v29, v28, 8, v29
    s_lshl_b32 s{sTMP}, s{sSTART}, 8
    v_lshl_add_u32 v30, v{TID}, 4, s{sTMP}
    s_waitcnt lgkmcnt(0)
    s_barrier
    ds_read_b128 v[32:35], v29 offset:{QS}
    s_waitcnt lgkmcnt(0)
    buffer_store_dwordx4 v[32:35], v30, s[{sO}:{sO+3}], 0 offen
K2_END2:
    @store {sWS} {TID} {WS_DIAG}
K_END:
    s_endpgm
K2_SHRINK:
    s_mov_b32 s{sR}, 1
    s_waitcnt lgkmcnt(0)
K2_REINIT:
    s_barrier
    v_lshrrev_b32 v9, 1, v{L8}
    v_mov_b32 v10, 0
    ds_write_b32 v9, v10 offset:{CNT}
    ds_write_b32 v10, v10 offset:{FLG}
    ds_write_b32 v10, v10 offset:{FLG+4}
    v_lshlrev_b32 v9, 2, v{TID}
    v_mov_b32 v10, -1
    ds_write_b32 v9, v10 offset:{SS}
    s_waitcnt lgkmcnt(0)
    s_barrier
    s_branch K2_PASS
K2_NEXTPASS:
    s_add_u32 s{sR0}, s{sR0}, s{sR}
    s_waitcnt vmcnt(0)
    s_branch K2_REINIT
K2_GOSAFE:
    s_cmp_lg_u32 s{sMODE}, 0
    s_cbranch_scc1 K2_NOSAFE
    s_mov_b32 s{sMODE}, 1
    s_waitcnt vmcnt(0)
    s_barrier
    s_mov_b32 s{sR0}, 0
    s_mov_b32 s{sR}, {RMAX}
    v_lshlrev_b32 v9, 4, v{TID}
    v_mov_b64 v[32:33], 0
    v_mov_b64 v[34:35], 0
    ds_write_b128 v9, v[32:35] offset:{AGG}
    ds_write_b128 v9, v[32:35] offset:{AGG+16384}
    v_add_u32 v9, 24576, v9
    ds_write_b128 v9, v[32:35] offset:{AGG}
    s_branch K2_REINIT
    """)
    mainloop(a, True)
    return a.text()

HEADER = """; Kernarg layout for this problem (72 bytes, ptrs only, base s[0:1]):
;          tagged granules).  Phase B: collect the group's edges, sort them by node, evaluate the messages
"""
def desc(name, vgpr, sgpr):
    return f""".p2align 6
.amdhsa_kernel {name}
  .amdhsa_next_free_vgpr {vgpr}
  .amdhsa_next_free_sgpr {sgpr}
  .amdhsa_accum_offset {(vgpr+3)//4*4}
  .amdhsa_group_segment_fixed_size 0
  .amdhsa_kernarg_size 72
  .amdhsa_user_sgpr_count 2
  .amdhsa_user_sgpr_kernarg_segment_ptr 1
  .amdhsa_system_sgpr_workgroup_id_x 1
.end_amdhsa_kernel
"""
def main():
    s = HEADER
    s += f"; @launch grid=({NG},1,1) block=(1024,1,1) lds={LDS_BYTES}\n"
    s += '.amdgcn_target "amdgcn-amd-amdhsa--gfx950"\n.text\n'
    s += f".globl {KN}\n.p2align 8\n.type {KN},@function\n" + kernel()
    s += '.section .rodata,"a"\n' + desc(KN, NVGPR, 96 if (DIAG or AMP) else 64)
    open(sys.argv[1], "w").write(s)
main()
```

```python
import sys, struct

N = 10000; E = 320000
NG = 256
EPW = 1280
NPROD = E // EPW
REC_STRIDE = EPW * 12
WS_REC = 0x280000
WS_T = 0x640000
WS_F = 0x6C0000
WS_DIAG = 0xB00000
LOG2E = 1.4426950408889634
def f2u(x): return struct.unpack("<I", struct.pack("<f", x))[0]
NLOG2E = f2u(-LOG2E)
OPT = dict(a.split("=") if "=" in a else (a, "1") for a in sys.argv[2:])
DIAG = "diag" in OPT
AMP = int(OPT.get("amp", 0))
PF1 = int(OPT.get("pf1", 4)); PF2 = int(OPT.get("pf2", 12))
W2E = "w2late" not in OPT
KN = "gather_scatter__mpnn_edge_mlp__graph_kernel"
SPINMAX = 400000
RMAX = 5
CAP = 2048

CNT = 0; FLG = 256; NON = 272
TF = 512
SS = 1024
XS = SS + CAP*2 + 256
QS = XS + 40*256
ES = QS + 40*512
AGG = ES + CAP*8
RING = AGG + 40*1024
LDS_BYTES = RING + 65536
W1S = RING; W2S = RING + 32768; WTS = RING
STAGE = QS; HIST = ES; OFFS = ES + 1024; W3S = ES + 2048
AB = ES; OUTS = QS
D0, D1, QR, VU, BP, AE, ID, W3 = 0, 16, 32, 48, 64, 72, 76, 84
VA, NUM, DEN, NANC, MAXC = 88, 90, 92, 94, 96
EAD, SAD, PAD, IX0, IX1, QAD, AAD, L8, NCNT, TID, TW, RAD, E8 = 97, 98, 99, 100, 102, 104, 105, 106, 107, 108, 109, 110, 111
G2 = 81; LQ = 82
XA, WA = 88, 92
VG, VJ, VL = 126, 127, 97
UA = (112, 116, 120)
NVGPR = 128
sREC = 4; sR0 = 8; sMODE = 9; sLEFT = 10; sCNT = 11
sK1 = 12; sK2 = 13; sNL = 14; sNC = 15; sNQ = 16; sR = 17; sNZ2 = 18
sWS = 20; sWV = 22; sSTART = 23; sX = 24; sP = 24; sO = 28
sNZ = 32; sM0 = 34; sM1 = 36; sONE = 38; sRING = 40; sRHO = 42; sW = 40
sTMP = 44; sEV = 48; sG = 49; sEX = 50; sCM = 52
sNON = 60; sEND = 62; sSPIN = 63; sP2 = 64; sANY = 68; sT0 = 70; sVT = 71
NSGPR = 72
sST = 72

class Asm:
    def __init__(self): self.l = []
    def __call__(self, s):
        for ln in s.strip("\n").split("\n"):
            ln = ln.strip()
            if ln.startswith("@estamp"):
                if "epi" not in OPT: continue
                ln = ln.replace("@estamp", "@stamp")
            elif ln.startswith("@stamp") and "epi" in OPT and int(ln.split()[1]) in range(2, 10): continue
            if ln.startswith("@stamp") and AMP:
                i = int(ln.split()[1])
                if i in (1, AMP): self(f"s_memrealtime s[{72+2*(i != 1)}:{73+2*(i != 1)}]\ns_waitcnt lgkmcnt(0)")
                continue
            if ln.startswith("@store") and AMP:
                self("""s_waitcnt vmcnt(0)
                @stamp 12
                s_cmp_lg_u32 s2, 0
                s_cbranch_scc1 AMP_DONE
                s_sub_u32 s74, s74, s72
                s_lshl_b32 s74, s74, 2
                s_memrealtime s[76:77]
                s_waitcnt lgkmcnt(0)
AMP_LOOP:
                s_memrealtime s[78:79]
                s_waitcnt lgkmcnt(0)
                s_sub_u32 s78, s78, s76
                s_cmp_lt_u32 s78, s74
                s_cbranch_scc1 AMP_LOOP
AMP_DONE:""")
                continue
            if ln.startswith("@stamp"):
                i = int(ln.split()[1])
                if DIAG and ("st" not in OPT or i in (0, 13) or str(i) in OPT["st"].split(",")): self(f"{'s_memrealtime' if OPT['diag'] == 'rt' or i in (0, 13) else 's_memtime'} s[{sST+2*i}:{sST+2*i+1}]\ns_waitcnt lgkmcnt(0)")
                continue
            if ln.startswith("@store"):
                if DIAG:
                    self(f"s_waitcnt vmcnt(0)\n@stamp 12\n@stamp 13\ns_mov_b64 exec, -1\nv_lshrrev_b32 v1, 6, v{TID}\ns_lshl_b32 s3, s2, 4\nv_add_u32 v1, s3, v1\nv_lshlrev_b32 v1, 6, v1\nv_add_u32 v1, {WS_DIAG}, v1")
                    for i in range(14): self(f"v_mov_b32 v2, s{sST+2*i}\nglobal_store_dword v1, v2, s[{sWS}:{sWS+1}] offset:{4*i}")
                continue
            if ln: self.l.append(ln if ln.endswith(":") else "    " + ln)
    def text(self): return "\n".join(self.l) + "\n"

def dpp_scan(a, v, fill=()):
    fill = list(fill)
    def pad():
        k = 0
        while k < 2 and fill: a(fill.pop(0)); k += 1
        if k < 2: a(f"s_nop {1-k}")
    for sh in (1, 2, 4, 8):
        pad(); a(f"v_add_u32_dpp v{v}, v{v}, v{v} row_shr:{sh} row_mask:0xf bank_mask:0xf bound_ctrl:0")
    pad(); a(f"v_add_u32_dpp v{v}, v{v}, v{v} row_bcast:15 row_mask:0xa bank_mask:0xf")
    pad(); a(f"v_add_u32_dpp v{v}, v{v}, v{v} row_bcast:31 row_mask:0xc bank_mask:0xf")
    for x in fill: a(x)

def mainloop(a, safe):
    L = "S" if safe else "F"
    def ex(d, k): a(f"v_exp_f32 v{VU+k}, v{d+k}")
    def pk(d, e):
        t = d + 2*e; u = VU + 2*e
        if not safe:
            a(f"""
            v_pk_fma_f32 v[{VA}:{VA+1}], v[{t}:{t+1}], v[{DEN}:{DEN+1}], v[{NUM}:{NUM+1}]
            v_pk_fma_f32 v[{DEN}:{DEN+1}], v[{DEN}:{DEN+1}], v[{u}:{u+1}], v[{DEN}:{DEN+1}]
            v_pk_fma_f32 v[{NUM}:{NUM+1}], v[{NUM}:{NUM+1}], v[{u}:{u+1}], v[{VA}:{VA+1}]
            """)
        else:
            a(f"""
            v_pk_add_f32 v[{u}:{u+1}], v[{u}:{u+1}], 1.0 op_sel_hi:[1,0]
            v_rcp_f32 v{u}, v{u}
            v_rcp_f32 v{u+1}, v{u+1}
            s_nop 0
            v_pk_fma_f32 v[{NUM}:{NUM+1}], v[{t}:{t+1}], v[{u}:{u+1}], v[{NUM}:{NUM+1}]
            """)
    def flush():
        if not safe:
            a(f"""
            v_rcp_f32 v{VU}, v{DEN}
            v_rcp_f32 v{VU+1}, v{DEN+1}
            v_max3_f32 v{MAXC}, v{MAXC}, v{DEN}, v{DEN+1}
            v_pk_mul_f32 v[{VA}:{VA+1}], v[{NUM}:{NUM+1}], v[{VU}:{VU+1}]
            v_mov_b64 v[{DEN}:{DEN+1}], s[{sONE}:{sONE+1}]
            v_mov_b64 v[{NUM}:{NUM+1}], 0
            v_cvt_f64_f32 v[{VU}:{VU+1}], v{VA}
            v_cvt_f64_f32 v[{VU+2}:{VU+3}], v{VA+1}
            v_pk_fma_f32 v[{NANC}:{NANC+1}], v[{VA}:{VA+1}], 0, v[{NANC}:{NANC+1}] op_sel_hi:[1,0,1]
            """)
        else:
            a(f"""
            v_cvt_f64_f32 v[{VU}:{VU+1}], v{NUM}
            v_cvt_f64_f32 v[{VU+2}:{VU+3}], v{NUM+1}
            v_mov_b64 v[{NUM}:{NUM+1}], 0
            """)
        a(f"ds_add_f64 v{AAD}, v[{VU}:{VU+1}] offset:{AGG}\nds_add_f64 v{AAD}, v[{VU+2}:{VU+3}] offset:{AGG+512}")
    def preads(slot):
        if "p2" in OPT:
            for q in range(2):
                a(f"ds_read2st64_b64 v[{BP+4*q}:{BP+4*q+3}], v{PAD} offset0:{slot*4 + 2*q} offset1:{slot*4 + 2*q + 1}")
            return
        for q in range(4):
            a(f"ds_read_b64 v[{BP+2*q}:{BP+2*q+1}], v{PAD} offset:{slot*2048 + q*512}")
    def ereads(v, off):
        a(f"""
        s_mov_b64 exec, s[{sM0}:{sM0+1}]
        ds_read_b64 v[{AE}:{AE+1}], v{v} offset:{ES+off}
        s_mov_b64 exec, s[{sM1}:{sM1+1}]
        ds_read_b64 v[{AE+2}:{AE+3}], v{v} offset:{ES+off}
        s_mov_b64 exec, -1
        """)
    def idxreads(v, off):
        a(f"ds_read_u16 v{IX0}, v{v} offset:{SS+off}\nds_read_u16 v{IX1}, v{v} offset:{SS+off+8}")
    def qreads(node):
        if "q2" in OPT:
            a(f"v_lshl_add_u32 v{QAD}, s{node}, 9, v{LQ}")
            for q in range(4):
                a(f"ds_read2_b64 v[{QR+4*q}:{QR+4*q+3}], v{QAD} offset0:0 offset1:0")
            return
        a(f"v_lshl_add_u32 v{QAD}, s{node}, 9, v{L8}")
        for q in range(8):
            a(f"ds_read_b64 v[{QR+2*q}:{QR+2*q+1}], v{QAD} offset:{QS}")
    def mfma(d, k):
        if k == 0: a(f"v_mfma_f32_32x32x16_bf16 v[{d}:{d+15}], v[{AE}:{AE+3}], v[{W3}:{W3+3}], v[{QR}:{QR+15}]")
        else: a(f"v_smfmac_f32_32x32x32_bf16 v[{d}:{d+15}], v[{ID}:{ID+3}], v[{BP}:{BP+7}], v{ID+4}")
    def dma(slot, f1="s_nop 0"):
        if "x_nodma" in OPT: a(f1); return
        a(f"""
        s_mov_b32 m0, s{sRING+slot}
        {f1}
        buffer_load_dwordx4 v[{IX0}:{IX0+1}], s[{sP}:{sP+3}], 0 idxen offen sc1 lds
        buffer_load_dwordx4 v[{IX1}:{IX1+1}], s[{sP2}:{sP2+3}], 0 idxen offen offset:1024 sc1 lds
        """)
    def qnext():
        a(f"s_bitset0_b64 s[{sNZ}:{sNZ+1}], s{sNQ}\ns_ff1_i32_b64 s{sNQ}, s[{sNZ}:{sNZ+1}]")
        qreads(sNQ)
    def tree(name, labels):
        a(f"""
{name}:
        s_cmp_gt_u32 s{sCNT}, 3
        s_cbranch_scc1 {name}_H
        s_cmp_eq_u32 s{sCNT}, 2
        s_cbranch_scc1 {labels[2]}
        s_cmp_eq_u32 s{sCNT}, 3
        s_cbranch_scc1 {labels[3]}
        s_branch {labels[1]}
{name}_H:
        s_cmp_gt_u32 s{sCNT}, 5
        s_cbranch_scc1 {name}_HH
        s_cmp_eq_u32 s{sCNT}, 4
        s_cbranch_scc1 {labels[4]}
        s_branch {labels[5]}
{name}_HH:
        s_cmp_eq_u32 s{sCNT}, 6
        s_cbranch_scc1 {labels[6]}
        s_branch {labels[7]}
        """)
    EV = int(OPT.get("ev", 5))
    a(f"{L}_START:")
    idxreads(SAD, 0)
    a(f"""
    ds_read_u8 v10, v9 offset:{TF}
    v_mov_b64 v[{DEN}:{DEN+1}], s[{sONE}:{sONE+1}]
    v_mov_b64 v[{NUM}:{NUM+1}], 0
    s_waitcnt lgkmcnt(1)
    """)
    dma(0)
    idxreads(SAD, 16)
    qreads(sNQ)
    a(f"""
    s_waitcnt lgkmcnt({4 if "q2" in OPT else 8})
    v_cmp_ne_u32 vcc, 0, v10
    """)
    dma(1)
    idxreads(SAD, 32)
    ereads(EAD, 0)
    a(f"""
    ; sK1: one bit per tile from the top (ends a node, or one of the last tiles), then a marker; sK2: tile + 2 starts a node;
    s_brev_b32 s{sK1}, vcc_lo
    s_lshl_b32 s{sK2}, s{sK1}, 1
    s_sub_u32 s{sTMP}, 32, s{sLEFT}
    s_lshr_b32 s{sNL}, s{sK1}, s{sTMP}
    s_lshl_b32 s{sK1}, s{sNL}, s{sTMP}
    s_sub_u32 s{sTMP}, s{sTMP}, 1
    s_lshl_b32 s{sTMP}, {((7 | (1 << EV)) << 1) | 1}, s{sTMP}
    s_or_b32 s{sK1}, s{sK1}, s{sTMP}
    s_waitcnt vmcnt(2)
    """)
    preads(0)
    a("s_waitcnt lgkmcnt(0)\n@stamp 9")
    dma(0)
    for k in range(2): mfma(D0, k)
    ereads(EAD, 64)
    idxreads(SAD, 48)
    a(f"s_bitcmp0_b32 vcc_lo, 0\ns_cbranch_scc1 {L}_S4")
    qnext()
    a(f"{L}_S4:\ns_waitcnt vmcnt(2)")
    preads(1)
    a(f"s_branch {L}_L0B")
    K2 = f"s_add_u32 s{sK2}, s{sK2}, s{sK2}"
    def xphase(b, lab):
        dc, dn = (D0, D1) if b == 0 else (D1, D0)
        mfma(dn, 0)
        for e in range(7, -1, -1):
            if lab and e < 7: a(f"{L}_X{b}_{e+1}:")
            if e == 2: mfma(dn, 1)
            ex(dc, 2*e+1); ex(dc, 2*e)
    def mid(b, tag):
        a("s_waitcnt vmcnt(2)")
        preads(b)
        if tag == "E": a(K2)
        a(f"s_cbranch_scc1 {L}_ADV{tag}{b}\n{L}_RB{tag}{b}:")
        ereads(EAD, 64*(b+2))
        idxreads(SAD, 16*(b+4))
    def yphase(b, lab):
        dc = D0 if b == 0 else D1
        for e in range(7, -1, -1):
            if lab and e < 7: a(f"{L}_Y{b}_{e+1}:")
            pk(dc, e)
    for b in range(2):
        dc, dn = (D0, D1) if b == 0 else (D1, D0)
        a(f"""
{L}_TAIL{b}:
        s_setprio 2
        s_cmp_ge_u32 s{sLEFT}, 3
        s_cbranch_scc1 {L}_TD{b}
        s_setprio 1
        s_cmp_lg_u32 s{sLEFT}, 0
        s_cbranch_scc1 {L}_T1{b}
        s_setprio 0
{L}_T1{b}:
        s_waitcnt vmcnt(0)
        s_branch {L}_T2{b}
{L}_TD{b}:
        """)
        dma(1-b)
        a(f"""
{L}_T2{b}:
        s_bitcmp1_b32 s{sNL}, s{sLEFT}
        s_cbranch_scc1 {L}_ENDN{b}
        s_mov_b32 s{sCNT}, 8
        s_cmp_eq_u32 s{sLEFT}, 0
        s_cbranch_scc1 {L}_X{b}_8
        {K2}
        s_branch {L}_XB{b}
        """)
        for tag in "PE":
            a(f"{L}_ADV{tag}{b}:")
            qnext()
            a(f"s_branch {L}_RB{tag}{b}")
        tree(f"{L}_XD{b}", {c: f"{L}_XS{b}_{c}" for c in range(1, 8)})
        for c in range(1, 8):
            a(f"{L}_XS{b}_{c}:")
            mfma(dn, 0)
            if c <= 2: mfma(dn, 1)
            a(f"s_branch {L}_X{b}_{c}")
        tree(f"{L}_YD{b}", {c: f"{L}_Y{b}_{c}" for c in range(1, 8)})
        a(f"""
{L}_SP{b}:
        s_ff1_i32_b32 s{sLEFT}, s{sK1}
        s_sub_u32 s{sLEFT}, 31, s{sLEFT}
        s_cmp_le_u32 s{sLEFT}, {EV}
        s_cbranch_scc1 {L}_TAIL{b}
        """)
        dma(1-b)
        a(f"""
{L}_ENDN{b}:
        v_readlane_b32 s{sCNT}, v{NCNT}, s{sNC}
        s_bitset0_b64 s[{sNZ2}:{sNZ2+1}], s{sNC}
        s_ff1_i32_b64 s{sNC}, s[{sNZ2}:{sNZ2+1}]
        s_cmp_lt_u32 s{sCNT}, 8
        s_cbranch_scc1 {L}_XD{b}
{L}_X{b}_8:
        """)
        xphase(b, True)
        mid(b, "E")
        a(f"s_cmp_lt_u32 s{sCNT}, 8\ns_cbranch_scc1 {L}_YD{b}")
        yphase(b, True)
        flush()
        a(f"""
        s_cmp_eq_u32 s{sLEFT}, 0
        s_cbranch_scc1 K_MAINDONE
        v_lshl_add_u32 v{AAD}, s{sNC}, 10, v{L8}
        s_branch {L}_L{1-b}
        """)
    for b in range(2):
        a(f"{L}_L{b}:")
        if b == 0:
            a(f"v_add_u32 v{EAD}, 128, v{EAD}\nv_add_u32 v{SAD}, 32, v{SAD}\n{L}_L0B:")
        a(f"""
        s_add_u32 s{sK1}, s{sK1}, s{sK1}
        s_waitcnt lgkmcnt(0)
        s_cbranch_scc1 {L}_SP{b}
        """)
        dma(1-b, K2)
        a(f"{L}_XB{b}:")
        xphase(b, False)
        mid(b, "P")
        yphase(b, False)
        if b == 1: a(f"s_branch {L}_L0")

def consts(a):
    a(f"""
    ; m = l&31, hk = l>>5, e = 2*(m>>3) + ((m>>1)&1), H = (m>>2)&1, c0 = m&1
    v_lshlrev_b32 v{L8}, 3, v{VL}
    v_add_u32 v{LQ}, {QS}, v{L8}
    v_lshlrev_b32 v{IX0+1}, 4, v{VJ}
    v_lshlrev_b32 v{IX1+1}, 4, v{VJ}
    v_lshlrev_b32 v{G2}, 1, v{VG}
    v_lshrrev_b32 v1, 5, v{VL}
    v_bfe_u32 v2, v{VL}, 2, 1
    v_and_b32 v3, 1, v{VL}
    v_bfe_u32 v4, v{VL}, 1, 1
    v_bfe_u32 v5, v{VL}, 3, 2
    v_lshl_add_u32 v5, v5, 1, v4
    v_mov_b64 v[{AE}:{AE+1}], 0
    v_mov_b64 v[{AE+2}:{AE+3}], 0
    v_xor_b32 v{ID}, v1, v2
    v_lshl_add_u32 v{ID}, v{ID}, 1, v3
    v_cmp_eq_u32 s[{sM0}:{sM0+1}], 0, v{ID}
    v_cmp_eq_u32 s[{sM1}:{sM1+1}], 1, v{ID}
    v_lshlrev_b32 v{E8}, 3, v5
    ; sparse selector: lane half e>>2, register q = 2*(e&1) + ((e>>1)&1) holds 1.0, index (2*H + c0) << 4*q
    v_lshrrev_b32 v{ID+1}, 2, v5
    v_cmp_eq_u32 vcc, v1, v{ID+1}
    v_bfe_u32 v5, v5, 1, 1
    v_lshl_add_u32 v5, v4, 1, v5
    v_lshl_add_u32 v2, v2, 1, v3
    v_cndmask_b32 v3, 0, v{W3}, vcc
    v_lshlrev_b32 v4, 2, v5
    v_lshlrev_b32 v{ID+4}, v4, v2
    """)
    for q in range(4): a(f"v_cmp_eq_u32 s[{sCM + 2*q}:{sCM + 2*q + 1}], {q}, v5")
    a(f"v_lshrrev_b32 v1, 2, v{TID}\nv_and_b32 v2, 3, v{TID}")
    for q in range(4): a(f"v_cndmask_b32 v{ID+q}, 0, v3, s[{sCM + 2*q}:{sCM + 2*q + 1}]")
    a(f"""
    s_movk_i32 s3, {REC_STRIDE}
    v_mul_u32_u24 v3, s3, v1
    v_mad_u32_u24 v{RAD}, v2, 12, v3
    s_lshl_b32 s3, s{sG}, 3
    s_add_u32 s3, s3, {WS_T}
    v_lshl_add_u32 v{AAD}, v1, 11, s3
    v_xor_b32 v1, v{VG}, v{VJ}
    v_lshlrev_b32 v1, 4, v1
    v_lshl_add_u32 v{XA}, v{VJ}, 8, v1
    v_xor_b32 v{XA+1}, 64, v{XA}
    v_xor_b32 v{XA+2}, 128, v{XA}
    v_xor_b32 v{XA+3}, 192, v{XA}
    v_bfe_u32 v1, v{VL}, 2, 2
    v_and_b32 v2, 1, v{VG}
    v_lshl_or_b32 v2, v2, 2, v1
    v_bfe_u32 v3, v{VL}, 1, 1
    v_lshl_or_b32 v2, v2, 1, v3
    v_and_b32 v3, 1, v{VL}
    v_lshl_or_b32 v2, v2, 1, v3
    v_lshl_add_u32 v1, v{VG}, 3, v1
    v_lshlrev_b32 v1, 8, v1
    v_lshl_add_u32 v{WA}, v2, 3, v1
    """)
def wlane(a, v):
    a(f"""
    v_lshlrev_b32 v{v}, 1, v{VG}
    v_xor_b32 v{v}, v{v}, v{VJ}
    v_lshlrev_b32 v{v}, 4, v{v}
    v_lshl_add_u32 v{v}, v{VG}, 8, v{v}
    v_xor_b32 v{v+1}, 128, v{v}
    """)
def wdma(a, soff, v):
    a(f"""
    buffer_load_dwordx4 v{v}, s[{sW}:{sW+3}], s{soff} offen lds
    buffer_load_dwordx4 v{v}, s[{sW}:{sW+3}], s{soff} offen offset:1024 lds
    buffer_load_dwordx4 v{v+1}, s[{sW}:{sW+3}], s{soff} offen offset:2048 lds
    buffer_load_dwordx4 v{v+1}, s[{sW}:{sW+3}], s{soff} offen offset:3072 lds
    """)
def mm16(a, d, x, w, swap=False, first=True):
    for ks in range(4):
        c = "0" if (ks == 0 and first) else f"v[{d}:{d+3}]"
        xa = f"v[{x+4*ks}:{x+4*ks+3}]"; wa = f"v[{w+4*ks}:{w+4*ks+3}]"
        a(f"v_mfma_f32_16x16x32_bf16 v[{d}:{d+3}], {wa if swap else xa}, {xa if swap else wa}, {c}")
def xreads(a, dst, off):
    for ks in range(4): a(f"ds_read_b128 v[{dst+4*ks}:{dst+4*ks+3}], v{XA+ks} offset:{off}")

def kernel():
    a = Asm()
    a(f"""
{KN}:
    s_cmp_ge_u32 s2, {NG}
    s_cbranch_scc1 K_END
    @stamp 0
    @stamp 1
    s_load_dwordx16 s[4:19], s[0:1], 0
    s_load_dwordx2 s[{sWS}:{sWS+1}], s[0:1], 64
    v_mov_b32 v{TID}, v0
    v_lshrrev_b32 v1, 6, v0
    v_and_b32 v{VL}, 63, v0
    v_readfirstlane_b32 s{sWV}, v1
    s_and_b32 s{sG}, s2, 7
    s_lshl_b32 s{sG}, s{sG}, 5
    s_lshr_b32 s3, s2, 3
    s_or_b32 s{sG}, s{sG}, s3
    v_lshrrev_b32 v{VG}, 4, v{VL}
    v_and_b32 v{VJ}, 15, v{VL}
    s_mul_i32 s3, s{sG}, 625
    s_add_u32 s{sSTART}, s3, 15
    s_lshr_b32 s{sSTART}, s{sSTART}, 4
    s_add_u32 s{sEND}, s3, {625+15}
    s_lshr_b32 s{sEND}, s{sEND}, 4
    v_mov_b32 v{W3}, 0x3f80
    s_mov_b32 s{sW+2}, 65536
    s_mov_b32 s{sW+3}, 0x20000
    s_cmp_ge_u32 s{sWV}, 5
    s_cbranch_scc1 A_N1
    ; ================= waves 0..4: bin the edges [1280*g, 1280*g+1280) by destination group (4 edges per thread)
    s_cmp_lt_u32 s{sG}, {NPROD}
    s_cselect_b32 s3, s{sG}, 0
    s_cselect_b64 s[{sEX}:{sEX+1}], -1, 0
    s_mul_i32 s3, s3, {EPW*4}
    v_lshl_add_u32 v8, v0, 4, s3
    v_lshlrev_b32 v9, 1, v8
    s_lshl_b32 s{sTMP}, s{sWV}, 3
    v_add_u32 v1, s{sTMP}, v{VG}
    v_xor_b32 v2, v1, v{VJ}
    v_and_b32 v2, 15, v2
    v_lshlrev_b32 v2, 4, v2
    v_lshl_add_u32 v2, v1, 8, v2
    v_xor_b32 v3, 64, v2
    s_lshl_b32 s{sTMP}, s{sWV}, 11
    s_add_u32 m0, s{sTMP}, {XS}
    s_lshl_b32 s{sTMP+2}, s{sSTART}, 8
    s_mov_b32 s{sX+2}, {N*256}
    s_mov_b32 s{sX+3}, 0x20000
    s_waitcnt lgkmcnt(0)
    global_load_dwordx4 v[12:15], v8, s[10:11]
    s_mov_b32 s{sX}, s4
    s_and_b32 s{sX+1}, s5, 0xffff
    buffer_load_dwordx4 v2, s[{sX}:{sX+3}], s{sTMP+2} offen lds
    buffer_load_dwordx4 v3, s[{sX}:{sX+3}], s{sTMP+2} offen offset:1024 lds
    s_barrier
    """)
    consts(a)
    a(f"""
    s_movk_i32 s{sTMP}, 625
    s_mov_b32 s{sTMP+1}, 214749
    v_mov_b32 v1, 1
    v_lshlrev_b32 v10, 4, v{VL}
    s_waitcnt vmcnt(2)
    global_load_dwordx4 v[16:19], v8, s[8:9]
    global_load_dwordx4 v[20:23], v9, s[6:7]
    global_load_dwordx4 v[24:27], v9, s[6:7] offset:16
    s_mov_b64 exec, s[{sEX}:{sEX+1}]
    """)
    for i in range(4):
        a(f"v_mul_u32_u24 v{28+i}, s{sTMP+1}, v{12+i}")
    for i in range(4):
        a(f"v_lshrrev_b32 v{28+i}, 23, v{28+i}\nv_lshlrev_b32 v{32+i}, 2, v{28+i}\nds_add_rtn_u32 v{36+i}, v{32+i}, v1 offset:{HIST}")
    a(f"""
    s_mov_b64 exec, -1
    s_waitcnt lgkmcnt(0)
    @stamp 2
    s_barrier
    ds_read_b128 v[40:43], v10 offset:{HIST}
    """)
    for i in range(4):
        a(f"v_mad_u32_u24 v{28+i}, v{28+i}, s{sTMP}, 15\nv_lshrrev_b32 v{28+i}, 4, v{28+i}\nv_sub_u32 v{28+i}, v{12+i}, v{28+i}")
    a(f"""
    s_waitcnt lgkmcnt(0)
    v_add_u32 v44, v40, v41
    v_add3_u32 v44, v44, v42, v43
    v_mov_b32 v45, v44
    """)
    dpp_scan(a, 45)
    a(f"""
    v_sub_u32 v48, v45, v44
    v_add_u32 v49, v48, v40
    v_add_u32 v50, v49, v41
    v_add_u32 v51, v50, v42
    ds_write_b128 v10, v[48:51] offset:{OFFS}
    s_mov_b32 s{sTMP}, {STAGE}
    s_mov_b64 exec, s[{sEX}:{sEX+1}]
    s_waitcnt lgkmcnt(0)
    """)
    for i in range(4):
        a(f"ds_read_b32 v{40+i}, v{32+i} offset:{OFFS}")
    a(f"""
    s_waitcnt vmcnt(3)
    @stamp 3
    s_barrier
    s_waitcnt lgkmcnt(0)
    """)
    for i in range(4):
        a(f"v_add_u32 v{40+i}, v{40+i}, v{36+i}\nv_mad_u32_u24 v{40+i}, v{40+i}, 12, s{sTMP}")
    a("s_waitcnt vmcnt(2)")
    for i in range(4):
        a(f"v_lshl_or_b32 v{16+i}, v{28+i}, 18, v{16+i}\nds_write_b32 v{40+i}, v{16+i} offset:8")
    for i in range(4):
        if i % 2 == 0: a(f"s_waitcnt vmcnt({1 - i//2})")
        a(f"ds_write2_b32 v{40+i}, v{20+2*i}, v{21+2*i} offset0:0 offset1:1")
    a(f"""
    s_mov_b64 exec, -1
    s_branch A_JOIN
A_N1:
    ; ================= waves 5..15
    v_mov_b32 v8, 0
    """)
    wlane(a, 6)
    a(f"""
    s_sub_u32 s{sVT}, s{sWV}, 5
    s_lshl_b32 s{sVT}, s{sVT}, 12
    s_add_u32 m0, s{sVT}, {W1S}
    s_waitcnt lgkmcnt(0)
    s_mov_b32 s{sW}, s12
    s_and_b32 s{sW+1}, s13, 0xffff
    s_cmp_ge_u32 s{sWV}, 13
    s_cbranch_scc1 A_N13
    """)
    if "w1late" not in OPT: wdma(a, sVT, 6)
    a(f"""
    s_cmp_ge_u32 s{sWV}, 10
    s_cbranch_scc1 A_N10
    ; waves 5..8: histogram = 0; wave 9: node counters and flags = 0
    s_mov_b32 s{sTMP+1}, {HIST - 320*4}
    s_cmp_eq_u32 s{sWV}, 9
    s_cselect_b32 s{sTMP+1}, {CNT - 576*4}, s{sTMP+1}
    v_lshl_add_u32 v3, v0, 2, s{sTMP+1}
    ds_write_b32 v3, v8
    ds_write_b32 v8, v8 offset:{FLG}
    ds_write_b32 v8, v8 offset:{FLG+4}
    s_cbranch_scc0 A_B0
    ds_write_b32 v3, v8 offset:{TF}
    s_branch A_B0
A_N13:
    s_cmp_eq_u32 s{sWV}, 15
    s_cbranch_scc1 A_N15
    s_and_b32 s{sTMP}, s{sG}, 31
    s_lshl_b32 s{sTMP}, s{sTMP}, 10
    s_cmp_eq_u32 s{sWV}, 13
    s_cselect_b32 s{sTMP+1}, 32768, 0
    s_cselect_b32 s{sTMP+2}, s12, s14
    s_cselect_b32 s{sTMP+3}, s13, s15
    s_add_u32 s{sTMP}, s{sTMP}, s{sTMP+1}
    v_lshl_add_u32 v3, v{VL}, 7, s{sTMP}
    s_mov_b64 exec, 0xff
    global_load_dword v40, v3, s[{sTMP+2}:{sTMP+3}]
    s_mov_b64 exec, -1
    s_cmp_eq_u32 s{sWV}, 14
    s_cbranch_scc1 A_B0
A_N10:
    ; waves 10..13: src list = 0xffff (index out of range)
    v_lshlrev_b32 v3, 4, v0
    v_add_u32 v3, {SS - 640*16}, v3
    v_mov_b64 v[12:13], -1
    v_mov_b64 v[14:15], -1
    ds_write_b128 v3, v[12:15]
    s_branch A_B0
A_N15:
    s_cmp_lg_u32 s2, 0
    s_cbranch_scc1 A_B0
    s_memrealtime s[{sNON}:{sNON+1}]
    s_waitcnt lgkmcnt(0)
    s_or_b32 s{sNON}, s{sNON}, 1
    v_mov_b32 v10, s{sNON}
    v_mov_b32 v11, s{sNON+1}
    s_mov_b64 exec, 1
    global_store_dwordx2 v8, v[10:11], s[18:19] sc1
    s_mov_b64 exec, -1
A_B0:
    s_cmp_eq_u32 s{sWV}, 15
    s_cbranch_scc1 A_B1
    v_lshlrev_b32 v3, 4, v0
    v_add_u32 v3, {AGG - 320*16}, v3
    v_mov_b64 v[12:13], 0
    v_mov_b64 v[14:15], 0
    ds_write_b128 v3, v[12:15]
    ds_write_b128 v3, v[12:15] offset:10240
    ds_write_b128 v3, v[12:15] offset:20480
    ds_write_b128 v3, v[12:15] offset:30720
A_B1:
    s_waitcnt lgkmcnt({"0" if "zearly" in OPT else "4"})
    s_barrier
    """)
    if "w1late" in OPT:
        a(f"s_cmp_ge_u32 s{sWV}, 13\ns_cbranch_scc1 A_NOW1")
        wdma(a, sVT, 6)
        a("A_NOW1:")
    a(f"""
    s_cmp_eq_u32 s{sWV}, 15
    s_cbranch_scc0 A_NO15
    v_bfe_u32 v9, v{VL}, 4, 1
    v_lshlrev_b32 v9, 6, v9
    v_lshrrev_b32 v10, 5, v{VL}
    v_lshl_add_u32 v9, v10, 5, v9
    v_add_u32 v9, v9, v{VJ}
    v_lshlrev_b32 v9, 1, v9
    v_add_u32 v8, {256*256}, v9
    """)
    for s in range(8):
        a(f"global_load_ushort v{16 + s}, v8, s[12:13] offset:{(s & 3)*256 + (s >> 2)*32}")
    a(f"""
    s_cmp_ge_u32 s{sG}, 32
    s_cbranch_scc1 A_NO15
    s_and_b32 s{sTMP}, s{sG}, 1
    s_lshl_b32 s{sTMP}, s{sTMP}, 3
    s_bfe_u32 s{sTMP+1}, s{sG}, 0x10001
    s_lshl_b32 s{sTMP+1}, s{sTMP+1}, 6
    s_add_u32 s{sTMP}, s{sTMP}, s{sTMP+1}
    s_add_u32 s{sTMP}, s{sTMP}, 128
    s_lshl_b32 s{sTMP}, s{sTMP}, 8
    s_bfe_u32 s{sTMP+1}, s{sG}, 0x30002
    s_lshl_b32 s{sTMP+1}, s{sTMP+1}, 5
    s_add_u32 s{sTMP}, s{sTMP}, s{sTMP+1}
    v_lshlrev_b32 v8, 9, v{VG}
    v_lshl_add_u32 v8, v{VJ}, 1, v8
    v_add_u32 v8, s{sTMP}, v8
    v_add_u32 v9, {32*256}, v8
    v_add_u32 v10, {16*256}, v8
    v_add_u32 v11, {48*256}, v8
    """)
    for s in range(8):
        a(f"global_load_ushort v{24 + s}, v{8 + (s >> 1)}, s[14:15] offset:{(s & 1)*256}")
    a(f"""
A_NO15:
    """)
    consts(a)
    a(f"""
    s_barrier
    s_cmp_ge_u32 s{sWV}, 11
    s_cbranch_scc1 A_G11
    ; ================= waves 5..10: P = -log2e * x @ W1 for this group's rows (rt = (wv-5)>>1, hf = (wv-5)&1)
    s_sub_u32 s3, s{sWV}, 5
    s_and_b32 s{sTMP+1}, s3, 1
    s_lshr_b32 s{sTMP}, s3, 1
    s_lshl_b32 s{sTMP+2}, s{sTMP}, 12
    v_add_u32 v0, s{sTMP+2}, v{XA}
    v_add_u32 v1, s{sTMP+2}, v{XA+1}
    v_add_u32 v2, s{sTMP+2}, v{XA+2}
    v_add_u32 v3, s{sTMP+2}, v{XA+3}
    s_lshl_b32 s{sTMP+1}, s{sTMP+1}, 7
    v_xor_b32 v4, s{sTMP+1}, v{WA}
    v_add_u32 v4, {W1S}, v4
    v_xor_b32 v5, 32, v4
    v_xor_b32 v6, 64, v4
    v_xor_b32 v7, 96, v4
    s_add_u32 s{sTMP+2}, s{sTMP+2}, s{sTMP+1}
    s_lshl_b32 s{sTMP+1}, s{sSTART}, 8
    s_add_u32 s{sTMP+2}, s{sTMP+2}, s{sTMP+1}
    v_lshlrev_b32 v{NANC}, 10, v{VG}
    v_lshl_add_u32 v{NANC}, v{VJ}, 3, v{NANC}
    v_add_u32 v{NANC}, s{sTMP+2}, v{NANC}
    s_mov_b32 s{sTMP+2}, {NLOG2E:#x}
    s_waitcnt vmcnt(0)
    @stamp 3
    s_barrier
    s_setprio 1
    """)
    def breads(ks):
        b = 8 + 16*(ks & 1)
        a(f"ds_read_b128 v[{40+4*ks}:{43+4*ks}], v{ks} offset:{XS}")
        for i in range(4):
            for h in range(2):
                a(f"ds_read_b64_tr_b16 v[{b+4*i+2*h}:{b+4*i+2*h+1}], v{4+i} offset:{8192*ks + 1024*h}")
    breads(0)
    for ks in range(4):
        if ks < 3:
            breads(ks+1)
            a("s_waitcnt lgkmcnt(9)")
        else:
            a("s_waitcnt lgkmcnt(0)")
        b = 8 + 16*(ks & 1)
        for i in range(4):
            c = "0" if ks == 0 else f"v[{56+4*i}:{59+4*i}]"
            a(f"v_mfma_f32_16x16x32_bf16 v[{56+4*i}:{59+4*i}], v[{40+4*ks}:{43+4*ks}], v[{b+4*i}:{b+4*i+3}], {c}")
    a(f"""
    s_cmp_eq_u32 s{sTMP}, 2
    s_cselect_b32 exec_hi, 0, -1
    s_nop 5
    """)
    for q in range(8):
        a(f"v_pk_mul_f32 v[{56+2*q}:{57+2*q}], v[{56+2*q}:{57+2*q}], s[{sTMP+2}:{sTMP+3}] op_sel_hi:[1,0]")
    for r in range(4):
        a(f"v_cvt_pk_bf16_f32 v{8+2*r}, v{56+r}, v{60+r}\nv_cvt_pk_bf16_f32 v{9+2*r}, v{64+r}, v{68+r}")
        a(f"global_store_dwordx2 v{NANC}, v[{8+2*r}:{9+2*r}], s[{sWS}:{sWS+1}] offset:{256*r} sc1")
    a(f"""
    s_mov_b64 exec, -1
    s_setprio 0
    s_branch A_JOIN
A_G11:
    s_cmp_eq_u32 s{sWV}, 15
    s_cbranch_scc1 A_G15
    """)
    a(f"""
    s_waitcnt vmcnt(0)
    @stamp 3
    s_barrier
    s_branch A_JOIN
A_G15:
    @stamp 3
    s_barrier
    v_mov_b32 v8, 0
    s_mov_b32 s{sSPIN}, {SPINMAX}
A_NLOOP:
    global_load_dwordx2 v[10:11], v8, s[18:19] sc1
    s_sub_u32 s{sSPIN}, s{sSPIN}, 1
    s_cbranch_scc1 A_NDONE
    s_waitcnt vmcnt(0)
    v_cmp_eq_u32 vcc, 0, v10
    s_cbranch_vccnz A_NLOOP
A_NDONE:
    s_waitcnt vmcnt(0)
    v_lshlrev_b32 v11, 22, v11
    ds_write_b64 v8, v[10:11] offset:{NON}
    s_mov_b32 s{sTMP}, {NLOG2E:#x}
    """)
    for s in range(8):
        a(f"v_lshlrev_b32 v{16+s}, 16, v{16+s}\nv_mul_f32 v{16+s}, s{sTMP}, v{16+s}")
    for q in range(4):
        a(f"v_cvt_pk_bf16_f32 v{12+q}, v{16+2*q}, v{17+2*q}")
    a(f"""
    v_lshlrev_b32 v8, 4, v{VL}
    ds_write_b128 v8, v[12:15] offset:{W3S}
    s_cmp_ge_u32 s{sG}, 32
    s_cbranch_scc1 A_JOIN
    """)
    for q in range(4):
        a(f"v_lshl_or_b32 v{32+q}, v{25+2*q}, 16, v{24+2*q}")
    a(f"""
    s_lshl_b32 s{sTMP}, s{sG}, 10
    s_add_u32 s{sTMP}, s{sTMP}, {WS_F}
    v_add_u32 v8, s{sTMP}, v8
    global_store_dwordx4 v8, v[32:35], s[{sWS}:{sWS+1}] sc1
A_JOIN:
    v_lshlrev_b32 v0, 4, v{TID}
    s_mul_i32 s{sTMP}, s{sG}, {REC_STRIDE}
    s_add_u32 s{sTMP}, s{sTMP}, {WS_REC}
    v_add_u32 v1, s{sTMP}, v0
    s_waitcnt lgkmcnt(0)
    @stamp 4
    s_barrier
    s_cmp_eq_u32 s{sWV}, 15
    s_cbranch_scc1 A_C2
    ds_read_b128 v[4:7], v0 offset:{STAGE}
    s_waitcnt lgkmcnt(0)
    global_store_dwordx4 v1, v[4:7], s[{sWS}:{sWS+1}] sc1
A_C2:
    v_mov_b32 v2, 0
    v_lshlrev_b32 v3, 4, v{VL}
    ds_read_b64 v[{SAD}:{SAD+1}], v2 offset:{NON}
    ds_read_b128 v[{W3}:{W3+3}], v3 offset:{W3S}
    """)
    wlane(a, 14)
    a(f"""
    s_lshl_b32 s{sTMP}, s{sWV}, 12
    s_add_u32 s{sTMP+1}, s{sTMP}, 32768
    s_sub_u32 s{sTMP+2}, s{sTMP}, 32768
    s_add_u32 s{sTMP+3}, s{sTMP}, {W2S}
    s_add_u32 s{sTMP}, s{sTMP+2}, {WTS}
    s_cmp_lt_u32 s{sWV}, 8
    s_cselect_b32 s{sW}, s12, s14
    s_cselect_b32 s{sW+1}, s13, s15
    s_cselect_b32 s{sVT}, s{sTMP+1}, s{sTMP+2}
    s_cselect_b32 m0, s{sTMP+3}, s{sTMP}
    s_and_b32 s{sW+1}, s{sW+1}, 0xffff
    """)
    if W2E:
        a(f"s_barrier\ns_cmp_ge_u32 s{sWV}, 8\ns_cbranch_scc1 A_C4")
        wdma(a, sVT, 14)
        a("A_C4:")
    a(f"""
    s_mov_b32 s{sO}, s16
    s_and_b32 s{sO+1}, s17, 0xffff
    s_lshl_b32 s{sO+2}, s{sEND}, 8
    s_mov_b32 s{sO+3}, 0x20000
    s_mov_b32 s{sP}, s{sWS}
    s_and_b32 s{sP+1}, s{sWS+1}, 0xffff
    s_or_b32 s{sP+1}, s{sP+1}, {256 << 16}
    s_mov_b32 s{sP+2}, {N}
    s_mov_b32 s{sP+3}, 0x20000
    s_sub_u32 s{sP2}, s{sWS}, 1024
    s_subb_u32 s{sP2+1}, s{sP+1}, 0
    s_mov_b32 s{sP2+2}, {N}
    s_mov_b32 s{sP2+3}, 0x20000
    s_add_u32 s{sREC}, s{sWS}, {WS_REC}
    s_addc_u32 s{sREC+1}, s{sWS+1}, 0
    s_and_b32 s{sREC+1}, s{sREC+1}, 0xffff
    s_mov_b32 s{sREC+2}, {NG*REC_STRIDE}
    s_mov_b32 s{sREC+3}, 0x20000
    s_mov_b32 s{sMODE}, 0
    s_mov_b32 s{sR0}, 0
    s_mov_b32 s{sR}, {4*RMAX}
    s_mov_b32 s{sONE}, 1.0
    s_mov_b32 s{sONE+1}, 1.0
    s_mov_b32 s{sSPIN}, {SPINMAX}
    v_mov_b64 v[{NANC}:{NANC+1}], 0
    v_mov_b32 v{MAXC}, 0
    s_and_b32 s{sTMP}, s{sWV}, 7
    s_lshl_b32 s{sTMP}, s{sTMP}, 5
    v_xor_b32 v{WA}, s{sTMP}, v{WA}
    s_and_b32 s{sTMP}, s{sWV}, 8
    s_lshl_b32 s{sTMP}, s{sTMP}, 12
    s_add_u32 s{sTMP}, s{sTMP}, {WTS}
    v_add_u32 v{WA}, s{sTMP}, v{WA}
    s_bfe_u32 s{sTMP}, s{sWV}, 0x10002
    s_lshl_b32 s{sTMP}, s{sTMP}, 7
    s_bfe_u32 s{sTMP+1}, s{sWV}, 0x10001
    s_lshl_b32 s{sTMP+1}, s{sTMP+1}, 8
    s_add_u32 s{sTMP}, s{sTMP}, s{sTMP+1}
    s_and_b32 s{sTMP+1}, s{sWV}, 1
    s_lshl_b32 s{sTMP+1}, s{sTMP+1}, 2
    s_add_u32 s{sTMP}, s{sTMP}, s{sTMP+1}
    v_lshlrev_b32 v{QAD}, 11, v{VG}
    v_lshl_add_u32 v{QAD}, v{VJ}, 3, v{QAD}
    v_add_u32 v{QAD}, s{sTMP}, v{QAD}
    s_mov_b32 s{sTMP+2}, {NLOG2E:#x}
    s_waitcnt lgkmcnt(0)
    v_readfirstlane_b32 s{sNON}, v{SAD}
    v_readfirstlane_b32 s{sNON+1}, v{SAD+1}
    """)
    if PF1:
        a(f"""
        ; this CU's share of the first {512*PF1} lines of P (pulled into the L2 behind the publish; speed only)
        s_and_b32 s{sTMP}, s{sG}, 31
        s_lshl_b32 s{sTMP}, s{sTMP}, 4
        s_add_u32 s{sTMP}, s{sTMP}, s{sWV}
        s_lshr_b32 s{sTMP+1}, s{sG}, 5
        s_lshl_b32 s{sTMP+1}, s{sTMP+1}, 6
        s_add_u32 s{sTMP}, s{sTMP}, s{sTMP+1}
        s_and_b32 s{sTMP}, s{sTMP}, 511
        s_mul_i32 s{sTMP}, s{sTMP}, {PF1*128}
        v_lshl_add_u32 v3, v{L8}, 4, s{sTMP}
        """)
    a(f"""
    s_cmp_lt_u32 s{sWV}, 14
    s_cbranch_scc1 A_NOT
    ; waves 14, 15: granules (start | count<<11 | tag<<22, tag) of groups 2t, 2t+1 (t = tid - 896)
    v_lshlrev_b32 v8, 3, v{TID}
    ds_read_b64 v[10:11], v8 offset:{OFFS - 896*8}
    ds_read_b64 v[12:13], v8 offset:{HIST - 896*8}
    s_lshl_b32 s{sTMP}, s{sG}, 11
    s_add_u32 s{sTMP}, s{sTMP}, {WS_T - 896*16}
    v_lshl_add_u32 v8, v8, 1, s{sTMP}
    v_mov_b32 v5, s{sNON}
    v_mov_b32 v7, s{sNON}
    s_waitcnt lgkmcnt(0)
    v_lshl_or_b32 v4, v12, 11, v10
    v_lshl_or_b32 v6, v13, 11, v11
    v_or_b32 v4, s{sNON+1}, v4
    v_or_b32 v6, s{sNON+1}, v6
    s_waitcnt vmcnt(0)
    @stamp 5
    s_barrier
    global_store_dwordx4 v8, v[4:7], s[{sWS}:{sWS+1}] sc1
    s_branch A_PUB
A_NOT:
    """)
    if W2E: a(f"s_cmp_lt_u32 s{sWV}, 8\ns_cbranch_scc1 A_WT4\ns_waitcnt vmcnt(0)\nA_WT4:\ns_waitcnt vmcnt(4)")
    else: a("s_waitcnt vmcnt(0)")
    a(f"""
    @stamp 5
    s_barrier
A_PUB:
    s_barrier
    """)
    if W2E: a(f"s_cmp_lt_u32 s{sWV}, 8\ns_cbranch_scc1 A_NOWT")
    wdma(a, sVT, 14)
    if W2E: a("A_NOWT:")
    if PF1:
        a(f"""
        s_mov_b64 exec, {(1 << PF1) - 1:#x}
        global_load_dword v2, v3, s[{sWS}:{sWS+1}] sc1
        s_mov_b64 exec, -1
        """)
    a(f"""
A_QD:
    s_lshl_b32 s{sRING}, s{sWV}, 12
    s_add_u32 s{sRING}, s{sRING}, {RING}
    s_add_u32 s{sRING+1}, s{sRING}, 2048
    s_and_b32 s{sRHO}, s{sWV}, 3
    s_lshl_b32 s{sRHO}, s{sRHO}, 2
    s_lshr_b32 s{sTMP}, s{sWV}, 2
    s_or_b32 s{sRHO}, s{sRHO}, s{sTMP}
    v_add_u32 v{PAD}, s{sRING}, v{L8}
    s_mov_b32 s3, 1
    v_mov_b32 v19, 0x3fffff
    s_waitcnt vmcnt({1 if PF1 else 0})
    @stamp 6
    {"s_barrier" if "noqbar" not in OPT else ""}
    {f"s_sleep {OPT['sleep0']}" if "sleep0" in OPT else ""}
T_LOOP:
    global_load_dwordx2 v[20:21], v{AAD}, s[{sWS}:{sWS+1}] sc1
    s_sub_u32 s{sSPIN}, s{sSPIN}, 1
    s_cbranch_scc1 T_DONE
    s_waitcnt vmcnt(0)
    v_xor_b32 v{TW}, s{sNON+1}, v20
    v_cmp_ne_u32 vcc, s{sNON}, v21
    v_cmp_lt_u32 s[{sTMP}:{sTMP+1}], v19, v{TW}
    s_or_b64 exec, vcc, s[{sTMP}:{sTMP+1}]
    s_cbranch_scc1 T_LOOP
T_DONE:
    s_mov_b64 exec, -1
    s_waitcnt vmcnt(0)
    @stamp 7
K_PASS:
    v_and_b32 v9, 0x7ff, v{TW}
    v_bfe_u32 v15, v{TW}, 11, 11
    v_add_u32 v9, s{sR0}, v9
    v_mad_u32_u24 v9, v9, 12, v{RAD}
    v_subrev_u32 v15, s{sR0}, v15
    v_min_i32 v10, s{sR}, v15
    v_and_b32 v11, 3, v{TID}
    v_sub_u32 v10, v10, v11
    """)
    for r in range(RMAX):
        a(f"v_cmp_lt_i32 s[{sEX+2*r}:{sEX+2*r+1}], {4*r}, v10")
    a(f"v_cmp_lt_i32 vcc, s{sR}, v15")
    for r in range(RMAX):
        a(f"s_mov_b64 exec, s[{sEX+2*r}:{sEX+2*r+1}]")
        if r >= 2: a(f"s_cbranch_execz K_LD")
        a(f"buffer_load_dwordx3 v[{32+4*r}:{34+4*r}], v9, s[{sREC}:{sREC+3}], 0 offen offset:{48*r} sc1")
    a(f"""
K_LD:
    s_mov_b64 exec, -1
    v_mov_b32 v13, 1
    v_lshrrev_b32 v14, 1, v{L8}
    s_cbranch_vccz K_NOMORE
    v_mov_b32 v9, 0
    ds_write_b32 v9, v13 offset:{FLG}
K_NOMORE:
    """)
    if PF2:
        a(f"""
        s_and_b32 s{sTMP}, s{sG}, 31
        s_lshl_b32 s{sTMP}, s{sTMP}, 4
        s_add_u32 s{sTMP}, s{sTMP}, s{sWV}
        s_lshr_b32 s{sTMP+1}, s{sG}, 5
        s_lshl_b32 s{sTMP+1}, s{sTMP+1}, 6
        s_add_u32 s{sTMP}, s{sTMP}, s{sTMP+1}
        s_and_b32 s{sTMP}, s{sTMP}, 511
        s_mul_i32 s{sTMP}, s{sTMP}, {PF2*128}
        s_add_u32 s{sTMP}, s{sTMP}, {(20000 - 512*PF2)*128}
        v_lshl_add_u32 v12, v{L8}, 4, s{sTMP}
        """)
    a(f"""
    s_cmp_eq_u32 s3, 0
    s_mov_b32 s3, 0
    s_cbranch_scc1 K_NOU
    ; first pass, column tile wv&7: waves 0..7 U = -log2e * (x @ Wupd_top)^T (rows = channels) -> registers,
    """)
    for ks in range(4):
        for h in range(2):
            a(f"ds_read_b64_tr_b16 v[{16+4*ks+2*h}:{17+4*ks+2*h}], v{WA} offset:{8192*ks + 1024*h}")
    XB0 = (52, 56, 60, 64); XB1 = (0, 4, 8, 68)
    def xr(xb, off):
        for ks in range(4): a(f"ds_read_b128 v[{xb[ks]}:{xb[ks]+3}], v{XA+ks} offset:{off}")
    xr(XB0, XS); xr(XB1, XS + 4096)
    a(f"s_mov_b32 s{sTMP+2}, {NLOG2E:#x}\ns_cmp_ge_u32 s{sWV}, 8\ns_cbranch_scc1 K_Q")
    for isq in (0, 1):
        if isq: a("K_Q:")
        def um(rt, xb):
            for ks in range(4):
                c = "0" if ks == 0 else f"v[{UA[rt]}:{UA[rt]+3}]"
                w = f"v[{16+4*ks}:{19+4*ks}]"; x = f"v[{xb[ks]}:{xb[ks]+3}]"
                a(f"v_mfma_f32_16x16x32_bf16 v[{UA[rt]}:{UA[rt]+3}], {x if isq else w}, {w if isq else x}, {c}")
        a("s_waitcnt lgkmcnt(4)")
        um(0, XB0)
        xr(XB0, XS + 8192)
        a("s_waitcnt lgkmcnt(4)")
        um(1, XB1)
        a("s_waitcnt lgkmcnt(0)")
        um(2, XB0)
        if not isq: a("s_nop 3")
        for rt in range(3):
            if rt == 2 and not isq: a("s_nop 1")
            for q in range(2):
                u = UA[rt] + 2*q
                a(f"v_pk_mul_f32 v[{u}:{u+1}], v[{u}:{u+1}], s[{sTMP+2}:{sTMP+3}] op_sel_hi:[1,0]")
            if isq:
                if rt == 2: a("s_mov_b32 exec_hi, 0")
                for r in range(4):
                    a(f"ds_write_b32 v{QAD}, v{UA[rt]+r} offset:{QS + rt*8192 + r*512}")
        a("s_mov_b64 exec, -1" if isq else "s_branch K_NOU")
    a("K_NOU:\ns_waitcnt vmcnt(0)\n@stamp 8")
    if PF2:
        a(f"s_mov_b64 exec, {(1 << PF2) - 1:#x}\nglobal_load_dword v63, v12, s[{sWS}:{sWS+1}] sc1")
    for r in range(RMAX):
        a(f"s_mov_b64 exec, s[{sEX+2*r}:{sEX+2*r+1}]")
        if r >= 2: a(f"s_cbranch_execz K_HD")
        a(f"v_lshrrev_b32 v{r}, 16, v{34+4*r}\nds_add_rtn_u32 v{35+4*r}, v{r}, v13 offset:{CNT}")
    a(f"""
K_HD:
    s_mov_b64 exec, -1
    s_waitcnt lgkmcnt(0)
    s_barrier
    ds_read_b32 v8, v14 offset:{CNT}
    s_waitcnt lgkmcnt(0)
    v_add_u32 v10, 7, v8
    v_lshrrev_b32 v11, 3, v10
    """)
    dpp_scan(a, 11, [f"v_cmp_ne_u32 s[{sNZ}:{sNZ+1}], 0, v8", f"v_and_b32 v{NCNT}, 7, v10", f"v_and_b32 v10, -8, v10", f"v_add_u32 v{NCNT}, 1, v{NCNT}"])
    a(f"""
    v_lshlrev_b32 v15, 3, v11
    v_sub_u32 v15, v15, v10
    v_readlane_b32 s{sTMP}, v11, 63
    """)
    for r in range(RMAX):
        if r >= 2: a(f"s_cmp_eq_u64 s[{sEX+2*r}:{sEX+2*r+1}], 0\ns_cbranch_scc1 K_BD")
        a(f"ds_bpermute_b32 v{16+r}, v{r}, v15")
    a(f"""
K_BD:
    s_cmp_gt_u32 s{sTMP}, {CAP//8}
    s_cbranch_scc1 K_SHRINK
    s_mul_i32 s{sT0}, s{sTMP}, s{sRHO}
    s_add_u32 s{sTMP}, s{sT0}, s{sTMP}
    s_lshr_b32 s{sT0}, s{sT0}, 4
    s_lshr_b32 s{sTMP}, s{sTMP}, 4
    v_cmp_ge_u32 vcc, s{sT0}, v11
    s_sub_u32 s{sLEFT}, s{sTMP}, s{sT0}
    s_cmp_lg_u32 s{sWV}, 15
    s_cbranch_scc1 K_NOTF
    s_mov_b64 exec, s[{sNZ}:{sNZ+1}]
    ds_write_b8 v11, v13 offset:{TF - 1}
K_NOTF:
    s_waitcnt lgkmcnt(0)
    """)
    for r in range(RMAX):
        a(f"s_mov_b64 exec, s[{sEX+2*r}:{sEX+2*r+1}]")
        if r >= 2: a("s_cbranch_execz K_SD")
        a(f"""
        v_add_lshl_u32 v10, v{16+r}, v{35+4*r}, 3
        v_add_lshl_u32 v9, v{16+r}, v{35+4*r}, 1
        {f"v_and_b32 v{34+4*r}, {OPT['x_mask']}, v{34+4*r}" if "x_mask" in OPT else ""}
        ds_write_b64 v10, v[{32+4*r}:{33+4*r}] offset:{ES}
        ds_write_b16 v9, v{34+4*r} offset:{SS}
        """)
    a(f"""
K_SD:
    s_mov_b64 exec, -1
    s_bcnt1_i32_b64 s{sNC}, vcc
    s_min_u32 s{sNC}, s{sNC}, 61
    s_or_b32 s{sNZ+1}, s{sNZ+1}, 0xc0000000
    s_lshr_b64 s[{sNZ}:{sNZ+1}], s[{sNZ}:{sNZ+1}], s{sNC}
    s_lshl_b64 s[{sNZ}:{sNZ+1}], s[{sNZ}:{sNZ+1}], s{sNC}
    s_mov_b64 s[{sNZ2}:{sNZ2+1}], s[{sNZ}:{sNZ+1}]
    s_mov_b32 s{sNQ}, s{sNC}
    v_lshl_add_u32 v{AAD}, s{sNC}, 10, v{L8}
    v_lshl_add_u32 v{EAD}, s{sT0}, 6, v{E8}
    v_lshl_add_u32 v{SAD}, s{sT0}, 4, v{G2}
    v_lshrrev_b32 v9, 2, v14
    v_add_u32 v9, s{sT0}, v9
    s_waitcnt lgkmcnt(0)
    s_barrier
    s_setprio 3
    @stamp 10
    s_cmp_eq_u32 s{sLEFT}, 0
    s_cbranch_scc1 K_MAINDONE
    s_cmp_lg_u32 s{sMODE}, 0
    s_cbranch_scc1 S_START
    """)
    mainloop(a, False)
    a(f"""
K_MAINDONE:
    @stamp 11
    s_waitcnt vmcnt(0)
    v_mov_b32 v17, {f2u(2.0**120):#x}
    v_add_f32 v18, v{NANC}, v{NANC+1}
    v_cmp_nle_f32 vcc, v{MAXC}, v17
    v_cmp_u_f32 s[{sTMP}:{sTMP+1}], v18, v18
    v_mov_b32 v{QAD}, 0
    s_or_b64 vcc, vcc, s[{sTMP}:{sTMP+1}]
    s_cbranch_scc0 K_NOOVF
    v_mov_b32 v20, 1
    ds_write_b32 v{QAD}, v20 offset:{FLG+4}
K_NOOVF:
    s_cmp_ge_u32 s{sWV}, 8
    s_cbranch_scc1 K_NOFA
    s_lshl_b32 s{sTMP}, s{sWV}, 12
    s_add_u32 s{sTMP}, s{sTMP}, {WS_F}
    v_lshl_add_u32 v{EAD}, v{L8}, 1, s{sTMP}
    """)
    for ks in range(4): a(f"global_load_dwordx4 v[{4*ks}:{4*ks+3}], v{EAD}, s[{sWS}:{sWS+1}] offset:{1024*ks} sc1")
    a(f"""
    v_xor_b32 v16, v{VG}, v{VJ}
    v_lshlrev_b32 v16, 4, v16
    v_lshl_add_u32 v{XA}, v{VJ}, 8, v16
    v_xor_b32 v{XA+1}, 64, v{XA}
    v_xor_b32 v{XA+2}, 128, v{XA}
    v_xor_b32 v{XA+3}, 192, v{XA}
    ; staging address: row*256 + ((2*ct + (g>>1)) ^ j)*16 + (g&1)*8, row = 16*rt + j
    s_lshl_b32 s{sTMP}, s{sWV}, 1
    v_lshrrev_b32 v{EAD}, 1, v{VG}
    v_or_b32 v{EAD}, s{sTMP}, v{EAD}
    v_xor_b32 v{EAD}, v{EAD}, v{VJ}
    v_and_b32 v16, 1, v{VG}
    v_lshl_or_b32 v{EAD}, v{EAD}, 1, v16
    v_lshlrev_b32 v{EAD}, 3, v{EAD}
    v_lshl_add_u32 v{EAD}, v{VJ}, 8, v{EAD}
K_NOFA:
    v_lshrrev_b32 v21, 4, v{TID}
    v_lshlrev_b32 v23, 10, v21
    v_lshl_add_u32 v23, v{VJ}, 4, v23
    v_xor_b32 v24, v21, v{VJ}
    v_and_b32 v24, 15, v24
    v_lshlrev_b32 v24, 4, v24
    v_lshl_add_u32 v{SAD}, v21, 8, v24
    s_lshl_b32 s{sTMP}, s{sSTART}, 8
    v_lshl_add_u32 v{AAD}, v{TID}, 4, s{sTMP}
    s_waitcnt lgkmcnt(0)
    s_barrier
    @estamp 2
    ds_read_b64 v[24:25], v{QAD} offset:{FLG}
    s_cmp_ge_u32 s{sWV}, 10
    s_cbranch_scc1 K_NOCV
    ds_read_b128 v[36:39], v23 offset:{AGG}
    ds_read_b128 v[40:43], v23 offset:{AGG+256}
    ds_read_b128 v[44:47], v23 offset:{AGG+512}
    ds_read_b128 v[48:51], v23 offset:{AGG+768}
    """)
    for q in range(4):
        a(f"s_waitcnt lgkmcnt({3-q})\nv_cvt_f32_f64 v{28+2*q}, v[{36+4*q}:{37+4*q}]\nv_cvt_f32_f64 v{29+2*q}, v[{38+4*q}:{39+4*q}]")
    for q in range(4):
        a(f"v_cvt_pk_bf16_f32 v{28+q}, v{28+2*q}, v{29+2*q}")
    a(f"""
    ds_write_b128 v{SAD}, v[28:31] offset:{AB}
K_NOCV:
    s_waitcnt lgkmcnt(0)
    v_or_b32 v27, v24, v25
    v_cmp_ne_u32 vcc, 0, v27
    s_cbranch_vccnz K_SLOW
K_FINAL:
    @estamp 3
    s_barrier
    @estamp 4
    s_cmp_ge_u32 s{sWV}, 10
    s_cbranch_scc1 K_END2
    s_cmp_ge_u32 s{sWV}, 8
    s_cbranch_scc1 K_OUT
    """)
    for rt in range(3): xreads(a, 16 + 16*rt, AB + rt*4096)
    a(f"s_mov_b32 s{sTMP+2}, {f2u(-LOG2E/(1+float(OPT.get('eps', 0)))):#x}\ns_waitcnt vmcnt(0)")
    def fm(rt):
        a(f"s_waitcnt lgkmcnt({8 - 4*rt if not (rt == 2 and 'noeil' not in OPT) else 1})")
        mm16(a, UA[rt], 16 + 16*rt, 0, swap=True, first=False)
    def silu(rt):
        u = UA[rt]; t = 64
        a(f"""
        v_exp_f32 v{t}, v{u}
        v_exp_f32 v{t+1}, v{u+1}
        v_exp_f32 v{t+2}, v{u+2}
        v_exp_f32 v{t+3}, v{u+3}
        v_pk_fma_f32 v[{t}:{t+1}], v[{t}:{t+1}], s[{sTMP+2}:{sTMP+3}], s[{sTMP+2}:{sTMP+3}] op_sel_hi:[1,0,0]
        v_pk_fma_f32 v[{t+2}:{t+3}], v[{t+2}:{t+3}], s[{sTMP+2}:{sTMP+3}], s[{sTMP+2}:{sTMP+3}] op_sel_hi:[1,0,0]
        v_rcp_f32 v{t}, v{t}
        v_rcp_f32 v{t+1}, v{t+1}
        v_rcp_f32 v{t+2}, v{t+2}
        v_rcp_f32 v{t+3}, v{t+3}
        v_pk_mul_f32 v[{t}:{t+1}], v[{t}:{t+1}], v[{u}:{u+1}]
        v_pk_mul_f32 v[{t+2}:{t+3}], v[{t+2}:{t+3}], v[{u+2}:{u+3}]
        v_cvt_pk_bf16_f32 v{16+2*rt}, v{t}, v{t+1}
        v_cvt_pk_bf16_f32 v{17+2*rt}, v{t+2}, v{t+3}
        ds_write_b64 v{EAD}, v[{16+2*rt}:{17+2*rt}] offset:{OUTS + rt*4096}
        """)
    if "noeil" not in OPT:
        fm(0); fm(1); a("s_nop 2"); silu(0); fm(2); silu(1); silu(2)
    else:
        fm(0); fm(1); fm(2); a("@estamp 5"); silu(0); silu(1); silu(2)
    a(f"""
K_OUT:
    s_waitcnt lgkmcnt(0)
    @estamp 6
    s_barrier
    @estamp 7
    ds_read_b128 v[32:35], v{SAD} offset:{OUTS}
    s_waitcnt lgkmcnt(0)
    buffer_store_dwordx4 v[32:35], v{AAD}, s[{sO}:{sO+3}], 0 offen {OPT.get('ost', 'sc1').replace('+', ' ')}
    @estamp 8
K_END2:
    @store
K_END:
    s_endpgm
K_SHRINK:
    ; too many slots for one pass: redo this pass with at most 4 records per cell
    s_mov_b32 s{sR}, 4
    s_mov_b32 s{sTMP+1}, 0
    s_branch K_REINIT
K_SLOW:
    v_readfirstlane_b32 s{sTMP}, v24
    v_readfirstlane_b32 s{sTMP+1}, v25
    s_cmp_eq_u32 s{sMODE}, 0
    s_cselect_b32 s{sTMP+1}, s{sTMP+1}, 0
    s_or_b32 s{sTMP}, s{sTMP}, s{sTMP+1}
    s_cbranch_scc0 K_FINAL
    s_add_u32 s{sR0}, s{sR0}, s{sR}
K_REINIT:
    s_waitcnt vmcnt(0) lgkmcnt(0)
    s_barrier
    v_lshrrev_b32 v9, 1, v{L8}
    v_mov_b32 v10, 0
    ds_write_b32 v9, v10 offset:{CNT}
    ds_write_b32 v9, v10 offset:{TF}
    ds_write_b32 v10, v10 offset:{FLG}
    ds_write_b32 v10, v10 offset:{FLG+4}
    v_lshlrev_b32 v9, 2, v{TID}
    v_mov_b32 v10, -1
    ds_write_b32 v9, v10 offset:{SS}
    s_cmp_eq_u32 s{sTMP+1}, 0
    s_cbranch_scc1 K_SLOW1
    s_mov_b32 s{sMODE}, 1
    s_mov_b32 s{sR0}, 0
    s_mov_b32 s{sR}, {4*RMAX}
    v_lshlrev_b32 v9, 4, v{TID}
    v_add_u32 v9, {AGG}, v9
    v_mov_b64 v[32:33], 0
    v_mov_b64 v[34:35], 0
    ds_write_b128 v9, v[32:35]
    ds_write_b128 v9, v[32:35] offset:16384
    ds_write_b128 v9, v[32:35] offset:24576
K_SLOW1:
    s_waitcnt lgkmcnt(0)
    s_barrier
    s_branch K_PASS
    """)
    mainloop(a, True)
    return a.text()

HEADER = """; Kernarg layout for this problem (72 bytes, ptrs only, base s[0:1]):
;   offset  24: d_in[3] dst  shape=(320000,) dtype=int32
; One workgroup per CU (256 workgroups, 39-40 destination nodes each).
; Phase A: bin 1280 edges by destination group, P = -log2e * x @ W1 for the own rows, publish both (write-through,
;          tagged granules).  Phase B: collect the group's edges, list them per node, evaluate the messages
"""
def main():
    s = ("; opts " + " ".join(sys.argv[2:]) + "\n" if len(sys.argv) > 2 else "") + HEADER
    s += f"; @launch grid=({NG},1,1) block=(1024,1,1) lds={LDS_BYTES}\n"
    s += '.amdgcn_target "amdgcn-amd-amdhsa--gfx950"\n.text\n'
    s += f".globl {KN}\n.p2align 8\n.type {KN},@function\n" + kernel()
    s += f""".section .rodata,"a"
.p2align 6
.amdhsa_kernel {KN}
  .amdhsa_next_free_vgpr {NVGPR}
  .amdhsa_next_free_sgpr {100 if (DIAG or AMP) else NSGPR}
  .amdhsa_accum_offset {NVGPR}
  .amdhsa_group_segment_fixed_size 0
  .amdhsa_kernarg_size 72
  .amdhsa_user_sgpr_count 2
  .amdhsa_user_sgpr_kernarg_segment_ptr 1
  .amdhsa_system_sgpr_workgroup_id_x 1
.end_amdhsa_kernel
"""
    open(sys.argv[1], "w").write(s)
main()
```

```python
import sys, struct

N = 10000; E = 320000
NG = 256
EPW = 1280
REC_STRIDE = 15360
WS_P = 0
WS_REC = 0x280000
WS_T = 0x640000
WS_F = 0xA40000
NGEMM = 209
LOG2E = 1.4426950408889634
def f2u(x): return struct.unpack("<I", struct.pack("<f", x))[0]
NLOG2E = f2u(-LOG2E)
NLN2 = f2u(-0.6931471805599453)

class Asm:
    def __init__(self): self.l = []
    def __call__(self, s):
        for ln in s.strip("\n").split("\n"):
            ln = ln.strip()
            if ln.startswith("@stamp"): stamp(self, int(ln.split()[1])); continue
            if ln.startswith("@rt"): stamp_rt(self, int(ln.split()[1])); continue
            if ln.startswith("@store"):
                p = ln.split(); stamp_store(self, int(p[1]), int(p[2]), int(p[3])); continue
            if ln: self.l.append(ln if ln.endswith(":") else "    " + ln)
    def text(self): return "\n".join(self.l) + "\n"

OPT = dict(a.split("=") if "=" in a else (a, "1") for a in sys.argv[2:])

DIAG = "diag" in OPT
WS_DIAG = 0xB00000
AMP = int(OPT.get("amp", 0))
def stamp(a, i):
    if AMP and i in (1, AMP): a(f"s_memrealtime s[{64+2*(i != 1)}:{65+2*(i != 1)}]\ns_waitcnt lgkmcnt(0)")
    if DIAG: a(f"{'s_memrealtime' if OPT['diag'] == 'rt' else 's_memtime'} s[{64+2*i}:{65+2*i}]\ns_waitcnt lgkmcnt(0)")
def stamp_rt(a, i):
    if DIAG: a(f"s_memrealtime s[{64+2*i}:{65+2*i}]\ns_waitcnt lgkmcnt(0)")
def stamp_store(a, wsreg, tidv, base, n=16):
    if AMP:
        a("s_waitcnt vmcnt(0)")
        stamp(a, 14)
        a(f"""
        s_cmp_lg_u32 s2, 0
        s_cbranch_scc1 AMP_DONE
        s_sub_u32 s66, s66, s64
        s_lshl_b32 s66, s66, 2
        s_memrealtime s[68:69]
        s_waitcnt lgkmcnt(0)
AMP_LOOP:
        s_memrealtime s[70:71]
        s_waitcnt lgkmcnt(0)
        s_sub_u32 s70, s70, s68
        s_cmp_lt_u32 s70, s66
        s_cbranch_scc1 AMP_LOOP
AMP_DONE:
        """)
    if not DIAG: return
    a(f"s_waitcnt vmcnt(0)")
    stamp(a, n-2); stamp_rt(a, n-1)
    a(f"s_mov_b64 exec, -1\nv_lshrrev_b32 v1, 6, v{tidv}\ns_lshl_b32 s3, s2, 4\nv_add_u32 v1, s3, v1\nv_lshlrev_b32 v1, 6, v1\nv_add_u32 v1, {base}, v1")
    for i in range(n):
        a(f"v_mov_b32 v2, s{64+2*i}\nglobal_store_dword v1, v2, s[{wsreg}:{wsreg+1}] offset:{4*i}")
def dpp_scan(a, v):
    for sh in (1, 2, 4, 8):
        a(f"s_nop 1\nv_add_u32_dpp v{v}, v{v}, v{v} row_shr:{sh} row_mask:0xf bank_mask:0xf bound_ctrl:0")
    a(f"s_nop 1\nv_add_u32_dpp v{v}, v{v}, v{v} row_bcast:15 row_mask:0xa bank_mask:0xf")
    a(f"s_nop 1\nv_add_u32_dpp v{v}, v{v}, v{v} row_bcast:31 row_mask:0xc bank_mask:0xf")

CNT = 0; FLG = 256; NON = 272
CAP = 2048
SS = 512
QS = SS + CAP*2 + 256
ES = QS + 40*512
AGG = ES + CAP*8
RING = 82944
STAGE = RING + 65536
LDS_BYTES = STAGE + 15360
W1S = RING; W2S = RING + 32768; WTS = RING; XS = ES
HIST = ES + 12288; OFFS = HIST + 1024; W3S = OFFS + 1024
RMAX = 5
NPROD = E // EPW
D0, D1, QR, VU, BP, AE, ID, W3 = 0, 16, 32, 48, 64, 72, 76, 84
VA, NUM, DEN, NANC, MAXC = 88, 90, 92, 94, 96
EAD, SAD, PAD, IX0, IX1, QAD, AAD, L8, NCNT, TID, TW = 97, 98, 99, 100, 102, 104, 105, 106, 107, 108, 109
RAD, E8 = 110, 111
UA = 112
G2 = 124; VG = 125; VJ = 126; VL = 127
NVGPR = 128
sWS = 20; sWV = 22; sSTART = 23
sX = 24; sW = 28; sP = 24; sO = 28; sREC = 4; sW2 = 40
sR0 = 8; sR = 9; sMODE = 10; sLEFT = 11; sREM = 12; sNODE = 14; sCNT = 16; sRUN = 17; sTT = 18; sT0 = 19
sNZ = 32; sM0 = 34; sM1 = 36; sONE = 38; sRING = 40; sTMP = 44; sG = 49
sEX = 50
sNON = 60
sEND = 62; sSPIN = 63; sCM = 52; sEV = 48; sFIRST = 3; sRHO = 42; sW2O = 11; sP2 = 64 if not (DIAG or AMP) else 96
PST_F = OPT.get('pst', 'sc1').replace('+', ' ')
PF2 = int(OPT.get('pf2', 12))
POLL_F = OPT.get('poll', 'sc1').replace('+', ' ')
TGW = 'tgw' in OPT
TST_F = OPT.get('tst', 'sc1').replace('+', ' ')
NREP = int(OPT.get('rep', 1))
PFK = int(OPT.get('pfk', 0))
SPINMAX = 400000
KN = "gather_scatter__mpnn_edge_mlp__graph_kernel"

def mainloop(a, safe):
    L = "S" if safe else "F"
    def ex(d, k):
        if "x_novalu" in OPT: a("s_nop 0"); return
        a(f"v_exp_f32 v{VU+k}, v{d+k}")
    def pk(d, e):
        t = d + 2*e; u = VU + 2*e
        if "x_novalu" in OPT: return
        if not safe:
            a(f"""
            v_pk_fma_f32 v[{VA}:{VA+1}], v[{t}:{t+1}], v[{DEN}:{DEN+1}], v[{NUM}:{NUM+1}]
            v_pk_fma_f32 v[{DEN}:{DEN+1}], v[{DEN}:{DEN+1}], v[{u}:{u+1}], v[{DEN}:{DEN+1}]
            v_pk_fma_f32 v[{NUM}:{NUM+1}], v[{NUM}:{NUM+1}], v[{u}:{u+1}], v[{VA}:{VA+1}]
            """)
        else:
            a(f"""
            v_pk_add_f32 v[{u}:{u+1}], v[{u}:{u+1}], 1.0 op_sel_hi:[1,0]
            v_rcp_f32 v{u}, v{u}
            v_rcp_f32 v{u+1}, v{u+1}
            s_nop 0
            v_pk_fma_f32 v[{NUM}:{NUM+1}], v[{t}:{t+1}], v[{u}:{u+1}], v[{NUM}:{NUM+1}]
            """)
    def flush():
        if not safe:
            a(f"""
            v_rcp_f32 v{VU}, v{DEN}
            v_rcp_f32 v{VU+1}, v{DEN+1}
            v_max3_f32 v{MAXC}, v{MAXC}, v{DEN}, v{DEN+1}
            v_pk_mul_f32 v[{VA}:{VA+1}], v[{NUM}:{NUM+1}], v[{VU}:{VU+1}]
            v_mov_b64 v[{DEN}:{DEN+1}], s[{sONE}:{sONE+1}]
            v_mov_b64 v[{NUM}:{NUM+1}], 0
            v_cvt_f64_f32 v[{VU}:{VU+1}], v{VA}
            v_cvt_f64_f32 v[{VU+2}:{VU+3}], v{VA+1}
            v_pk_fma_f32 v[{NANC}:{NANC+1}], v[{VA}:{VA+1}], 0, v[{NANC}:{NANC+1}] op_sel_hi:[1,0,1]
            """)
        else:
            a(f"""
            v_cvt_f64_f32 v[{VU}:{VU+1}], v{NUM}
            v_cvt_f64_f32 v[{VU+2}:{VU+3}], v{NUM+1}
            v_mov_b64 v[{NUM}:{NUM+1}], 0
            """)
        a(f"ds_add_f64 v{AAD}, v[{VU}:{VU+1}] offset:{AGG}\nds_add_f64 v{AAD}, v[{VU+2}:{VU+3}] offset:{AGG+512}")
    def breads(slot, eoff):
        if "x_nolds" in OPT: return
        for q in range(4):
            a(f"ds_read_b64 v[{BP+2*q}:{BP+2*q+1}], v{PAD} offset:{slot*2048 + q*512}")
        a(f"""
        s_mov_b64 exec, s[{sM0}:{sM0+1}]
        ds_read_b64 v[{AE}:{AE+1}], v{EAD} offset:{ES+eoff}
        s_mov_b64 exec, s[{sM1}:{sM1+1}]
        ds_read_b64 v[{AE+2}:{AE+3}], v{EAD} offset:{ES+eoff}
        s_mov_b64 exec, -1
        """)
    def idxreads(soff):
        a(f"ds_read_u16 v{IX0}, v{SAD} offset:{SS+soff}\nds_read_u16 v{IX1}, v{SAD} offset:{SS+soff+8}")
    def qreads():
        for q in range(8):
            a(f"ds_read_b64 v[{QR+2*q}:{QR+2*q+1}], v{QAD} offset:{QS}")
    def mfma(d, k):
        if k == 0: a(f"v_mfma_f32_32x32x16_bf16 v[{d}:{d+15}], v[{AE}:{AE+3}], v[{W3}:{W3+3}], v[{QR}:{QR+15}]")
        else: a(f"v_smfmac_f32_32x32x32_bf16 v[{d}:{d+15}], v[{ID}:{ID+3}], v[{BP}:{BP+7}], v{ID+4}")
    def dma(slot, f1="s_nop 0"):
        if "x_nodma" in OPT: a(f1); return
        a(f"""
        s_mov_b32 m0, s{sRING+slot}
        {f1}
        buffer_load_dwordx4 v[{IX0}:{IX0+1}], s[{sP}:{sP+3}], 0 idxen offen sc1 lds
        buffer_load_dwordx4 v[{IX1}:{IX1+1}], s[{sP2}:{sP2+3}], 0 idxen offen offset:1024 sc1 lds
        """)
    def advance(rdst, ndst, nsrc):
        a(f"""
        s_bitset0_b64 s[{sNZ}:{sNZ+1}], s{nsrc}
        s_ff1_i32_b64 s{ndst}, s[{sNZ}:{sNZ+1}]
        v_readlane_b32 s{rdst}, v{NCNT}, s{ndst}
        v_lshl_add_u32 v{QAD}, s{ndst}, 9, v{L8}
        """)
        qreads()
    def tree(name, labels):
        a(f"""
{name}:
        s_cmp_gt_u32 s{sCNT}, 3
        s_cbranch_scc1 {name}_H
        s_cmp_eq_u32 s{sCNT}, 2
        s_cbranch_scc1 {labels[2]}
        s_cmp_eq_u32 s{sCNT}, 3
        s_cbranch_scc1 {labels[3]}
        s_branch {labels[1]}
{name}_H:
        s_cmp_gt_u32 s{sCNT}, 5
        s_cbranch_scc1 {name}_HH
        s_cmp_eq_u32 s{sCNT}, 4
        s_cbranch_scc1 {labels[4]}
        s_branch {labels[5]}
{name}_HH:
        s_cmp_eq_u32 s{sCNT}, 6
        s_cbranch_scc1 {labels[6]}
        s_branch {labels[7]}
        """)
    R = (sREM, sREM+1); Nn = (sNODE, sNODE+1)
    a(f"{L}_START:")
    idxreads(0)
    a(f"""
    s_setprio 3
    s_mov_b32 s{sEV}, {int(OPT.get("ev", 6))}
    v_mov_b64 v[{DEN}:{DEN+1}], s[{sONE}:{sONE+1}]
    v_mov_b64 v[{NUM}:{NUM+1}], 0
    s_waitcnt lgkmcnt(0)
    """)
    dma(0)
    idxreads(16)
    qreads()
    a("s_waitcnt lgkmcnt(8)")
    dma(1)
    idxreads(32)
    a("s_waitcnt vmcnt(2)")
    breads(0, 0)
    a("s_waitcnt lgkmcnt(0)\n@stamp 9")
    dma(0)
    for k in range(2): mfma(D0, k)
    a("s_waitcnt vmcnt(2)")
    breads(1, 64)
    idxreads(48)
    a(f"""
    s_mov_b32 s{Nn[1]}, s{Nn[0]}
    s_sub_u32 s{R[1]}, s{R[0]}, 8
    s_cmp_le_u32 s{R[0]}, 8
    s_cbranch_scc0 {L}_L0B
    """)
    advance(R[1], Nn[1], Nn[0])
    a(f"s_branch {L}_L0B")
    def xphase(b, lab):
        dc, dn = (D0, D1) if b == 0 else (D1, D0)
        mfma(dn, 0)
        for e in range(7, -1, -1):
            if lab and e < 7: a(f"{L}_X{b}_{e+1}:")
            if e == 2: mfma(dn, 1)
            ex(dc, 2*e+1); ex(dc, 2*e)
    def mid(b, tag):
        a("s_waitcnt vmcnt(2)")
        breads(b, 64*(b+2))
        idxreads(16*(b+4))
        a(f"""
        s_mov_b32 s{Nn[b]}, s{Nn[1-b]}
        s_sub_u32 s{R[b]}, s{R[1-b]}, 8
        s_cmp_le_u32 s{R[1-b]}, 8
        s_cbranch_scc1 {L}_ADV{tag}{b}
{L}_BACK{tag}{b}:
        """)
    def yphase(b, lab):
        dc = D0 if b == 0 else D1
        for e in range(7, -1, -1):
            if lab and e < 7: a(f"{L}_Y{b}_{e+1}:")
            pk(dc, e)
    for b in range(2):
        dc, dn = (D0, D1) if b == 0 else (D1, D0)
        a(f"""
{L}_EVT{b}:
        s_setprio 2
        s_mov_b32 s{sEV}, 3
        s_cmp_ge_u32 s{sLEFT}, 3
        s_cbranch_scc1 {L}_DMA{b}
        s_setprio 1
        s_cmp_lg_u32 s{sLEFT}, 0
        s_cbranch_scc1 {L}_PR{b}
        s_setprio 0
        s_min_u32 s{R[b]}, s{R[b]}, 8
{L}_PR{b}:
        s_waitcnt vmcnt(0)
        s_cmp_le_u32 s{R[b]}, 8
        s_branch {L}_XB{b}
        """)
        for tag in "PE":
            a(f"{L}_ADV{tag}{b}:")
            advance(R[b], Nn[b], Nn[1-b])
            a(f"s_branch {L}_BACK{tag}{b}")
        tree(f"{L}_XD{b}", {c: f"{L}_XS{b}_{c}" for c in range(1, 8)})
        for c in range(1, 8):
            a(f"{L}_XS{b}_{c}:")
            mfma(dn, 0)
            if c <= 2: mfma(dn, 1)
            a(f"s_branch {L}_X{b}_{c}")
        tree(f"{L}_YD{b}", {c: f"{L}_Y{b}_{c}" for c in range(1, 8)})
        a(f"""
{L}_END{b}:
        s_mov_b32 s{sCNT}, s{R[b]}
        s_cmp_lt_u32 s{R[b]}, 8
        s_cbranch_scc1 {L}_XD{b}
        """)
        xphase(b, True)
        mid(b, "E")
        a(f"s_cmp_lt_u32 s{sCNT}, 8\ns_cbranch_scc1 {L}_YD{b}")
        yphase(b, True)
        flush()
        a(f"""
        s_cmp_eq_u32 s{sLEFT}, 0
        s_cbranch_scc1 K2_MAINDONE
        v_lshl_add_u32 v{AAD}, s{Nn[1-b]}, 10, v{L8}
        s_branch {L}_L{1-b}
        """)
    for b in range(2):
        a(f"{L}_L{b}:")
        if b == 0:
            a(f"v_add_u32 v{EAD}, 128, v{EAD}\nv_add_u32 v{SAD}, 32, v{SAD}\n{L}_L0B:")
        a(f"""
        s_sub_u32 s{sLEFT}, s{sLEFT}, 1
        s_cmp_lt_u32 s{sLEFT}, s{sEV}
        s_waitcnt lgkmcnt(0)
        s_cbranch_scc1 {L}_EVT{b}
{L}_DMA{b}:
        """)
        dma(1-b, f"s_cmp_le_u32 s{R[b]}, 8")
        a(f"{L}_XB{b}:\ns_cbranch_scc1 {L}_END{b}")
        xphase(b, False)
        mid(b, "P")
        yphase(b, False)
        if b == 1: a(f"s_branch {L}_L0")

def consts(a):
    a(f"""
    ; m = l&31, hk = l>>5, e = 2*(m>>3) + ((m>>1)&1), H = (m>>2)&1, c0 = m&1
    v_lshlrev_b32 v{L8}, 3, v{VL}
    v_lshlrev_b32 v{IX0+1}, 4, v{VJ}
    v_lshlrev_b32 v{IX1+1}, 4, v{VJ}
    v_lshlrev_b32 v{G2}, 1, v{VG}
    v_lshrrev_b32 v1, 5, v{VL}
    v_bfe_u32 v2, v{VL}, 2, 1
    v_and_b32 v3, 1, v{VL}
    v_bfe_u32 v4, v{VL}, 1, 1
    v_bfe_u32 v5, v{VL}, 3, 2
    v_lshl_add_u32 v5, v5, 1, v4
    v_mov_b64 v[{AE}:{AE+1}], 0
    v_mov_b64 v[{AE+2}:{AE+3}], 0
    v_xor_b32 v{ID}, v1, v2
    v_lshl_add_u32 v{ID}, v{ID}, 1, v3
    v_cmp_eq_u32 s[{sM0}:{sM0+1}], 0, v{ID}
    v_cmp_eq_u32 s[{sM1}:{sM1+1}], 1, v{ID}
    v_lshlrev_b32 v{E8}, 3, v5
    v_lshrrev_b32 v{ID+1}, 2, v5
    v_cmp_eq_u32 vcc, v1, v{ID+1}
    v_bfe_u32 v5, v5, 1, 1
    v_lshl_add_u32 v5, v4, 1, v5
    v_lshl_add_u32 v2, v2, 1, v3
    v_cndmask_b32 v3, 0, v{W3}, vcc
    v_lshlrev_b32 v4, 2, v5
    v_lshlrev_b32 v{ID+4}, v4, v2
    """)
    for q in range(4): a(f"v_cmp_eq_u32 s[{sCM + 2*q}:{sCM + 2*q + 1}], {q}, v5")
    a(f"v_lshrrev_b32 v1, 2, v{TID}\nv_and_b32 v2, 3, v{TID}")
    for q in range(4): a(f"v_cndmask_b32 v{ID+q}, 0, v3, s[{sCM + 2*q}:{sCM + 2*q + 1}]")
    a(f"""
    s_movk_i32 s{sTMP}, {REC_STRIDE}
    v_mul_u32_u24 v3, s{sTMP}, v1
    v_mad_u32_u24 v{RAD}, v2, 12, v3
    s_lshl_b32 s{sTMP}, s{sG}, {11 if TGW else 3}
    s_add_u32 s{sTMP}, s{sTMP}, {WS_T}
    v_lshl_add_u32 v{AAD}, v1, {3 if TGW else 11}, s{sTMP}
    v_xor_b32 v1, v{VG}, v{VJ}
    v_lshlrev_b32 v1, 4, v1
    v_lshl_add_u32 v{VA}, v{VJ}, 8, v1
    v_xor_b32 v{VA+1}, 64, v{VA}
    v_xor_b32 v{VA+2}, 128, v{VA}
    v_xor_b32 v{VA+3}, 192, v{VA}
    v_bfe_u32 v1, v{VL}, 2, 2
    v_and_b32 v2, 1, v{VG}
    v_lshl_or_b32 v2, v2, 2, v1
    v_bfe_u32 v3, v{VL}, 1, 1
    v_lshl_or_b32 v2, v2, 1, v3
    v_and_b32 v3, 1, v{VL}
    v_lshl_or_b32 v2, v2, 1, v3
    v_lshl_add_u32 v1, v{VG}, 3, v1
    v_lshlrev_b32 v1, 8, v1
    v_lshl_add_u32 v{VA+4}, v2, 3, v1
    """)
def wdma(a, srd, soff, v=6):
    a(f"""
    buffer_load_dwordx4 v{v}, s[{srd}:{srd+3}], s{soff} offen lds
    buffer_load_dwordx4 v{v}, s[{srd}:{srd+3}], s{soff} offen offset:1024 lds
    buffer_load_dwordx4 v{v+1}, s[{srd}:{srd+3}], s{soff} offen offset:2048 lds
    buffer_load_dwordx4 v{v+1}, s[{srd}:{srd+3}], s{soff} offen offset:3072 lds
    """)
def w2job(a, sj):
    a(f"""
    s_lshl_b32 s{sTMP}, s{sj}, 12
    s_add_u32 s{sTMP+1}, s{sTMP}, 32768
    s_sub_u32 s{sTMP+2}, s{sTMP}, 32768
    s_add_u32 s{sTMP+3}, s{sTMP}, {W2S}
    s_add_u32 s{sTMP}, s{sTMP+2}, {WTS}
    s_cmp_lt_u32 s{sj}, 8
    s_cselect_b32 s{sW2}, s12, s14
    s_cselect_b32 s{sW2+1}, s13, s15
    s_cselect_b32 s{sW2O}, s{sTMP+1}, s{sTMP+2}
    s_cselect_b32 m0, s{sTMP+3}, s{sTMP}
    s_and_b32 s{sW2+1}, s{sW2+1}, 0xffff
    """)

def ugemm(a):
    for ks in range(4):
        a(f"ds_read_b128 v[{52+4*ks}:{55+4*ks}], v{VA+ks} offset:{XS}")
        for h in range(2):
            a(f"ds_read_b64_tr_b16 v[{16+4*ks+2*h}:{17+4*ks+2*h}], v{VA+4} offset:{8192*ks + 1024*h}")
    def um(rt, xb):
        for ks in range(4):
            c = "0" if ks == 0 else f"v[{UA+4*rt}:{UA+4*rt+3}]"
            a(f"v_mfma_f32_16x16x32_bf16 v[{UA+4*rt}:{UA+4*rt+3}], v[{16+4*ks}:{19+4*ks}], v[{xb[ks]}:{xb[ks]+3}], {c}")
    XB1 = (0, 4, 8, 68)
    for ks in range(4):
        a(f"ds_read_b128 v[{XB1[ks]}:{XB1[ks]+3}], v{VA+ks} offset:{XS + 4096}")
    a("s_waitcnt lgkmcnt(4)")
    um(0, (52, 56, 60, 64))
    for ks in range(4):
        a(f"ds_read_b128 v[{52+4*ks}:{55+4*ks}], v{VA+ks} offset:{XS + 8192}")
    a("s_waitcnt lgkmcnt(4)")
    um(1, XB1)
    a("s_waitcnt lgkmcnt(0)")
    um(2, (52, 56, 60, 64))
    a(f"s_mov_b32 s{sTMP+2}, {NLOG2E:#x}\ns_nop 2")
    for q in range(6):
        if q == 4: a("s_nop 1")
        a(f"v_pk_mul_f32 v[{UA+2*q}:{UA+2*q+1}], v[{UA+2*q}:{UA+2*q+1}], s[{sTMP+2}:{sTMP+3}] op_sel_hi:[1,0]")

def kernel():
    a = Asm()
    a(f"""
{KN}:
    s_cmp_ge_u32 s2, {NG}
    s_cbranch_scc1 K_END
    @rt 0
    @stamp 1
    s_load_dwordx16 s[4:19], s[0:1], 0
    s_load_dwordx2 s[{sWS}:{sWS+1}], s[0:1], 64
    v_mov_b32 v{TID}, v0
    v_lshrrev_b32 v1, 6, v0
    v_and_b32 v{VL}, 63, v0
    v_readfirstlane_b32 s{sWV}, v1
    s_and_b32 s{sG}, s2, 7
    s_lshl_b32 s{sG}, s{sG}, 5
    s_lshr_b32 s3, s2, 3
    s_or_b32 s{sG}, s{sG}, s3
    v_lshrrev_b32 v{VG}, 4, v{VL}
    v_and_b32 v{VJ}, 15, v{VL}
    s_mul_i32 s3, s{sG}, 625
    s_add_u32 s{sSTART}, s3, 15
    s_lshr_b32 s{sSTART}, s{sSTART}, 4
    s_add_u32 s{sEND}, s3, {625+15}
    s_lshr_b32 s{sEND}, s{sEND}, 4
    v_mov_b32 v{W3}, 0x3f80
    s_cmp_ge_u32 s{sWV}, 5
    s_cbranch_scc1 A_N1
    s_cmp_lt_u32 s{sG}, {NPROD}
    s_cselect_b32 s3, s{sG}, 0
    s_cselect_b64 s[{sEX}:{sEX+1}], -1, 0
    s_mul_i32 s3, s3, {EPW*4}
    v_lshl_add_u32 v8, v0, 4, s3
    v_lshlrev_b32 v9, 1, v8
    s_lshl_b32 s{sTMP}, s{sWV}, 3
    v_add_u32 v1, s{sTMP}, v{VG}
    v_xor_b32 v2, v1, v{VJ}
    v_and_b32 v2, 15, v2
    v_lshlrev_b32 v2, 4, v2
    v_lshl_add_u32 v2, v1, 8, v2
    v_xor_b32 v3, 64, v2
    s_lshl_b32 s{sTMP}, s{sWV}, 11
    s_add_u32 m0, s{sTMP}, {XS}
    s_lshl_b32 s{sTMP+2}, s{sSTART}, 8
    s_mov_b32 s{sX+2}, {N*256}
    s_mov_b32 s{sX+3}, 0x20000
    s_waitcnt lgkmcnt(0)
    global_load_dwordx4 v[12:15], v8, s[10:11]
    s_mov_b32 s{sX}, s4
    s_and_b32 s{sX+1}, s5, 0xffff
    buffer_load_dwordx4 v2, s[{sX}:{sX+3}], s{sTMP+2} offen lds
    buffer_load_dwordx4 v3, s[{sX}:{sX+3}], s{sTMP+2} offen offset:1024 lds
    s_movk_i32 s{sTMP}, 625
    s_mov_b32 s{sTMP+1}, 214749
    v_mov_b32 v1, 1
    v_lshlrev_b32 v10, 4, v{VL}
    @stamp 2
    s_barrier
    s_waitcnt vmcnt(2)
    global_load_dwordx4 v[16:19], v8, s[8:9]
    global_load_dwordx4 v[20:23], v9, s[6:7]
    global_load_dwordx4 v[24:27], v9, s[6:7] offset:16
    s_mov_b64 exec, s[{sEX}:{sEX+1}]
    """)
    for i in range(4):
        a(f"v_mul_u32_u24 v{28+i}, s{sTMP+1}, v{12+i}")
    for i in range(4):
        a(f"v_lshrrev_b32 v{28+i}, 23, v{28+i}\nv_lshlrev_b32 v{32+i}, 2, v{28+i}\nds_add_rtn_u32 v{36+i}, v{32+i}, v1 offset:{HIST}")
    for i in range(4):
        a(f"v_mad_u32_u24 v{28+i}, v{28+i}, s{sTMP}, 15\nv_lshrrev_b32 v{28+i}, 4, v{28+i}\nv_sub_u32 v{28+i}, v{12+i}, v{28+i}")
    a("s_mov_b64 exec, -1")
    consts(a)
    a(f"""
    s_waitcnt vmcnt(3) lgkmcnt(0)
    @stamp 3
    s_barrier
    ds_read_b128 v[40:43], v10 offset:{HIST}
    s_waitcnt lgkmcnt(0)
    v_add_u32 v44, v40, v41
    v_add3_u32 v44, v44, v42, v43
    v_mov_b32 v45, v44
    """)
    dpp_scan(a, 45)
    a(f"""
    v_sub_u32 v48, v45, v44
    v_add_u32 v49, v48, v40
    v_add_u32 v50, v49, v41
    v_add_u32 v51, v50, v42
    ds_write_b128 v10, v[48:51] offset:{OFFS}
    s_mov_b64 exec, s[{sEX}:{sEX+1}]
    s_mov_b32 s{sTMP}, {STAGE}
    s_waitcnt lgkmcnt(0)
    """)
    for i in range(4):
        a(f"ds_read_b32 v{40+i}, v{32+i} offset:{OFFS}")
    a("s_waitcnt vmcnt(2)")
    for i in range(4):
        a(f"v_lshl_or_b32 v{16+i}, v{28+i}, 18, v{16+i}")
    a("s_waitcnt vmcnt(0)")
    for i in range(4):
        a(f"""
        s_waitcnt lgkmcnt({3+i})
        v_add_u32 v{40+i}, v{40+i}, v{36+i}
        v_mad_u32_u24 v{40+i}, v{40+i}, 12, s{sTMP}
        ds_write2_b32 v{40+i}, v{20+2*i}, v{21+2*i} offset0:0 offset1:1
        ds_write_b32 v{40+i}, v{16+i} offset:8
        """)
    a(f"""
    s_mov_b64 exec, -1
    s_branch A_JOIN
A_N1:
    ; ================= waves 5..15
    v_lshlrev_b32 v6, 1, v{VG}
    v_xor_b32 v6, v6, v{VJ}
    v_lshlrev_b32 v6, 4, v6
    v_lshl_add_u32 v6, v{VG}, 8, v6
    v_xor_b32 v7, 128, v6
    v_mov_b32 v8, 0
    s_mov_b32 s{sW2+2}, 65536
    s_mov_b32 s{sW2+3}, 0x20000
    s_cmp_ge_u32 s{sWV}, 10
    s_cbranch_scc1 A_N10
    s_mov_b32 s{sTMP}, {HIST - 320*4}
    s_cmp_eq_u32 s{sWV}, 9
    s_cselect_b32 s{sTMP}, {CNT - 576*4}, s{sTMP}
    v_lshl_add_u32 v3, v0, 2, s{sTMP}
    v_mov_b32 v2, 0
    ds_write_b32 v3, v2
    ds_write_b32 v2, v2 offset:{FLG}
    ds_write_b32 v2, v2 offset:{FLG+4}
    s_branch A_B0
A_N10:
    s_cmp_ge_u32 s{sWV}, 14
    s_cbranch_scc1 A_N14
    v_lshlrev_b32 v3, 4, v0
    v_add_u32 v3, {SS - 640*16}, v3
    v_mov_b64 v[8:9], -1
    v_mov_b64 v[10:11], -1
    ds_write_b128 v3, v[8:11]
    s_branch A_B0
A_N14:
    s_and_b32 s{sTMP}, s{sG}, 31
    s_mul_i32 s{sTMP}, s{sTMP}, {17*128}
    v_lshl_add_u32 v3, v{VL}, 7, s{sTMP}
    v_min_u32 v3, {511*128}, v3
    s_waitcnt lgkmcnt(0)
    s_cmp_eq_u32 s{sWV}, 14
    s_cselect_b32 s{sTMP+2}, s12, s14
    s_cselect_b32 s{sTMP+3}, s13, s15
    s_mov_b64 exec, 0x1ffff
    global_load_dword v40, v3, s[{sTMP+2}:{sTMP+3}]
    s_mov_b64 exec, -1
    s_cbranch_scc1 A_B0
    s_cmp_lg_u32 s2, 0
    s_cbranch_scc1 A_B0
    s_memrealtime s[{sNON}:{sNON+1}]
    v_mov_b32 v8, 0
    s_waitcnt lgkmcnt(0)
    s_or_b32 s{sNON}, s{sNON}, 1
    v_mov_b32 v10, s{sNON}
    v_mov_b32 v11, s{sNON+1}
    s_mov_b64 exec, 1
    global_store_dwordx2 v8, v[10:11], s[18:19] sc1
    s_mov_b64 exec, -1
A_B0:
    s_sub_u32 s3, s{sWV}, 5
    s_lshl_b32 s{sTMP}, s3, 12
    s_add_u32 m0, s{sTMP}, {W1S}
    s_waitcnt lgkmcnt(0)
    s_mov_b32 s{sW2}, s12
    s_and_b32 s{sW2+1}, s13, 0xffff
    @stamp 2
    s_barrier
    s_cmp_ge_u32 s{sWV}, 13
    s_cbranch_scc1 A_NOW1
    """)
    wdma(a, sW2, sTMP)
    a(f"""
A_NOW1:
    """)
    if 'prew' in OPT:
        a(f"""
        s_sub_u32 s{sTMP}, s{sWV}, 13
        s_cmp_gt_u32 s{sTMP}, 1
        s_cbranch_scc1 A_NOPREW
        v_lshlrev_b32 v1, 4, v{TID}
        s_lshl_b32 s{sTMP}, s{sG}, 11
        s_add_u32 s{sTMP}, s{sTMP}, {WS_T - 832*16}
        v_add_u32 v1, s{sTMP}, v1
        v_mov_b64 v[2:3], 0
        v_mov_b64 v[4:5], 0
        """)
        for r in range(NREP):
            a(f"global_store_dwordx4 v1, v[2:5], s[{sWS}:{sWS+1}] sc1")
            if r < NREP - 1: a("v_add_u32 v1, 0x80000, v1")
        a("s_nop 1\nA_NOPREW:")
    a(f"""
    s_cmp_eq_u32 s{sWV}, 15
    s_cbranch_scc0 A_NO15
    v_bfe_u32 v9, v{VL}, 4, 1
    v_lshlrev_b32 v9, 6, v9
    v_lshrrev_b32 v10, 5, v{VL}
    v_lshl_add_u32 v9, v10, 5, v9
    v_add_u32 v9, v9, v{VJ}
    v_lshlrev_b32 v9, 1, v9
    v_add_u32 v8, {256*256}, v9
    """)
    for s in range(8):
        a(f"global_load_ushort v{16 + s}, v8, s[12:13] offset:{(s & 3)*256 + (s >> 2)*32}")
    a(f"""
    s_cmp_ge_u32 s{sG}, 32
    s_cbranch_scc1 A_NO15
    s_and_b32 s{sTMP}, s{sG}, 1
    s_lshl_b32 s{sTMP}, s{sTMP}, 3
    s_bfe_u32 s{sTMP+1}, s{sG}, 0x10001
    s_lshl_b32 s{sTMP+1}, s{sTMP+1}, 6
    s_add_u32 s{sTMP}, s{sTMP}, s{sTMP+1}
    s_add_u32 s{sTMP}, s{sTMP}, 128
    s_lshl_b32 s{sTMP}, s{sTMP}, 8
    s_bfe_u32 s{sTMP+1}, s{sG}, 0x30002
    s_lshl_b32 s{sTMP+1}, s{sTMP+1}, 5
    s_add_u32 s{sTMP}, s{sTMP}, s{sTMP+1}
    v_lshlrev_b32 v8, 9, v{VG}
    v_lshl_add_u32 v8, v{VJ}, 1, v8
    v_add_u32 v8, s{sTMP}, v8
    v_add_u32 v9, {32*256}, v8
    v_add_u32 v10, {16*256}, v8
    v_add_u32 v11, {48*256}, v8
    """)
    for s in range(8):
        a(f"global_load_ushort v{24 + s}, v{8 + (s >> 1)}, s[14:15] offset:{(s & 1)*256}")
    a("A_NO15:")
    consts(a)
    a(f"""
    s_cmp_ge_u32 s{sWV}, 11
    s_cbranch_scc1 A_G11
    ; ================= waves 5..10: P = -log2e * x @ W1 for this group's rows (rt = (wv-5)>>1, hf = (wv-5)&1)
    s_and_b32 s{sTMP+1}, s3, 1
    s_lshr_b32 s{sTMP}, s3, 1
    s_lshl_b32 s{sTMP+2}, s{sTMP}, 12
    v_add_u32 v0, s{sTMP+2}, v{VA}
    v_add_u32 v1, s{sTMP+2}, v{VA+1}
    v_add_u32 v2, s{sTMP+2}, v{VA+2}
    v_add_u32 v3, s{sTMP+2}, v{VA+3}
    s_lshl_b32 s{sTMP+1}, s{sTMP+1}, 7
    v_xor_b32 v4, s{sTMP+1}, v{VA+4}
    v_add_u32 v4, {W1S}, v4
    v_xor_b32 v5, 32, v4
    v_xor_b32 v6, 64, v4
    v_xor_b32 v7, 96, v4
    s_add_u32 s{sTMP+2}, s{sTMP+2}, s{sTMP+1}
    s_lshl_b32 s{sTMP+1}, s{sSTART}, 8
    s_add_u32 s{sTMP+2}, s{sTMP+2}, s{sTMP+1}
    v_lshlrev_b32 v{VA+5}, 10, v{VG}
    v_lshl_add_u32 v{VA+5}, v{VJ}, 3, v{VA+5}
    v_add_u32 v{VA+5}, s{sTMP+2}, v{VA+5}
    s_mov_b32 s{sTMP+2}, {NLOG2E:#x}
    s_waitcnt vmcnt(0)
    @stamp 3
    s_barrier
    s_setprio 1
    """)
    def breads(ks):
        b = 8 + 16*(ks & 1)
        a(f"ds_read_b128 v[{40+4*ks}:{43+4*ks}], v{ks} offset:{XS}")
        for i in range(4):
            for h in range(2):
                a(f"ds_read_b64_tr_b16 v[{b+4*i+2*h}:{b+4*i+2*h+1}], v{4+i} offset:{8192*ks + 1024*h}")
    breads(0)
    for ks in range(4):
        if ks < 3:
            breads(ks+1)
            a("s_waitcnt lgkmcnt(9)")
        else:
            a("s_waitcnt lgkmcnt(0)")
        b = 8 + 16*(ks & 1)
        for i in range(4):
            c = "0" if ks == 0 else f"v[{56+4*i}:{59+4*i}]"
            a(f"v_mfma_f32_16x16x32_bf16 v[{56+4*i}:{59+4*i}], v[{40+4*ks}:{43+4*ks}], v[{b+4*i}:{b+4*i+3}], {c}")
    a(f"""
    s_cmp_eq_u32 s{sTMP}, 2
    s_cselect_b32 exec_hi, 0, -1
    s_nop 5
    """)
    for q in range(8):
        a(f"v_pk_mul_f32 v[{56+2*q}:{57+2*q}], v[{56+2*q}:{57+2*q}], s[{sTMP+2}:{sTMP+3}] op_sel_hi:[1,0]")
    for r in range(4):
        a(f"v_cvt_pk_bf16_f32 v{8+2*r}, v{56+r}, v{60+r}\nv_cvt_pk_bf16_f32 v{9+2*r}, v{64+r}, v{68+r}")
        a(f"global_store_dwordx2 v{VA+5}, v[{8+2*r}:{9+2*r}], s[{sWS}:{sWS+1}] offset:{256*r} {PST_F}")
    a(f"""
    s_mov_b64 exec, -1
    s_setprio 0
    s_branch A_JOIN
A_G11:
    s_cmp_eq_u32 s{sWV}, 15
    s_cbranch_scc1 A_G15B
    v_lshlrev_b32 v1, 4, v{TID}
    v_add_u32 v1, {AGG - 704*16}, v1
    v_mov_b64 v[2:3], 0
    v_mov_b64 v[4:5], 0
    """)
    for k in range(10): a(f"ds_write_b128 v1, v[2:5] offset:{4096*k}")
    a(f"""
    s_waitcnt vmcnt(0)
    @stamp 3
    s_barrier
    s_branch A_JOIN
A_G15B:
    @stamp 3
    s_barrier
    v_mov_b32 v8, 0
    s_mov_b32 s{sSPIN}, {SPINMAX}
A_NLOOP:
    global_load_dwordx2 v[10:11], v8, s[18:19] sc1
    s_sub_u32 s{sSPIN}, s{sSPIN}, 1
    s_cbranch_scc1 A_NDONE
    s_waitcnt vmcnt(0)
    v_cmp_eq_u32 vcc, 0, v10
    s_cbranch_vccnz A_NLOOP
A_NDONE:
    s_waitcnt vmcnt(0)
    v_lshlrev_b32 v11, 22, v11
    ds_write_b64 v8, v[10:11] offset:{NON}
    s_mov_b32 s{sTMP}, {NLOG2E:#x}
    """)
    for s in range(8):
        a(f"v_lshlrev_b32 v{16+s}, 16, v{16+s}\nv_mul_f32 v{16+s}, s{sTMP}, v{16+s}")
    for q in range(4):
        a(f"v_cvt_pk_bf16_f32 v{12+q}, v{16+2*q}, v{17+2*q}")
    a(f"""
    v_lshlrev_b32 v8, 4, v{VL}
    ds_write_b128 v8, v[12:15] offset:{W3S}
    s_cmp_ge_u32 s{sG}, 32
    s_cbranch_scc1 A_JOIN
    """)
    for q in range(4):
        a(f"v_lshl_or_b32 v{32+q}, v{25+2*q}, 16, v{24+2*q}")
    a(f"""
    s_lshl_b32 s{sTMP}, s{sG}, 10
    s_add_u32 s{sTMP}, s{sTMP}, {WS_F}
    v_add_u32 v8, s{sTMP}, v8
    global_store_dwordx4 v8, v[32:35], s[{sWS}:{sWS+1}] sc1
A_JOIN:
    v_lshlrev_b32 v0, 4, v{TID}
    s_mul_i32 s{sTMP}, s{sG}, {REC_STRIDE}
    s_add_u32 s{sTMP}, s{sTMP}, {WS_REC}
    v_add_u32 v1, s{sTMP}, v0
    v_add_u32 v0, {STAGE}, v0
    v_mov_b32 v2, 0
    v_lshlrev_b32 v3, 4, v{VL}
    v_lshlrev_b32 v14, 1, v{VG}
    v_xor_b32 v14, v14, v{VJ}
    v_lshlrev_b32 v14, 4, v14
    v_lshl_add_u32 v14, v{VG}, 8, v14
    v_xor_b32 v15, 128, v14
    s_mov_b32 s{sW2+2}, 65536
    s_mov_b32 s{sW2+3}, 0x20000
    s_lshl_b32 s{sTMP}, s{sWV}, 5
    v_xor_b32 v{VA+4}, s{sTMP}, v{VA+4}
    v_add_u32 v{VA+5}, {W2S}, v{VA+4}
    v_add_u32 v{VA+4}, {WTS}, v{VA+4}
    s_waitcnt lgkmcnt(0)
    @stamp 4
    s_barrier
    s_cmp_eq_u32 s{sWV}, 15
    s_cbranch_scc1 A_C2
    ds_read_b128 v[4:7], v0
    s_waitcnt lgkmcnt(0)
    global_store_dwordx4 v1, v[4:7], s[{sWS}:{sWS+1}] sc1
A_C2:
    """)
    w2job(a, sWV)
    a(f"""
    s_barrier
    s_cmp_ge_u32 s{sWV}, 8
    s_cbranch_scc1 A_C3
    """)
    wdma(a, sW2, sW2O, 14)
    a(f"""
A_C3:
    ds_read_b64 v[{SAD}:{SAD+1}], v2 offset:{NON}
    ds_read_b128 v[{W3}:{W3+3}], v3 offset:{W3S}
    s_mov_b32 s{sO}, s16
    s_and_b32 s{sO+1}, s17, 0xffff
    s_lshl_b32 s{sO+2}, s{sEND}, 8
    s_mov_b32 s{sO+3}, 0x20000
    s_mov_b32 s{sP}, s{sWS}
    s_and_b32 s{sP+1}, s{sWS+1}, 0xffff
    s_or_b32 s{sP+1}, s{sP+1}, {256 << 16}
    s_mov_b32 s{sP+2}, {N}
    s_mov_b32 s{sP+3}, 0x20000
    s_sub_u32 s{sP2}, s{sWS}, 1024
    s_subb_u32 s{sP2+1}, s{sP+1}, 0
    s_mov_b32 s{sP2+2}, {N}
    s_mov_b32 s{sP2+3}, 0x20000
    s_add_u32 s{sREC}, s{sWS}, {WS_REC}
    s_addc_u32 s{sREC+1}, s{sWS+1}, 0
    s_and_b32 s{sREC+1}, s{sREC+1}, 0xffff
    s_mov_b32 s{sREC+2}, {NG*REC_STRIDE}
    s_mov_b32 s{sREC+3}, 0x20000
    s_mov_b32 s{sMODE}, 0
    s_mov_b32 s{sONE}, 1.0
    s_mov_b32 s{sONE+1}, 1.0
    s_waitcnt lgkmcnt(0)
    v_readfirstlane_b32 s{sNON}, v{SAD}
    v_readfirstlane_b32 s{sNON+1}, v{SAD+1}
    s_cmp_lt_u32 s{sWV}, 14
    s_cbranch_scc1 A_NOT
    ; waves 14, 15: granules (start | count<<11 | tag<<22, tag) of groups 2t, 2t+1 (t = tid - 896)
    v_lshlrev_b32 v8, 3, v{TID}
    ds_read_b64 v[10:11], v8 offset:{OFFS - 896*8}
    ds_read_b64 v[12:13], v8 offset:{HIST - 896*8}
    s_lshl_b32 s{sTMP}, s{sG}, {3 if TGW else 11}
    s_add_u32 s{sTMP}, s{sTMP}, {WS_T - 896*(4096 if TGW else 16)}
    v_lshl_add_u32 v8, v8, {9 if TGW else 1}, s{sTMP}
    v_mov_b32 v5, s{sNON}
    v_mov_b32 v7, s{sNON}
    s_waitcnt lgkmcnt(0)
    v_lshl_or_b32 v4, v12, 11, v10
    v_lshl_or_b32 v6, v13, 11, v11
    v_or_b32 v4, s{sNON+1}, v4
    v_or_b32 v6, s{sNON+1}, v6
A_NOT:
    s_cmp_lt_u32 s{sWV}, 8
    s_cbranch_scc1 A_WT4
    s_waitcnt vmcnt(0)
A_WT4:
    s_waitcnt vmcnt(4)
    @stamp 5
    s_barrier
    s_cmp_lt_u32 s{sWV}, 14
    s_cbranch_scc1 A_NOPUB
    """)
    for r in range(NREP):
        a(f"global_store_dwordx4 v8, v[4:7], s[{sWS}:{sWS+1}] sc1")
        if r < NREP - 1: a("v_add_u32 v8, 0x80000, v8")
    a(f"""
A_NOPUB:
    s_cmp_ge_u32 s{sWV}, 8
    s_cbranch_scc1 A_W2OK
    s_waitcnt vmcnt(0)
A_W2OK:
    s_barrier
    s_cbranch_scc0 A_Q
    """)
    wdma(a, sW2, sW2O, 14)
    a(f"""
A_Q:
    s_cbranch_scc1 A_NOQU
    """)
    QA = (64, 68, 94)
    for ks in range(4):
        a(f"ds_read_b128 v[{32+4*ks}:{35+4*ks}], v{VA+ks} offset:{XS}")
        for h in range(2):
            a(f"ds_read_b64_tr_b16 v[{16+4*ks+2*h}:{17+4*ks+2*h}], v{VA+5} offset:{8192*ks + 1024*h}")
    for rt in (1, 2):
        for ks in range(4):
            a(f"ds_read_b128 v[{(48 if rt == 1 else 0)+4*ks}:{(48 if rt == 1 else 0)+4*ks+3}], v{VA+ks} offset:{XS + 4096*rt}")
    for rt in range(3):
        a(f"s_waitcnt lgkmcnt({8 - 4*rt})")
        xb = (32, 48, 0)[rt]
        for ks in range(4):
            c = "0" if ks == 0 else f"v[{QA[rt]}:{QA[rt]+3}]"
            a(f"v_mfma_f32_16x16x32_bf16 v[{QA[rt]}:{QA[rt]+3}], v[{xb+4*ks}:{xb+4*ks+3}], v[{16+4*ks}:{19+4*ks}], {c}")
    a(f"""
    s_lshr_b32 s{sTMP}, s{sWV}, 2
    s_lshl_b32 s{sTMP}, s{sTMP}, 7
    s_bfe_u32 s{sTMP+1}, s{sWV}, 0x10001
    s_lshl_b32 s{sTMP+1}, s{sTMP+1}, 8
    s_add_u32 s{sTMP}, s{sTMP}, s{sTMP+1}
    s_and_b32 s{sTMP+1}, s{sWV}, 1
    s_lshl_b32 s{sTMP+1}, s{sTMP+1}, 2
    s_add_u32 s{sTMP}, s{sTMP}, s{sTMP+1}
    v_lshlrev_b32 v8, 11, v{VG}
    v_lshl_add_u32 v8, v{VJ}, 3, v8
    v_add_u32 v8, s{sTMP}, v8
    s_mov_b32 s{sTMP+2}, {NLOG2E:#x}
    """)
    for rt in range(3):
        for q in range(2):
            a(f"v_pk_mul_f32 v[{QA[rt]+2*q}:{QA[rt]+2*q+1}], v[{QA[rt]+2*q}:{QA[rt]+2*q+1}], s[{sTMP+2}:{sTMP+3}] op_sel_hi:[1,0]")
        if rt == 2: a("s_mov_b32 exec_hi, 0")
        for r in range(4):
            a(f"ds_write_b32 v8, v{QA[rt]+r} offset:{QS + rt*8192 + r*512}")
    a(f"""
    s_mov_b64 exec, -1
    """)
    if 'uearly' in OPT: ugemm(a)
    a(f"""
A_NOQU:
    s_lshl_b32 s{sRING}, s{sWV}, 12
    s_add_u32 s{sRING}, s{sRING}, {RING}
    s_add_u32 s{sRING+1}, s{sRING}, 2048
    v_add_u32 v{PAD}, s{sRING}, v{L8}
    s_and_b32 s{sRHO}, s{sWV}, 3
    s_lshl_b32 s{sRHO}, s{sRHO}, 2
    s_lshr_b32 s{sTMP}, s{sWV}, 2
    s_or_b32 s{sRHO}, s{sRHO}, s{sTMP}
    s_waitcnt vmcnt(0)
    @stamp 13
    {'s_barrier' if 'noqbar' not in OPT else ''}
    v_mov_b32 v16, v{AAD}
    """)
    if PFK:
        a(f"s_mov_b64 exec, {(1 << PFK) - 1:#x}\nglobal_load_dword v18, v17, s[{sWS}:{sWS+1}] sc1\ns_mov_b64 exec, -1")
    a(f"""
    s_mov_b32 s{sR0}, 0
    s_mov_b32 s{sR}, {RMAX}
    s_mov_b32 s{sFIRST}, 1
    v_mov_b64 v[{NANC}:{NANC+1}], 0
    v_mov_b32 v{MAXC}, 0
    s_mov_b32 s{sSPIN}, {SPINMAX}
    v_mov_b32 v19, 0x3fffff
    @stamp 6
    s_mov_b32 s{sEV}, {NREP - 1}
T_LOOP:
    global_load_dwordx2 v[20:21], v16, s[{sWS}:{sWS+1}] sc1
    s_sub_u32 s{sSPIN}, s{sSPIN}, 1
    s_cbranch_scc1 T_DONE
    s_cmp_eq_u32 s{sEV}, 0
    s_cbranch_scc1 T_LAST
    s_sub_u32 s{sEV}, s{sEV}, 1
    v_add_u32 v16, 0x80000, v16
T_LAST:
    s_waitcnt vmcnt(0)
    v_xor_b32 v{TW}, s{sNON+1}, v20
    v_cmp_ne_u32 vcc, s{sNON}, v21
    v_cmp_lt_u32 s[{sTMP}:{sTMP+1}], v19, v{TW}
    s_or_b64 exec, vcc, s[{sTMP}:{sTMP+1}]
    s_cbranch_scc0 T_DONE
    {f"s_sleep {OPT['sleep']}" if "sleep" in OPT else ""}
    s_branch T_LOOP
T_DONE:
    s_mov_b64 exec, -1
    s_waitcnt vmcnt(0)
    @stamp 7
K2_PASS:
    v_and_b32 v9, 0x7ff, v{TW}
    v_bfe_u32 v15, v{TW}, 11, 11
    s_lshl_b32 s{sTMP}, s{sR0}, 2
    v_add_u32 v9, s{sTMP}, v9
    v_mad_u32_u24 v9, v9, 12, v{RAD}
    s_add_u32 s{sTMP+1}, s{sR0}, s{sR}
    s_lshl_b32 s{sTMP+1}, s{sTMP+1}, 2
    v_min_u32 v10, s{sTMP+1}, v15
    v_and_b32 v11, 3, v{TID}
    v_add_u32 v11, s{sTMP}, v11
    v_sub_u32 v10, v10, v11
    """)
    for r in range(RMAX):
        a(f"v_cmp_lt_i32 s[{sEX+2*r}:{sEX+2*r+1}], {4*r}, v10")
    a(f"v_cmp_lt_u32 vcc, s{sTMP+1}, v15")
    for r in range(RMAX):
        a(f"s_mov_b64 exec, s[{sEX+2*r}:{sEX+2*r+1}]")
        if r >= 2: a("s_cbranch_execz K2_LD")
        a(f"buffer_load_dwordx3 v[{32+4*r}:{34+4*r}], v9, s[{sREC}:{sREC+3}], 0 offen offset:{48*r} sc1")
    a(f"""
K2_LD:
    s_mov_b64 exec, -1
    v_mov_b32 v13, 1
    v_lshrrev_b32 v14, 1, v{L8}
    s_cbranch_vccz K2_NOMORE
    v_mov_b32 v9, 0
    ds_write_b32 v9, v13 offset:{FLG}
K2_NOMORE:
    s_cmp_lt_u32 s{sWV}, 8
    s_cselect_b32 s{sTMP}, s{sFIRST}, 0
    s_cmp_eq_u32 s{sTMP}, 0
    s_mov_b32 s{sFIRST}, 0
    s_cbranch_scc1 K2_NOU
    """)
    if 'uearly' not in OPT: ugemm(a)
    a(f"""
K2_NOU:
    s_waitcnt vmcnt(0)
    @stamp 8
    """)
    if PF2:
        a(f"""
        s_and_b32 s{sTMP}, s{sG}, 31
        s_lshl_b32 s{sTMP}, s{sTMP}, 4
        s_add_u32 s{sTMP}, s{sTMP}, s{sWV}
        s_lshr_b32 s{sTMP+1}, s{sG}, 5
        s_lshl_b32 s{sTMP+1}, s{sTMP+1}, 6
        s_add_u32 s{sTMP}, s{sTMP}, s{sTMP+1}
        s_and_b32 s{sTMP}, s{sTMP}, 511
        s_mul_i32 s{sTMP}, s{sTMP}, {39*128}
        v_lshl_add_u32 v12, v{L8}, 4, s{sTMP}
        s_mov_b64 exec, {(1 << PF2) - 1:#x}
        global_load_dword v{VA+5}, v12, s[{sWS}:{sWS+1}] sc1
        """)
    a(f"""
    """)
    for r in range(RMAX):
        a(f"""
        s_mov_b64 exec, s[{sEX+2*r}:{sEX+2*r+1}]
        s_cbranch_execz K2_HD
        v_lshrrev_b32 v{r}, 16, v{34+4*r}
        ds_add_rtn_u32 v{35+4*r}, v{r}, v13 offset:{CNT}
        """)
    NPF = int(OPT.get("pf", 0))
    a("K2_HD:\ns_mov_b64 exec, -1")
    if NPF:
        a(f"""
        s_and_b32 s{sTMP}, s{sG}, 31
        s_mul_i32 s{sTMP}, s{sTMP}, 625
        s_mul_i32 s{sTMP+2}, s{sWV}, 40
        s_add_u32 s{sTMP}, s{sTMP}, s{sTMP+2}
        s_lshl_b32 s{sTMP}, s{sTMP}, 7
        v_lshl_add_u32 v12, v{L8}, 4, s{sTMP}
        v_min_u32 v12, {N*256 - 128}, v12
        """)
    a(f"""
    s_waitcnt lgkmcnt(0)
    s_barrier
    ds_read_b32 v{NCNT}, v14 offset:{CNT}
    """)
    if NPF:
        a(f"s_mov_b32 exec_hi, 0xff\nglobal_load_dword v{VA}, v12, s[{sWS}:{sWS+1}] sc1\ns_mov_b64 exec, -1")
    a(f"""
    s_waitcnt lgkmcnt(0)
    v_add_u32 v10, 7, v{NCNT}
    v_lshrrev_b32 v10, 3, v10
    v_cmp_ne_u32 s[{sNZ}:{sNZ+1}], 0, v{NCNT}
    v_mov_b32 v11, v10
    """)
    dpp_scan(a, 11)
    a(f"""
    v_sub_u32 v12, v11, v10
    v_lshlrev_b32 v15, 3, v12
    v_readlane_b32 s{sTT}, v11, 63
    """)
    for r in range(RMAX):
        a(f"ds_bpermute_b32 v{16+r}, v{r}, v15")
    a(f"""
    v_add_u32 v12, v15, v{NCNT}
    s_cmp_gt_u32 s{sTT}, {CAP//8}
    s_cbranch_scc1 K2_SHRINK
    s_mul_i32 s{sT0}, s{sTT}, s{sRHO}
    s_add_u32 s{sTMP}, s{sT0}, s{sTT}
    s_lshr_b32 s{sT0}, s{sT0}, 4
    s_lshr_b32 s{sTMP}, s{sTMP}, 4
    v_cmp_ge_u32 vcc, s{sT0}, v11
    s_sub_u32 s{sLEFT}, s{sTMP}, s{sT0}
    s_or_b32 s{sNZ+1}, s{sNZ+1}, 0xc0000000
    s_waitcnt lgkmcnt(0)
    """)
    for r in range(RMAX):
        a(f"""
        s_mov_b64 exec, s[{sEX+2*r}:{sEX+2*r+1}]
        s_cbranch_execz K2_SD
        v_add_lshl_u32 v10, v{16+r}, v{35+4*r}, 3
        v_add_lshl_u32 v9, v{16+r}, v{35+4*r}, 1
        ds_write_b64 v10, v[{32+4*r}:{33+4*r}] offset:{ES}
        ds_write_b16 v9, v{34+4*r} offset:{SS}
        """)
    a(f"""
K2_SD:
    s_mov_b64 exec, -1
    s_bcnt1_i32_b64 s{sNODE}, vcc
    s_min_u32 s{sNODE}, s{sNODE}, 61
    s_lshr_b64 s[{sNZ}:{sNZ+1}], s[{sNZ}:{sNZ+1}], s{sNODE}
    s_lshl_b64 s[{sNZ}:{sNZ+1}], s[{sNZ}:{sNZ+1}], s{sNODE}
    v_readlane_b32 s{sREM}, v12, s{sNODE}
    v_lshl_add_u32 v{QAD}, s{sNODE}, 9, v{L8}
    v_lshl_add_u32 v{AAD}, s{sNODE}, 10, v{L8}
    v_lshl_add_u32 v{EAD}, s{sT0}, 6, v{E8}
    v_lshl_add_u32 v{SAD}, s{sT0}, 4, v{G2}
    s_lshl_b32 s{sTMP}, s{sT0}, 3
    s_sub_u32 s{sREM}, s{sREM}, s{sTMP}
    s_waitcnt lgkmcnt(0)
    s_barrier
    @stamp 10
    s_cmp_eq_u32 s{sLEFT}, 0
    s_cbranch_scc1 K2_MAINDONE
    s_cmp_lg_u32 s{sMODE}, 0
    s_cbranch_scc1 S_START
    """)
    mainloop(a, False)
    a(f"""
K2_MAINDONE:
    @stamp 11
    s_waitcnt vmcnt(0)
    s_cmp_ge_u32 s{sWV}, 8
    s_cbranch_scc1 K2_NOFA
    s_lshl_b32 s{sTMP}, s{sWV}, 12
    s_add_u32 s{sTMP}, s{sTMP}, {WS_F}
    v_lshl_add_u32 v16, v{L8}, 1, s{sTMP}
    global_load_dwordx4 v[0:3], v16, s[{sWS}:{sWS+1}] sc1
    global_load_dwordx4 v[4:7], v16, s[{sWS}:{sWS+1}] offset:1024 sc1
    global_load_dwordx4 v[8:11], v16, s[{sWS}:{sWS+1}] offset:2048 sc1
    global_load_dwordx4 v[12:15], v16, s[{sWS}:{sWS+1}] offset:3072 sc1
K2_NOFA:
    v_mov_b32 v17, {f2u(2.0**120):#x}
    v_add_f32 v18, v{NANC}, v{NANC+1}
    v_cmp_nle_f32 vcc, v{MAXC}, v17
    v_cmp_u_f32 s[{sTMP}:{sTMP+1}], v18, v18
    v_mov_b32 v19, 0
    v_mov_b32 v20, 1
    s_or_b64 vcc, vcc, s[{sTMP}:{sTMP+1}]
    s_cbranch_scc0 K2_NOOVF
    ds_write_b32 v19, v20 offset:{FLG+4}
K2_NOOVF:
    v_lshrrev_b32 v21, 4, v{TID}
    v_and_b32 v22, 15, v{TID}
    v_lshlrev_b32 v23, 10, v21
    v_lshl_add_u32 v23, v22, 4, v23
    v_xor_b32 v24, v21, v22
    v_and_b32 v24, 15, v24
    v_lshlrev_b32 v24, 4, v24
    v_lshl_add_u32 v24, v21, 8, v24
    s_waitcnt lgkmcnt(0)
    s_barrier
    @stamp 12
    ds_read_b64 v[26:27], v19 offset:{FLG}
    s_cmp_ge_u32 s{sWV}, 10
    s_cbranch_scc1 K2_NOCV
    ds_read_b128 v[36:39], v23 offset:{AGG}
    ds_read_b128 v[40:43], v23 offset:{AGG+256}
    ds_read_b128 v[44:47], v23 offset:{AGG+512}
    ds_read_b128 v[48:51], v23 offset:{AGG+768}
    """)
    for q in range(4):
        a(f"s_waitcnt lgkmcnt({3-q})\nv_cvt_f32_f64 v{28+2*q}, v[{36+4*q}:{37+4*q}]\nv_cvt_f32_f64 v{29+2*q}, v[{38+4*q}:{39+4*q}]")
    for q in range(4):
        a(f"v_cvt_pk_bf16_f32 v{28+q}, v{28+2*q}, v{29+2*q}")
    a(f"""
    ds_write_b128 v24, v[28:31] offset:{ES}
K2_NOCV:
    s_waitcnt lgkmcnt(0)
    v_readfirstlane_b32 s{sTMP}, v26
    v_readfirstlane_b32 s{sTMP+1}, v27
    s_cmp_lg_u32 s{sTMP+1}, 0
    s_cbranch_scc1 K2_GOSAFE
K2_NOSAFE:
    s_cmp_lg_u32 s{sTMP}, 0
    s_cbranch_scc1 K2_NEXTPASS
    s_barrier
    s_cmp_ge_u32 s{sWV}, 10
    s_cbranch_scc1 K2_END2
    s_cmp_ge_u32 s{sWV}, 8
    s_cbranch_scc1 K2_OUT
    v_xor_b32 v64, v{VG}, v{VJ}
    v_lshlrev_b32 v64, 4, v64
    v_lshl_add_u32 v64, v{VJ}, 8, v64
    v_xor_b32 v65, 64, v64
    v_xor_b32 v66, 128, v64
    v_xor_b32 v67, 192, v64
    """)
    for rt in range(3):
        for ks in range(4):
            a(f"ds_read_b128 v[{16+16*rt+4*ks}:{19+16*rt+4*ks}], v{64+ks} offset:{ES + rt*4096}")
    a(f"""
    ; staging address: row*256 + ((2*ct + (g>>1)) ^ j)*16 + (g&1)*8, row = 16*rt + j
    s_lshl_b32 s{sTMP}, s{sWV}, 1
    v_lshrrev_b32 v68, 1, v{VG}
    v_or_b32 v68, s{sTMP}, v68
    v_xor_b32 v68, v68, v{VJ}
    v_and_b32 v69, 1, v{VG}
    v_lshl_or_b32 v68, v68, 1, v69
    v_lshlrev_b32 v68, 3, v68
    v_lshl_add_u32 v68, v{VJ}, 8, v68
    s_mov_b32 s{sTMP+2}, {f2u(-LOG2E/(1+float(OPT.get("eps", 0)))):#x}
    s_waitcnt vmcnt(0)
    """)
    for rt in range(3):
        for ks in range(4):
            a(f"s_waitcnt lgkmcnt({11 - 4*rt - ks})")
            a(f"v_mfma_f32_16x16x32_bf16 v[{UA+4*rt}:{UA+4*rt+3}], v[{4*ks}:{4*ks+3}], v[{16+16*rt+4*ks}:{19+16*rt+4*ks}], v[{UA+4*rt}:{UA+4*rt+3}]")
    a("s_nop 1")
    for rt in range(3):
        u = UA + 4*rt
        a(f"""
        v_exp_f32 v16, v{u}
        v_exp_f32 v17, v{u+1}
        v_exp_f32 v18, v{u+2}
        v_exp_f32 v19, v{u+3}
        v_pk_fma_f32 v[16:17], v[16:17], s[{sTMP+2}:{sTMP+3}], s[{sTMP+2}:{sTMP+3}] op_sel_hi:[1,0,0]
        v_pk_fma_f32 v[18:19], v[18:19], s[{sTMP+2}:{sTMP+3}], s[{sTMP+2}:{sTMP+3}] op_sel_hi:[1,0,0]
        v_rcp_f32 v16, v16
        v_rcp_f32 v17, v17
        v_rcp_f32 v18, v18
        v_rcp_f32 v19, v19
        v_pk_mul_f32 v[16:17], v[16:17], v[{u}:{u+1}]
        v_pk_mul_f32 v[18:19], v[18:19], v[{u+2}:{u+3}]
        v_cvt_pk_bf16_f32 v{20+2*rt}, v16, v17
        v_cvt_pk_bf16_f32 v{21+2*rt}, v18, v19
        ds_write_b64 v68, v[{20+2*rt}:{21+2*rt}] offset:{QS + rt*4096}
        """)
    a(f"""
K2_OUT:
    v_lshrrev_b32 v28, 4, v{TID}
    v_xor_b32 v29, v28, v{VJ}
    v_and_b32 v29, 15, v29
    v_lshlrev_b32 v29, 4, v29
    v_lshl_add_u32 v29, v28, 8, v29
    s_lshl_b32 s{sTMP}, s{sSTART}, 8
    v_lshl_add_u32 v30, v{TID}, 4, s{sTMP}
    s_waitcnt lgkmcnt(0)
    s_barrier
    ds_read_b128 v[32:35], v29 offset:{QS}
    s_waitcnt lgkmcnt(0)
    buffer_store_dwordx4 v[32:35], v30, s[{sO}:{sO+3}], 0 offen
K2_END2:
    @store {sWS} {TID} {WS_DIAG}
K_END:
    s_endpgm
K2_SHRINK:
    s_mov_b32 s{sR}, 1
    s_waitcnt lgkmcnt(0)
K2_REINIT:
    s_barrier
    v_lshrrev_b32 v9, 1, v{L8}
    v_mov_b32 v10, 0
    ds_write_b32 v9, v10 offset:{CNT}
    ds_write_b32 v10, v10 offset:{FLG}
    ds_write_b32 v10, v10 offset:{FLG+4}
    v_lshlrev_b32 v9, 2, v{TID}
    v_mov_b32 v10, -1
    ds_write_b32 v9, v10 offset:{SS}
    s_waitcnt lgkmcnt(0)
    s_barrier
    s_branch K2_PASS
K2_NEXTPASS:
    s_add_u32 s{sR0}, s{sR0}, s{sR}
    s_waitcnt vmcnt(0)
    s_branch K2_REINIT
K2_GOSAFE:
    s_cmp_lg_u32 s{sMODE}, 0
    s_cbranch_scc1 K2_NOSAFE
    s_mov_b32 s{sMODE}, 1
    s_waitcnt vmcnt(0)
    s_barrier
    s_mov_b32 s{sR0}, 0
    s_mov_b32 s{sR}, {RMAX}
    v_lshlrev_b32 v9, 4, v{TID}
    v_mov_b64 v[32:33], 0
    v_mov_b64 v[34:35], 0
    ds_write_b128 v9, v[32:35] offset:{AGG}
    ds_write_b128 v9, v[32:35] offset:{AGG+16384}
    v_add_u32 v9, 24576, v9
    ds_write_b128 v9, v[32:35] offset:{AGG}
    s_branch K2_REINIT
    """)
    mainloop(a, True)
    return a.text()

HEADER = """; Kernarg layout for this problem (72 bytes, ptrs only, base s[0:1]):
;          tagged granules).  Phase B: collect the group's edges, sort them by node, evaluate the messages
"""
def desc(name, vgpr, sgpr):
    return f""".p2align 6
.amdhsa_kernel {name}
  .amdhsa_next_free_vgpr {vgpr}
  .amdhsa_next_free_sgpr {sgpr}
  .amdhsa_accum_offset {(vgpr+3)//4*4}
  .amdhsa_group_segment_fixed_size 0
  .amdhsa_kernarg_size 72
  .amdhsa_user_sgpr_count 2
  .amdhsa_user_sgpr_kernarg_segment_ptr 1
  .amdhsa_system_sgpr_workgroup_id_x 1
.end_amdhsa_kernel
"""
def main():
    s = HEADER
    s += f"; @launch grid=({NG},1,1) block=(1024,1,1) lds={LDS_BYTES}\n"
    s += '.amdgcn_target "amdgcn-amd-amdhsa--gfx950"\n.text\n'
    s += f".globl {KN}\n.p2align 8\n.type {KN},@function\n" + kernel()
    s += '.section .rodata,"a"\n' + desc(KN, NVGPR, 100 if (DIAG or AMP) else 68)
    open(sys.argv[1], "w").write(s)
main()
```

```python
import sys, struct

N = 10000; E = 320000
NG = 256
EPW = 1280
NPROD = E // EPW
REC_STRIDE = EPW * 12
WS_REC = 0x280000
WS_T = 0x640000
WS_F = 0x6C0000
WS_DIAG = 0xB00000
LOG2E = 1.4426950408889634
def f2u(x): return struct.unpack("<I", struct.pack("<f", x))[0]
NLOG2E = f2u(-LOG2E)
OPT = dict(a.split("=") if "=" in a else (a, "1") for a in sys.argv[2:])
DIAG = "diag" in OPT
AMP = int(OPT.get("amp", 0))
PF1 = int(OPT.get("pf1", 4)); PF2 = int(OPT.get("pf2", 12))
W2E = "w2late" not in OPT
KN = "gather_scatter__mpnn_edge_mlp__graph_kernel"
SPINMAX = 400000
RMAX = 5
CAP = 2048

CNT = 0; FLG = 256; NON = 272
TF = 512
SS = 1024
XS = SS + CAP*2 + 256
QS = XS + 40*256
ES = QS + 40*512
AGG = ES + CAP*8
RING = AGG + 40*1024
LDS_BYTES = RING + 65536
W1S = RING; W2S = RING + 32768; WTS = RING
STAGE = QS; HIST = ES; OFFS = ES + 1024; W3S = ES + 2048
AB = ES; OUTS = QS
D0, D1, QR, VU, BP, AE, ID, W3 = 0, 16, 32, 48, 64, 72, 76, 84
VA, NUM, DEN, NANC, MAXC = 88, 90, 92, 94, 96
EAD, SAD, PAD, IX0, IX1, QAD, AAD, L8, NCNT, TID, TW, RAD, E8 = 97, 98, 99, 100, 102, 104, 105, 106, 107, 108, 109, 110, 111
G2 = 81; LQ = 82
XA, WA = 88, 92
VG, VJ, VL = 126, 127, 97
UA = (112, 116, 120)
NVGPR = 128
sREC = 4; sR0 = 8; sMODE = 9; sLEFT = 10; sCNT = 11
sK1 = 12; sK2 = 13; sNL = 14; sNC = 15; sNQ = 16; sR = 17; sNZ2 = 18
sWS = 20; sWV = 22; sSTART = 23; sX = 24; sP = 24; sO = 28
sNZ = 32; sM0 = 34; sM1 = 36; sONE = 38; sRING = 40; sRHO = 42; sW = 40
sTMP = 44; sEV = 48; sG = 49; sEX = 50; sCM = 52
sNON = 60; sEND = 62; sSPIN = 63; sP2 = 64; sANY = 68; sT0 = 70; sVT = 71
NSGPR = 72
WSOFF = f"s_add_u32 s{sWS}, s{sWS}, {int(OPT['wso']) << 20}\ns_addc_u32 s{sWS+1}, s{sWS+1}, 0" if 'wso' in OPT else ''
STF = OPT.get('stf', 'sc1').replace('+', ' ')
sST = 72

class Asm:
    def __init__(self): self.l = []
    def __call__(self, s):
        for ln in s.strip("\n").split("\n"):
            ln = ln.strip()
            if ln.startswith("@estamp"):
                if "epi" not in OPT: continue
                ln = ln.replace("@estamp", "@stamp")
            elif ln.startswith("@stamp") and "epi" in OPT and int(ln.split()[1]) in range(2, 10): continue
            if ln.startswith("@amp"):
                i = int(ln.split()[1])
                if AMP and i in (0, AMP): self(f"s_memrealtime s[{72+2*(i != 0)}:{73+2*(i != 0)}]\ns_waitcnt lgkmcnt(0)")
                continue
            if ln.startswith("@store") and AMP:
                self("""s_waitcnt vmcnt(0)
                @amp 9
                s_lshl_b32 s3, s22, 8
                s_or_b32 s3, s3, s2
                s_cmp_lg_u32 s3, """ + OPT.get("ampwg", "0") + """
                s_cbranch_scc1 AMP_DONE
                s_sub_u32 s74, s74, s72
                s_lshl_b32 s74, s74, 3
                s_memrealtime s[76:77]
                s_waitcnt lgkmcnt(0)
AMP_LOOP:
                s_memrealtime s[78:79]
                s_waitcnt lgkmcnt(0)
                s_sub_u32 s78, s78, s76
                s_cmp_lt_u32 s78, s74
                s_cbranch_scc1 AMP_LOOP
AMP_DONE:""")
                continue
            if ln.startswith("@stamp"):
                i = int(ln.split()[1])
                if DIAG and ("st" not in OPT or i in (0, 13) or str(i) in OPT["st"].split(",")): self(f"{'s_memrealtime' if OPT['diag'] == 'rt' or i in (0, 13) else 's_memtime'} s[{sST+2*i}:{sST+2*i+1}]\ns_waitcnt lgkmcnt(0)")
                continue
            if ln.startswith("@store"):
                if DIAG:
                    self(f"s_waitcnt vmcnt(0)\n@stamp 12\n@stamp 13\ns_mov_b64 exec, -1\nv_lshrrev_b32 v1, 6, v{TID}\ns_lshl_b32 s3, s2, 4\nv_add_u32 v1, s3, v1\nv_lshlrev_b32 v1, 6, v1\nv_add_u32 v1, {WS_DIAG}, v1")
                    for i in range(14): self(f"v_mov_b32 v2, s{sST+2*i}\nglobal_store_dword v1, v2, s[{sWS}:{sWS+1}] offset:{4*i}")
                continue
            if ln: self.l.append(ln if ln.endswith(":") else "    " + ln)
    def text(self): return "\n".join(self.l) + "\n"

def dpp_scan(a, v, fill=()):
    fill = list(fill)
    def pad():
        k = 0
        while k < 2 and fill: a(fill.pop(0)); k += 1
        if k < 2: a(f"s_nop {1-k}")
    for sh in (1, 2, 4, 8):
        pad(); a(f"v_add_u32_dpp v{v}, v{v}, v{v} row_shr:{sh} row_mask:0xf bank_mask:0xf bound_ctrl:0")
    pad(); a(f"v_add_u32_dpp v{v}, v{v}, v{v} row_bcast:15 row_mask:0xa bank_mask:0xf")
    pad(); a(f"v_add_u32_dpp v{v}, v{v}, v{v} row_bcast:31 row_mask:0xc bank_mask:0xf")
    for x in fill: a(x)

def mainloop(a, safe):
    L = "S" if safe else "F"
    def ex(d, k): a(f"v_exp_f32 v{VU+k}, v{d+k}")
    def pk(d, e):
        t = d + 2*e; u = VU + 2*e
        if not safe:
            a(f"""
            v_pk_fma_f32 v[{VA}:{VA+1}], v[{t}:{t+1}], v[{DEN}:{DEN+1}], v[{NUM}:{NUM+1}]
            v_pk_fma_f32 v[{DEN}:{DEN+1}], v[{DEN}:{DEN+1}], v[{u}:{u+1}], v[{DEN}:{DEN+1}]
            v_pk_fma_f32 v[{NUM}:{NUM+1}], v[{NUM}:{NUM+1}], v[{u}:{u+1}], v[{VA}:{VA+1}]
            """)
        else:
            a(f"""
            v_pk_add_f32 v[{u}:{u+1}], v[{u}:{u+1}], 1.0 op_sel_hi:[1,0]
            v_rcp_f32 v{u}, v{u}
            v_rcp_f32 v{u+1}, v{u+1}
            s_nop 0
            v_pk_fma_f32 v[{NUM}:{NUM+1}], v[{t}:{t+1}], v[{u}:{u+1}], v[{NUM}:{NUM+1}]
            """)
    def flush():
        if not safe:
            a(f"""
            v_rcp_f32 v{VU}, v{DEN}
            v_rcp_f32 v{VU+1}, v{DEN+1}
            v_max3_f32 v{MAXC}, v{MAXC}, v{DEN}, v{DEN+1}
            v_pk_mul_f32 v[{VA}:{VA+1}], v[{NUM}:{NUM+1}], v[{VU}:{VU+1}]
            v_mov_b64 v[{DEN}:{DEN+1}], s[{sONE}:{sONE+1}]
            v_mov_b64 v[{NUM}:{NUM+1}], 0
            v_cvt_f64_f32 v[{VU}:{VU+1}], v{VA}
            v_cvt_f64_f32 v[{VU+2}:{VU+3}], v{VA+1}
            v_pk_fma_f32 v[{NANC}:{NANC+1}], v[{VA}:{VA+1}], 0, v[{NANC}:{NANC+1}] op_sel_hi:[1,0,1]
            """)
        else:
            a(f"""
            v_cvt_f64_f32 v[{VU}:{VU+1}], v{NUM}
            v_cvt_f64_f32 v[{VU+2}:{VU+3}], v{NUM+1}
            v_mov_b64 v[{NUM}:{NUM+1}], 0
            """)
        a(f"ds_add_f64 v{AAD}, v[{VU}:{VU+1}] offset:{AGG}\nds_add_f64 v{AAD}, v[{VU+2}:{VU+3}] offset:{AGG+512}")
    def preads(slot):
        if "p2" in OPT:
            for q in range(2):
                a(f"ds_read2st64_b64 v[{BP+4*q}:{BP+4*q+3}], v{PAD} offset0:{slot*4 + 2*q} offset1:{slot*4 + 2*q + 1}")
            return
        for q in range(4):
            a(f"ds_read_b64 v[{BP+2*q}:{BP+2*q+1}], v{PAD} offset:{slot*2048 + q*512}")
    def ereads(v, off):
        a(f"""
        s_mov_b64 exec, s[{sM0}:{sM0+1}]
        ds_read_b64 v[{AE}:{AE+1}], v{v} offset:{ES+off}
        s_mov_b64 exec, s[{sM1}:{sM1+1}]
        ds_read_b64 v[{AE+2}:{AE+3}], v{v} offset:{ES+off}
        s_mov_b64 exec, -1
        """)
    def idxreads(v, off):
        a(f"ds_read_u16 v{IX0}, v{v} offset:{SS+off}\nds_read_u16 v{IX1}, v{v} offset:{SS+off+8}")
    def qreads(node):
        if "q2" in OPT:
            a(f"v_lshl_add_u32 v{QAD}, s{node}, 9, v{LQ}")
            for q in range(4):
                a(f"ds_read2_b64 v[{QR+4*q}:{QR+4*q+3}], v{QAD} offset0:0 offset1:0")
            return
        a(f"v_lshl_add_u32 v{QAD}, s{node}, 9, v{L8}")
        for q in range(8):
            a(f"ds_read_b64 v[{QR+2*q}:{QR+2*q+1}], v{QAD} offset:{QS}")
    def mfma(d, k):
        if k == 0: a(f"v_mfma_f32_32x32x16_bf16 v[{d}:{d+15}], v[{AE}:{AE+3}], v[{W3}:{W3+3}], v[{QR}:{QR+15}]")
        else: a(f"v_smfmac_f32_32x32x32_bf16 v[{d}:{d+15}], v[{ID}:{ID+3}], v[{BP}:{BP+7}], v{ID+4}")
    def dma(slot, f1="s_nop 0"):
        if "x_nodma" in OPT: a(f1); return
        a(f"""
        s_mov_b32 m0, s{sRING+slot}
        {f1}
        buffer_load_dwordx4 v[{IX0}:{IX0+1}], s[{sP}:{sP+3}], 0 idxen offen sc1 lds
        buffer_load_dwordx4 v[{IX1}:{IX1+1}], s[{sP2}:{sP2+3}], 0 idxen offen offset:1024 sc1 lds
        """)
    def qnext():
        a(f"s_bitset0_b64 s[{sNZ}:{sNZ+1}], s{sNQ}\ns_ff1_i32_b64 s{sNQ}, s[{sNZ}:{sNZ+1}]")
        qreads(sNQ)
    def tree(name, labels):
        a(f"""
{name}:
        s_cmp_gt_u32 s{sCNT}, 3
        s_cbranch_scc1 {name}_H
        s_cmp_eq_u32 s{sCNT}, 2
        s_cbranch_scc1 {labels[2]}
        s_cmp_eq_u32 s{sCNT}, 3
        s_cbranch_scc1 {labels[3]}
        s_branch {labels[1]}
{name}_H:
        s_cmp_gt_u32 s{sCNT}, 5
        s_cbranch_scc1 {name}_HH
        s_cmp_eq_u32 s{sCNT}, 4
        s_cbranch_scc1 {labels[4]}
        s_branch {labels[5]}
{name}_HH:
        s_cmp_eq_u32 s{sCNT}, 6
        s_cbranch_scc1 {labels[6]}
        s_branch {labels[7]}
        """)
    EV = int(OPT.get("ev", 5))
    a(f"{L}_START:")
    idxreads(SAD, 0)
    a(f"""
    ds_read_u8 v10, v9 offset:{TF}
    v_mov_b64 v[{DEN}:{DEN+1}], s[{sONE}:{sONE+1}]
    v_mov_b64 v[{NUM}:{NUM+1}], 0
    s_waitcnt lgkmcnt(1)
    """)
    dma(0)
    idxreads(SAD, 16)
    qreads(sNQ)
    a(f"""
    s_waitcnt lgkmcnt({4 if "q2" in OPT else 8})
    v_cmp_ne_u32 vcc, 0, v10
    """)
    dma(1)
    idxreads(SAD, 32)
    ereads(EAD, 0)
    a(f"""
    ; sK1: one bit per tile from the top (ends a node, or one of the last tiles), then a marker; sK2: tile + 2 starts a node;
    s_brev_b32 s{sK1}, vcc_lo
    s_lshl_b32 s{sK2}, s{sK1}, 1
    s_sub_u32 s{sTMP}, 32, s{sLEFT}
    s_lshr_b32 s{sNL}, s{sK1}, s{sTMP}
    s_lshl_b32 s{sK1}, s{sNL}, s{sTMP}
    s_sub_u32 s{sTMP}, s{sTMP}, 1
    s_lshl_b32 s{sTMP}, {((7 | (1 << EV)) << 1) | 1}, s{sTMP}
    s_or_b32 s{sK1}, s{sK1}, s{sTMP}
    s_waitcnt vmcnt(2)
    """)
    preads(0)
    a("s_waitcnt lgkmcnt(0)\n@stamp 9")
    dma(0)
    for k in range(2): mfma(D0, k)
    ereads(EAD, 64)
    idxreads(SAD, 48)
    a(f"s_bitcmp0_b32 vcc_lo, 0\ns_cbranch_scc1 {L}_S4")
    qnext()
    a(f"{L}_S4:\ns_waitcnt vmcnt(2)")
    preads(1)
    a(f"s_branch {L}_L0B")
    K2 = f"s_add_u32 s{sK2}, s{sK2}, s{sK2}"
    def xphase(b, lab):
        dc, dn = (D0, D1) if b == 0 else (D1, D0)
        mfma(dn, 0)
        for e in range(7, -1, -1):
            if lab and e < 7: a(f"{L}_X{b}_{e+1}:")
            if e == 2: mfma(dn, 1)
            ex(dc, 2*e+1); ex(dc, 2*e)
    def mid(b, tag):
        a("s_waitcnt vmcnt(2)")
        preads(b)
        if tag == "E": a(K2)
        a(f"s_cbranch_scc1 {L}_ADV{tag}{b}\n{L}_RB{tag}{b}:")
        ereads(EAD, 64*(b+2))
        idxreads(SAD, 16*(b+4))
    def yphase(b, lab):
        dc = D0 if b == 0 else D1
        for e in range(7, -1, -1):
            if lab and e < 7: a(f"{L}_Y{b}_{e+1}:")
            pk(dc, e)
    for b in range(2):
        dc, dn = (D0, D1) if b == 0 else (D1, D0)
        a(f"""
{L}_TAIL{b}:
        s_setprio 2
        s_cmp_ge_u32 s{sLEFT}, 3
        s_cbranch_scc1 {L}_TD{b}
        s_setprio 1
        s_cmp_lg_u32 s{sLEFT}, 0
        s_cbranch_scc1 {L}_T1{b}
        s_setprio 0
{L}_T1{b}:
        s_waitcnt vmcnt(0)
        s_branch {L}_T2{b}
{L}_TD{b}:
        """)
        dma(1-b)
        a(f"""
{L}_T2{b}:
        s_bitcmp1_b32 s{sNL}, s{sLEFT}
        s_cbranch_scc1 {L}_ENDN{b}
        s_mov_b32 s{sCNT}, 8
        s_cmp_eq_u32 s{sLEFT}, 0
        s_cbranch_scc1 {L}_X{b}_8
        {K2}
        s_branch {L}_XB{b}
        """)
        for tag in "PE":
            a(f"{L}_ADV{tag}{b}:")
            qnext()
            a(f"s_branch {L}_RB{tag}{b}")
        tree(f"{L}_XD{b}", {c: f"{L}_XS{b}_{c}" for c in range(1, 8)})
        for c in range(1, 8):
            a(f"{L}_XS{b}_{c}:")
            mfma(dn, 0)
            if c <= 2: mfma(dn, 1)
            a(f"s_branch {L}_X{b}_{c}")
        tree(f"{L}_YD{b}", {c: f"{L}_Y{b}_{c}" for c in range(1, 8)})
        a(f"""
{L}_SP{b}:
        s_ff1_i32_b32 s{sLEFT}, s{sK1}
        s_sub_u32 s{sLEFT}, 31, s{sLEFT}
        s_cmp_le_u32 s{sLEFT}, {EV}
        s_cbranch_scc1 {L}_TAIL{b}
        """)
        dma(1-b)
        a(f"""
{L}_ENDN{b}:
        v_readlane_b32 s{sCNT}, v{NCNT}, s{sNC}
        s_bitset0_b64 s[{sNZ2}:{sNZ2+1}], s{sNC}
        s_ff1_i32_b64 s{sNC}, s[{sNZ2}:{sNZ2+1}]
        s_cmp_lt_u32 s{sCNT}, 8
        s_cbranch_scc1 {L}_XD{b}
{L}_X{b}_8:
        """)
        xphase(b, True)
        mid(b, "E")
        a(f"s_cmp_lt_u32 s{sCNT}, 8\ns_cbranch_scc1 {L}_YD{b}")
        yphase(b, True)
        flush()
        a(f"""
        s_cmp_eq_u32 s{sLEFT}, 0
        s_cbranch_scc1 K_MAINDONE
        v_lshl_add_u32 v{AAD}, s{sNC}, 10, v{L8}
        s_branch {L}_L{1-b}
        """)
    for b in range(2):
        a(f"{L}_L{b}:")
        if b == 0:
            a(f"v_add_u32 v{EAD}, 128, v{EAD}\nv_add_u32 v{SAD}, 32, v{SAD}\n{L}_L0B:")
        a(f"""
        s_add_u32 s{sK1}, s{sK1}, s{sK1}
        s_waitcnt lgkmcnt(0)
        s_cbranch_scc1 {L}_SP{b}
        """)
        dma(1-b, K2)
        a(f"{L}_XB{b}:")
        xphase(b, False)
        mid(b, "P")
        yphase(b, False)
        if b == 1: a(f"s_branch {L}_L0")

def consts(a):
    a(f"""
    ; m = l&31, hk = l>>5, e = 2*(m>>3) + ((m>>1)&1), H = (m>>2)&1, c0 = m&1
    v_lshlrev_b32 v{L8}, 3, v{VL}
    v_add_u32 v{LQ}, {QS}, v{L8}
    v_lshlrev_b32 v{IX0+1}, 4, v{VJ}
    v_lshlrev_b32 v{IX1+1}, 4, v{VJ}
    v_lshlrev_b32 v{G2}, 1, v{VG}
    v_lshrrev_b32 v1, 5, v{VL}
    v_bfe_u32 v2, v{VL}, 2, 1
    v_and_b32 v3, 1, v{VL}
    v_bfe_u32 v4, v{VL}, 1, 1
    v_bfe_u32 v5, v{VL}, 3, 2
    v_lshl_add_u32 v5, v5, 1, v4
    v_mov_b64 v[{AE}:{AE+1}], 0
    v_mov_b64 v[{AE+2}:{AE+3}], 0
    v_xor_b32 v{ID}, v1, v2
    v_lshl_add_u32 v{ID}, v{ID}, 1, v3
    v_cmp_eq_u32 s[{sM0}:{sM0+1}], 0, v{ID}
    v_cmp_eq_u32 s[{sM1}:{sM1+1}], 1, v{ID}
    v_lshlrev_b32 v{E8}, 3, v5
    ; sparse selector: lane half e>>2, register q = 2*(e&1) + ((e>>1)&1) holds 1.0, index (2*H + c0) << 4*q
    v_lshrrev_b32 v{ID+1}, 2, v5
    v_cmp_eq_u32 vcc, v1, v{ID+1}
    v_bfe_u32 v5, v5, 1, 1
    v_lshl_add_u32 v5, v4, 1, v5
    v_lshl_add_u32 v2, v2, 1, v3
    v_cndmask_b32 v3, 0, v{W3}, vcc
    v_lshlrev_b32 v4, 2, v5
    v_lshlrev_b32 v{ID+4}, v4, v2
    """)
    for q in range(4): a(f"v_cmp_eq_u32 s[{sCM + 2*q}:{sCM + 2*q + 1}], {q}, v5")
    a(f"v_lshrrev_b32 v1, 2, v{TID}\nv_and_b32 v2, 3, v{TID}")
    for q in range(4): a(f"v_cndmask_b32 v{ID+q}, 0, v3, s[{sCM + 2*q}:{sCM + 2*q + 1}]")
    a(f"""
    s_movk_i32 s3, {REC_STRIDE}
    v_mul_u32_u24 v3, s3, v1
    v_mad_u32_u24 v{RAD}, v2, 12, v3
    s_lshl_b32 s3, s{sG}, 3
    s_add_u32 s3, s3, {WS_T}
    v_lshl_add_u32 v{AAD}, v1, 11, s3
    v_xor_b32 v1, v{VG}, v{VJ}
    v_lshlrev_b32 v1, 4, v1
    v_lshl_add_u32 v{XA}, v{VJ}, 8, v1
    v_xor_b32 v{XA+1}, 64, v{XA}
    v_xor_b32 v{XA+2}, 128, v{XA}
    v_xor_b32 v{XA+3}, 192, v{XA}
    v_bfe_u32 v1, v{VL}, 2, 2
    v_and_b32 v2, 1, v{VG}
    v_lshl_or_b32 v2, v2, 2, v1
    v_bfe_u32 v3, v{VL}, 1, 1
    v_lshl_or_b32 v2, v2, 1, v3
    v_and_b32 v3, 1, v{VL}
    v_lshl_or_b32 v2, v2, 1, v3
    v_lshl_add_u32 v1, v{VG}, 3, v1
    v_lshlrev_b32 v1, 8, v1
    v_lshl_add_u32 v{WA}, v2, 3, v1
    """)
def wlane(a, v):
    a(f"""
    v_lshlrev_b32 v{v}, 1, v{VG}
    v_xor_b32 v{v}, v{v}, v{VJ}
    v_lshlrev_b32 v{v}, 4, v{v}
    v_lshl_add_u32 v{v}, v{VG}, 8, v{v}
    v_xor_b32 v{v+1}, 128, v{v}
    """)
def wdma(a, soff, v):
    a(f"""
    buffer_load_dwordx4 v{v}, s[{sW}:{sW+3}], s{soff} offen lds
    buffer_load_dwordx4 v{v}, s[{sW}:{sW+3}], s{soff} offen offset:1024 lds
    buffer_load_dwordx4 v{v+1}, s[{sW}:{sW+3}], s{soff} offen offset:2048 lds
    buffer_load_dwordx4 v{v+1}, s[{sW}:{sW+3}], s{soff} offen offset:3072 lds
    """)
def mm16(a, d, x, w, swap=False, first=True):
    for ks in range(4):
        c = "0" if (ks == 0 and first) else f"v[{d}:{d+3}]"
        xa = f"v[{x+4*ks}:{x+4*ks+3}]"; wa = f"v[{w+4*ks}:{w+4*ks+3}]"
        a(f"v_mfma_f32_16x16x32_bf16 v[{d}:{d+3}], {wa if swap else xa}, {xa if swap else wa}, {c}")
def xreads(a, dst, off):
    for ks in range(4): a(f"ds_read_b128 v[{dst+4*ks}:{dst+4*ks+3}], v{XA+ks} offset:{off}")

def kernel():
    a = Asm()
    a(f"""
{KN}:
    s_cmp_ge_u32 s2, {NG}
    s_cbranch_scc1 K_END
    @stamp 0
    @stamp 1
    @amp 0
    s_load_dwordx16 s[4:19], s[0:1], 0
    s_load_dwordx2 s[{sWS}:{sWS+1}], s[0:1], 64
    v_mov_b32 v{TID}, v0
    v_lshrrev_b32 v1, 6, v0
    v_and_b32 v{VL}, 63, v0
    v_readfirstlane_b32 s{sWV}, v1
    s_and_b32 s{sG}, s2, 7
    s_lshl_b32 s{sG}, s{sG}, 5
    s_lshr_b32 s3, s2, 3
    s_or_b32 s{sG}, s{sG}, s3
    v_lshrrev_b32 v{VG}, 4, v{VL}
    v_and_b32 v{VJ}, 15, v{VL}
    s_mul_i32 s3, s{sG}, 625
    s_add_u32 s{sSTART}, s3, 15
    s_lshr_b32 s{sSTART}, s{sSTART}, 4
    s_add_u32 s{sEND}, s3, {625+15}
    s_lshr_b32 s{sEND}, s{sEND}, 4
    v_mov_b32 v{W3}, 0x3f80
    s_mov_b32 s{sW+2}, 65536
    s_mov_b32 s{sW+3}, 0x20000
    s_cmp_ge_u32 s{sWV}, 5
    s_cbranch_scc1 A_N1
    ; ================= waves 0..4: bin the edges [1280*g, 1280*g+1280) by destination group (4 edges per thread)
    s_cmp_lt_u32 s{sG}, {NPROD}
    s_cselect_b32 s3, s{sG}, 0
    s_cselect_b64 s[{sEX}:{sEX+1}], -1, 0
    s_mul_i32 s3, s3, {EPW*4}
    v_lshl_add_u32 v8, v0, 4, s3
    v_lshlrev_b32 v9, 1, v8
    s_lshl_b32 s{sTMP}, s{sWV}, 3
    v_add_u32 v1, s{sTMP}, v{VG}
    v_xor_b32 v2, v1, v{VJ}
    v_and_b32 v2, 15, v2
    v_lshlrev_b32 v2, 4, v2
    v_lshl_add_u32 v2, v1, 8, v2
    v_xor_b32 v3, 64, v2
    s_lshl_b32 s{sTMP}, s{sWV}, 11
    s_add_u32 m0, s{sTMP}, {XS}
    s_lshl_b32 s{sTMP+2}, s{sSTART}, 8
    s_mov_b32 s{sX+2}, {N*256}
    s_mov_b32 s{sX+3}, 0x20000
    s_waitcnt lgkmcnt(0)
    global_load_dwordx4 v[12:15], v8, s[10:11]
    {WSOFF}
    s_mov_b32 s{sX}, s4
    s_and_b32 s{sX+1}, s5, 0xffff
    buffer_load_dwordx4 v2, s[{sX}:{sX+3}], s{sTMP+2} offen lds
    buffer_load_dwordx4 v3, s[{sX}:{sX+3}], s{sTMP+2} offen offset:1024 lds
    s_barrier
    """)
    consts(a)
    a(f"""
    s_movk_i32 s{sTMP}, 625
    s_mov_b32 s{sTMP+1}, 214749
    v_mov_b32 v1, 1
    v_lshlrev_b32 v10, 4, v{VL}
    s_waitcnt vmcnt(2)
    global_load_dwordx4 v[16:19], v8, s[8:9]
    global_load_dwordx4 v[20:23], v9, s[6:7]
    global_load_dwordx4 v[24:27], v9, s[6:7] offset:16
    s_mov_b64 exec, s[{sEX}:{sEX+1}]
    """)
    for i in range(4):
        a(f"v_mul_u32_u24 v{28+i}, s{sTMP+1}, v{12+i}")
    for i in range(4):
        a(f"v_lshrrev_b32 v{28+i}, 23, v{28+i}\nv_lshlrev_b32 v{32+i}, 2, v{28+i}\nds_add_rtn_u32 v{36+i}, v{32+i}, v1 offset:{HIST}")
    a(f"""
    s_mov_b64 exec, -1
    s_waitcnt lgkmcnt(0)
    @stamp 2
    s_barrier
    ds_read_b128 v[40:43], v10 offset:{HIST}
    """)
    for i in range(4):
        a(f"v_mad_u32_u24 v{28+i}, v{28+i}, s{sTMP}, 15\nv_lshrrev_b32 v{28+i}, 4, v{28+i}\nv_sub_u32 v{28+i}, v{12+i}, v{28+i}")
    a(f"""
    s_waitcnt lgkmcnt(0)
    v_add_u32 v44, v40, v41
    v_add3_u32 v44, v44, v42, v43
    v_mov_b32 v45, v44
    """)
    dpp_scan(a, 45)
    a(f"""
    v_sub_u32 v48, v45, v44
    v_add_u32 v49, v48, v40
    v_add_u32 v50, v49, v41
    v_add_u32 v51, v50, v42
    ds_write_b128 v10, v[48:51] offset:{OFFS}
    s_mov_b32 s{sTMP}, {STAGE}
    s_mov_b64 exec, s[{sEX}:{sEX+1}]
    s_waitcnt lgkmcnt(0)
    """)
    for i in range(4):
        a(f"ds_read_b32 v{40+i}, v{32+i} offset:{OFFS}")
    a(f"""
    s_waitcnt vmcnt(3)
    @stamp 3
    s_barrier
    @amp 1
    s_waitcnt lgkmcnt(0)
    """)
    for i in range(4):
        a(f"v_add_u32 v{40+i}, v{40+i}, v{36+i}\nv_mad_u32_u24 v{40+i}, v{40+i}, 12, s{sTMP}")
    a("s_waitcnt vmcnt(2)")
    for i in range(4):
        a(f"v_lshl_or_b32 v{16+i}, v{28+i}, 18, v{16+i}\nds_write_b32 v{40+i}, v{16+i} offset:8")
    for i in range(4):
        if i % 2 == 0: a(f"s_waitcnt vmcnt({1 - i//2})")
        a(f"ds_write2_b32 v{40+i}, v{20+2*i}, v{21+2*i} offset0:0 offset1:1")
    a(f"""
    s_mov_b64 exec, -1
    s_branch A_JOIN
A_N1:
    ; ================= waves 5..15
    v_mov_b32 v8, 0
    """)
    wlane(a, 6)
    a(f"""
    s_sub_u32 s{sVT}, s{sWV}, 5
    s_lshl_b32 s{sVT}, s{sVT}, 12
    s_add_u32 m0, s{sVT}, {W1S}
    s_waitcnt lgkmcnt(0)
    s_mov_b32 s{sW}, s12
    s_and_b32 s{sW+1}, s13, 0xffff
    {WSOFF}
    s_cmp_ge_u32 s{sWV}, 13
    s_cbranch_scc1 A_N13
    """)
    if "w1late" not in OPT: wdma(a, sVT, 6)
    a(f"""
    s_cmp_ge_u32 s{sWV}, 10
    s_cbranch_scc1 A_N10
    ; waves 5..8: histogram = 0; wave 9: node counters and flags = 0
    s_mov_b32 s{sTMP+1}, {HIST - 320*4}
    s_cmp_eq_u32 s{sWV}, 9
    s_cselect_b32 s{sTMP+1}, {CNT - 576*4}, s{sTMP+1}
    v_lshl_add_u32 v3, v0, 2, s{sTMP+1}
    ds_write_b32 v3, v8
    ds_write_b32 v8, v8 offset:{FLG}
    ds_write_b32 v8, v8 offset:{FLG+4}
    s_cbranch_scc0 A_B0
    ds_write_b32 v3, v8 offset:{TF}
    s_branch A_B0
A_N13:
    s_cmp_eq_u32 s{sWV}, 15
    s_cbranch_scc1 A_N15
    s_and_b32 s{sTMP}, s{sG}, 31
    s_lshl_b32 s{sTMP}, s{sTMP}, 10
    s_cmp_eq_u32 s{sWV}, 13
    s_cselect_b32 s{sTMP+1}, 32768, 0
    s_cselect_b32 s{sTMP+2}, s12, s14
    s_cselect_b32 s{sTMP+3}, s13, s15
    s_add_u32 s{sTMP}, s{sTMP}, s{sTMP+1}
    v_lshl_add_u32 v3, v{VL}, 7, s{sTMP}
    s_mov_b64 exec, 0xff
    global_load_dword v40, v3, s[{sTMP+2}:{sTMP+3}]
    s_mov_b64 exec, -1
    s_cmp_eq_u32 s{sWV}, 14
    s_cbranch_scc1 A_B0
A_N10:
    ; waves 10..13: src list = 0xffff (index out of range)
    v_lshlrev_b32 v3, 4, v0
    v_add_u32 v3, {SS - 640*16}, v3
    v_mov_b64 v[12:13], -1
    v_mov_b64 v[14:15], -1
    ds_write_b128 v3, v[12:15]
    s_branch A_B0
A_N15:
    s_cmp_lg_u32 s2, 0
    s_cbranch_scc1 A_B0
    s_memrealtime s[{sNON}:{sNON+1}]
    s_waitcnt lgkmcnt(0)
    s_or_b32 s{sNON}, s{sNON}, 1
    v_mov_b32 v10, s{sNON}
    v_mov_b32 v11, s{sNON+1}
    s_mov_b64 exec, 1
    global_store_dwordx2 v8, v[10:11], s[18:19] sc1
    s_mov_b64 exec, -1
A_B0:
    s_cmp_eq_u32 s{sWV}, 15
    s_cbranch_scc1 A_B1
    v_lshlrev_b32 v3, 4, v0
    v_add_u32 v3, {AGG - 320*16}, v3
    v_mov_b64 v[12:13], 0
    v_mov_b64 v[14:15], 0
    ds_write_b128 v3, v[12:15]
    ds_write_b128 v3, v[12:15] offset:10240
    ds_write_b128 v3, v[12:15] offset:20480
    ds_write_b128 v3, v[12:15] offset:30720
A_B1:
    s_waitcnt lgkmcnt({"0" if "zearly" in OPT else "4"})
    s_barrier
    """)
    if "w1late" in OPT:
        a(f"s_cmp_ge_u32 s{sWV}, 13\ns_cbranch_scc1 A_NOW1")
        wdma(a, sVT, 6)
        a("A_NOW1:")
    a(f"""
    s_cmp_eq_u32 s{sWV}, 15
    s_cbranch_scc0 A_NO15
    v_bfe_u32 v9, v{VL}, 4, 1
    v_lshlrev_b32 v9, 6, v9
    v_lshrrev_b32 v10, 5, v{VL}
    v_lshl_add_u32 v9, v10, 5, v9
    v_add_u32 v9, v9, v{VJ}
    v_lshlrev_b32 v9, 1, v9
    v_add_u32 v8, {256*256}, v9
    """)
    for s in range(8):
        a(f"global_load_ushort v{16 + s}, v8, s[12:13] offset:{(s & 3)*256 + (s >> 2)*32}")
    a(f"""
    s_cmp_ge_u32 s{sG}, 32
    s_cbranch_scc1 A_NO15
    s_and_b32 s{sTMP}, s{sG}, 1
    s_lshl_b32 s{sTMP}, s{sTMP}, 3
    s_bfe_u32 s{sTMP+1}, s{sG}, 0x10001
    s_lshl_b32 s{sTMP+1}, s{sTMP+1}, 6
    s_add_u32 s{sTMP}, s{sTMP}, s{sTMP+1}
    s_add_u32 s{sTMP}, s{sTMP}, 128
    s_lshl_b32 s{sTMP}, s{sTMP}, 8
    s_bfe_u32 s{sTMP+1}, s{sG}, 0x30002
    s_lshl_b32 s{sTMP+1}, s{sTMP+1}, 5
    s_add_u32 s{sTMP}, s{sTMP}, s{sTMP+1}
    v_lshlrev_b32 v8, 9, v{VG}
    v_lshl_add_u32 v8, v{VJ}, 1, v8
    v_add_u32 v8, s{sTMP}, v8
    v_add_u32 v9, {32*256}, v8
    v_add_u32 v10, {16*256}, v8
    v_add_u32 v11, {48*256}, v8
    """)
    for s in range(8):
        a(f"global_load_ushort v{24 + s}, v{8 + (s >> 1)}, s[14:15] offset:{(s & 1)*256}")
    a(f"""
A_NO15:
    """)
    consts(a)
    a(f"""
    s_barrier
    s_cmp_ge_u32 s{sWV}, 11
    s_cbranch_scc1 A_G11
    ; ================= waves 5..10: P = -log2e * x @ W1 for this group's rows (rt = (wv-5)>>1, hf = (wv-5)&1)
    s_sub_u32 s3, s{sWV}, 5
    s_and_b32 s{sTMP+1}, s3, 1
    s_lshr_b32 s{sTMP}, s3, 1
    s_lshl_b32 s{sTMP+2}, s{sTMP}, 12
    v_add_u32 v0, s{sTMP+2}, v{XA}
    v_add_u32 v1, s{sTMP+2}, v{XA+1}
    v_add_u32 v2, s{sTMP+2}, v{XA+2}
    v_add_u32 v3, s{sTMP+2}, v{XA+3}
    s_lshl_b32 s{sTMP+1}, s{sTMP+1}, 7
    v_xor_b32 v4, s{sTMP+1}, v{WA}
    v_add_u32 v4, {W1S}, v4
    v_xor_b32 v5, 32, v4
    v_xor_b32 v6, 64, v4
    v_xor_b32 v7, 96, v4
    s_add_u32 s{sTMP+2}, s{sTMP+2}, s{sTMP+1}
    s_lshl_b32 s{sTMP+1}, s{sSTART}, 8
    s_add_u32 s{sTMP+2}, s{sTMP+2}, s{sTMP+1}
    v_lshlrev_b32 v{NANC}, 10, v{VG}
    v_lshl_add_u32 v{NANC}, v{VJ}, 3, v{NANC}
    v_add_u32 v{NANC}, s{sTMP+2}, v{NANC}
    s_mov_b32 s{sTMP+2}, {NLOG2E:#x}
    s_waitcnt vmcnt(0)
    @stamp 3
    s_barrier
    s_setprio 1
    """)
    def breads(ks):
        b = 8 + 16*(ks & 1)
        a(f"ds_read_b128 v[{40+4*ks}:{43+4*ks}], v{ks} offset:{XS}")
        for i in range(4):
            for h in range(2):
                a(f"ds_read_b64_tr_b16 v[{b+4*i+2*h}:{b+4*i+2*h+1}], v{4+i} offset:{8192*ks + 1024*h}")
    breads(0)
    for ks in range(4):
        if ks < 3:
            breads(ks+1)
            a("s_waitcnt lgkmcnt(9)")
        else:
            a("s_waitcnt lgkmcnt(0)")
        b = 8 + 16*(ks & 1)
        for i in range(4):
            c = "0" if ks == 0 else f"v[{56+4*i}:{59+4*i}]"
            a(f"v_mfma_f32_16x16x32_bf16 v[{56+4*i}:{59+4*i}], v[{40+4*ks}:{43+4*ks}], v[{b+4*i}:{b+4*i+3}], {c}")
    a(f"""
    s_cmp_eq_u32 s{sTMP}, 2
    s_cselect_b32 exec_hi, 0, -1
    s_nop 5
    """)
    for q in range(8):
        a(f"v_pk_mul_f32 v[{56+2*q}:{57+2*q}], v[{56+2*q}:{57+2*q}], s[{sTMP+2}:{sTMP+3}] op_sel_hi:[1,0]")
    for r in range(4):
        a(f"v_cvt_pk_bf16_f32 v{8+2*r}, v{56+r}, v{60+r}\nv_cvt_pk_bf16_f32 v{9+2*r}, v{64+r}, v{68+r}")
        a(f"global_store_dwordx2 v{NANC}, v[{8+2*r}:{9+2*r}], s[{sWS}:{sWS+1}] offset:{256*r} {STF}")
    a(f"""
    s_mov_b64 exec, -1
    s_setprio 0
    s_branch A_JOIN
A_G11:
    s_cmp_eq_u32 s{sWV}, 15
    s_cbranch_scc1 A_G15
    """)
    a(f"""
    s_waitcnt vmcnt(0)
    @stamp 3
    s_barrier
    s_branch A_JOIN
A_G15:
    @stamp 3
    s_barrier
    v_mov_b32 v8, 0
    s_mov_b32 s{sSPIN}, {SPINMAX}
A_NLOOP:
    global_load_dwordx2 v[10:11], v8, s[18:19] sc1
    s_sub_u32 s{sSPIN}, s{sSPIN}, 1
    s_cbranch_scc1 A_NDONE
    s_waitcnt vmcnt(0)
    v_cmp_eq_u32 vcc, 0, v10
    s_cbranch_vccnz A_NLOOP
A_NDONE:
    s_waitcnt vmcnt(0)
    v_lshlrev_b32 v11, 22, v11
    ds_write_b64 v8, v[10:11] offset:{NON}
    s_mov_b32 s{sTMP}, {NLOG2E:#x}
    """)
    for s in range(8):
        a(f"v_lshlrev_b32 v{16+s}, 16, v{16+s}\nv_mul_f32 v{16+s}, s{sTMP}, v{16+s}")
    for q in range(4):
        a(f"v_cvt_pk_bf16_f32 v{12+q}, v{16+2*q}, v{17+2*q}")
    a(f"""
    v_lshlrev_b32 v8, 4, v{VL}
    ds_write_b128 v8, v[12:15] offset:{W3S}
    s_cmp_ge_u32 s{sG}, 32
    s_cbranch_scc1 A_JOIN
    """)
    for q in range(4):
        a(f"v_lshl_or_b32 v{32+q}, v{25+2*q}, 16, v{24+2*q}")
    a(f"""
    s_lshl_b32 s{sTMP}, s{sG}, 10
    s_add_u32 s{sTMP}, s{sTMP}, {WS_F}
    v_add_u32 v8, s{sTMP}, v8
    global_store_dwordx4 v8, v[32:35], s[{sWS}:{sWS+1}] sc1
A_JOIN:
    v_lshlrev_b32 v0, 4, v{TID}
    s_mul_i32 s{sTMP}, s{sG}, {REC_STRIDE}
    s_add_u32 s{sTMP}, s{sTMP}, {WS_REC}
    v_add_u32 v1, s{sTMP}, v0
    s_waitcnt lgkmcnt(0)
    @stamp 4
    s_barrier
    @amp 2
    s_cmp_eq_u32 s{sWV}, 15
    s_cbranch_scc1 A_C2
    ds_read_b128 v[4:7], v0 offset:{STAGE}
    s_waitcnt lgkmcnt(0)
    global_store_dwordx4 v1, v[4:7], s[{sWS}:{sWS+1}] {STF}
A_C2:
    v_mov_b32 v2, 0
    v_lshlrev_b32 v3, 4, v{VL}
    ds_read_b64 v[{SAD}:{SAD+1}], v2 offset:{NON}
    ds_read_b128 v[{W3}:{W3+3}], v3 offset:{W3S}
    """)
    wlane(a, 14)
    a(f"""
    s_lshl_b32 s{sTMP}, s{sWV}, 12
    s_add_u32 s{sTMP+1}, s{sTMP}, 32768
    s_sub_u32 s{sTMP+2}, s{sTMP}, 32768
    s_add_u32 s{sTMP+3}, s{sTMP}, {W2S}
    s_add_u32 s{sTMP}, s{sTMP+2}, {WTS}
    s_cmp_lt_u32 s{sWV}, 8
    s_cselect_b32 s{sW}, s12, s14
    s_cselect_b32 s{sW+1}, s13, s15
    s_cselect_b32 s{sVT}, s{sTMP+1}, s{sTMP+2}
    s_cselect_b32 m0, s{sTMP+3}, s{sTMP}
    s_and_b32 s{sW+1}, s{sW+1}, 0xffff
    """)
    if W2E:
        a(f"s_barrier\ns_cmp_ge_u32 s{sWV}, 8\ns_cbranch_scc1 A_C4")
        wdma(a, sVT, 14)
        a("A_C4:")
    a(f"""
    s_mov_b32 s{sO}, s16
    s_and_b32 s{sO+1}, s17, 0xffff
    s_lshl_b32 s{sO+2}, s{sEND}, 8
    s_mov_b32 s{sO+3}, 0x20000
    s_mov_b32 s{sP}, s{sWS}
    s_and_b32 s{sP+1}, s{sWS+1}, 0xffff
    s_or_b32 s{sP+1}, s{sP+1}, {256 << 16}
    s_mov_b32 s{sP+2}, {N}
    s_mov_b32 s{sP+3}, 0x20000
    s_sub_u32 s{sP2}, s{sWS}, 1024
    s_subb_u32 s{sP2+1}, s{sP+1}, 0
    s_mov_b32 s{sP2+2}, {N}
    s_mov_b32 s{sP2+3}, 0x20000
    s_add_u32 s{sREC}, s{sWS}, {WS_REC}
    s_addc_u32 s{sREC+1}, s{sWS+1}, 0
    s_and_b32 s{sREC+1}, s{sREC+1}, 0xffff
    s_mov_b32 s{sREC+2}, {NG*REC_STRIDE}
    s_mov_b32 s{sREC+3}, 0x20000
    s_mov_b32 s{sMODE}, 0
    s_mov_b32 s{sR0}, 0
    s_mov_b32 s{sR}, {4*RMAX}
    s_mov_b32 s{sONE}, 1.0
    s_mov_b32 s{sONE+1}, 1.0
    s_mov_b32 s{sSPIN}, {SPINMAX}
    v_mov_b64 v[{NANC}:{NANC+1}], 0
    v_mov_b32 v{MAXC}, 0
    s_and_b32 s{sTMP}, s{sWV}, 7
    s_lshl_b32 s{sTMP}, s{sTMP}, 5
    v_xor_b32 v{WA}, s{sTMP}, v{WA}
    s_and_b32 s{sTMP}, s{sWV}, 8
    s_lshl_b32 s{sTMP}, s{sTMP}, 12
    s_add_u32 s{sTMP}, s{sTMP}, {WTS}
    v_add_u32 v{WA}, s{sTMP}, v{WA}
    s_bfe_u32 s{sTMP}, s{sWV}, 0x10002
    s_lshl_b32 s{sTMP}, s{sTMP}, 7
    s_bfe_u32 s{sTMP+1}, s{sWV}, 0x10001
    s_lshl_b32 s{sTMP+1}, s{sTMP+1}, 8
    s_add_u32 s{sTMP}, s{sTMP}, s{sTMP+1}
    s_and_b32 s{sTMP+1}, s{sWV}, 1
    s_lshl_b32 s{sTMP+1}, s{sTMP+1}, 2
    s_add_u32 s{sTMP}, s{sTMP}, s{sTMP+1}
    v_lshlrev_b32 v{QAD}, 11, v{VG}
    v_lshl_add_u32 v{QAD}, v{VJ}, 3, v{QAD}
    v_add_u32 v{QAD}, s{sTMP}, v{QAD}
    s_mov_b32 s{sTMP+2}, {NLOG2E:#x}
    s_waitcnt lgkmcnt(0)
    v_readfirstlane_b32 s{sNON}, v{SAD}
    v_readfirstlane_b32 s{sNON+1}, v{SAD+1}
    """)
    if PF1:
        a(f"""
        ; this CU's share of the first {512*PF1} lines of P (pulled into the L2 behind the publish; speed only)
        s_and_b32 s{sTMP}, s{sG}, 31
        s_lshl_b32 s{sTMP}, s{sTMP}, 4
        s_add_u32 s{sTMP}, s{sTMP}, s{sWV}
        s_lshr_b32 s{sTMP+1}, s{sG}, 5
        s_lshl_b32 s{sTMP+1}, s{sTMP+1}, 6
        s_add_u32 s{sTMP}, s{sTMP}, s{sTMP+1}
        s_and_b32 s{sTMP}, s{sTMP}, 511
        s_mul_i32 s{sTMP}, s{sTMP}, {PF1*128}
        v_lshl_add_u32 v3, v{L8}, 4, s{sTMP}
        """)
    a(f"""
    s_cmp_lt_u32 s{sWV}, 14
    s_cbranch_scc1 A_NOT
    ; waves 14, 15: granules (start | count<<11 | tag<<22, tag) of groups 2t, 2t+1 (t = tid - 896)
    v_lshlrev_b32 v8, 3, v{TID}
    ds_read_b64 v[10:11], v8 offset:{OFFS - 896*8}
    ds_read_b64 v[12:13], v8 offset:{HIST - 896*8}
    s_lshl_b32 s{sTMP}, s{sG}, 11
    s_add_u32 s{sTMP}, s{sTMP}, {WS_T - 896*16}
    v_lshl_add_u32 v8, v8, 1, s{sTMP}
    v_mov_b32 v5, s{sNON}
    v_mov_b32 v7, s{sNON}
    s_waitcnt lgkmcnt(0)
    v_lshl_or_b32 v4, v12, 11, v10
    v_lshl_or_b32 v6, v13, 11, v11
    v_or_b32 v4, s{sNON+1}, v4
    v_or_b32 v6, s{sNON+1}, v6
    s_waitcnt vmcnt(0)
    @stamp 5
    s_barrier
    global_store_dwordx4 v8, v[4:7], s[{sWS}:{sWS+1}] sc1
    s_branch A_PUB
A_NOT:
    """)
    if W2E: a(f"s_cmp_lt_u32 s{sWV}, 8\ns_cbranch_scc1 A_WT4\ns_waitcnt vmcnt(0)\nA_WT4:\ns_waitcnt vmcnt(4)")
    else: a("s_waitcnt vmcnt(0)")
    a(f"""
    @stamp 5
    s_barrier
A_PUB:
    s_barrier
    @amp 3
    """)
    if W2E: a(f"s_cmp_lt_u32 s{sWV}, 8\ns_cbranch_scc1 A_NOWT")
    wdma(a, sVT, 14)
    if W2E: a("A_NOWT:")
    if PF1:
        a(f"""
        s_mov_b64 exec, {(1 << PF1) - 1:#x}
        global_load_dword v2, v3, s[{sWS}:{sWS+1}] sc1
        s_mov_b64 exec, -1
        """)
    a(f"""
A_QD:
    s_lshl_b32 s{sRING}, s{sWV}, 12
    s_add_u32 s{sRING}, s{sRING}, {RING}
    s_add_u32 s{sRING+1}, s{sRING}, 2048
    s_and_b32 s{sRHO}, s{sWV}, 3
    s_lshl_b32 s{sRHO}, s{sRHO}, 2
    s_lshr_b32 s{sTMP}, s{sWV}, 2
    s_or_b32 s{sRHO}, s{sRHO}, s{sTMP}
    v_add_u32 v{PAD}, s{sRING}, v{L8}
    s_mov_b32 s3, 1
    v_mov_b32 v19, 0x3fffff
    s_waitcnt vmcnt({1 if PF1 else 0})
    @stamp 6
    {"s_barrier" if "noqbar" not in OPT else ""}
    {f"s_sleep {OPT['sleep0']}" if "sleep0" in OPT else ""}
    @amp 4
T_LOOP:
    global_load_dwordx2 v[20:21], v{AAD}, s[{sWS}:{sWS+1}] sc1
    s_sub_u32 s{sSPIN}, s{sSPIN}, 1
    s_cbranch_scc1 T_DONE
    s_waitcnt vmcnt(0)
    v_xor_b32 v{TW}, s{sNON+1}, v20
    v_cmp_ne_u32 vcc, s{sNON}, v21
    v_cmp_lt_u32 s[{sTMP}:{sTMP+1}], v19, v{TW}
    s_or_b64 exec, vcc, s[{sTMP}:{sTMP+1}]
    s_cbranch_scc1 T_LOOP
T_DONE:
    s_mov_b64 exec, -1
    s_waitcnt vmcnt(0)
    @stamp 7
    @amp 5
K_PASS:
    v_and_b32 v9, 0x7ff, v{TW}
    v_bfe_u32 v15, v{TW}, 11, 11
    v_add_u32 v9, s{sR0}, v9
    v_mad_u32_u24 v9, v9, 12, v{RAD}
    v_subrev_u32 v15, s{sR0}, v15
    v_min_i32 v10, s{sR}, v15
    v_and_b32 v11, 3, v{TID}
    v_sub_u32 v10, v10, v11
    """)
    for r in range(RMAX):
        a(f"v_cmp_lt_i32 s[{sEX+2*r}:{sEX+2*r+1}], {4*r}, v10")
    a(f"v_cmp_lt_i32 vcc, s{sR}, v15")
    for r in range(RMAX):
        a(f"s_mov_b64 exec, s[{sEX+2*r}:{sEX+2*r+1}]")
        if r >= 2: a(f"s_cbranch_execz K_LD")
        a(f"buffer_load_dwordx3 v[{32+4*r}:{34+4*r}], v9, s[{sREC}:{sREC+3}], 0 offen offset:{48*r} sc1")
    a(f"""
K_LD:
    s_mov_b64 exec, -1
    v_mov_b32 v13, 1
    v_lshrrev_b32 v14, 1, v{L8}
    s_cbranch_vccz K_NOMORE
    v_mov_b32 v9, 0
    ds_write_b32 v9, v13 offset:{FLG}
K_NOMORE:
    """)
    if PF2:
        a(f"""
        s_and_b32 s{sTMP}, s{sG}, 31
        s_lshl_b32 s{sTMP}, s{sTMP}, 4
        s_add_u32 s{sTMP}, s{sTMP}, s{sWV}
        s_lshr_b32 s{sTMP+1}, s{sG}, 5
        s_lshl_b32 s{sTMP+1}, s{sTMP+1}, 6
        s_add_u32 s{sTMP}, s{sTMP}, s{sTMP+1}
        s_and_b32 s{sTMP}, s{sTMP}, 511
        s_mul_i32 s{sTMP}, s{sTMP}, {PF2*128}
        s_add_u32 s{sTMP}, s{sTMP}, {(20000 - 512*PF2)*128}
        v_lshl_add_u32 v12, v{L8}, 4, s{sTMP}
        """)
    a(f"""
    s_cmp_eq_u32 s3, 0
    s_mov_b32 s3, 0
    s_cbranch_scc1 K_NOU
    ; first pass, column tile wv&7: waves 0..7 U = -log2e * (x @ Wupd_top)^T (rows = channels) -> registers,
    """)
    for ks in range(4):
        for h in range(2):
            a(f"ds_read_b64_tr_b16 v[{16+4*ks+2*h}:{17+4*ks+2*h}], v{WA} offset:{8192*ks + 1024*h}")
    XB0 = (52, 56, 60, 64); XB1 = (0, 4, 8, 68)
    def xr(xb, off):
        for ks in range(4): a(f"ds_read_b128 v[{xb[ks]}:{xb[ks]+3}], v{XA+ks} offset:{off}")
    xr(XB0, XS); xr(XB1, XS + 4096)
    a(f"s_mov_b32 s{sTMP+2}, {NLOG2E:#x}\ns_cmp_ge_u32 s{sWV}, 8\ns_cbranch_scc1 K_Q")
    for isq in (0, 1):
        if isq: a("K_Q:")
        def um(rt, xb):
            for ks in range(4):
                c = "0" if ks == 0 else f"v[{UA[rt]}:{UA[rt]+3}]"
                w = f"v[{16+4*ks}:{19+4*ks}]"; x = f"v[{xb[ks]}:{xb[ks]+3}]"
                a(f"v_mfma_f32_16x16x32_bf16 v[{UA[rt]}:{UA[rt]+3}], {x if isq else w}, {w if isq else x}, {c}")
        a("s_waitcnt lgkmcnt(4)")
        um(0, XB0)
        xr(XB0, XS + 8192)
        a("s_waitcnt lgkmcnt(4)")
        um(1, XB1)
        a("s_waitcnt lgkmcnt(0)")
        um(2, XB0)
        if not isq: a("s_nop 3")
        for rt in range(3):
            if rt == 2 and not isq: a("s_nop 1")
            for q in range(2):
                u = UA[rt] + 2*q
                a(f"v_pk_mul_f32 v[{u}:{u+1}], v[{u}:{u+1}], s[{sTMP+2}:{sTMP+3}] op_sel_hi:[1,0]")
            if isq:
                if rt == 2: a("s_mov_b32 exec_hi, 0")
                for r in range(4):
                    a(f"ds_write_b32 v{QAD}, v{UA[rt]+r} offset:{QS + rt*8192 + r*512}")
        a("s_mov_b64 exec, -1" if isq else "s_branch K_NOU")
    a("K_NOU:\ns_waitcnt vmcnt(0)\n@stamp 8\n@amp 6")
    if PF2:
        a(f"s_mov_b64 exec, {(1 << PF2) - 1:#x}\nglobal_load_dword v63, v12, s[{sWS}:{sWS+1}] sc1")
    for r in range(RMAX):
        a(f"s_mov_b64 exec, s[{sEX+2*r}:{sEX+2*r+1}]")
        if r >= 2: a(f"s_cbranch_execz K_HD")
        a(f"v_lshrrev_b32 v{r}, 16, v{34+4*r}\nds_add_rtn_u32 v{35+4*r}, v{r}, v13 offset:{CNT}")
    a(f"""
K_HD:
    s_mov_b64 exec, -1
    s_waitcnt lgkmcnt(0)
    s_barrier
    ds_read_b32 v8, v14 offset:{CNT}
    s_waitcnt lgkmcnt(0)
    v_add_u32 v10, 7, v8
    v_lshrrev_b32 v11, 3, v10
    """)
    dpp_scan(a, 11, [f"v_cmp_ne_u32 s[{sNZ}:{sNZ+1}], 0, v8", f"v_and_b32 v{NCNT}, 7, v10", f"v_and_b32 v10, -8, v10", f"v_add_u32 v{NCNT}, 1, v{NCNT}"])
    a(f"""
    v_lshlrev_b32 v15, 3, v11
    v_sub_u32 v15, v15, v10
    v_readlane_b32 s{sTMP}, v11, 63
    """)
    for r in range(RMAX):
        if r >= 2: a(f"s_cmp_eq_u64 s[{sEX+2*r}:{sEX+2*r+1}], 0\ns_cbranch_scc1 K_BD")
        a(f"ds_bpermute_b32 v{16+r}, v{r}, v15")
    a(f"""
K_BD:
    s_cmp_gt_u32 s{sTMP}, {CAP//8}
    s_cbranch_scc1 K_SHRINK
    s_mul_i32 s{sT0}, s{sTMP}, s{sRHO}
    s_add_u32 s{sTMP}, s{sT0}, s{sTMP}
    s_lshr_b32 s{sT0}, s{sT0}, 4
    s_lshr_b32 s{sTMP}, s{sTMP}, 4
    v_cmp_ge_u32 vcc, s{sT0}, v11
    s_sub_u32 s{sLEFT}, s{sTMP}, s{sT0}
    s_cmp_lg_u32 s{sWV}, 15
    s_cbranch_scc1 K_NOTF
    s_mov_b64 exec, s[{sNZ}:{sNZ+1}]
    ds_write_b8 v11, v13 offset:{TF - 1}
K_NOTF:
    s_waitcnt lgkmcnt(0)
    """)
    for r in range(RMAX):
        a(f"s_mov_b64 exec, s[{sEX+2*r}:{sEX+2*r+1}]")
        if r >= 2: a("s_cbranch_execz K_SD")
        a(f"""
        v_add_lshl_u32 v10, v{16+r}, v{35+4*r}, 3
        v_add_lshl_u32 v9, v{16+r}, v{35+4*r}, 1
        {f"v_and_b32 v{34+4*r}, {OPT['x_mask']}, v{34+4*r}" if "x_mask" in OPT else ""}
        ds_write_b64 v10, v[{32+4*r}:{33+4*r}] offset:{ES}
        ds_write_b16 v9, v{34+4*r} offset:{SS}
        """)
    a(f"""
K_SD:
    s_mov_b64 exec, -1
    s_bcnt1_i32_b64 s{sNC}, vcc
    s_min_u32 s{sNC}, s{sNC}, 61
    s_or_b32 s{sNZ+1}, s{sNZ+1}, 0xc0000000
    s_lshr_b64 s[{sNZ}:{sNZ+1}], s[{sNZ}:{sNZ+1}], s{sNC}
    s_lshl_b64 s[{sNZ}:{sNZ+1}], s[{sNZ}:{sNZ+1}], s{sNC}
    s_mov_b64 s[{sNZ2}:{sNZ2+1}], s[{sNZ}:{sNZ+1}]
    s_mov_b32 s{sNQ}, s{sNC}
    v_lshl_add_u32 v{AAD}, s{sNC}, 10, v{L8}
    v_lshl_add_u32 v{EAD}, s{sT0}, 6, v{E8}
    v_lshl_add_u32 v{SAD}, s{sT0}, 4, v{G2}
    v_lshrrev_b32 v9, 2, v14
    v_add_u32 v9, s{sT0}, v9
    s_waitcnt lgkmcnt(0)
    s_barrier
    s_setprio 3
    @stamp 10
    @amp 7
    s_cmp_eq_u32 s{sLEFT}, 0
    s_cbranch_scc1 K_MAINDONE
    s_cmp_lg_u32 s{sMODE}, 0
    s_cbranch_scc1 S_START
    """)
    mainloop(a, False)
    a(f"""
K_MAINDONE:
    @stamp 11
    @amp 8
    s_waitcnt vmcnt(0)
    v_mov_b32 v17, {f2u(2.0**120):#x}
    v_add_f32 v18, v{NANC}, v{NANC+1}
    v_cmp_nle_f32 vcc, v{MAXC}, v17
    v_cmp_u_f32 s[{sTMP}:{sTMP+1}], v18, v18
    v_mov_b32 v{QAD}, 0
    s_or_b64 vcc, vcc, s[{sTMP}:{sTMP+1}]
    s_cbranch_scc0 K_NOOVF
    v_mov_b32 v20, 1
    ds_write_b32 v{QAD}, v20 offset:{FLG+4}
K_NOOVF:
    s_cmp_ge_u32 s{sWV}, 8
    s_cbranch_scc1 K_NOFA
    s_lshl_b32 s{sTMP}, s{sWV}, 12
    s_add_u32 s{sTMP}, s{sTMP}, {WS_F}
    v_lshl_add_u32 v{EAD}, v{L8}, 1, s{sTMP}
    """)
    for ks in range(4): a(f"global_load_dwordx4 v[{4*ks}:{4*ks+3}], v{EAD}, s[{sWS}:{sWS+1}] offset:{1024*ks} sc1")
    a(f"""
    v_xor_b32 v16, v{VG}, v{VJ}
    v_lshlrev_b32 v16, 4, v16
    v_lshl_add_u32 v{XA}, v{VJ}, 8, v16
    v_xor_b32 v{XA+1}, 64, v{XA}
    v_xor_b32 v{XA+2}, 128, v{XA}
    v_xor_b32 v{XA+3}, 192, v{XA}
    ; staging address: row*256 + ((2*ct + (g>>1)) ^ j)*16 + (g&1)*8, row = 16*rt + j
    s_lshl_b32 s{sTMP}, s{sWV}, 1
    v_lshrrev_b32 v{EAD}, 1, v{VG}
    v_or_b32 v{EAD}, s{sTMP}, v{EAD}
    v_xor_b32 v{EAD}, v{EAD}, v{VJ}
    v_and_b32 v16, 1, v{VG}
    v_lshl_or_b32 v{EAD}, v{EAD}, 1, v16
    v_lshlrev_b32 v{EAD}, 3, v{EAD}
    v_lshl_add_u32 v{EAD}, v{VJ}, 8, v{EAD}
K_NOFA:
    v_lshrrev_b32 v21, 4, v{TID}
    v_lshlrev_b32 v23, 10, v21
    v_lshl_add_u32 v23, v{VJ}, 4, v23
    v_xor_b32 v24, v21, v{VJ}
    v_and_b32 v24, 15, v24
    v_lshlrev_b32 v24, 4, v24
    v_lshl_add_u32 v{SAD}, v21, 8, v24
    s_lshl_b32 s{sTMP}, s{sSTART}, 8
    v_lshl_add_u32 v{AAD}, v{TID}, 4, s{sTMP}
    s_waitcnt lgkmcnt(0)
    s_barrier
    @estamp 2
    ds_read_b64 v[24:25], v{QAD} offset:{FLG}
    s_cmp_ge_u32 s{sWV}, 10
    s_cbranch_scc1 K_NOCV
    ds_read_b128 v[36:39], v23 offset:{AGG}
    ds_read_b128 v[40:43], v23 offset:{AGG+256}
    ds_read_b128 v[44:47], v23 offset:{AGG+512}
    ds_read_b128 v[48:51], v23 offset:{AGG+768}
    """)
    for q in range(4):
        a(f"s_waitcnt lgkmcnt({3-q})\nv_cvt_f32_f64 v{28+2*q}, v[{36+4*q}:{37+4*q}]\nv_cvt_f32_f64 v{29+2*q}, v[{38+4*q}:{39+4*q}]")
    for q in range(4):
        a(f"v_cvt_pk_bf16_f32 v{28+q}, v{28+2*q}, v{29+2*q}")
    a(f"""
    ds_write_b128 v{SAD}, v[28:31] offset:{AB}
K_NOCV:
    s_waitcnt lgkmcnt(0)
    v_or_b32 v27, v24, v25
    v_cmp_ne_u32 vcc, 0, v27
    s_cbranch_vccnz K_SLOW
K_FINAL:
    @estamp 3
    s_barrier
    @estamp 4
    s_cmp_ge_u32 s{sWV}, 10
    s_cbranch_scc1 K_END2
    s_cmp_ge_u32 s{sWV}, 8
    s_cbranch_scc1 K_OUT
    """)
    for rt in range(3): xreads(a, 16 + 16*rt, AB + rt*4096)
    a(f"s_mov_b32 s{sTMP+2}, {f2u(-LOG2E/(1+float(OPT.get('eps', 0)))):#x}\ns_waitcnt vmcnt(0)")
    def fm(rt):
        a(f"s_waitcnt lgkmcnt({8 - 4*rt if not (rt == 2 and 'noeil' not in OPT) else 1})")
        mm16(a, UA[rt], 16 + 16*rt, 0, swap=True, first=False)
    def silu(rt):
        u = UA[rt]; t = 64
        a(f"""
        v_exp_f32 v{t}, v{u}
        v_exp_f32 v{t+1}, v{u+1}
        v_exp_f32 v{t+2}, v{u+2}
        v_exp_f32 v{t+3}, v{u+3}
        v_pk_fma_f32 v[{t}:{t+1}], v[{t}:{t+1}], s[{sTMP+2}:{sTMP+3}], s[{sTMP+2}:{sTMP+3}] op_sel_hi:[1,0,0]
        v_pk_fma_f32 v[{t+2}:{t+3}], v[{t+2}:{t+3}], s[{sTMP+2}:{sTMP+3}], s[{sTMP+2}:{sTMP+3}] op_sel_hi:[1,0,0]
        v_rcp_f32 v{t}, v{t}
        v_rcp_f32 v{t+1}, v{t+1}
        v_rcp_f32 v{t+2}, v{t+2}
        v_rcp_f32 v{t+3}, v{t+3}
        v_pk_mul_f32 v[{t}:{t+1}], v[{t}:{t+1}], v[{u}:{u+1}]
        v_pk_mul_f32 v[{t+2}:{t+3}], v[{t+2}:{t+3}], v[{u+2}:{u+3}]
        v_cvt_pk_bf16_f32 v{16+2*rt}, v{t}, v{t+1}
        v_cvt_pk_bf16_f32 v{17+2*rt}, v{t+2}, v{t+3}
        ds_write_b64 v{EAD}, v[{16+2*rt}:{17+2*rt}] offset:{OUTS + rt*4096}
        """)
    if "noeil" not in OPT:
        fm(0); fm(1); a("s_nop 2"); silu(0); fm(2); silu(1); silu(2)
    else:
        fm(0); fm(1); fm(2); a("@estamp 5"); silu(0); silu(1); silu(2)
    a(f"""
K_OUT:
    s_waitcnt lgkmcnt(0)
    @estamp 6
    s_barrier
    @estamp 7
    ds_read_b128 v[32:35], v{SAD} offset:{OUTS}
    s_waitcnt lgkmcnt(0)
    buffer_store_dwordx4 v[32:35], v{AAD}, s[{sO}:{sO+3}], 0 offen {OPT.get('ost', 'sc1').replace('+', ' ')}
    @estamp 8
K_END2:
    @store
K_END:
    s_endpgm
K_SHRINK:
    ; too many slots for one pass: redo this pass with at most 4 records per cell
    s_mov_b32 s{sR}, 4
    s_mov_b32 s{sTMP+1}, 0
    s_branch K_REINIT
K_SLOW:
    v_readfirstlane_b32 s{sTMP}, v24
    v_readfirstlane_b32 s{sTMP+1}, v25
    s_cmp_eq_u32 s{sMODE}, 0
    s_cselect_b32 s{sTMP+1}, s{sTMP+1}, 0
    s_or_b32 s{sTMP}, s{sTMP}, s{sTMP+1}
    s_cbranch_scc0 K_FINAL
    s_add_u32 s{sR0}, s{sR0}, s{sR}
K_REINIT:
    s_waitcnt vmcnt(0) lgkmcnt(0)
    s_barrier
    v_lshrrev_b32 v9, 1, v{L8}
    v_mov_b32 v10, 0
    ds_write_b32 v9, v10 offset:{CNT}
    ds_write_b32 v9, v10 offset:{TF}
    ds_write_b32 v10, v10 offset:{FLG}
    ds_write_b32 v10, v10 offset:{FLG+4}
    v_lshlrev_b32 v9, 2, v{TID}
    v_mov_b32 v10, -1
    ds_write_b32 v9, v10 offset:{SS}
    s_cmp_eq_u32 s{sTMP+1}, 0
    s_cbranch_scc1 K_SLOW1
    s_mov_b32 s{sMODE}, 1
    s_mov_b32 s{sR0}, 0
    s_mov_b32 s{sR}, {4*RMAX}
    v_lshlrev_b32 v9, 4, v{TID}
    v_add_u32 v9, {AGG}, v9
    v_mov_b64 v[32:33], 0
    v_mov_b64 v[34:35], 0
    ds_write_b128 v9, v[32:35]
    ds_write_b128 v9, v[32:35] offset:16384
    ds_write_b128 v9, v[32:35] offset:24576
K_SLOW1:
    s_waitcnt lgkmcnt(0)
    s_barrier
    s_branch K_PASS
    """)
    mainloop(a, True)
    return a.text()

HEADER = """; Kernarg layout for this problem (72 bytes, ptrs only, base s[0:1]):
;   offset  24: d_in[3] dst  shape=(320000,) dtype=int32
; One workgroup per CU (256 workgroups, 39-40 destination nodes each).
; Phase A: bin 1280 edges by destination group, P = -log2e * x @ W1 for the own rows, publish both (write-through,
;          tagged granules).  Phase B: collect the group's edges, list them per node, evaluate the messages
"""
def main():
    s = ("; opts " + " ".join(sys.argv[2:]) + "\n" if len(sys.argv) > 2 else "") + HEADER
    s += f"; @launch grid=({NG},1,1) block=(1024,1,1) lds={LDS_BYTES}\n"
    s += '.amdgcn_target "amdgcn-amd-amdhsa--gfx950"\n.text\n'
    s += f".globl {KN}\n.p2align 8\n.type {KN},@function\n" + kernel()
    s += f""".section .rodata,"a"
.p2align 6
.amdhsa_kernel {KN}
  .amdhsa_next_free_vgpr {NVGPR}
  .amdhsa_next_free_sgpr {100 if (DIAG or AMP) else NSGPR}
  .amdhsa_accum_offset {NVGPR}
  .amdhsa_group_segment_fixed_size 0
  .amdhsa_kernarg_size 72
  .amdhsa_user_sgpr_count 2
  .amdhsa_user_sgpr_kernarg_segment_ptr 1
  .amdhsa_system_sgpr_workgroup_id_x 1
.end_amdhsa_kernel
"""
    open(sys.argv[1], "w").write(s)
main()
```

```python
import sys, struct

N = 10000; E = 320000
NG = 256
EPW = 1280
NPROD = E // EPW
REC_STRIDE = EPW * 12 + 128
WS_P = 4096
WS_REC = 0x280000
WS_T = 0x650000
WS_F = 0x6D0000
WS_DIAG = 0xB00000
LOG2E = 1.4426950408889634
def f2u(x): return struct.unpack("<I", struct.pack("<f", x))[0]
NLOG2E = f2u(-LOG2E)
OPT = dict(a.split("=") if "=" in a else (a, "1") for a in sys.argv[2:])
DIAG = "diag" in OPT
AMP = int(OPT.get("amp", 0))
PF1 = int(OPT.get("pf1", 4)); PF2 = int(OPT.get("pf2", 12))
W2E = "w2late" not in OPT
KN = "gather_scatter__mpnn_edge_mlp__graph_kernel"
SPINMAX = 400000
RMAX = 5
CAP = 2048

CNT = 0; FLG = 256; NON = 272
TF = 512
SS = 1024
XS = SS + CAP*2 + 256
QS = XS + 40*256
ES = QS + 40*512
AGG = ES + CAP*8
RING = AGG + 40*1024
LDS_BYTES = RING + 65536
W1S = RING; W2S = RING + 32768; WTS = RING
STAGE = QS; HIST = ES; OFFS = ES + 1024; W3S = ES + 2048
AB = ES; OUTS = QS
D0, D1, QR, VU, BP, AE, ID, W3 = 0, 16, 32, 48, 64, 72, 76, 84
VA, NUM, DEN, NANC, MAXC = 88, 90, 92, 94, 96
EAD, SAD, PAD, IX0, IX1, QAD, AAD, L8, NCNT, TID, TW, RAD, E8 = 97, 98, 99, 100, 102, 104, 105, 106, 107, 108, 109, 110, 111
G2 = 81; LQ = 82
XA, WA = 88, 92
VG, VJ, VL = 126, 127, 97
UA = (112, 116, 120)
NVGPR = 128
sREC = 4; sR0 = 8; sMODE = 9; sLEFT = 10; sCNT = 11
sK1 = 12; sK2 = 13; sNL = 14; sNC = 15; sNQ = 16; sR = 17; sNZ2 = 18
sWS = 20; sWV = 22; sSTART = 23; sX = 24; sP = 24; sO = 28
sNZ = 32; sM0 = 34; sM1 = 36; sONE = 38; sRING = 40; sRHO = 42; sW = 40
sTMP = 44; sEV = 48; sG = 49; sEX = 50; sCM = 52
sNON = 60; sEND = 62; sSPIN = 63; sP2 = 64; sANY = 68; sT0 = 70; sVT = 71
NSGPR = 72
WSOFF = f"s_add_u32 s{sWS}, s{sWS}, {int(OPT['wso']) << 20}\ns_addc_u32 s{sWS+1}, s{sWS+1}, 0" if 'wso' in OPT else ''
STF = OPT.get('stf', 'sc1').replace('+', ' ')
sST = 72

class Asm:
    def __init__(self): self.l = []
    def __call__(self, s):
        for ln in s.strip("\n").split("\n"):
            ln = ln.strip()
            if ln.startswith("@estamp"):
                if "epi" not in OPT: continue
                ln = ln.replace("@estamp", "@stamp")
            elif ln.startswith("@stamp") and "epi" in OPT and int(ln.split()[1]) in range(2, 10): continue
            if ln.startswith("@amp"):
                i = int(ln.split()[1])
                if AMP and i in (0, AMP): self(f"s_memrealtime s[{72+2*(i != 0)}:{73+2*(i != 0)}]\ns_waitcnt lgkmcnt(0)")
                continue
            if ln.startswith("@store") and AMP:
                self("""s_waitcnt vmcnt(0)
                @amp 9
                s_lshl_b32 s3, s22, 8
                s_or_b32 s3, s3, s2
                s_cmp_lg_u32 s3, """ + OPT.get("ampwg", "0") + """
                s_cbranch_scc1 AMP_DONE
                s_sub_u32 s74, s74, s72
                s_lshl_b32 s74, s74, 3
                s_memrealtime s[76:77]
                s_waitcnt lgkmcnt(0)
AMP_LOOP:
                s_memrealtime s[78:79]
                s_waitcnt lgkmcnt(0)
                s_sub_u32 s78, s78, s76
                s_cmp_lt_u32 s78, s74
                s_cbranch_scc1 AMP_LOOP
AMP_DONE:""")
                continue
            if ln.startswith("@stamp"):
                i = int(ln.split()[1])
                if DIAG and ("st" not in OPT or i in (0, 13) or str(i) in OPT["st"].split(",")): self(f"{'s_memrealtime' if OPT['diag'] == 'rt' or i in (0, 13) else 's_memtime'} s[{sST+2*i}:{sST+2*i+1}]\ns_waitcnt lgkmcnt(0)")
                continue
            if ln.startswith("@store"):
                if DIAG:
                    self(f"s_waitcnt vmcnt(0)\n@stamp 12\n@stamp 13\ns_mov_b64 exec, -1\nv_lshrrev_b32 v1, 6, v{TID}\ns_lshl_b32 s3, s2, 4\nv_add_u32 v1, s3, v1\nv_lshlrev_b32 v1, 6, v1\nv_add_u32 v1, {WS_DIAG}, v1")
                    for i in range(14): self(f"v_mov_b32 v2, s{sST+2*i}\nglobal_store_dword v1, v2, s[{sWS}:{sWS+1}] offset:{4*i}")
                continue
            if ln: self.l.append(ln if ln.endswith(":") else "    " + ln)
    def text(self): return "\n".join(self.l) + "\n"

def dpp_scan(a, v, fill=()):
    fill = list(fill)
    def pad():
        k = 0
        while k < 2 and fill: a(fill.pop(0)); k += 1
        if k < 2: a(f"s_nop {1-k}")
    for sh in (1, 2, 4, 8):
        pad(); a(f"v_add_u32_dpp v{v}, v{v}, v{v} row_shr:{sh} row_mask:0xf bank_mask:0xf bound_ctrl:0")
    pad(); a(f"v_add_u32_dpp v{v}, v{v}, v{v} row_bcast:15 row_mask:0xa bank_mask:0xf")
    pad(); a(f"v_add_u32_dpp v{v}, v{v}, v{v} row_bcast:31 row_mask:0xc bank_mask:0xf")
    for x in fill: a(x)

def mainloop(a, safe):
    L = "S" if safe else "F"
    def ex(d, k): a(f"v_exp_f32 v{VU+k}, v{d+k}")
    def pk(d, e):
        t = d + 2*e; u = VU + 2*e
        if not safe:
            a(f"""
            v_pk_fma_f32 v[{VA}:{VA+1}], v[{t}:{t+1}], v[{DEN}:{DEN+1}], v[{NUM}:{NUM+1}]
            v_pk_fma_f32 v[{DEN}:{DEN+1}], v[{DEN}:{DEN+1}], v[{u}:{u+1}], v[{DEN}:{DEN+1}]
            v_pk_fma_f32 v[{NUM}:{NUM+1}], v[{NUM}:{NUM+1}], v[{u}:{u+1}], v[{VA}:{VA+1}]
            """)
        else:
            a(f"""
            v_pk_add_f32 v[{u}:{u+1}], v[{u}:{u+1}], 1.0 op_sel_hi:[1,0]
            v_rcp_f32 v{u}, v{u}
            v_rcp_f32 v{u+1}, v{u+1}
            s_nop 0
            v_pk_fma_f32 v[{NUM}:{NUM+1}], v[{t}:{t+1}], v[{u}:{u+1}], v[{NUM}:{NUM+1}]
            """)
    def flush():
        if not safe:
            a(f"""
            v_rcp_f32 v{VU}, v{DEN}
            v_rcp_f32 v{VU+1}, v{DEN+1}
            v_max3_f32 v{MAXC}, v{MAXC}, v{DEN}, v{DEN+1}
            v_pk_mul_f32 v[{VA}:{VA+1}], v[{NUM}:{NUM+1}], v[{VU}:{VU+1}]
            v_mov_b64 v[{DEN}:{DEN+1}], s[{sONE}:{sONE+1}]
            v_mov_b64 v[{NUM}:{NUM+1}], 0
            v_cvt_f64_f32 v[{VU}:{VU+1}], v{VA}
            v_cvt_f64_f32 v[{VU+2}:{VU+3}], v{VA+1}
            v_pk_fma_f32 v[{NANC}:{NANC+1}], v[{VA}:{VA+1}], 0, v[{NANC}:{NANC+1}] op_sel_hi:[1,0,1]
            """)
        else:
            a(f"""
            v_cvt_f64_f32 v[{VU}:{VU+1}], v{NUM}
            v_cvt_f64_f32 v[{VU+2}:{VU+3}], v{NUM+1}
            v_mov_b64 v[{NUM}:{NUM+1}], 0
            """)
        a(f"ds_add_f64 v{AAD}, v[{VU}:{VU+1}] offset:{AGG}\nds_add_f64 v{AAD}, v[{VU+2}:{VU+3}] offset:{AGG+512}")
    def preads(slot):
        if "p2" in OPT:
            for q in range(2):
                a(f"ds_read2st64_b64 v[{BP+4*q}:{BP+4*q+3}], v{PAD} offset0:{slot*4 + 2*q} offset1:{slot*4 + 2*q + 1}")
            return
        for q in range(4):
            a(f"ds_read_b64 v[{BP+2*q}:{BP+2*q+1}], v{PAD} offset:{slot*2048 + q*512}")
    def ereads(v, off):
        a(f"""
        s_mov_b64 exec, s[{sM0}:{sM0+1}]
        ds_read_b64 v[{AE}:{AE+1}], v{v} offset:{ES+off}
        s_mov_b64 exec, s[{sM1}:{sM1+1}]
        ds_read_b64 v[{AE+2}:{AE+3}], v{v} offset:{ES+off}
        s_mov_b64 exec, -1
        """)
    def idxreads(v, off):
        a(f"ds_read_u16 v{IX0}, v{v} offset:{SS+off}\nds_read_u16 v{IX1}, v{v} offset:{SS+off+8}")
    def qreads(node):
        if "q2" in OPT:
            a(f"v_lshl_add_u32 v{QAD}, s{node}, 9, v{LQ}")
            for q in range(4):
                a(f"ds_read2_b64 v[{QR+4*q}:{QR+4*q+3}], v{QAD} offset0:0 offset1:0")
            return
        a(f"v_lshl_add_u32 v{QAD}, s{node}, 9, v{L8}")
        for q in range(8):
            a(f"ds_read_b64 v[{QR+2*q}:{QR+2*q+1}], v{QAD} offset:{QS}")
    def mfma(d, k):
        if k == 0: a(f"v_mfma_f32_32x32x16_bf16 v[{d}:{d+15}], v[{AE}:{AE+3}], v[{W3}:{W3+3}], v[{QR}:{QR+15}]")
        else: a(f"v_smfmac_f32_32x32x32_bf16 v[{d}:{d+15}], v[{ID}:{ID+3}], v[{BP}:{BP+7}], v{ID+4}")
    def dma(slot, f1="s_nop 0"):
        if "x_nodma" in OPT: a(f1); return
        a(f"""
        s_mov_b32 m0, s{sRING+slot}
        {f1}
        buffer_load_dwordx4 v[{IX0}:{IX0+1}], s[{sP}:{sP+3}], 0 idxen offen sc1 lds
        buffer_load_dwordx4 v[{IX1}:{IX1+1}], s[{sP2}:{sP2+3}], 0 idxen offen offset:1024 sc1 lds
        """)
    def qnext():
        a(f"s_bitset0_b64 s[{sNZ}:{sNZ+1}], s{sNQ}\ns_ff1_i32_b64 s{sNQ}, s[{sNZ}:{sNZ+1}]")
        qreads(sNQ)
    def tree(name, labels):
        a(f"""
{name}:
        s_cmp_gt_u32 s{sCNT}, 3
        s_cbranch_scc1 {name}_H
        s_cmp_eq_u32 s{sCNT}, 2
        s_cbranch_scc1 {labels[2]}
        s_cmp_eq_u32 s{sCNT}, 3
        s_cbranch_scc1 {labels[3]}
        s_branch {labels[1]}
{name}_H:
        s_cmp_gt_u32 s{sCNT}, 5
        s_cbranch_scc1 {name}_HH
        s_cmp_eq_u32 s{sCNT}, 4
        s_cbranch_scc1 {labels[4]}
        s_branch {labels[5]}
{name}_HH:
        s_cmp_eq_u32 s{sCNT}, 6
        s_cbranch_scc1 {labels[6]}
        s_branch {labels[7]}
        """)
    EV = int(OPT.get("ev", 5))
    a(f"{L}_START:")
    idxreads(SAD, 0)
    a(f"""
    ds_read_u8 v10, v9 offset:{TF}
    v_mov_b64 v[{DEN}:{DEN+1}], s[{sONE}:{sONE+1}]
    v_mov_b64 v[{NUM}:{NUM+1}], 0
    s_waitcnt lgkmcnt(1)
    """)
    dma(0)
    idxreads(SAD, 16)
    qreads(sNQ)
    a(f"""
    s_waitcnt lgkmcnt({4 if "q2" in OPT else 8})
    v_cmp_ne_u32 vcc, 0, v10
    """)
    dma(1)
    idxreads(SAD, 32)
    ereads(EAD, 0)
    a(f"""
    ; sK1: one bit per tile from the top (ends a node, or one of the last tiles), then a marker; sK2: tile + 2 starts a node;
    s_brev_b32 s{sK1}, vcc_lo
    s_lshl_b32 s{sK2}, s{sK1}, 1
    s_sub_u32 s{sTMP}, 32, s{sLEFT}
    s_lshr_b32 s{sNL}, s{sK1}, s{sTMP}
    s_lshl_b32 s{sK1}, s{sNL}, s{sTMP}
    s_sub_u32 s{sTMP}, s{sTMP}, 1
    s_lshl_b32 s{sTMP}, {((7 | (1 << EV)) << 1) | 1}, s{sTMP}
    s_or_b32 s{sK1}, s{sK1}, s{sTMP}
    s_waitcnt vmcnt(2)
    """)
    preads(0)
    a("s_waitcnt lgkmcnt(0)\n@stamp 9")
    dma(0)
    for k in range(2): mfma(D0, k)
    ereads(EAD, 64)
    idxreads(SAD, 48)
    a(f"s_bitcmp0_b32 vcc_lo, 0\ns_cbranch_scc1 {L}_S4")
    qnext()
    a(f"{L}_S4:\ns_waitcnt vmcnt(2)")
    preads(1)
    a(f"s_branch {L}_L0B")
    K2 = f"s_add_u32 s{sK2}, s{sK2}, s{sK2}"
    def xphase(b, lab):
        dc, dn = (D0, D1) if b == 0 else (D1, D0)
        mfma(dn, 0)
        for e in range(7, -1, -1):
            if lab and e < 7: a(f"{L}_X{b}_{e+1}:")
            if e == 2: mfma(dn, 1)
            ex(dc, 2*e+1); ex(dc, 2*e)
    def mid(b, tag):
        a("s_waitcnt vmcnt(2)")
        preads(b)
        if tag == "E": a(K2)
        a(f"s_cbranch_scc1 {L}_ADV{tag}{b}\n{L}_RB{tag}{b}:")
        ereads(EAD, 64*(b+2))
        idxreads(SAD, 16*(b+4))
    def yphase(b, lab):
        dc = D0 if b == 0 else D1
        for e in range(7, -1, -1):
            if lab and e < 7: a(f"{L}_Y{b}_{e+1}:")
            pk(dc, e)
    for b in range(2):
        dc, dn = (D0, D1) if b == 0 else (D1, D0)
        a(f"""
{L}_TAIL{b}:
        s_setprio 2
        s_cmp_ge_u32 s{sLEFT}, 3
        s_cbranch_scc1 {L}_TD{b}
        s_setprio 1
        s_cmp_lg_u32 s{sLEFT}, 0
        s_cbranch_scc1 {L}_T1{b}
        s_setprio 0
{L}_T1{b}:
        s_waitcnt vmcnt(0)
        s_branch {L}_T2{b}
{L}_TD{b}:
        """)
        dma(1-b)
        a(f"""
{L}_T2{b}:
        s_bitcmp1_b32 s{sNL}, s{sLEFT}
        s_cbranch_scc1 {L}_ENDN{b}
        s_mov_b32 s{sCNT}, 8
        s_cmp_eq_u32 s{sLEFT}, 0
        s_cbranch_scc1 {L}_X{b}_8
        {K2}
        s_branch {L}_XB{b}
        """)
        for tag in "PE":
            a(f"{L}_ADV{tag}{b}:")
            qnext()
            a(f"s_branch {L}_RB{tag}{b}")
        tree(f"{L}_XD{b}", {c: f"{L}_XS{b}_{c}" for c in range(1, 8)})
        for c in range(1, 8):
            a(f"{L}_XS{b}_{c}:")
            mfma(dn, 0)
            if c <= 2: mfma(dn, 1)
            a(f"s_branch {L}_X{b}_{c}")
        tree(f"{L}_YD{b}", {c: f"{L}_Y{b}_{c}" for c in range(1, 8)})
        a(f"""
{L}_SP{b}:
        s_ff1_i32_b32 s{sLEFT}, s{sK1}
        s_sub_u32 s{sLEFT}, 31, s{sLEFT}
        s_cmp_le_u32 s{sLEFT}, {EV}
        s_cbranch_scc1 {L}_TAIL{b}
        """)
        dma(1-b)
        a(f"""
{L}_ENDN{b}:
        v_readlane_b32 s{sCNT}, v{NCNT}, s{sNC}
        s_bitset0_b64 s[{sNZ2}:{sNZ2+1}], s{sNC}
        s_ff1_i32_b64 s{sNC}, s[{sNZ2}:{sNZ2+1}]
        s_cmp_lt_u32 s{sCNT}, 8
        s_cbranch_scc1 {L}_XD{b}
{L}_X{b}_8:
        """)
        xphase(b, True)
        mid(b, "E")
        a(f"s_cmp_lt_u32 s{sCNT}, 8\ns_cbranch_scc1 {L}_YD{b}")
        yphase(b, True)
        flush()
        a(f"""
        s_cmp_eq_u32 s{sLEFT}, 0
        s_cbranch_scc1 K_MAINDONE
        v_lshl_add_u32 v{AAD}, s{sNC}, 10, v{L8}
        s_branch {L}_L{1-b}
        """)
    for b in range(2):
        a(f"{L}_L{b}:")
        if b == 0:
            a(f"v_add_u32 v{EAD}, 128, v{EAD}\nv_add_u32 v{SAD}, 32, v{SAD}\n{L}_L0B:")
        a(f"""
        s_add_u32 s{sK1}, s{sK1}, s{sK1}
        s_waitcnt lgkmcnt(0)
        s_cbranch_scc1 {L}_SP{b}
        """)
        dma(1-b, K2)
        a(f"{L}_XB{b}:")
        xphase(b, False)
        mid(b, "P")
        yphase(b, False)
        if b == 1: a(f"s_branch {L}_L0")

def consts(a):
    a(f"""
    ; m = l&31, hk = l>>5, e = 2*(m>>3) + ((m>>1)&1), H = (m>>2)&1, c0 = m&1
    v_lshlrev_b32 v{L8}, 3, v{VL}
    v_add_u32 v{LQ}, {QS}, v{L8}
    v_lshlrev_b32 v{IX0+1}, 4, v{VJ}
    v_lshlrev_b32 v{IX1+1}, 4, v{VJ}
    v_lshlrev_b32 v{G2}, 1, v{VG}
    v_lshrrev_b32 v1, 5, v{VL}
    v_bfe_u32 v2, v{VL}, 2, 1
    v_and_b32 v3, 1, v{VL}
    v_bfe_u32 v4, v{VL}, 1, 1
    v_bfe_u32 v5, v{VL}, 3, 2
    v_lshl_add_u32 v5, v5, 1, v4
    v_mov_b64 v[{AE}:{AE+1}], 0
    v_mov_b64 v[{AE+2}:{AE+3}], 0
    v_xor_b32 v{ID}, v1, v2
    v_lshl_add_u32 v{ID}, v{ID}, 1, v3
    v_cmp_eq_u32 s[{sM0}:{sM0+1}], 0, v{ID}
    v_cmp_eq_u32 s[{sM1}:{sM1+1}], 1, v{ID}
    v_lshlrev_b32 v{E8}, 3, v5
    ; sparse selector: lane half e>>2, register q = 2*(e&1) + ((e>>1)&1) holds 1.0, index (2*H + c0) << 4*q
    v_lshrrev_b32 v{ID+1}, 2, v5
    v_cmp_eq_u32 vcc, v1, v{ID+1}
    v_bfe_u32 v5, v5, 1, 1
    v_lshl_add_u32 v5, v4, 1, v5
    v_lshl_add_u32 v2, v2, 1, v3
    v_cndmask_b32 v3, 0, v{W3}, vcc
    v_lshlrev_b32 v4, 2, v5
    v_lshlrev_b32 v{ID+4}, v4, v2
    """)
    for q in range(4): a(f"v_cmp_eq_u32 s[{sCM + 2*q}:{sCM + 2*q + 1}], {q}, v5")
    a(f"v_lshrrev_b32 v1, 2, v{TID}\nv_and_b32 v2, 3, v{TID}")
    for q in range(4): a(f"v_cndmask_b32 v{ID+q}, 0, v3, s[{sCM + 2*q}:{sCM + 2*q + 1}]")
    a(f"""
    s_movk_i32 s3, {REC_STRIDE}
    v_mul_u32_u24 v3, s3, v1
    v_mad_u32_u24 v{RAD}, v2, 12, v3
    s_lshl_b32 s3, s{sG}, 3
    s_add_u32 s3, s3, {WS_T}
    v_lshl_add_u32 v{AAD}, v1, 11, s3
    v_xor_b32 v1, v{VG}, v{VJ}
    v_lshlrev_b32 v1, 4, v1
    v_lshl_add_u32 v{XA}, v{VJ}, 8, v1
    v_xor_b32 v{XA+1}, 64, v{XA}
    v_xor_b32 v{XA+2}, 128, v{XA}
    v_xor_b32 v{XA+3}, 192, v{XA}
    v_bfe_u32 v1, v{VL}, 2, 2
    v_and_b32 v2, 1, v{VG}
    v_lshl_or_b32 v2, v2, 2, v1
    v_bfe_u32 v3, v{VL}, 1, 1
    v_lshl_or_b32 v2, v2, 1, v3
    v_and_b32 v3, 1, v{VL}
    v_lshl_or_b32 v2, v2, 1, v3
    v_lshl_add_u32 v1, v{VG}, 3, v1
    v_lshlrev_b32 v1, 8, v1
    v_lshl_add_u32 v{WA}, v2, 3, v1
    """)
def wlane(a, v):
    a(f"""
    v_lshlrev_b32 v{v}, 1, v{VG}
    v_xor_b32 v{v}, v{v}, v{VJ}
    v_lshlrev_b32 v{v}, 4, v{v}
    v_lshl_add_u32 v{v}, v{VG}, 8, v{v}
    v_xor_b32 v{v+1}, 128, v{v}
    """)
def wdma(a, soff, v):
    a(f"""
    buffer_load_dwordx4 v{v}, s[{sW}:{sW+3}], s{soff} offen lds
    buffer_load_dwordx4 v{v}, s[{sW}:{sW+3}], s{soff} offen offset:1024 lds
    buffer_load_dwordx4 v{v+1}, s[{sW}:{sW+3}], s{soff} offen offset:2048 lds
    buffer_load_dwordx4 v{v+1}, s[{sW}:{sW+3}], s{soff} offen offset:3072 lds
    """)
def mm16(a, d, x, w, swap=False, first=True):
    for ks in range(4):
        c = "0" if (ks == 0 and first) else f"v[{d}:{d+3}]"
        xa = f"v[{x+4*ks}:{x+4*ks+3}]"; wa = f"v[{w+4*ks}:{w+4*ks+3}]"
        a(f"v_mfma_f32_16x16x32_bf16 v[{d}:{d+3}], {wa if swap else xa}, {xa if swap else wa}, {c}")
def xreads(a, dst, off):
    for ks in range(4): a(f"ds_read_b128 v[{dst+4*ks}:{dst+4*ks+3}], v{XA+ks} offset:{off}")

def kernel():
    a = Asm()
    a(f"""
{KN}:
    s_cmp_ge_u32 s2, {NG}
    s_cbranch_scc1 K_END
    @stamp 0
    @stamp 1
    @amp 0
    s_load_dwordx16 s[4:19], s[0:1], 0
    s_load_dwordx2 s[{sWS}:{sWS+1}], s[0:1], 64
    v_mov_b32 v{TID}, v0
    v_lshrrev_b32 v1, 6, v0
    v_and_b32 v{VL}, 63, v0
    v_readfirstlane_b32 s{sWV}, v1
    s_and_b32 s{sG}, s2, 7
    s_lshl_b32 s{sG}, s{sG}, 5
    s_lshr_b32 s3, s2, 3
    s_or_b32 s{sG}, s{sG}, s3
    v_lshrrev_b32 v{VG}, 4, v{VL}
    v_and_b32 v{VJ}, 15, v{VL}
    s_mul_i32 s3, s{sG}, 625
    s_add_u32 s{sSTART}, s3, 15
    s_lshr_b32 s{sSTART}, s{sSTART}, 4
    s_add_u32 s{sEND}, s3, {625+15}
    s_lshr_b32 s{sEND}, s{sEND}, 4
    v_mov_b32 v{W3}, 0x3f80
    s_mov_b32 s{sW+2}, 65536
    s_mov_b32 s{sW+3}, 0x20000
    s_cmp_ge_u32 s{sWV}, 5
    s_cbranch_scc1 A_N1
    ; ================= waves 0..4: bin the edges [1280*g, 1280*g+1280) by destination group (4 edges per thread)
    s_cmp_lt_u32 s{sG}, {NPROD}
    s_cselect_b32 s3, s{sG}, 0
    s_cselect_b64 s[{sEX}:{sEX+1}], -1, 0
    s_mul_i32 s3, s3, {EPW*4}
    v_lshl_add_u32 v8, v0, 4, s3
    v_lshlrev_b32 v9, 1, v8
    s_lshl_b32 s{sTMP}, s{sWV}, 3
    v_add_u32 v1, s{sTMP}, v{VG}
    v_xor_b32 v2, v1, v{VJ}
    v_and_b32 v2, 15, v2
    v_lshlrev_b32 v2, 4, v2
    v_lshl_add_u32 v2, v1, 8, v2
    v_xor_b32 v3, 64, v2
    s_lshl_b32 s{sTMP}, s{sWV}, 11
    s_add_u32 m0, s{sTMP}, {XS}
    s_lshl_b32 s{sTMP+2}, s{sSTART}, 8
    s_mov_b32 s{sX+2}, {N*256}
    s_mov_b32 s{sX+3}, 0x20000
    s_waitcnt lgkmcnt(0)
    global_load_dwordx4 v[12:15], v8, s[10:11]
    {WSOFF}
    s_mov_b32 s{sX}, s4
    s_and_b32 s{sX+1}, s5, 0xffff
    buffer_load_dwordx4 v2, s[{sX}:{sX+3}], s{sTMP+2} offen lds
    buffer_load_dwordx4 v3, s[{sX}:{sX+3}], s{sTMP+2} offen offset:1024 lds
    s_barrier
    """)
    consts(a)
    a(f"""
    s_movk_i32 s{sTMP}, 625
    s_mov_b32 s{sTMP+1}, 214749
    v_mov_b32 v1, 1
    v_lshlrev_b32 v10, 4, v{VL}
    s_waitcnt vmcnt(2)
    global_load_dwordx4 v[16:19], v8, s[8:9]
    global_load_dwordx4 v[20:23], v9, s[6:7]
    global_load_dwordx4 v[24:27], v9, s[6:7] offset:16
    s_mov_b64 exec, s[{sEX}:{sEX+1}]
    """)
    for i in range(4):
        a(f"v_mul_u32_u24 v{28+i}, s{sTMP+1}, v{12+i}")
    for i in range(4):
        a(f"v_lshrrev_b32 v{28+i}, 23, v{28+i}\nv_lshlrev_b32 v{32+i}, 2, v{28+i}\nds_add_rtn_u32 v{36+i}, v{32+i}, v1 offset:{HIST}")
    a(f"""
    s_mov_b64 exec, -1
    s_waitcnt lgkmcnt(0)
    @stamp 2
    s_barrier
    ds_read_b128 v[40:43], v10 offset:{HIST}
    """)
    for i in range(4):
        a(f"v_mad_u32_u24 v{28+i}, v{28+i}, s{sTMP}, 15\nv_lshrrev_b32 v{28+i}, 4, v{28+i}\nv_sub_u32 v{28+i}, v{12+i}, v{28+i}")
    a(f"""
    s_waitcnt lgkmcnt(0)
    v_add_u32 v44, v40, v41
    v_add3_u32 v44, v44, v42, v43
    v_mov_b32 v45, v44
    """)
    dpp_scan(a, 45)
    a(f"""
    v_sub_u32 v48, v45, v44
    v_add_u32 v49, v48, v40
    v_add_u32 v50, v49, v41
    v_add_u32 v51, v50, v42
    ds_write_b128 v10, v[48:51] offset:{OFFS}
    s_mov_b32 s{sTMP}, {STAGE}
    s_mov_b64 exec, s[{sEX}:{sEX+1}]
    s_waitcnt lgkmcnt(0)
    """)
    for i in range(4):
        a(f"ds_read_b32 v{40+i}, v{32+i} offset:{OFFS}")
    a(f"""
    s_waitcnt vmcnt(3)
    @stamp 3
    s_barrier
    @amp 1
    s_waitcnt lgkmcnt(0)
    """)
    for i in range(4):
        a(f"v_add_u32 v{40+i}, v{40+i}, v{36+i}\nv_mad_u32_u24 v{40+i}, v{40+i}, 12, s{sTMP}")
    a("s_waitcnt vmcnt(2)")
    for i in range(4):
        a(f"v_lshl_or_b32 v{16+i}, v{28+i}, 18, v{16+i}\nds_write_b32 v{40+i}, v{16+i} offset:8")
    for i in range(4):
        if i % 2 == 0: a(f"s_waitcnt vmcnt({1 - i//2})")
        a(f"ds_write2_b32 v{40+i}, v{20+2*i}, v{21+2*i} offset0:0 offset1:1")
    a(f"""
    s_mov_b64 exec, -1
    s_branch A_JOIN
A_N1:
    ; ================= waves 5..15
    v_mov_b32 v8, 0
    """)
    wlane(a, 6)
    a(f"""
    s_sub_u32 s{sVT}, s{sWV}, 5
    s_lshl_b32 s{sVT}, s{sVT}, 12
    s_add_u32 m0, s{sVT}, {W1S}
    s_waitcnt lgkmcnt(0)
    s_mov_b32 s{sW}, s12
    s_and_b32 s{sW+1}, s13, 0xffff
    {WSOFF}
    s_cmp_ge_u32 s{sWV}, 13
    s_cbranch_scc1 A_N13
    """)
    if "w1late" not in OPT: wdma(a, sVT, 6)
    a(f"""
    s_cmp_ge_u32 s{sWV}, 10
    s_cbranch_scc1 A_N10
    ; waves 5..8: histogram = 0; wave 9: node counters and flags = 0
    s_mov_b32 s{sTMP+1}, {HIST - 320*4}
    s_cmp_eq_u32 s{sWV}, 9
    s_cselect_b32 s{sTMP+1}, {CNT - 576*4}, s{sTMP+1}
    v_lshl_add_u32 v3, v0, 2, s{sTMP+1}
    ds_write_b32 v3, v8
    ds_write_b32 v8, v8 offset:{FLG}
    ds_write_b32 v8, v8 offset:{FLG+4}
    s_cbranch_scc0 A_B0
    ds_write_b32 v3, v8 offset:{TF}
    s_branch A_B0
A_N13:
    s_cmp_eq_u32 s{sWV}, 15
    s_cbranch_scc1 A_N15
    s_and_b32 s{sTMP}, s{sG}, 31
    s_lshl_b32 s{sTMP}, s{sTMP}, 10
    s_cmp_eq_u32 s{sWV}, 13
    s_cselect_b32 s{sTMP+1}, 32768, 0
    s_cselect_b32 s{sTMP+2}, s12, s14
    s_cselect_b32 s{sTMP+3}, s13, s15
    s_add_u32 s{sTMP}, s{sTMP}, s{sTMP+1}
    v_lshl_add_u32 v3, v{VL}, 7, s{sTMP}
    s_mov_b64 exec, 0xff
    global_load_dword v40, v3, s[{sTMP+2}:{sTMP+3}]
    s_mov_b64 exec, -1
    s_cmp_eq_u32 s{sWV}, 14
    s_cbranch_scc0 A_N10
    """)
    if "tlb" in OPT:
        a(f"""
        v_mov_b32 v3, 0
        s_mov_b32 s3, {WS_REC - 128}
        v_writelane_b32 v3, s3, 1
        s_mov_b32 s3, {WS_REC + 200*REC_STRIDE - 128}
        v_writelane_b32 v3, s3, 2
        s_mov_b32 s3, {WS_F + 65536}
        v_writelane_b32 v3, s3, 3
        s_lshl_b32 s3, s{sSTART}, 8
        v_mov_b32 v4, s3
        v_mov_b32 v5, 128
        s_mov_b64 exec, 15
        global_load_dword v41, v3, s[{sWS}:{sWS+1}]
        s_mov_b64 exec, 1
        global_load_dword v42, v4, s[16:17]
        global_load_dword v43, v5, s[18:19]
        s_mov_b64 exec, -1
        """)
    a(f"""
    s_branch A_B0
A_N10:
    ; waves 10..13: src list = 0xffff (index out of range)
    v_lshlrev_b32 v3, 4, v0
    v_add_u32 v3, {SS - 640*16}, v3
    v_mov_b64 v[12:13], -1
    v_mov_b64 v[14:15], -1
    ds_write_b128 v3, v[12:15]
    s_branch A_B0
A_N15:
    s_cmp_lg_u32 s2, 0
    s_cbranch_scc1 A_B0
    s_memrealtime s[{sNON}:{sNON+1}]
    s_waitcnt lgkmcnt(0)
    s_or_b32 s{sNON}, s{sNON}, 1
    v_mov_b32 v10, s{sNON}
    v_mov_b32 v11, s{sNON+1}
    s_mov_b64 exec, 1
    global_store_dwordx2 v8, v[10:11], s[18:19] sc1
    s_mov_b64 exec, -1
A_B0:
    s_cmp_eq_u32 s{sWV}, 15
    s_cbranch_scc1 A_B1
    v_lshlrev_b32 v3, 4, v0
    v_add_u32 v3, {AGG - 320*16}, v3
    v_mov_b64 v[12:13], 0
    v_mov_b64 v[14:15], 0
    ds_write_b128 v3, v[12:15]
    ds_write_b128 v3, v[12:15] offset:10240
    ds_write_b128 v3, v[12:15] offset:20480
    ds_write_b128 v3, v[12:15] offset:30720
A_B1:
    s_waitcnt lgkmcnt({"0" if "zearly" in OPT else "4"})
    s_barrier
    """)
    if "w1late" in OPT:
        a(f"s_cmp_ge_u32 s{sWV}, 13\ns_cbranch_scc1 A_NOW1")
        wdma(a, sVT, 6)
        a("A_NOW1:")
    a(f"""
    s_cmp_eq_u32 s{sWV}, 15
    s_cbranch_scc0 A_NO15
    v_bfe_u32 v9, v{VL}, 4, 1
    v_lshlrev_b32 v9, 6, v9
    v_lshrrev_b32 v10, 5, v{VL}
    v_lshl_add_u32 v9, v10, 5, v9
    v_add_u32 v9, v9, v{VJ}
    v_lshlrev_b32 v9, 1, v9
    v_add_u32 v8, {256*256}, v9
    """)
    for s in range(8):
        a(f"global_load_ushort v{16 + s}, v8, s[12:13] offset:{(s & 3)*256 + (s >> 2)*32}")
    a(f"""
    s_cmp_ge_u32 s{sG}, 32
    s_cbranch_scc1 A_NO15
    s_and_b32 s{sTMP}, s{sG}, 1
    s_lshl_b32 s{sTMP}, s{sTMP}, 3
    s_bfe_u32 s{sTMP+1}, s{sG}, 0x10001
    s_lshl_b32 s{sTMP+1}, s{sTMP+1}, 6
    s_add_u32 s{sTMP}, s{sTMP}, s{sTMP+1}
    s_add_u32 s{sTMP}, s{sTMP}, 128
    s_lshl_b32 s{sTMP}, s{sTMP}, 8
    s_bfe_u32 s{sTMP+1}, s{sG}, 0x30002
    s_lshl_b32 s{sTMP+1}, s{sTMP+1}, 5
    s_add_u32 s{sTMP}, s{sTMP}, s{sTMP+1}
    v_lshlrev_b32 v8, 9, v{VG}
    v_lshl_add_u32 v8, v{VJ}, 1, v8
    v_add_u32 v8, s{sTMP}, v8
    v_add_u32 v9, {32*256}, v8
    v_add_u32 v10, {16*256}, v8
    v_add_u32 v11, {48*256}, v8
    """)
    for s in range(8):
        a(f"global_load_ushort v{24 + s}, v{8 + (s >> 1)}, s[14:15] offset:{(s & 1)*256}")
    a(f"""
A_NO15:
    """)
    consts(a)
    a(f"""
    s_barrier
    s_cmp_ge_u32 s{sWV}, 11
    s_cbranch_scc1 A_G11
    ; ================= waves 5..10: P = -log2e * x @ W1 for this group's rows (rt = (wv-5)>>1, hf = (wv-5)&1)
    s_sub_u32 s3, s{sWV}, 5
    s_and_b32 s{sTMP+1}, s3, 1
    s_lshr_b32 s{sTMP}, s3, 1
    s_lshl_b32 s{sTMP+2}, s{sTMP}, 12
    v_add_u32 v0, s{sTMP+2}, v{XA}
    v_add_u32 v1, s{sTMP+2}, v{XA+1}
    v_add_u32 v2, s{sTMP+2}, v{XA+2}
    v_add_u32 v3, s{sTMP+2}, v{XA+3}
    s_lshl_b32 s{sTMP+1}, s{sTMP+1}, 7
    v_xor_b32 v4, s{sTMP+1}, v{WA}
    v_add_u32 v4, {W1S}, v4
    v_xor_b32 v5, 32, v4
    v_xor_b32 v6, 64, v4
    v_xor_b32 v7, 96, v4
    s_add_u32 s{sTMP+2}, s{sTMP+2}, s{sTMP+1}
    s_lshl_b32 s{sTMP+1}, s{sSTART}, 8
    s_add_u32 s{sTMP+2}, s{sTMP+2}, s{sTMP+1}
    s_add_u32 s{sTMP+2}, s{sTMP+2}, {WS_P}
    v_lshlrev_b32 v{NANC}, 10, v{VG}
    v_lshl_add_u32 v{NANC}, v{VJ}, 3, v{NANC}
    v_add_u32 v{NANC}, s{sTMP+2}, v{NANC}
    s_mov_b32 s{sTMP+2}, {NLOG2E:#x}
    s_waitcnt vmcnt(0)
    @stamp 3
    s_barrier
    s_setprio 1
    """)
    def breads(ks):
        b = 8 + 16*(ks & 1)
        a(f"ds_read_b128 v[{40+4*ks}:{43+4*ks}], v{ks} offset:{XS}")
        for i in range(4):
            for h in range(2):
                a(f"ds_read_b64_tr_b16 v[{b+4*i+2*h}:{b+4*i+2*h+1}], v{4+i} offset:{8192*ks + 1024*h}")
    breads(0)
    for ks in range(4):
        if ks < 3:
            breads(ks+1)
            a("s_waitcnt lgkmcnt(9)")
        else:
            a("s_waitcnt lgkmcnt(0)")
        b = 8 + 16*(ks & 1)
        for i in range(4):
            c = "0" if ks == 0 else f"v[{56+4*i}:{59+4*i}]"
            a(f"v_mfma_f32_16x16x32_bf16 v[{56+4*i}:{59+4*i}], v[{40+4*ks}:{43+4*ks}], v[{b+4*i}:{b+4*i+3}], {c}")
    a(f"""
    s_cmp_eq_u32 s{sTMP}, 2
    s_cselect_b32 exec_hi, 0, -1
    s_nop 5
    """)
    for q in range(8):
        a(f"v_pk_mul_f32 v[{56+2*q}:{57+2*q}], v[{56+2*q}:{57+2*q}], s[{sTMP+2}:{sTMP+3}] op_sel_hi:[1,0]")
    for r in range(4):
        a(f"v_cvt_pk_bf16_f32 v{8+2*r}, v{56+r}, v{60+r}\nv_cvt_pk_bf16_f32 v{9+2*r}, v{64+r}, v{68+r}")
        a(f"global_store_dwordx2 v{NANC}, v[{8+2*r}:{9+2*r}], s[{sWS}:{sWS+1}] offset:{256*r} {STF}")
    a(f"""
    s_mov_b64 exec, -1
    s_setprio 0
    s_branch A_JOIN
A_G11:
    s_cmp_eq_u32 s{sWV}, 15
    s_cbranch_scc1 A_G15
    """)
    a(f"""
    s_waitcnt vmcnt(0)
    @stamp 3
    s_barrier
    s_branch A_JOIN
A_G15:
    @stamp 3
    s_barrier
    v_mov_b32 v8, 0
    s_mov_b32 s{sSPIN}, {SPINMAX}
A_NLOOP:
    global_load_dwordx2 v[10:11], v8, s[18:19] sc1
    s_sub_u32 s{sSPIN}, s{sSPIN}, 1
    s_cbranch_scc1 A_NDONE
    s_waitcnt vmcnt(0)
    v_cmp_eq_u32 vcc, 0, v10
    s_cbranch_vccnz A_NLOOP
A_NDONE:
    s_waitcnt vmcnt(0)
    v_lshlrev_b32 v11, 22, v11
    ds_write_b64 v8, v[10:11] offset:{NON}
    s_mov_b32 s{sTMP}, {NLOG2E:#x}
    """)
    for s in range(8):
        a(f"v_lshlrev_b32 v{16+s}, 16, v{16+s}\nv_mul_f32 v{16+s}, s{sTMP}, v{16+s}")
    for q in range(4):
        a(f"v_cvt_pk_bf16_f32 v{12+q}, v{16+2*q}, v{17+2*q}")
    a(f"""
    v_lshlrev_b32 v8, 4, v{VL}
    ds_write_b128 v8, v[12:15] offset:{W3S}
    s_cmp_ge_u32 s{sG}, 32
    s_cbranch_scc1 A_JOIN
    """)
    for q in range(4):
        a(f"v_lshl_or_b32 v{32+q}, v{25+2*q}, 16, v{24+2*q}")
    a(f"""
    s_lshl_b32 s{sTMP}, s{sG}, 10
    s_add_u32 s{sTMP}, s{sTMP}, {WS_F}
    v_add_u32 v8, s{sTMP}, v8
    global_store_dwordx4 v8, v[32:35], s[{sWS}:{sWS+1}] sc1
A_JOIN:
    v_lshlrev_b32 v0, 4, v{TID}
    s_mul_i32 s{sTMP}, s{sG}, {REC_STRIDE}
    s_add_u32 s{sTMP}, s{sTMP}, {WS_REC}
    v_add_u32 v1, s{sTMP}, v0
    s_waitcnt lgkmcnt(0)
    @stamp 4
    s_barrier
    @amp 2
    s_cmp_eq_u32 s{sWV}, 15
    s_cbranch_scc1 A_C2
    ds_read_b128 v[4:7], v0 offset:{STAGE}
    s_waitcnt lgkmcnt(0)
    global_store_dwordx4 v1, v[4:7], s[{sWS}:{sWS+1}] {STF}
A_C2:
    """)
    if "xcctest" in OPT:
        a(f"""
        s_getreg_b32 s80, hwreg(HW_REG_XCC_ID)
        s_and_b32 s80, s80, 15
        s_mul_i32 s3, s{sG}, {REC_STRIDE}
        s_add_u32 s3, s3, {WS_REC + 15360}
        v_mov_b32 v30, s3
        v_mov_b32 v31, s80
        global_store_dword v30, v31, s[{sWS}:{sWS+1}] sc1
        """)
    a(f"""
    v_mov_b32 v2, 0
    v_lshlrev_b32 v3, 4, v{VL}
    ds_read_b64 v[{SAD}:{SAD+1}], v2 offset:{NON}
    ds_read_b128 v[{W3}:{W3+3}], v3 offset:{W3S}
    """)
    wlane(a, 14)
    a(f"""
    s_lshl_b32 s{sTMP}, s{sWV}, 12
    s_add_u32 s{sTMP+1}, s{sTMP}, 32768
    s_sub_u32 s{sTMP+2}, s{sTMP}, 32768
    s_add_u32 s{sTMP+3}, s{sTMP}, {W2S}
    s_add_u32 s{sTMP}, s{sTMP+2}, {WTS}
    s_cmp_lt_u32 s{sWV}, 8
    s_cselect_b32 s{sW}, s12, s14
    s_cselect_b32 s{sW+1}, s13, s15
    s_cselect_b32 s{sVT}, s{sTMP+1}, s{sTMP+2}
    s_cselect_b32 m0, s{sTMP+3}, s{sTMP}
    s_and_b32 s{sW+1}, s{sW+1}, 0xffff
    """)
    if W2E:
        a("s_barrier" if "wboth" in OPT else f"s_barrier\ns_cmp_ge_u32 s{sWV}, 8\ns_cbranch_scc1 A_C4")
        wdma(a, sVT, 14)
        a("A_C4:")
    a(f"""
    s_mov_b32 s{sO}, s16
    s_and_b32 s{sO+1}, s17, 0xffff
    s_lshl_b32 s{sO+2}, s{sEND}, 8
    s_mov_b32 s{sO+3}, 0x20000
    s_add_u32 s{sP}, s{sWS}, {WS_P}
    s_addc_u32 s{sP+1}, s{sWS+1}, 0
    s_and_b32 s{sP+1}, s{sP+1}, 0xffff
    s_or_b32 s{sP+1}, s{sP+1}, {256 << 16}
    s_mov_b32 s{sP+2}, {N}
    s_mov_b32 s{sP+3}, 0x20000
    s_sub_u32 s{sP2}, s{sP}, 1024
    s_subb_u32 s{sP2+1}, s{sP+1}, 0
    s_mov_b32 s{sP2+2}, {N}
    s_mov_b32 s{sP2+3}, 0x20000
    s_add_u32 s{sREC}, s{sWS}, {WS_REC}
    s_addc_u32 s{sREC+1}, s{sWS+1}, 0
    s_and_b32 s{sREC+1}, s{sREC+1}, 0xffff
    s_mov_b32 s{sREC+2}, {NG*REC_STRIDE}
    s_mov_b32 s{sREC+3}, 0x20000
    s_mov_b32 s{sMODE}, 0
    s_mov_b32 s{sR0}, 0
    s_mov_b32 s{sR}, {4*RMAX}
    s_mov_b32 s{sONE}, 1.0
    s_mov_b32 s{sONE+1}, 1.0
    s_mov_b32 s{sSPIN}, {SPINMAX}
    v_mov_b64 v[{NANC}:{NANC+1}], 0
    v_mov_b32 v{MAXC}, 0
    s_and_b32 s{sTMP}, s{sWV}, 7
    s_lshl_b32 s{sTMP}, s{sTMP}, 5
    v_xor_b32 v{WA}, s{sTMP}, v{WA}
    s_and_b32 s{sTMP}, s{sWV}, 8
    s_lshl_b32 s{sTMP}, s{sTMP}, 12
    s_add_u32 s{sTMP}, s{sTMP}, {WTS}
    v_add_u32 v{WA}, s{sTMP}, v{WA}
    s_bfe_u32 s{sTMP}, s{sWV}, 0x10002
    s_lshl_b32 s{sTMP}, s{sTMP}, 7
    s_bfe_u32 s{sTMP+1}, s{sWV}, 0x10001
    s_lshl_b32 s{sTMP+1}, s{sTMP+1}, 8
    s_add_u32 s{sTMP}, s{sTMP}, s{sTMP+1}
    s_and_b32 s{sTMP+1}, s{sWV}, 1
    s_lshl_b32 s{sTMP+1}, s{sTMP+1}, 2
    s_add_u32 s{sTMP}, s{sTMP}, s{sTMP+1}
    v_lshlrev_b32 v{QAD}, 11, v{VG}
    v_lshl_add_u32 v{QAD}, v{VJ}, 3, v{QAD}
    v_add_u32 v{QAD}, s{sTMP}, v{QAD}
    s_mov_b32 s{sTMP+2}, {NLOG2E:#x}
    s_waitcnt lgkmcnt(0)
    v_readfirstlane_b32 s{sNON}, v{SAD}
    v_readfirstlane_b32 s{sNON+1}, v{SAD+1}
    """)
    if PF1:
        a(f"""
        ; this CU's share of the first {512*PF1} lines of P (pulled into the L2 behind the publish; speed only)
        s_and_b32 s{sTMP}, s{sG}, 31
        s_lshl_b32 s{sTMP}, s{sTMP}, 4
        s_add_u32 s{sTMP}, s{sTMP}, s{sWV}
        s_lshr_b32 s{sTMP+1}, s{sG}, 5
        s_lshl_b32 s{sTMP+1}, s{sTMP+1}, 6
        s_add_u32 s{sTMP}, s{sTMP}, s{sTMP+1}
        s_and_b32 s{sTMP}, s{sTMP}, 511
        s_mul_i32 s{sTMP}, s{sTMP}, {PF1*128}
        s_add_u32 s{sTMP}, s{sTMP}, {WS_P}
        v_lshl_add_u32 v3, v{L8}, 4, s{sTMP}
        """)
    a(f"""
    s_cmp_lt_u32 s{sWV}, 14
    s_cbranch_scc1 A_NOT
    ; waves 14, 15: granules (start | count<<11 | tag<<22, tag) of groups 2t, 2t+1 (t = tid - 896)
    v_lshlrev_b32 v8, 3, v{TID}
    ds_read_b64 v[10:11], v8 offset:{OFFS - 896*8}
    ds_read_b64 v[12:13], v8 offset:{HIST - 896*8}
    s_lshl_b32 s{sTMP}, s{sG}, 11
    s_add_u32 s{sTMP}, s{sTMP}, {WS_T - 896*16}
    v_lshl_add_u32 v8, v8, 1, s{sTMP}
    v_mov_b32 v5, s{sNON}
    v_mov_b32 v7, s{sNON}
    s_waitcnt lgkmcnt(0)
    v_lshl_or_b32 v4, v12, 11, v10
    v_lshl_or_b32 v6, v13, 11, v11
    v_or_b32 v4, s{sNON+1}, v4
    v_or_b32 v6, s{sNON+1}, v6
    s_waitcnt vmcnt({4 if "wboth" in OPT else 0})
    @stamp 5
    s_barrier
    global_store_dwordx4 v8, v[4:7], s[{sWS}:{sWS+1}] sc1
    s_branch A_PUB
A_NOT:
    """)
    if "wboth" in OPT: a("s_waitcnt vmcnt(4)")
    elif W2E: a(f"s_cmp_lt_u32 s{sWV}, 8\ns_cbranch_scc1 A_WT4\ns_waitcnt vmcnt(0)\nA_WT4:\ns_waitcnt vmcnt(4)")
    else: a("s_waitcnt vmcnt(0)")
    a(f"""
    @stamp 5
    s_barrier
A_PUB:
    s_barrier
    @amp 3
    """)
    if W2E: a(f"s_cmp_lt_u32 s{sWV}, 8\ns_cbranch_scc1 A_NOWT")
    if "wboth" not in OPT: wdma(a, sVT, 14)
    if W2E: a("A_NOWT:")
    if PF1:
        a(f"""
        s_mov_b64 exec, {(1 << PF1) - 1:#x}
        global_load_dword v2, v3, s[{sWS}:{sWS+1}] sc1
        s_mov_b64 exec, -1
        """)
    a(f"""
A_QD:
    s_lshl_b32 s{sRING}, s{sWV}, 12
    s_add_u32 s{sRING}, s{sRING}, {RING}
    s_add_u32 s{sRING+1}, s{sRING}, 2048
    s_and_b32 s{sRHO}, s{sWV}, 3
    s_lshl_b32 s{sRHO}, s{sRHO}, 2
    s_lshr_b32 s{sTMP}, s{sWV}, 2
    s_or_b32 s{sRHO}, s{sRHO}, s{sTMP}
    v_add_u32 v{PAD}, s{sRING}, v{L8}
    s_mov_b32 s3, 1
    v_mov_b32 v19, 0x3fffff
    s_waitcnt vmcnt({1 if PF1 else 0})
    @stamp 6
    {"s_barrier" if "noqbar" not in OPT else ""}
    {f"s_sleep {OPT['sleep0']}" if "sleep0" in OPT else ""}
    @amp 4
T_LOOP:
    global_load_dwordx2 v[20:21], v{AAD}, s[{sWS}:{sWS+1}] sc1
    s_sub_u32 s{sSPIN}, s{sSPIN}, 1
    s_cbranch_scc1 T_DONE
    s_waitcnt vmcnt(0)
    v_xor_b32 v{TW}, s{sNON+1}, v20
    v_cmp_ne_u32 vcc, s{sNON}, v21
    v_cmp_lt_u32 s[{sTMP}:{sTMP+1}], v19, v{TW}
    s_or_b64 exec, vcc, s[{sTMP}:{sTMP+1}]
    s_cbranch_scc1 T_LOOP
T_DONE:
    s_mov_b64 exec, -1
    s_waitcnt vmcnt(0)
    @stamp 7
    @amp 5
K_PASS:
    v_and_b32 v9, 0x7ff, v{TW}
    v_bfe_u32 v15, v{TW}, 11, 11
    v_add_u32 v9, s{sR0}, v9
    v_mad_u32_u24 v9, v9, 12, v{RAD}
    v_subrev_u32 v15, s{sR0}, v15
    v_min_i32 v10, s{sR}, v15
    v_and_b32 v11, 3, v{TID}
    v_sub_u32 v10, v10, v11
    """)
    for r in range(RMAX):
        a(f"v_cmp_lt_i32 s[{sEX+2*r}:{sEX+2*r+1}], {4*r}, v10")
    a(f"v_cmp_lt_i32 vcc, s{sR}, v15")
    for r in range(RMAX):
        a(f"s_mov_b64 exec, s[{sEX+2*r}:{sEX+2*r+1}]")
        if r >= 2: a(f"s_cbranch_execz K_LD")
        a(f"buffer_load_dwordx3 v[{32+4*r}:{34+4*r}], v9, s[{sREC}:{sREC+3}], 0 offen offset:{48*r} sc1")
    a(f"""
K_LD:
    s_mov_b64 exec, -1
    v_mov_b32 v13, 1
    v_lshrrev_b32 v14, 1, v{L8}
    s_cbranch_vccz K_NOMORE
    v_mov_b32 v9, 0
    ds_write_b32 v9, v13 offset:{FLG}
K_NOMORE:
    """)
    if PF2:
        a(f"""
        s_and_b32 s{sTMP}, s{sG}, 31
        s_lshl_b32 s{sTMP}, s{sTMP}, 4
        s_add_u32 s{sTMP}, s{sTMP}, s{sWV}
        s_lshr_b32 s{sTMP+1}, s{sG}, 5
        s_lshl_b32 s{sTMP+1}, s{sTMP+1}, 6
        s_add_u32 s{sTMP}, s{sTMP}, s{sTMP+1}
        s_and_b32 s{sTMP}, s{sTMP}, 511
        s_mul_i32 s{sTMP}, s{sTMP}, {PF2*128}
        s_add_u32 s{sTMP}, s{sTMP}, {(20000 - 512*PF2)*128 + WS_P}
        v_lshl_add_u32 v12, v{L8}, 4, s{sTMP}
        """)
    a(f"""
    s_cmp_eq_u32 s3, 0
    s_mov_b32 s3, 0
    s_cbranch_scc1 K_NOU
    ; first pass, column tile wv&7: waves 0..7 U = -log2e * (x @ Wupd_top)^T (rows = channels) -> registers,
    """)
    for ks in range(4):
        for h in range(2):
            a(f"ds_read_b64_tr_b16 v[{16+4*ks+2*h}:{17+4*ks+2*h}], v{WA} offset:{8192*ks + 1024*h}")
    XB0 = (52, 56, 60, 64); XB1 = (0, 4, 8, 68)
    def xr(xb, off):
        for ks in range(4): a(f"ds_read_b128 v[{xb[ks]}:{xb[ks]+3}], v{XA+ks} offset:{off}")
    xr(XB0, XS); xr(XB1, XS + 4096)
    a(f"s_mov_b32 s{sTMP+2}, {NLOG2E:#x}\ns_cmp_ge_u32 s{sWV}, 8\ns_cbranch_scc1 K_Q")
    for isq in (0, 1):
        if isq: a("K_Q:")
        def um(rt, xb):
            for ks in range(4):
                c = "0" if ks == 0 else f"v[{UA[rt]}:{UA[rt]+3}]"
                w = f"v[{16+4*ks}:{19+4*ks}]"; x = f"v[{xb[ks]}:{xb[ks]+3}]"
                a(f"v_mfma_f32_16x16x32_bf16 v[{UA[rt]}:{UA[rt]+3}], {x if isq else w}, {w if isq else x}, {c}")
        a("s_waitcnt lgkmcnt(4)")
        um(0, XB0)
        xr(XB0, XS + 8192)
        a("s_waitcnt lgkmcnt(4)")
        um(1, XB1)
        a("s_waitcnt lgkmcnt(0)")
        um(2, XB0)
        if not isq: a("s_nop 3")
        for rt in range(3):
            if rt == 2 and not isq: a("s_nop 1")
            for q in range(2):
                u = UA[rt] + 2*q
                a(f"v_pk_mul_f32 v[{u}:{u+1}], v[{u}:{u+1}], s[{sTMP+2}:{sTMP+3}] op_sel_hi:[1,0]")
            if isq:
                if rt == 2: a("s_mov_b32 exec_hi, 0")
                for r in range(4):
                    a(f"ds_write_b32 v{QAD}, v{UA[rt]+r} offset:{QS + rt*8192 + r*512}")
        a("s_mov_b64 exec, -1" if isq else "s_branch K_NOU")
    a("K_NOU:\ns_waitcnt vmcnt(0)\n@stamp 8\n@amp 6")
    if PF2:
        a(f"s_mov_b64 exec, {(1 << PF2) - 1:#x}\nglobal_load_dword v63, v12, s[{sWS}:{sWS+1}] sc1")
    for r in range(RMAX):
        a(f"s_mov_b64 exec, s[{sEX+2*r}:{sEX+2*r+1}]")
        if r >= 2: a(f"s_cbranch_execz K_HD")
        a(f"v_lshrrev_b32 v{r}, 16, v{34+4*r}\nds_add_rtn_u32 v{35+4*r}, v{r}, v13 offset:{CNT}")
    a(f"""
K_HD:
    s_mov_b64 exec, -1
    s_waitcnt lgkmcnt(0)
    s_barrier
    ds_read_b32 v8, v14 offset:{CNT}
    s_waitcnt lgkmcnt(0)
    v_add_u32 v10, 7, v8
    v_lshrrev_b32 v11, 3, v10
    """)
    dpp_scan(a, 11, [f"v_cmp_ne_u32 s[{sNZ}:{sNZ+1}], 0, v8", f"v_and_b32 v{NCNT}, 7, v10", f"v_and_b32 v10, -8, v10", f"v_add_u32 v{NCNT}, 1, v{NCNT}"])
    a(f"""
    v_lshlrev_b32 v15, 3, v11
    v_sub_u32 v15, v15, v10
    v_readlane_b32 s{sTMP}, v11, 63
    """)
    for r in range(RMAX):
        if r >= 2: a(f"s_cmp_eq_u64 s[{sEX+2*r}:{sEX+2*r+1}], 0\ns_cbranch_scc1 K_BD")
        a(f"ds_bpermute_b32 v{16+r}, v{r}, v15")
    a(f"""
K_BD:
    s_cmp_gt_u32 s{sTMP}, {CAP//8}
    s_cbranch_scc1 K_SHRINK
    s_mul_i32 s{sT0}, s{sTMP}, s{sRHO}
    s_add_u32 s{sTMP}, s{sT0}, s{sTMP}
    s_lshr_b32 s{sT0}, s{sT0}, 4
    s_lshr_b32 s{sTMP}, s{sTMP}, 4
    v_cmp_ge_u32 vcc, s{sT0}, v11
    s_sub_u32 s{sLEFT}, s{sTMP}, s{sT0}
    s_cmp_lg_u32 s{sWV}, 15
    s_cbranch_scc1 K_NOTF
    s_mov_b64 exec, s[{sNZ}:{sNZ+1}]
    ds_write_b8 v11, v13 offset:{TF - 1}
K_NOTF:
    s_waitcnt lgkmcnt(0)
    """)
    for r in range(RMAX):
        a(f"s_mov_b64 exec, s[{sEX+2*r}:{sEX+2*r+1}]")
        if r >= 2: a("s_cbranch_execz K_SD")
        a(f"""
        v_add_lshl_u32 v10, v{16+r}, v{35+4*r}, 3
        v_add_lshl_u32 v9, v{16+r}, v{35+4*r}, 1
        {f"v_and_b32 v{34+4*r}, {OPT['x_mask']}, v{34+4*r}" if "x_mask" in OPT else ""}
        ds_write_b64 v10, v[{32+4*r}:{33+4*r}] offset:{ES}
        ds_write_b16 v9, v{34+4*r} offset:{SS}
        """)
    a(f"""
K_SD:
    s_mov_b64 exec, -1
    s_bcnt1_i32_b64 s{sNC}, vcc
    s_min_u32 s{sNC}, s{sNC}, 61
    s_or_b32 s{sNZ+1}, s{sNZ+1}, 0xc0000000
    s_lshr_b64 s[{sNZ}:{sNZ+1}], s[{sNZ}:{sNZ+1}], s{sNC}
    s_lshl_b64 s[{sNZ}:{sNZ+1}], s[{sNZ}:{sNZ+1}], s{sNC}
    s_mov_b64 s[{sNZ2}:{sNZ2+1}], s[{sNZ}:{sNZ+1}]
    s_mov_b32 s{sNQ}, s{sNC}
    v_lshl_add_u32 v{AAD}, s{sNC}, 10, v{L8}
    v_lshl_add_u32 v{EAD}, s{sT0}, 6, v{E8}
    v_lshl_add_u32 v{SAD}, s{sT0}, 4, v{G2}
    v_lshrrev_b32 v9, 2, v14
    v_add_u32 v9, s{sT0}, v9
    s_waitcnt lgkmcnt(0)
    s_barrier
    s_setprio 3
    @stamp 10
    @amp 7
    s_cmp_eq_u32 s{sLEFT}, 0
    s_cbranch_scc1 K_MAINDONE
    s_cmp_lg_u32 s{sMODE}, 0
    s_cbranch_scc1 S_START
    """)
    mainloop(a, False)
    a(f"""
K_MAINDONE:
    @stamp 11
    @amp 8
    s_waitcnt vmcnt(0)
    v_mov_b32 v17, {f2u(2.0**120):#x}
    v_add_f32 v18, v{NANC}, v{NANC+1}
    v_cmp_nle_f32 vcc, v{MAXC}, v17
    v_cmp_u_f32 s[{sTMP}:{sTMP+1}], v18, v18
    v_mov_b32 v{QAD}, 0
    s_or_b64 vcc, vcc, s[{sTMP}:{sTMP+1}]
    s_cbranch_scc0 K_NOOVF
    v_mov_b32 v20, 1
    ds_write_b32 v{QAD}, v20 offset:{FLG+4}
K_NOOVF:
    s_cmp_ge_u32 s{sWV}, 8
    s_cbranch_scc1 K_NOFA
    s_lshl_b32 s{sTMP}, s{sWV}, 12
    s_add_u32 s{sTMP}, s{sTMP}, {WS_F}
    v_lshl_add_u32 v{EAD}, v{L8}, 1, s{sTMP}
    """)
    for ks in range(4): a(f"global_load_dwordx4 v[{4*ks}:{4*ks+3}], v{EAD}, s[{sWS}:{sWS+1}] offset:{1024*ks} sc1")
    a(f"""
    v_xor_b32 v16, v{VG}, v{VJ}
    v_lshlrev_b32 v16, 4, v16
    v_lshl_add_u32 v{XA}, v{VJ}, 8, v16
    v_xor_b32 v{XA+1}, 64, v{XA}
    v_xor_b32 v{XA+2}, 128, v{XA}
    v_xor_b32 v{XA+3}, 192, v{XA}
    ; staging address: row*256 + ((2*ct + (g>>1)) ^ j)*16 + (g&1)*8, row = 16*rt + j
    s_lshl_b32 s{sTMP}, s{sWV}, 1
    v_lshrrev_b32 v{EAD}, 1, v{VG}
    v_or_b32 v{EAD}, s{sTMP}, v{EAD}
    v_xor_b32 v{EAD}, v{EAD}, v{VJ}
    v_and_b32 v16, 1, v{VG}
    v_lshl_or_b32 v{EAD}, v{EAD}, 1, v16
    v_lshlrev_b32 v{EAD}, 3, v{EAD}
    v_lshl_add_u32 v{EAD}, v{VJ}, 8, v{EAD}
K_NOFA:
    v_lshrrev_b32 v21, 4, v{TID}
    v_lshlrev_b32 v23, 10, v21
    v_lshl_add_u32 v23, v{VJ}, 4, v23
    v_xor_b32 v24, v21, v{VJ}
    v_and_b32 v24, 15, v24
    v_lshlrev_b32 v24, 4, v24
    v_lshl_add_u32 v{SAD}, v21, 8, v24
    s_lshl_b32 s{sTMP}, s{sSTART}, 8
    v_lshl_add_u32 v{AAD}, v{TID}, 4, s{sTMP}
    s_waitcnt lgkmcnt(0)
    s_barrier
    @estamp 2
    ds_read_b64 v[24:25], v{QAD} offset:{FLG}
    s_cmp_ge_u32 s{sWV}, 10
    s_cbranch_scc1 K_NOCV
    ds_read_b128 v[36:39], v23 offset:{AGG}
    ds_read_b128 v[40:43], v23 offset:{AGG+256}
    ds_read_b128 v[44:47], v23 offset:{AGG+512}
    ds_read_b128 v[48:51], v23 offset:{AGG+768}
    """)
    for q in range(4):
        a(f"s_waitcnt lgkmcnt({3-q})\nv_cvt_f32_f64 v{28+2*q}, v[{36+4*q}:{37+4*q}]\nv_cvt_f32_f64 v{29+2*q}, v[{38+4*q}:{39+4*q}]")
    for q in range(4):
        a(f"v_cvt_pk_bf16_f32 v{28+q}, v{28+2*q}, v{29+2*q}")
    a(f"""
    ds_write_b128 v{SAD}, v[28:31] offset:{AB}
K_NOCV:
    s_waitcnt lgkmcnt(0)
    v_or_b32 v27, v24, v25
    v_cmp_ne_u32 vcc, 0, v27
    s_cbranch_vccnz K_SLOW
K_FINAL:
    @estamp 3
    s_barrier
    @estamp 4
    s_cmp_ge_u32 s{sWV}, 10
    s_cbranch_scc1 K_END2
    s_cmp_ge_u32 s{sWV}, 8
    s_cbranch_scc1 K_OUT
    """)
    for rt in range(3): xreads(a, 16 + 16*rt, AB + rt*4096)
    a(f"s_mov_b32 s{sTMP+2}, {f2u(-LOG2E/(1+float(OPT.get('eps', 0)))):#x}\ns_waitcnt vmcnt(0)")
    def fm(rt):
        a(f"s_waitcnt lgkmcnt({8 - 4*rt if not (rt == 2 and 'noeil' not in OPT) else 1})")
        mm16(a, UA[rt], 16 + 16*rt, 0, swap=True, first=False)
    def silu(rt):
        u = UA[rt]; t = 64
        a(f"""
        v_exp_f32 v{t}, v{u}
        v_exp_f32 v{t+1}, v{u+1}
        v_exp_f32 v{t+2}, v{u+2}
        v_exp_f32 v{t+3}, v{u+3}
        v_pk_fma_f32 v[{t}:{t+1}], v[{t}:{t+1}], s[{sTMP+2}:{sTMP+3}], s[{sTMP+2}:{sTMP+3}] op_sel_hi:[1,0,0]
        v_pk_fma_f32 v[{t+2}:{t+3}], v[{t+2}:{t+3}], s[{sTMP+2}:{sTMP+3}], s[{sTMP+2}:{sTMP+3}] op_sel_hi:[1,0,0]
        v_rcp_f32 v{t}, v{t}
        v_rcp_f32 v{t+1}, v{t+1}
        v_rcp_f32 v{t+2}, v{t+2}
        v_rcp_f32 v{t+3}, v{t+3}
        v_pk_mul_f32 v[{t}:{t+1}], v[{t}:{t+1}], v[{u}:{u+1}]
        v_pk_mul_f32 v[{t+2}:{t+3}], v[{t+2}:{t+3}], v[{u+2}:{u+3}]
        v_cvt_pk_bf16_f32 v{16+2*rt}, v{t}, v{t+1}
        v_cvt_pk_bf16_f32 v{17+2*rt}, v{t+2}, v{t+3}
        ds_write_b64 v{EAD}, v[{16+2*rt}:{17+2*rt}] offset:{OUTS + rt*4096}
        """)
    if "noeil" not in OPT:
        fm(0); fm(1); a("s_nop 2"); silu(0); fm(2); silu(1); silu(2)
    else:
        fm(0); fm(1); fm(2); a("@estamp 5"); silu(0); silu(1); silu(2)
    a(f"""
K_OUT:
    s_waitcnt lgkmcnt(0)
    @estamp 6
    s_barrier
    @estamp 7
    ds_read_b128 v[32:35], v{SAD} offset:{OUTS}
    s_waitcnt lgkmcnt(0)
    buffer_store_dwordx4 v[32:35], v{AAD}, s[{sO}:{sO+3}], 0 offen {OPT.get('ost', 'sc1').replace('+', ' ')}
    @estamp 8
K_END2:
    """)
    if "xcctest" in OPT:
        a(f"""
        s_lshl_b32 s3, s22, 8
        s_or_b32 s3, s3, s{sG}
        s_cmp_lg_u32 s3, 100
        s_cbranch_scc1 XT_DONE
        v_mov_b32 v30, {WS_REC + 15360 + 101*REC_STRIDE}
        global_load_dword v31, v30, s[{sWS}:{sWS+1}] sc1
        s_waitcnt vmcnt(0)
        v_readfirstlane_b32 s81, v31
        s_cmp_eq_u32 s81, s80
        s_cbranch_scc{OPT["xcctest"]} XT_DONE
        s_memrealtime s[76:77]
        s_waitcnt lgkmcnt(0)
XT_LOOP:
        s_memrealtime s[78:79]
        s_waitcnt lgkmcnt(0)
        s_sub_u32 s78, s78, s76
        s_cmp_lt_u32 s78, 2000
        s_cbranch_scc1 XT_LOOP
XT_DONE:
        """)
    a(f"""
    @store
K_END:
    s_endpgm
K_SHRINK:
    ; too many slots for one pass: redo this pass with at most 4 records per cell
    s_mov_b32 s{sR}, 4
    s_mov_b32 s{sTMP+1}, 0
    s_branch K_REINIT
K_SLOW:
    v_readfirstlane_b32 s{sTMP}, v24
    v_readfirstlane_b32 s{sTMP+1}, v25
    s_cmp_eq_u32 s{sMODE}, 0
    s_cselect_b32 s{sTMP+1}, s{sTMP+1}, 0
    s_or_b32 s{sTMP}, s{sTMP}, s{sTMP+1}
    s_cbranch_scc0 K_FINAL
    s_add_u32 s{sR0}, s{sR0}, s{sR}
K_REINIT:
    s_waitcnt vmcnt(0) lgkmcnt(0)
    s_barrier
    v_lshrrev_b32 v9, 1, v{L8}
    v_mov_b32 v10, 0
    ds_write_b32 v9, v10 offset:{CNT}
    ds_write_b32 v9, v10 offset:{TF}
    ds_write_b32 v10, v10 offset:{FLG}
    ds_write_b32 v10, v10 offset:{FLG+4}
    v_lshlrev_b32 v9, 2, v{TID}
    v_mov_b32 v10, -1
    ds_write_b32 v9, v10 offset:{SS}
    s_cmp_eq_u32 s{sTMP+1}, 0
    s_cbranch_scc1 K_SLOW1
    s_mov_b32 s{sMODE}, 1
    s_mov_b32 s{sR0}, 0
    s_mov_b32 s{sR}, {4*RMAX}
    v_lshlrev_b32 v9, 4, v{TID}
    v_add_u32 v9, {AGG}, v9
    v_mov_b64 v[32:33], 0
    v_mov_b64 v[34:35], 0
    ds_write_b128 v9, v[32:35]
    ds_write_b128 v9, v[32:35] offset:16384
    ds_write_b128 v9, v[32:35] offset:24576
K_SLOW1:
    s_waitcnt lgkmcnt(0)
    s_barrier
    s_branch K_PASS
    """)
    mainloop(a, True)
    return a.text()

HEADER = """; Kernarg layout for this problem (72 bytes, ptrs only, base s[0:1]):
;   offset  24: d_in[3] dst  shape=(320000,) dtype=int32
; One workgroup per CU (256 workgroups, 39-40 destination nodes each).
; Phase A: bin 1280 edges by destination group, P = -log2e * x @ W1 for the own rows, publish both (write-through,
;          tagged granules).  Phase B: collect the group's edges, list them per node, evaluate the messages
"""
def main():
    s = ("; opts " + " ".join(sys.argv[2:]) + "\n" if len(sys.argv) > 2 else "") + HEADER
    s += f"; @launch grid=({NG},1,1) block=(1024,1,1) lds={LDS_BYTES}\n"
    s += '.amdgcn_target "amdgcn-amd-amdhsa--gfx950"\n.text\n'
    s += f".globl {KN}\n.p2align 8\n.type {KN},@function\n" + kernel()
    s += f""".section .rodata,"a"
.p2align 6
.amdhsa_kernel {KN}
  .amdhsa_next_free_vgpr {NVGPR}
  .amdhsa_next_free_sgpr {100 if (DIAG or AMP or 'xcctest' in OPT) else NSGPR}
  .amdhsa_accum_offset {NVGPR}
  .amdhsa_group_segment_fixed_size 0
  .amdhsa_kernarg_size 72
  .amdhsa_user_sgpr_count 2
  .amdhsa_user_sgpr_kernarg_segment_ptr 1
  .amdhsa_system_sgpr_workgroup_id_x 1
.end_amdhsa_kernel
"""
    open(sys.argv[1], "w").write(s)
main()
```

```python
import sys, struct

N = 10000; E = 320000
NG = 256
EPW = 1280
REC_STRIDE = 15360
WS_P = 0
WS_REC = 0x280000
WS_T = 0x640000
WS_F = 0xA40000
NGEMM = 209
LOG2E = 1.4426950408889634
def f2u(x): return struct.unpack("<I", struct.pack("<f", x))[0]
NLOG2E = f2u(-LOG2E)
NLN2 = f2u(-0.6931471805599453)

class Asm:
    def __init__(self): self.l = []
    def __call__(self, s):
        for ln in s.strip("\n").split("\n"):
            ln = ln.strip()
            if ln.startswith("@stamp"): stamp(self, int(ln.split()[1])); continue
            if ln.startswith("@rt"): stamp_rt(self, int(ln.split()[1])); continue
            if ln.startswith("@store"):
                p = ln.split(); stamp_store(self, int(p[1]), int(p[2]), int(p[3])); continue
            if ln: self.l.append(ln if ln.endswith(":") else "    " + ln)
    def text(self): return "\n".join(self.l) + "\n"

OPT = dict(a.split("=") if "=" in a else (a, "1") for a in sys.argv[2:])

DIAG = "diag" in OPT
WS_DIAG = 0xB00000
AMP = int(OPT.get("amp", 0))
def stamp(a, i):
    if AMP and i in (1, AMP): a(f"s_memrealtime s[{64+2*(i != 1)}:{65+2*(i != 1)}]\ns_waitcnt lgkmcnt(0)")
    if DIAG: a(f"{'s_memrealtime' if OPT['diag'] == 'rt' else 's_memtime'} s[{64+2*i}:{65+2*i}]\ns_waitcnt lgkmcnt(0)")
def stamp_rt(a, i):
    if DIAG: a(f"s_memrealtime s[{64+2*i}:{65+2*i}]\ns_waitcnt lgkmcnt(0)")
def stamp_store(a, wsreg, tidv, base, n=16):
    if AMP:
        a("s_waitcnt vmcnt(0)")
        stamp(a, 14)
        a(f"""
        s_cmp_lg_u32 s2, 0
        s_cbranch_scc1 AMP_DONE
        s_sub_u32 s66, s66, s64
        s_lshl_b32 s66, s66, 2
        s_memrealtime s[68:69]
        s_waitcnt lgkmcnt(0)
AMP_LOOP:
        s_memrealtime s[70:71]
        s_waitcnt lgkmcnt(0)
        s_sub_u32 s70, s70, s68
        s_cmp_lt_u32 s70, s66
        s_cbranch_scc1 AMP_LOOP
AMP_DONE:
        """)
    if not DIAG: return
    a(f"s_waitcnt vmcnt(0)")
    stamp(a, n-2); stamp_rt(a, n-1)
    a(f"s_mov_b64 exec, -1\nv_lshrrev_b32 v1, 6, v{tidv}\ns_lshl_b32 s3, s2, 4\nv_add_u32 v1, s3, v1\nv_lshlrev_b32 v1, 6, v1\nv_add_u32 v1, {base}, v1")
    for i in range(n):
        a(f"v_mov_b32 v2, s{64+2*i}\nglobal_store_dword v1, v2, s[{wsreg}:{wsreg+1}] offset:{4*i}")
def dpp_scan(a, v):
    for sh in (1, 2, 4, 8):
        a(f"s_nop 1\nv_add_u32_dpp v{v}, v{v}, v{v} row_shr:{sh} row_mask:0xf bank_mask:0xf bound_ctrl:0")
    a(f"s_nop 1\nv_add_u32_dpp v{v}, v{v}, v{v} row_bcast:15 row_mask:0xa bank_mask:0xf")
    a(f"s_nop 1\nv_add_u32_dpp v{v}, v{v}, v{v} row_bcast:31 row_mask:0xc bank_mask:0xf")

CNT = 0; FLG = 256; NON = 272
CAP = 2048
SS = 512
QS = SS + CAP*2 + 256
ES = QS + 40*512
AGG = ES + CAP*8
RING = 82944
STAGE = RING + 65536
LDS_BYTES = STAGE + 15360
W1S = RING; W2S = RING + 32768; WTS = RING; XS = ES
HIST = ES + 12288; OFFS = HIST + 1024; W3S = OFFS + 1024
RMAX = 5
NPROD = E // EPW
D0, D1, QR, VU, BP, AE, ID, W3 = 0, 16, 32, 48, 64, 72, 76, 84
VA, NUM, DEN, NANC, MAXC = 88, 90, 92, 94, 96
EAD, SAD, PAD, IX0, IX1, QAD, AAD, L8, NCNT, TID, TW = 97, 98, 99, 100, 102, 104, 105, 106, 107, 108, 109
RAD, E8 = 110, 111
UA = 112
G2 = 124; VG = 125; VJ = 126; VL = 127
NVGPR = 128
sWS = 20; sWV = 22; sSTART = 23
sX = 24; sW = 28; sP = 24; sO = 28; sREC = 4; sW2 = 40
sR0 = 8; sR = 9; sMODE = 10; sLEFT = 11; sREM = 12; sNODE = 14; sCNT = 16; sRUN = 17; sTT = 18; sT0 = 19
sNZ = 32; sM0 = 34; sM1 = 36; sONE = 38; sRING = 40; sTMP = 44; sG = 49
sEX = 50
sNON = 60
sEND = 62; sSPIN = 63; sCM = 52; sEV = 48; sFIRST = 3; sRHO = 42; sW2O = 11; sP2 = 64 if not (DIAG or AMP) else 96
PST_F = OPT.get('pst', 'sc1').replace('+', ' ')
PF2 = int(OPT.get('pf2', 12))
POLL_F = OPT.get('poll', 'sc1').replace('+', ' ')
TGW = 'tgw' in OPT
TST_F = OPT.get('tst', 'sc1').replace('+', ' ')
NREP = int(OPT.get('rep', 1))
PF1 = int(OPT.get('pf1', 16))
PFK = int(OPT.get('pfk', 0))
SPINMAX = 400000
KN = "gather_scatter__mpnn_edge_mlp__graph_kernel"

def mainloop(a, safe):
    L = "S" if safe else "F"
    def ex(d, k):
        if "x_novalu" in OPT: a("s_nop 0"); return
        a(f"v_exp_f32 v{VU+k}, v{d+k}")
    def pk(d, e):
        t = d + 2*e; u = VU + 2*e
        if "x_novalu" in OPT: return
        if not safe:
            a(f"""
            v_pk_fma_f32 v[{VA}:{VA+1}], v[{t}:{t+1}], v[{DEN}:{DEN+1}], v[{NUM}:{NUM+1}]
            v_pk_fma_f32 v[{DEN}:{DEN+1}], v[{DEN}:{DEN+1}], v[{u}:{u+1}], v[{DEN}:{DEN+1}]
            v_pk_fma_f32 v[{NUM}:{NUM+1}], v[{NUM}:{NUM+1}], v[{u}:{u+1}], v[{VA}:{VA+1}]
            """)
        else:
            a(f"""
            v_pk_add_f32 v[{u}:{u+1}], v[{u}:{u+1}], 1.0 op_sel_hi:[1,0]
            v_rcp_f32 v{u}, v{u}
            v_rcp_f32 v{u+1}, v{u+1}
            s_nop 0
            v_pk_fma_f32 v[{NUM}:{NUM+1}], v[{t}:{t+1}], v[{u}:{u+1}], v[{NUM}:{NUM+1}]
            """)
    def flush():
        if not safe:
            a(f"""
            v_rcp_f32 v{VU}, v{DEN}
            v_rcp_f32 v{VU+1}, v{DEN+1}
            v_max3_f32 v{MAXC}, v{MAXC}, v{DEN}, v{DEN+1}
            v_pk_mul_f32 v[{VA}:{VA+1}], v[{NUM}:{NUM+1}], v[{VU}:{VU+1}]
            v_mov_b64 v[{DEN}:{DEN+1}], s[{sONE}:{sONE+1}]
            v_mov_b64 v[{NUM}:{NUM+1}], 0
            v_cvt_f64_f32 v[{VU}:{VU+1}], v{VA}
            v_cvt_f64_f32 v[{VU+2}:{VU+3}], v{VA+1}
            v_pk_fma_f32 v[{NANC}:{NANC+1}], v[{VA}:{VA+1}], 0, v[{NANC}:{NANC+1}] op_sel_hi:[1,0,1]
            """)
        else:
            a(f"""
            v_cvt_f64_f32 v[{VU}:{VU+1}], v{NUM}
            v_cvt_f64_f32 v[{VU+2}:{VU+3}], v{NUM+1}
            v_mov_b64 v[{NUM}:{NUM+1}], 0
            """)
        a(f"ds_add_f64 v{AAD}, v[{VU}:{VU+1}] offset:{AGG}\nds_add_f64 v{AAD}, v[{VU+2}:{VU+3}] offset:{AGG+512}")
    def breads(slot, eoff):
        if "x_nolds" in OPT: return
        for q in range(4):
            a(f"ds_read_b64 v[{BP+2*q}:{BP+2*q+1}], v{PAD} offset:{slot*2048 + q*512}")
        a(f"""
        s_mov_b64 exec, s[{sM0}:{sM0+1}]
        ds_read_b64 v[{AE}:{AE+1}], v{EAD} offset:{ES+eoff}
        s_mov_b64 exec, s[{sM1}:{sM1+1}]
        ds_read_b64 v[{AE+2}:{AE+3}], v{EAD} offset:{ES+eoff}
        s_mov_b64 exec, -1
        """)
    def idxreads(soff):
        a(f"ds_read_u16 v{IX0}, v{SAD} offset:{SS+soff}\nds_read_u16 v{IX1}, v{SAD} offset:{SS+soff+8}")
    def qreads():
        for q in range(8):
            a(f"ds_read_b64 v[{QR+2*q}:{QR+2*q+1}], v{QAD} offset:{QS}")
    def mfma(d, k):
        if k == 0: a(f"v_mfma_f32_32x32x16_bf16 v[{d}:{d+15}], v[{AE}:{AE+3}], v[{W3}:{W3+3}], v[{QR}:{QR+15}]")
        else: a(f"v_smfmac_f32_32x32x32_bf16 v[{d}:{d+15}], v[{ID}:{ID+3}], v[{BP}:{BP+7}], v{ID+4}")
    def dma(slot, f1="s_nop 0"):
        if "x_nodma" in OPT: a(f1); return
        a(f"""
        s_mov_b32 m0, s{sRING+slot}
        {f1}
        buffer_load_dwordx4 v[{IX0}:{IX0+1}], s[{sP}:{sP+3}], 0 idxen offen sc1 lds
        buffer_load_dwordx4 v[{IX1}:{IX1+1}], s[{sP2}:{sP2+3}], 0 idxen offen offset:1024 sc1 lds
        """)
    def advance(rdst, ndst, nsrc):
        a(f"""
        s_bitset0_b64 s[{sNZ}:{sNZ+1}], s{nsrc}
        s_ff1_i32_b64 s{ndst}, s[{sNZ}:{sNZ+1}]
        v_readlane_b32 s{rdst}, v{NCNT}, s{ndst}
        v_lshl_add_u32 v{QAD}, s{ndst}, 9, v{L8}
        """)
        qreads()
    def tree(name, labels):
        a(f"""
{name}:
        s_cmp_gt_u32 s{sCNT}, 3
        s_cbranch_scc1 {name}_H
        s_cmp_eq_u32 s{sCNT}, 2
        s_cbranch_scc1 {labels[2]}
        s_cmp_eq_u32 s{sCNT}, 3
        s_cbranch_scc1 {labels[3]}
        s_branch {labels[1]}
{name}_H:
        s_cmp_gt_u32 s{sCNT}, 5
        s_cbranch_scc1 {name}_HH
        s_cmp_eq_u32 s{sCNT}, 4
        s_cbranch_scc1 {labels[4]}
        s_branch {labels[5]}
{name}_HH:
        s_cmp_eq_u32 s{sCNT}, 6
        s_cbranch_scc1 {labels[6]}
        s_branch {labels[7]}
        """)
    R = (sREM, sREM+1); Nn = (sNODE, sNODE+1)
    a(f"{L}_START:")
    idxreads(0)
    a(f"""
    s_setprio 3
    s_mov_b32 s{sEV}, {int(OPT.get("ev", 6))}
    v_mov_b64 v[{DEN}:{DEN+1}], s[{sONE}:{sONE+1}]
    v_mov_b64 v[{NUM}:{NUM+1}], 0
    s_waitcnt lgkmcnt(0)
    """)
    dma(0)
    idxreads(16)
    qreads()
    a("s_waitcnt lgkmcnt(8)")
    dma(1)
    idxreads(32)
    a("s_waitcnt vmcnt(2)")
    breads(0, 0)
    a("s_waitcnt lgkmcnt(0)\n@stamp 9")
    dma(0)
    for k in range(2): mfma(D0, k)
    a("s_waitcnt vmcnt(2)")
    breads(1, 64)
    idxreads(48)
    a(f"""
    s_mov_b32 s{Nn[1]}, s{Nn[0]}
    s_sub_u32 s{R[1]}, s{R[0]}, 8
    s_cmp_le_u32 s{R[0]}, 8
    s_cbranch_scc0 {L}_L0B
    """)
    advance(R[1], Nn[1], Nn[0])
    a(f"s_branch {L}_L0B")
    def xphase(b, lab):
        dc, dn = (D0, D1) if b == 0 else (D1, D0)
        mfma(dn, 0)
        for e in range(7, -1, -1):
            if lab and e < 7: a(f"{L}_X{b}_{e+1}:")
            if e == 2: mfma(dn, 1)
            ex(dc, 2*e+1); ex(dc, 2*e)
    def mid(b, tag):
        a("s_waitcnt vmcnt(2)")
        breads(b, 64*(b+2))
        idxreads(16*(b+4))
        a(f"""
        s_mov_b32 s{Nn[b]}, s{Nn[1-b]}
        s_sub_u32 s{R[b]}, s{R[1-b]}, 8
        s_cmp_le_u32 s{R[1-b]}, 8
        s_cbranch_scc1 {L}_ADV{tag}{b}
{L}_BACK{tag}{b}:
        """)
    def yphase(b, lab):
        dc = D0 if b == 0 else D1
        for e in range(7, -1, -1):
            if lab and e < 7: a(f"{L}_Y{b}_{e+1}:")
            pk(dc, e)
    for b in range(2):
        dc, dn = (D0, D1) if b == 0 else (D1, D0)
        a(f"""
{L}_EVT{b}:
        s_setprio 2
        s_mov_b32 s{sEV}, 3
        s_cmp_ge_u32 s{sLEFT}, 3
        s_cbranch_scc1 {L}_DMA{b}
        s_setprio 1
        s_cmp_lg_u32 s{sLEFT}, 0
        s_cbranch_scc1 {L}_PR{b}
        s_setprio 0
        s_min_u32 s{R[b]}, s{R[b]}, 8
{L}_PR{b}:
        s_waitcnt vmcnt(0)
        s_cmp_le_u32 s{R[b]}, 8
        s_branch {L}_XB{b}
        """)
        for tag in "PE":
            a(f"{L}_ADV{tag}{b}:")
            advance(R[b], Nn[b], Nn[1-b])
            a(f"s_branch {L}_BACK{tag}{b}")
        tree(f"{L}_XD{b}", {c: f"{L}_XS{b}_{c}" for c in range(1, 8)})
        for c in range(1, 8):
            a(f"{L}_XS{b}_{c}:")
            mfma(dn, 0)
            if c <= 2: mfma(dn, 1)
            a(f"s_branch {L}_X{b}_{c}")
        tree(f"{L}_YD{b}", {c: f"{L}_Y{b}_{c}" for c in range(1, 8)})
        a(f"""
{L}_END{b}:
        s_mov_b32 s{sCNT}, s{R[b]}
        s_cmp_lt_u32 s{R[b]}, 8
        s_cbranch_scc1 {L}_XD{b}
        """)
        xphase(b, True)
        mid(b, "E")
        a(f"s_cmp_lt_u32 s{sCNT}, 8\ns_cbranch_scc1 {L}_YD{b}")
        yphase(b, True)
        flush()
        a(f"""
        s_cmp_eq_u32 s{sLEFT}, 0
        s_cbranch_scc1 K2_MAINDONE
        v_lshl_add_u32 v{AAD}, s{Nn[1-b]}, 10, v{L8}
        s_branch {L}_L{1-b}
        """)
    for b in range(2):
        a(f"{L}_L{b}:")
        if b == 0:
            a(f"v_add_u32 v{EAD}, 128, v{EAD}\nv_add_u32 v{SAD}, 32, v{SAD}\n{L}_L0B:")
        a(f"""
        s_sub_u32 s{sLEFT}, s{sLEFT}, 1
        s_cmp_lt_u32 s{sLEFT}, s{sEV}
        s_waitcnt lgkmcnt(0)
        s_cbranch_scc1 {L}_EVT{b}
{L}_DMA{b}:
        """)
        dma(1-b, f"s_cmp_le_u32 s{R[b]}, 8")
        a(f"{L}_XB{b}:\ns_cbranch_scc1 {L}_END{b}")
        xphase(b, False)
        mid(b, "P")
        yphase(b, False)
        if b == 1: a(f"s_branch {L}_L0")

def consts(a):
    a(f"""
    ; m = l&31, hk = l>>5, e = 2*(m>>3) + ((m>>1)&1), H = (m>>2)&1, c0 = m&1
    v_lshlrev_b32 v{L8}, 3, v{VL}
    v_lshlrev_b32 v{IX0+1}, 4, v{VJ}
    v_lshlrev_b32 v{IX1+1}, 4, v{VJ}
    v_lshlrev_b32 v{G2}, 1, v{VG}
    v_lshrrev_b32 v1, 5, v{VL}
    v_bfe_u32 v2, v{VL}, 2, 1
    v_and_b32 v3, 1, v{VL}
    v_bfe_u32 v4, v{VL}, 1, 1
    v_bfe_u32 v5, v{VL}, 3, 2
    v_lshl_add_u32 v5, v5, 1, v4
    v_mov_b64 v[{AE}:{AE+1}], 0
    v_mov_b64 v[{AE+2}:{AE+3}], 0
    v_xor_b32 v{ID}, v1, v2
    v_lshl_add_u32 v{ID}, v{ID}, 1, v3
    v_cmp_eq_u32 s[{sM0}:{sM0+1}], 0, v{ID}
    v_cmp_eq_u32 s[{sM1}:{sM1+1}], 1, v{ID}
    v_lshlrev_b32 v{E8}, 3, v5
    v_lshrrev_b32 v{ID+1}, 2, v5
    v_cmp_eq_u32 vcc, v1, v{ID+1}
    v_bfe_u32 v5, v5, 1, 1
    v_lshl_add_u32 v5, v4, 1, v5
    v_lshl_add_u32 v2, v2, 1, v3
    v_cndmask_b32 v3, 0, v{W3}, vcc
    v_lshlrev_b32 v4, 2, v5
    v_lshlrev_b32 v{ID+4}, v4, v2
    """)
    for q in range(4): a(f"v_cmp_eq_u32 s[{sCM + 2*q}:{sCM + 2*q + 1}], {q}, v5")
    a(f"v_lshrrev_b32 v1, 2, v{TID}\nv_and_b32 v2, 3, v{TID}")
    for q in range(4): a(f"v_cndmask_b32 v{ID+q}, 0, v3, s[{sCM + 2*q}:{sCM + 2*q + 1}]")
    a(f"""
    s_movk_i32 s{sTMP}, {REC_STRIDE}
    v_mul_u32_u24 v3, s{sTMP}, v1
    v_mad_u32_u24 v{RAD}, v2, 12, v3
    s_lshl_b32 s{sTMP}, s{sG}, {11 if TGW else 3}
    s_add_u32 s{sTMP}, s{sTMP}, {WS_T}
    v_lshl_add_u32 v{AAD}, v1, {3 if TGW else 11}, s{sTMP}
    v_xor_b32 v1, v{VG}, v{VJ}
    v_lshlrev_b32 v1, 4, v1
    v_lshl_add_u32 v{VA}, v{VJ}, 8, v1
    v_xor_b32 v{VA+1}, 64, v{VA}
    v_xor_b32 v{VA+2}, 128, v{VA}
    v_xor_b32 v{VA+3}, 192, v{VA}
    v_bfe_u32 v1, v{VL}, 2, 2
    v_and_b32 v2, 1, v{VG}
    v_lshl_or_b32 v2, v2, 2, v1
    v_bfe_u32 v3, v{VL}, 1, 1
    v_lshl_or_b32 v2, v2, 1, v3
    v_and_b32 v3, 1, v{VL}
    v_lshl_or_b32 v2, v2, 1, v3
    v_lshl_add_u32 v1, v{VG}, 3, v1
    v_lshlrev_b32 v1, 8, v1
    v_lshl_add_u32 v{VA+4}, v2, 3, v1
    """)
def wdma(a, srd, soff, v=6):
    a(f"""
    buffer_load_dwordx4 v{v}, s[{srd}:{srd+3}], s{soff} offen lds
    buffer_load_dwordx4 v{v}, s[{srd}:{srd+3}], s{soff} offen offset:1024 lds
    buffer_load_dwordx4 v{v+1}, s[{srd}:{srd+3}], s{soff} offen offset:2048 lds
    buffer_load_dwordx4 v{v+1}, s[{srd}:{srd+3}], s{soff} offen offset:3072 lds
    """)
def w2job(a, sj):
    a(f"""
    s_lshl_b32 s{sTMP}, s{sj}, 12
    s_add_u32 s{sTMP+1}, s{sTMP}, 32768
    s_sub_u32 s{sTMP+2}, s{sTMP}, 32768
    s_add_u32 s{sTMP+3}, s{sTMP}, {W2S}
    s_add_u32 s{sTMP}, s{sTMP+2}, {WTS}
    s_cmp_lt_u32 s{sj}, 8
    s_cselect_b32 s{sW2}, s12, s14
    s_cselect_b32 s{sW2+1}, s13, s15
    s_cselect_b32 s{sW2O}, s{sTMP+1}, s{sTMP+2}
    s_cselect_b32 m0, s{sTMP+3}, s{sTMP}
    s_and_b32 s{sW2+1}, s{sW2+1}, 0xffff
    """)

def ugemm(a):
    for ks in range(4):
        a(f"ds_read_b128 v[{52+4*ks}:{55+4*ks}], v{VA+ks} offset:{XS}")
        for h in range(2):
            a(f"ds_read_b64_tr_b16 v[{16+4*ks+2*h}:{17+4*ks+2*h}], v{VA+4} offset:{8192*ks + 1024*h}")
    def um(rt, xb):
        for ks in range(4):
            c = "0" if ks == 0 else f"v[{UA+4*rt}:{UA+4*rt+3}]"
            a(f"v_mfma_f32_16x16x32_bf16 v[{UA+4*rt}:{UA+4*rt+3}], v[{16+4*ks}:{19+4*ks}], v[{xb[ks]}:{xb[ks]+3}], {c}")
    XB1 = (0, 4, 8, 68)
    for ks in range(4):
        a(f"ds_read_b128 v[{XB1[ks]}:{XB1[ks]+3}], v{VA+ks} offset:{XS + 4096}")
    a("s_waitcnt lgkmcnt(4)")
    um(0, (52, 56, 60, 64))
    for ks in range(4):
        a(f"ds_read_b128 v[{52+4*ks}:{55+4*ks}], v{VA+ks} offset:{XS + 8192}")
    a("s_waitcnt lgkmcnt(4)")
    um(1, XB1)
    a("s_waitcnt lgkmcnt(0)")
    um(2, (52, 56, 60, 64))
    a(f"s_mov_b32 s{sTMP+2}, {NLOG2E:#x}\ns_nop 2")
    for q in range(6):
        if q == 4: a("s_nop 1")
        a(f"v_pk_mul_f32 v[{UA+2*q}:{UA+2*q+1}], v[{UA+2*q}:{UA+2*q+1}], s[{sTMP+2}:{sTMP+3}] op_sel_hi:[1,0]")

def kernel():
    a = Asm()
    a(f"""
{KN}:
    s_cmp_ge_u32 s2, {NG}
    s_cbranch_scc1 K_END
    @rt 0
    @stamp 1
    s_load_dwordx16 s[4:19], s[0:1], 0
    s_load_dwordx2 s[{sWS}:{sWS+1}], s[0:1], 64
    v_mov_b32 v{TID}, v0
    v_lshrrev_b32 v1, 6, v0
    v_and_b32 v{VL}, 63, v0
    v_readfirstlane_b32 s{sWV}, v1
    s_and_b32 s{sG}, s2, 7
    s_lshl_b32 s{sG}, s{sG}, 5
    s_lshr_b32 s3, s2, 3
    s_or_b32 s{sG}, s{sG}, s3
    v_lshrrev_b32 v{VG}, 4, v{VL}
    v_and_b32 v{VJ}, 15, v{VL}
    s_mul_i32 s3, s{sG}, 625
    s_add_u32 s{sSTART}, s3, 15
    s_lshr_b32 s{sSTART}, s{sSTART}, 4
    s_add_u32 s{sEND}, s3, {625+15}
    s_lshr_b32 s{sEND}, s{sEND}, 4
    v_mov_b32 v{W3}, 0x3f80
    s_cmp_ge_u32 s{sWV}, 5
    s_cbranch_scc1 A_N1
    s_cmp_lt_u32 s{sG}, {NPROD}
    s_cselect_b32 s3, s{sG}, 0
    s_cselect_b64 s[{sEX}:{sEX+1}], -1, 0
    s_mul_i32 s3, s3, {EPW*4}
    v_lshl_add_u32 v8, v0, 4, s3
    v_lshlrev_b32 v9, 1, v8
    s_lshl_b32 s{sTMP}, s{sWV}, 3
    v_add_u32 v1, s{sTMP}, v{VG}
    v_xor_b32 v2, v1, v{VJ}
    v_and_b32 v2, 15, v2
    v_lshlrev_b32 v2, 4, v2
    v_lshl_add_u32 v2, v1, 8, v2
    v_xor_b32 v3, 64, v2
    s_lshl_b32 s{sTMP}, s{sWV}, 11
    s_add_u32 m0, s{sTMP}, {XS}
    s_lshl_b32 s{sTMP+2}, s{sSTART}, 8
    s_mov_b32 s{sX+2}, {N*256}
    s_mov_b32 s{sX+3}, 0x20000
    s_waitcnt lgkmcnt(0)
    global_load_dwordx4 v[12:15], v8, s[10:11]
    s_mov_b32 s{sX}, s4
    s_and_b32 s{sX+1}, s5, 0xffff
    buffer_load_dwordx4 v2, s[{sX}:{sX+3}], s{sTMP+2} offen lds
    buffer_load_dwordx4 v3, s[{sX}:{sX+3}], s{sTMP+2} offen offset:1024 lds
    s_movk_i32 s{sTMP}, 625
    s_mov_b32 s{sTMP+1}, 214749
    v_mov_b32 v1, 1
    v_lshlrev_b32 v10, 4, v{VL}
    @stamp 2
    s_barrier
    s_waitcnt vmcnt(2)
    global_load_dwordx4 v[16:19], v8, s[8:9]
    global_load_dwordx4 v[20:23], v9, s[6:7]
    global_load_dwordx4 v[24:27], v9, s[6:7] offset:16
    s_mov_b64 exec, s[{sEX}:{sEX+1}]
    """)
    for i in range(4):
        a(f"v_mul_u32_u24 v{28+i}, s{sTMP+1}, v{12+i}")
    for i in range(4):
        a(f"v_lshrrev_b32 v{28+i}, 23, v{28+i}\nv_lshlrev_b32 v{32+i}, 2, v{28+i}\nds_add_rtn_u32 v{36+i}, v{32+i}, v1 offset:{HIST}")
    for i in range(4):
        a(f"v_mad_u32_u24 v{28+i}, v{28+i}, s{sTMP}, 15\nv_lshrrev_b32 v{28+i}, 4, v{28+i}\nv_sub_u32 v{28+i}, v{12+i}, v{28+i}")
    a("s_mov_b64 exec, -1")
    consts(a)
    a(f"""
    s_waitcnt vmcnt(3) lgkmcnt(0)
    @stamp 3
    s_barrier
    ds_read_b128 v[40:43], v10 offset:{HIST}
    s_waitcnt lgkmcnt(0)
    v_add_u32 v44, v40, v41
    v_add3_u32 v44, v44, v42, v43
    v_mov_b32 v45, v44
    """)
    dpp_scan(a, 45)
    a(f"""
    v_sub_u32 v48, v45, v44
    v_add_u32 v49, v48, v40
    v_add_u32 v50, v49, v41
    v_add_u32 v51, v50, v42
    ds_write_b128 v10, v[48:51] offset:{OFFS}
    s_mov_b64 exec, s[{sEX}:{sEX+1}]
    s_mov_b32 s{sTMP}, {STAGE}
    s_waitcnt lgkmcnt(0)
    """)
    for i in range(4):
        a(f"ds_read_b32 v{40+i}, v{32+i} offset:{OFFS}")
    a("s_waitcnt vmcnt(2)")
    for i in range(4):
        a(f"v_lshl_or_b32 v{16+i}, v{28+i}, 18, v{16+i}")
    a("s_waitcnt vmcnt(0)")
    for i in range(4):
        a(f"""
        s_waitcnt lgkmcnt({3+i})
        v_add_u32 v{40+i}, v{40+i}, v{36+i}
        v_mad_u32_u24 v{40+i}, v{40+i}, 12, s{sTMP}
        ds_write2_b32 v{40+i}, v{20+2*i}, v{21+2*i} offset0:0 offset1:1
        ds_write_b32 v{40+i}, v{16+i} offset:8
        """)
    a(f"""
    s_mov_b64 exec, -1
    s_branch A_JOIN
A_N1:
    ; ================= waves 5..15
    v_lshlrev_b32 v6, 1, v{VG}
    v_xor_b32 v6, v6, v{VJ}
    v_lshlrev_b32 v6, 4, v6
    v_lshl_add_u32 v6, v{VG}, 8, v6
    v_xor_b32 v7, 128, v6
    v_mov_b32 v8, 0
    s_mov_b32 s{sW2+2}, 65536
    s_mov_b32 s{sW2+3}, 0x20000
    s_cmp_ge_u32 s{sWV}, 10
    s_cbranch_scc1 A_N10
    s_mov_b32 s{sTMP}, {HIST - 320*4}
    s_cmp_eq_u32 s{sWV}, 9
    s_cselect_b32 s{sTMP}, {CNT - 576*4}, s{sTMP}
    v_lshl_add_u32 v3, v0, 2, s{sTMP}
    v_mov_b32 v2, 0
    ds_write_b32 v3, v2
    ds_write_b32 v2, v2 offset:{FLG}
    ds_write_b32 v2, v2 offset:{FLG+4}
    s_branch A_B0
A_N10:
    s_cmp_ge_u32 s{sWV}, 14
    s_cbranch_scc1 A_N14
    v_lshlrev_b32 v3, 4, v0
    v_add_u32 v3, {SS - 640*16}, v3
    v_mov_b64 v[8:9], -1
    v_mov_b64 v[10:11], -1
    ds_write_b128 v3, v[8:11]
    s_branch A_B0
A_N14:
    s_and_b32 s{sTMP}, s{sG}, 31
    s_mul_i32 s{sTMP}, s{sTMP}, {17*128}
    v_lshl_add_u32 v3, v{VL}, 7, s{sTMP}
    v_min_u32 v3, {511*128}, v3
    s_waitcnt lgkmcnt(0)
    s_cmp_eq_u32 s{sWV}, 14
    s_cselect_b32 s{sTMP+2}, s12, s14
    s_cselect_b32 s{sTMP+3}, s13, s15
    s_mov_b64 exec, 0x1ffff
    global_load_dword v40, v3, s[{sTMP+2}:{sTMP+3}]
    s_mov_b64 exec, -1
    s_cbranch_scc1 A_B0
    s_cmp_lg_u32 s2, 0
    s_cbranch_scc1 A_B0
    s_memrealtime s[{sNON}:{sNON+1}]
    v_mov_b32 v8, 0
    s_waitcnt lgkmcnt(0)
    s_or_b32 s{sNON}, s{sNON}, 1
    v_mov_b32 v10, s{sNON}
    v_mov_b32 v11, s{sNON+1}
    s_mov_b64 exec, 1
    global_store_dwordx2 v8, v[10:11], s[18:19] sc1
    s_mov_b64 exec, -1
A_B0:
    s_sub_u32 s3, s{sWV}, 5
    s_lshl_b32 s{sTMP}, s3, 12
    s_add_u32 m0, s{sTMP}, {W1S}
    s_waitcnt lgkmcnt(0)
    s_mov_b32 s{sW2}, s12
    s_and_b32 s{sW2+1}, s13, 0xffff
    @stamp 2
    s_barrier
    s_cmp_ge_u32 s{sWV}, 13
    s_cbranch_scc1 A_NOW1
    """)
    wdma(a, sW2, sTMP)
    a(f"""
A_NOW1:
    """)
    if 'prew' in OPT:
        a(f"""
        s_sub_u32 s{sTMP}, s{sWV}, 13
        s_cmp_gt_u32 s{sTMP}, 1
        s_cbranch_scc1 A_NOPREW
        v_lshlrev_b32 v1, 4, v{TID}
        s_lshl_b32 s{sTMP}, s{sG}, 11
        s_add_u32 s{sTMP}, s{sTMP}, {WS_T - 832*16}
        v_add_u32 v1, s{sTMP}, v1
        v_mov_b64 v[2:3], 0
        v_mov_b64 v[4:5], 0
        """)
        for r in range(NREP):
            a(f"global_store_dwordx4 v1, v[2:5], s[{sWS}:{sWS+1}] sc1")
            if r < NREP - 1: a("v_add_u32 v1, 0x80000, v1")
        a("s_nop 1\nA_NOPREW:")
    a(f"""
    s_cmp_eq_u32 s{sWV}, 15
    s_cbranch_scc0 A_NO15
    v_bfe_u32 v9, v{VL}, 4, 1
    v_lshlrev_b32 v9, 6, v9
    v_lshrrev_b32 v10, 5, v{VL}
    v_lshl_add_u32 v9, v10, 5, v9
    v_add_u32 v9, v9, v{VJ}
    v_lshlrev_b32 v9, 1, v9
    v_add_u32 v8, {256*256}, v9
    """)
    for s in range(8):
        a(f"global_load_ushort v{16 + s}, v8, s[12:13] offset:{(s & 3)*256 + (s >> 2)*32}")
    a(f"""
    s_cmp_ge_u32 s{sG}, 32
    s_cbranch_scc1 A_NO15
    s_and_b32 s{sTMP}, s{sG}, 1
    s_lshl_b32 s{sTMP}, s{sTMP}, 3
    s_bfe_u32 s{sTMP+1}, s{sG}, 0x10001
    s_lshl_b32 s{sTMP+1}, s{sTMP+1}, 6
    s_add_u32 s{sTMP}, s{sTMP}, s{sTMP+1}
    s_add_u32 s{sTMP}, s{sTMP}, 128
    s_lshl_b32 s{sTMP}, s{sTMP}, 8
    s_bfe_u32 s{sTMP+1}, s{sG}, 0x30002
    s_lshl_b32 s{sTMP+1}, s{sTMP+1}, 5
    s_add_u32 s{sTMP}, s{sTMP}, s{sTMP+1}
    v_lshlrev_b32 v8, 9, v{VG}
    v_lshl_add_u32 v8, v{VJ}, 1, v8
    v_add_u32 v8, s{sTMP}, v8
    v_add_u32 v9, {32*256}, v8
    v_add_u32 v10, {16*256}, v8
    v_add_u32 v11, {48*256}, v8
    """)
    for s in range(8):
        a(f"global_load_ushort v{24 + s}, v{8 + (s >> 1)}, s[14:15] offset:{(s & 1)*256}")
    a("A_NO15:")
    consts(a)
    a(f"""
    s_cmp_ge_u32 s{sWV}, 11
    s_cbranch_scc1 A_G11
    ; ================= waves 5..10: P = -log2e * x @ W1 for this group's rows (rt = (wv-5)>>1, hf = (wv-5)&1)
    s_and_b32 s{sTMP+1}, s3, 1
    s_lshr_b32 s{sTMP}, s3, 1
    s_lshl_b32 s{sTMP+2}, s{sTMP}, 12
    v_add_u32 v0, s{sTMP+2}, v{VA}
    v_add_u32 v1, s{sTMP+2}, v{VA+1}
    v_add_u32 v2, s{sTMP+2}, v{VA+2}
    v_add_u32 v3, s{sTMP+2}, v{VA+3}
    s_lshl_b32 s{sTMP+1}, s{sTMP+1}, 7
    v_xor_b32 v4, s{sTMP+1}, v{VA+4}
    v_add_u32 v4, {W1S}, v4
    v_xor_b32 v5, 32, v4
    v_xor_b32 v6, 64, v4
    v_xor_b32 v7, 96, v4
    s_add_u32 s{sTMP+2}, s{sTMP+2}, s{sTMP+1}
    s_lshl_b32 s{sTMP+1}, s{sSTART}, 8
    s_add_u32 s{sTMP+2}, s{sTMP+2}, s{sTMP+1}
    v_lshlrev_b32 v{VA+5}, 10, v{VG}
    v_lshl_add_u32 v{VA+5}, v{VJ}, 3, v{VA+5}
    v_add_u32 v{VA+5}, s{sTMP+2}, v{VA+5}
    s_mov_b32 s{sTMP+2}, {NLOG2E:#x}
    s_waitcnt vmcnt(0)
    @stamp 3
    s_barrier
    s_setprio 1
    """)
    def breads(ks):
        b = 8 + 16*(ks & 1)
        a(f"ds_read_b128 v[{40+4*ks}:{43+4*ks}], v{ks} offset:{XS}")
        for i in range(4):
            for h in range(2):
                a(f"ds_read_b64_tr_b16 v[{b+4*i+2*h}:{b+4*i+2*h+1}], v{4+i} offset:{8192*ks + 1024*h}")
    breads(0)
    for ks in range(4):
        if ks < 3:
            breads(ks+1)
            a("s_waitcnt lgkmcnt(9)")
        else:
            a("s_waitcnt lgkmcnt(0)")
        b = 8 + 16*(ks & 1)
        for i in range(4):
            c = "0" if ks == 0 else f"v[{56+4*i}:{59+4*i}]"
            a(f"v_mfma_f32_16x16x32_bf16 v[{56+4*i}:{59+4*i}], v[{40+4*ks}:{43+4*ks}], v[{b+4*i}:{b+4*i+3}], {c}")
    a(f"""
    s_cmp_eq_u32 s{sTMP}, 2
    s_cselect_b32 exec_hi, 0, -1
    s_nop 5
    """)
    for q in range(8):
        a(f"v_pk_mul_f32 v[{56+2*q}:{57+2*q}], v[{56+2*q}:{57+2*q}], s[{sTMP+2}:{sTMP+3}] op_sel_hi:[1,0]")
    for r in range(4):
        a(f"v_cvt_pk_bf16_f32 v{8+2*r}, v{56+r}, v{60+r}\nv_cvt_pk_bf16_f32 v{9+2*r}, v{64+r}, v{68+r}")
        a(f"global_store_dwordx2 v{VA+5}, v[{8+2*r}:{9+2*r}], s[{sWS}:{sWS+1}] offset:{256*r} {PST_F}")
    a(f"""
    s_mov_b64 exec, -1
    s_setprio 0
    s_branch A_JOIN
A_G11:
    s_cmp_eq_u32 s{sWV}, 15
    s_cbranch_scc1 A_G15B
    v_lshlrev_b32 v1, 4, v{TID}
    v_add_u32 v1, {AGG - 704*16}, v1
    v_mov_b64 v[2:3], 0
    v_mov_b64 v[4:5], 0
    """)
    for k in range(10): a(f"ds_write_b128 v1, v[2:5] offset:{4096*k}")
    a(f"""
    s_waitcnt vmcnt(0)
    @stamp 3
    s_barrier
    s_branch A_JOIN
A_G15B:
    @stamp 3
    s_barrier
    v_mov_b32 v8, 0
    s_mov_b32 s{sSPIN}, {SPINMAX}
A_NLOOP:
    global_load_dwordx2 v[10:11], v8, s[18:19] sc1
    s_sub_u32 s{sSPIN}, s{sSPIN}, 1
    s_cbranch_scc1 A_NDONE
    s_waitcnt vmcnt(0)
    v_cmp_eq_u32 vcc, 0, v10
    s_cbranch_vccnz A_NLOOP
A_NDONE:
    s_waitcnt vmcnt(0)
    v_lshlrev_b32 v11, 22, v11
    ds_write_b64 v8, v[10:11] offset:{NON}
    s_mov_b32 s{sTMP}, {NLOG2E:#x}
    """)
    for s in range(8):
        a(f"v_lshlrev_b32 v{16+s}, 16, v{16+s}\nv_mul_f32 v{16+s}, s{sTMP}, v{16+s}")
    for q in range(4):
        a(f"v_cvt_pk_bf16_f32 v{12+q}, v{16+2*q}, v{17+2*q}")
    a(f"""
    v_lshlrev_b32 v8, 4, v{VL}
    ds_write_b128 v8, v[12:15] offset:{W3S}
    s_cmp_ge_u32 s{sG}, 32
    s_cbranch_scc1 A_JOIN
    """)
    for q in range(4):
        a(f"v_lshl_or_b32 v{32+q}, v{25+2*q}, 16, v{24+2*q}")
    a(f"""
    s_lshl_b32 s{sTMP}, s{sG}, 10
    s_add_u32 s{sTMP}, s{sTMP}, {WS_F}
    v_add_u32 v8, s{sTMP}, v8
    global_store_dwordx4 v8, v[32:35], s[{sWS}:{sWS+1}] sc1
A_JOIN:
    v_lshlrev_b32 v0, 4, v{TID}
    s_mul_i32 s{sTMP}, s{sG}, {REC_STRIDE}
    s_add_u32 s{sTMP}, s{sTMP}, {WS_REC}
    v_add_u32 v1, s{sTMP}, v0
    v_add_u32 v0, {STAGE}, v0
    v_mov_b32 v2, 0
    v_lshlrev_b32 v3, 4, v{VL}
    v_lshlrev_b32 v14, 1, v{VG}
    v_xor_b32 v14, v14, v{VJ}
    v_lshlrev_b32 v14, 4, v14
    v_lshl_add_u32 v14, v{VG}, 8, v14
    v_xor_b32 v15, 128, v14
    s_mov_b32 s{sW2+2}, 65536
    s_mov_b32 s{sW2+3}, 0x20000
    s_lshl_b32 s{sTMP}, s{sWV}, 5
    v_xor_b32 v{VA+4}, s{sTMP}, v{VA+4}
    v_add_u32 v{VA+5}, {W2S}, v{VA+4}
    v_add_u32 v{VA+4}, {WTS}, v{VA+4}
    s_waitcnt lgkmcnt(0)
    @stamp 4
    s_barrier
    s_cmp_eq_u32 s{sWV}, 15
    s_cbranch_scc1 A_C2
    ds_read_b128 v[4:7], v0
    s_waitcnt lgkmcnt(0)
    global_store_dwordx4 v1, v[4:7], s[{sWS}:{sWS+1}] sc1
A_C2:
    """)
    w2job(a, sWV)
    a(f"""
    s_barrier
    s_cmp_ge_u32 s{sWV}, 8
    s_cbranch_scc1 A_C3
    """)
    wdma(a, sW2, sW2O, 14)
    a(f"""
A_C3:
    ds_read_b64 v[{SAD}:{SAD+1}], v2 offset:{NON}
    ds_read_b128 v[{W3}:{W3+3}], v3 offset:{W3S}
    s_mov_b32 s{sO}, s16
    s_and_b32 s{sO+1}, s17, 0xffff
    s_lshl_b32 s{sO+2}, s{sEND}, 8
    s_mov_b32 s{sO+3}, 0x20000
    s_mov_b32 s{sP}, s{sWS}
    s_and_b32 s{sP+1}, s{sWS+1}, 0xffff
    s_or_b32 s{sP+1}, s{sP+1}, {256 << 16}
    s_mov_b32 s{sP+2}, {N}
    s_mov_b32 s{sP+3}, 0x20000
    s_sub_u32 s{sP2}, s{sWS}, 1024
    s_subb_u32 s{sP2+1}, s{sP+1}, 0
    s_mov_b32 s{sP2+2}, {N}
    s_mov_b32 s{sP2+3}, 0x20000
    s_add_u32 s{sREC}, s{sWS}, {WS_REC}
    s_addc_u32 s{sREC+1}, s{sWS+1}, 0
    s_and_b32 s{sREC+1}, s{sREC+1}, 0xffff
    s_mov_b32 s{sREC+2}, {NG*REC_STRIDE}
    s_mov_b32 s{sREC+3}, 0x20000
    s_mov_b32 s{sMODE}, 0
    s_mov_b32 s{sONE}, 1.0
    s_mov_b32 s{sONE+1}, 1.0
    s_waitcnt lgkmcnt(0)
    v_readfirstlane_b32 s{sNON}, v{SAD}
    v_readfirstlane_b32 s{sNON+1}, v{SAD+1}
    s_cmp_lt_u32 s{sWV}, 14
    s_cbranch_scc1 A_NOT
    ; waves 14, 15: granules (start | count<<11 | tag<<22, tag) of groups 2t, 2t+1 (t = tid - 896)
    v_lshlrev_b32 v8, 3, v{TID}
    ds_read_b64 v[10:11], v8 offset:{OFFS - 896*8}
    ds_read_b64 v[12:13], v8 offset:{HIST - 896*8}
    s_lshl_b32 s{sTMP}, s{sG}, {3 if TGW else 11}
    s_add_u32 s{sTMP}, s{sTMP}, {WS_T - 896*(4096 if TGW else 16)}
    v_lshl_add_u32 v8, v8, {9 if TGW else 1}, s{sTMP}
    v_mov_b32 v5, s{sNON}
    v_mov_b32 v7, s{sNON}
    s_waitcnt lgkmcnt(0)
    v_lshl_or_b32 v4, v12, 11, v10
    v_lshl_or_b32 v6, v13, 11, v11
    v_or_b32 v4, s{sNON+1}, v4
    v_or_b32 v6, s{sNON+1}, v6
A_NOT:
    s_cmp_lt_u32 s{sWV}, 8
    s_cbranch_scc1 A_WT4
    s_waitcnt vmcnt(0)
A_WT4:
    s_waitcnt vmcnt(4)
    @stamp 5
    s_barrier
    s_cmp_lt_u32 s{sWV}, 14
    s_cbranch_scc1 A_NOPUB
    """)
    for r in range(NREP):
        a(f"global_store_dwordx4 v8, v[4:7], s[{sWS}:{sWS+1}] sc1")
        if r < NREP - 1: a("v_add_u32 v8, 0x80000, v8")
    a(f"""
A_NOPUB:
    s_cmp_ge_u32 s{sWV}, 8
    s_cbranch_scc1 A_W2OK
    s_waitcnt vmcnt(0)
A_W2OK:
    s_barrier
    s_cbranch_scc0 A_Q
    """)
    wdma(a, sW2, sW2O, 14)
    if PF1:
        a(f"""
        s_and_b32 s{sTMP}, s{sG}, 31
        s_lshl_b32 s{sTMP}, s{sTMP}, 3
        s_add_u32 s{sTMP}, s{sTMP}, s{sWV}
        s_and_b32 s{sTMP+1}, s{sG}, 0xe0
        s_add_u32 s{sTMP}, s{sTMP}, s{sTMP+1}
        s_and_b32 s{sTMP}, s{sTMP}, 255
        s_mul_i32 s{sTMP}, s{sTMP}, {PF1*128}
        v_lshl_add_u32 v12, v{L8}, 4, s{sTMP}
        s_mov_b32 exec_lo, {min((1 << PF1) - 1, 0xffffffff):#x}
        s_mov_b32 exec_hi, {((1 << PF1) - 1) >> 32:#x}
        global_load_dword v13, v12, s[{sWS}:{sWS+1}] sc1
        s_mov_b64 exec, -1
        s_waitcnt vmcnt(1)
        s_branch A_NOQU2
        """)
    a(f"""
A_Q:
    s_cbranch_scc1 A_NOQU
    """)
    QA = (64, 68, 94)
    for ks in range(4):
        a(f"ds_read_b128 v[{32+4*ks}:{35+4*ks}], v{VA+ks} offset:{XS}")
        for h in range(2):
            a(f"ds_read_b64_tr_b16 v[{16+4*ks+2*h}:{17+4*ks+2*h}], v{VA+5} offset:{8192*ks + 1024*h}")
    for rt in (1, 2):
        for ks in range(4):
            a(f"ds_read_b128 v[{(48 if rt == 1 else 0)+4*ks}:{(48 if rt == 1 else 0)+4*ks+3}], v{VA+ks} offset:{XS + 4096*rt}")
    for rt in range(3):
        a(f"s_waitcnt lgkmcnt({8 - 4*rt})")
        xb = (32, 48, 0)[rt]
        for ks in range(4):
            c = "0" if ks == 0 else f"v[{QA[rt]}:{QA[rt]+3}]"
            a(f"v_mfma_f32_16x16x32_bf16 v[{QA[rt]}:{QA[rt]+3}], v[{xb+4*ks}:{xb+4*ks+3}], v[{16+4*ks}:{19+4*ks}], {c}")
    a(f"""
    s_lshr_b32 s{sTMP}, s{sWV}, 2
    s_lshl_b32 s{sTMP}, s{sTMP}, 7
    s_bfe_u32 s{sTMP+1}, s{sWV}, 0x10001
    s_lshl_b32 s{sTMP+1}, s{sTMP+1}, 8
    s_add_u32 s{sTMP}, s{sTMP}, s{sTMP+1}
    s_and_b32 s{sTMP+1}, s{sWV}, 1
    s_lshl_b32 s{sTMP+1}, s{sTMP+1}, 2
    s_add_u32 s{sTMP}, s{sTMP}, s{sTMP+1}
    v_lshlrev_b32 v8, 11, v{VG}
    v_lshl_add_u32 v8, v{VJ}, 3, v8
    v_add_u32 v8, s{sTMP}, v8
    s_mov_b32 s{sTMP+2}, {NLOG2E:#x}
    """)
    for rt in range(3):
        for q in range(2):
            a(f"v_pk_mul_f32 v[{QA[rt]+2*q}:{QA[rt]+2*q+1}], v[{QA[rt]+2*q}:{QA[rt]+2*q+1}], s[{sTMP+2}:{sTMP+3}] op_sel_hi:[1,0]")
        if rt == 2: a("s_mov_b32 exec_hi, 0")
        for r in range(4):
            a(f"ds_write_b32 v8, v{QA[rt]+r} offset:{QS + rt*8192 + r*512}")
    a(f"""
    s_mov_b64 exec, -1
    """)
    if 'uearly' in OPT: ugemm(a)
    a(f"""
A_NOQU:
    s_waitcnt vmcnt(0)
A_NOQU2:
    s_lshl_b32 s{sRING}, s{sWV}, 12
    s_add_u32 s{sRING}, s{sRING}, {RING}
    s_add_u32 s{sRING+1}, s{sRING}, 2048
    v_add_u32 v{PAD}, s{sRING}, v{L8}
    s_and_b32 s{sRHO}, s{sWV}, 3
    s_lshl_b32 s{sRHO}, s{sRHO}, 2
    s_lshr_b32 s{sTMP}, s{sWV}, 2
    s_or_b32 s{sRHO}, s{sRHO}, s{sTMP}
    @stamp 13
    {'s_barrier' if 'noqbar' not in OPT else ''}
    v_mov_b32 v16, v{AAD}
    """)
    if PFK:
        a(f"s_mov_b64 exec, {(1 << PFK) - 1:#x}\nglobal_load_dword v18, v17, s[{sWS}:{sWS+1}] sc1\ns_mov_b64 exec, -1")
    a(f"""
    s_mov_b32 s{sR0}, 0
    s_mov_b32 s{sR}, {RMAX}
    s_mov_b32 s{sFIRST}, 1
    v_mov_b64 v[{NANC}:{NANC+1}], 0
    v_mov_b32 v{MAXC}, 0
    s_mov_b32 s{sSPIN}, {SPINMAX}
    v_mov_b32 v19, 0x3fffff
    @stamp 6
    s_mov_b32 s{sEV}, {NREP - 1}
T_LOOP:
    global_load_dwordx2 v[20:21], v16, s[{sWS}:{sWS+1}] sc1
    s_sub_u32 s{sSPIN}, s{sSPIN}, 1
    s_cbranch_scc1 T_DONE
    s_cmp_eq_u32 s{sEV}, 0
    s_cbranch_scc1 T_LAST
    s_sub_u32 s{sEV}, s{sEV}, 1
    v_add_u32 v16, 0x80000, v16
T_LAST:
    s_waitcnt vmcnt(0)
    v_xor_b32 v{TW}, s{sNON+1}, v20
    v_cmp_ne_u32 vcc, s{sNON}, v21
    v_cmp_lt_u32 s[{sTMP}:{sTMP+1}], v19, v{TW}
    s_or_b64 exec, vcc, s[{sTMP}:{sTMP+1}]
    s_cbranch_scc0 T_DONE
    {f"s_sleep {OPT['sleep']}" if "sleep" in OPT else ""}
    s_branch T_LOOP
T_DONE:
    s_mov_b64 exec, -1
    s_waitcnt vmcnt(0)
    @stamp 7
K2_PASS:
    v_and_b32 v9, 0x7ff, v{TW}
    v_bfe_u32 v15, v{TW}, 11, 11
    s_lshl_b32 s{sTMP}, s{sR0}, 2
    v_add_u32 v9, s{sTMP}, v9
    v_mad_u32_u24 v9, v9, 12, v{RAD}
    s_add_u32 s{sTMP+1}, s{sR0}, s{sR}
    s_lshl_b32 s{sTMP+1}, s{sTMP+1}, 2
    v_min_u32 v10, s{sTMP+1}, v15
    v_and_b32 v11, 3, v{TID}
    v_add_u32 v11, s{sTMP}, v11
    v_sub_u32 v10, v10, v11
    """)
    for r in range(RMAX):
        a(f"v_cmp_lt_i32 s[{sEX+2*r}:{sEX+2*r+1}], {4*r}, v10")
    a(f"v_cmp_lt_u32 vcc, s{sTMP+1}, v15")
    for r in range(RMAX):
        a(f"s_mov_b64 exec, s[{sEX+2*r}:{sEX+2*r+1}]")
        if r >= 2: a("s_cbranch_execz K2_LD")
        a(f"buffer_load_dwordx3 v[{32+4*r}:{34+4*r}], v9, s[{sREC}:{sREC+3}], 0 offen offset:{48*r} sc1")
    a(f"""
K2_LD:
    s_mov_b64 exec, -1
    v_mov_b32 v13, 1
    v_lshrrev_b32 v14, 1, v{L8}
    s_cbranch_vccz K2_NOMORE
    v_mov_b32 v9, 0
    ds_write_b32 v9, v13 offset:{FLG}
K2_NOMORE:
    s_cmp_lt_u32 s{sWV}, 8
    s_cselect_b32 s{sTMP}, s{sFIRST}, 0
    s_cmp_eq_u32 s{sTMP}, 0
    s_mov_b32 s{sFIRST}, 0
    s_cbranch_scc1 K2_NOU
    """)
    if 'uearly' not in OPT: ugemm(a)
    a(f"""
K2_NOU:
    s_waitcnt vmcnt(0)
    @stamp 8
    """)
    if PF2:
        a(f"""
        s_and_b32 s{sTMP}, s{sG}, 31
        s_lshl_b32 s{sTMP}, s{sTMP}, 4
        s_add_u32 s{sTMP}, s{sTMP}, s{sWV}
        s_lshr_b32 s{sTMP+1}, s{sG}, 5
        s_lshl_b32 s{sTMP+1}, s{sTMP+1}, 6
        s_add_u32 s{sTMP}, s{sTMP}, s{sTMP+1}
        s_and_b32 s{sTMP}, s{sTMP}, 511
        s_mul_i32 s{sTMP}, s{sTMP}, {PF2*128}
        s_add_u32 s{sTMP}, s{sTMP}, {(20000 - 512*PF2)*128}
        v_lshl_add_u32 v12, v{L8}, 4, s{sTMP}
        s_mov_b64 exec, {(1 << PF2) - 1:#x}
        global_load_dword v{VA+5}, v12, s[{sWS}:{sWS+1}] sc1
        """)
    a(f"""
    """)
    for r in range(RMAX):
        a(f"""
        s_mov_b64 exec, s[{sEX+2*r}:{sEX+2*r+1}]
        s_cbranch_execz K2_HD
        v_lshrrev_b32 v{r}, 16, v{34+4*r}
        ds_add_rtn_u32 v{35+4*r}, v{r}, v13 offset:{CNT}
        """)
    NPF = int(OPT.get("pf", 0))
    a("K2_HD:\ns_mov_b64 exec, -1")
    if NPF:
        a(f"""
        s_and_b32 s{sTMP}, s{sG}, 31
        s_mul_i32 s{sTMP}, s{sTMP}, 625
        s_mul_i32 s{sTMP+2}, s{sWV}, 40
        s_add_u32 s{sTMP}, s{sTMP}, s{sTMP+2}
        s_lshl_b32 s{sTMP}, s{sTMP}, 7
        v_lshl_add_u32 v12, v{L8}, 4, s{sTMP}
        v_min_u32 v12, {N*256 - 128}, v12
        """)
    a(f"""
    s_waitcnt lgkmcnt(0)
    s_barrier
    ds_read_b32 v{NCNT}, v14 offset:{CNT}
    """)
    if NPF:
        a(f"s_mov_b32 exec_hi, 0xff\nglobal_load_dword v{VA}, v12, s[{sWS}:{sWS+1}] sc1\ns_mov_b64 exec, -1")
    a(f"""
    s_waitcnt lgkmcnt(0)
    v_add_u32 v10, 7, v{NCNT}
    v_lshrrev_b32 v10, 3, v10
    v_cmp_ne_u32 s[{sNZ}:{sNZ+1}], 0, v{NCNT}
    v_mov_b32 v11, v10
    """)
    dpp_scan(a, 11)
    a(f"""
    v_sub_u32 v12, v11, v10
    v_lshlrev_b32 v15, 3, v12
    v_readlane_b32 s{sTT}, v11, 63
    """)
    for r in range(RMAX):
        a(f"ds_bpermute_b32 v{16+r}, v{r}, v15")
    a(f"""
    v_add_u32 v12, v15, v{NCNT}
    s_cmp_gt_u32 s{sTT}, {CAP//8}
    s_cbranch_scc1 K2_SHRINK
    s_mul_i32 s{sT0}, s{sTT}, s{sRHO}
    s_add_u32 s{sTMP}, s{sT0}, s{sTT}
    s_lshr_b32 s{sT0}, s{sT0}, 4
    s_lshr_b32 s{sTMP}, s{sTMP}, 4
    v_cmp_ge_u32 vcc, s{sT0}, v11
    s_sub_u32 s{sLEFT}, s{sTMP}, s{sT0}
    s_or_b32 s{sNZ+1}, s{sNZ+1}, 0xc0000000
    s_waitcnt lgkmcnt(0)
    """)
    for r in range(RMAX):
        a(f"""
        s_mov_b64 exec, s[{sEX+2*r}:{sEX+2*r+1}]
        s_cbranch_execz K2_SD
        v_add_lshl_u32 v10, v{16+r}, v{35+4*r}, 3
        v_add_lshl_u32 v9, v{16+r}, v{35+4*r}, 1
        {f"v_and_b32 v{34+4*r}, {OPT['x_mask']}, v{34+4*r}" if "x_mask" in OPT else ""}
        ds_write_b64 v10, v[{32+4*r}:{33+4*r}] offset:{ES}
        ds_write_b16 v9, v{34+4*r} offset:{SS}
        """)
    a(f"""
K2_SD:
    s_mov_b64 exec, -1
    s_bcnt1_i32_b64 s{sNODE}, vcc
    s_min_u32 s{sNODE}, s{sNODE}, 61
    s_lshr_b64 s[{sNZ}:{sNZ+1}], s[{sNZ}:{sNZ+1}], s{sNODE}
    s_lshl_b64 s[{sNZ}:{sNZ+1}], s[{sNZ}:{sNZ+1}], s{sNODE}
    v_readlane_b32 s{sREM}, v12, s{sNODE}
    v_lshl_add_u32 v{QAD}, s{sNODE}, 9, v{L8}
    v_lshl_add_u32 v{AAD}, s{sNODE}, 10, v{L8}
    v_lshl_add_u32 v{EAD}, s{sT0}, 6, v{E8}
    v_lshl_add_u32 v{SAD}, s{sT0}, 4, v{G2}
    s_lshl_b32 s{sTMP}, s{sT0}, 3
    s_sub_u32 s{sREM}, s{sREM}, s{sTMP}
    s_waitcnt lgkmcnt(0)
    s_barrier
    @stamp 10
    s_cmp_eq_u32 s{sLEFT}, 0
    s_cbranch_scc1 K2_MAINDONE
    s_cmp_lg_u32 s{sMODE}, 0
    s_cbranch_scc1 S_START
    """)
    mainloop(a, False)
    a(f"""
K2_MAINDONE:
    @stamp 11
    s_waitcnt vmcnt(0)
    s_cmp_ge_u32 s{sWV}, 8
    s_cbranch_scc1 K2_NOFA
    s_lshl_b32 s{sTMP}, s{sWV}, 12
    s_add_u32 s{sTMP}, s{sTMP}, {WS_F}
    v_lshl_add_u32 v16, v{L8}, 1, s{sTMP}
    global_load_dwordx4 v[0:3], v16, s[{sWS}:{sWS+1}] sc1
    global_load_dwordx4 v[4:7], v16, s[{sWS}:{sWS+1}] offset:1024 sc1
    global_load_dwordx4 v[8:11], v16, s[{sWS}:{sWS+1}] offset:2048 sc1
    global_load_dwordx4 v[12:15], v16, s[{sWS}:{sWS+1}] offset:3072 sc1
K2_NOFA:
    v_mov_b32 v17, {f2u(2.0**120):#x}
    v_add_f32 v18, v{NANC}, v{NANC+1}
    v_cmp_nle_f32 vcc, v{MAXC}, v17
    v_cmp_u_f32 s[{sTMP}:{sTMP+1}], v18, v18
    v_mov_b32 v19, 0
    v_mov_b32 v20, 1
    s_or_b64 vcc, vcc, s[{sTMP}:{sTMP+1}]
    s_cbranch_scc0 K2_NOOVF
    ds_write_b32 v19, v20 offset:{FLG+4}
K2_NOOVF:
    v_lshrrev_b32 v21, 4, v{TID}
    v_and_b32 v22, 15, v{TID}
    v_lshlrev_b32 v23, 10, v21
    v_lshl_add_u32 v23, v22, 4, v23
    v_xor_b32 v24, v21, v22
    v_and_b32 v24, 15, v24
    v_lshlrev_b32 v24, 4, v24
    v_lshl_add_u32 v24, v21, 8, v24
    s_waitcnt lgkmcnt(0)
    s_barrier
    @stamp 12
    ds_read_b64 v[26:27], v19 offset:{FLG}
    s_cmp_ge_u32 s{sWV}, 10
    s_cbranch_scc1 K2_NOCV
    ds_read_b128 v[36:39], v23 offset:{AGG}
    ds_read_b128 v[40:43], v23 offset:{AGG+256}
    ds_read_b128 v[44:47], v23 offset:{AGG+512}
    ds_read_b128 v[48:51], v23 offset:{AGG+768}
    """)
    for q in range(4):
        a(f"s_waitcnt lgkmcnt({3-q})\nv_cvt_f32_f64 v{28+2*q}, v[{36+4*q}:{37+4*q}]\nv_cvt_f32_f64 v{29+2*q}, v[{38+4*q}:{39+4*q}]")
    for q in range(4):
        a(f"v_cvt_pk_bf16_f32 v{28+q}, v{28+2*q}, v{29+2*q}")
    a(f"""
    ds_write_b128 v24, v[28:31] offset:{ES}
K2_NOCV:
    s_waitcnt lgkmcnt(0)
    v_readfirstlane_b32 s{sTMP}, v26
    v_readfirstlane_b32 s{sTMP+1}, v27
    s_cmp_lg_u32 s{sTMP+1}, 0
    s_cbranch_scc1 K2_GOSAFE
K2_NOSAFE:
    s_cmp_lg_u32 s{sTMP}, 0
    s_cbranch_scc1 K2_NEXTPASS
    s_barrier
    s_cmp_ge_u32 s{sWV}, 10
    s_cbranch_scc1 K2_END2
    s_cmp_ge_u32 s{sWV}, 8
    s_cbranch_scc1 K2_OUT
    v_xor_b32 v64, v{VG}, v{VJ}
    v_lshlrev_b32 v64, 4, v64
    v_lshl_add_u32 v64, v{VJ}, 8, v64
    v_xor_b32 v65, 64, v64
    v_xor_b32 v66, 128, v64
    v_xor_b32 v67, 192, v64
    """)
    for rt in range(3):
        for ks in range(4):
            a(f"ds_read_b128 v[{16+16*rt+4*ks}:{19+16*rt+4*ks}], v{64+ks} offset:{ES + rt*4096}")
    a(f"""
    ; staging address: row*256 + ((2*ct + (g>>1)) ^ j)*16 + (g&1)*8, row = 16*rt + j
    s_lshl_b32 s{sTMP}, s{sWV}, 1
    v_lshrrev_b32 v68, 1, v{VG}
    v_or_b32 v68, s{sTMP}, v68
    v_xor_b32 v68, v68, v{VJ}
    v_and_b32 v69, 1, v{VG}
    v_lshl_or_b32 v68, v68, 1, v69
    v_lshlrev_b32 v68, 3, v68
    v_lshl_add_u32 v68, v{VJ}, 8, v68
    s_mov_b32 s{sTMP+2}, {f2u(-LOG2E/(1+float(OPT.get("eps", 0)))):#x}
    s_waitcnt vmcnt(0)
    """)
    for rt in range(3):
        for ks in range(4):
            a(f"s_waitcnt lgkmcnt({11 - 4*rt - ks})")
            a(f"v_mfma_f32_16x16x32_bf16 v[{UA+4*rt}:{UA+4*rt+3}], v[{4*ks}:{4*ks+3}], v[{16+16*rt+4*ks}:{19+16*rt+4*ks}], v[{UA+4*rt}:{UA+4*rt+3}]")
    a("s_nop 1")
    for rt in range(3):
        u = UA + 4*rt
        a(f"""
        v_exp_f32 v16, v{u}
        v_exp_f32 v17, v{u+1}
        v_exp_f32 v18, v{u+2}
        v_exp_f32 v19, v{u+3}
        v_pk_fma_f32 v[16:17], v[16:17], s[{sTMP+2}:{sTMP+3}], s[{sTMP+2}:{sTMP+3}] op_sel_hi:[1,0,0]
        v_pk_fma_f32 v[18:19], v[18:19], s[{sTMP+2}:{sTMP+3}], s[{sTMP+2}:{sTMP+3}] op_sel_hi:[1,0,0]
        v_rcp_f32 v16, v16
        v_rcp_f32 v17, v17
        v_rcp_f32 v18, v18
        v_rcp_f32 v19, v19
        v_pk_mul_f32 v[16:17], v[16:17], v[{u}:{u+1}]
        v_pk_mul_f32 v[18:19], v[18:19], v[{u+2}:{u+3}]
        v_cvt_pk_bf16_f32 v{20+2*rt}, v16, v17
        v_cvt_pk_bf16_f32 v{21+2*rt}, v18, v19
        ds_write_b64 v68, v[{20+2*rt}:{21+2*rt}] offset:{QS + rt*4096}
        """)
    a(f"""
K2_OUT:
    v_lshrrev_b32 v28, 4, v{TID}
    v_xor_b32 v29, v28, v{VJ}
    v_and_b32 v29, 15, v29
    v_lshlrev_b32 v29, 4, v29
    v_lshl_add_u32 v29, v28, 8, v29
    s_lshl_b32 s{sTMP}, s{sSTART}, 8
    v_lshl_add_u32 v30, v{TID}, 4, s{sTMP}
    s_waitcnt lgkmcnt(0)
    s_barrier
    ds_read_b128 v[32:35], v29 offset:{QS}
    s_waitcnt lgkmcnt(0)
    buffer_store_dwordx4 v[32:35], v30, s[{sO}:{sO+3}], 0 offen
K2_END2:
    @store {sWS} {TID} {WS_DIAG}
K_END:
    s_endpgm
K2_SHRINK:
    s_mov_b32 s{sR}, 1
    s_waitcnt lgkmcnt(0)
K2_REINIT:
    s_barrier
    v_lshrrev_b32 v9, 1, v{L8}
    v_mov_b32 v10, 0
    ds_write_b32 v9, v10 offset:{CNT}
    ds_write_b32 v10, v10 offset:{FLG}
    ds_write_b32 v10, v10 offset:{FLG+4}
    v_lshlrev_b32 v9, 2, v{TID}
    v_mov_b32 v10, -1
    ds_write_b32 v9, v10 offset:{SS}
    s_waitcnt lgkmcnt(0)
    s_barrier
    s_branch K2_PASS
K2_NEXTPASS:
    s_add_u32 s{sR0}, s{sR0}, s{sR}
    s_waitcnt vmcnt(0)
    s_branch K2_REINIT
K2_GOSAFE:
    s_cmp_lg_u32 s{sMODE}, 0
    s_cbranch_scc1 K2_NOSAFE
    s_mov_b32 s{sMODE}, 1
    s_waitcnt vmcnt(0)
    s_barrier
    s_mov_b32 s{sR0}, 0
    s_mov_b32 s{sR}, {RMAX}
    v_lshlrev_b32 v9, 4, v{TID}
    v_mov_b64 v[32:33], 0
    v_mov_b64 v[34:35], 0
    ds_write_b128 v9, v[32:35] offset:{AGG}
    ds_write_b128 v9, v[32:35] offset:{AGG+16384}
    v_add_u32 v9, 24576, v9
    ds_write_b128 v9, v[32:35] offset:{AGG}
    s_branch K2_REINIT
    """)
    mainloop(a, True)
    return a.text()

HEADER = """; Kernarg layout for this problem (72 bytes, ptrs only, base s[0:1]):
;          tagged granules).  Phase B: collect the group's edges, sort them by node, evaluate the messages
"""
def desc(name, vgpr, sgpr):
    return f""".p2align 6
.amdhsa_kernel {name}
  .amdhsa_next_free_vgpr {vgpr}
  .amdhsa_next_free_sgpr {sgpr}
  .amdhsa_accum_offset {(vgpr+3)//4*4}
  .amdhsa_group_segment_fixed_size 0
  .amdhsa_kernarg_size 72
  .amdhsa_user_sgpr_count 2
  .amdhsa_user_sgpr_kernarg_segment_ptr 1
  .amdhsa_system_sgpr_workgroup_id_x 1
.end_amdhsa_kernel
"""
def main():
    s = ("; opts " + " ".join(sys.argv[2:]) + "\n" if len(sys.argv) > 2 else "") + HEADER
    s += f"; @launch grid=({NG},1,1) block=(1024,1,1) lds={LDS_BYTES}\n"
    s += '.amdgcn_target "amdgcn-amd-amdhsa--gfx950"\n.text\n'
    s += f".globl {KN}\n.p2align 8\n.type {KN},@function\n" + kernel()
    s += '.section .rodata,"a"\n' + desc(KN, NVGPR, 100 if (DIAG or AMP) else 68)
    open(sys.argv[1], "w").write(s)
main()
```

```python
import sys, struct

N = 10000; E = 320000
NG = 256
EPW = 1280
NPROD = E // EPW
REC_STRIDE = EPW * 12 + 128
WS_P = 4096
WS_REC = 0x280000
WS_T = 0x650000
WS_F = 0x6D0000
WS_DIAG = 0xB00000
LOG2E = 1.4426950408889634
def f2u(x): return struct.unpack("<I", struct.pack("<f", x))[0]
NLOG2E = f2u(-LOG2E)
OPT = dict(a.split("=") if "=" in a else (a, "1") for a in sys.argv[2:])
DIAG = "diag" in OPT
AMP = int(OPT.get("amp", 0))
PF1 = int(OPT.get("pf1", 4)); PF2 = int(OPT.get("pf2", 12))
W2E = "w2late" not in OPT
KN = "gather_scatter__mpnn_edge_mlp__graph_kernel"
SPINMAX = 400000
RMAX = 5
CAP = 2048

CNT = 0; FLG = 256; NON = 272
TF = 512
SS = 1024
XS = SS + CAP*2 + 256
QS = XS + 40*256
ES = QS + 40*512
AGG = ES + CAP*8
RING = AGG + 40*1024
LDS_BYTES = RING + 65536
W1S = RING; W2S = RING + 32768; WTS = RING
STAGE = QS; HIST = ES; OFFS = ES + 1024; W3S = ES + 2048
AB = ES; OUTS = QS
D0, D1, QR, VU, BP, AE, ID, W3 = 0, 16, 32, 48, 64, 72, 76, 84
VA, NUM, DEN, NANC, MAXC = 88, 90, 92, 94, 96
EAD, SAD, PAD, IX0, IX1, QAD, AAD, L8, NCNT, TID, TW, RAD, E8 = 97, 98, 99, 100, 102, 104, 105, 106, 107, 108, 109, 110, 111
G2 = 81; LQ = 82
XA, WA = 88, 92
VG, VJ, VL = 126, 127, 97
UA = (112, 116, 120)
NVGPR = 128
sREC = 4; sR0 = 8; sMODE = 9; sLEFT = 10; sCNT = 11
sK1 = 12; sK2 = 13; sNL = 14; sNC = 15; sNQ = 16; sR = 17; sNZ2 = 18
sWS = 20; sWV = 22; sSTART = 23; sX = 24; sP = 24; sO = 28
sNZ = 32; sM0 = 34; sM1 = 36; sONE = 38; sRING = 40; sRHO = 42; sW = 40
sTMP = 44; sEV = 48; sG = 49; sEX = 50; sCM = 52
sNON = 60; sEND = 62; sSPIN = 63; sP2 = 64; sANY = 68; sT0 = 70; sVT = 71
NSGPR = 72
LDF = OPT.get('ldf', '').replace('+', ' ')
WSOFF = f"s_add_u32 s{sWS}, s{sWS}, {int(OPT['wso']) << 20}\ns_addc_u32 s{sWS+1}, s{sWS+1}, 0" if 'wso' in OPT else ''
STF = OPT.get('stf', 'sc1').replace('+', ' ')
sST = 72

class Asm:
    def __init__(self): self.l = []
    def __call__(self, s):
        for ln in s.strip("\n").split("\n"):
            ln = ln.strip()
            if ln.startswith("@estamp"):
                if "epi" not in OPT: continue
                ln = ln.replace("@estamp", "@stamp")
            elif ln.startswith("@stamp") and "epi" in OPT and int(ln.split()[1]) in range(2, 10): continue
            if ln.startswith("@amp"):
                i = int(ln.split()[1])
                A0 = int(OPT.get("amp0", 0))
                if AMP and i in (A0, AMP): self(f"s_memrealtime s[{72+2*(i != A0)}:{73+2*(i != A0)}]\ns_waitcnt lgkmcnt(0)")
                continue
            if ln.startswith("@store") and AMP:
                self("""s_waitcnt vmcnt(0)
                @amp 9
                s_lshl_b32 s3, s22, 8
                s_or_b32 s3, s3, s2
                s_cmp_lg_u32 s3, """ + OPT.get("ampwg", "0") + """
                s_cbranch_scc1 AMP_DONE
                s_sub_u32 s74, s74, s72
                s_lshl_b32 s74, s74, 4
                s_memrealtime s[76:77]
                s_waitcnt lgkmcnt(0)
AMP_LOOP:
                s_memrealtime s[78:79]
                s_waitcnt lgkmcnt(0)
                s_sub_u32 s78, s78, s76
                s_cmp_lt_u32 s78, s74
                s_cbranch_scc1 AMP_LOOP
AMP_DONE:""")
                continue
            if ln.startswith("@stamp"):
                i = int(ln.split()[1])
                if DIAG and ("st" not in OPT or i in (0, 13) or str(i) in OPT["st"].split(",")): self(f"{'s_memrealtime' if OPT['diag'] == 'rt' or i in (0, 13) else 's_memtime'} s[{sST+2*i}:{sST+2*i+1}]\ns_waitcnt lgkmcnt(0)")
                continue
            if ln.startswith("@store"):
                if DIAG:
                    self(f"s_waitcnt vmcnt(0)\n@stamp 12\n@stamp 13\ns_mov_b64 exec, -1\nv_lshrrev_b32 v1, 6, v{TID}\ns_lshl_b32 s3, s2, 4\nv_add_u32 v1, s3, v1\nv_lshlrev_b32 v1, 6, v1\nv_add_u32 v1, {WS_DIAG}, v1")
                    for i in range(14): self(f"v_mov_b32 v2, s{sST+2*i}\nglobal_store_dword v1, v2, s[{sWS}:{sWS+1}] offset:{4*i}")
                continue
            if ln: self.l.append(ln if ln.endswith(":") else "    " + ln)
    def text(self): return "\n".join(self.l) + "\n"

def dpp_scan(a, v, fill=()):
    fill = list(fill)
    def pad():
        k = 0
        while k < 2 and fill: a(fill.pop(0)); k += 1
        if k < 2: a(f"s_nop {1-k}")
    for sh in (1, 2, 4, 8):
        pad(); a(f"v_add_u32_dpp v{v}, v{v}, v{v} row_shr:{sh} row_mask:0xf bank_mask:0xf bound_ctrl:0")
    pad(); a(f"v_add_u32_dpp v{v}, v{v}, v{v} row_bcast:15 row_mask:0xa bank_mask:0xf")
    pad(); a(f"v_add_u32_dpp v{v}, v{v}, v{v} row_bcast:31 row_mask:0xc bank_mask:0xf")
    for x in fill: a(x)

def mainloop(a, safe):
    L = "S" if safe else "F"
    def ex(d, k): a(f"v_exp_f32 v{VU+k}, v{d+k}")
    def pk(d, e):
        t = d + 2*e; u = VU + 2*e
        if not safe:
            a(f"""
            v_pk_fma_f32 v[{VA}:{VA+1}], v[{t}:{t+1}], v[{DEN}:{DEN+1}], v[{NUM}:{NUM+1}]
            v_pk_fma_f32 v[{DEN}:{DEN+1}], v[{DEN}:{DEN+1}], v[{u}:{u+1}], v[{DEN}:{DEN+1}]
            v_pk_fma_f32 v[{NUM}:{NUM+1}], v[{NUM}:{NUM+1}], v[{u}:{u+1}], v[{VA}:{VA+1}]
            """)
        else:
            a(f"""
            v_pk_add_f32 v[{u}:{u+1}], v[{u}:{u+1}], 1.0 op_sel_hi:[1,0]
            v_rcp_f32 v{u}, v{u}
            v_rcp_f32 v{u+1}, v{u+1}
            s_nop 0
            v_pk_fma_f32 v[{NUM}:{NUM+1}], v[{t}:{t+1}], v[{u}:{u+1}], v[{NUM}:{NUM+1}]
            """)
    def flush():
        if not safe:
            a(f"""
            v_rcp_f32 v{VU}, v{DEN}
            v_rcp_f32 v{VU+1}, v{DEN+1}
            v_max3_f32 v{MAXC}, v{MAXC}, v{DEN}, v{DEN+1}
            v_pk_mul_f32 v[{VA}:{VA+1}], v[{NUM}:{NUM+1}], v[{VU}:{VU+1}]
            v_mov_b64 v[{DEN}:{DEN+1}], s[{sONE}:{sONE+1}]
            v_mov_b64 v[{NUM}:{NUM+1}], 0
            v_cvt_f64_f32 v[{VU}:{VU+1}], v{VA}
            v_cvt_f64_f32 v[{VU+2}:{VU+3}], v{VA+1}
            v_pk_fma_f32 v[{NANC}:{NANC+1}], v[{VA}:{VA+1}], 0, v[{NANC}:{NANC+1}] op_sel_hi:[1,0,1]
            """)
        else:
            a(f"""
            v_cvt_f64_f32 v[{VU}:{VU+1}], v{NUM}
            v_cvt_f64_f32 v[{VU+2}:{VU+3}], v{NUM+1}
            v_mov_b64 v[{NUM}:{NUM+1}], 0
            """)
        a(f"ds_add_f64 v{AAD}, v[{VU}:{VU+1}] offset:{AGG}\nds_add_f64 v{AAD}, v[{VU+2}:{VU+3}] offset:{AGG+512}")
    def preads(slot):
        if "p2" in OPT:
            for q in range(2):
                a(f"ds_read2st64_b64 v[{BP+4*q}:{BP+4*q+3}], v{PAD} offset0:{slot*4 + 2*q} offset1:{slot*4 + 2*q + 1}")
            return
        for q in range(4):
            a(f"ds_read_b64 v[{BP+2*q}:{BP+2*q+1}], v{PAD} offset:{slot*2048 + q*512}")
    def ereads(v, off):
        a(f"""
        s_mov_b64 exec, s[{sM0}:{sM0+1}]
        ds_read_b64 v[{AE}:{AE+1}], v{v} offset:{ES+off}
        s_mov_b64 exec, s[{sM1}:{sM1+1}]
        ds_read_b64 v[{AE+2}:{AE+3}], v{v} offset:{ES+off}
        s_mov_b64 exec, -1
        """)
    def idxreads(v, off):
        a(f"ds_read_u16 v{IX0}, v{v} offset:{SS+off}\nds_read_u16 v{IX1}, v{v} offset:{SS+off+8}")
    def qreads(node):
        if "q2" in OPT:
            a(f"v_lshl_add_u32 v{QAD}, s{node}, 9, v{LQ}")
            for q in range(4):
                a(f"ds_read2_b64 v[{QR+4*q}:{QR+4*q+3}], v{QAD} offset0:0 offset1:0")
            return
        a(f"v_lshl_add_u32 v{QAD}, s{node}, 9, v{L8}")
        for q in range(8):
            a(f"ds_read_b64 v[{QR+2*q}:{QR+2*q+1}], v{QAD} offset:{QS}")
    def mfma(d, k):
        if k == 0: a(f"v_mfma_f32_32x32x16_bf16 v[{d}:{d+15}], v[{AE}:{AE+3}], v[{W3}:{W3+3}], v[{QR}:{QR+15}]")
        else: a(f"v_smfmac_f32_32x32x32_bf16 v[{d}:{d+15}], v[{ID}:{ID+3}], v[{BP}:{BP+7}], v{ID+4}")
    def dma(slot, f1="s_nop 0"):
        if "x_nodma" in OPT: a(f1); return
        a(f"""
        s_mov_b32 m0, s{sRING+slot}
        {f1}
        buffer_load_dwordx4 v[{IX0}:{IX0+1}], s[{sP}:{sP+3}], 0 idxen offen sc1 lds
        buffer_load_dwordx4 v[{IX1}:{IX1+1}], s[{sP2}:{sP2+3}], 0 idxen offen offset:1024 sc1 lds
        """)
    def qnext():
        a(f"s_bitset0_b64 s[{sNZ}:{sNZ+1}], s{sNQ}\ns_ff1_i32_b64 s{sNQ}, s[{sNZ}:{sNZ+1}]")
        qreads(sNQ)
    def tree(name, labels):
        a(f"""
{name}:
        s_cmp_gt_u32 s{sCNT}, 3
        s_cbranch_scc1 {name}_H
        s_cmp_eq_u32 s{sCNT}, 2
        s_cbranch_scc1 {labels[2]}
        s_cmp_eq_u32 s{sCNT}, 3
        s_cbranch_scc1 {labels[3]}
        s_branch {labels[1]}
{name}_H:
        s_cmp_gt_u32 s{sCNT}, 5
        s_cbranch_scc1 {name}_HH
        s_cmp_eq_u32 s{sCNT}, 4
        s_cbranch_scc1 {labels[4]}
        s_branch {labels[5]}
{name}_HH:
        s_cmp_eq_u32 s{sCNT}, 6
        s_cbranch_scc1 {labels[6]}
        s_branch {labels[7]}
        """)
    EV = int(OPT.get("ev", 5))
    a(f"{L}_START:")
    idxreads(SAD, 0)
    a(f"""
    ds_read_u8 v10, v9 offset:{TF}
    v_mov_b64 v[{DEN}:{DEN+1}], s[{sONE}:{sONE+1}]
    v_mov_b64 v[{NUM}:{NUM+1}], 0
    s_waitcnt lgkmcnt(1)
    """)
    dma(0)
    idxreads(SAD, 16)
    qreads(sNQ)
    a(f"""
    s_waitcnt lgkmcnt({4 if "q2" in OPT else 8})
    v_cmp_ne_u32 vcc, 0, v10
    """)
    dma(1)
    idxreads(SAD, 32)
    ereads(EAD, 0)
    a(f"""
    ; sK1: one bit per tile from the top (ends a node, or one of the last tiles), then a marker; sK2: tile + 2 starts a node;
    s_brev_b32 s{sK1}, vcc_lo
    s_lshl_b32 s{sK2}, s{sK1}, 1
    s_sub_u32 s{sTMP}, 32, s{sLEFT}
    s_lshr_b32 s{sNL}, s{sK1}, s{sTMP}
    s_lshl_b32 s{sK1}, s{sNL}, s{sTMP}
    s_sub_u32 s{sTMP}, s{sTMP}, 1
    s_lshl_b32 s{sTMP}, {((7 | (1 << EV)) << 1) | 1}, s{sTMP}
    s_or_b32 s{sK1}, s{sK1}, s{sTMP}
    s_waitcnt vmcnt(2)
    """)
    preads(0)
    a("s_waitcnt lgkmcnt(0)\n@stamp 9")
    dma(0)
    for k in range(2): mfma(D0, k)
    ereads(EAD, 64)
    idxreads(SAD, 48)
    a(f"s_bitcmp0_b32 vcc_lo, 0\ns_cbranch_scc1 {L}_S4")
    qnext()
    a(f"{L}_S4:\ns_waitcnt vmcnt(2)")
    preads(1)
    a(f"s_branch {L}_L0B")
    K2 = f"s_add_u32 s{sK2}, s{sK2}, s{sK2}"
    def xphase(b, lab):
        dc, dn = (D0, D1) if b == 0 else (D1, D0)
        mfma(dn, 0)
        for e in range(7, -1, -1):
            if lab and e < 7: a(f"{L}_X{b}_{e+1}:")
            if e == 2: mfma(dn, 1)
            ex(dc, 2*e+1); ex(dc, 2*e)
    def mid(b, tag):
        a("s_waitcnt vmcnt(2)")
        preads(b)
        if tag == "E": a(K2)
        a(f"s_cbranch_scc1 {L}_ADV{tag}{b}\n{L}_RB{tag}{b}:")
        ereads(EAD, 64*(b+2))
        idxreads(SAD, 16*(b+4))
    def yphase(b, lab):
        dc = D0 if b == 0 else D1
        for e in range(7, -1, -1):
            if lab and e < 7: a(f"{L}_Y{b}_{e+1}:")
            pk(dc, e)
    for b in range(2):
        dc, dn = (D0, D1) if b == 0 else (D1, D0)
        a(f"""
{L}_TAIL{b}:
        s_setprio 2
        s_cmp_ge_u32 s{sLEFT}, 3
        s_cbranch_scc1 {L}_TD{b}
        s_setprio 1
        s_cmp_lg_u32 s{sLEFT}, 0
        s_cbranch_scc1 {L}_T1{b}
        s_setprio 0
{L}_T1{b}:
        s_waitcnt vmcnt(0)
        s_branch {L}_T2{b}
{L}_TD{b}:
        """)
        dma(1-b)
        a(f"""
{L}_T2{b}:
        s_bitcmp1_b32 s{sNL}, s{sLEFT}
        s_cbranch_scc1 {L}_ENDN{b}
        s_mov_b32 s{sCNT}, 8
        s_cmp_eq_u32 s{sLEFT}, 0
        s_cbranch_scc1 {L}_X{b}_8
        {K2}
        s_branch {L}_XB{b}
        """)
        for tag in "PE":
            a(f"{L}_ADV{tag}{b}:")
            qnext()
            a(f"s_branch {L}_RB{tag}{b}")
        tree(f"{L}_XD{b}", {c: f"{L}_XS{b}_{c}" for c in range(1, 8)})
        for c in range(1, 8):
            a(f"{L}_XS{b}_{c}:")
            mfma(dn, 0)
            if c <= 2: mfma(dn, 1)
            a(f"s_branch {L}_X{b}_{c}")
        tree(f"{L}_YD{b}", {c: f"{L}_Y{b}_{c}" for c in range(1, 8)})
        a(f"""
{L}_SP{b}:
        s_ff1_i32_b32 s{sLEFT}, s{sK1}
        s_sub_u32 s{sLEFT}, 31, s{sLEFT}
        s_cmp_le_u32 s{sLEFT}, {EV}
        s_cbranch_scc1 {L}_TAIL{b}
        """)
        dma(1-b)
        a(f"""
{L}_ENDN{b}:
        v_readlane_b32 s{sCNT}, v{NCNT}, s{sNC}
        s_bitset0_b64 s[{sNZ2}:{sNZ2+1}], s{sNC}
        s_ff1_i32_b64 s{sNC}, s[{sNZ2}:{sNZ2+1}]
        s_cmp_lt_u32 s{sCNT}, 8
        s_cbranch_scc1 {L}_XD{b}
{L}_X{b}_8:
        """)
        xphase(b, True)
        mid(b, "E")
        a(f"s_cmp_lt_u32 s{sCNT}, 8\ns_cbranch_scc1 {L}_YD{b}")
        yphase(b, True)
        flush()
        a(f"""
        s_cmp_eq_u32 s{sLEFT}, 0
        s_cbranch_scc1 K_MAINDONE
        v_lshl_add_u32 v{AAD}, s{sNC}, 10, v{L8}
        s_branch {L}_L{1-b}
        """)
    for b in range(2):
        a(f"{L}_L{b}:")
        if b == 0:
            a(f"v_add_u32 v{EAD}, 128, v{EAD}\nv_add_u32 v{SAD}, 32, v{SAD}\n{L}_L0B:")
        a(f"""
        s_add_u32 s{sK1}, s{sK1}, s{sK1}
        s_waitcnt lgkmcnt(0)
        s_cbranch_scc1 {L}_SP{b}
        """)
        dma(1-b, K2)
        a(f"{L}_XB{b}:")
        xphase(b, False)
        mid(b, "P")
        yphase(b, False)
        if b == 1: a(f"s_branch {L}_L0")

def consts(a):
    a(f"""
    ; m = l&31, hk = l>>5, e = 2*(m>>3) + ((m>>1)&1), H = (m>>2)&1, c0 = m&1
    v_lshlrev_b32 v{L8}, 3, v{VL}
    v_add_u32 v{LQ}, {QS}, v{L8}
    v_lshlrev_b32 v{IX0+1}, 4, v{VJ}
    v_lshlrev_b32 v{IX1+1}, 4, v{VJ}
    v_lshlrev_b32 v{G2}, 1, v{VG}
    v_lshrrev_b32 v1, 5, v{VL}
    v_bfe_u32 v2, v{VL}, 2, 1
    v_and_b32 v3, 1, v{VL}
    v_bfe_u32 v4, v{VL}, 1, 1
    v_bfe_u32 v5, v{VL}, 3, 2
    v_lshl_add_u32 v5, v5, 1, v4
    v_mov_b64 v[{AE}:{AE+1}], 0
    v_mov_b64 v[{AE+2}:{AE+3}], 0
    v_xor_b32 v{ID}, v1, v2
    v_lshl_add_u32 v{ID}, v{ID}, 1, v3
    v_cmp_eq_u32 s[{sM0}:{sM0+1}], 0, v{ID}
    v_cmp_eq_u32 s[{sM1}:{sM1+1}], 1, v{ID}
    v_lshlrev_b32 v{E8}, 3, v5
    ; sparse selector: lane half e>>2, register q = 2*(e&1) + ((e>>1)&1) holds 1.0, index (2*H + c0) << 4*q
    v_lshrrev_b32 v{ID+1}, 2, v5
    v_cmp_eq_u32 vcc, v1, v{ID+1}
    v_bfe_u32 v5, v5, 1, 1
    v_lshl_add_u32 v5, v4, 1, v5
    v_lshl_add_u32 v2, v2, 1, v3
    v_cndmask_b32 v3, 0, v{W3}, vcc
    v_lshlrev_b32 v4, 2, v5
    v_lshlrev_b32 v{ID+4}, v4, v2
    """)
    for q in range(4): a(f"v_cmp_eq_u32 s[{sCM + 2*q}:{sCM + 2*q + 1}], {q}, v5")
    a(f"v_lshrrev_b32 v1, 2, v{TID}\nv_and_b32 v2, 3, v{TID}")
    for q in range(4): a(f"v_cndmask_b32 v{ID+q}, 0, v3, s[{sCM + 2*q}:{sCM + 2*q + 1}]")
    a(f"""
    s_movk_i32 s3, {REC_STRIDE}
    v_mul_u32_u24 v3, s3, v1
    v_mad_u32_u24 v{RAD}, v2, 12, v3
    s_lshl_b32 s3, s{sG}, 3
    s_add_u32 s3, s3, {WS_T}
    v_lshl_add_u32 v{AAD}, v1, 11, s3
    v_xor_b32 v1, v{VG}, v{VJ}
    v_lshlrev_b32 v1, 4, v1
    v_lshl_add_u32 v{XA}, v{VJ}, 8, v1
    v_xor_b32 v{XA+1}, 64, v{XA}
    v_xor_b32 v{XA+2}, 128, v{XA}
    v_xor_b32 v{XA+3}, 192, v{XA}
    v_bfe_u32 v1, v{VL}, 2, 2
    v_and_b32 v2, 1, v{VG}
    v_lshl_or_b32 v2, v2, 2, v1
    v_bfe_u32 v3, v{VL}, 1, 1
    v_lshl_or_b32 v2, v2, 1, v3
    v_and_b32 v3, 1, v{VL}
    v_lshl_or_b32 v2, v2, 1, v3
    v_lshl_add_u32 v1, v{VG}, 3, v1
    v_lshlrev_b32 v1, 8, v1
    v_lshl_add_u32 v{WA}, v2, 3, v1
    """)
def wlane(a, v):
    a(f"""
    v_lshlrev_b32 v{v}, 1, v{VG}
    v_xor_b32 v{v}, v{v}, v{VJ}
    v_lshlrev_b32 v{v}, 4, v{v}
    v_lshl_add_u32 v{v}, v{VG}, 8, v{v}
    v_xor_b32 v{v+1}, 128, v{v}
    """)
def wdma(a, soff, v):
    a(f"""
    buffer_load_dwordx4 v{v}, s[{sW}:{sW+3}], s{soff} offen lds
    buffer_load_dwordx4 v{v}, s[{sW}:{sW+3}], s{soff} offen offset:1024 lds
    buffer_load_dwordx4 v{v+1}, s[{sW}:{sW+3}], s{soff} offen offset:2048 lds
    buffer_load_dwordx4 v{v+1}, s[{sW}:{sW+3}], s{soff} offen offset:3072 lds
    """)
def mm16(a, d, x, w, swap=False, first=True):
    for ks in range(4):
        c = "0" if (ks == 0 and first) else f"v[{d}:{d+3}]"
        xa = f"v[{x+4*ks}:{x+4*ks+3}]"; wa = f"v[{w+4*ks}:{w+4*ks+3}]"
        a(f"v_mfma_f32_16x16x32_bf16 v[{d}:{d+3}], {wa if swap else xa}, {xa if swap else wa}, {c}")
def xreads(a, dst, off):
    for ks in range(4): a(f"ds_read_b128 v[{dst+4*ks}:{dst+4*ks+3}], v{XA+ks} offset:{off}")

def kernel():
    a = Asm()
    a(f"""
{KN}:
    s_cmp_ge_u32 s2, {NG}
    s_cbranch_scc1 K_END
    @stamp 0
    @stamp 1
    @amp 0
    s_load_dwordx16 s[4:19], s[0:1], 0
    s_load_dwordx2 s[{sWS}:{sWS+1}], s[0:1], 64
    v_mov_b32 v{TID}, v0
    v_lshrrev_b32 v1, 6, v0
    v_and_b32 v{VL}, 63, v0
    v_readfirstlane_b32 s{sWV}, v1
    s_and_b32 s{sG}, s2, 7
    s_lshl_b32 s{sG}, s{sG}, 5
    s_lshr_b32 s3, s2, 3
    s_or_b32 s{sG}, s{sG}, s3
    v_lshrrev_b32 v{VG}, 4, v{VL}
    v_and_b32 v{VJ}, 15, v{VL}
    s_mul_i32 s3, s{sG}, 625
    s_add_u32 s{sSTART}, s3, 15
    s_lshr_b32 s{sSTART}, s{sSTART}, 4
    s_add_u32 s{sEND}, s3, {625+15}
    s_lshr_b32 s{sEND}, s{sEND}, 4
    v_mov_b32 v{W3}, 0x3f80
    s_mov_b32 s{sW+2}, 65536
    s_mov_b32 s{sW+3}, 0x20000
    s_cmp_ge_u32 s{sWV}, 5
    s_cbranch_scc1 A_N1
    ; ================= waves 0..4: bin the edges [1280*g, 1280*g+1280) by destination group (4 edges per thread)
    s_cmp_lt_u32 s{sG}, {NPROD}
    s_cselect_b32 s3, s{sG}, 0
    s_cselect_b64 s[{sEX}:{sEX+1}], -1, 0
    s_mul_i32 s3, s3, {EPW*4}
    v_lshl_add_u32 v8, v0, 4, s3
    v_lshlrev_b32 v9, 1, v8
    s_lshl_b32 s{sTMP}, s{sWV}, 3
    v_add_u32 v1, s{sTMP}, v{VG}
    v_xor_b32 v2, v1, v{VJ}
    v_and_b32 v2, 15, v2
    v_lshlrev_b32 v2, 4, v2
    v_lshl_add_u32 v2, v1, 8, v2
    v_xor_b32 v3, 64, v2
    s_lshl_b32 s{sTMP}, s{sWV}, 11
    s_add_u32 m0, s{sTMP}, {XS}
    s_lshl_b32 s{sTMP+2}, s{sSTART}, 8
    s_mov_b32 s{sX+2}, {N*256}
    s_mov_b32 s{sX+3}, 0x20000
    s_waitcnt lgkmcnt(0)
    global_load_dwordx4 v[12:15], v8, s[10:11] {LDF}
    {WSOFF}
    s_mov_b32 s{sX}, s4
    s_and_b32 s{sX+1}, s5, 0xffff
    buffer_load_dwordx4 v2, s[{sX}:{sX+3}], s{sTMP+2} offen {LDF} lds
    buffer_load_dwordx4 v3, s[{sX}:{sX+3}], s{sTMP+2} offen offset:1024 {LDF} lds
    s_barrier
    """)
    consts(a)
    a(f"""
    s_movk_i32 s{sTMP}, 625
    s_mov_b32 s{sTMP+1}, 214749
    v_mov_b32 v1, 1
    v_lshlrev_b32 v10, 4, v{VL}
    s_waitcnt vmcnt(2)
    global_load_dwordx4 v[16:19], v8, s[8:9] {LDF}
    global_load_dwordx4 v[20:23], v9, s[6:7] {LDF}
    global_load_dwordx4 v[24:27], v9, s[6:7] offset:16 {LDF}
    s_mov_b64 exec, s[{sEX}:{sEX+1}]
    """)
    for i in range(4):
        a(f"v_mul_u32_u24 v{28+i}, s{sTMP+1}, v{12+i}")
    for i in range(4):
        a(f"v_lshrrev_b32 v{28+i}, 23, v{28+i}\nv_lshlrev_b32 v{32+i}, 2, v{28+i}\nds_add_rtn_u32 v{36+i}, v{32+i}, v1 offset:{HIST}")
    a(f"""
    s_mov_b64 exec, -1
    s_waitcnt lgkmcnt(0)
    @stamp 2
    s_barrier
    ds_read_b128 v[40:43], v10 offset:{HIST}
    """)
    for i in range(4):
        a(f"v_mad_u32_u24 v{28+i}, v{28+i}, s{sTMP}, 15\nv_lshrrev_b32 v{28+i}, 4, v{28+i}\nv_sub_u32 v{28+i}, v{12+i}, v{28+i}")
    a(f"""
    s_waitcnt lgkmcnt(0)
    v_add_u32 v44, v40, v41
    v_add3_u32 v44, v44, v42, v43
    v_mov_b32 v45, v44
    """)
    dpp_scan(a, 45)
    a(f"""
    v_sub_u32 v48, v45, v44
    v_add_u32 v49, v48, v40
    v_add_u32 v50, v49, v41
    v_add_u32 v51, v50, v42
    ds_write_b128 v10, v[48:51] offset:{OFFS}
    s_mov_b32 s{sTMP}, {STAGE}
    s_mov_b64 exec, s[{sEX}:{sEX+1}]
    s_waitcnt lgkmcnt(0)
    """)
    for i in range(4):
        a(f"ds_read_b32 v{40+i}, v{32+i} offset:{OFFS}")
    a(f"""
    s_waitcnt vmcnt(3)
    @stamp 3
    s_barrier
    @amp 1
    s_waitcnt lgkmcnt(0)
    """)
    for i in range(4):
        a(f"v_add_u32 v{40+i}, v{40+i}, v{36+i}\nv_mad_u32_u24 v{40+i}, v{40+i}, 12, s{sTMP}")
    a("s_waitcnt vmcnt(2)")
    for i in range(4):
        a(f"v_lshl_or_b32 v{16+i}, v{28+i}, 18, v{16+i}\nds_write_b32 v{40+i}, v{16+i} offset:8")
    for i in range(4):
        if i % 2 == 0: a(f"s_waitcnt vmcnt({1 - i//2})")
        a(f"ds_write2_b32 v{40+i}, v{20+2*i}, v{21+2*i} offset0:0 offset1:1")
    a(f"""
    s_mov_b64 exec, -1
    s_branch A_JOIN
A_N1:
    ; ================= waves 5..15
    v_mov_b32 v8, 0
    """)
    wlane(a, 6)
    a(f"""
    s_sub_u32 s{sVT}, s{sWV}, 5
    s_lshl_b32 s{sVT}, s{sVT}, 12
    s_add_u32 m0, s{sVT}, {W1S}
    s_waitcnt lgkmcnt(0)
    s_mov_b32 s{sW}, s12
    s_and_b32 s{sW+1}, s13, 0xffff
    {WSOFF}
    s_cmp_ge_u32 s{sWV}, 13
    s_cbranch_scc1 A_N13
    """)
    if "w1late" not in OPT: wdma(a, sVT, 6)
    a(f"""
    s_cmp_ge_u32 s{sWV}, 10
    s_cbranch_scc1 A_N10
    ; waves 5..8: histogram = 0; wave 9: node counters and flags = 0
    s_mov_b32 s{sTMP+1}, {HIST - 320*4}
    s_cmp_eq_u32 s{sWV}, 9
    s_cselect_b32 s{sTMP+1}, {CNT - 576*4}, s{sTMP+1}
    v_lshl_add_u32 v3, v0, 2, s{sTMP+1}
    ds_write_b32 v3, v8
    ds_write_b32 v8, v8 offset:{FLG}
    ds_write_b32 v8, v8 offset:{FLG+4}
    s_cbranch_scc0 A_B0
    ds_write_b32 v3, v8 offset:{TF}
    s_branch A_B0
A_N13:
    s_cmp_eq_u32 s{sWV}, 15
    s_cbranch_scc1 A_N15
    s_and_b32 s{sTMP}, s{sG}, 31
    s_lshl_b32 s{sTMP}, s{sTMP}, 10
    s_cmp_eq_u32 s{sWV}, 13
    s_cselect_b32 s{sTMP+1}, 32768, 0
    s_cselect_b32 s{sTMP+2}, s12, s14
    s_cselect_b32 s{sTMP+3}, s13, s15
    s_add_u32 s{sTMP}, s{sTMP}, s{sTMP+1}
    v_lshl_add_u32 v3, v{VL}, 7, s{sTMP}
    s_mov_b64 exec, 0xff
    global_load_dword v40, v3, s[{sTMP+2}:{sTMP+3}]
    s_mov_b64 exec, -1
    s_cmp_eq_u32 s{sWV}, 14
    s_cbranch_scc0 A_N10
    """)
    if "probe" in OPT:
        kind, nl = OPT["probe"].split(":"); nl = int(nl)
        a(f"""
        s_mul_i32 s3, s{sG}, {REC_STRIDE}
        s_add_u32 s3, s3, {WS_REC}
        v_lshl_add_u32 v3, v{VL}, 7, s3
        v_mov_b32 v4, 0
        s_waitcnt vmcnt(0)
        @amp 12
        s_mov_b64 exec, {(1 << nl) - 1 if nl < 32 else -1}
        {"global_store_dword v3, v4" if kind == "st" else "global_load_dword v4, v3"}, s[{sWS}:{sWS+1}] sc1
        s_mov_b64 exec, -1
        s_waitcnt vmcnt(0)
        @amp 13
        """)
    if "tlb" in OPT:
        a(f"""
        v_mov_b32 v3, 0
        s_mov_b32 s3, {WS_REC - 128}
        v_writelane_b32 v3, s3, 1
        s_mov_b32 s3, {WS_REC + 200*REC_STRIDE - 128}
        v_writelane_b32 v3, s3, 2
        s_mov_b32 s3, {WS_F + 65536}
        v_writelane_b32 v3, s3, 3
        s_lshl_b32 s3, s{sSTART}, 8
        v_mov_b32 v4, s3
        v_mov_b32 v5, 128
        s_mov_b64 exec, 15
        global_load_dword v41, v3, s[{sWS}:{sWS+1}]
        s_mov_b64 exec, 1
        global_load_dword v42, v4, s[16:17]
        global_load_dword v43, v5, s[18:19]
        s_mov_b64 exec, -1
        """)
    a(f"""
    s_branch A_B0
A_N10:
    ; waves 10..13: src list = 0xffff (index out of range)
    v_lshlrev_b32 v3, 4, v0
    v_add_u32 v3, {SS - 640*16}, v3
    v_mov_b64 v[12:13], -1
    v_mov_b64 v[14:15], -1
    ds_write_b128 v3, v[12:15]
    s_branch A_B0
A_N15:
    s_cmp_lg_u32 s2, 0
    s_cbranch_scc1 A_B0
    s_memrealtime s[{sNON}:{sNON+1}]
    s_waitcnt lgkmcnt(0)
    s_or_b32 s{sNON}, s{sNON}, 1
    v_mov_b32 v10, s{sNON}
    v_mov_b32 v11, s{sNON+1}
    s_mov_b64 exec, 1
    global_store_dwordx2 v8, v[10:11], s[18:19] sc1
    s_mov_b64 exec, -1
A_B0:
    """)
    if "x_prew" in OPT:
        op = "global_atomic_or" if OPT["x_prew"] == "atom" else "global_store_dword"
        a(f"""
        s_sub_u32 s3, s{sWV}, 11
        s_cmp_gt_u32 s3, 3
        s_cbranch_scc1 X_NOPW
        s_mul_i32 s{sTMP}, s{sG}, {REC_STRIDE}
        s_add_u32 s{sTMP}, s{sTMP}, {WS_REC}
        s_lshl_b32 s{sTMP+1}, s{sSTART}, 8
        s_add_u32 s{sTMP+1}, s{sTMP+1}, {WS_P}
        s_cmp_lt_u32 s3, 2
        s_cselect_b32 s{sTMP}, s{sTMP}, s{sTMP+1}
        s_cselect_b32 s{sTMP+1}, 42, 0
        s_add_u32 s{sTMP+1}, s{sTMP+1}, 77
        s_and_b32 s3, s3, 1
        s_lshl_b32 s3, s3, 6
        v_add_u32 v3, s3, v{VL}
        v_cmp_ge_u32 vcc, s{sTMP+1}, v3
        v_lshl_add_u32 v3, v3, 7, s{sTMP}
        v_mov_b32 v4, 0
        s_mov_b64 exec, vcc
        {op} v3, v4, s[{sWS}:{sWS+1}] sc1
        s_mov_b64 exec, -1
        s_cmp_eq_u32 s{sWV}, 14
        s_cbranch_scc0 X_NOPW
        s_lshl_b32 s{sTMP}, s{sG}, 11
        s_add_u32 s{sTMP}, s{sTMP}, {WS_T}
        v_lshl_add_u32 v3, v{VL}, 7, s{sTMP}
        s_mov_b64 exec, 0xffff
        {op} v3, v4, s[{sWS}:{sWS+1}] offset:4 sc1
        s_mov_b64 exec, -1
X_NOPW:
        """)
    a(f"""
    s_cmp_eq_u32 s{sWV}, 15
    s_cbranch_scc1 A_B1
    v_lshlrev_b32 v3, 4, v0
    v_add_u32 v3, {AGG - 320*16}, v3
    v_mov_b64 v[12:13], 0
    v_mov_b64 v[14:15], 0
    ds_write_b128 v3, v[12:15]
    ds_write_b128 v3, v[12:15] offset:10240
    ds_write_b128 v3, v[12:15] offset:20480
    ds_write_b128 v3, v[12:15] offset:30720
A_B1:
    s_waitcnt lgkmcnt({"0" if "zearly" in OPT else "4"})
    s_barrier
    """)
    if "w1late" in OPT:
        a(f"s_cmp_ge_u32 s{sWV}, 13\ns_cbranch_scc1 A_NOW1")
        wdma(a, sVT, 6)
        a("A_NOW1:")
    a(f"""
    s_cmp_eq_u32 s{sWV}, 15
    s_cbranch_scc0 A_NO15
    v_bfe_u32 v9, v{VL}, 4, 1
    v_lshlrev_b32 v9, 6, v9
    v_lshrrev_b32 v10, 5, v{VL}
    v_lshl_add_u32 v9, v10, 5, v9
    v_add_u32 v9, v9, v{VJ}
    v_lshlrev_b32 v9, 1, v9
    v_add_u32 v8, {256*256}, v9
    """)
    for s in range(8):
        a(f"global_load_ushort v{16 + s}, v8, s[12:13] offset:{(s & 3)*256 + (s >> 2)*32}")
    a(f"""
    s_cmp_ge_u32 s{sG}, 32
    s_cbranch_scc1 A_NO15
    s_and_b32 s{sTMP}, s{sG}, 1
    s_lshl_b32 s{sTMP}, s{sTMP}, 3
    s_bfe_u32 s{sTMP+1}, s{sG}, 0x10001
    s_lshl_b32 s{sTMP+1}, s{sTMP+1}, 6
    s_add_u32 s{sTMP}, s{sTMP}, s{sTMP+1}
    s_add_u32 s{sTMP}, s{sTMP}, 128
    s_lshl_b32 s{sTMP}, s{sTMP}, 8
    s_bfe_u32 s{sTMP+1}, s{sG}, 0x30002
    s_lshl_b32 s{sTMP+1}, s{sTMP+1}, 5
    s_add_u32 s{sTMP}, s{sTMP}, s{sTMP+1}
    v_lshlrev_b32 v8, 9, v{VG}
    v_lshl_add_u32 v8, v{VJ}, 1, v8
    v_add_u32 v8, s{sTMP}, v8
    v_add_u32 v9, {32*256}, v8
    v_add_u32 v10, {16*256}, v8
    v_add_u32 v11, {48*256}, v8
    """)
    for s in range(8):
        a(f"global_load_ushort v{24 + s}, v{8 + (s >> 1)}, s[14:15] offset:{(s & 1)*256}")
    a(f"""
A_NO15:
    """)
    consts(a)
    a(f"""
    s_barrier
    s_cmp_ge_u32 s{sWV}, 11
    s_cbranch_scc1 A_G11
    ; ================= waves 5..10: P = -log2e * x @ W1 for this group's rows (rt = (wv-5)>>1, hf = (wv-5)&1)
    s_sub_u32 s3, s{sWV}, 5
    s_and_b32 s{sTMP+1}, s3, 1
    s_lshr_b32 s{sTMP}, s3, 1
    s_lshl_b32 s{sTMP+2}, s{sTMP}, 12
    v_add_u32 v0, s{sTMP+2}, v{XA}
    v_add_u32 v1, s{sTMP+2}, v{XA+1}
    v_add_u32 v2, s{sTMP+2}, v{XA+2}
    v_add_u32 v3, s{sTMP+2}, v{XA+3}
    s_lshl_b32 s{sTMP+1}, s{sTMP+1}, 7
    v_xor_b32 v4, s{sTMP+1}, v{WA}
    v_add_u32 v4, {W1S}, v4
    v_xor_b32 v5, 32, v4
    v_xor_b32 v6, 64, v4
    v_xor_b32 v7, 96, v4
    s_add_u32 s{sTMP+2}, s{sTMP+2}, s{sTMP+1}
    s_lshl_b32 s{sTMP+1}, s{sSTART}, 8
    s_add_u32 s{sTMP+2}, s{sTMP+2}, s{sTMP+1}
    s_add_u32 s{sTMP+2}, s{sTMP+2}, {WS_P}
    v_lshlrev_b32 v{NANC}, 10, v{VG}
    v_lshl_add_u32 v{NANC}, v{VJ}, 3, v{NANC}
    v_add_u32 v{NANC}, s{sTMP+2}, v{NANC}
    s_mov_b32 s{sTMP+2}, {NLOG2E:#x}
    s_waitcnt vmcnt(0)
    @stamp 3
    s_barrier
    s_setprio 1
    """)
    def breads(ks):
        b = 8 + 16*(ks & 1)
        a(f"ds_read_b128 v[{40+4*ks}:{43+4*ks}], v{ks} offset:{XS}")
        for i in range(4):
            for h in range(2):
                a(f"ds_read_b64_tr_b16 v[{b+4*i+2*h}:{b+4*i+2*h+1}], v{4+i} offset:{8192*ks + 1024*h}")
    breads(0)
    for ks in range(4):
        if ks < 3:
            breads(ks+1)
            a("s_waitcnt lgkmcnt(9)")
        else:
            a("s_waitcnt lgkmcnt(0)")
        b = 8 + 16*(ks & 1)
        for i in range(4):
            c = "0" if ks == 0 else f"v[{56+4*i}:{59+4*i}]"
            a(f"v_mfma_f32_16x16x32_bf16 v[{56+4*i}:{59+4*i}], v[{40+4*ks}:{43+4*ks}], v[{b+4*i}:{b+4*i+3}], {c}")
    a(f"""
    s_cmp_eq_u32 s{sTMP}, 2
    s_cselect_b32 exec_hi, 0, -1
    s_nop 5
    """)
    for q in range(8):
        a(f"v_pk_mul_f32 v[{56+2*q}:{57+2*q}], v[{56+2*q}:{57+2*q}], s[{sTMP+2}:{sTMP+3}] op_sel_hi:[1,0]")
    for r in range(4):
        a(f"v_cvt_pk_bf16_f32 v{8+2*r}, v{56+r}, v{60+r}\nv_cvt_pk_bf16_f32 v{9+2*r}, v{64+r}, v{68+r}")
        a(f"global_store_dwordx2 v{NANC}, v[{8+2*r}:{9+2*r}], s[{sWS}:{sWS+1}] offset:{256*r} {STF}")
    a(f"""
    s_mov_b64 exec, -1
    s_setprio 0
    s_branch A_JOIN
A_G11:
    s_cmp_eq_u32 s{sWV}, 15
    s_cbranch_scc1 A_G15
    """)
    if "x_prew" in OPT: a(f"s_cmp_ge_u32 s{sWV}, 13\ns_cbranch_scc1 X_NW\ns_waitcnt vmcnt(1)\nX_NW:")
    a(f"""
    s_waitcnt vmcnt({63 if "x_prew" in OPT else 0})
    @stamp 3
    s_barrier
    s_branch A_JOIN
A_G15:
    @stamp 3
    s_barrier
    v_mov_b32 v8, 0
    s_mov_b32 s{sSPIN}, {SPINMAX}
A_NLOOP:
    global_load_dwordx2 v[10:11], v8, s[18:19] sc1
    s_sub_u32 s{sSPIN}, s{sSPIN}, 1
    s_cbranch_scc1 A_NDONE
    s_waitcnt vmcnt(0)
    v_cmp_eq_u32 vcc, 0, v10
    s_cbranch_vccnz A_NLOOP
A_NDONE:
    s_waitcnt vmcnt(0)
    v_lshlrev_b32 v11, 22, v11
    ds_write_b64 v8, v[10:11] offset:{NON}
    s_mov_b32 s{sTMP}, {NLOG2E:#x}
    """)
    for s in range(8):
        a(f"v_lshlrev_b32 v{16+s}, 16, v{16+s}\nv_mul_f32 v{16+s}, s{sTMP}, v{16+s}")
    for q in range(4):
        a(f"v_cvt_pk_bf16_f32 v{12+q}, v{16+2*q}, v{17+2*q}")
    a(f"""
    v_lshlrev_b32 v8, 4, v{VL}
    ds_write_b128 v8, v[12:15] offset:{W3S}
    s_cmp_ge_u32 s{sG}, 32
    s_cbranch_scc1 A_JOIN
    """)
    for q in range(4):
        a(f"v_lshl_or_b32 v{32+q}, v{25+2*q}, 16, v{24+2*q}")
    a(f"""
    s_lshl_b32 s{sTMP}, s{sG}, 10
    s_add_u32 s{sTMP}, s{sTMP}, {WS_F}
    v_add_u32 v8, s{sTMP}, v8
    global_store_dwordx4 v8, v[32:35], s[{sWS}:{sWS+1}] sc1
A_JOIN:
    v_lshlrev_b32 v0, 4, v{TID}
    s_mul_i32 s{sTMP}, s{sG}, {REC_STRIDE}
    s_add_u32 s{sTMP}, s{sTMP}, {WS_REC}
    v_add_u32 v1, s{sTMP}, v0
    s_waitcnt lgkmcnt(0)
    @stamp 4
    s_barrier
    @amp 2
    s_cmp_eq_u32 s{sWV}, 15
    s_cbranch_scc1 A_C2
    ds_read_b128 v[4:7], v0 offset:{STAGE}
    s_waitcnt lgkmcnt(0)
    global_store_dwordx4 v1, v[4:7], s[{sWS}:{sWS+1}] {STF}
A_C2:
    """)
    if "xcctest" in OPT:
        a(f"""
        s_getreg_b32 s80, hwreg(HW_REG_XCC_ID)
        s_and_b32 s80, s80, 15
        s_mul_i32 s3, s{sG}, {REC_STRIDE}
        s_add_u32 s3, s3, {WS_REC + 15360}
        v_mov_b32 v30, s3
        v_mov_b32 v31, s80
        global_store_dword v30, v31, s[{sWS}:{sWS+1}] sc1
        """)
    a(f"""
    v_mov_b32 v2, 0
    v_lshlrev_b32 v3, 4, v{VL}
    ds_read_b64 v[{SAD}:{SAD+1}], v2 offset:{NON}
    ds_read_b128 v[{W3}:{W3+3}], v3 offset:{W3S}
    """)
    wlane(a, 14)
    a(f"""
    s_lshl_b32 s{sTMP}, s{sWV}, 12
    s_add_u32 s{sTMP+1}, s{sTMP}, 32768
    s_sub_u32 s{sTMP+2}, s{sTMP}, 32768
    s_add_u32 s{sTMP+3}, s{sTMP}, {W2S}
    s_add_u32 s{sTMP}, s{sTMP+2}, {WTS}
    s_cmp_lt_u32 s{sWV}, 8
    s_cselect_b32 s{sW}, s12, s14
    s_cselect_b32 s{sW+1}, s13, s15
    s_cselect_b32 s{sVT}, s{sTMP+1}, s{sTMP+2}
    s_cselect_b32 m0, s{sTMP+3}, s{sTMP}
    s_and_b32 s{sW+1}, s{sW+1}, 0xffff
    """)
    if W2E:
        a("s_barrier" if "wboth" in OPT else f"s_barrier\ns_cmp_ge_u32 s{sWV}, 8\ns_cbranch_scc1 A_C4")
        wdma(a, sVT, 14)
        a("A_C4:")
    a(f"""
    s_mov_b32 s{sO}, s16
    s_and_b32 s{sO+1}, s17, 0xffff
    s_lshl_b32 s{sO+2}, s{sEND}, 8
    s_mov_b32 s{sO+3}, 0x20000
    s_add_u32 s{sP}, s{sWS}, {WS_P}
    s_addc_u32 s{sP+1}, s{sWS+1}, 0
    s_and_b32 s{sP+1}, s{sP+1}, 0xffff
    s_or_b32 s{sP+1}, s{sP+1}, {256 << 16}
    s_mov_b32 s{sP+2}, {N}
    s_mov_b32 s{sP+3}, 0x20000
    s_sub_u32 s{sP2}, s{sP}, 1024
    s_subb_u32 s{sP2+1}, s{sP+1}, 0
    s_mov_b32 s{sP2+2}, {N}
    s_mov_b32 s{sP2+3}, 0x20000
    s_add_u32 s{sREC}, s{sWS}, {WS_REC}
    s_addc_u32 s{sREC+1}, s{sWS+1}, 0
    s_and_b32 s{sREC+1}, s{sREC+1}, 0xffff
    s_mov_b32 s{sREC+2}, {NG*REC_STRIDE}
    s_mov_b32 s{sREC+3}, 0x20000
    s_mov_b32 s{sMODE}, 0
    s_mov_b32 s{sR0}, 0
    s_mov_b32 s{sR}, {4*RMAX}
    s_mov_b32 s{sONE}, 1.0
    s_mov_b32 s{sONE+1}, 1.0
    s_mov_b32 s{sSPIN}, {SPINMAX}
    v_mov_b64 v[{NANC}:{NANC+1}], 0
    v_mov_b32 v{MAXC}, 0
    s_and_b32 s{sTMP}, s{sWV}, 7
    s_lshl_b32 s{sTMP}, s{sTMP}, 5
    v_xor_b32 v{WA}, s{sTMP}, v{WA}
    s_and_b32 s{sTMP}, s{sWV}, 8
    s_lshl_b32 s{sTMP}, s{sTMP}, 12
    s_add_u32 s{sTMP}, s{sTMP}, {WTS}
    v_add_u32 v{WA}, s{sTMP}, v{WA}
    s_bfe_u32 s{sTMP}, s{sWV}, 0x10002
    s_lshl_b32 s{sTMP}, s{sTMP}, 7
    s_bfe_u32 s{sTMP+1}, s{sWV}, 0x10001
    s_lshl_b32 s{sTMP+1}, s{sTMP+1}, 8
    s_add_u32 s{sTMP}, s{sTMP}, s{sTMP+1}
    s_and_b32 s{sTMP+1}, s{sWV}, 1
    s_lshl_b32 s{sTMP+1}, s{sTMP+1}, 2
    s_add_u32 s{sTMP}, s{sTMP}, s{sTMP+1}
    v_lshlrev_b32 v{QAD}, 11, v{VG}
    v_lshl_add_u32 v{QAD}, v{VJ}, 3, v{QAD}
    v_add_u32 v{QAD}, s{sTMP}, v{QAD}
    s_mov_b32 s{sTMP+2}, {NLOG2E:#x}
    s_waitcnt lgkmcnt(0)
    v_readfirstlane_b32 s{sNON}, v{SAD}
    v_readfirstlane_b32 s{sNON+1}, v{SAD+1}
    """)
    if PF1:
        a(f"""
        ; this CU's share of the first {512*PF1} lines of P (pulled into the L2 behind the publish; speed only)
        s_and_b32 s{sTMP}, s{sG}, 31
        s_lshl_b32 s{sTMP}, s{sTMP}, 4
        s_add_u32 s{sTMP}, s{sTMP}, s{sWV}
        s_lshr_b32 s{sTMP+1}, s{sG}, 5
        s_lshl_b32 s{sTMP+1}, s{sTMP+1}, 6
        s_add_u32 s{sTMP}, s{sTMP}, s{sTMP+1}
        s_and_b32 s{sTMP}, s{sTMP}, 511
        s_mul_i32 s{sTMP}, s{sTMP}, {PF1*128}
        s_add_u32 s{sTMP}, s{sTMP}, {WS_P}
        v_lshl_add_u32 v3, v{L8}, 4, s{sTMP}
        """)
    a(f"""
    s_cmp_lt_u32 s{sWV}, 14
    s_cbranch_scc1 A_NOT
    ; waves 14, 15: granules (start | count<<11 | tag<<22, tag) of groups 2t, 2t+1 (t = tid - 896)
    v_lshlrev_b32 v8, 3, v{TID}
    ds_read_b64 v[10:11], v8 offset:{OFFS - 896*8}
    ds_read_b64 v[12:13], v8 offset:{HIST - 896*8}
    s_lshl_b32 s{sTMP}, s{sG}, 11
    s_add_u32 s{sTMP}, s{sTMP}, {WS_T - 896*16}
    v_lshl_add_u32 v8, v8, 1, s{sTMP}
    v_mov_b32 v5, s{sNON}
    v_mov_b32 v7, s{sNON}
    s_waitcnt lgkmcnt(0)
    v_lshl_or_b32 v4, v12, 11, v10
    v_lshl_or_b32 v6, v13, 11, v11
    v_or_b32 v4, s{sNON+1}, v4
    v_or_b32 v6, s{sNON+1}, v6
    s_waitcnt vmcnt({4 if "wboth" in OPT else 0})
    @stamp 5
    @amp 10
    s_barrier
    global_store_dwordx4 v8, v[4:7], s[{sWS}:{sWS+1}] sc1
    s_branch A_PUB
A_NOT:
    """)
    if "wboth" in OPT: a("s_waitcnt vmcnt(4)")
    elif W2E: a(f"s_cmp_lt_u32 s{sWV}, 8\ns_cbranch_scc1 A_WT4\ns_waitcnt vmcnt(0)\nA_WT4:\ns_waitcnt vmcnt(4)")
    else: a("s_waitcnt vmcnt(0)")
    a(f"""
    @stamp 5
    @amp 10
    s_barrier
A_PUB:
    s_barrier
    @amp 3
    """)
    if W2E: a(f"s_cmp_lt_u32 s{sWV}, 8\ns_cbranch_scc1 A_NOWT")
    if "wboth" not in OPT: wdma(a, sVT, 14)
    if W2E: a("A_NOWT:")
    if PF1:
        a(f"""
        s_mov_b64 exec, {(1 << PF1) - 1:#x}
        global_load_dword v2, v3, s[{sWS}:{sWS+1}] sc1
        s_mov_b64 exec, -1
        """)
    a(f"""
A_QD:
    s_lshl_b32 s{sRING}, s{sWV}, 12
    s_add_u32 s{sRING}, s{sRING}, {RING}
    s_add_u32 s{sRING+1}, s{sRING}, 2048
    s_and_b32 s{sRHO}, s{sWV}, 3
    s_lshl_b32 s{sRHO}, s{sRHO}, 2
    s_lshr_b32 s{sTMP}, s{sWV}, 2
    s_or_b32 s{sRHO}, s{sRHO}, s{sTMP}
    v_add_u32 v{PAD}, s{sRING}, v{L8}
    s_mov_b32 s3, 1
    v_mov_b32 v19, 0x3fffff
    s_waitcnt vmcnt({1 if PF1 else 0})
    @stamp 6
    @amp 11
    {"s_barrier" if "noqbar" not in OPT else ""}
    {f"s_sleep {OPT['sleep0']}" if "sleep0" in OPT else ""}
    @amp 4
T_LOOP:
    global_load_dwordx2 v[20:21], v{AAD}, s[{sWS}:{sWS+1}] sc1
    s_sub_u32 s{sSPIN}, s{sSPIN}, 1
    s_cbranch_scc1 T_DONE
    s_waitcnt vmcnt(0)
    v_xor_b32 v{TW}, s{sNON+1}, v20
    v_cmp_ne_u32 vcc, s{sNON}, v21
    v_cmp_lt_u32 s[{sTMP}:{sTMP+1}], v19, v{TW}
    s_or_b64 exec, vcc, s[{sTMP}:{sTMP+1}]
    s_cbranch_scc1 T_LOOP
T_DONE:
    s_mov_b64 exec, -1
    s_waitcnt vmcnt(0)
    @stamp 7
    @amp 5
K_PASS:
    v_and_b32 v9, 0x7ff, v{TW}
    v_bfe_u32 v15, v{TW}, 11, 11
    v_add_u32 v9, s{sR0}, v9
    v_mad_u32_u24 v9, v9, 12, v{RAD}
    v_subrev_u32 v15, s{sR0}, v15
    v_min_i32 v10, s{sR}, v15
    v_and_b32 v11, 3, v{TID}
    v_sub_u32 v10, v10, v11
    """)
    for r in range(RMAX):
        a(f"v_cmp_lt_i32 s[{sEX+2*r}:{sEX+2*r+1}], {4*r}, v10")
    a(f"v_cmp_lt_i32 vcc, s{sR}, v15")
    for r in range(RMAX):
        a(f"s_mov_b64 exec, s[{sEX+2*r}:{sEX+2*r+1}]")
        if r >= 2: a(f"s_cbranch_execz K_LD")
        a(f"buffer_load_dwordx3 v[{32+4*r}:{34+4*r}], v9, s[{sREC}:{sREC+3}], 0 offen offset:{48*r} sc1")
    a(f"""
K_LD:
    s_mov_b64 exec, -1
    v_mov_b32 v13, 1
    v_lshrrev_b32 v14, 1, v{L8}
    s_cbranch_vccz K_NOMORE
    v_mov_b32 v9, 0
    ds_write_b32 v9, v13 offset:{FLG}
K_NOMORE:
    """)
    if PF2:
        a(f"""
        s_and_b32 s{sTMP}, s{sG}, 31
        s_lshl_b32 s{sTMP}, s{sTMP}, 4
        s_add_u32 s{sTMP}, s{sTMP}, s{sWV}
        s_lshr_b32 s{sTMP+1}, s{sG}, 5
        s_lshl_b32 s{sTMP+1}, s{sTMP+1}, 6
        s_add_u32 s{sTMP}, s{sTMP}, s{sTMP+1}
        s_and_b32 s{sTMP}, s{sTMP}, 511
        s_mul_i32 s{sTMP}, s{sTMP}, {PF2*128}
        s_add_u32 s{sTMP}, s{sTMP}, {(20000 - 512*PF2)*128 + WS_P}
        v_lshl_add_u32 v12, v{L8}, 4, s{sTMP}
        """)
    a(f"""
    s_cmp_eq_u32 s3, 0
    s_mov_b32 s3, 0
    s_cbranch_scc1 K_NOU
    ; first pass, column tile wv&7: waves 0..7 U = -log2e * (x @ Wupd_top)^T (rows = channels) -> registers,
    """)
    for ks in range(4):
        for h in range(2):
            a(f"ds_read_b64_tr_b16 v[{16+4*ks+2*h}:{17+4*ks+2*h}], v{WA} offset:{8192*ks + 1024*h}")
    XB0 = (52, 56, 60, 64); XB1 = (0, 4, 8, 68)
    def xr(xb, off):
        for ks in range(4): a(f"ds_read_b128 v[{xb[ks]}:{xb[ks]+3}], v{XA+ks} offset:{off}")
    xr(XB0, XS); xr(XB1, XS + 4096)
    a(f"s_mov_b32 s{sTMP+2}, {NLOG2E:#x}\ns_cmp_ge_u32 s{sWV}, 8\ns_cbranch_scc1 K_Q")
    for isq in (0, 1):
        if isq: a("K_Q:")
        def um(rt, xb):
            for ks in range(4):
                c = "0" if ks == 0 else f"v[{UA[rt]}:{UA[rt]+3}]"
                w = f"v[{16+4*ks}:{19+4*ks}]"; x = f"v[{xb[ks]}:{xb[ks]+3}]"
                a(f"v_mfma_f32_16x16x32_bf16 v[{UA[rt]}:{UA[rt]+3}], {x if isq else w}, {w if isq else x}, {c}")
        a("s_waitcnt lgkmcnt(4)")
        um(0, XB0)
        xr(XB0, XS + 8192)
        a("s_waitcnt lgkmcnt(4)")
        um(1, XB1)
        a("s_waitcnt lgkmcnt(0)")
        um(2, XB0)
        if not isq: a("s_nop 3")
        for rt in range(3):
            if rt == 2 and not isq: a("s_nop 1")
            for q in range(2):
                u = UA[rt] + 2*q
                a(f"v_pk_mul_f32 v[{u}:{u+1}], v[{u}:{u+1}], s[{sTMP+2}:{sTMP+3}] op_sel_hi:[1,0]")
            if isq:
                if rt == 2: a("s_mov_b32 exec_hi, 0")
                for r in range(4):
                    a(f"ds_write_b32 v{QAD}, v{UA[rt]+r} offset:{QS + rt*8192 + r*512}")
        a("s_mov_b64 exec, -1" if isq else "s_branch K_NOU")
    a("K_NOU:\ns_waitcnt vmcnt(0)\n@stamp 8\n@amp 6")
    if PF2:
        a(f"s_mov_b64 exec, {(1 << PF2) - 1:#x}\nglobal_load_dword v63, v12, s[{sWS}:{sWS+1}] sc1")
    for r in range(RMAX):
        a(f"s_mov_b64 exec, s[{sEX+2*r}:{sEX+2*r+1}]")
        if r >= 2: a(f"s_cbranch_execz K_HD")
        a(f"v_lshrrev_b32 v{r}, 16, v{34+4*r}\nds_add_rtn_u32 v{35+4*r}, v{r}, v13 offset:{CNT}")
    a(f"""
K_HD:
    s_mov_b64 exec, -1
    s_waitcnt lgkmcnt(0)
    s_barrier
    ds_read_b32 v8, v14 offset:{CNT}
    s_waitcnt lgkmcnt(0)
    v_add_u32 v10, 7, v8
    v_lshrrev_b32 v11, 3, v10
    """)
    dpp_scan(a, 11, [f"v_cmp_ne_u32 s[{sNZ}:{sNZ+1}], 0, v8", f"v_and_b32 v{NCNT}, 7, v10", f"v_and_b32 v10, -8, v10", f"v_add_u32 v{NCNT}, 1, v{NCNT}"])
    a(f"""
    v_lshlrev_b32 v15, 3, v11
    v_sub_u32 v15, v15, v10
    v_readlane_b32 s{sTMP}, v11, 63
    """)
    for r in range(RMAX):
        if r >= 2: a(f"s_cmp_eq_u64 s[{sEX+2*r}:{sEX+2*r+1}], 0\ns_cbranch_scc1 K_BD")
        a(f"ds_bpermute_b32 v{16+r}, v{r}, v15")
    a(f"""
K_BD:
    s_cmp_gt_u32 s{sTMP}, {CAP//8}
    s_cbranch_scc1 K_SHRINK
    s_mul_i32 s{sT0}, s{sTMP}, s{sRHO}
    s_add_u32 s{sTMP}, s{sT0}, s{sTMP}
    s_lshr_b32 s{sT0}, s{sT0}, 4
    s_lshr_b32 s{sTMP}, s{sTMP}, 4
    v_cmp_ge_u32 vcc, s{sT0}, v11
    s_sub_u32 s{sLEFT}, s{sTMP}, s{sT0}
    s_cmp_lg_u32 s{sWV}, 15
    s_cbranch_scc1 K_NOTF
    s_mov_b64 exec, s[{sNZ}:{sNZ+1}]
    ds_write_b8 v11, v13 offset:{TF - 1}
K_NOTF:
    s_waitcnt lgkmcnt(0)
    """)
    for r in range(RMAX):
        a(f"s_mov_b64 exec, s[{sEX+2*r}:{sEX+2*r+1}]")
        if r >= 2: a("s_cbranch_execz K_SD")
        a(f"""
        v_add_lshl_u32 v10, v{16+r}, v{35+4*r}, 3
        v_add_lshl_u32 v9, v{16+r}, v{35+4*r}, 1
        {f"v_and_b32 v{34+4*r}, {OPT['x_mask']}, v{34+4*r}" if "x_mask" in OPT else ""}
        ds_write_b64 v10, v[{32+4*r}:{33+4*r}] offset:{ES}
        ds_write_b16 v9, v{34+4*r} offset:{SS}
        """)
    a(f"""
K_SD:
    s_mov_b64 exec, -1
    s_bcnt1_i32_b64 s{sNC}, vcc
    s_min_u32 s{sNC}, s{sNC}, 61
    s_or_b32 s{sNZ+1}, s{sNZ+1}, 0xc0000000
    s_lshr_b64 s[{sNZ}:{sNZ+1}], s[{sNZ}:{sNZ+1}], s{sNC}
    s_lshl_b64 s[{sNZ}:{sNZ+1}], s[{sNZ}:{sNZ+1}], s{sNC}
    s_mov_b64 s[{sNZ2}:{sNZ2+1}], s[{sNZ}:{sNZ+1}]
    s_mov_b32 s{sNQ}, s{sNC}
    v_lshl_add_u32 v{AAD}, s{sNC}, 10, v{L8}
    v_lshl_add_u32 v{EAD}, s{sT0}, 6, v{E8}
    v_lshl_add_u32 v{SAD}, s{sT0}, 4, v{G2}
    v_lshrrev_b32 v9, 2, v14
    v_add_u32 v9, s{sT0}, v9
    s_waitcnt lgkmcnt(0)
    s_barrier
    s_setprio 3
    @stamp 10
    @amp 7
    s_cmp_eq_u32 s{sLEFT}, 0
    s_cbranch_scc1 K_MAINDONE
    s_cmp_lg_u32 s{sMODE}, 0
    s_cbranch_scc1 S_START
    """)
    mainloop(a, False)
    a(f"""
K_MAINDONE:
    @stamp 11
    @amp 8
    s_waitcnt vmcnt(0)
    v_mov_b32 v17, {f2u(2.0**120):#x}
    v_add_f32 v18, v{NANC}, v{NANC+1}
    v_cmp_nle_f32 vcc, v{MAXC}, v17
    v_cmp_u_f32 s[{sTMP}:{sTMP+1}], v18, v18
    v_mov_b32 v{QAD}, 0
    s_or_b64 vcc, vcc, s[{sTMP}:{sTMP+1}]
    s_cbranch_scc0 K_NOOVF
    v_mov_b32 v20, 1
    ds_write_b32 v{QAD}, v20 offset:{FLG+4}
K_NOOVF:
    s_cmp_ge_u32 s{sWV}, 8
    s_cbranch_scc1 K_NOFA
    s_lshl_b32 s{sTMP}, s{sWV}, 12
    s_add_u32 s{sTMP}, s{sTMP}, {WS_F}
    v_lshl_add_u32 v{EAD}, v{L8}, 1, s{sTMP}
    """)
    for ks in range(4): a(f"global_load_dwordx4 v[{4*ks}:{4*ks+3}], v{EAD}, s[{sWS}:{sWS+1}] offset:{1024*ks} sc1")
    a(f"""
    v_xor_b32 v16, v{VG}, v{VJ}
    v_lshlrev_b32 v16, 4, v16
    v_lshl_add_u32 v{XA}, v{VJ}, 8, v16
    v_xor_b32 v{XA+1}, 64, v{XA}
    v_xor_b32 v{XA+2}, 128, v{XA}
    v_xor_b32 v{XA+3}, 192, v{XA}
    ; staging address: row*256 + ((2*ct + (g>>1)) ^ j)*16 + (g&1)*8, row = 16*rt + j
    s_lshl_b32 s{sTMP}, s{sWV}, 1
    v_lshrrev_b32 v{EAD}, 1, v{VG}
    v_or_b32 v{EAD}, s{sTMP}, v{EAD}
    v_xor_b32 v{EAD}, v{EAD}, v{VJ}
    v_and_b32 v16, 1, v{VG}
    v_lshl_or_b32 v{EAD}, v{EAD}, 1, v16
    v_lshlrev_b32 v{EAD}, 3, v{EAD}
    v_lshl_add_u32 v{EAD}, v{VJ}, 8, v{EAD}
K_NOFA:
    v_lshrrev_b32 v21, 4, v{TID}
    v_lshlrev_b32 v23, 10, v21
    v_lshl_add_u32 v23, v{VJ}, 4, v23
    v_xor_b32 v24, v21, v{VJ}
    v_and_b32 v24, 15, v24
    v_lshlrev_b32 v24, 4, v24
    v_lshl_add_u32 v{SAD}, v21, 8, v24
    s_lshl_b32 s{sTMP}, s{sSTART}, 8
    v_lshl_add_u32 v{AAD}, v{TID}, 4, s{sTMP}
    s_waitcnt lgkmcnt(0)
    s_barrier
    @estamp 2
    ds_read_b64 v[24:25], v{QAD} offset:{FLG}
    s_cmp_ge_u32 s{sWV}, 10
    s_cbranch_scc1 K_NOCV
    ds_read_b128 v[36:39], v23 offset:{AGG}
    ds_read_b128 v[40:43], v23 offset:{AGG+256}
    ds_read_b128 v[44:47], v23 offset:{AGG+512}
    ds_read_b128 v[48:51], v23 offset:{AGG+768}
    """)
    for q in range(4):
        a(f"s_waitcnt lgkmcnt({3-q})\nv_cvt_f32_f64 v{28+2*q}, v[{36+4*q}:{37+4*q}]\nv_cvt_f32_f64 v{29+2*q}, v[{38+4*q}:{39+4*q}]")
    for q in range(4):
        a(f"v_cvt_pk_bf16_f32 v{28+q}, v{28+2*q}, v{29+2*q}")
    a(f"""
    ds_write_b128 v{SAD}, v[28:31] offset:{AB}
K_NOCV:
    s_waitcnt lgkmcnt(0)
    v_or_b32 v27, v24, v25
    v_cmp_ne_u32 vcc, 0, v27
    s_cbranch_vccnz K_SLOW
K_FINAL:
    @estamp 3
    s_barrier
    @estamp 4
    s_cmp_ge_u32 s{sWV}, 10
    s_cbranch_scc1 {"K_OUT2" if AMP else "K_END2"}
    s_cmp_ge_u32 s{sWV}, 8
    s_cbranch_scc1 K_OUT
    """)
    for rt in range(3): xreads(a, 16 + 16*rt, AB + rt*4096)
    a(f"s_mov_b32 s{sTMP+2}, {f2u(-LOG2E/(1+float(OPT.get('eps', 0)))):#x}\ns_waitcnt vmcnt(0)")
    def fm(rt):
        a(f"s_waitcnt lgkmcnt({8 - 4*rt if not (rt == 2 and 'noeil' not in OPT) else 1})")
        mm16(a, UA[rt], 16 + 16*rt, 0, swap=True, first=False)
    def silu(rt):
        u = UA[rt]; t = 64
        a(f"""
        v_exp_f32 v{t}, v{u}
        v_exp_f32 v{t+1}, v{u+1}
        v_exp_f32 v{t+2}, v{u+2}
        v_exp_f32 v{t+3}, v{u+3}
        v_pk_fma_f32 v[{t}:{t+1}], v[{t}:{t+1}], s[{sTMP+2}:{sTMP+3}], s[{sTMP+2}:{sTMP+3}] op_sel_hi:[1,0,0]
        v_pk_fma_f32 v[{t+2}:{t+3}], v[{t+2}:{t+3}], s[{sTMP+2}:{sTMP+3}], s[{sTMP+2}:{sTMP+3}] op_sel_hi:[1,0,0]
        v_rcp_f32 v{t}, v{t}
        v_rcp_f32 v{t+1}, v{t+1}
        v_rcp_f32 v{t+2}, v{t+2}
        v_rcp_f32 v{t+3}, v{t+3}
        v_pk_mul_f32 v[{t}:{t+1}], v[{t}:{t+1}], v[{u}:{u+1}]
        v_pk_mul_f32 v[{t+2}:{t+3}], v[{t+2}:{t+3}], v[{u+2}:{u+3}]
        v_cvt_pk_bf16_f32 v{16+2*rt}, v{t}, v{t+1}
        v_cvt_pk_bf16_f32 v{17+2*rt}, v{t+2}, v{t+3}
        ds_write_b64 v{EAD}, v[{16+2*rt}:{17+2*rt}] offset:{OUTS + rt*4096}
        """)
    if "noeil" not in OPT:
        fm(0); fm(1); a("s_nop 2"); silu(0); fm(2); silu(1); silu(2)
    else:
        fm(0); fm(1); fm(2); a("@estamp 5"); silu(0); silu(1); silu(2)
    a(f"""
K_OUT:
    s_waitcnt lgkmcnt(0)
    @estamp 6
    s_barrier
    @estamp 7
    ds_read_b128 v[32:35], v{SAD} offset:{OUTS}
    s_waitcnt lgkmcnt(0)
    buffer_store_dwordx4 v[32:35], v{AAD}, s[{sO}:{sO+3}], 0 offen {OPT.get('ost', 'sc1').replace('+', ' ')}
    @estamp 8
    {"s_branch K_END2" if AMP else ""}
K_OUT2:
    {"s_barrier" if AMP else ""}
K_END2:
    """)
    if "xcctest" in OPT:
        a(f"""
        s_lshl_b32 s3, s22, 8
        s_or_b32 s3, s3, s{sG}
        s_cmp_lg_u32 s3, 100
        s_cbranch_scc1 XT_DONE
        v_mov_b32 v30, {WS_REC + 15360 + 101*REC_STRIDE}
        global_load_dword v31, v30, s[{sWS}:{sWS+1}] sc1
        s_waitcnt vmcnt(0)
        v_readfirstlane_b32 s81, v31
        s_cmp_eq_u32 s81, s80
        s_cbranch_scc{OPT["xcctest"]} XT_DONE
        s_memrealtime s[76:77]
        s_waitcnt lgkmcnt(0)
XT_LOOP:
        s_memrealtime s[78:79]
        s_waitcnt lgkmcnt(0)
        s_sub_u32 s78, s78, s76
        s_cmp_lt_u32 s78, 2000
        s_cbranch_scc1 XT_LOOP
XT_DONE:
        """)
    a(f"""
    @store
K_END:
    s_endpgm
K_SHRINK:
    ; too many slots for one pass: redo this pass with at most 4 records per cell
    s_mov_b32 s{sR}, 4
    s_mov_b32 s{sTMP+1}, 0
    s_branch K_REINIT
K_SLOW:
    v_readfirstlane_b32 s{sTMP}, v24
    v_readfirstlane_b32 s{sTMP+1}, v25
    s_cmp_eq_u32 s{sMODE}, 0
    s_cselect_b32 s{sTMP+1}, s{sTMP+1}, 0
    s_or_b32 s{sTMP}, s{sTMP}, s{sTMP+1}
    s_cbranch_scc0 K_FINAL
    s_add_u32 s{sR0}, s{sR0}, s{sR}
K_REINIT:
    s_waitcnt vmcnt(0) lgkmcnt(0)
    s_barrier
    v_lshrrev_b32 v9, 1, v{L8}
    v_mov_b32 v10, 0
    ds_write_b32 v9, v10 offset:{CNT}
    ds_write_b32 v9, v10 offset:{TF}
    ds_write_b32 v10, v10 offset:{FLG}
    ds_write_b32 v10, v10 offset:{FLG+4}
    v_lshlrev_b32 v9, 2, v{TID}
    v_mov_b32 v10, -1
    ds_write_b32 v9, v10 offset:{SS}
    s_cmp_eq_u32 s{sTMP+1}, 0
    s_cbranch_scc1 K_SLOW1
    s_mov_b32 s{sMODE}, 1
    s_mov_b32 s{sR0}, 0
    s_mov_b32 s{sR}, {4*RMAX}
    v_lshlrev_b32 v9, 4, v{TID}
    v_add_u32 v9, {AGG}, v9
    v_mov_b64 v[32:33], 0
    v_mov_b64 v[34:35], 0
    ds_write_b128 v9, v[32:35]
    ds_write_b128 v9, v[32:35] offset:16384
    ds_write_b128 v9, v[32:35] offset:24576
K_SLOW1:
    s_waitcnt lgkmcnt(0)
    s_barrier
    s_branch K_PASS
    """)
    mainloop(a, True)
    return a.text()

HEADER = """; Kernarg layout for this problem (72 bytes, ptrs only, base s[0:1]):
;   offset  24: d_in[3] dst  shape=(320000,) dtype=int32
; One workgroup per CU (256 workgroups, 39-40 destination nodes each).
; Phase A: bin 1280 edges by destination group, P = -log2e * x @ W1 for the own rows, publish both (write-through,
;          tagged granules).  Phase B: collect the group's edges, list them per node, evaluate the messages
"""
def main():
    s = ("; opts " + " ".join(sys.argv[2:]) + "\n" if len(sys.argv) > 2 else "") + HEADER
    s += f"; @launch grid=({NG},1,1) block=(1024,1,1) lds={LDS_BYTES}\n"
    s += '.amdgcn_target "amdgcn-amd-amdhsa--gfx950"\n.text\n'
    s += f".globl {KN}\n.p2align 8\n.type {KN},@function\n" + kernel()
    s += f""".section .rodata,"a"
.p2align 6
.amdhsa_kernel {KN}
  .amdhsa_next_free_vgpr {NVGPR}
  .amdhsa_next_free_sgpr {100 if (DIAG or AMP or 'xcctest' in OPT) else NSGPR}
  .amdhsa_accum_offset {NVGPR}
  .amdhsa_group_segment_fixed_size 0
  .amdhsa_kernarg_size 72
  .amdhsa_user_sgpr_count 2
  .amdhsa_user_sgpr_kernarg_segment_ptr 1
  .amdhsa_system_sgpr_workgroup_id_x 1
.end_amdhsa_kernel
"""
    open(sys.argv[1], "w").write(s)
main()
```

```python
import sys, struct

N = 10000; E = 320000
NG = 256
EPW = 1280
NPROD = E // EPW
REC_STRIDE = EPW * 12 + 128
WS_P = 4096
WS_REC = 0x280000
WS_T = 0x650000
WS_F = 0x6D0000
WS_DIAG = 0xB00000
LOG2E = 1.4426950408889634
def f2u(x): return struct.unpack("<I", struct.pack("<f", x))[0]
NLOG2E = f2u(-LOG2E)
OPT = dict(a.split("=") if "=" in a else (a, "1") for a in sys.argv[2:])
DIAG = "diag" in OPT
AMP = int(OPT.get("amp", 0))
PF1 = int(OPT.get("pf1", 4)); PF2 = int(OPT.get("pf2", 12))
W2E = "w2late" not in OPT
RND = "rnd" in OPT
PSTG = "pdirect" not in OPT
KN = "gather_scatter__mpnn_edge_mlp__graph_kernel"
SPINMAX = 400000
RMAX = 5
CAP = 2048

CNT = 0; FLG = 256; NON = 272
TF = 512
SS = 1024
XS = SS + CAP*2 + 256
QS = XS + 40*256
ES = QS + 40*512
AGG = ES + CAP*8
RING = AGG + 40*1024
LDS_BYTES = RING + 65536
W1S = RING; W2S = RING + 32768; WTS = RING
STAGE = QS; HIST = ES; OFFS = ES + 1024; W3S = ES + 2048
AB = ES; OUTS = QS; PST = ES + 3072
D0, D1, QR, VU, BP, AE, ID, W3 = 0, 16, 32, 48, 64, 72, 76, 84
VA, NUM, DEN, NANC, MAXC = 88, 90, 92, 94, 96
EAD, SAD, PAD, IX0, IX1, QAD, AAD, L8, NCNT, TID, TW, RAD, E8 = 97, 98, 99, 100, 102, 104, 105, 106, 107, 108, 109, 110, 111
G2 = 81; LQ = 82
XA, WA = 88, 92
VG, VJ, VL = 126, 127, 97
UA = (112, 116, 120)
NVGPR = 128
sREC = 4; sR0 = 8; sMODE = 9; sLEFT = 10; sCNT = 11
sK1 = 12; sK2 = 13; sNL = 14; sNC = 15; sNQ = 16; sR = 17; sNZ2 = 18
sWS = 20; sWV = 22; sSTART = 23; sX = 24; sP = 24; sO = 28
sNZ = 32; sM0 = 34; sM1 = 36; sONE = 38; sRING = 40; sRHO = 42; sW = 40
sTMP = 44; sEV = 48; sG = 49; sEX = 50; sCM = 52
sNON = 60; sEND = 62; sSPIN = 63; sP2 = 64; sANY = 68; sT0 = 70; sVT = 71
NSGPR = 72
LDF = OPT.get('ldf', '').replace('+', ' ')
SE = int(OPT.get('se', 1))
SRCE = f"""    global_load_dwordx4 v[16:19], v8, s[8:9] {LDF}
    global_load_dwordx4 v[20:23], v9, s[6:7] {LDF}
    global_load_dwordx4 v[24:27], v9, s[6:7] offset:16 {LDF}
"""
WSOFF = f"s_add_u32 s{sWS}, s{sWS}, {int(OPT['wso']) << 20}\ns_addc_u32 s{sWS+1}, s{sWS+1}, 0" if 'wso' in OPT else ''
STF = OPT.get('stf', 'sc1').replace('+', ' ')
sST = 72

class Asm:
    def __init__(self): self.l = []
    def __call__(self, s):
        for ln in s.strip("\n").split("\n"):
            ln = ln.strip()
            if ln.startswith("@estamp"):
                if "epi" not in OPT: continue
                ln = ln.replace("@estamp", "@stamp")
            elif ln.startswith("@stamp") and "epi" in OPT and int(ln.split()[1]) in range(2, 10): continue
            if ln.startswith("@amp"):
                i = int(ln.split()[1])
                A0 = int(OPT.get("amp0", 0))
                if AMP == 99 and i == 0: self('s_memrealtime s[74:75]\ns_waitcnt lgkmcnt(0)'); continue
                if AMP and i in (A0, AMP): self(f"s_memrealtime s[{72+2*(i != A0)}:{73+2*(i != A0)}]\ns_waitcnt lgkmcnt(0)")
                continue
            if ln.startswith("@store") and AMP:
                self("""s_waitcnt vmcnt(0)
                @amp 9
                s_lshl_b32 s3, s22, 8
                """ + ("" if "ampall" in OPT else "s_or_b32 s3, s3, s2") + """
                s_cmp_lg_u32 s3, """ + OPT.get("ampwg", "0") + """
                s_cbranch_scc1 AMP_DONE
                """ + ("s_sub_u32 s72, s60, 200" if "ampnon" in OPT else "") + """
                s_sub_u32 s74, s74, s72
                s_lshl_b32 s74, s74, 4
                s_memrealtime s[76:77]
                s_waitcnt lgkmcnt(0)
AMP_LOOP:
                s_memrealtime s[78:79]
                s_waitcnt lgkmcnt(0)
                s_sub_u32 s78, s78, s76
                s_cmp_lt_u32 s78, s74
                s_cbranch_scc1 AMP_LOOP
AMP_DONE:""")
                continue
            if ln.startswith("@stamp"):
                i = int(ln.split()[1])
                if DIAG and ("st" not in OPT or i in (0, 13) or str(i) in OPT["st"].split(",")): self(f"{'s_memrealtime' if OPT['diag'] == 'rt' or i in (0, 13) else 's_memtime'} s[{sST+2*i}:{sST+2*i+1}]\ns_waitcnt lgkmcnt(0)")
                continue
            if ln.startswith("@store"):
                if DIAG:
                    self(f"s_waitcnt vmcnt(0)\n@stamp 12\n@stamp 13\ns_load_dwordx2 s[{sWS}:{sWS+1}], s[0:1], 64\ns_waitcnt lgkmcnt(0)\ns_mov_b64 exec, -1\nv_lshrrev_b32 v1, 6, v{TID}\ns_lshl_b32 s3, s2, 4\nv_add_u32 v1, s3, v1\nv_lshlrev_b32 v1, 6, v1\nv_add_u32 v1, {WS_DIAG}, v1")
                    for i in range(14): self(f"v_mov_b32 v2, s{sST+2*i}\nglobal_store_dword v1, v2, s[{sWS}:{sWS+1}] offset:{4*i}")
                continue
            if ln: self.l.append(ln if ln.endswith(":") else "    " + ln)
    def text(self): return "\n".join(self.l) + "\n"

def dpp_scan(a, v, fill=()):
    fill = list(fill)
    def pad():
        k = 0
        while k < 2 and fill: a(fill.pop(0)); k += 1
        if k < 2: a(f"s_nop {1-k}")
    for sh in (1, 2, 4, 8):
        pad(); a(f"v_add_u32_dpp v{v}, v{v}, v{v} row_shr:{sh} row_mask:0xf bank_mask:0xf bound_ctrl:0")
    pad(); a(f"v_add_u32_dpp v{v}, v{v}, v{v} row_bcast:15 row_mask:0xa bank_mask:0xf")
    pad(); a(f"v_add_u32_dpp v{v}, v{v}, v{v} row_bcast:31 row_mask:0xc bank_mask:0xf")
    for x in fill: a(x)

def mainloop(a, safe):
    L = "S" if safe else "F"
    def ex(d, k): a(f"v_exp_f32 v{VU+k}, v{d+k}")
    def pk(d, e):
        t = d + 2*e; u = VU + 2*e
        if not safe:
            a(f"""
            v_pk_fma_f32 v[{VA}:{VA+1}], v[{t}:{t+1}], v[{DEN}:{DEN+1}], v[{NUM}:{NUM+1}]
            v_pk_fma_f32 v[{DEN}:{DEN+1}], v[{DEN}:{DEN+1}], v[{u}:{u+1}], v[{DEN}:{DEN+1}]
            v_pk_fma_f32 v[{NUM}:{NUM+1}], v[{NUM}:{NUM+1}], v[{u}:{u+1}], v[{VA}:{VA+1}]
            """)
        else:
            a(f"""
            v_pk_add_f32 v[{u}:{u+1}], v[{u}:{u+1}], 1.0 op_sel_hi:[1,0]
            v_rcp_f32 v{u}, v{u}
            v_rcp_f32 v{u+1}, v{u+1}
            s_nop 0
            v_pk_fma_f32 v[{NUM}:{NUM+1}], v[{t}:{t+1}], v[{u}:{u+1}], v[{NUM}:{NUM+1}]
            """)
    def flush():
        if not safe:
            a(f"""
            v_rcp_f32 v{VU}, v{DEN}
            v_rcp_f32 v{VU+1}, v{DEN+1}
            v_max3_f32 v{MAXC}, v{MAXC}, v{DEN}, v{DEN+1}
            v_pk_mul_f32 v[{VA}:{VA+1}], v[{NUM}:{NUM+1}], v[{VU}:{VU+1}]
            v_mov_b64 v[{DEN}:{DEN+1}], s[{sONE}:{sONE+1}]
            v_mov_b64 v[{NUM}:{NUM+1}], 0
            v_cvt_f64_f32 v[{VU}:{VU+1}], v{VA}
            v_cvt_f64_f32 v[{VU+2}:{VU+3}], v{VA+1}
            v_pk_fma_f32 v[{NANC}:{NANC+1}], v[{VA}:{VA+1}], 0, v[{NANC}:{NANC+1}] op_sel_hi:[1,0,1]
            """)
        else:
            a(f"""
            v_cvt_f64_f32 v[{VU}:{VU+1}], v{NUM}
            v_cvt_f64_f32 v[{VU+2}:{VU+3}], v{NUM+1}
            v_mov_b64 v[{NUM}:{NUM+1}], 0
            """)
        a(f"ds_add_f64 v{AAD}, v[{VU}:{VU+1}] offset:{AGG}\nds_add_f64 v{AAD}, v[{VU+2}:{VU+3}] offset:{AGG+512}")
    def preads(slot):
        if "p2" in OPT:
            for q in range(2):
                a(f"ds_read2st64_b64 v[{BP+4*q}:{BP+4*q+3}], v{PAD} offset0:{slot*4 + 2*q} offset1:{slot*4 + 2*q + 1}")
            return
        for q in range(4):
            a(f"ds_read_b64 v[{BP+2*q}:{BP+2*q+1}], v{PAD} offset:{slot*2048 + q*512}")
    def ereads(v, off):
        a(f"""
        s_mov_b64 exec, s[{sM0}:{sM0+1}]
        ds_read_b64 v[{AE}:{AE+1}], v{v} offset:{ES+off}
        s_mov_b64 exec, s[{sM1}:{sM1+1}]
        ds_read_b64 v[{AE+2}:{AE+3}], v{v} offset:{ES+off}
        s_mov_b64 exec, -1
        """)
    def idxreads(v, off):
        a(f"ds_read_u16 v{IX0}, v{v} offset:{SS+off}\nds_read_u16 v{IX1}, v{v} offset:{SS+off+8}")
    def qreads(node):
        if "q2" in OPT:
            a(f"v_lshl_add_u32 v{QAD}, s{node}, 9, v{LQ}")
            for q in range(4):
                a(f"ds_read2_b64 v[{QR+4*q}:{QR+4*q+3}], v{QAD} offset0:0 offset1:0")
            return
        a(f"v_lshl_add_u32 v{QAD}, s{node}, 9, v{L8}")
        for q in range(8):
            a(f"ds_read_b64 v[{QR+2*q}:{QR+2*q+1}], v{QAD} offset:{QS}")
    def mfma(d, k):
        if k == 0: a(f"v_mfma_f32_32x32x16_bf16 v[{d}:{d+15}], v[{AE}:{AE+3}], v[{W3}:{W3+3}], v[{QR}:{QR+15}]")
        else: a(f"v_smfmac_f32_32x32x32_bf16 v[{d}:{d+15}], v[{ID}:{ID+3}], v[{BP}:{BP+7}], v{ID+4}")
    def dma(slot, f1="s_nop 0"):
        if "x_nodma" in OPT: a(f1); return
        a(f"""
        s_mov_b32 m0, s{sRING+slot}
        {f1}
        buffer_load_dwordx4 v[{IX0}:{IX0+1}], s[{sP}:{sP+3}], 0 idxen offen sc1 lds
        buffer_load_dwordx4 v[{IX1}:{IX1+1}], s[{sP2}:{sP2+3}], 0 idxen offen offset:1024 sc1 lds
        """)
    def qnext():
        a(f"s_bitset0_b64 s[{sNZ}:{sNZ+1}], s{sNQ}\ns_ff1_i32_b64 s{sNQ}, s[{sNZ}:{sNZ+1}]")
        qreads(sNQ)
    def tree(name, labels):
        a(f"""
{name}:
        s_cmp_gt_u32 s{sCNT}, 3
        s_cbranch_scc1 {name}_H
        s_cmp_eq_u32 s{sCNT}, 2
        s_cbranch_scc1 {labels[2]}
        s_cmp_eq_u32 s{sCNT}, 3
        s_cbranch_scc1 {labels[3]}
        s_branch {labels[1]}
{name}_H:
        s_cmp_gt_u32 s{sCNT}, 5
        s_cbranch_scc1 {name}_HH
        s_cmp_eq_u32 s{sCNT}, 4
        s_cbranch_scc1 {labels[4]}
        s_branch {labels[5]}
{name}_HH:
        s_cmp_eq_u32 s{sCNT}, 6
        s_cbranch_scc1 {labels[6]}
        s_branch {labels[7]}
        """)
    EV = int(OPT.get("ev", 5))
    a(f"{L}_START:")
    idxreads(SAD, 0)
    a(f"""
    ds_read_u8 v10, v9 offset:{TF}
    v_mov_b64 v[{DEN}:{DEN+1}], s[{sONE}:{sONE+1}]
    v_mov_b64 v[{NUM}:{NUM+1}], 0
    s_waitcnt lgkmcnt(1)
    """)
    dma(0)
    idxreads(SAD, 16)
    qreads(sNQ)
    a(f"""
    s_waitcnt lgkmcnt({4 if "q2" in OPT else 8})
    v_cmp_ne_u32 vcc, 0, v10
    """)
    dma(1)
    idxreads(SAD, 32)
    ereads(EAD, 0)
    a(f"""
    ; sK1: one bit per tile from the top (ends a node, or one of the last tiles), then a marker; sK2: tile + 2 starts a node;
    s_brev_b32 s{sK1}, vcc_lo
    s_lshl_b32 s{sK2}, s{sK1}, 1
    s_sub_u32 s{sTMP}, 32, s{sLEFT}
    s_lshr_b32 s{sNL}, s{sK1}, s{sTMP}
    s_lshl_b32 s{sK1}, s{sNL}, s{sTMP}
    s_sub_u32 s{sTMP}, s{sTMP}, 1
    s_lshl_b32 s{sTMP}, {((7 | (1 << EV)) << 1) | 1}, s{sTMP}
    s_or_b32 s{sK1}, s{sK1}, s{sTMP}
    s_waitcnt vmcnt(2)
    """)
    preads(0)
    a("s_waitcnt lgkmcnt(0)\n@stamp 9")
    dma(0)
    for k in range(2): mfma(D0, k)
    ereads(EAD, 64)
    idxreads(SAD, 48)
    a(f"s_bitcmp0_b32 vcc_lo, 0\ns_cbranch_scc1 {L}_S4")
    qnext()
    a(f"{L}_S4:\ns_waitcnt vmcnt(2)")
    preads(1)
    a(f"s_branch {L}_L0B")
    K2 = f"s_add_u32 s{sK2}, s{sK2}, s{sK2}"
    def xphase(b, lab):
        dc, dn = (D0, D1) if b == 0 else (D1, D0)
        mfma(dn, 0)
        for e in range(7, -1, -1):
            if lab and e < 7: a(f"{L}_X{b}_{e+1}:")
            if e == 2: mfma(dn, 1)
            ex(dc, 2*e+1); ex(dc, 2*e)
    def mid(b, tag):
        a("s_waitcnt vmcnt(2)")
        preads(b)
        if tag == "E": a(K2)
        a(f"s_cbranch_scc1 {L}_ADV{tag}{b}\n{L}_RB{tag}{b}:")
        ereads(EAD, 64*(b+2))
        idxreads(SAD, 16*(b+4))
    def yphase(b, lab):
        dc = D0 if b == 0 else D1
        for e in range(7, -1, -1):
            if lab and e < 7: a(f"{L}_Y{b}_{e+1}:")
            pk(dc, e)
    for b in range(2):
        dc, dn = (D0, D1) if b == 0 else (D1, D0)
        a(f"""
{L}_TAIL{b}:
        s_setprio 2
        s_cmp_ge_u32 s{sLEFT}, 3
        s_cbranch_scc1 {L}_TD{b}
        s_setprio 1
        s_cmp_lg_u32 s{sLEFT}, 0
        s_cbranch_scc1 {L}_T1{b}
        s_setprio 0
{L}_T1{b}:
        s_waitcnt vmcnt(0)
        s_branch {L}_T2{b}
{L}_TD{b}:
        """)
        dma(1-b)
        a(f"""
{L}_T2{b}:
        s_bitcmp1_b32 s{sNL}, s{sLEFT}
        s_cbranch_scc1 {L}_ENDN{b}
        s_mov_b32 s{sCNT}, 8
        s_cmp_eq_u32 s{sLEFT}, 0
        s_cbranch_scc1 {L}_X{b}_8
        {K2}
        s_branch {L}_XB{b}
        """)
        for tag in "PE":
            a(f"{L}_ADV{tag}{b}:")
            qnext()
            a(f"s_branch {L}_RB{tag}{b}")
        tree(f"{L}_XD{b}", {c: f"{L}_XS{b}_{c}" for c in range(1, 8)})
        for c in range(1, 8):
            a(f"{L}_XS{b}_{c}:")
            mfma(dn, 0)
            if c <= 2: mfma(dn, 1)
            a(f"s_branch {L}_X{b}_{c}")
        tree(f"{L}_YD{b}", {c: f"{L}_Y{b}_{c}" for c in range(1, 8)})
        a(f"""
{L}_SP{b}:
        s_ff1_i32_b32 s{sLEFT}, s{sK1}
        s_sub_u32 s{sLEFT}, 31, s{sLEFT}
        s_cmp_le_u32 s{sLEFT}, {EV}
        s_cbranch_scc1 {L}_TAIL{b}
        """)
        dma(1-b)
        a(f"""
{L}_ENDN{b}:
        v_readlane_b32 s{sCNT}, v{NCNT}, s{sNC}
        s_bitset0_b64 s[{sNZ2}:{sNZ2+1}], s{sNC}
        s_ff1_i32_b64 s{sNC}, s[{sNZ2}:{sNZ2+1}]
        s_cmp_lt_u32 s{sCNT}, 8
        s_cbranch_scc1 {L}_XD{b}
{L}_X{b}_8:
        """)
        xphase(b, True)
        mid(b, "E")
        a(f"s_cmp_lt_u32 s{sCNT}, 8\ns_cbranch_scc1 {L}_YD{b}")
        yphase(b, True)
        flush()
        a(f"""
        s_cmp_eq_u32 s{sLEFT}, 0
        s_cbranch_scc1 K_MAINDONE
        v_lshl_add_u32 v{AAD}, s{sNC}, 10, v{L8}
        s_branch {L}_L{1-b}
        """)
    for b in range(2):
        a(f"{L}_L{b}:")
        if b == 0:
            a(f"v_add_u32 v{EAD}, 128, v{EAD}\nv_add_u32 v{SAD}, 32, v{SAD}\n{L}_L0B:")
        a(f"""
        s_add_u32 s{sK1}, s{sK1}, s{sK1}
        s_waitcnt lgkmcnt(0)
        s_cbranch_scc1 {L}_SP{b}
        """)
        dma(1-b, K2)
        a(f"{L}_XB{b}:")
        xphase(b, False)
        mid(b, "P")
        yphase(b, False)
        if b == 1: a(f"s_branch {L}_L0")

def consts(a):
    a(f"""
    ; m = l&31, hk = l>>5, e = 2*(m>>3) + ((m>>1)&1), H = (m>>2)&1, c0 = m&1
    v_lshlrev_b32 v{L8}, 3, v{VL}
    v_add_u32 v{LQ}, {QS}, v{L8}
    v_lshlrev_b32 v{IX0+1}, 4, v{VJ}
    v_lshlrev_b32 v{IX1+1}, 4, v{VJ}
    v_lshlrev_b32 v{G2}, 1, v{VG}
    v_lshrrev_b32 v1, 5, v{VL}
    v_bfe_u32 v2, v{VL}, 2, 1
    v_and_b32 v3, 1, v{VL}
    v_bfe_u32 v4, v{VL}, 1, 1
    v_bfe_u32 v5, v{VL}, 3, 2
    v_lshl_add_u32 v5, v5, 1, v4
    v_mov_b64 v[{AE}:{AE+1}], 0
    v_mov_b64 v[{AE+2}:{AE+3}], 0
    v_xor_b32 v{ID}, v1, v2
    v_lshl_add_u32 v{ID}, v{ID}, 1, v3
    v_cmp_eq_u32 s[{sM0}:{sM0+1}], 0, v{ID}
    v_cmp_eq_u32 s[{sM1}:{sM1+1}], 1, v{ID}
    v_lshlrev_b32 v{E8}, 3, v5
    ; sparse selector: lane half e>>2, register q = 2*(e&1) + ((e>>1)&1) holds 1.0, index (2*H + c0) << 4*q
    v_lshrrev_b32 v{ID+1}, 2, v5
    v_cmp_eq_u32 vcc, v1, v{ID+1}
    v_bfe_u32 v5, v5, 1, 1
    v_lshl_add_u32 v5, v4, 1, v5
    v_lshl_add_u32 v2, v2, 1, v3
    v_cndmask_b32 v3, 0, v{W3}, vcc
    v_lshlrev_b32 v4, 2, v5
    v_lshlrev_b32 v{ID+4}, v4, v2
    """)
    for q in range(4): a(f"v_cmp_eq_u32 s[{sCM + 2*q}:{sCM + 2*q + 1}], {q}, v5")
    a(f"v_lshrrev_b32 v1, 2, v{TID}\nv_and_b32 v2, 3, v{TID}")
    for q in range(4): a(f"v_cndmask_b32 v{ID+q}, 0, v3, s[{sCM + 2*q}:{sCM + 2*q + 1}]")
    a(f"""
    s_movk_i32 s3, {REC_STRIDE}
    v_mul_u32_u24 v3, s3, v1
    v_mad_u32_u24 v{RAD}, v2, 12, v3
    s_lshl_b32 s3, s{sG}, 3
    s_add_u32 s3, s3, {WS_T}
    v_lshl_add_u32 v{AAD}, v1, 11, s3
    v_xor_b32 v1, v{VG}, v{VJ}
    v_lshlrev_b32 v1, 4, v1
    v_lshl_add_u32 v{XA}, v{VJ}, 8, v1
    v_xor_b32 v{XA+1}, 64, v{XA}
    v_xor_b32 v{XA+2}, 128, v{XA}
    v_xor_b32 v{XA+3}, 192, v{XA}
    v_bfe_u32 v1, v{VL}, 2, 2
    v_and_b32 v2, 1, v{VG}
    v_lshl_or_b32 v2, v2, 2, v1
    v_bfe_u32 v3, v{VL}, 1, 1
    v_lshl_or_b32 v2, v2, 1, v3
    v_and_b32 v3, 1, v{VL}
    v_lshl_or_b32 v2, v2, 1, v3
    v_lshl_add_u32 v1, v{VG}, 3, v1
    v_lshlrev_b32 v1, 8, v1
    v_lshl_add_u32 v{WA}, v2, 3, v1
    """)
def tagbase(a, v):
    a(f"""
    v_readfirstlane_b32 s{sNON}, v{v}
    v_readfirstlane_b32 s{sNON+1}, v{v+1}
    """)
    if RND:
        a(f"""
        s_bfe_u32 s3, s{sNON}, 0x50004
        s_lshl_b32 s3, s3, 23
        s_add_u32 s{sWS}, s{sWS}, s3
        s_addc_u32 s{sWS+1}, s{sWS+1}, 0
        """)
def wlane(a, v):
    a(f"""
    v_lshlrev_b32 v{v}, 1, v{VG}
    v_xor_b32 v{v}, v{v}, v{VJ}
    v_lshlrev_b32 v{v}, 4, v{v}
    v_lshl_add_u32 v{v}, v{VG}, 8, v{v}
    v_xor_b32 v{v+1}, 128, v{v}
    """)
def wdma(a, soff, v):
    a(f"""
    buffer_load_dwordx4 v{v}, s[{sW}:{sW+3}], s{soff} offen lds
    buffer_load_dwordx4 v{v}, s[{sW}:{sW+3}], s{soff} offen offset:1024 lds
    buffer_load_dwordx4 v{v+1}, s[{sW}:{sW+3}], s{soff} offen offset:2048 lds
    buffer_load_dwordx4 v{v+1}, s[{sW}:{sW+3}], s{soff} offen offset:3072 lds
    """)
def mm16(a, d, x, w, swap=False, first=True):
    for ks in range(4):
        c = "0" if (ks == 0 and first) else f"v[{d}:{d+3}]"
        xa = f"v[{x+4*ks}:{x+4*ks+3}]"; wa = f"v[{w+4*ks}:{w+4*ks+3}]"
        a(f"v_mfma_f32_16x16x32_bf16 v[{d}:{d+3}], {wa if swap else xa}, {xa if swap else wa}, {c}")
def xreads(a, dst, off):
    for ks in range(4): a(f"ds_read_b128 v[{dst+4*ks}:{dst+4*ks+3}], v{XA+ks} offset:{off}")

def kernel():
    a = Asm()
    a(f"""
{KN}:
    s_cmp_ge_u32 s2, {NG}
    s_cbranch_scc1 K_END
    @stamp 0
    @stamp 1
    @amp 0
    s_load_dwordx16 s[4:19], s[0:1], 0
    s_load_dwordx2 s[{sWS}:{sWS+1}], s[0:1], 64
    v_mov_b32 v{TID}, v0
    v_lshrrev_b32 v1, 6, v0
    v_and_b32 v{VL}, 63, v0
    v_readfirstlane_b32 s{sWV}, v1
    s_and_b32 s{sG}, s2, 7
    s_lshl_b32 s{sG}, s{sG}, 5
    s_lshr_b32 s3, s2, 3
    s_or_b32 s{sG}, s{sG}, s3
    v_lshrrev_b32 v{VG}, 4, v{VL}
    v_and_b32 v{VJ}, 15, v{VL}
    s_mul_i32 s3, s{sG}, 625
    s_add_u32 s{sSTART}, s3, 15
    s_lshr_b32 s{sSTART}, s{sSTART}, 4
    s_add_u32 s{sEND}, s3, {625+15}
    s_lshr_b32 s{sEND}, s{sEND}, 4
    v_mov_b32 v{W3}, 0x3f80
    s_mov_b32 s{sW+2}, 65536
    s_mov_b32 s{sW+3}, 0x20000
    s_cmp_ge_u32 s{sWV}, 5
    s_cbranch_scc1 A_N1
    ; ================= waves 0..4: bin the edges [1280*g, 1280*g+1280) by destination group (4 edges per thread)
    s_cmp_lt_u32 s{sG}, {NPROD}
    s_cselect_b32 s3, s{sG}, 0
    s_cselect_b64 s[{sEX}:{sEX+1}], -1, 0
    s_mul_i32 s3, s3, {EPW*4}
    v_lshl_add_u32 v8, v0, 4, s3
    v_lshlrev_b32 v9, 1, v8
    s_lshl_b32 s{sTMP}, s{sWV}, 3
    v_add_u32 v1, s{sTMP}, v{VG}
    v_xor_b32 v2, v1, v{VJ}
    v_and_b32 v2, 15, v2
    v_lshlrev_b32 v2, 4, v2
    v_lshl_add_u32 v2, v1, 8, v2
    v_xor_b32 v3, 64, v2
    s_lshl_b32 s{sTMP}, s{sWV}, 11
    s_add_u32 m0, s{sTMP}, {XS}
    s_lshl_b32 s{sTMP+2}, s{sSTART}, 8
    s_mov_b32 s{sX+2}, {N*256}
    s_mov_b32 s{sX+3}, 0x20000
    s_waitcnt lgkmcnt(0)
    global_load_dwordx4 v[12:15], v8, s[10:11] {LDF}
    {WSOFF}
    s_mov_b32 s{sX}, s4
    s_and_b32 s{sX+1}, s5, 0xffff
    buffer_load_dwordx4 v2, s[{sX}:{sX+3}], s{sTMP+2} offen {LDF} lds
    buffer_load_dwordx4 v3, s[{sX}:{sX+3}], s{sTMP+2} offen offset:1024 {LDF} lds
    {SRCE if SE == 0 else ""}
    s_barrier
    {SRCE if SE == 1 else ""}
    """)
    consts(a)
    a(f"""
    s_movk_i32 s{sTMP}, 625
    s_mov_b32 s{sTMP+1}, 214749
    v_mov_b32 v1, 1
    v_lshlrev_b32 v10, 4, v{VL}
    s_waitcnt vmcnt({2 if SE == 2 else 5})
    {SRCE if SE == 2 else ""}
    s_mov_b64 exec, s[{sEX}:{sEX+1}]
    """)
    for i in range(4):
        a(f"v_mul_u32_u24 v{28+i}, s{sTMP+1}, v{12+i}")
    for i in range(4):
        a(f"v_lshrrev_b32 v{28+i}, 23, v{28+i}\nv_lshlrev_b32 v{32+i}, 2, v{28+i}\nds_add_rtn_u32 v{36+i}, v{32+i}, v1 offset:{HIST}")
    a(f"""
    s_mov_b64 exec, -1
    s_waitcnt lgkmcnt(0)
    @stamp 2
    s_barrier
    ds_read_b128 v[40:43], v10 offset:{HIST}
    """)
    for i in range(4):
        a(f"v_mad_u32_u24 v{28+i}, v{28+i}, s{sTMP}, 15\nv_lshrrev_b32 v{28+i}, 4, v{28+i}\nv_sub_u32 v{28+i}, v{12+i}, v{28+i}")
    a(f"""
    s_waitcnt lgkmcnt(0)
    v_add_u32 v44, v40, v41
    v_add3_u32 v44, v44, v42, v43
    v_mov_b32 v45, v44
    """)
    dpp_scan(a, 45)
    a(f"""
    v_sub_u32 v48, v45, v44
    v_add_u32 v49, v48, v40
    v_add_u32 v50, v49, v41
    v_add_u32 v51, v50, v42
    ds_write_b128 v10, v[48:51] offset:{OFFS}
    s_mov_b32 s{sTMP}, {STAGE}
    s_mov_b64 exec, s[{sEX}:{sEX+1}]
    s_waitcnt lgkmcnt(0)
    """)
    for i in range(4):
        a(f"ds_read_b32 v{40+i}, v{32+i} offset:{OFFS}")
    a(f"""
    s_waitcnt vmcnt(3)
    @stamp 3
    s_barrier
    @amp 1
    s_waitcnt lgkmcnt(0)
    """)
    for i in range(4):
        a(f"v_add_u32 v{40+i}, v{40+i}, v{36+i}\nv_mad_u32_u24 v{40+i}, v{40+i}, 12, s{sTMP}")
    a("s_waitcnt vmcnt(2)")
    for i in range(4):
        a(f"v_lshl_or_b32 v{16+i}, v{28+i}, 18, v{16+i}\nds_write_b32 v{40+i}, v{16+i} offset:8")
    for i in range(4):
        if i % 2 == 0: a(f"s_waitcnt vmcnt({1 - i//2})")
        a(f"ds_write2_b32 v{40+i}, v{20+2*i}, v{21+2*i} offset0:0 offset1:1")
    a(f"""
    s_mov_b64 exec, -1
    s_branch A_JOIN
A_N1:
    ; ================= waves 5..15
    v_mov_b32 v8, 0
    """)
    wlane(a, 6)
    a(f"""
    s_sub_u32 s{sVT}, s{sWV}, 5
    s_lshl_b32 s{sVT}, s{sVT}, 12
    s_add_u32 m0, s{sVT}, {W1S}
    s_waitcnt lgkmcnt(0)
    s_mov_b32 s{sW}, s12
    s_and_b32 s{sW+1}, s13, 0xffff
    {WSOFF}
    s_cmp_ge_u32 s{sWV}, 13
    s_cbranch_scc1 A_N13
    """)
    if "w1late" not in OPT: wdma(a, sVT, 6)
    a(f"""
    s_cmp_ge_u32 s{sWV}, 10
    s_cbranch_scc1 A_N10
    ; waves 5..8: histogram = 0; wave 9: node counters and flags = 0
    s_mov_b32 s{sTMP+1}, {HIST - 320*4}
    s_cmp_eq_u32 s{sWV}, 9
    s_cselect_b32 s{sTMP+1}, {CNT - 576*4}, s{sTMP+1}
    v_lshl_add_u32 v3, v0, 2, s{sTMP+1}
    ds_write_b32 v3, v8
    ds_write_b32 v8, v8 offset:{FLG}
    ds_write_b32 v8, v8 offset:{FLG+4}
    s_cbranch_scc0 A_B0
    ds_write_b32 v3, v8 offset:{TF}
    s_branch A_B0
A_N13:
    s_cmp_eq_u32 s{sWV}, 15
    s_cbranch_scc1 A_N15
    s_and_b32 s{sTMP}, s{sG}, 31
    s_lshl_b32 s{sTMP}, s{sTMP}, 10
    s_cmp_eq_u32 s{sWV}, 13
    s_cselect_b32 s{sTMP+1}, 32768, 0
    s_cselect_b32 s{sTMP+2}, s12, s14
    s_cselect_b32 s{sTMP+3}, s13, s15
    s_add_u32 s{sTMP}, s{sTMP}, s{sTMP+1}
    v_lshl_add_u32 v3, v{VL}, 7, s{sTMP}
    s_mov_b64 exec, 0xff
    global_load_dword v40, v3, s[{sTMP+2}:{sTMP+3}]
    s_mov_b64 exec, -1
    s_cmp_eq_u32 s{sWV}, 14
    s_cbranch_scc0 A_N10
    """)
    if "bulk" in OPT:
        nl, fl = OPT["bulk"].split(":"); nl = int(nl); fl = fl.replace("+", " ").replace("-", "")
        a(f"""
        s_mul_i32 s3, s{sG}, {REC_STRIDE}
        s_add_u32 s3, s3, {WS_REC}
        v_lshl_add_u32 v3, v{VL}, 4, s3
        v_mov_b64 v[4:5], 0
        v_mov_b64 v[6:7], 0
        s_waitcnt vmcnt(0)
        s_sleep {OPT.get("bsl", 0)}
        @amp 12
        """)
        for k in range(nl): a(f"global_store_dwordx4 v3, v[4:7], s[{sWS}:{sWS+1}] {fl}\nv_add_u32 v3, 1024, v3")
        a(f"""
        s_waitcnt vmcnt(0)
        @amp 13
        """)
    if "probe" in OPT:
        kind, nl = OPT["probe"].split(":"); nl = int(nl)
        a(f"""
        s_mul_i32 s3, s{sG}, {REC_STRIDE}
        s_add_u32 s3, s3, {WS_REC}
        v_lshl_add_u32 v3, v{VL}, 7, s3
        v_mov_b32 v4, 0
        s_waitcnt vmcnt(0)
        @amp 12
        s_mov_b64 exec, {(1 << nl) - 1 if nl < 32 else -1}
        {"global_store_dword v3, v4" if kind == "st" else "global_load_dword v4, v3"}, s[{sWS}:{sWS+1}] sc1
        s_mov_b64 exec, -1
        s_waitcnt vmcnt(0)
        @amp 13
        """)
    if "tlb" in OPT:
        a(f"""
        v_mov_b32 v3, 0
        s_mov_b32 s3, {WS_REC - 128}
        v_writelane_b32 v3, s3, 1
        s_mov_b32 s3, {WS_REC + 200*REC_STRIDE - 128}
        v_writelane_b32 v3, s3, 2
        s_mov_b32 s3, {WS_F + 65536}
        v_writelane_b32 v3, s3, 3
        s_lshl_b32 s3, s{sSTART}, 8
        v_mov_b32 v4, s3
        v_mov_b32 v5, 128
        s_mov_b64 exec, 15
        global_load_dword v41, v3, s[{sWS}:{sWS+1}]
        s_mov_b64 exec, 1
        global_load_dword v42, v4, s[16:17]
        global_load_dword v43, v5, s[18:19]
        s_mov_b64 exec, -1
        """)
    a(f"""
    s_branch A_B0
A_N10:
    ; waves 10..13: src list = 0xffff (index out of range)
    v_lshlrev_b32 v3, 4, v0
    v_add_u32 v3, {SS - 640*16}, v3
    v_mov_b64 v[12:13], -1
    v_mov_b64 v[14:15], -1
    ds_write_b128 v3, v[12:15]
    s_branch A_B0
A_N15:
    s_cmp_lg_u32 s2, 0
    s_cbranch_scc1 A_B0
    s_memrealtime s[{sNON}:{sNON+1}]
    s_waitcnt lgkmcnt(0)
    s_or_b32 s{sNON}, s{sNON}, 1
    v_mov_b32 v10, s{sNON}
    v_mov_b32 v11, s{sNON+1}
    s_mov_b64 exec, 1
    global_store_dwordx2 v8, v[10:11], s[18:19] sc1
    s_mov_b64 exec, -1
A_B0:
    """)
    if "x_prew" in OPT:
        op = "global_atomic_or" if OPT["x_prew"] == "atom" else "global_store_dword"
        a(f"""
        s_sub_u32 s3, s{sWV}, 11
        s_cmp_gt_u32 s3, 3
        s_cbranch_scc1 X_NOPW
        s_mul_i32 s{sTMP}, s{sG}, {REC_STRIDE}
        s_add_u32 s{sTMP}, s{sTMP}, {WS_REC}
        s_lshl_b32 s{sTMP+1}, s{sSTART}, 8
        s_add_u32 s{sTMP+1}, s{sTMP+1}, {WS_P}
        s_cmp_lt_u32 s3, 2
        s_cselect_b32 s{sTMP}, s{sTMP}, s{sTMP+1}
        s_cselect_b32 s{sTMP+1}, 42, 0
        s_add_u32 s{sTMP+1}, s{sTMP+1}, 77
        s_and_b32 s3, s3, 1
        s_lshl_b32 s3, s3, 6
        v_add_u32 v3, s3, v{VL}
        v_cmp_ge_u32 vcc, s{sTMP+1}, v3
        v_lshl_add_u32 v3, v3, 7, s{sTMP}
        v_mov_b32 v4, 0
        s_mov_b64 exec, vcc
        {op} v3, v4, s[{sWS}:{sWS+1}] sc1
        s_mov_b64 exec, -1
        s_cmp_eq_u32 s{sWV}, 14
        s_cbranch_scc0 X_NOPW
        s_lshl_b32 s{sTMP}, s{sG}, 11
        s_add_u32 s{sTMP}, s{sTMP}, {WS_T}
        v_lshl_add_u32 v3, v{VL}, 7, s{sTMP}
        s_mov_b64 exec, 0xffff
        {op} v3, v4, s[{sWS}:{sWS+1}] offset:4 sc1
        s_mov_b64 exec, -1
X_NOPW:
        """)
    a(f"""
    s_cmp_eq_u32 s{sWV}, 15
    s_cbranch_scc1 A_B1
    v_lshlrev_b32 v3, 4, v0
    v_add_u32 v3, {AGG - 320*16}, v3
    v_mov_b64 v[12:13], 0
    v_mov_b64 v[14:15], 0
    ds_write_b128 v3, v[12:15]
    ds_write_b128 v3, v[12:15] offset:10240
    ds_write_b128 v3, v[12:15] offset:20480
    ds_write_b128 v3, v[12:15] offset:30720
A_B1:
    s_waitcnt lgkmcnt({"0" if "zearly" in OPT else "4"})
    s_barrier
    """)
    if "w1late" in OPT:
        a(f"s_cmp_ge_u32 s{sWV}, 13\ns_cbranch_scc1 A_NOW1")
        wdma(a, sVT, 6)
        a("A_NOW1:")
    a(f"""
    s_cmp_eq_u32 s{sWV}, 15
    s_cbranch_scc0 A_NO15
    v_bfe_u32 v9, v{VL}, 4, 1
    v_lshlrev_b32 v9, 6, v9
    v_lshrrev_b32 v10, 5, v{VL}
    v_lshl_add_u32 v9, v10, 5, v9
    v_add_u32 v9, v9, v{VJ}
    v_lshlrev_b32 v9, 1, v9
    v_add_u32 v8, {256*256}, v9
    """)
    for s in range(8):
        a(f"global_load_ushort v{16 + s}, v8, s[12:13] offset:{(s & 3)*256 + (s >> 2)*32}")
    a(f"""
    s_cmp_ge_u32 s{sG}, 32
    s_cbranch_scc1 A_NO15
    s_and_b32 s{sTMP}, s{sG}, 1
    s_lshl_b32 s{sTMP}, s{sTMP}, 3
    s_bfe_u32 s{sTMP+1}, s{sG}, 0x10001
    s_lshl_b32 s{sTMP+1}, s{sTMP+1}, 6
    s_add_u32 s{sTMP}, s{sTMP}, s{sTMP+1}
    s_add_u32 s{sTMP}, s{sTMP}, 128
    s_lshl_b32 s{sTMP}, s{sTMP}, 8
    s_bfe_u32 s{sTMP+1}, s{sG}, 0x30002
    s_lshl_b32 s{sTMP+1}, s{sTMP+1}, 5
    s_add_u32 s{sTMP}, s{sTMP}, s{sTMP+1}
    v_lshlrev_b32 v8, 9, v{VG}
    v_lshl_add_u32 v8, v{VJ}, 1, v8
    v_add_u32 v8, s{sTMP}, v8
    v_add_u32 v9, {32*256}, v8
    v_add_u32 v10, {16*256}, v8
    v_add_u32 v11, {48*256}, v8
    """)
    for s in range(8):
        a(f"global_load_ushort v{24 + s}, v{8 + (s >> 1)}, s[14:15] offset:{(s & 1)*256}")
    a(f"""
A_NO15:
    """)
    consts(a)
    a(f"""
    s_barrier
    s_cmp_ge_u32 s{sWV}, 11
    s_cbranch_scc1 A_G11
    ; ================= waves 5..10: P = -log2e * x @ W1 for this group's rows (rt = (wv-5)>>1, hf = (wv-5)&1)
    s_sub_u32 s3, s{sWV}, 5
    s_and_b32 s{sTMP+1}, s3, 1
    s_lshr_b32 s{sTMP}, s3, 1
    s_lshl_b32 s{sTMP+2}, s{sTMP}, 12
    v_add_u32 v0, s{sTMP+2}, v{XA}
    v_add_u32 v1, s{sTMP+2}, v{XA+1}
    v_add_u32 v2, s{sTMP+2}, v{XA+2}
    v_add_u32 v3, s{sTMP+2}, v{XA+3}
    s_lshl_b32 s{sTMP+1}, s{sTMP+1}, 7
    v_xor_b32 v4, s{sTMP+1}, v{WA}
    v_add_u32 v4, {W1S}, v4
    v_xor_b32 v5, 32, v4
    v_xor_b32 v6, 64, v4
    v_xor_b32 v7, 96, v4
    s_add_u32 s{sTMP+2}, s{sTMP+2}, s{sTMP+1}
    """)
    if not PSTG:
        a(f"""
        s_lshl_b32 s{sTMP+1}, s{sSTART}, 8
        s_add_u32 s{sTMP+2}, s{sTMP+2}, s{sTMP+1}
        s_add_u32 s{sTMP+2}, s{sTMP+2}, {WS_P}
        """)
    a(f"""
    v_lshlrev_b32 v{NANC}, 10, v{VG}
    v_lshl_add_u32 v{NANC}, v{VJ}, 3, v{NANC}
    v_add_u32 v{NANC}, s{sTMP+2}, v{NANC}
    s_mov_b32 s{sTMP+2}, {NLOG2E:#x}
    s_waitcnt vmcnt(0)
    @stamp 3
    s_barrier
    s_setprio 1
    """)
    def breads(ks):
        b = 8 + 16*(ks & 1)
        a(f"ds_read_b128 v[{40+4*ks}:{43+4*ks}], v{ks} offset:{XS}")
        for i in range(4):
            for h in range(2):
                a(f"ds_read_b64_tr_b16 v[{b+4*i+2*h}:{b+4*i+2*h+1}], v{4+i} offset:{8192*ks + 1024*h}")
    breads(0)
    for ks in range(4):
        if ks < 3:
            breads(ks+1)
            a("s_waitcnt lgkmcnt(9)")
        else:
            a("s_waitcnt lgkmcnt(0)")
        b = 8 + 16*(ks & 1)
        for i in range(4):
            c = "0" if ks == 0 else f"v[{56+4*i}:{59+4*i}]"
            a(f"v_mfma_f32_16x16x32_bf16 v[{56+4*i}:{59+4*i}], v[{40+4*ks}:{43+4*ks}], v[{b+4*i}:{b+4*i+3}], {c}")
    a(f"""
    s_cmp_eq_u32 s{sTMP}, 2
    s_cselect_b32 exec_hi, 0, -1
    s_nop 5
    """)
    a("@amp 14")
    for q in range(8):
        a(f"v_pk_mul_f32 v[{56+2*q}:{57+2*q}], v[{56+2*q}:{57+2*q}], s[{sTMP+2}:{sTMP+3}] op_sel_hi:[1,0]")
    for r in range(4):
        a(f"v_cvt_pk_bf16_f32 v{8+2*r}, v{56+r}, v{60+r}\nv_cvt_pk_bf16_f32 v{9+2*r}, v{64+r}, v{68+r}")
        if PSTG: a(f"ds_write_b64 v{NANC}, v[{8+2*r}:{9+2*r}] offset:{PST + 256*r}")
        else: a(f"global_store_dwordx2 v{NANC}, v[{8+2*r}:{9+2*r}], s[{sWS}:{sWS+1}] offset:{256*r} {STF}")
    a(f"""
    s_mov_b64 exec, -1
    {"s_waitcnt vmcnt(0)" if AMP == 15 else ""}
    @amp 15
    s_setprio 0
    s_branch A_JOIN
A_G11:
    s_cmp_eq_u32 s{sWV}, 15
    s_cbranch_scc1 A_G15
    """)
    if "x_prew" in OPT: a(f"s_cmp_ge_u32 s{sWV}, 13\ns_cbranch_scc1 X_NW\ns_waitcnt vmcnt(1)\nX_NW:")
    a(f"""
    s_waitcnt vmcnt({63 if "x_prew" in OPT else 0})
    @stamp 3
    s_barrier
    s_branch A_JOIN
A_G15:
    @stamp 3
    s_barrier
    v_mov_b32 v8, 0
    s_mov_b32 s{sSPIN}, {SPINMAX}
A_NLOOP:
    global_load_dwordx2 v[10:11], v8, s[18:19] sc1
    s_sub_u32 s{sSPIN}, s{sSPIN}, 1
    s_cbranch_scc1 A_NDONE
    s_waitcnt vmcnt(0)
    v_cmp_eq_u32 vcc, 0, v10
    s_cbranch_vccnz A_NLOOP
A_NDONE:
    s_waitcnt vmcnt(0)
    v_lshlrev_b32 v11, 22, v11
    ds_write_b64 v8, v[10:11] offset:{NON}
    s_mov_b32 s{sTMP}, {NLOG2E:#x}
    """)
    tagbase(a, 10)
    for s in range(8):
        a(f"v_lshlrev_b32 v{16+s}, 16, v{16+s}\nv_mul_f32 v{16+s}, s{sTMP}, v{16+s}")
    for q in range(4):
        a(f"v_cvt_pk_bf16_f32 v{12+q}, v{16+2*q}, v{17+2*q}")
    a(f"""
    v_lshlrev_b32 v8, 4, v{VL}
    ds_write_b128 v8, v[12:15] offset:{W3S}
    s_cmp_ge_u32 s{sG}, 32
    s_cbranch_scc1 A_JOIN
    """)
    for q in range(4):
        a(f"v_lshl_or_b32 v{32+q}, v{25+2*q}, 16, v{24+2*q}")
    a(f"""
    s_lshl_b32 s{sTMP}, s{sG}, 10
    s_add_u32 s{sTMP}, s{sTMP}, {WS_F}
    v_add_u32 v8, s{sTMP}, v8
    global_store_dwordx4 v8, v[32:35], s[{sWS}:{sWS+1}] sc1
A_JOIN:
    v_lshlrev_b32 v0, 4, v{TID}
    s_mul_i32 s{sTMP}, s{sG}, {REC_STRIDE}
    s_add_u32 s{sTMP}, s{sTMP}, {WS_REC}
    v_add_u32 v1, s{sTMP}, v0
    s_lshl_b32 s{sTMP}, s{sSTART}, 8
    s_add_u32 s{sTMP}, s{sTMP}, {WS_P - 384*16}
    v_add_u32 v2, s{sTMP}, v0
    v_mov_b32 v3, 0
    s_waitcnt lgkmcnt(0)
    @stamp 4
    s_barrier
    @amp 2
    """)
    if PSTG:
        a(f"""
        s_cmp_eq_u32 s{sWV}, 15
        s_cbranch_scc1 A_C0
        ds_read_b64 v[{SAD}:{SAD+1}], v3 offset:{NON}
        ds_read_b128 v[4:7], v0 offset:{STAGE}
        s_cmp_lt_u32 s{sWV}, 6
        s_cbranch_scc1 A_C1
        ds_read_b128 v[8:11], v0 offset:{PST - 384*16}
        s_waitcnt lgkmcnt(2)
        """)
        tagbase(a, SAD)
        a(f"""
        s_waitcnt lgkmcnt(1)
        global_store_dwordx4 v1, v[4:7], s[{sWS}:{sWS+1}] {STF}
        s_branch A_C0B
A_C0:
        ds_read_b128 v[8:11], v0 offset:{PST - 384*16}
A_C0B:
        s_waitcnt lgkmcnt(0)
        global_store_dwordx4 v2, v[8:11], s[{sWS}:{sWS+1}] {STF}
        s_branch A_C2
A_C1:
        s_waitcnt lgkmcnt(1)
        """)
        tagbase(a, SAD)
        a(f"""
        s_waitcnt lgkmcnt(0)
        global_store_dwordx4 v1, v[4:7], s[{sWS}:{sWS+1}] {STF}
        """)
    else:
        a(f"""
        s_cmp_eq_u32 s{sWV}, 15
        s_cbranch_scc1 A_C2
        ds_read_b128 v[4:7], v0 offset:{STAGE}
        s_waitcnt lgkmcnt(0)
        global_store_dwordx4 v1, v[4:7], s[{sWS}:{sWS+1}] {STF}
        """)
    a(f"""
A_C2:
    {"s_waitcnt vmcnt(0)" if AMP == 17 else ""}
    @amp 16
    @amp 17
    """)
    if "xcctest" in OPT:
        a(f"""
        s_getreg_b32 s80, hwreg(HW_REG_XCC_ID)
        s_and_b32 s80, s80, 15
        s_mul_i32 s3, s{sG}, {REC_STRIDE}
        s_add_u32 s3, s3, {WS_REC + 15360}
        v_mov_b32 v30, s3
        v_mov_b32 v31, s80
        global_store_dword v30, v31, s[{sWS}:{sWS+1}] sc1
        """)
    a(f"""
    v_lshlrev_b32 v3, 4, v{VL}
    ds_read_b128 v[{W3}:{W3+3}], v3 offset:{W3S}
    """)
    wlane(a, 14)
    a(f"""
    s_lshl_b32 s{sTMP}, s{sWV}, 12
    s_add_u32 s{sTMP+1}, s{sTMP}, 32768
    s_sub_u32 s{sTMP+2}, s{sTMP}, 32768
    s_add_u32 s{sTMP+3}, s{sTMP}, {W2S}
    s_add_u32 s{sTMP}, s{sTMP+2}, {WTS}
    s_cmp_lt_u32 s{sWV}, 8
    s_cselect_b32 s{sW}, s12, s14
    s_cselect_b32 s{sW+1}, s13, s15
    s_cselect_b32 s{sVT}, s{sTMP+1}, s{sTMP+2}
    s_cselect_b32 m0, s{sTMP+3}, s{sTMP}
    s_and_b32 s{sW+1}, s{sW+1}, 0xffff
    """)
    if W2E:
        a("s_barrier" if "wboth" in OPT else f"s_barrier\ns_cmp_ge_u32 s{sWV}, 8\ns_cbranch_scc1 A_C4")
        a("@amp 18")
        wdma(a, sVT, 14)
        a("A_C4:")
        a("@amp 19")
    a(f"""
    s_mov_b32 s{sO}, s16
    s_and_b32 s{sO+1}, s17, 0xffff
    s_lshl_b32 s{sO+2}, s{sEND}, 8
    s_mov_b32 s{sO+3}, 0x20000
    s_add_u32 s{sP}, s{sWS}, {WS_P}
    s_addc_u32 s{sP+1}, s{sWS+1}, 0
    s_and_b32 s{sP+1}, s{sP+1}, 0xffff
    s_or_b32 s{sP+1}, s{sP+1}, {256 << 16}
    s_mov_b32 s{sP+2}, {N}
    s_mov_b32 s{sP+3}, 0x20000
    s_sub_u32 s{sP2}, s{sP}, 1024
    s_subb_u32 s{sP2+1}, s{sP+1}, 0
    s_mov_b32 s{sP2+2}, {N}
    s_mov_b32 s{sP2+3}, 0x20000
    s_add_u32 s{sREC}, s{sWS}, {WS_REC}
    s_addc_u32 s{sREC+1}, s{sWS+1}, 0
    s_and_b32 s{sREC+1}, s{sREC+1}, 0xffff
    s_mov_b32 s{sREC+2}, {NG*REC_STRIDE}
    s_mov_b32 s{sREC+3}, 0x20000
    s_mov_b32 s{sMODE}, 0
    s_mov_b32 s{sR0}, 0
    s_mov_b32 s{sR}, {4*RMAX}
    s_mov_b32 s{sONE}, 1.0
    s_mov_b32 s{sONE+1}, 1.0
    s_mov_b32 s{sSPIN}, {SPINMAX}
    v_mov_b64 v[{NANC}:{NANC+1}], 0
    v_mov_b32 v{MAXC}, 0
    s_and_b32 s{sTMP}, s{sWV}, 7
    s_lshl_b32 s{sTMP}, s{sTMP}, 5
    v_xor_b32 v{WA}, s{sTMP}, v{WA}
    s_and_b32 s{sTMP}, s{sWV}, 8
    s_lshl_b32 s{sTMP}, s{sTMP}, 12
    s_add_u32 s{sTMP}, s{sTMP}, {WTS}
    v_add_u32 v{WA}, s{sTMP}, v{WA}
    s_bfe_u32 s{sTMP}, s{sWV}, 0x10002
    s_lshl_b32 s{sTMP}, s{sTMP}, 7
    s_bfe_u32 s{sTMP+1}, s{sWV}, 0x10001
    s_lshl_b32 s{sTMP+1}, s{sTMP+1}, 8
    s_add_u32 s{sTMP}, s{sTMP}, s{sTMP+1}
    s_and_b32 s{sTMP+1}, s{sWV}, 1
    s_lshl_b32 s{sTMP+1}, s{sTMP+1}, 2
    s_add_u32 s{sTMP}, s{sTMP}, s{sTMP+1}
    v_lshlrev_b32 v{QAD}, 11, v{VG}
    v_lshl_add_u32 v{QAD}, v{VJ}, 3, v{QAD}
    v_add_u32 v{QAD}, s{sTMP}, v{QAD}
    s_mov_b32 s{sTMP+2}, {NLOG2E:#x}
    """)
    if PF1:
        a(f"""
        ; this CU's share of the first {512*PF1} lines of P (pulled into the L2 behind the publish; speed only)
        s_and_b32 s{sTMP}, s{sG}, 31
        s_lshl_b32 s{sTMP}, s{sTMP}, 4
        s_add_u32 s{sTMP}, s{sTMP}, s{sWV}
        s_lshr_b32 s{sTMP+1}, s{sG}, 5
        s_lshl_b32 s{sTMP+1}, s{sTMP+1}, 6
        s_add_u32 s{sTMP}, s{sTMP}, s{sTMP+1}
        s_and_b32 s{sTMP}, s{sTMP}, 511
        s_mul_i32 s{sTMP}, s{sTMP}, {PF1*128}
        s_add_u32 s{sTMP}, s{sTMP}, {WS_P}
        v_lshl_add_u32 v3, v{L8}, 4, s{sTMP}
        """)
    a(f"""
    s_cmp_lt_u32 s{sWV}, 14
    s_cbranch_scc1 A_NOT
    ; waves 14, 15: granules (start | count<<11 | tag<<22, tag) of groups 2t, 2t+1 (t = tid - 896)
    v_lshlrev_b32 v8, 3, v{TID}
    ds_read_b64 v[10:11], v8 offset:{OFFS - 896*8}
    ds_read_b64 v[12:13], v8 offset:{HIST - 896*8}
    s_lshl_b32 s{sTMP}, s{sG}, 11
    s_add_u32 s{sTMP}, s{sTMP}, {WS_T - 896*16}
    v_lshl_add_u32 v8, v8, 1, s{sTMP}
    v_mov_b32 v5, s{sNON}
    v_mov_b32 v7, s{sNON}
    s_waitcnt lgkmcnt(0)
    v_lshl_or_b32 v4, v12, 11, v10
    v_lshl_or_b32 v6, v13, 11, v11
    v_or_b32 v4, s{sNON+1}, v4
    v_or_b32 v6, s{sNON+1}, v6
    s_waitcnt vmcnt({4 if "wboth" in OPT else 0})
    @stamp 5
    @amp 10
    s_barrier
    global_store_dwordx4 v8, v[4:7], s[{sWS}:{sWS+1}] sc1
    s_branch A_PUB
A_NOT:
    """)
    if "wboth" in OPT: a("s_waitcnt vmcnt(4)")
    elif W2E: a(f"s_cmp_lt_u32 s{sWV}, 8\ns_cbranch_scc1 A_WT4\ns_waitcnt vmcnt(0)\nA_WT4:\ns_waitcnt vmcnt(4)")
    else: a("s_waitcnt vmcnt(0)")
    a(f"""
    @stamp 5
    @amp 10
    s_barrier
A_PUB:
    s_barrier
    @amp 3
    """)
    if W2E: a(f"s_cmp_lt_u32 s{sWV}, 8\ns_cbranch_scc1 A_NOWT")
    if "wboth" not in OPT: wdma(a, sVT, 14)
    if W2E: a("A_NOWT:")
    if PF1:
        a(f"""
        s_mov_b64 exec, {(1 << PF1) - 1:#x}
        global_load_dword v2, v3, s[{sWS}:{sWS+1}] sc1
        s_mov_b64 exec, -1
        """)
    a(f"""
A_QD:
    s_lshl_b32 s{sRING}, s{sWV}, 12
    s_add_u32 s{sRING}, s{sRING}, {RING}
    s_add_u32 s{sRING+1}, s{sRING}, 2048
    s_and_b32 s{sRHO}, s{sWV}, 3
    s_lshl_b32 s{sRHO}, s{sRHO}, 2
    s_lshr_b32 s{sTMP}, s{sWV}, 2
    s_or_b32 s{sRHO}, s{sRHO}, s{sTMP}
    v_add_u32 v{PAD}, s{sRING}, v{L8}
    s_mov_b32 s3, 1
    v_mov_b32 v19, 0x3fffff
    s_waitcnt vmcnt({1 if PF1 else 0})
    @stamp 6
    @amp 11
    {"s_barrier" if "noqbar" not in OPT else ""}
    {f"s_sleep {OPT['sleep0']}" if "sleep0" in OPT else ""}
    @amp 4
T_LOOP:
    global_load_dwordx2 v[20:21], v{AAD}, s[{sWS}:{sWS+1}] sc1
    s_sub_u32 s{sSPIN}, s{sSPIN}, 1
    s_cbranch_scc1 T_DONE
    s_waitcnt vmcnt(0)
    v_xor_b32 v{TW}, s{sNON+1}, v20
    v_cmp_ne_u32 vcc, s{sNON}, v21
    v_cmp_lt_u32 s[{sTMP}:{sTMP+1}], v19, v{TW}
    s_or_b64 exec, vcc, s[{sTMP}:{sTMP+1}]
    s_cbranch_scc1 T_LOOP
T_DONE:
    s_mov_b64 exec, -1
    s_waitcnt vmcnt(0)
    @stamp 7
    @amp 5
K_PASS:
    v_and_b32 v9, 0x7ff, v{TW}
    v_bfe_u32 v15, v{TW}, 11, 11
    v_add_u32 v9, s{sR0}, v9
    v_mad_u32_u24 v9, v9, 12, v{RAD}
    v_subrev_u32 v15, s{sR0}, v15
    v_min_i32 v10, s{sR}, v15
    v_and_b32 v11, 3, v{TID}
    v_sub_u32 v10, v10, v11
    """)
    for r in range(RMAX):
        a(f"v_cmp_lt_i32 s[{sEX+2*r}:{sEX+2*r+1}], {4*r}, v10")
    a(f"v_cmp_lt_i32 vcc, s{sR}, v15")
    for r in range(RMAX):
        a(f"s_mov_b64 exec, s[{sEX+2*r}:{sEX+2*r+1}]")
        if r >= 2: a(f"s_cbranch_execz K_LD")
        a(f"buffer_load_dwordx3 v[{32+4*r}:{34+4*r}], v9, s[{sREC}:{sREC+3}], 0 offen offset:{48*r} sc1")
    a(f"""
K_LD:
    s_mov_b64 exec, -1
    v_mov_b32 v13, 1
    v_lshrrev_b32 v14, 1, v{L8}
    s_cbranch_vccz K_NOMORE
    v_mov_b32 v9, 0
    ds_write_b32 v9, v13 offset:{FLG}
K_NOMORE:
    """)
    if PF2:
        a(f"""
        s_and_b32 s{sTMP}, s{sG}, 31
        s_lshl_b32 s{sTMP}, s{sTMP}, 4
        s_add_u32 s{sTMP}, s{sTMP}, s{sWV}
        s_lshr_b32 s{sTMP+1}, s{sG}, 5
        s_lshl_b32 s{sTMP+1}, s{sTMP+1}, 6
        s_add_u32 s{sTMP}, s{sTMP}, s{sTMP+1}
        s_and_b32 s{sTMP}, s{sTMP}, 511
        s_mul_i32 s{sTMP}, s{sTMP}, {PF2*128}
        s_add_u32 s{sTMP}, s{sTMP}, {(20000 - 512*PF2)*128 + WS_P}
        v_lshl_add_u32 v12, v{L8}, 4, s{sTMP}
        """)
    a(f"""
    s_cmp_eq_u32 s3, 0
    s_mov_b32 s3, 0
    s_cbranch_scc1 K_NOU
    ; first pass, column tile wv&7: waves 0..7 U = -log2e * (x @ Wupd_top)^T (rows = channels) -> registers,
    """)
    for ks in range(4):
        for h in range(2):
            a(f"ds_read_b64_tr_b16 v[{16+4*ks+2*h}:{17+4*ks+2*h}], v{WA} offset:{8192*ks + 1024*h}")
    XB0 = (52, 56, 60, 64); XB1 = (0, 4, 8, 68)
    def xr(xb, off):
        for ks in range(4): a(f"ds_read_b128 v[{xb[ks]}:{xb[ks]+3}], v{XA+ks} offset:{off}")
    xr(XB0, XS); xr(XB1, XS + 4096)
    a(f"s_mov_b32 s{sTMP+2}, {NLOG2E:#x}\ns_cmp_ge_u32 s{sWV}, 8\ns_cbranch_scc1 K_Q")
    for isq in (0, 1):
        if isq: a("K_Q:")
        def um(rt, xb):
            for ks in range(4):
                c = "0" if ks == 0 else f"v[{UA[rt]}:{UA[rt]+3}]"
                w = f"v[{16+4*ks}:{19+4*ks}]"; x = f"v[{xb[ks]}:{xb[ks]+3}]"
                a(f"v_mfma_f32_16x16x32_bf16 v[{UA[rt]}:{UA[rt]+3}], {x if isq else w}, {w if isq else x}, {c}")
        a("s_waitcnt lgkmcnt(4)")
        um(0, XB0)
        xr(XB0, XS + 8192)
        a("s_waitcnt lgkmcnt(4)")
        um(1, XB1)
        a("s_waitcnt lgkmcnt(0)")
        um(2, XB0)
        if not isq: a("s_nop 3")
        for rt in range(3):
            if rt == 2 and not isq: a("s_nop 1")
            for q in range(2):
                u = UA[rt] + 2*q
                a(f"v_pk_mul_f32 v[{u}:{u+1}], v[{u}:{u+1}], s[{sTMP+2}:{sTMP+3}] op_sel_hi:[1,0]")
            if isq:
                if rt == 2: a("s_mov_b32 exec_hi, 0")
                for r in range(4):
                    a(f"ds_write_b32 v{QAD}, v{UA[rt]+r} offset:{QS + rt*8192 + r*512}")
        a("s_mov_b64 exec, -1" if isq else "s_branch K_NOU")
    a("K_NOU:\ns_waitcnt vmcnt(0)\n@stamp 8\n@amp 6")
    if PF2:
        a(f"s_mov_b64 exec, {(1 << PF2) - 1:#x}\nglobal_load_dword v63, v12, s[{sWS}:{sWS+1}] sc1")
    for r in range(RMAX):
        a(f"s_mov_b64 exec, s[{sEX+2*r}:{sEX+2*r+1}]")
        if r >= 2: a(f"s_cbranch_execz K_HD")
        a(f"v_lshrrev_b32 v{r}, 16, v{34+4*r}\nds_add_rtn_u32 v{35+4*r}, v{r}, v13 offset:{CNT}")
    a(f"""
K_HD:
    s_mov_b64 exec, -1
    s_waitcnt lgkmcnt(0)
    s_barrier
    ds_read_b32 v8, v14 offset:{CNT}
    s_waitcnt lgkmcnt(0)
    v_add_u32 v10, 7, v8
    v_lshrrev_b32 v11, 3, v10
    """)
    dpp_scan(a, 11, [f"v_cmp_ne_u32 s[{sNZ}:{sNZ+1}], 0, v8", f"v_and_b32 v{NCNT}, 7, v10", f"v_and_b32 v10, -8, v10", f"v_add_u32 v{NCNT}, 1, v{NCNT}"])
    a(f"""
    v_lshlrev_b32 v15, 3, v11
    v_sub_u32 v15, v15, v10
    v_readlane_b32 s{sTMP}, v11, 63
    """)
    for r in range(RMAX):
        if r >= 2: a(f"s_cmp_eq_u64 s[{sEX+2*r}:{sEX+2*r+1}], 0\ns_cbranch_scc1 K_BD")
        a(f"ds_bpermute_b32 v{16+r}, v{r}, v15")
    a(f"""
K_BD:
    s_cmp_gt_u32 s{sTMP}, {CAP//8}
    s_cbranch_scc1 K_SHRINK
    s_mul_i32 s{sT0}, s{sTMP}, s{sRHO}
    s_add_u32 s{sTMP}, s{sT0}, s{sTMP}
    s_lshr_b32 s{sT0}, s{sT0}, 4
    s_lshr_b32 s{sTMP}, s{sTMP}, 4
    v_cmp_ge_u32 vcc, s{sT0}, v11
    s_sub_u32 s{sLEFT}, s{sTMP}, s{sT0}
    s_cmp_lg_u32 s{sWV}, 15
    s_cbranch_scc1 K_NOTF
    s_mov_b64 exec, s[{sNZ}:{sNZ+1}]
    ds_write_b8 v11, v13 offset:{TF - 1}
K_NOTF:
    s_waitcnt lgkmcnt(0)
    """)
    for r in range(RMAX):
        a(f"s_mov_b64 exec, s[{sEX+2*r}:{sEX+2*r+1}]")
        if r >= 2: a("s_cbranch_execz K_SD")
        a(f"""
        v_add_lshl_u32 v10, v{16+r}, v{35+4*r}, 3
        v_add_lshl_u32 v9, v{16+r}, v{35+4*r}, 1
        {f"v_and_b32 v{34+4*r}, {OPT['x_mask']}, v{34+4*r}" if "x_mask" in OPT else ""}
        ds_write_b64 v10, v[{32+4*r}:{33+4*r}] offset:{ES}
        ds_write_b16 v9, v{34+4*r} offset:{SS}
        """)
    a(f"""
K_SD:
    s_mov_b64 exec, -1
    s_bcnt1_i32_b64 s{sNC}, vcc
    s_min_u32 s{sNC}, s{sNC}, 61
    s_or_b32 s{sNZ+1}, s{sNZ+1}, 0xc0000000
    s_lshr_b64 s[{sNZ}:{sNZ+1}], s[{sNZ}:{sNZ+1}], s{sNC}
    s_lshl_b64 s[{sNZ}:{sNZ+1}], s[{sNZ}:{sNZ+1}], s{sNC}
    s_mov_b64 s[{sNZ2}:{sNZ2+1}], s[{sNZ}:{sNZ+1}]
    s_mov_b32 s{sNQ}, s{sNC}
    v_lshl_add_u32 v{AAD}, s{sNC}, 10, v{L8}
    v_lshl_add_u32 v{EAD}, s{sT0}, 6, v{E8}
    v_lshl_add_u32 v{SAD}, s{sT0}, 4, v{G2}
    v_lshrrev_b32 v9, 2, v14
    v_add_u32 v9, s{sT0}, v9
    s_waitcnt lgkmcnt(0)
    s_barrier
    s_setprio 3
    @stamp 10
    @amp 7
    s_cmp_eq_u32 s{sLEFT}, 0
    s_cbranch_scc1 K_MAINDONE
    s_cmp_lg_u32 s{sMODE}, 0
    s_cbranch_scc1 S_START
    """)
    mainloop(a, False)
    a(f"""
K_MAINDONE:
    @stamp 11
    @amp 8
    s_waitcnt vmcnt(0)
    v_mov_b32 v17, {f2u(2.0**120):#x}
    v_add_f32 v18, v{NANC}, v{NANC+1}
    v_cmp_nle_f32 vcc, v{MAXC}, v17
    v_cmp_u_f32 s[{sTMP}:{sTMP+1}], v18, v18
    v_mov_b32 v{QAD}, 0
    s_or_b64 vcc, vcc, s[{sTMP}:{sTMP+1}]
    s_cbranch_scc0 K_NOOVF
    v_mov_b32 v20, 1
    ds_write_b32 v{QAD}, v20 offset:{FLG+4}
K_NOOVF:
    s_cmp_ge_u32 s{sWV}, 8
    s_cbranch_scc1 K_NOFA
    s_lshl_b32 s{sTMP}, s{sWV}, 12
    s_add_u32 s{sTMP}, s{sTMP}, {WS_F}
    v_lshl_add_u32 v{EAD}, v{L8}, 1, s{sTMP}
    """)
    for ks in range(4): a(f"global_load_dwordx4 v[{4*ks}:{4*ks+3}], v{EAD}, s[{sWS}:{sWS+1}] offset:{1024*ks} sc1")
    a(f"""
    v_xor_b32 v16, v{VG}, v{VJ}
    v_lshlrev_b32 v16, 4, v16
    v_lshl_add_u32 v{XA}, v{VJ}, 8, v16
    v_xor_b32 v{XA+1}, 64, v{XA}
    v_xor_b32 v{XA+2}, 128, v{XA}
    v_xor_b32 v{XA+3}, 192, v{XA}
    ; staging address: row*256 + ((2*ct + (g>>1)) ^ j)*16 + (g&1)*8, row = 16*rt + j
    s_lshl_b32 s{sTMP}, s{sWV}, 1
    v_lshrrev_b32 v{EAD}, 1, v{VG}
    v_or_b32 v{EAD}, s{sTMP}, v{EAD}
    v_xor_b32 v{EAD}, v{EAD}, v{VJ}
    v_and_b32 v16, 1, v{VG}
    v_lshl_or_b32 v{EAD}, v{EAD}, 1, v16
    v_lshlrev_b32 v{EAD}, 3, v{EAD}
    v_lshl_add_u32 v{EAD}, v{VJ}, 8, v{EAD}
K_NOFA:
    v_lshrrev_b32 v21, 4, v{TID}
    v_lshlrev_b32 v23, 10, v21
    v_lshl_add_u32 v23, v{VJ}, 4, v23
    v_xor_b32 v24, v21, v{VJ}
    v_and_b32 v24, 15, v24
    v_lshlrev_b32 v24, 4, v24
    v_lshl_add_u32 v{SAD}, v21, 8, v24
    s_lshl_b32 s{sTMP}, s{sSTART}, 8
    v_lshl_add_u32 v{AAD}, v{TID}, 4, s{sTMP}
    s_waitcnt lgkmcnt(0)
    s_barrier
    @estamp 2
    ds_read_b64 v[24:25], v{QAD} offset:{FLG}
    s_cmp_ge_u32 s{sWV}, 10
    s_cbranch_scc1 K_NOCV
    ds_read_b128 v[36:39], v23 offset:{AGG}
    ds_read_b128 v[40:43], v23 offset:{AGG+256}
    ds_read_b128 v[44:47], v23 offset:{AGG+512}
    ds_read_b128 v[48:51], v23 offset:{AGG+768}
    """)
    for q in range(4):
        a(f"s_waitcnt lgkmcnt({3-q})\nv_cvt_f32_f64 v{28+2*q}, v[{36+4*q}:{37+4*q}]\nv_cvt_f32_f64 v{29+2*q}, v[{38+4*q}:{39+4*q}]")
    for q in range(4):
        a(f"v_cvt_pk_bf16_f32 v{28+q}, v{28+2*q}, v{29+2*q}")
    a(f"""
    ds_write_b128 v{SAD}, v[28:31] offset:{AB}
K_NOCV:
    s_waitcnt lgkmcnt(0)
    v_or_b32 v27, v24, v25
    v_cmp_ne_u32 vcc, 0, v27
    s_cbranch_vccnz K_SLOW
K_FINAL:
    @estamp 3
    s_barrier
    @estamp 4
    s_cmp_ge_u32 s{sWV}, 10
    s_cbranch_scc1 {"K_OUT2" if AMP else "K_END2"}
    s_cmp_ge_u32 s{sWV}, 8
    s_cbranch_scc1 K_OUT
    """)
    for rt in range(3): xreads(a, 16 + 16*rt, AB + rt*4096)
    a(f"s_mov_b32 s{sTMP+2}, {f2u(-LOG2E/(1+float(OPT.get('eps', 0)))):#x}\ns_waitcnt vmcnt(0)")
    def fm(rt):
        a(f"s_waitcnt lgkmcnt({8 - 4*rt if not (rt == 2 and 'noeil' not in OPT) else 1})")
        mm16(a, UA[rt], 16 + 16*rt, 0, swap=True, first=False)
    def silu(rt):
        u = UA[rt]; t = 64
        a(f"""
        v_exp_f32 v{t}, v{u}
        v_exp_f32 v{t+1}, v{u+1}
        v_exp_f32 v{t+2}, v{u+2}
        v_exp_f32 v{t+3}, v{u+3}
        v_pk_fma_f32 v[{t}:{t+1}], v[{t}:{t+1}], s[{sTMP+2}:{sTMP+3}], s[{sTMP+2}:{sTMP+3}] op_sel_hi:[1,0,0]
        v_pk_fma_f32 v[{t+2}:{t+3}], v[{t+2}:{t+3}], s[{sTMP+2}:{sTMP+3}], s[{sTMP+2}:{sTMP+3}] op_sel_hi:[1,0,0]
        v_rcp_f32 v{t}, v{t}
        v_rcp_f32 v{t+1}, v{t+1}
        v_rcp_f32 v{t+2}, v{t+2}
        v_rcp_f32 v{t+3}, v{t+3}
        v_pk_mul_f32 v[{t}:{t+1}], v[{t}:{t+1}], v[{u}:{u+1}]
        v_pk_mul_f32 v[{t+2}:{t+3}], v[{t+2}:{t+3}], v[{u+2}:{u+3}]
        v_cvt_pk_bf16_f32 v{16+2*rt}, v{t}, v{t+1}
        v_cvt_pk_bf16_f32 v{17+2*rt}, v{t+2}, v{t+3}
        ds_write_b64 v{EAD}, v[{16+2*rt}:{17+2*rt}] offset:{OUTS + rt*4096}
        """)
    if "noeil" not in OPT:
        fm(0); fm(1); a("s_nop 2"); silu(0); fm(2); silu(1); silu(2)
    else:
        fm(0); fm(1); fm(2); a("@estamp 5"); silu(0); silu(1); silu(2)
    a(f"""
K_OUT:
    s_waitcnt lgkmcnt(0)
    @estamp 6
    s_barrier
    @estamp 7
    ds_read_b128 v[32:35], v{SAD} offset:{OUTS}
    s_waitcnt lgkmcnt(0)
    buffer_store_dwordx4 v[32:35], v{AAD}, s[{sO}:{sO+3}], 0 offen {OPT.get('ost', 'sc1').replace('+', ' ')}
    @estamp 8
    {"s_branch K_END2" if AMP else ""}
K_OUT2:
    {"s_barrier" if AMP else ""}
K_END2:
    """)
    if "xcctest" in OPT:
        a(f"""
        s_lshl_b32 s3, s22, 8
        s_or_b32 s3, s3, s{sG}
        s_cmp_lg_u32 s3, 100
        s_cbranch_scc1 XT_DONE
        v_mov_b32 v30, {WS_REC + 15360 + 101*REC_STRIDE}
        global_load_dword v31, v30, s[{sWS}:{sWS+1}] sc1
        s_waitcnt vmcnt(0)
        v_readfirstlane_b32 s81, v31
        s_cmp_eq_u32 s81, s80
        s_cbranch_scc{OPT["xcctest"]} XT_DONE
        s_memrealtime s[76:77]
        s_waitcnt lgkmcnt(0)
XT_LOOP:
        s_memrealtime s[78:79]
        s_waitcnt lgkmcnt(0)
        s_sub_u32 s78, s78, s76
        s_cmp_lt_u32 s78, 2000
        s_cbranch_scc1 XT_LOOP
XT_DONE:
        """)
    a(f"""
    @store
K_END:
    s_endpgm
K_SHRINK:
    ; too many slots for one pass: redo this pass with at most 4 records per cell
    s_mov_b32 s{sR}, 4
    s_mov_b32 s{sTMP+1}, 0
    s_branch K_REINIT
K_SLOW:
    v_readfirstlane_b32 s{sTMP}, v24
    v_readfirstlane_b32 s{sTMP+1}, v25
    s_cmp_eq_u32 s{sMODE}, 0
    s_cselect_b32 s{sTMP+1}, s{sTMP+1}, 0
    s_or_b32 s{sTMP}, s{sTMP}, s{sTMP+1}
    s_cbranch_scc0 K_FINAL
    s_add_u32 s{sR0}, s{sR0}, s{sR}
K_REINIT:
    s_waitcnt vmcnt(0) lgkmcnt(0)
    s_barrier
    v_lshrrev_b32 v9, 1, v{L8}
    v_mov_b32 v10, 0
    ds_write_b32 v9, v10 offset:{CNT}
    ds_write_b32 v9, v10 offset:{TF}
    ds_write_b32 v10, v10 offset:{FLG}
    ds_write_b32 v10, v10 offset:{FLG+4}
    v_lshlrev_b32 v9, 2, v{TID}
    v_mov_b32 v10, -1
    ds_write_b32 v9, v10 offset:{SS}
    s_cmp_eq_u32 s{sTMP+1}, 0
    s_cbranch_scc1 K_SLOW1
    s_mov_b32 s{sMODE}, 1
    s_mov_b32 s{sR0}, 0
    s_mov_b32 s{sR}, {4*RMAX}
    v_lshlrev_b32 v9, 4, v{TID}
    v_add_u32 v9, {AGG}, v9
    v_mov_b64 v[32:33], 0
    v_mov_b64 v[34:35], 0
    ds_write_b128 v9, v[32:35]
    ds_write_b128 v9, v[32:35] offset:16384
    ds_write_b128 v9, v[32:35] offset:24576
K_SLOW1:
    s_waitcnt lgkmcnt(0)
    s_barrier
    s_branch K_PASS
    """)
    mainloop(a, True)
    return a.text()

HEADER = """; Kernarg layout for this problem (72 bytes, ptrs only, base s[0:1]):
;   offset  24: d_in[3] dst  shape=(320000,) dtype=int32
; One workgroup per CU (256 workgroups, 39-40 destination nodes each).
; Phase A: bin 1280 edges by destination group, P = -log2e * x @ W1 for the own rows, publish both (write-through,
;          tagged granules).  Phase B: collect the group's edges, list them per node, evaluate the messages
"""
def main():
    s = ("; opts " + " ".join(sys.argv[2:]) + "\n" if len(sys.argv) > 2 else "") + HEADER
    s += f"; @launch grid=({NG},1,1) block=(1024,1,1) lds={LDS_BYTES}\n"
    s += '.amdgcn_target "amdgcn-amd-amdhsa--gfx950"\n.text\n'
    s += f".globl {KN}\n.p2align 8\n.type {KN},@function\n" + kernel()
    s += f""".section .rodata,"a"
.p2align 6
.amdhsa_kernel {KN}
  .amdhsa_next_free_vgpr {NVGPR}
  .amdhsa_next_free_sgpr {100 if (DIAG or AMP or 'xcctest' in OPT) else NSGPR}
  .amdhsa_accum_offset {NVGPR}
  .amdhsa_group_segment_fixed_size 0
  .amdhsa_kernarg_size 72
  .amdhsa_user_sgpr_count 2
  .amdhsa_user_sgpr_kernarg_segment_ptr 1
  .amdhsa_system_sgpr_workgroup_id_x 1
.end_amdhsa_kernel
"""
    open(sys.argv[1], "w").write(s)
main()
```

```python
import sys, struct

N = 10000; E = 320000
NG = 256
EPW = 1280
NPROD = E // EPW
REC_STRIDE = EPW * 12 + 128
WS_P = 4096
WS_REC = 0x280000
WS_T = 0x650000
WS_F = 0x6D0000
WS_DIAG = 0xB00000
LOG2E = 1.4426950408889634
def f2u(x): return struct.unpack("<I", struct.pack("<f", x))[0]
NLOG2E = f2u(-LOG2E)
OPT = dict(a.split("=") if "=" in a else (a, "1") for a in sys.argv[2:])
DIAG = "diag" in OPT
AMP = int(OPT.get("amp", 0))
PF1 = int(OPT.get("pf1", 4)); PF2 = int(OPT.get("pf2", 12))
W2E = "w2late" not in OPT
RND = "rnd" in OPT
PSTG = "pdirect" not in OPT
KN = "gather_scatter__mpnn_edge_mlp__graph_kernel"
SPINMAX = 400000
RMAX = 5
CAP = 2048

CNT = 0; FLG = 256; NON = 272
TF = 512
SS = 1024
XS = SS + CAP*2 + 256
QS = XS + 40*256
ES = QS + 40*512
AGG = ES + CAP*8
RING = AGG + 40*1024
LDS_BYTES = RING + 65536
W1S = RING; W2S = RING + 32768; WTS = RING
STAGE = QS; HIST = ES; OFFS = ES + 1024; W3S = ES + 2048
AB = ES; OUTS = QS; PST = ES + 3072
D0, D1, QR, VU, BP, AE, ID, W3 = 0, 16, 32, 48, 64, 72, 76, 84
VA, NUM, DEN, NANC, MAXC = 88, 90, 92, 94, 96
EAD, SAD, PAD, IX0, IX1, QAD, AAD, L8, NCNT, TID, TW, RAD, E8 = 97, 98, 99, 100, 102, 104, 105, 106, 107, 108, 109, 110, 111
G2 = 81; LQ = 82
XA, WA = 88, 92
VG, VJ, VL = 126, 127, 97
UA = (112, 116, 120)
NVGPR = 128
sREC = 4; sR0 = 8; sMODE = 9; sLEFT = 10; sCNT = 11
sK1 = 12; sK2 = 13; sNL = 14; sNC = 15; sNQ = 16; sR = 17; sNZ2 = 18
sWS = 20; sWV = 22; sSTART = 23; sX = 24; sP = 24; sO = 28
sNZ = 32; sM0 = 34; sM1 = 36; sONE = 38; sRING = 40; sRHO = 42; sW = 40
sTMP = 44; sEV = 48; sG = 49; sEX = 50; sCM = 52
sNON = 60; sEND = 62; sSPIN = 63; sP2 = 64; sANY = 68; sT0 = 70; sVT = 71
NSGPR = 72
LDF = OPT.get('ldf', '').replace('+', ' ')
SE = int(OPT.get('se', 1))
SRCE = f"""    global_load_dwordx4 v[16:19], v8, s[8:9] {LDF}
    global_load_dwordx4 v[20:23], v9, s[6:7] {LDF}
    global_load_dwordx4 v[24:27], v9, s[6:7] offset:16 {LDF}
"""
WSOFF = f"s_add_u32 s{sWS}, s{sWS}, {int(OPT['wso']) << 20}\ns_addc_u32 s{sWS+1}, s{sWS+1}, 0" if 'wso' in OPT else ''
STF = OPT.get('stf', 'sc1').replace('+', ' ')
sST = 72

class Asm:
    def __init__(self): self.l = []
    def __call__(self, s):
        for ln in s.strip("\n").split("\n"):
            ln = ln.strip()
            if ln.startswith("@estamp"):
                if "epi" not in OPT: continue
                ln = ln.replace("@estamp", "@stamp")
            elif ln.startswith("@stamp") and "epi" in OPT and int(ln.split()[1]) in range(2, 10): continue
            if ln.startswith("@amp"):
                i = int(ln.split()[1])
                A0 = int(OPT.get("amp0", 0))
                if AMP == 99 and i == 0: self('s_memrealtime s[74:75]\ns_waitcnt lgkmcnt(0)'); continue
                if AMP and i in (A0, AMP): self(f"s_memrealtime s[{72+2*(i != A0)}:{73+2*(i != A0)}]\ns_waitcnt lgkmcnt(0)")
                continue
            if ln.startswith("@store") and AMP:
                self("""s_waitcnt vmcnt(0)
                @amp 9
                s_lshl_b32 s3, s22, 8
                """ + ("" if "ampall" in OPT else "s_or_b32 s3, s3, s2") + """
                s_cmp_lg_u32 s3, """ + OPT.get("ampwg", "0") + """
                s_cbranch_scc1 AMP_DONE
                """ + ("s_sub_u32 s72, s60, 200" if "ampnon" in OPT else "") + """
                s_sub_u32 s74, s74, s72
                s_lshl_b32 s74, s74, 4
                s_memrealtime s[76:77]
                s_waitcnt lgkmcnt(0)
AMP_LOOP:
                s_memrealtime s[78:79]
                s_waitcnt lgkmcnt(0)
                s_sub_u32 s78, s78, s76
                s_cmp_lt_u32 s78, s74
                s_cbranch_scc1 AMP_LOOP
AMP_DONE:""")
                continue
            if ln.startswith("@stamp"):
                i = int(ln.split()[1])
                if DIAG and ("st" not in OPT or i in (0, 13) or str(i) in OPT["st"].split(",")): self(f"{'s_memrealtime' if OPT['diag'] == 'rt' or i in (0, 13) else 's_memtime'} s[{sST+2*i}:{sST+2*i+1}]\ns_waitcnt lgkmcnt(0)")
                continue
            if ln.startswith("@store"):
                if DIAG:
                    self(f"s_waitcnt vmcnt(0)\n@stamp 12\n@stamp 13\ns_load_dwordx2 s[{sWS}:{sWS+1}], s[0:1], 64\ns_waitcnt lgkmcnt(0)\ns_mov_b64 exec, -1\nv_lshrrev_b32 v1, 6, v{TID}\ns_lshl_b32 s3, s2, 4\nv_add_u32 v1, s3, v1\nv_lshlrev_b32 v1, 6, v1\nv_add_u32 v1, {WS_DIAG}, v1")
                    for i in range(14): self(f"v_mov_b32 v2, s{sST+2*i}\nglobal_store_dword v1, v2, s[{sWS}:{sWS+1}] offset:{4*i}")
                continue
            if ln: self.l.append(ln if ln.endswith(":") else "    " + ln)
    def text(self): return "\n".join(self.l) + "\n"

def dpp_scan(a, v, fill=()):
    fill = list(fill)
    def pad():
        k = 0
        while k < 2 and fill: a(fill.pop(0)); k += 1
        if k < 2: a(f"s_nop {1-k}")
    for sh in (1, 2, 4, 8):
        pad(); a(f"v_add_u32_dpp v{v}, v{v}, v{v} row_shr:{sh} row_mask:0xf bank_mask:0xf bound_ctrl:0")
    pad(); a(f"v_add_u32_dpp v{v}, v{v}, v{v} row_bcast:15 row_mask:0xa bank_mask:0xf")
    pad(); a(f"v_add_u32_dpp v{v}, v{v}, v{v} row_bcast:31 row_mask:0xc bank_mask:0xf")
    for x in fill: a(x)

def mainloop(a, safe):
    L = "S" if safe else "F"
    def ex(d, k): a(f"v_exp_f32 v{VU+k}, v{d+k}")
    def pk(d, e):
        t = d + 2*e; u = VU + 2*e
        if not safe:
            a(f"""
            v_pk_fma_f32 v[{VA}:{VA+1}], v[{t}:{t+1}], v[{DEN}:{DEN+1}], v[{NUM}:{NUM+1}]
            v_pk_fma_f32 v[{DEN}:{DEN+1}], v[{DEN}:{DEN+1}], v[{u}:{u+1}], v[{DEN}:{DEN+1}]
            v_pk_fma_f32 v[{NUM}:{NUM+1}], v[{NUM}:{NUM+1}], v[{u}:{u+1}], v[{VA}:{VA+1}]
            """)
        else:
            a(f"""
            v_pk_add_f32 v[{u}:{u+1}], v[{u}:{u+1}], 1.0 op_sel_hi:[1,0]
            v_rcp_f32 v{u}, v{u}
            v_rcp_f32 v{u+1}, v{u+1}
            s_nop 0
            v_pk_fma_f32 v[{NUM}:{NUM+1}], v[{t}:{t+1}], v[{u}:{u+1}], v[{NUM}:{NUM+1}]
            """)
    def flush():
        if not safe:
            a(f"""
            v_rcp_f32 v{VU}, v{DEN}
            v_rcp_f32 v{VU+1}, v{DEN+1}
            v_max3_f32 v{MAXC}, v{MAXC}, v{DEN}, v{DEN+1}
            v_pk_mul_f32 v[{VA}:{VA+1}], v[{NUM}:{NUM+1}], v[{VU}:{VU+1}]
            v_mov_b64 v[{DEN}:{DEN+1}], s[{sONE}:{sONE+1}]
            v_mov_b64 v[{NUM}:{NUM+1}], 0
            v_cvt_f64_f32 v[{VU}:{VU+1}], v{VA}
            v_cvt_f64_f32 v[{VU+2}:{VU+3}], v{VA+1}
            v_pk_fma_f32 v[{NANC}:{NANC+1}], v[{VA}:{VA+1}], 0, v[{NANC}:{NANC+1}] op_sel_hi:[1,0,1]
            """)
        else:
            a(f"""
            v_cvt_f64_f32 v[{VU}:{VU+1}], v{NUM}
            v_cvt_f64_f32 v[{VU+2}:{VU+3}], v{NUM+1}
            v_mov_b64 v[{NUM}:{NUM+1}], 0
            """)
        a(f"ds_add_f64 v{AAD}, v[{VU}:{VU+1}] offset:{AGG}\nds_add_f64 v{AAD}, v[{VU+2}:{VU+3}] offset:{AGG+512}")
    def preads(slot):
        if "p2" in OPT:
            for q in range(2):
                a(f"ds_read2st64_b64 v[{BP+4*q}:{BP+4*q+3}], v{PAD} offset0:{slot*4 + 2*q} offset1:{slot*4 + 2*q + 1}")
            return
        for q in range(4):
            a(f"ds_read_b64 v[{BP+2*q}:{BP+2*q+1}], v{PAD} offset:{slot*2048 + q*512}")
    def ereads(v, off):
        a(f"""
        s_mov_b64 exec, s[{sM0}:{sM0+1}]
        ds_read_b64 v[{AE}:{AE+1}], v{v} offset:{ES+off}
        s_mov_b64 exec, s[{sM1}:{sM1+1}]
        ds_read_b64 v[{AE+2}:{AE+3}], v{v} offset:{ES+off}
        s_mov_b64 exec, -1
        """)
    def idxreads(v, off):
        a(f"ds_read_u16 v{IX0}, v{v} offset:{SS+off}\nds_read_u16 v{IX1}, v{v} offset:{SS+off+8}")
    def qreads(node):
        if "q2" in OPT:
            a(f"v_lshl_add_u32 v{QAD}, s{node}, 9, v{LQ}")
            for q in range(4):
                a(f"ds_read2_b64 v[{QR+4*q}:{QR+4*q+3}], v{QAD} offset0:0 offset1:0")
            return
        a(f"v_lshl_add_u32 v{QAD}, s{node}, 9, v{L8}")
        for q in range(8):
            a(f"ds_read_b64 v[{QR+2*q}:{QR+2*q+1}], v{QAD} offset:{QS}")
    def mfma(d, k):
        if k == 0: a(f"v_mfma_f32_32x32x16_bf16 v[{d}:{d+15}], v[{AE}:{AE+3}], v[{W3}:{W3+3}], v[{QR}:{QR+15}]")
        else: a(f"v_smfmac_f32_32x32x32_bf16 v[{d}:{d+15}], v[{ID}:{ID+3}], v[{BP}:{BP+7}], v{ID+4}")
    def dma(slot, f1="s_nop 0"):
        if "x_nodma" in OPT: a(f1); return
        a(f"""
        s_mov_b32 m0, s{sRING+slot}
        {f1}
        buffer_load_dwordx4 v[{IX0}:{IX0+1}], s[{sP}:{sP+3}], 0 idxen offen sc1 lds
        buffer_load_dwordx4 v[{IX1}:{IX1+1}], s[{sP2}:{sP2+3}], 0 idxen offen offset:1024 sc1 lds
        """)
    def qnext():
        a(f"s_bitset0_b64 s[{sNZ}:{sNZ+1}], s{sNQ}\ns_ff1_i32_b64 s{sNQ}, s[{sNZ}:{sNZ+1}]")
        qreads(sNQ)
    def tree(name, labels):
        a(f"""
{name}:
        s_cmp_gt_u32 s{sCNT}, 3
        s_cbranch_scc1 {name}_H
        s_cmp_eq_u32 s{sCNT}, 2
        s_cbranch_scc1 {labels[2]}
        s_cmp_eq_u32 s{sCNT}, 3
        s_cbranch_scc1 {labels[3]}
        s_branch {labels[1]}
{name}_H:
        s_cmp_gt_u32 s{sCNT}, 5
        s_cbranch_scc1 {name}_HH
        s_cmp_eq_u32 s{sCNT}, 4
        s_cbranch_scc1 {labels[4]}
        s_branch {labels[5]}
{name}_HH:
        s_cmp_eq_u32 s{sCNT}, 6
        s_cbranch_scc1 {labels[6]}
        s_branch {labels[7]}
        """)
    EV = int(OPT.get("ev", 5))
    a(f"{L}_START:")
    idxreads(SAD, 0)
    a(f"""
    ds_read_u8 v10, v9 offset:{TF}
    v_mov_b64 v[{DEN}:{DEN+1}], s[{sONE}:{sONE+1}]
    v_mov_b64 v[{NUM}:{NUM+1}], 0
    s_waitcnt lgkmcnt(1)
    """)
    dma(0)
    idxreads(SAD, 16)
    qreads(sNQ)
    a(f"""
    s_waitcnt lgkmcnt({4 if "q2" in OPT else 8})
    v_cmp_ne_u32 vcc, 0, v10
    """)
    dma(1)
    idxreads(SAD, 32)
    ereads(EAD, 0)
    a(f"""
    ; sK1: one bit per tile from the top (ends a node, or one of the last tiles), then a marker; sK2: tile + 2 starts a node;
    s_brev_b32 s{sK1}, vcc_lo
    s_lshl_b32 s{sK2}, s{sK1}, 1
    s_sub_u32 s{sTMP}, 32, s{sLEFT}
    s_lshr_b32 s{sNL}, s{sK1}, s{sTMP}
    s_lshl_b32 s{sK1}, s{sNL}, s{sTMP}
    s_sub_u32 s{sTMP}, s{sTMP}, 1
    s_lshl_b32 s{sTMP}, {((7 | (1 << EV)) << 1) | 1}, s{sTMP}
    s_or_b32 s{sK1}, s{sK1}, s{sTMP}
    s_waitcnt vmcnt(2)
    """)
    preads(0)
    a("s_waitcnt lgkmcnt(0)\n@stamp 9")
    dma(0)
    for k in range(2): mfma(D0, k)
    ereads(EAD, 64)
    idxreads(SAD, 48)
    a(f"s_bitcmp0_b32 vcc_lo, 0\ns_cbranch_scc1 {L}_S4")
    qnext()
    a(f"{L}_S4:\ns_waitcnt vmcnt(2)")
    preads(1)
    a(f"s_branch {L}_L0B")
    K2 = f"s_add_u32 s{sK2}, s{sK2}, s{sK2}"
    def xphase(b, lab):
        dc, dn = (D0, D1) if b == 0 else (D1, D0)
        mfma(dn, 0)
        for e in range(7, -1, -1):
            if lab and e < 7: a(f"{L}_X{b}_{e+1}:")
            if e == 2: mfma(dn, 1)
            ex(dc, 2*e+1); ex(dc, 2*e)
    def mid(b, tag):
        a("s_waitcnt vmcnt(2)")
        preads(b)
        if tag == "E": a(K2)
        a(f"s_cbranch_scc1 {L}_ADV{tag}{b}\n{L}_RB{tag}{b}:")
        ereads(EAD, 64*(b+2))
        idxreads(SAD, 16*(b+4))
    def yphase(b, lab):
        dc = D0 if b == 0 else D1
        for e in range(7, -1, -1):
            if lab and e < 7: a(f"{L}_Y{b}_{e+1}:")
            pk(dc, e)
    for b in range(2):
        dc, dn = (D0, D1) if b == 0 else (D1, D0)
        a(f"""
{L}_TAIL{b}:
        s_setprio 2
        s_cmp_ge_u32 s{sLEFT}, 3
        s_cbranch_scc1 {L}_TD{b}
        s_setprio 1
        s_cmp_lg_u32 s{sLEFT}, 0
        s_cbranch_scc1 {L}_T1{b}
        s_setprio 0
{L}_T1{b}:
        s_waitcnt vmcnt(0)
        s_branch {L}_T2{b}
{L}_TD{b}:
        """)
        dma(1-b)
        a(f"""
{L}_T2{b}:
        s_bitcmp1_b32 s{sNL}, s{sLEFT}
        s_cbranch_scc1 {L}_ENDN{b}
        s_mov_b32 s{sCNT}, 8
        s_cmp_eq_u32 s{sLEFT}, 0
        s_cbranch_scc1 {L}_X{b}_8
        {K2}
        s_branch {L}_XB{b}
        """)
        for tag in "PE":
            a(f"{L}_ADV{tag}{b}:")
            qnext()
            a(f"s_branch {L}_RB{tag}{b}")
        tree(f"{L}_XD{b}", {c: f"{L}_XS{b}_{c}" for c in range(1, 8)})
        for c in range(1, 8):
            a(f"{L}_XS{b}_{c}:")
            mfma(dn, 0)
            if c <= 2: mfma(dn, 1)
            a(f"s_branch {L}_X{b}_{c}")
        tree(f"{L}_YD{b}", {c: f"{L}_Y{b}_{c}" for c in range(1, 8)})
        a(f"""
{L}_SP{b}:
        s_ff1_i32_b32 s{sLEFT}, s{sK1}
        s_sub_u32 s{sLEFT}, 31, s{sLEFT}
        s_cmp_le_u32 s{sLEFT}, {EV}
        s_cbranch_scc1 {L}_TAIL{b}
        """)
        dma(1-b)
        a(f"""
{L}_ENDN{b}:
        v_readlane_b32 s{sCNT}, v{NCNT}, s{sNC}
        s_bitset0_b64 s[{sNZ2}:{sNZ2+1}], s{sNC}
        s_ff1_i32_b64 s{sNC}, s[{sNZ2}:{sNZ2+1}]
        s_cmp_lt_u32 s{sCNT}, 8
        s_cbranch_scc1 {L}_XD{b}
{L}_X{b}_8:
        """)
        xphase(b, True)
        mid(b, "E")
        a(f"s_cmp_lt_u32 s{sCNT}, 8\ns_cbranch_scc1 {L}_YD{b}")
        yphase(b, True)
        flush()
        a(f"""
        s_cmp_eq_u32 s{sLEFT}, 0
        s_cbranch_scc1 K_MAINDONE
        v_lshl_add_u32 v{AAD}, s{sNC}, 10, v{L8}
        s_branch {L}_L{1-b}
        """)
    for b in range(2):
        a(f"{L}_L{b}:")
        if b == 0:
            a(f"v_add_u32 v{EAD}, 128, v{EAD}\nv_add_u32 v{SAD}, 32, v{SAD}\n{L}_L0B:")
        a(f"""
        s_add_u32 s{sK1}, s{sK1}, s{sK1}
        s_waitcnt lgkmcnt(0)
        s_cbranch_scc1 {L}_SP{b}
        """)
        dma(1-b, K2)
        a(f"{L}_XB{b}:")
        xphase(b, False)
        mid(b, "P")
        yphase(b, False)
        if b == 1: a(f"s_branch {L}_L0")

def consts(a):
    a(f"""
    ; m = l&31, hk = l>>5, e = 2*(m>>3) + ((m>>1)&1), H = (m>>2)&1, c0 = m&1
    v_lshlrev_b32 v{L8}, 3, v{VL}
    v_add_u32 v{LQ}, {QS}, v{L8}
    v_lshlrev_b32 v{IX0+1}, 4, v{VJ}
    v_lshlrev_b32 v{IX1+1}, 4, v{VJ}
    v_lshlrev_b32 v{G2}, 1, v{VG}
    v_lshrrev_b32 v1, 5, v{VL}
    v_bfe_u32 v2, v{VL}, 2, 1
    v_and_b32 v3, 1, v{VL}
    v_bfe_u32 v4, v{VL}, 1, 1
    v_bfe_u32 v5, v{VL}, 3, 2
    v_lshl_add_u32 v5, v5, 1, v4
    v_mov_b64 v[{AE}:{AE+1}], 0
    v_mov_b64 v[{AE+2}:{AE+3}], 0
    v_xor_b32 v{ID}, v1, v2
    v_lshl_add_u32 v{ID}, v{ID}, 1, v3
    v_cmp_eq_u32 s[{sM0}:{sM0+1}], 0, v{ID}
    v_cmp_eq_u32 s[{sM1}:{sM1+1}], 1, v{ID}
    v_lshlrev_b32 v{E8}, 3, v5
    ; sparse selector: lane half e>>2, register q = 2*(e&1) + ((e>>1)&1) holds 1.0, index (2*H + c0) << 4*q
    v_lshrrev_b32 v{ID+1}, 2, v5
    v_cmp_eq_u32 vcc, v1, v{ID+1}
    v_bfe_u32 v5, v5, 1, 1
    v_lshl_add_u32 v5, v4, 1, v5
    v_lshl_add_u32 v2, v2, 1, v3
    v_cndmask_b32 v3, 0, v{W3}, vcc
    v_lshlrev_b32 v4, 2, v5
    v_lshlrev_b32 v{ID+4}, v4, v2
    """)
    for q in range(4): a(f"v_cmp_eq_u32 s[{sCM + 2*q}:{sCM + 2*q + 1}], {q}, v5")
    a(f"v_lshrrev_b32 v1, 2, v{TID}\nv_and_b32 v2, 3, v{TID}")
    for q in range(4): a(f"v_cndmask_b32 v{ID+q}, 0, v3, s[{sCM + 2*q}:{sCM + 2*q + 1}]")
    a(f"""
    s_movk_i32 s3, {REC_STRIDE}
    v_mul_u32_u24 v3, s3, v1
    v_mad_u32_u24 v{RAD}, v2, 12, v3
    s_lshl_b32 s3, s{sG}, 3
    s_add_u32 s3, s3, {WS_T}
    v_lshl_add_u32 v{AAD}, v1, 11, s3
    v_xor_b32 v1, v{VG}, v{VJ}
    v_lshlrev_b32 v1, 4, v1
    v_lshl_add_u32 v{XA}, v{VJ}, 8, v1
    v_xor_b32 v{XA+1}, 64, v{XA}
    v_xor_b32 v{XA+2}, 128, v{XA}
    v_xor_b32 v{XA+3}, 192, v{XA}
    v_bfe_u32 v1, v{VL}, 2, 2
    v_and_b32 v2, 1, v{VG}
    v_lshl_or_b32 v2, v2, 2, v1
    v_bfe_u32 v3, v{VL}, 1, 1
    v_lshl_or_b32 v2, v2, 1, v3
    v_and_b32 v3, 1, v{VL}
    v_lshl_or_b32 v2, v2, 1, v3
    v_lshl_add_u32 v1, v{VG}, 3, v1
    v_lshlrev_b32 v1, 8, v1
    v_lshl_add_u32 v{WA}, v2, 3, v1
    """)
def tagbase(a, v):
    a(f"""
    v_readfirstlane_b32 s{sNON}, v{v}
    v_readfirstlane_b32 s{sNON+1}, v{v+1}
    """)
    if RND:
        a(f"""
        s_bfe_u32 s3, s{sNON}, 0x50004
        s_lshl_b32 s3, s3, 23
        s_add_u32 s{sWS}, s{sWS}, s3
        s_addc_u32 s{sWS+1}, s{sWS+1}, 0
        """)
def wlane(a, v):
    a(f"""
    v_lshlrev_b32 v{v}, 1, v{VG}
    v_xor_b32 v{v}, v{v}, v{VJ}
    v_lshlrev_b32 v{v}, 4, v{v}
    v_lshl_add_u32 v{v}, v{VG}, 8, v{v}
    v_xor_b32 v{v+1}, 128, v{v}
    """)
def wdma(a, soff, v):
    a(f"""
    buffer_load_dwordx4 v{v}, s[{sW}:{sW+3}], s{soff} offen lds
    buffer_load_dwordx4 v{v}, s[{sW}:{sW+3}], s{soff} offen offset:1024 lds
    buffer_load_dwordx4 v{v+1}, s[{sW}:{sW+3}], s{soff} offen offset:2048 lds
    buffer_load_dwordx4 v{v+1}, s[{sW}:{sW+3}], s{soff} offen offset:3072 lds
    """)
def mm16(a, d, x, w, swap=False, first=True):
    for ks in range(4):
        c = "0" if (ks == 0 and first) else f"v[{d}:{d+3}]"
        xa = f"v[{x+4*ks}:{x+4*ks+3}]"; wa = f"v[{w+4*ks}:{w+4*ks+3}]"
        a(f"v_mfma_f32_16x16x32_bf16 v[{d}:{d+3}], {wa if swap else xa}, {xa if swap else wa}, {c}")
def xreads(a, dst, off):
    for ks in range(4): a(f"ds_read_b128 v[{dst+4*ks}:{dst+4*ks+3}], v{XA+ks} offset:{off}")

def kernel():
    a = Asm()
    a(f"""
{KN}:
    s_cmp_ge_u32 s2, {NG}
    s_cbranch_scc1 K_END
    @stamp 0
    @stamp 1
    @amp 0
    s_load_dwordx16 s[4:19], s[0:1], 0
    s_load_dwordx2 s[{sWS}:{sWS+1}], s[0:1], 64
    v_mov_b32 v{TID}, v0
    v_lshrrev_b32 v1, 6, v0
    v_and_b32 v{VL}, 63, v0
    v_readfirstlane_b32 s{sWV}, v1
    s_and_b32 s{sG}, s2, 7
    s_lshl_b32 s{sG}, s{sG}, 5
    s_lshr_b32 s3, s2, 3
    s_or_b32 s{sG}, s{sG}, s3
    v_lshrrev_b32 v{VG}, 4, v{VL}
    v_and_b32 v{VJ}, 15, v{VL}
    s_mul_i32 s3, s{sG}, 625
    s_add_u32 s{sSTART}, s3, 15
    s_lshr_b32 s{sSTART}, s{sSTART}, 4
    s_add_u32 s{sEND}, s3, {625+15}
    s_lshr_b32 s{sEND}, s{sEND}, 4
    v_mov_b32 v{W3}, 0x3f80
    s_mov_b32 s{sW+2}, 65536
    s_mov_b32 s{sW+3}, 0x20000
    s_cmp_ge_u32 s{sWV}, 5
    s_cbranch_scc1 A_N1
    ; ================= waves 0..4: bin the edges [1280*g, 1280*g+1280) by destination group (4 edges per thread)
    s_cmp_lt_u32 s{sG}, {NPROD}
    s_cselect_b32 s3, s{sG}, 0
    s_cselect_b64 s[{sEX}:{sEX+1}], -1, 0
    s_mul_i32 s3, s3, {EPW*4}
    v_lshl_add_u32 v8, v0, 4, s3
    v_lshlrev_b32 v9, 1, v8
    s_lshl_b32 s{sTMP}, s{sWV}, 3
    v_add_u32 v1, s{sTMP}, v{VG}
    v_xor_b32 v2, v1, v{VJ}
    v_and_b32 v2, 15, v2
    v_lshlrev_b32 v2, 4, v2
    v_lshl_add_u32 v2, v1, 8, v2
    v_xor_b32 v3, 64, v2
    s_lshl_b32 s{sTMP}, s{sWV}, 11
    s_add_u32 m0, s{sTMP}, {XS}
    s_lshl_b32 s{sTMP+2}, s{sSTART}, 8
    s_mov_b32 s{sX+2}, {N*256}
    s_mov_b32 s{sX+3}, 0x20000
    s_waitcnt lgkmcnt(0)
    global_load_dwordx4 v[12:15], v8, s[10:11] {LDF}
    {WSOFF}
    s_mov_b32 s{sX}, s4
    s_and_b32 s{sX+1}, s5, 0xffff
    buffer_load_dwordx4 v2, s[{sX}:{sX+3}], s{sTMP+2} offen {LDF} lds
    buffer_load_dwordx4 v3, s[{sX}:{sX+3}], s{sTMP+2} offen offset:1024 {LDF} lds
    {SRCE if SE == 0 else ""}
    s_barrier
    {SRCE if SE == 1 else ""}
    """)
    consts(a)
    a(f"""
    s_movk_i32 s{sTMP}, 625
    s_mov_b32 s{sTMP+1}, 214749
    v_mov_b32 v1, 1
    v_lshlrev_b32 v10, 4, v{VL}
    s_waitcnt vmcnt({2 if SE == 2 else 5})
    {SRCE if SE == 2 else ""}
    s_mov_b64 exec, s[{sEX}:{sEX+1}]
    """)
    for i in range(4):
        a(f"v_mul_u32_u24 v{28+i}, s{sTMP+1}, v{12+i}")
    for i in range(4):
        a(f"v_lshrrev_b32 v{28+i}, 23, v{28+i}\nv_lshlrev_b32 v{32+i}, 2, v{28+i}\nds_add_rtn_u32 v{36+i}, v{32+i}, v1 offset:{HIST}")
    a(f"""
    s_mov_b64 exec, -1
    s_waitcnt lgkmcnt(0)
    @stamp 2
    s_barrier
    ds_read_b128 v[40:43], v10 offset:{HIST}
    """)
    for i in range(4):
        a(f"v_mad_u32_u24 v{28+i}, v{28+i}, s{sTMP}, 15\nv_lshrrev_b32 v{28+i}, 4, v{28+i}\nv_sub_u32 v{28+i}, v{12+i}, v{28+i}")
    a(f"""
    s_waitcnt lgkmcnt(0)
    v_add_u32 v44, v40, v41
    v_add3_u32 v44, v44, v42, v43
    v_mov_b32 v45, v44
    """)
    dpp_scan(a, 45)
    a(f"""
    v_sub_u32 v48, v45, v44
    v_add_u32 v49, v48, v40
    v_add_u32 v50, v49, v41
    v_add_u32 v51, v50, v42
    ds_write_b128 v10, v[48:51] offset:{OFFS}
    s_mov_b32 s{sTMP}, {STAGE}
    s_mov_b64 exec, s[{sEX}:{sEX+1}]
    s_waitcnt lgkmcnt(0)
    """)
    for i in range(4):
        a(f"ds_read_b32 v{40+i}, v{32+i} offset:{OFFS}")
    a(f"""
    s_waitcnt vmcnt(3)
    @stamp 3
    s_barrier
    @amp 1
    s_waitcnt lgkmcnt(0)
    """)
    for i in range(4):
        a(f"v_add_u32 v{40+i}, v{40+i}, v{36+i}\nv_mad_u32_u24 v{40+i}, v{40+i}, 12, s{sTMP}")
    a("s_waitcnt vmcnt(2)")
    for i in range(4):
        a(f"v_lshl_or_b32 v{16+i}, v{28+i}, 18, v{16+i}\nds_write_b32 v{40+i}, v{16+i} offset:8")
    for i in range(4):
        if i % 2 == 0: a(f"s_waitcnt vmcnt({1 - i//2})")
        a(f"ds_write2_b32 v{40+i}, v{20+2*i}, v{21+2*i} offset0:0 offset1:1")
    a(f"""
    s_mov_b64 exec, -1
    s_branch A_JOIN
A_N1:
    ; ================= waves 5..15
    v_mov_b32 v8, 0
    """)
    wlane(a, 6)
    a(f"""
    s_sub_u32 s{sVT}, s{sWV}, 5
    s_lshl_b32 s{sVT}, s{sVT}, 12
    s_add_u32 m0, s{sVT}, {W1S}
    s_waitcnt lgkmcnt(0)
    s_mov_b32 s{sW}, s12
    s_and_b32 s{sW+1}, s13, 0xffff
    {WSOFF}
    s_cmp_ge_u32 s{sWV}, 13
    s_cbranch_scc1 A_N13
    """)
    if "w1late" not in OPT: wdma(a, sVT, 6)
    a(f"""
    s_cmp_ge_u32 s{sWV}, 10
    s_cbranch_scc1 A_N10
    ; waves 5..8: histogram = 0; wave 9: node counters and flags = 0
    s_mov_b32 s{sTMP+1}, {HIST - 320*4}
    s_cmp_eq_u32 s{sWV}, 9
    s_cselect_b32 s{sTMP+1}, {CNT - 576*4}, s{sTMP+1}
    v_lshl_add_u32 v3, v0, 2, s{sTMP+1}
    ds_write_b32 v3, v8
    ds_write_b32 v8, v8 offset:{FLG}
    ds_write_b32 v8, v8 offset:{FLG+4}
    s_cbranch_scc0 A_B0
    ds_write_b32 v3, v8 offset:{TF}
    s_branch A_B0
A_N13:
    s_cmp_eq_u32 s{sWV}, 15
    s_cbranch_scc1 A_N15
    s_and_b32 s{sTMP}, s{sG}, 31
    s_lshl_b32 s{sTMP}, s{sTMP}, 10
    s_cmp_eq_u32 s{sWV}, 13
    s_cselect_b32 s{sTMP+1}, 32768, 0
    s_cselect_b32 s{sTMP+2}, s12, s14
    s_cselect_b32 s{sTMP+3}, s13, s15
    s_add_u32 s{sTMP}, s{sTMP}, s{sTMP+1}
    v_lshl_add_u32 v3, v{VL}, 7, s{sTMP}
    s_mov_b64 exec, 0xff
    global_load_dword v40, v3, s[{sTMP+2}:{sTMP+3}]
    s_mov_b64 exec, -1
    s_cmp_eq_u32 s{sWV}, 14
    s_cbranch_scc0 A_N10
    """)
    if "bulk" in OPT:
        nl, fl = OPT["bulk"].split(":"); nl = int(nl); fl = fl.replace("+", " ").replace("-", "")
        a(f"""
        s_mul_i32 s3, s{sG}, {REC_STRIDE}
        s_add_u32 s3, s3, {WS_REC}
        v_lshl_add_u32 v3, v{VL}, 4, s3
        v_mov_b64 v[4:5], 0
        v_mov_b64 v[6:7], 0
        s_waitcnt vmcnt(0)
        s_sleep {OPT.get("bsl", 0)}
        @amp 12
        """)
        for k in range(nl): a(f"global_store_dwordx4 v3, v[4:7], s[{sWS}:{sWS+1}] {fl}\nv_add_u32 v3, 1024, v3")
        a(f"""
        s_waitcnt vmcnt(0)
        @amp 13
        """)
    if "probe" in OPT:
        kind, nl = OPT["probe"].split(":"); nl = int(nl)
        a(f"""
        s_mul_i32 s3, s{sG}, {REC_STRIDE}
        s_add_u32 s3, s3, {WS_REC}
        v_lshl_add_u32 v3, v{VL}, 7, s3
        v_mov_b32 v4, 0
        s_waitcnt vmcnt(0)
        @amp 12
        s_mov_b64 exec, {(1 << nl) - 1 if nl < 32 else -1}
        {"global_store_dword v3, v4" if kind == "st" else "global_load_dword v4, v3"}, s[{sWS}:{sWS+1}] sc1
        s_mov_b64 exec, -1
        s_waitcnt vmcnt(0)
        @amp 13
        """)
    if "tlb" in OPT:
        a(f"""
        v_mov_b32 v3, 0
        s_mov_b32 s3, {WS_REC - 128}
        v_writelane_b32 v3, s3, 1
        s_mov_b32 s3, {WS_REC + 200*REC_STRIDE - 128}
        v_writelane_b32 v3, s3, 2
        s_mov_b32 s3, {WS_F + 65536}
        v_writelane_b32 v3, s3, 3
        s_lshl_b32 s3, s{sSTART}, 8
        v_mov_b32 v4, s3
        v_mov_b32 v5, 128
        s_mov_b64 exec, 15
        global_load_dword v41, v3, s[{sWS}:{sWS+1}]
        s_mov_b64 exec, 1
        global_load_dword v42, v4, s[16:17]
        global_load_dword v43, v5, s[18:19]
        s_mov_b64 exec, -1
        """)
    a(f"""
    s_branch A_B0
A_N10:
    ; waves 10..13: src list = 0xffff (index out of range)
    v_lshlrev_b32 v3, 4, v0
    v_add_u32 v3, {SS - 640*16}, v3
    v_mov_b64 v[12:13], -1
    v_mov_b64 v[14:15], -1
    ds_write_b128 v3, v[12:15]
    s_branch A_B0
A_N15:
    s_cmp_lg_u32 s2, 0
    s_cbranch_scc1 A_B0
    s_memrealtime s[{sNON}:{sNON+1}]
    s_waitcnt lgkmcnt(0)
    s_or_b32 s{sNON}, s{sNON}, 1
    v_mov_b32 v10, s{sNON}
    v_mov_b32 v11, s{sNON+1}
    s_mov_b64 exec, 1
    global_store_dwordx2 v8, v[10:11], s[18:19] sc1
    s_mov_b64 exec, -1
A_B0:
    """)
    if "x_prew" in OPT:
        op = "global_atomic_or" if OPT["x_prew"] == "atom" else "global_store_dword"
        a(f"""
        s_sub_u32 s3, s{sWV}, 11
        s_cmp_gt_u32 s3, 3
        s_cbranch_scc1 X_NOPW
        s_mul_i32 s{sTMP}, s{sG}, {REC_STRIDE}
        s_add_u32 s{sTMP}, s{sTMP}, {WS_REC}
        s_lshl_b32 s{sTMP+1}, s{sSTART}, 8
        s_add_u32 s{sTMP+1}, s{sTMP+1}, {WS_P}
        s_cmp_lt_u32 s3, 2
        s_cselect_b32 s{sTMP}, s{sTMP}, s{sTMP+1}
        s_cselect_b32 s{sTMP+1}, 42, 0
        s_add_u32 s{sTMP+1}, s{sTMP+1}, 77
        s_and_b32 s3, s3, 1
        s_lshl_b32 s3, s3, 6
        v_add_u32 v3, s3, v{VL}
        v_cmp_ge_u32 vcc, s{sTMP+1}, v3
        v_lshl_add_u32 v3, v3, 7, s{sTMP}
        v_mov_b32 v4, 0
        s_mov_b64 exec, vcc
        {op} v3, v4, s[{sWS}:{sWS+1}] sc1
        s_mov_b64 exec, -1
        s_cmp_eq_u32 s{sWV}, 14
        s_cbranch_scc0 X_NOPW
        s_lshl_b32 s{sTMP}, s{sG}, 11
        s_add_u32 s{sTMP}, s{sTMP}, {WS_T}
        v_lshl_add_u32 v3, v{VL}, 7, s{sTMP}
        s_mov_b64 exec, 0xffff
        {op} v3, v4, s[{sWS}:{sWS+1}] offset:4 sc1
        s_mov_b64 exec, -1
X_NOPW:
        """)
    a(f"""
    s_cmp_eq_u32 s{sWV}, 15
    s_cbranch_scc1 A_B1
    v_lshlrev_b32 v3, 4, v0
    v_add_u32 v3, {AGG - 320*16}, v3
    v_mov_b64 v[12:13], 0
    v_mov_b64 v[14:15], 0
    ds_write_b128 v3, v[12:15]
    ds_write_b128 v3, v[12:15] offset:10240
    ds_write_b128 v3, v[12:15] offset:20480
    ds_write_b128 v3, v[12:15] offset:30720
A_B1:
    s_waitcnt lgkmcnt({"0" if "zearly" in OPT else "4"})
    s_barrier
    """)
    if "w1late" in OPT:
        a(f"s_cmp_ge_u32 s{sWV}, 13\ns_cbranch_scc1 A_NOW1")
        wdma(a, sVT, 6)
        a("A_NOW1:")
    a(f"""
    s_cmp_eq_u32 s{sWV}, 15
    s_cbranch_scc0 A_NO15
    v_bfe_u32 v9, v{VL}, 4, 1
    v_lshlrev_b32 v9, 6, v9
    v_lshrrev_b32 v10, 5, v{VL}
    v_lshl_add_u32 v9, v10, 5, v9
    v_add_u32 v9, v9, v{VJ}
    v_lshlrev_b32 v9, 1, v9
    v_add_u32 v8, {256*256}, v9
    """)
    for s in range(8):
        a(f"global_load_ushort v{16 + s}, v8, s[12:13] offset:{(s & 3)*256 + (s >> 2)*32}")
    a(f"""
    s_cmp_ge_u32 s{sG}, 32
    s_cbranch_scc1 A_NO15
    s_and_b32 s{sTMP}, s{sG}, 1
    s_lshl_b32 s{sTMP}, s{sTMP}, 3
    s_bfe_u32 s{sTMP+1}, s{sG}, 0x10001
    s_lshl_b32 s{sTMP+1}, s{sTMP+1}, 6
    s_add_u32 s{sTMP}, s{sTMP}, s{sTMP+1}
    s_add_u32 s{sTMP}, s{sTMP}, 128
    s_lshl_b32 s{sTMP}, s{sTMP}, 8
    s_bfe_u32 s{sTMP+1}, s{sG}, 0x30002
    s_lshl_b32 s{sTMP+1}, s{sTMP+1}, 5
    s_add_u32 s{sTMP}, s{sTMP}, s{sTMP+1}
    v_lshlrev_b32 v8, 9, v{VG}
    v_lshl_add_u32 v8, v{VJ}, 1, v8
    v_add_u32 v8, s{sTMP}, v8
    v_add_u32 v9, {32*256}, v8
    v_add_u32 v10, {16*256}, v8
    v_add_u32 v11, {48*256}, v8
    """)
    for s in range(8):
        a(f"global_load_ushort v{24 + s}, v{8 + (s >> 1)}, s[14:15] offset:{(s & 1)*256}")
    a(f"""
A_NO15:
    """)
    consts(a)
    a(f"""
    s_barrier
    s_cmp_ge_u32 s{sWV}, 11
    s_cbranch_scc1 A_G11
    ; ================= waves 5..10: P = -log2e * x @ W1 for this group's rows (rt = (wv-5)>>1, hf = (wv-5)&1)
    s_sub_u32 s3, s{sWV}, 5
    s_and_b32 s{sTMP+1}, s3, 1
    s_lshr_b32 s{sTMP}, s3, 1
    s_lshl_b32 s{sTMP+2}, s{sTMP}, 12
    v_add_u32 v0, s{sTMP+2}, v{XA}
    v_add_u32 v1, s{sTMP+2}, v{XA+1}
    v_add_u32 v2, s{sTMP+2}, v{XA+2}
    v_add_u32 v3, s{sTMP+2}, v{XA+3}
    s_lshl_b32 s{sTMP+1}, s{sTMP+1}, 7
    v_xor_b32 v4, s{sTMP+1}, v{WA}
    v_add_u32 v4, {W1S}, v4
    v_xor_b32 v5, 32, v4
    v_xor_b32 v6, 64, v4
    v_xor_b32 v7, 96, v4
    s_add_u32 s{sTMP+2}, s{sTMP+2}, s{sTMP+1}
    """)
    if not PSTG:
        a(f"""
        s_lshl_b32 s{sTMP+1}, s{sSTART}, 8
        s_add_u32 s{sTMP+2}, s{sTMP+2}, s{sTMP+1}
        s_add_u32 s{sTMP+2}, s{sTMP+2}, {WS_P}
        """)
    a(f"""
    v_lshlrev_b32 v{NANC}, 10, v{VG}
    v_lshl_add_u32 v{NANC}, v{VJ}, 3, v{NANC}
    v_add_u32 v{NANC}, s{sTMP+2}, v{NANC}
    s_mov_b32 s{sTMP+2}, {NLOG2E:#x}
    s_waitcnt vmcnt(0)
    @stamp 3
    s_barrier
    s_setprio 1
    """)
    def breads(ks):
        b = 8 + 16*(ks & 1)
        a(f"ds_read_b128 v[{40+4*ks}:{43+4*ks}], v{ks} offset:{XS}")
        for i in range(4):
            for h in range(2):
                a(f"ds_read_b64_tr_b16 v[{b+4*i+2*h}:{b+4*i+2*h+1}], v{4+i} offset:{8192*ks + 1024*h}")
    breads(0)
    for ks in range(4):
        if ks < 3:
            breads(ks+1)
            a("s_waitcnt lgkmcnt(9)")
        else:
            a("s_waitcnt lgkmcnt(0)")
        b = 8 + 16*(ks & 1)
        for i in range(4):
            c = "0" if ks == 0 else f"v[{56+4*i}:{59+4*i}]"
            a(f"v_mfma_f32_16x16x32_bf16 v[{56+4*i}:{59+4*i}], v[{40+4*ks}:{43+4*ks}], v[{b+4*i}:{b+4*i+3}], {c}")
    a(f"""
    s_cmp_eq_u32 s{sTMP}, 2
    s_cselect_b32 exec_hi, 0, -1
    s_nop 5
    """)
    a("@amp 14")
    for q in range(8):
        a(f"v_pk_mul_f32 v[{56+2*q}:{57+2*q}], v[{56+2*q}:{57+2*q}], s[{sTMP+2}:{sTMP+3}] op_sel_hi:[1,0]")
    for r in range(4):
        a(f"v_cvt_pk_bf16_f32 v{8+2*r}, v{56+r}, v{60+r}\nv_cvt_pk_bf16_f32 v{9+2*r}, v{64+r}, v{68+r}")
        if PSTG: a(f"ds_write_b64 v{NANC}, v[{8+2*r}:{9+2*r}] offset:{PST + 256*r}")
        else: a(f"global_store_dwordx2 v{NANC}, v[{8+2*r}:{9+2*r}], s[{sWS}:{sWS+1}] offset:{256*r} {STF}")
    a(f"""
    s_mov_b64 exec, -1
    {"s_waitcnt vmcnt(0)" if AMP == 15 else ""}
    @amp 15
    s_setprio 0
    s_branch A_JOIN
A_G11:
    s_cmp_eq_u32 s{sWV}, 15
    s_cbranch_scc1 A_G15
    """)
    if "x_prew" in OPT: a(f"s_cmp_ge_u32 s{sWV}, 13\ns_cbranch_scc1 X_NW\ns_waitcnt vmcnt(1)\nX_NW:")
    a(f"""
    s_waitcnt vmcnt({63 if "x_prew" in OPT else 0})
    @stamp 3
    s_barrier
    s_branch A_JOIN
A_G15:
    @stamp 3
    s_barrier
    v_mov_b32 v8, 0
    s_mov_b32 s{sSPIN}, {SPINMAX}
A_NLOOP:
    global_load_dwordx2 v[10:11], v8, s[18:19] sc1
    s_sub_u32 s{sSPIN}, s{sSPIN}, 1
    s_cbranch_scc1 A_NDONE
    s_waitcnt vmcnt(0)
    v_cmp_eq_u32 vcc, 0, v10
    s_cbranch_vccnz A_NLOOP
A_NDONE:
    s_waitcnt vmcnt(0)
    v_lshlrev_b32 v11, 22, v11
    ds_write_b64 v8, v[10:11] offset:{NON}
    s_mov_b32 s{sTMP}, {NLOG2E:#x}
    """)
    tagbase(a, 10)
    if "tlb2" in OPT:
        a(f"""
        v_mov_b32 v3, 0
        s_mov_b32 s3, {WS_REC - 128}
        v_writelane_b32 v3, s3, 1
        s_mov_b32 s3, {WS_REC + 200*REC_STRIDE - 128}
        v_writelane_b32 v3, s3, 2
        s_mov_b32 s3, {WS_F + 65536}
        v_writelane_b32 v3, s3, 3
        s_mov_b64 exec, 15
        global_load_dword v41, v3, s[{sWS}:{sWS+1}]
        s_mov_b64 exec, -1
        """)
    for s in range(8):
        a(f"v_lshlrev_b32 v{16+s}, 16, v{16+s}\nv_mul_f32 v{16+s}, s{sTMP}, v{16+s}")
    for q in range(4):
        a(f"v_cvt_pk_bf16_f32 v{12+q}, v{16+2*q}, v{17+2*q}")
    a(f"""
    v_lshlrev_b32 v8, 4, v{VL}
    ds_write_b128 v8, v[12:15] offset:{W3S}
    s_cmp_ge_u32 s{sG}, 32
    s_cbranch_scc1 A_JOIN
    """)
    for q in range(4):
        a(f"v_lshl_or_b32 v{32+q}, v{25+2*q}, 16, v{24+2*q}")
    a(f"""
    s_lshl_b32 s{sTMP}, s{sG}, 10
    s_add_u32 s{sTMP}, s{sTMP}, {WS_F}
    v_add_u32 v8, s{sTMP}, v8
    global_store_dwordx4 v8, v[32:35], s[{sWS}:{sWS+1}] sc1
A_JOIN:
    v_lshlrev_b32 v0, 4, v{TID}
    s_mul_i32 s{sTMP}, s{sG}, {REC_STRIDE}
    s_add_u32 s{sTMP}, s{sTMP}, {WS_REC}
    v_add_u32 v1, s{sTMP}, v0
    s_lshl_b32 s{sTMP}, s{sSTART}, 8
    s_add_u32 s{sTMP}, s{sTMP}, {WS_P - 384*16}
    v_add_u32 v2, s{sTMP}, v0
    v_mov_b32 v3, 0
    s_waitcnt lgkmcnt(0)
    @stamp 4
    s_barrier
    @amp 2
    """)
    if PSTG:
        a(f"""
        s_cmp_eq_u32 s{sWV}, 15
        s_cbranch_scc1 A_C0
        ds_read_b64 v[{SAD}:{SAD+1}], v3 offset:{NON}
        ds_read_b128 v[4:7], v0 offset:{STAGE}
        s_cmp_lt_u32 s{sWV}, 6
        s_cbranch_scc1 A_C1
        ds_read_b128 v[8:11], v0 offset:{PST - 384*16}
        s_waitcnt lgkmcnt(2)
        """)
        tagbase(a, SAD)
        a(f"""
        s_waitcnt lgkmcnt(1)
        global_store_dwordx4 v1, v[4:7], s[{sWS}:{sWS+1}] {STF}
        s_branch A_C0B
A_C0:
        ds_read_b128 v[8:11], v0 offset:{PST - 384*16}
A_C0B:
        s_waitcnt lgkmcnt(0)
        global_store_dwordx4 v2, v[8:11], s[{sWS}:{sWS+1}] {STF}
        s_branch A_C2
A_C1:
        s_waitcnt lgkmcnt(1)
        """)
        tagbase(a, SAD)
        a(f"""
        s_waitcnt lgkmcnt(0)
        global_store_dwordx4 v1, v[4:7], s[{sWS}:{sWS+1}] {STF}
        """)
    else:
        a(f"""
        s_cmp_eq_u32 s{sWV}, 15
        s_cbranch_scc1 A_C2
        ds_read_b128 v[4:7], v0 offset:{STAGE}
        s_waitcnt lgkmcnt(0)
        global_store_dwordx4 v1, v[4:7], s[{sWS}:{sWS+1}] {STF}
        """)
    a(f"""
A_C2:
    {"s_waitcnt vmcnt(0)" if AMP == 17 else ""}
    @amp 16
    @amp 17
    """)
    if "xcctest" in OPT:
        a(f"""
        s_getreg_b32 s80, hwreg(HW_REG_XCC_ID)
        s_and_b32 s80, s80, 15
        s_mul_i32 s3, s{sG}, {REC_STRIDE}
        s_add_u32 s3, s3, {WS_REC + 15360}
        v_mov_b32 v30, s3
        v_mov_b32 v31, s80
        global_store_dword v30, v31, s[{sWS}:{sWS+1}] sc1
        """)
    a(f"""
    v_lshlrev_b32 v3, 4, v{VL}
    ds_read_b128 v[{W3}:{W3+3}], v3 offset:{W3S}
    """)
    wlane(a, 14)
    a(f"""
    s_lshl_b32 s{sTMP}, s{sWV}, 12
    s_add_u32 s{sTMP+1}, s{sTMP}, 32768
    s_sub_u32 s{sTMP+2}, s{sTMP}, 32768
    s_add_u32 s{sTMP+3}, s{sTMP}, {W2S}
    s_add_u32 s{sTMP}, s{sTMP+2}, {WTS}
    s_cmp_lt_u32 s{sWV}, 8
    s_cselect_b32 s{sW}, s12, s14
    s_cselect_b32 s{sW+1}, s13, s15
    s_cselect_b32 s{sVT}, s{sTMP+1}, s{sTMP+2}
    s_cselect_b32 m0, s{sTMP+3}, s{sTMP}
    s_and_b32 s{sW+1}, s{sW+1}, 0xffff
    """)
    if W2E:
        a("s_barrier" if "wboth" in OPT else f"s_barrier\ns_cmp_ge_u32 s{sWV}, 8\ns_cbranch_scc1 A_C4")
        a("@amp 18")
        wdma(a, sVT, 14)
        a("A_C4:")
        a("@amp 19")
    a(f"""
    s_mov_b32 s{sO}, s16
    s_and_b32 s{sO+1}, s17, 0xffff
    s_lshl_b32 s{sO+2}, s{sEND}, 8
    s_mov_b32 s{sO+3}, 0x20000
    s_add_u32 s{sP}, s{sWS}, {WS_P}
    s_addc_u32 s{sP+1}, s{sWS+1}, 0
    s_and_b32 s{sP+1}, s{sP+1}, 0xffff
    s_or_b32 s{sP+1}, s{sP+1}, {256 << 16}
    s_mov_b32 s{sP+2}, {N}
    s_mov_b32 s{sP+3}, 0x20000
    s_sub_u32 s{sP2}, s{sP}, 1024
    s_subb_u32 s{sP2+1}, s{sP+1}, 0
    s_mov_b32 s{sP2+2}, {N}
    s_mov_b32 s{sP2+3}, 0x20000
    s_add_u32 s{sREC}, s{sWS}, {WS_REC}
    s_addc_u32 s{sREC+1}, s{sWS+1}, 0
    s_and_b32 s{sREC+1}, s{sREC+1}, 0xffff
    s_mov_b32 s{sREC+2}, {NG*REC_STRIDE}
    s_mov_b32 s{sREC+3}, 0x20000
    s_mov_b32 s{sMODE}, 0
    s_mov_b32 s{sR0}, 0
    s_mov_b32 s{sR}, {4*RMAX}
    s_mov_b32 s{sONE}, 1.0
    s_mov_b32 s{sONE+1}, 1.0
    s_mov_b32 s{sSPIN}, {SPINMAX}
    v_mov_b64 v[{NANC}:{NANC+1}], 0
    v_mov_b32 v{MAXC}, 0
    s_and_b32 s{sTMP}, s{sWV}, 7
    s_lshl_b32 s{sTMP}, s{sTMP}, 5
    v_xor_b32 v{WA}, s{sTMP}, v{WA}
    s_and_b32 s{sTMP}, s{sWV}, 8
    s_lshl_b32 s{sTMP}, s{sTMP}, 12
    s_add_u32 s{sTMP}, s{sTMP}, {WTS}
    v_add_u32 v{WA}, s{sTMP}, v{WA}
    s_bfe_u32 s{sTMP}, s{sWV}, 0x10002
    s_lshl_b32 s{sTMP}, s{sTMP}, 7
    s_bfe_u32 s{sTMP+1}, s{sWV}, 0x10001
    s_lshl_b32 s{sTMP+1}, s{sTMP+1}, 8
    s_add_u32 s{sTMP}, s{sTMP}, s{sTMP+1}
    s_and_b32 s{sTMP+1}, s{sWV}, 1
    s_lshl_b32 s{sTMP+1}, s{sTMP+1}, 2
    s_add_u32 s{sTMP}, s{sTMP}, s{sTMP+1}
    v_lshlrev_b32 v{QAD}, 11, v{VG}
    v_lshl_add_u32 v{QAD}, v{VJ}, 3, v{QAD}
    v_add_u32 v{QAD}, s{sTMP}, v{QAD}
    s_mov_b32 s{sTMP+2}, {NLOG2E:#x}
    """)
    if PF1:
        a(f"""
        ; this CU's share of the first {512*PF1} lines of P (pulled into the L2 behind the publish; speed only)
        s_and_b32 s{sTMP}, s{sG}, 31
        s_lshl_b32 s{sTMP}, s{sTMP}, 4
        s_add_u32 s{sTMP}, s{sTMP}, s{sWV}
        s_lshr_b32 s{sTMP+1}, s{sG}, 5
        s_lshl_b32 s{sTMP+1}, s{sTMP+1}, 6
        s_add_u32 s{sTMP}, s{sTMP}, s{sTMP+1}
        s_and_b32 s{sTMP}, s{sTMP}, 511
        s_mul_i32 s{sTMP}, s{sTMP}, {PF1*128}
        s_add_u32 s{sTMP}, s{sTMP}, {WS_P}
        v_lshl_add_u32 v3, v{L8}, 4, s{sTMP}
        """)
    a(f"""
    s_cmp_lt_u32 s{sWV}, 14
    s_cbranch_scc1 A_NOT
    ; waves 14, 15: granules (start | count<<11 | tag<<22, tag) of groups 2t, 2t+1 (t = tid - 896)
    v_lshlrev_b32 v8, 3, v{TID}
    ds_read_b64 v[10:11], v8 offset:{OFFS - 896*8}
    ds_read_b64 v[12:13], v8 offset:{HIST - 896*8}
    s_lshl_b32 s{sTMP}, s{sG}, 11
    s_add_u32 s{sTMP}, s{sTMP}, {WS_T - 896*16}
    v_lshl_add_u32 v8, v8, 1, s{sTMP}
    v_mov_b32 v5, s{sNON}
    v_mov_b32 v7, s{sNON}
    s_waitcnt lgkmcnt(0)
    v_lshl_or_b32 v4, v12, 11, v10
    v_lshl_or_b32 v6, v13, 11, v11
    v_or_b32 v4, s{sNON+1}, v4
    v_or_b32 v6, s{sNON+1}, v6
    s_waitcnt vmcnt({4 if "wboth" in OPT else 0})
    @stamp 5
    @amp 10
    s_barrier
    global_store_dwordx4 v8, v[4:7], s[{sWS}:{sWS+1}] sc1
    s_branch A_PUB
A_NOT:
    """)
    if "wboth" in OPT: a("s_waitcnt vmcnt(4)")
    elif W2E: a(f"s_cmp_lt_u32 s{sWV}, 8\ns_cbranch_scc1 A_WT4\ns_waitcnt vmcnt(0)\nA_WT4:\ns_waitcnt vmcnt(4)")
    else: a("s_waitcnt vmcnt(0)")
    a(f"""
    @stamp 5
    @amp 10
    s_barrier
A_PUB:
    s_barrier
    @amp 3
    """)
    if W2E: a(f"s_cmp_lt_u32 s{sWV}, 8\ns_cbranch_scc1 A_NOWT")
    if "wboth" not in OPT: wdma(a, sVT, 14)
    if W2E: a("A_NOWT:")
    if PF1:
        a(f"""
        s_mov_b64 exec, {(1 << PF1) - 1:#x}
        global_load_dword v2, v3, s[{sWS}:{sWS+1}] sc1
        s_mov_b64 exec, -1
        """)
    a(f"""
A_QD:
    s_lshl_b32 s{sRING}, s{sWV}, 12
    s_add_u32 s{sRING}, s{sRING}, {RING}
    s_add_u32 s{sRING+1}, s{sRING}, 2048
    s_and_b32 s{sRHO}, s{sWV}, 3
    s_lshl_b32 s{sRHO}, s{sRHO}, 2
    s_lshr_b32 s{sTMP}, s{sWV}, 2
    s_or_b32 s{sRHO}, s{sRHO}, s{sTMP}
    v_add_u32 v{PAD}, s{sRING}, v{L8}
    s_mov_b32 s3, 1
    v_mov_b32 v19, 0x3fffff
    s_waitcnt vmcnt({1 if PF1 else 0})
    @stamp 6
    @amp 11
    {"s_barrier" if "noqbar" not in OPT else ""}
    {f"s_sleep {OPT['sleep0']}" if "sleep0" in OPT else ""}
    @amp 4
T_LOOP:
    global_load_dwordx2 v[20:21], v{AAD}, s[{sWS}:{sWS+1}] sc1
    s_sub_u32 s{sSPIN}, s{sSPIN}, 1
    s_cbranch_scc1 T_DONE
    s_waitcnt vmcnt(0)
    v_xor_b32 v{TW}, s{sNON+1}, v20
    v_cmp_ne_u32 vcc, s{sNON}, v21
    v_cmp_lt_u32 s[{sTMP}:{sTMP+1}], v19, v{TW}
    s_or_b64 exec, vcc, s[{sTMP}:{sTMP+1}]
    s_cbranch_scc1 T_LOOP
T_DONE:
    s_mov_b64 exec, -1
    s_waitcnt vmcnt(0)
    @stamp 7
    @amp 5
K_PASS:
    v_and_b32 v9, 0x7ff, v{TW}
    v_bfe_u32 v15, v{TW}, 11, 11
    v_add_u32 v9, s{sR0}, v9
    v_mad_u32_u24 v9, v9, 12, v{RAD}
    v_subrev_u32 v15, s{sR0}, v15
    v_min_i32 v10, s{sR}, v15
    v_and_b32 v11, 3, v{TID}
    v_sub_u32 v10, v10, v11
    """)
    for r in range(RMAX):
        a(f"v_cmp_lt_i32 s[{sEX+2*r}:{sEX+2*r+1}], {4*r}, v10")
    a(f"v_cmp_lt_i32 vcc, s{sR}, v15")
    for r in range(RMAX):
        a(f"s_mov_b64 exec, s[{sEX+2*r}:{sEX+2*r+1}]")
        if r >= 2: a(f"s_cbranch_execz K_LD")
        a(f"buffer_load_dwordx3 v[{32+4*r}:{34+4*r}], v9, s[{sREC}:{sREC+3}], 0 offen offset:{48*r} sc1")
    a(f"""
K_LD:
    s_mov_b64 exec, -1
    v_mov_b32 v13, 1
    v_lshrrev_b32 v14, 1, v{L8}
    s_cbranch_vccz K_NOMORE
    v_mov_b32 v9, 0
    ds_write_b32 v9, v13 offset:{FLG}
K_NOMORE:
    """)
    if PF2:
        a(f"""
        s_and_b32 s{sTMP}, s{sG}, 31
        s_lshl_b32 s{sTMP}, s{sTMP}, 4
        s_add_u32 s{sTMP}, s{sTMP}, s{sWV}
        s_lshr_b32 s{sTMP+1}, s{sG}, 5
        s_lshl_b32 s{sTMP+1}, s{sTMP+1}, 6
        s_add_u32 s{sTMP}, s{sTMP}, s{sTMP+1}
        s_and_b32 s{sTMP}, s{sTMP}, 511
        s_mul_i32 s{sTMP}, s{sTMP}, {PF2*128}
        s_add_u32 s{sTMP}, s{sTMP}, {(20000 - 512*PF2)*128 + WS_P}
        v_lshl_add_u32 v12, v{L8}, 4, s{sTMP}
        """)
    a(f"""
    s_cmp_eq_u32 s3, 0
    s_mov_b32 s3, 0
    s_cbranch_scc1 K_NOU
    ; first pass, column tile wv&7: waves 0..7 U = -log2e * (x @ Wupd_top)^T (rows = channels) -> registers,
    """)
    for ks in range(4):
        for h in range(2):
            a(f"ds_read_b64_tr_b16 v[{16+4*ks+2*h}:{17+4*ks+2*h}], v{WA} offset:{8192*ks + 1024*h}")
    XB0 = (52, 56, 60, 64); XB1 = (0, 4, 8, 68)
    def xr(xb, off):
        for ks in range(4): a(f"ds_read_b128 v[{xb[ks]}:{xb[ks]+3}], v{XA+ks} offset:{off}")
    xr(XB0, XS); xr(XB1, XS + 4096)
    a(f"s_mov_b32 s{sTMP+2}, {NLOG2E:#x}\ns_cmp_ge_u32 s{sWV}, 8\ns_cbranch_scc1 K_Q")
    for isq in (0, 1):
        if isq: a("K_Q:")
        def um(rt, xb):
            for ks in range(4):
                c = "0" if ks == 0 else f"v[{UA[rt]}:{UA[rt]+3}]"
                w = f"v[{16+4*ks}:{19+4*ks}]"; x = f"v[{xb[ks]}:{xb[ks]+3}]"
                a(f"v_mfma_f32_16x16x32_bf16 v[{UA[rt]}:{UA[rt]+3}], {x if isq else w}, {w if isq else x}, {c}")
        a("s_waitcnt lgkmcnt(4)")
        um(0, XB0)
        xr(XB0, XS + 8192)
        a("s_waitcnt lgkmcnt(4)")
        um(1, XB1)
        a("s_waitcnt lgkmcnt(0)")
        um(2, XB0)
        if not isq: a("s_nop 3")
        for rt in range(3):
            if rt == 2 and not isq: a("s_nop 1")
            for q in range(2):
                u = UA[rt] + 2*q
                a(f"v_pk_mul_f32 v[{u}:{u+1}], v[{u}:{u+1}], s[{sTMP+2}:{sTMP+3}] op_sel_hi:[1,0]")
            if isq:
                if rt == 2: a("s_mov_b32 exec_hi, 0")
                for r in range(4):
                    a(f"ds_write_b32 v{QAD}, v{UA[rt]+r} offset:{QS + rt*8192 + r*512}")
        a("s_mov_b64 exec, -1" if isq else "s_branch K_NOU")
    a("K_NOU:\ns_waitcnt vmcnt(0)\n@stamp 8\n@amp 6")
    if PF2:
        a(f"s_mov_b64 exec, {(1 << PF2) - 1:#x}\nglobal_load_dword v63, v12, s[{sWS}:{sWS+1}] sc1")
    for r in range(RMAX):
        a(f"s_mov_b64 exec, s[{sEX+2*r}:{sEX+2*r+1}]")
        if r >= 2: a(f"s_cbranch_execz K_HD")
        a(f"v_lshrrev_b32 v{r}, 16, v{34+4*r}\nds_add_rtn_u32 v{35+4*r}, v{r}, v13 offset:{CNT}")
    a(f"""
K_HD:
    s_mov_b64 exec, -1
    s_waitcnt lgkmcnt(0)
    s_barrier
    ds_read_b32 v8, v14 offset:{CNT}
    s_waitcnt lgkmcnt(0)
    v_add_u32 v10, 7, v8
    v_lshrrev_b32 v11, 3, v10
    """)
    dpp_scan(a, 11, [f"v_cmp_ne_u32 s[{sNZ}:{sNZ+1}], 0, v8", f"v_and_b32 v{NCNT}, 7, v10", f"v_and_b32 v10, -8, v10", f"v_add_u32 v{NCNT}, 1, v{NCNT}"])
    a(f"""
    v_lshlrev_b32 v15, 3, v11
    v_sub_u32 v15, v15, v10
    v_readlane_b32 s{sTMP}, v11, 63
    """)
    for r in range(RMAX):
        if r >= 2: a(f"s_cmp_eq_u64 s[{sEX+2*r}:{sEX+2*r+1}], 0\ns_cbranch_scc1 K_BD")
        a(f"ds_bpermute_b32 v{16+r}, v{r}, v15")
    a(f"""
K_BD:
    s_cmp_gt_u32 s{sTMP}, {CAP//8}
    s_cbranch_scc1 K_SHRINK
    s_mul_i32 s{sT0}, s{sTMP}, s{sRHO}
    s_add_u32 s{sTMP}, s{sT0}, s{sTMP}
    s_lshr_b32 s{sT0}, s{sT0}, 4
    s_lshr_b32 s{sTMP}, s{sTMP}, 4
    v_cmp_ge_u32 vcc, s{sT0}, v11
    s_sub_u32 s{sLEFT}, s{sTMP}, s{sT0}
    s_cmp_lg_u32 s{sWV}, 15
    s_cbranch_scc1 K_NOTF
    s_mov_b64 exec, s[{sNZ}:{sNZ+1}]
    ds_write_b8 v11, v13 offset:{TF - 1}
K_NOTF:
    s_waitcnt lgkmcnt(0)
    """)
    for r in range(RMAX):
        a(f"s_mov_b64 exec, s[{sEX+2*r}:{sEX+2*r+1}]")
        if r >= 2: a("s_cbranch_execz K_SD")
        a(f"""
        v_add_lshl_u32 v10, v{16+r}, v{35+4*r}, 3
        v_add_lshl_u32 v9, v{16+r}, v{35+4*r}, 1
        {f"v_and_b32 v{34+4*r}, {OPT['x_mask']}, v{34+4*r}" if "x_mask" in OPT else ""}
        ds_write_b64 v10, v[{32+4*r}:{33+4*r}] offset:{ES}
        ds_write_b16 v9, v{34+4*r} offset:{SS}
        """)
    a(f"""
K_SD:
    s_mov_b64 exec, -1
    s_bcnt1_i32_b64 s{sNC}, vcc
    s_min_u32 s{sNC}, s{sNC}, 61
    s_or_b32 s{sNZ+1}, s{sNZ+1}, 0xc0000000
    s_lshr_b64 s[{sNZ}:{sNZ+1}], s[{sNZ}:{sNZ+1}], s{sNC}
    s_lshl_b64 s[{sNZ}:{sNZ+1}], s[{sNZ}:{sNZ+1}], s{sNC}
    s_mov_b64 s[{sNZ2}:{sNZ2+1}], s[{sNZ}:{sNZ+1}]
    s_mov_b32 s{sNQ}, s{sNC}
    v_lshl_add_u32 v{AAD}, s{sNC}, 10, v{L8}
    v_lshl_add_u32 v{EAD}, s{sT0}, 6, v{E8}
    v_lshl_add_u32 v{SAD}, s{sT0}, 4, v{G2}
    v_lshrrev_b32 v9, 2, v14
    v_add_u32 v9, s{sT0}, v9
    s_waitcnt lgkmcnt(0)
    s_barrier
    s_setprio 3
    @stamp 10
    @amp 7
    s_cmp_eq_u32 s{sLEFT}, 0
    s_cbranch_scc1 K_MAINDONE
    s_cmp_lg_u32 s{sMODE}, 0
    s_cbranch_scc1 S_START
    """)
    mainloop(a, False)
    a(f"""
K_MAINDONE:
    @stamp 11
    @amp 8
    s_waitcnt vmcnt(0)
    v_mov_b32 v17, {f2u(2.0**120):#x}
    v_add_f32 v18, v{NANC}, v{NANC+1}
    v_cmp_nle_f32 vcc, v{MAXC}, v17
    v_cmp_u_f32 s[{sTMP}:{sTMP+1}], v18, v18
    v_mov_b32 v{QAD}, 0
    s_or_b64 vcc, vcc, s[{sTMP}:{sTMP+1}]
    s_cbranch_scc0 K_NOOVF
    v_mov_b32 v20, 1
    ds_write_b32 v{QAD}, v20 offset:{FLG+4}
K_NOOVF:
    s_cmp_ge_u32 s{sWV}, 8
    s_cbranch_scc1 K_NOFA
    s_lshl_b32 s{sTMP}, s{sWV}, 12
    s_add_u32 s{sTMP}, s{sTMP}, {WS_F}
    v_lshl_add_u32 v{EAD}, v{L8}, 1, s{sTMP}
    """)
    for ks in range(4): a(f"global_load_dwordx4 v[{4*ks}:{4*ks+3}], v{EAD}, s[{sWS}:{sWS+1}] offset:{1024*ks} sc1")
    a(f"""
    v_xor_b32 v16, v{VG}, v{VJ}
    v_lshlrev_b32 v16, 4, v16
    v_lshl_add_u32 v{XA}, v{VJ}, 8, v16
    v_xor_b32 v{XA+1}, 64, v{XA}
    v_xor_b32 v{XA+2}, 128, v{XA}
    v_xor_b32 v{XA+3}, 192, v{XA}
    ; staging address: row*256 + ((2*ct + (g>>1)) ^ j)*16 + (g&1)*8, row = 16*rt + j
    s_lshl_b32 s{sTMP}, s{sWV}, 1
    v_lshrrev_b32 v{EAD}, 1, v{VG}
    v_or_b32 v{EAD}, s{sTMP}, v{EAD}
    v_xor_b32 v{EAD}, v{EAD}, v{VJ}
    v_and_b32 v16, 1, v{VG}
    v_lshl_or_b32 v{EAD}, v{EAD}, 1, v16
    v_lshlrev_b32 v{EAD}, 3, v{EAD}
    v_lshl_add_u32 v{EAD}, v{VJ}, 8, v{EAD}
K_NOFA:
    v_lshrrev_b32 v21, 4, v{TID}
    v_lshlrev_b32 v23, 10, v21
    v_lshl_add_u32 v23, v{VJ}, 4, v23
    v_xor_b32 v24, v21, v{VJ}
    v_and_b32 v24, 15, v24
    v_lshlrev_b32 v24, 4, v24
    v_lshl_add_u32 v{SAD}, v21, 8, v24
    s_lshl_b32 s{sTMP}, s{sSTART}, 8
    v_lshl_add_u32 v{AAD}, v{TID}, 4, s{sTMP}
    s_waitcnt lgkmcnt(0)
    s_barrier
    @estamp 2
    ds_read_b64 v[24:25], v{QAD} offset:{FLG}
    s_cmp_ge_u32 s{sWV}, 10
    s_cbranch_scc1 K_NOCV
    ds_read_b128 v[36:39], v23 offset:{AGG}
    ds_read_b128 v[40:43], v23 offset:{AGG+256}
    ds_read_b128 v[44:47], v23 offset:{AGG+512}
    ds_read_b128 v[48:51], v23 offset:{AGG+768}
    """)
    for q in range(4):
        a(f"s_waitcnt lgkmcnt({3-q})\nv_cvt_f32_f64 v{28+2*q}, v[{36+4*q}:{37+4*q}]\nv_cvt_f32_f64 v{29+2*q}, v[{38+4*q}:{39+4*q}]")
    for q in range(4):
        a(f"v_cvt_pk_bf16_f32 v{28+q}, v{28+2*q}, v{29+2*q}")
    a(f"""
    ds_write_b128 v{SAD}, v[28:31] offset:{AB}
K_NOCV:
    s_waitcnt lgkmcnt(0)
    v_or_b32 v27, v24, v25
    v_cmp_ne_u32 vcc, 0, v27
    s_cbranch_vccnz K_SLOW
K_FINAL:
    @estamp 3
    s_barrier
    @estamp 4
    s_cmp_ge_u32 s{sWV}, 10
    s_cbranch_scc1 {"K_OUT2" if AMP else "K_END2"}
    s_cmp_ge_u32 s{sWV}, 8
    s_cbranch_scc1 K_OUT
    """)
    for rt in range(3): xreads(a, 16 + 16*rt, AB + rt*4096)
    a(f"s_mov_b32 s{sTMP+2}, {f2u(-LOG2E/(1+float(OPT.get('eps', 0)))):#x}\ns_waitcnt vmcnt(0)")
    def fm(rt):
        a(f"s_waitcnt lgkmcnt({8 - 4*rt if not (rt == 2 and 'noeil' not in OPT) else 1})")
        mm16(a, UA[rt], 16 + 16*rt, 0, swap=True, first=False)
    def silu(rt):
        u = UA[rt]; t = 64
        a(f"""
        v_exp_f32 v{t}, v{u}
        v_exp_f32 v{t+1}, v{u+1}
        v_exp_f32 v{t+2}, v{u+2}
        v_exp_f32 v{t+3}, v{u+3}
        v_pk_fma_f32 v[{t}:{t+1}], v[{t}:{t+1}], s[{sTMP+2}:{sTMP+3}], s[{sTMP+2}:{sTMP+3}] op_sel_hi:[1,0,0]
        v_pk_fma_f32 v[{t+2}:{t+3}], v[{t+2}:{t+3}], s[{sTMP+2}:{sTMP+3}], s[{sTMP+2}:{sTMP+3}] op_sel_hi:[1,0,0]
        v_rcp_f32 v{t}, v{t}
        v_rcp_f32 v{t+1}, v{t+1}
        v_rcp_f32 v{t+2}, v{t+2}
        v_rcp_f32 v{t+3}, v{t+3}
        v_pk_mul_f32 v[{t}:{t+1}], v[{t}:{t+1}], v[{u}:{u+1}]
        v_pk_mul_f32 v[{t+2}:{t+3}], v[{t+2}:{t+3}], v[{u+2}:{u+3}]
        v_cvt_pk_bf16_f32 v{16+2*rt}, v{t}, v{t+1}
        v_cvt_pk_bf16_f32 v{17+2*rt}, v{t+2}, v{t+3}
        ds_write_b64 v{EAD}, v[{16+2*rt}:{17+2*rt}] offset:{OUTS + rt*4096}
        """)
    if "noeil" not in OPT:
        fm(0); fm(1); a("s_nop 2"); silu(0); fm(2); silu(1); silu(2)
    else:
        fm(0); fm(1); fm(2); a("@estamp 5"); silu(0); silu(1); silu(2)
    a(f"""
K_OUT:
    s_waitcnt lgkmcnt(0)
    @estamp 6
    s_barrier
    @estamp 7
    ds_read_b128 v[32:35], v{SAD} offset:{OUTS}
    s_waitcnt lgkmcnt(0)
    buffer_store_dwordx4 v[32:35], v{AAD}, s[{sO}:{sO+3}], 0 offen {OPT.get('ost', 'sc1').replace('+', ' ')}
    @estamp 8
    {"s_branch K_END2" if AMP else ""}
K_OUT2:
    {"s_barrier" if AMP else ""}
K_END2:
    """)
    if "xcctest" in OPT:
        a(f"""
        s_lshl_b32 s3, s22, 8
        s_or_b32 s3, s3, s{sG}
        s_cmp_lg_u32 s3, 100
        s_cbranch_scc1 XT_DONE
        v_mov_b32 v30, {WS_REC + 15360 + 101*REC_STRIDE}
        global_load_dword v31, v30, s[{sWS}:{sWS+1}] sc1
        s_waitcnt vmcnt(0)
        v_readfirstlane_b32 s81, v31
        s_cmp_eq_u32 s81, s80
        s_cbranch_scc{OPT["xcctest"]} XT_DONE
        s_memrealtime s[76:77]
        s_waitcnt lgkmcnt(0)
XT_LOOP:
        s_memrealtime s[78:79]
        s_waitcnt lgkmcnt(0)
        s_sub_u32 s78, s78, s76
        s_cmp_lt_u32 s78, 2000
        s_cbranch_scc1 XT_LOOP
XT_DONE:
        """)
    a(f"""
    @store
K_END:
    s_endpgm
K_SHRINK:
    ; too many slots for one pass: redo this pass with at most 4 records per cell
    s_mov_b32 s{sR}, 4
    s_mov_b32 s{sTMP+1}, 0
    s_branch K_REINIT
K_SLOW:
    v_readfirstlane_b32 s{sTMP}, v24
    v_readfirstlane_b32 s{sTMP+1}, v25
    s_cmp_eq_u32 s{sMODE}, 0
    s_cselect_b32 s{sTMP+1}, s{sTMP+1}, 0
    s_or_b32 s{sTMP}, s{sTMP}, s{sTMP+1}
    s_cbranch_scc0 K_FINAL
    s_add_u32 s{sR0}, s{sR0}, s{sR}
K_REINIT:
    s_waitcnt vmcnt(0) lgkmcnt(0)
    s_barrier
    v_lshrrev_b32 v9, 1, v{L8}
    v_mov_b32 v10, 0
    ds_write_b32 v9, v10 offset:{CNT}
    ds_write_b32 v9, v10 offset:{TF}
    ds_write_b32 v10, v10 offset:{FLG}
    ds_write_b32 v10, v10 offset:{FLG+4}
    v_lshlrev_b32 v9, 2, v{TID}
    v_mov_b32 v10, -1
    ds_write_b32 v9, v10 offset:{SS}
    s_cmp_eq_u32 s{sTMP+1}, 0
    s_cbranch_scc1 K_SLOW1
    s_mov_b32 s{sMODE}, 1
    s_mov_b32 s{sR0}, 0
    s_mov_b32 s{sR}, {4*RMAX}
    v_lshlrev_b32 v9, 4, v{TID}
    v_add_u32 v9, {AGG}, v9
    v_mov_b64 v[32:33], 0
    v_mov_b64 v[34:35], 0
    ds_write_b128 v9, v[32:35]
    ds_write_b128 v9, v[32:35] offset:16384
    ds_write_b128 v9, v[32:35] offset:24576
K_SLOW1:
    s_waitcnt lgkmcnt(0)
    s_barrier
    s_branch K_PASS
    """)
    mainloop(a, True)
    return a.text()

HEADER = """; Kernarg layout for this problem (72 bytes, ptrs only, base s[0:1]):
;   offset  24: d_in[3] dst  shape=(320000,) dtype=int32
; One workgroup per CU (256 workgroups, 39-40 destination nodes each).
; Phase A: bin 1280 edges by destination group, P = -log2e * x @ W1 for the own rows, publish both (write-through,
;          tagged granules).  Phase B: collect the group's edges, list them per node, evaluate the messages
"""
def main():
    s = ("; opts " + " ".join(sys.argv[2:]) + "\n" if len(sys.argv) > 2 else "") + HEADER
    s += f"; @launch grid=({NG},1,1) block=(1024,1,1) lds={LDS_BYTES}\n"
    s += '.amdgcn_target "amdgcn-amd-amdhsa--gfx950"\n.text\n'
    s += f".globl {KN}\n.p2align 8\n.type {KN},@function\n" + kernel()
    s += f""".section .rodata,"a"
.p2align 6
.amdhsa_kernel {KN}
  .amdhsa_next_free_vgpr {NVGPR}
  .amdhsa_next_free_sgpr {100 if (DIAG or AMP or 'xcctest' in OPT) else NSGPR}
  .amdhsa_accum_offset {NVGPR}
  .amdhsa_group_segment_fixed_size 0
  .amdhsa_kernarg_size 72
  .amdhsa_user_sgpr_count 2
  .amdhsa_user_sgpr_kernarg_segment_ptr 1
  .amdhsa_system_sgpr_workgroup_id_x 1
.end_amdhsa_kernel
"""
    open(sys.argv[1], "w").write(s)
main()
```

```python
import sys, struct

N = 10000; E = 320000
NG = 256
EPW = 1280
NPROD = E // EPW
REC_STRIDE = EPW * 12 + 128
WS_P = 4096
WS_REC = 0x280000
WS_T = 0x650000
WS_F = 0x6D0000
WS_DIAG = 0xB00000
LOG2E = 1.4426950408889634
def f2u(x): return struct.unpack("<I", struct.pack("<f", x))[0]
NLOG2E = f2u(-LOG2E)
OPT = dict(a.split("=") if "=" in a else (a, "1") for a in sys.argv[2:])
DIAG = "diag" in OPT
AMP = int(OPT.get("amp", 0))
PF1 = int(OPT.get("pf1", 0)); PF2 = int(OPT.get("pf2", 14))
W2E = "w2late" not in OPT
RND = "rnd" in OPT
PSTG = "pstage" in OPT
Q1 = "q1" in OPT
KN = "gather_scatter__mpnn_edge_mlp__graph_kernel"
SPINMAX = 400000
RMAX = 5
CAP = 2048

CNT = 0; FLG = 256; NON = 272
TF = 512
SS = 1024
XS = SS + CAP*2 + 256
QS = XS + 42*256
ES = QS + 40*512
AGG = ES + CAP*8
RING = AGG + 40*1024
LDS_BYTES = RING + 65536
W1S = RING; W2S = RING + 32768; WTS = RING
STAGE = QS; HIST = ES; OFFS = ES + 1024; W3S = ES + 2048
AB = XS; OUTS = QS; PST = ES + 3072
D0, D1, QR, VU, BP, AE, ID, W3 = 0, 16, 32, 48, 64, 72, 76, 84
VA, NUM, DEN, NANC, MAXC = 88, 90, 92, 94, 96
EAD, SAD, PAD, IX0, IX1, QAD, AAD, L8, NCNT, TID, TW, RAD, E8 = 97, 98, 99, 100, 102, 104, 105, 106, 107, 108, 109, 110, 111
G2 = 81; LQ = 83; L4 = 82
XA, WA = 88, 92
VG, VJ, VL = 126, 127, 97
UA = (112, 116, 120)
NVGPR = 128
sREC = 4; sR0 = 8; sMODE = 9; sLEFT = 10; sCNT = 11
sK1 = 12; sK2 = 13; sNL = 14; sNC = 15; sNQ = 16; sR = 17; sNZ2 = 18
sWS = 20; sWV = 22; sSTART = 23; sX = 24; sP = 24; sO = 28
sNZ = 32; sM0 = 34; sM1 = 36; sONE = 38; sRING = 40; sRHO = 42; sW = 40
sTMP = 44; sEV = 48; sG = 49; sEX = 50; sCM = 52
sNON = 60; sEND = 62; sSPIN = 63; sP2 = 64; sANY = 68; sT0 = 70; sVT = 71
NSGPR = 72
LDF = OPT.get('ldf', '').replace('+', ' ')
SE = int(OPT.get('se', 1))
SRCE = f"""    global_load_dwordx4 v[16:19], v8, s[8:9] {LDF}
    global_load_dwordx4 v[20:23], v9, s[6:7] {LDF}
    global_load_dwordx4 v[24:27], v9, s[6:7] offset:16 {LDF}
"""
WSOFF = f"s_add_u32 s{sWS}, s{sWS}, {int(OPT['wso']) << 20}\ns_addc_u32 s{sWS+1}, s{sWS+1}, 0" if 'wso' in OPT else ''
STF = OPT.get('stf', 'sc1').replace('+', ' ')
sST = 72
sPART = 68; sOLD = 69; sCVT = 48

class Asm:
    def __init__(self): self.l = []
    def __call__(self, s):
        for ln in s.strip("\n").split("\n"):
            ln = ln.strip()
            if ln.startswith("@estamp"):
                if "epi" not in OPT: continue
                ln = ln.replace("@estamp", "@stamp")
            elif ln.startswith("@stamp") and "epi" in OPT and int(ln.split()[1]) in range(2, 10): continue
            if ln.startswith("@amp"):
                i = int(ln.split()[1])
                A0 = int(OPT.get("amp0", 0))
                if AMP == 99 and i == 0: self('s_memrealtime s[74:75]\ns_waitcnt lgkmcnt(0)'); continue
                if AMP and i in (A0, AMP): self(f"s_memrealtime s[{72+2*(i != A0)}:{73+2*(i != A0)}]\ns_waitcnt lgkmcnt(0)")
                continue
            if ln.startswith("@store") and AMP:
                self("""s_waitcnt vmcnt(0)
                @amp 9
                s_lshl_b32 s3, s22, 8
                """ + ("" if "ampall" in OPT else "s_or_b32 s3, s3, s2") + """
                s_cmp_lg_u32 s3, """ + OPT.get("ampwg", "0") + """
                s_cbranch_scc1 AMP_DONE
                """ + ("s_sub_u32 s72, s60, 200" if "ampnon" in OPT else "") + """
                s_sub_u32 s74, s74, s72
                s_lshl_b32 s74, s74, 4
                s_memrealtime s[76:77]
                s_waitcnt lgkmcnt(0)
AMP_LOOP:
                s_memrealtime s[78:79]
                s_waitcnt lgkmcnt(0)
                s_sub_u32 s78, s78, s76
                s_cmp_lt_u32 s78, s74
                s_cbranch_scc1 AMP_LOOP
AMP_DONE:""")
                continue
            if ln.startswith("@stamp"):
                i = int(ln.split()[1])
                if DIAG and ("st" not in OPT or i in (0, 13) or str(i) in OPT["st"].split(",")): self(f"{'s_memrealtime' if OPT['diag'] == 'rt' or i in (0, 13) else 's_memtime'} s[{sST+2*i}:{sST+2*i+1}]\ns_waitcnt lgkmcnt(0)")
                continue
            if ln.startswith("@store"):
                if DIAG:
                    self(f"s_waitcnt vmcnt(0)\n@stamp 12\n@stamp 13\ns_load_dwordx2 s[{sWS}:{sWS+1}], s[0:1], 64\ns_waitcnt lgkmcnt(0)\ns_mov_b64 exec, -1\nv_lshrrev_b32 v1, 6, v{TID}\ns_lshl_b32 s3, s2, 4\nv_add_u32 v1, s3, v1\nv_lshlrev_b32 v1, 6, v1\nv_add_u32 v1, {WS_DIAG}, v1")
                    for i in range(14): self(f"v_mov_b32 v2, s{sST+2*i}\nglobal_store_dword v1, v2, s[{sWS}:{sWS+1}] offset:{4*i}")
                continue
            if ln: self.l.append(ln if ln.endswith(":") else "    " + ln)
    def text(self): return "\n".join(self.l) + "\n"

def dpp_scan(a, v, fill=()):
    fill = list(fill)
    def pad():
        k = 0
        while k < 2 and fill: a(fill.pop(0)); k += 1
        if k < 2: a(f"s_nop {1-k}")
    for sh in (1, 2, 4, 8):
        pad(); a(f"v_add_u32_dpp v{v}, v{v}, v{v} row_shr:{sh} row_mask:0xf bank_mask:0xf bound_ctrl:0")
    pad(); a(f"v_add_u32_dpp v{v}, v{v}, v{v} row_bcast:15 row_mask:0xa bank_mask:0xf")
    pad(); a(f"v_add_u32_dpp v{v}, v{v}, v{v} row_bcast:31 row_mask:0xc bank_mask:0xf")
    for x in fill: a(x)

def mainloop(a, safe):
    L = "S" if safe else "F"
    FRESH = not safe and "nofresh" not in OPT
    RESET = f"v_mov_b64 v[{DEN}:{DEN+1}], s[{sONE}:{sONE+1}]\nv_mov_b64 v[{NUM}:{NUM+1}], 0"
    def ex(d, k): a(f"v_exp_f32 v{VU+k}, v{d+k}")
    def pk(d, e):
        t = d + 2*e; u = VU + 2*e
        if not safe:
            a(f"""
            v_pk_fma_f32 v[{VA}:{VA+1}], v[{t}:{t+1}], v[{DEN}:{DEN+1}], v[{NUM}:{NUM+1}]
            v_pk_fma_f32 v[{DEN}:{DEN+1}], v[{DEN}:{DEN+1}], v[{u}:{u+1}], v[{DEN}:{DEN+1}]
            v_pk_fma_f32 v[{NUM}:{NUM+1}], v[{NUM}:{NUM+1}], v[{u}:{u+1}], v[{VA}:{VA+1}]
            """)
        else:
            a(f"""
            v_pk_add_f32 v[{u}:{u+1}], v[{u}:{u+1}], 1.0 op_sel_hi:[1,0]
            v_rcp_f32 v{u}, v{u}
            v_rcp_f32 v{u+1}, v{u+1}
            s_nop 0
            v_pk_fma_f32 v[{NUM}:{NUM+1}], v[{t}:{t+1}], v[{u}:{u+1}], v[{NUM}:{NUM+1}]
            """)
    def flush(b):
        if not safe:
            a(f"""
            v_rcp_f32 v{VU}, v{DEN}
            v_rcp_f32 v{VU+1}, v{DEN+1}
            v_max3_f32 v{MAXC}, v{MAXC}, v{DEN}, v{DEN+1}
            v_pk_mul_f32 v[{VA}:{VA+1}], v[{NUM}:{NUM+1}], v[{VU}:{VU+1}]
            {"" if FRESH else RESET}
            s_cmp_lg_u32 s{sPART}, 0
            s_cbranch_scc1 {L}_FA{b}
            s_mul_i32 s{sTMP}, s{sOLD}, 272
            v_cvt_pk_bf16_f32 v{VU}, v{VA}, v{VA+1}
            v_xor_b32 v{AAD}, s{sTMP}, v{L4}
            v_pk_fma_f32 v[{NANC}:{NANC+1}], v[{VA}:{VA+1}], 0, v[{NANC}:{NANC+1}] op_sel_hi:[1,0,1]
            ds_write_b32 v{AAD}, v{VU} offset:{AB}
{L}_FB{b}:
            """)
        else:
            a(f"""
            v_lshl_add_u32 v{AAD}, s{sOLD}, 10, v{L8}
            v_cvt_f64_f32 v[{VU}:{VU+1}], v{NUM}
            v_cvt_f64_f32 v[{VU+2}:{VU+3}], v{NUM+1}
            v_mov_b64 v[{NUM}:{NUM+1}], 0
            ds_add_f64 v{AAD}, v[{VU}:{VU+1}] offset:{AGG}
            ds_add_f64 v{AAD}, v[{VU+2}:{VU+3}] offset:{AGG+512}
            """)
    def flush_part(b):
        a(f"""
{L}_FA{b}:
        v_lshl_add_u32 v{AAD}, s{sOLD}, 10, v{L8}
        v_cvt_f64_f32 v[{VU}:{VU+1}], v{VA}
        v_cvt_f64_f32 v[{VU+2}:{VU+3}], v{VA+1}
        v_pk_fma_f32 v[{NANC}:{NANC+1}], v[{VA}:{VA+1}], 0, v[{NANC}:{NANC+1}] op_sel_hi:[1,0,1]
        ds_add_f64 v{AAD}, v[{VU}:{VU+1}] offset:{AGG}
        ds_add_f64 v{AAD}, v[{VU+2}:{VU+3}] offset:{AGG+512}
        s_bitcmp1_b32 s{sNL}, s{sLEFT}
        s_cselect_b32 s{sCVT}, s{sOLD}, s{sCVT}
        s_mov_b32 s{sPART}, 0
        s_branch {L}_FB{b}
        """)
    def preads(slot):
        if "p2" in OPT:
            for q in range(2):
                a(f"ds_read2st64_b64 v[{BP+4*q}:{BP+4*q+3}], v{PAD} offset0:{slot*4 + 2*q} offset1:{slot*4 + 2*q + 1}")
            return
        for q in range(4):
            a(f"ds_read_b64 v[{BP+2*q}:{BP+2*q+1}], v{PAD} offset:{slot*2048 + q*512}")
    def ereads(v, off):
        a(f"""
        s_mov_b64 exec, s[{sM0}:{sM0+1}]
        ds_read_b64 v[{AE}:{AE+1}], v{v} offset:{ES+off}
        s_mov_b64 exec, s[{sM1}:{sM1+1}]
        ds_read_b64 v[{AE+2}:{AE+3}], v{v} offset:{ES+off}
        s_mov_b64 exec, -1
        """)
    def idxreads(v, off):
        a(f"ds_read_u16 v{IX0}, v{v} offset:{SS+off}\nds_read_u16 v{IX1}, v{v} offset:{SS+off+8}")
    def qreads(node):
        if "q2" in OPT:
            a(f"v_lshl_add_u32 v{QAD}, s{node}, 9, v{LQ}")
            for q in range(4):
                a(f"ds_read2_b64 v[{QR+4*q}:{QR+4*q+3}], v{QAD} offset0:0 offset1:0")
            return
        a(f"v_lshl_add_u32 v{QAD}, s{node}, 9, v{L8}")
        for q in range(8):
            a(f"ds_read_b64 v[{QR+2*q}:{QR+2*q+1}], v{QAD} offset:{QS}")
    def mfma(d, k):
        if k == 0: a(f"v_mfma_f32_32x32x16_bf16 v[{d}:{d+15}], v[{AE}:{AE+3}], v[{W3}:{W3+3}], v[{QR}:{QR+15}]")
        else: a(f"v_smfmac_f32_32x32x32_bf16 v[{d}:{d+15}], v[{ID}:{ID+3}], v[{BP}:{BP+7}], v{ID+4}")
    def dma(slot, f1="s_nop 0"):
        if "x_nodma" in OPT: a(f1); return
        a(f"""
        s_mov_b32 m0, s{sRING+slot}
        {f1}
        buffer_load_dwordx4 v[{IX0}:{IX0+1}], s[{sP}:{sP+3}], 0 idxen offen sc1 lds
        buffer_load_dwordx4 v[{IX1}:{IX1+1}], s[{sP2}:{sP2+3}], 0 idxen offen offset:1024 sc1 lds
        """)
    def qnext():
        a(f"s_bitset0_b64 s[{sNZ}:{sNZ+1}], s{sNQ}\ns_ff1_i32_b64 s{sNQ}, s[{sNZ}:{sNZ+1}]")
        qreads(sNQ)
    def tree(name, labels):
        a(f"""
{name}:
        s_cmp_gt_u32 s{sCNT}, 3
        s_cbranch_scc1 {name}_H
        s_cmp_eq_u32 s{sCNT}, 2
        s_cbranch_scc1 {labels[2]}
        s_cmp_eq_u32 s{sCNT}, 3
        s_cbranch_scc1 {labels[3]}
        s_branch {labels[1]}
{name}_H:
        s_cmp_gt_u32 s{sCNT}, 5
        s_cbranch_scc1 {name}_HH
        s_cmp_eq_u32 s{sCNT}, 4
        s_cbranch_scc1 {labels[4]}
        s_branch {labels[5]}
{name}_HH:
        s_cmp_eq_u32 s{sCNT}, 6
        s_cbranch_scc1 {labels[6]}
        s_branch {labels[7]}
        """)
    EV = int(OPT.get("ev", 5))
    a(f"{L}_START:")
    idxreads(SAD, 0)
    a(f"""
    ds_read_u8 v10, v9 offset:{TF}
    {"" if FRESH else RESET}
    s_waitcnt lgkmcnt(1)
    """)
    dma(0)
    idxreads(SAD, 16)
    qreads(sNQ)
    a(f"""
    s_waitcnt lgkmcnt({4 if "q2" in OPT else 8})
    v_cmp_ne_u32 vcc, 0, v10
    """)
    dma(1)
    idxreads(SAD, 32)
    ereads(EAD, 0)
    a(f"""
    ; sK1: one bit per tile from the top (ends a node, or one of the last tiles), then a marker; sK2: tile + 2 starts a node;
    s_brev_b32 s{sK1}, vcc_lo
    s_lshl_b32 s{sK2}, s{sK1}, 1
    s_sub_u32 s{sTMP}, 32, s{sLEFT}
    s_lshr_b32 s{sNL}, s{sK1}, s{sTMP}
    s_lshl_b32 s{sK1}, s{sNL}, s{sTMP}
    s_sub_u32 s{sTMP}, s{sTMP}, 1
    s_lshl_b32 s{sTMP}, {((7 | (1 << EV)) << 1) | 1}, s{sTMP}
    s_or_b32 s{sK1}, s{sK1}, s{sTMP}
    s_waitcnt vmcnt(2)
    """)
    preads(0)
    a("s_waitcnt lgkmcnt(0)\n@stamp 9")
    dma(0)
    for k in range(2): mfma(D0, k)
    ereads(EAD, 64)
    idxreads(SAD, 48)
    a(f"s_bitcmp0_b32 vcc_lo, 0\ns_cbranch_scc1 {L}_S4")
    qnext()
    a(f"{L}_S4:\ns_waitcnt vmcnt(2)")
    preads(1)
    a(f"s_branch {L}_{'G' if FRESH else 'L'}0B")
    K2 = f"s_add_u32 s{sK2}, s{sK2}, s{sK2}"
    def xphase(b, lab):
        dc, dn = (D0, D1) if b == 0 else (D1, D0)
        mfma(dn, 0)
        for e in range(7, -1, -1):
            if lab and e < 7: a(f"{L}_X{b}_{e+1}:")
            if e == 2: mfma(dn, 1)
            ex(dc, 2*e+1); ex(dc, 2*e)
    def mid(b, tag):
        a("s_waitcnt vmcnt(2)")
        preads(b)
        if tag == "E": a(K2)
        a(f"s_cbranch_scc1 {L}_ADV{tag}{b}\n{L}_RB{tag}{b}:")
        ereads(EAD, 64*(b+2))
        idxreads(SAD, 16*(b+4))
    def yphase(b, lab):
        dc = D0 if b == 0 else D1
        for e in range(7, -1, -1):
            if lab and e < 7: a(f"{L}_Y{b}_{e+1}:")
            pk(dc, e)
    for b in range(2):
        dc, dn = (D0, D1) if b == 0 else (D1, D0)
        a(f"""
{L}_TAIL{b}:
        s_setprio 2
        s_cmp_ge_u32 s{sLEFT}, 3
        s_cbranch_scc1 {L}_TD{b}
        s_setprio 1
        s_cmp_lg_u32 s{sLEFT}, 0
        s_cbranch_scc1 {L}_T1{b}
        s_setprio 0
{L}_T1{b}:
        s_waitcnt vmcnt(0)
        s_branch {L}_T2{b}
{L}_TD{b}:
        """)
        dma(1-b)
        a(f"""
{L}_T2{b}:
        s_bitcmp1_b32 s{sNL}, s{sLEFT}
        s_cbranch_scc1 {L}_ENDN{b}
        s_cmp_eq_u32 s{sLEFT}, 0
        s_cbranch_scc1 {L}_RE{b}
        {K2}
        s_branch {L}_XB{b}
{L}_RE{b}:
        s_mov_b32 s{sCNT}, 8
        s_mov_b32 s{sOLD}, s{sNC}
        s_mov_b32 s{sPART}, 1
        s_branch {L}_X{b}_8
        """)
        if not safe: flush_part(b)
        for tag in "PE":
            a(f"{L}_ADV{tag}{b}:")
            qnext()
            a(f"s_branch {L}_RB{tag}{b}")
        tree(f"{L}_XD{b}", {c: f"{L}_XS{b}_{c}" for c in range(1, 8)})
        for c in range(1, 8):
            a(f"{L}_XS{b}_{c}:")
            mfma(dn, 0)
            if c <= 2: mfma(dn, 1)
            a(f"s_branch {L}_X{b}_{c}")
        tree(f"{L}_YD{b}", {c: f"{L}_Y{b}_{c}" for c in range(1, 8)})
        a(f"""
{L}_SP{b}:
        s_ff1_i32_b32 s{sLEFT}, s{sK1}
        s_sub_u32 s{sLEFT}, 31, s{sLEFT}
        s_cmp_le_u32 s{sLEFT}, {EV}
        s_cbranch_scc1 {L}_TAIL{b}
        """)
        dma(1-b)
        a(f"""
{L}_ENDN{b}:
        v_readlane_b32 s{sCNT}, v{NCNT}, s{sNC}
        s_mov_b32 s{sOLD}, s{sNC}
        s_bitset0_b64 s[{sNZ2}:{sNZ2+1}], s{sNC}
        s_ff1_i32_b64 s{sNC}, s[{sNZ2}:{sNZ2+1}]
        s_cmp_lt_u32 s{sCNT}, 8
        s_cbranch_scc1 {L}_XD{b}
{L}_X{b}_8:
        """)
        xphase(b, True)
        mid(b, "E")
        a(f"s_cmp_lt_u32 s{sCNT}, 8\ns_cbranch_scc1 {L}_YD{b}")
        yphase(b, True)
        flush(b)
        a(f"""
        s_cmp_eq_u32 s{sLEFT}, 0
        s_cbranch_scc1 K_MAINDONE
        s_branch {L}_{"G" if FRESH else "L"}{1-b}
        """)
        if FRESH:
            a(f"{L}_GS{b}:\n{RESET}\ns_branch {L}_SP{b}")
            a(f"{L}_ADVG{b}:")
            qnext()
            a(f"s_branch {L}_RBG{b}")
            a(f"{L}_G{b}:")
            if b == 0:
                a(f"v_add_u32 v{EAD}, 128, v{EAD}\nv_add_u32 v{SAD}, 32, v{SAD}\n{L}_G0B:")
            a(f"""
            s_add_u32 s{sK1}, s{sK1}, s{sK1}
            s_waitcnt lgkmcnt(0)
            s_cbranch_scc1 {L}_GS{b}
            """)
            dma(1-b, K2)
            xphase(b, False)
            mid(b, "G")
            t7 = dc + 14; t6 = dc + 12; u7 = VU + 14; u6 = VU + 12
            a(f"""
            v_pk_add_f32 v[{DEN}:{DEN+1}], v[{u7}:{u7+1}], 1.0 op_sel_hi:[1,0]
            v_pk_fma_f32 v[{VA}:{VA+1}], v[{t6}:{t6+1}], v[{DEN}:{DEN+1}], v[{t7}:{t7+1}]
            v_pk_fma_f32 v[{DEN}:{DEN+1}], v[{DEN}:{DEN+1}], v[{u6}:{u6+1}], v[{DEN}:{DEN+1}]
            v_pk_fma_f32 v[{NUM}:{NUM+1}], v[{t7}:{t7+1}], v[{u6}:{u6+1}], v[{VA}:{VA+1}]
            s_branch {L}_YP{b}_6
            """)
    a(f".p2align {OPT.get('al', 6)}")
    if "alo" in OPT: a("\n".join(["s_nop 0"]*int(OPT["alo"])))
    for b in range(2):
        a(f"{L}_L{b}:")
        if b == 0:
            a(f"v_add_u32 v{EAD}, 128, v{EAD}\nv_add_u32 v{SAD}, 32, v{SAD}\n{L}_L0B:")
        a(f"""
        s_add_u32 s{sK1}, s{sK1}, s{sK1}
        s_waitcnt lgkmcnt(0)
        s_cbranch_scc1 {L}_SP{b}
        """)
        dma(1-b, K2)
        a(f"{L}_XB{b}:")
        xphase(b, False)
        mid(b, "P")
        for e in range(7, -1, -1):
            if e == 5: a(f"{L}_YP{b}_6:")
            pk(D0 if b == 0 else D1, e)
        if b == 1: a(f"s_branch {L}_L0")

def consts(a):
    a(f"""
    ; m = l&31, hk = l>>5, e = 2*(m>>3) + ((m>>1)&1), H = (m>>2)&1, c0 = m&1
    v_lshlrev_b32 v{L8}, 3, v{VL}
    {f'v_add_u32 v{LQ}, {QS}, v{L8}' if 'q2' in OPT else ''}
    v_lshlrev_b32 v{L4}, 2, v{VL}
    v_lshlrev_b32 v{IX0+1}, 4, v{VJ}
    v_lshlrev_b32 v{IX1+1}, 4, v{VJ}
    v_lshlrev_b32 v{G2}, 1, v{VG}
    v_lshrrev_b32 v1, 5, v{VL}
    v_bfe_u32 v2, v{VL}, 2, 1
    v_and_b32 v3, 1, v{VL}
    v_bfe_u32 v4, v{VL}, 1, 1
    v_bfe_u32 v5, v{VL}, 3, 2
    v_lshl_add_u32 v5, v5, 1, v4
    v_mov_b64 v[{AE}:{AE+1}], 0
    v_mov_b64 v[{AE+2}:{AE+3}], 0
    v_xor_b32 v{ID}, v1, v2
    v_lshl_add_u32 v{ID}, v{ID}, 1, v3
    v_cmp_eq_u32 s[{sM0}:{sM0+1}], 0, v{ID}
    v_cmp_eq_u32 s[{sM1}:{sM1+1}], 1, v{ID}
    v_lshlrev_b32 v{E8}, 3, v5
    ; sparse selector: lane half e>>2, register q = 2*(e&1) + ((e>>1)&1) holds 1.0, index (2*H + c0) << 4*q
    v_lshrrev_b32 v{ID+1}, 2, v5
    v_cmp_eq_u32 vcc, v1, v{ID+1}
    v_bfe_u32 v5, v5, 1, 1
    v_lshl_add_u32 v5, v4, 1, v5
    v_lshl_add_u32 v2, v2, 1, v3
    v_cndmask_b32 v3, 0, v{W3}, vcc
    v_lshlrev_b32 v4, 2, v5
    v_lshlrev_b32 v{ID+4}, v4, v2
    """)
    for q in range(4): a(f"v_cmp_eq_u32 s[{sCM + 2*q}:{sCM + 2*q + 1}], {q}, v5")
    a(f"v_lshrrev_b32 v1, 2, v{TID}\nv_and_b32 v2, 3, v{TID}")
    for q in range(4): a(f"v_cndmask_b32 v{ID+q}, 0, v3, s[{sCM + 2*q}:{sCM + 2*q + 1}]")
    a(f"""
    s_movk_i32 s3, {REC_STRIDE}
    v_mul_u32_u24 v3, s3, v1
    v_mad_u32_u24 v{RAD}, v2, 12, v3
    s_lshl_b32 s3, s{sG}, 3
    s_add_u32 s3, s3, {WS_T}
    v_lshl_add_u32 v{AAD}, v1, 11, s3
    v_xor_b32 v1, v{VG}, v{VJ}
    v_lshlrev_b32 v1, 4, v1
    v_lshl_add_u32 v{XA}, v{VJ}, 8, v1
    v_xor_b32 v{XA+1}, 64, v{XA}
    v_xor_b32 v{XA+2}, 128, v{XA}
    v_xor_b32 v{XA+3}, 192, v{XA}
    v_bfe_u32 v1, v{VL}, 2, 2
    v_and_b32 v2, 1, v{VG}
    v_lshl_or_b32 v2, v2, 2, v1
    v_bfe_u32 v3, v{VL}, 1, 1
    v_lshl_or_b32 v2, v2, 1, v3
    v_and_b32 v3, 1, v{VL}
    v_lshl_or_b32 v2, v2, 1, v3
    v_lshl_add_u32 v1, v{VG}, 3, v1
    v_lshlrev_b32 v1, 8, v1
    v_lshl_add_u32 v{WA}, v2, 3, v1
    """)
def tagbase(a, v):
    a(f"""
    v_readfirstlane_b32 s{sNON}, v{v}
    v_readfirstlane_b32 s{sNON+1}, v{v+1}
    """)
    if RND:
        a(f"""
        s_bfe_u32 s3, s{sNON}, 0x50004
        s_lshl_b32 s3, s3, 23
        s_add_u32 s{sWS}, s{sWS}, s3
        s_addc_u32 s{sWS+1}, s{sWS+1}, 0
        """)
def wlane(a, v):
    a(f"""
    v_lshlrev_b32 v{v}, 1, v{VG}
    v_xor_b32 v{v}, v{v}, v{VJ}
    v_lshlrev_b32 v{v}, 4, v{v}
    v_lshl_add_u32 v{v}, v{VG}, 8, v{v}
    v_xor_b32 v{v+1}, 128, v{v}
    """)
def wdma(a, soff, v):
    a(f"""
    buffer_load_dwordx4 v{v}, s[{sW}:{sW+3}], s{soff} offen lds
    buffer_load_dwordx4 v{v}, s[{sW}:{sW+3}], s{soff} offen offset:1024 lds
    buffer_load_dwordx4 v{v+1}, s[{sW}:{sW+3}], s{soff} offen offset:2048 lds
    buffer_load_dwordx4 v{v+1}, s[{sW}:{sW+3}], s{soff} offen offset:3072 lds
    """)
def mm16(a, d, x, w, swap=False, first=True):
    for ks in range(4):
        c = "0" if (ks == 0 and first) else f"v[{d}:{d+3}]"
        xa = f"v[{x+4*ks}:{x+4*ks+3}]"; wa = f"v[{w+4*ks}:{w+4*ks+3}]"
        a(f"v_mfma_f32_16x16x32_bf16 v[{d}:{d+3}], {wa if swap else xa}, {xa if swap else wa}, {c}")
def xreads(a, dst, off):
    for ks in range(4): a(f"ds_read_b128 v[{dst+4*ks}:{dst+4*ks+3}], v{XA+ks} offset:{off}")

def kernel():
    a = Asm()
    a(f"""
{KN}:
    @stamp 0
    @stamp 1
    @amp 0
    s_load_dwordx16 s[4:19], s[0:1], 0
    s_load_dwordx2 s[{sWS}:{sWS+1}], s[0:1], 64
    s_cmp_ge_u32 s2, {NG}
    s_cbranch_scc1 K_END
    v_mov_b32 v{TID}, v0
    v_lshrrev_b32 v1, 6, v0
    v_and_b32 v{VL}, 63, v0
    v_readfirstlane_b32 s{sWV}, v1
    s_and_b32 s{sG}, s2, 7
    s_lshl_b32 s{sG}, s{sG}, 5
    s_lshr_b32 s3, s2, 3
    s_or_b32 s{sG}, s{sG}, s3
    v_lshrrev_b32 v{VG}, 4, v{VL}
    v_and_b32 v{VJ}, 15, v{VL}
    s_mul_i32 s3, s{sG}, 625
    s_add_u32 s{sSTART}, s3, 15
    s_lshr_b32 s{sSTART}, s{sSTART}, 4
    s_add_u32 s{sEND}, s3, {625+15}
    s_lshr_b32 s{sEND}, s{sEND}, 4
    v_mov_b32 v{W3}, 0x3f80
    s_mov_b32 s{sW+2}, 65536
    s_mov_b32 s{sW+3}, 0x20000
    s_cmp_ge_u32 s{sWV}, 5
    s_cbranch_scc1 A_N1
    ; ================= waves 0..4: bin the edges [1280*g, 1280*g+1280) by destination group (4 edges per thread)
    s_cmp_lt_u32 s{sG}, {NPROD}
    s_cselect_b32 s3, s{sG}, 0
    s_cselect_b64 s[{sEX}:{sEX+1}], -1, 0
    s_mul_i32 s3, s3, {EPW*4}
    v_lshl_add_u32 v8, v0, 4, s3
    v_lshlrev_b32 v9, 1, v8
    s_lshl_b32 s{sTMP}, s{sWV}, 3
    v_add_u32 v1, s{sTMP}, v{VG}
    v_xor_b32 v2, v1, v{VJ}
    v_and_b32 v2, 15, v2
    v_lshlrev_b32 v2, 4, v2
    v_lshl_add_u32 v2, v1, 8, v2
    v_xor_b32 v3, 64, v2
    s_lshl_b32 s{sTMP}, s{sWV}, 11
    s_add_u32 m0, s{sTMP}, {XS}
    s_lshl_b32 s{sTMP+2}, s{sSTART}, 8
    s_mov_b32 s{sX+2}, {N*256}
    s_mov_b32 s{sX+3}, 0x20000
    s_waitcnt lgkmcnt(0)
    global_load_dwordx4 v[12:15], v8, s[10:11] {LDF}
    {WSOFF}
    s_mov_b32 s{sX}, s4
    s_and_b32 s{sX+1}, s5, 0xffff
    buffer_load_dwordx4 v2, s[{sX}:{sX+3}], s{sTMP+2} offen {LDF} lds
    buffer_load_dwordx4 v3, s[{sX}:{sX+3}], s{sTMP+2} offen offset:1024 {LDF} lds
    {SRCE if SE == 0 else ""}
    s_barrier
    {SRCE if SE == 1 else ""}
    """)
    consts(a)
    a(f"""
    s_movk_i32 s{sTMP}, 625
    s_mov_b32 s{sTMP+1}, 214749
    v_mov_b32 v1, 1
    v_lshlrev_b32 v10, 4, v{VL}
    s_waitcnt vmcnt({2 if SE == 2 else 5})
    {SRCE if SE == 2 else ""}
    s_mov_b64 exec, s[{sEX}:{sEX+1}]
    """)
    for i in range(4):
        a(f"v_mul_u32_u24 v{28+i}, s{sTMP+1}, v{12+i}")
    for i in range(4):
        a(f"v_lshrrev_b32 v{28+i}, 23, v{28+i}\nv_lshlrev_b32 v{32+i}, 2, v{28+i}\nds_add_rtn_u32 v{36+i}, v{32+i}, v1 offset:{HIST}")
    a(f"""
    s_mov_b64 exec, -1
    s_waitcnt lgkmcnt(0)
    @stamp 2
    s_barrier
    ds_read_b128 v[40:43], v10 offset:{HIST}
    """)
    for i in range(4):
        a(f"v_mad_u32_u24 v{28+i}, v{28+i}, s{sTMP}, 15\nv_lshrrev_b32 v{28+i}, 4, v{28+i}\nv_sub_u32 v{28+i}, v{12+i}, v{28+i}")
    a(f"""
    s_waitcnt lgkmcnt(0)
    v_add_u32 v44, v40, v41
    v_add3_u32 v44, v44, v42, v43
    v_mov_b32 v45, v44
    """)
    dpp_scan(a, 45)
    a(f"""
    v_sub_u32 v48, v45, v44
    v_add_u32 v49, v48, v40
    v_add_u32 v50, v49, v41
    v_add_u32 v51, v50, v42
    ds_write_b128 v10, v[48:51] offset:{OFFS}
    s_mov_b32 s{sTMP}, {STAGE}
    s_mov_b64 exec, s[{sEX}:{sEX+1}]
    s_waitcnt lgkmcnt(0)
    """)
    for i in range(4):
        a(f"ds_read_b32 v{40+i}, v{32+i} offset:{OFFS}")
    a(f"""
    s_waitcnt vmcnt(3)
    @stamp 3
    s_barrier
    @amp 1
    s_waitcnt lgkmcnt(0)
    """)
    for i in range(4):
        a(f"v_add_u32 v{40+i}, v{40+i}, v{36+i}\nv_mad_u32_u24 v{40+i}, v{40+i}, 12, s{sTMP}")
    a("s_waitcnt vmcnt(2)")
    for i in range(4):
        a(f"v_lshl_or_b32 v{16+i}, v{28+i}, 18, v{16+i}\nds_write_b32 v{40+i}, v{16+i} offset:8")
    for i in range(4):
        if i % 2 == 0: a(f"s_waitcnt vmcnt({1 - i//2})")
        a(f"ds_write2_b32 v{40+i}, v{20+2*i}, v{21+2*i} offset0:0 offset1:1")
    a(f"""
    s_mov_b64 exec, -1
    s_branch A_JOIN
A_N1:
    ; ================= waves 5..15
    v_mov_b32 v8, 0
    """)
    wlane(a, 6)
    a(f"""
    s_sub_u32 s{sVT}, s{sWV}, 5
    s_lshl_b32 s{sVT}, s{sVT}, 12
    s_add_u32 m0, s{sVT}, {W1S}
    s_waitcnt lgkmcnt(0)
    s_mov_b32 s{sW}, s12
    s_and_b32 s{sW+1}, s13, 0xffff
    {WSOFF}
    s_cmp_ge_u32 s{sWV}, 13
    s_cbranch_scc1 A_N13
    """)
    if "w1late" not in OPT: wdma(a, sVT, 6)
    a(f"""
    s_cmp_ge_u32 s{sWV}, 10
    s_cbranch_scc1 A_N10
    ; waves 5..8: histogram = 0; wave 9: node counters and flags = 0
    s_mov_b32 s{sTMP+1}, {HIST - 320*4}
    s_cmp_eq_u32 s{sWV}, 9
    s_cselect_b32 s{sTMP+1}, {CNT - 576*4}, s{sTMP+1}
    v_lshl_add_u32 v3, v0, 2, s{sTMP+1}
    ds_write_b32 v3, v8
    ds_write_b32 v8, v8 offset:{FLG}
    ds_write_b32 v8, v8 offset:{FLG+4}
    s_cbranch_scc0 A_B0
    ds_write_b32 v3, v8 offset:{TF}
    s_branch A_B0
A_N13:
    s_cmp_eq_u32 s{sWV}, 15
    s_cbranch_scc1 A_N15
    s_and_b32 s{sTMP}, s{sG}, 31
    s_lshl_b32 s{sTMP}, s{sTMP}, 10
    s_cmp_eq_u32 s{sWV}, 13
    s_cselect_b32 s{sTMP+1}, 32768, 0
    s_cselect_b32 s{sTMP+2}, s12, s14
    s_cselect_b32 s{sTMP+3}, s13, s15
    s_add_u32 s{sTMP}, s{sTMP}, s{sTMP+1}
    v_lshl_add_u32 v3, v{VL}, 7, s{sTMP}
    s_mov_b64 exec, 0xff
    {"" if "notouch" in OPT else f"global_load_dword v40, v3, s[{sTMP+2}:{sTMP+3}]"}
    s_mov_b64 exec, -1
    s_cmp_eq_u32 s{sWV}, 14
    s_cbranch_scc0 A_N10
    """)
    if "bulk" in OPT:
        nl, fl = OPT["bulk"].split(":"); nl = int(nl); fl = fl.replace("+", " ").replace("-", "")
        a(f"""
        s_mul_i32 s3, s{sG}, {REC_STRIDE}
        s_add_u32 s3, s3, {WS_REC}
        v_lshl_add_u32 v3, v{VL}, 4, s3
        v_mov_b64 v[4:5], 0
        v_mov_b64 v[6:7], 0
        s_waitcnt vmcnt(0)
        s_sleep {OPT.get("bsl", 0)}
        @amp 12
        """)
        for k in range(nl): a(f"global_store_dwordx4 v3, v[4:7], s[{sWS}:{sWS+1}] {fl}\nv_add_u32 v3, 1024, v3")
        a(f"""
        s_waitcnt vmcnt(0)
        @amp 13
        """)
    if "probe" in OPT:
        kind, nl = OPT["probe"].split(":"); nl = int(nl)
        a(f"""
        s_mul_i32 s3, s{sG}, {REC_STRIDE}
        s_add_u32 s3, s3, {WS_REC}
        v_lshl_add_u32 v3, v{VL}, 7, s3
        v_mov_b32 v4, 0
        s_waitcnt vmcnt(0)
        @amp 12
        s_mov_b64 exec, {(1 << nl) - 1 if nl < 32 else -1}
        {"global_store_dword v3, v4" if kind == "st" else "global_load_dword v4, v3"}, s[{sWS}:{sWS+1}] sc1
        s_mov_b64 exec, -1
        s_waitcnt vmcnt(0)
        @amp 13
        """)
    if "tlb" in OPT:
        a(f"""
        v_mov_b32 v3, 0
        s_mov_b32 s3, {WS_REC - 128}
        v_writelane_b32 v3, s3, 1
        s_mov_b32 s3, {WS_REC + 200*REC_STRIDE - 128}
        v_writelane_b32 v3, s3, 2
        s_mov_b32 s3, {WS_F + 65536}
        v_writelane_b32 v3, s3, 3
        s_lshl_b32 s3, s{sSTART}, 8
        v_mov_b32 v4, s3
        v_mov_b32 v5, 128
        s_mov_b64 exec, 15
        global_load_dword v41, v3, s[{sWS}:{sWS+1}]
        s_mov_b64 exec, 1
        global_load_dword v42, v4, s[16:17]
        global_load_dword v43, v5, s[18:19]
        s_mov_b64 exec, -1
        """)
    a(f"""
    s_branch A_B0
A_N10:
    ; waves 10..13: src list = 0xffff (index out of range)
    v_lshlrev_b32 v3, 4, v0
    v_add_u32 v3, {SS - 640*16}, v3
    v_mov_b64 v[12:13], -1
    v_mov_b64 v[14:15], -1
    ds_write_b128 v3, v[12:15]
    s_branch A_B0
A_N15:
    """)
    a(f"""
    s_cmp_lg_u32 s2, 0
    s_cbranch_scc1 A_B0
    s_memrealtime s[{sNON}:{sNON+1}]
    s_waitcnt lgkmcnt(0)
    s_or_b32 s{sNON}, s{sNON}, 1
    v_mov_b32 v10, s{sNON}
    v_mov_b32 v11, s{sNON+1}
    s_mov_b64 exec, 1
    global_store_dwordx2 v8, v[10:11], s[18:19] sc1
    s_mov_b64 exec, -1
A_B0:
    s_cmp_eq_u32 s{sWV}, 15
    s_cbranch_scc1 A_B1
    v_lshlrev_b32 v3, 4, v0
    v_add_u32 v3, {AGG - 320*16}, v3
    v_mov_b64 v[12:13], 0
    v_mov_b64 v[14:15], 0
    ds_write_b128 v3, v[12:15]
    ds_write_b128 v3, v[12:15] offset:10240
    ds_write_b128 v3, v[12:15] offset:20480
    ds_write_b128 v3, v[12:15] offset:30720
A_B1:
    """)
    if "x_prew" in OPT:
        op = "global_atomic_or" if OPT["x_prew"] == "atom" else "global_store_dword"
        a(f"""
        s_sub_u32 s3, s{sWV}, 11
        s_cmp_gt_u32 s3, 3
        s_cbranch_scc1 X_NOPW
        s_mul_i32 s{sTMP}, s{sG}, {REC_STRIDE}
        s_add_u32 s{sTMP}, s{sTMP}, {WS_REC}
        s_lshl_b32 s{sTMP+1}, s{sSTART}, 8
        s_add_u32 s{sTMP+1}, s{sTMP+1}, {WS_P}
        s_cmp_lt_u32 s3, 2
        s_cselect_b32 s{sTMP}, s{sTMP}, s{sTMP+1}
        s_cselect_b32 s{sTMP+1}, 42, 0
        s_add_u32 s{sTMP+1}, s{sTMP+1}, 77
        s_and_b32 s3, s3, 1
        s_lshl_b32 s3, s3, 6
        v_add_u32 v3, s3, v{VL}
        v_cmp_ge_u32 vcc, s{sTMP+1}, v3
        v_lshl_add_u32 v3, v3, 7, s{sTMP}
        v_mov_b32 v4, 0
        s_mov_b64 exec, vcc
        {op} v3, v4, s[{sWS}:{sWS+1}] sc1
        s_mov_b64 exec, -1
        s_cmp_eq_u32 s{sWV}, 14
        s_cbranch_scc0 X_NOPW
        s_lshl_b32 s{sTMP}, s{sG}, 11
        s_add_u32 s{sTMP}, s{sTMP}, {WS_T}
        v_lshl_add_u32 v3, v{VL}, 7, s{sTMP}
        s_mov_b64 exec, 0xffff
        {op} v3, v4, s[{sWS}:{sWS+1}] offset:4 sc1
        s_mov_b64 exec, -1
X_NOPW:
        """)
    a(f"""
    s_waitcnt lgkmcnt(4)
    s_barrier
    """)
    if "w1late" in OPT:
        a(f"s_cmp_ge_u32 s{sWV}, 13\ns_cbranch_scc1 A_NOW1")
        wdma(a, sVT, 6)
        a("A_NOW1:")
    a(f"""
    """)
    def w15():
        a(f"""
    s_cmp_eq_u32 s{sWV}, 15
    s_cbranch_scc0 A_NO15
    v_bfe_u32 v9, v{VL}, 4, 1
    v_lshlrev_b32 v9, 6, v9
    v_lshrrev_b32 v10, 5, v{VL}
    v_lshl_add_u32 v9, v10, 5, v9
    v_add_u32 v9, v9, v{VJ}
    v_lshlrev_b32 v9, 1, v9
    v_add_u32 v8, {256*256}, v9
        """)
        for s in range(8):
            a(f"global_load_ushort v{16 + s}, v8, s[12:13] offset:{(s & 3)*256 + (s >> 2)*32}")
        a(f"""
    s_cmp_ge_u32 s{sG}, 32
    s_cbranch_scc1 A_NO15
    s_and_b32 s{sTMP}, s{sG}, 1
    s_lshl_b32 s{sTMP}, s{sTMP}, 6
    s_bfe_u32 s{sTMP+1}, s{sG}, 0x10001
    s_lshl_b32 s{sTMP+1}, s{sTMP+1}, 5
    s_add_u32 s{sTMP}, s{sTMP}, s{sTMP+1}
    s_add_u32 s{sTMP}, s{sTMP}, 128
    s_lshl_b32 s{sTMP}, s{sTMP}, 8
    s_bfe_u32 s{sTMP+1}, s{sG}, 0x30002
    s_lshl_b32 s{sTMP+1}, s{sTMP+1}, 5
    s_add_u32 s{sTMP}, s{sTMP}, s{sTMP+1}
    v_lshlrev_b32 v8, 10, v{VG}
    v_lshl_add_u32 v8, v{VJ}, 1, v8
    v_add_u32 v8, s{sTMP}, v8
    v_add_u32 v9, {16*256}, v8
        """)
        for s in range(8):
            a(f"global_load_ushort v{24 + s}, v{8 + (s & 1)}, s[14:15] offset:{(s >> 1)*256}")
        a(f"""
A_NO15:
        """)
    if "w3late" not in OPT: w15()
    a(f"""
    """)
    consts(a)
    a("s_barrier")
    if "w3late" in OPT: w15()
    a(f"""
    s_cmp_ge_u32 s{sWV}, 11
    s_cbranch_scc1 A_G11
    ; ================= waves 5..10: P = -log2e * x @ W1 for this group's rows (rt = (wv-5)>>1, hf = (wv-5)&1)
    s_sub_u32 s3, s{sWV}, 5
    s_and_b32 s{sTMP+1}, s3, 1
    s_lshr_b32 s{sTMP}, s3, 1
    s_lshl_b32 s{sTMP+2}, s{sTMP}, 12
    v_add_u32 v0, s{sTMP+2}, v{XA}
    v_add_u32 v1, s{sTMP+2}, v{XA+1}
    v_add_u32 v2, s{sTMP+2}, v{XA+2}
    v_add_u32 v3, s{sTMP+2}, v{XA+3}
    s_lshl_b32 s{sTMP+1}, s{sTMP+1}, 7
    v_xor_b32 v4, s{sTMP+1}, v{WA}
    v_add_u32 v4, {W1S}, v4
    v_xor_b32 v5, 32, v4
    v_xor_b32 v6, 64, v4
    v_xor_b32 v7, 96, v4
    s_add_u32 s{sTMP+2}, s{sTMP+2}, s{sTMP+1}
    """)
    if not PSTG:
        a(f"""
        s_lshl_b32 s{sTMP+1}, s{sSTART}, 8
        s_add_u32 s{sTMP+2}, s{sTMP+2}, s{sTMP+1}
        s_add_u32 s{sTMP+2}, s{sTMP+2}, {WS_P}
        """)
    a(f"""
    v_lshlrev_b32 v{NANC}, 10, v{VG}
    v_lshl_add_u32 v{NANC}, v{VJ}, 3, v{NANC}
    v_add_u32 v{NANC}, s{sTMP+2}, v{NANC}
    s_mov_b32 s{sTMP+2}, {NLOG2E:#x}
    s_waitcnt vmcnt(0)
    @stamp 3
    s_barrier
    s_setprio 1
    """)
    def breads(ks):
        b = 8 + 16*(ks & 1)
        a(f"ds_read_b128 v[{40+4*ks}:{43+4*ks}], v{ks} offset:{XS}")
        for i in range(4):
            for h in range(2):
                a(f"ds_read_b64_tr_b16 v[{b+4*i+2*h}:{b+4*i+2*h+1}], v{4+i} offset:{8192*ks + 1024*h}")
    breads(0)
    for ks in range(4):
        if ks < 3:
            breads(ks+1)
            a("s_waitcnt lgkmcnt(9)")
        else:
            a("s_waitcnt lgkmcnt(0)")
        b = 8 + 16*(ks & 1)
        for i in range(4):
            c = "0" if ks == 0 else f"v[{56+4*i}:{59+4*i}]"
            a(f"v_mfma_f32_16x16x32_bf16 v[{56+4*i}:{59+4*i}], v[{40+4*ks}:{43+4*ks}], v[{b+4*i}:{b+4*i+3}], {c}")
    a(f"""
    s_cmp_eq_u32 s{sTMP}, 2
    s_cselect_b32 exec_hi, 0, -1
    s_nop 5
    """)
    a("@amp 14")
    for q in range(8):
        a(f"v_pk_mul_f32 v[{56+2*q}:{57+2*q}], v[{56+2*q}:{57+2*q}], s[{sTMP+2}:{sTMP+3}] op_sel_hi:[1,0]")
    for r in range(4):
        a(f"v_cvt_pk_bf16_f32 v{8+2*r}, v{56+r}, v{60+r}\nv_cvt_pk_bf16_f32 v{9+2*r}, v{64+r}, v{68+r}")
        if PSTG: a(f"ds_write_b64 v{NANC}, v[{8+2*r}:{9+2*r}] offset:{PST + 256*r}")
        else: a(f"global_store_dwordx2 v{NANC}, v[{8+2*r}:{9+2*r}], s[{sWS}:{sWS+1}] offset:{256*r} {STF}")
    a(f"""
    s_mov_b64 exec, -1
    {"s_waitcnt vmcnt(0)" if AMP == 15 else ""}
    @amp 15
    s_setprio 0
    s_branch A_JOIN
A_G11:
    s_cmp_eq_u32 s{sWV}, 15
    s_cbranch_scc1 A_G15
    """)
    if "x_prew" in OPT: a(f"s_cmp_ge_u32 s{sWV}, 13\ns_cbranch_scc1 X_NW\ns_waitcnt vmcnt(1)\nX_NW:")
    a(f"""
    s_waitcnt vmcnt({63 if "x_prew" in OPT else 0})
    @stamp 3
    s_barrier
    """)
    if "cpf" in OPT:
        k = int(OPT["cpf"])
        a(f"""
        s_cmp_lg_u32 s{sWV}, 13
        s_cbranch_scc1 A_JOIN
        s_getpc_b64 s[{sTMP+2}:{sTMP+3}]
A_PC:
        s_and_b32 s{sTMP}, s{sG}, 31
        s_mul_i32 s{sTMP}, s{sTMP}, {k*128}
        v_lshl_add_u32 v3, v{VL}, 7, s{sTMP}
        v_min_u32 v3, S_START-A_PC-4, v3
        s_mov_b64 exec, {(1 << k) - 1}
        global_load_dword v40, v3, s[{sTMP+2}:{sTMP+3}]
        s_mov_b64 exec, -1
        """)
    a(f"""
    s_branch A_JOIN
A_G15:
    @stamp 3
    s_barrier
    v_mov_b32 v8, 0
    s_mov_b32 s{sSPIN}, {SPINMAX}
A_NLOOP:
    global_load_dwordx2 v[10:11], v8, s[18:19] sc1
    s_sub_u32 s{sSPIN}, s{sSPIN}, 1
    s_cbranch_scc1 A_NDONE
    s_waitcnt vmcnt(0)
    v_cmp_eq_u32 vcc, 0, v10
    s_cbranch_vccnz A_NLOOP
A_NDONE:
    s_waitcnt vmcnt(0)
    v_lshlrev_b32 v11, 22, v11
    ds_write_b64 v8, v[10:11] offset:{NON}
    s_mov_b32 s{sTMP}, {NLOG2E:#x}
    """)
    tagbase(a, 10)
    if "tlb2" in OPT:
        a(f"""
        v_mov_b32 v3, 0
        s_mov_b32 s3, {WS_REC - 128}
        v_writelane_b32 v3, s3, 1
        s_mov_b32 s3, {WS_REC + 200*REC_STRIDE - 128}
        v_writelane_b32 v3, s3, 2
        s_mov_b32 s3, {WS_F + 65536}
        v_writelane_b32 v3, s3, 3
        s_mov_b64 exec, 15
        global_load_dword v41, v3, s[{sWS}:{sWS+1}]
        s_mov_b64 exec, -1
        """)
    for s in range(8):
        a(f"v_lshlrev_b32 v{16+s}, 16, v{16+s}\nv_mul_f32 v{16+s}, s{sTMP}, v{16+s}")
    for q in range(4):
        a(f"v_cvt_pk_bf16_f32 v{12+q}, v{16+2*q}, v{17+2*q}")
    a(f"""
    v_lshlrev_b32 v8, 4, v{VL}
    ds_write_b128 v8, v[12:15] offset:{W3S}
    s_cmp_ge_u32 s{sG}, 32
    s_cbranch_scc1 A_JOIN
    """)
    for q in range(4):
        a(f"v_lshl_or_b32 v{32+q}, v{25+2*q}, 16, v{24+2*q}")
    a(f"""
    s_lshl_b32 s{sTMP}, s{sG}, 10
    s_add_u32 s{sTMP}, s{sTMP}, {WS_F}
    v_add_u32 v8, s{sTMP}, v8
    global_store_dwordx4 v8, v[32:35], s[{sWS}:{sWS+1}] sc1
A_JOIN:
    v_lshlrev_b32 v0, 4, v{TID}
    s_mul_i32 s{sTMP}, s{sG}, {REC_STRIDE}
    s_add_u32 s{sTMP}, s{sTMP}, {WS_REC}
    v_add_u32 v1, s{sTMP}, v0
    s_lshl_b32 s{sTMP}, s{sSTART}, 8
    s_add_u32 s{sTMP}, s{sTMP}, {WS_P - 384*16}
    v_add_u32 v2, s{sTMP}, v0
    v_mov_b32 v3, 0
    s_waitcnt lgkmcnt(0)
    @stamp 4
    s_barrier
    @amp 2
    """)
    if PSTG:
        a(f"""
        s_cmp_eq_u32 s{sWV}, 15
        s_cbranch_scc1 A_C0
        ds_read_b64 v[{SAD}:{SAD+1}], v3 offset:{NON}
        ds_read_b128 v[4:7], v0 offset:{STAGE}
        s_cmp_lt_u32 s{sWV}, 6
        s_cbranch_scc1 A_C1
        ds_read_b128 v[8:11], v0 offset:{PST - 384*16}
        s_waitcnt lgkmcnt(2)
        """)
        tagbase(a, SAD)
        a(f"""
        s_waitcnt lgkmcnt(1)
        global_store_dwordx4 v1, v[4:7], s[{sWS}:{sWS+1}] {STF}
        s_branch A_C0B
A_C0:
        ds_read_b128 v[8:11], v0 offset:{PST - 384*16}
A_C0B:
        s_waitcnt lgkmcnt(0)
        global_store_dwordx4 v2, v[8:11], s[{sWS}:{sWS+1}] {STF}
        s_branch A_C2
A_C1:
        s_waitcnt lgkmcnt(1)
        """)
        tagbase(a, SAD)
        a(f"""
        s_waitcnt lgkmcnt(0)
        global_store_dwordx4 v1, v[4:7], s[{sWS}:{sWS+1}] {STF}
        """)
    else:
        a(f"""
        s_cmp_eq_u32 s{sWV}, 15
        s_cbranch_scc1 A_C2
        ds_read_b128 v[4:7], v0 offset:{STAGE}
        ds_read_b64 v[{SAD}:{SAD+1}], v3 offset:{NON}
        s_waitcnt lgkmcnt(1)
        global_store_dwordx4 v1, v[4:7], s[{sWS}:{sWS+1}] {STF}
        s_waitcnt lgkmcnt(0)
        """)
        tagbase(a, SAD)
    a(f"""
A_C2:
    {"s_waitcnt vmcnt(0)" if AMP == 17 else ""}
    @amp 16
    @amp 17
    """)
    if "xcctest" in OPT:
        a(f"""
        s_getreg_b32 s80, hwreg(HW_REG_XCC_ID)
        s_and_b32 s80, s80, 15
        s_mul_i32 s3, s{sG}, {REC_STRIDE}
        s_add_u32 s3, s3, {WS_REC + 15360}
        v_mov_b32 v30, s3
        v_mov_b32 v31, s80
        global_store_dword v30, v31, s[{sWS}:{sWS+1}] sc1
        """)
    a(f"""
    v_lshlrev_b32 v3, 4, v{VL}
    ds_read_b128 v[{W3}:{W3+3}], v3 offset:{W3S}
    """)
    wlane(a, 14)
    a(f"""
    s_lshl_b32 s{sTMP}, s{sWV}, 12
    s_add_u32 s{sTMP+1}, s{sTMP}, 32768
    s_sub_u32 s{sTMP+2}, s{sTMP}, 32768
    s_add_u32 s{sTMP+3}, s{sTMP}, {W2S}
    s_add_u32 s{sTMP}, s{sTMP+2}, {WTS}
    s_cmp_lt_u32 s{sWV}, 8
    s_cselect_b32 s{sW}, s12, s14
    s_cselect_b32 s{sW+1}, s13, s15
    s_cselect_b32 s{sVT}, s{sTMP+1}, s{sTMP+2}
    s_cselect_b32 m0, s{sTMP+3}, s{sTMP}
    s_and_b32 s{sW+1}, s{sW+1}, 0xffff
    """)
    if W2E:
        a("s_barrier" if "wboth" in OPT else f"s_barrier\ns_cmp_ge_u32 s{sWV}, 8\ns_cbranch_scc1 A_C4")
        a("@amp 18")
        wdma(a, sVT, 14)
        a("A_C4:")
        a("@amp 19")
    a(f"""
    s_mov_b32 s{sO}, s16
    s_and_b32 s{sO+1}, s17, 0xffff
    s_lshl_b32 s{sO+2}, s{sEND}, 8
    s_mov_b32 s{sO+3}, 0x20000
    s_add_u32 s{sP}, s{sWS}, {WS_P}
    s_addc_u32 s{sP+1}, s{sWS+1}, 0
    s_and_b32 s{sP+1}, s{sP+1}, 0xffff
    s_or_b32 s{sP+1}, s{sP+1}, {256 << 16}
    s_mov_b32 s{sP+2}, {N}
    s_mov_b32 s{sP+3}, 0x20000
    s_sub_u32 s{sP2}, s{sP}, 1024
    s_subb_u32 s{sP2+1}, s{sP+1}, 0
    s_mov_b32 s{sP2+2}, {N}
    s_mov_b32 s{sP2+3}, 0x20000
    s_add_u32 s{sREC}, s{sWS}, {WS_REC}
    s_addc_u32 s{sREC+1}, s{sWS+1}, 0
    s_and_b32 s{sREC+1}, s{sREC+1}, 0xffff
    s_mov_b32 s{sREC+2}, {NG*REC_STRIDE}
    s_mov_b32 s{sREC+3}, 0x20000
    s_mov_b32 s{sMODE}, 0
    s_mov_b32 s{sR0}, 0
    s_mov_b32 s{sR}, {4*RMAX}
    s_mov_b32 s{sONE}, 1.0
    s_mov_b32 s{sONE+1}, 1.0
    s_mov_b32 s{sSPIN}, {SPINMAX}
    v_mov_b64 v[{NANC}:{NANC+1}], 0
    v_mov_b32 v{MAXC}, 0
    s_and_b32 s{sTMP}, s{sWV}, 7
    s_lshl_b32 s{sTMP}, s{sTMP}, 5
    v_xor_b32 v{WA}, s{sTMP}, v{WA}
    s_and_b32 s{sTMP}, s{sWV}, 8
    s_lshl_b32 s{sTMP}, s{sTMP}, 12
    s_add_u32 s{sTMP}, s{sTMP}, {WTS}
    v_add_u32 v{WA}, s{sTMP}, v{WA}
    s_bfe_u32 s{sTMP}, s{sWV}, 0x10002
    s_lshl_b32 s{sTMP}, s{sTMP}, 7
    s_bfe_u32 s{sTMP+1}, s{sWV}, 0x10001
    s_lshl_b32 s{sTMP+1}, s{sTMP+1}, 8
    s_add_u32 s{sTMP}, s{sTMP}, s{sTMP+1}
    s_and_b32 s{sTMP+1}, s{sWV}, 1
    s_lshl_b32 s{sTMP+1}, s{sTMP+1}, 2
    s_add_u32 s{sTMP}, s{sTMP}, s{sTMP+1}
    v_lshlrev_b32 v{QAD}, 11, v{VG}
    v_lshl_add_u32 v{QAD}, v{VJ}, 3, v{QAD}
    v_add_u32 v{QAD}, s{sTMP}, v{QAD}
    {f"s_mov_b32 s{sTMP+2}, {NLOG2E:#x}" if Q1 else ""}
    """)
    if PF1:
        a(f"""
        ; this CU's share of the first {512*PF1} lines of P (pulled into the L2 behind the publish; speed only)
        s_and_b32 s{sTMP}, s{sG}, 31
        s_lshl_b32 s{sTMP}, s{sTMP}, 4
        s_add_u32 s{sTMP}, s{sTMP}, s{sWV}
        s_lshr_b32 s{sTMP+1}, s{sG}, 5
        s_lshl_b32 s{sTMP+1}, s{sTMP+1}, 6
        s_add_u32 s{sTMP}, s{sTMP}, s{sTMP+1}
        s_and_b32 s{sTMP}, s{sTMP}, 511
        s_mul_i32 s{sTMP}, s{sTMP}, {PF1*128}
        s_add_u32 s{sTMP}, s{sTMP}, {WS_P}
        v_lshl_add_u32 v3, v{L8}, 4, s{sTMP}
        """)
    a(f"""
    s_cmp_lt_u32 s{sWV}, 14
    s_cbranch_scc1 A_NOT
    ; waves 14, 15: granules (start | count<<11 | tag<<22, tag) of groups 2t, 2t+1 (t = tid - 896)
    v_lshlrev_b32 v8, 3, v{TID}
    ds_read_b64 v[10:11], v8 offset:{OFFS - 896*8}
    ds_read_b64 v[12:13], v8 offset:{HIST - 896*8}
    s_lshl_b32 s{sTMP}, s{sG}, 11
    s_add_u32 s{sTMP}, s{sTMP}, {WS_T - 896*16}
    v_lshl_add_u32 v8, v8, 1, s{sTMP}
    v_mov_b32 v5, s{sNON}
    v_mov_b32 v7, s{sNON}
    s_waitcnt lgkmcnt(0)
    v_lshl_or_b32 v4, v12, 11, v10
    v_lshl_or_b32 v6, v13, 11, v11
    v_or_b32 v4, s{sNON+1}, v4
    v_or_b32 v6, s{sNON+1}, v6
    s_waitcnt vmcnt({4 if "wboth" in OPT else 0})
    @stamp 5
    @amp 10
    s_barrier
    global_store_dwordx4 v8, v[4:7], s[{sWS}:{sWS+1}] sc1
    s_branch A_PUB
A_NOT:
    """)
    if "wboth" in OPT: a("s_waitcnt vmcnt(4)")
    elif W2E: a(f"s_cmp_lt_u32 s{sWV}, 8\ns_cbranch_scc1 A_WT4\ns_waitcnt vmcnt(0)\nA_WT4:\ns_waitcnt vmcnt(4)")
    else: a("s_waitcnt vmcnt(0)")
    a(f"""
    @stamp 5
    @amp 10
    s_barrier
    {"s_waitcnt vmcnt(0)" if Q1 else ""}
A_PUB:
    s_barrier
    @amp 3
    """)
    if W2E: a(f"s_cmp_lt_u32 s{sWV}, 8\ns_cbranch_scc1 A_NOWT")
    if "wboth" not in OPT: wdma(a, sVT, 14)
    if W2E and not Q1: a("A_NOWT:")
    if PF1:
        a(f"""
        s_barrier
        s_mov_b64 exec, {(1 << PF1) - 1:#x}
        global_load_dword v2, v3, s[{sWS}:{sWS+1}] sc1
        s_mov_b64 exec, -1
        """)
    if Q1:
        a(f"s_branch A_QD\nA_NOWT:\nv_add_u32 v2, 32768, v{WA}")
        for ks in range(4):
            for h in range(2):
                a(f"ds_read_b64_tr_b16 v[{16+4*ks+2*h}:{17+4*ks+2*h}], v2 offset:{8192*ks + 1024*h}")
        xreads(a, 32, XS); xreads(a, 48, XS + 4096); xreads(a, 0, XS + 8192)
        for rt in range(3):
            a(f"s_waitcnt lgkmcnt({8 - 4*rt})")
            mm16(a, UA[rt], (32, 48, 0)[rt], 16)
        for rt in range(3):
            for q in range(2):
                u = UA[rt] + 2*q
                a(f"v_pk_mul_f32 v[{u}:{u+1}], v[{u}:{u+1}], s[{sTMP+2}:{sTMP+3}] op_sel_hi:[1,0]")
            if rt == 2: a("s_mov_b32 exec_hi, 0")
            for r in range(4):
                a(f"ds_write_b32 v{QAD}, v{UA[rt]+r} offset:{QS + rt*8192 + r*512}")
        a("s_mov_b64 exec, -1")
    a(f"""
A_QD:
    s_lshl_b32 s{sRING}, s{sWV}, 12
    s_add_u32 s{sRING}, s{sRING}, {RING}
    s_add_u32 s{sRING+1}, s{sRING}, 2048
    s_and_b32 s{sRHO}, s{sWV}, 3
    s_lshl_b32 s{sRHO}, s{sRHO}, 2
    s_lshr_b32 s{sTMP}, s{sWV}, 2
    s_or_b32 s{sRHO}, s{sRHO}, s{sTMP}
    v_add_u32 v{PAD}, s{sRING}, v{L8}
    s_mov_b32 s3, 1
    v_mov_b32 v19, 0x3fffff
    s_waitcnt vmcnt({1 if PF1 else 0}) lgkmcnt(0)
    @stamp 6
    @amp 11
    {"s_barrier" if "noqbar" not in OPT else ""}
    {f"s_sleep {OPT['sleep0']}" if "sleep0" in OPT else ""}
    @amp 4
    """)
    OPT.setdefault("s2p", "8")
    if "s2p" in OPT and "s2q" not in OPT:
        a(f"""
        s_cmp_lt_u32 s{sWV}, {OPT["s2p"]}
        s_cbranch_scc1 A_P0
        s_setprio 1
A_P0:
        """)
    if "s2q" in OPT:
        a(f"""
        s_cmp_lt_u32 s{sWV}, 4
        s_cbranch_scc1 A_P0
        s_setprio 1
        s_cmp_lt_u32 s{sWV}, 8
        s_cbranch_scc1 A_P0
        s_setprio 2
        s_cmp_lt_u32 s{sWV}, 12
        s_cbranch_scc1 A_P0
        s_setprio 3
A_P0:
        """)
    a(f"""
T_LOOP:
    global_load_dwordx2 v[20:21], v{AAD}, s[{sWS}:{sWS+1}] sc1
    s_sub_u32 s{sSPIN}, s{sSPIN}, 1
    s_cbranch_scc1 T_DONE
    s_waitcnt vmcnt(0)
    v_xor_b32 v{TW}, s{sNON+1}, v20
    v_cmp_ne_u32 vcc, s{sNON}, v21
    v_cmp_lt_u32 s[{sTMP}:{sTMP+1}], v19, v{TW}
    s_or_b64 exec, vcc, s[{sTMP}:{sTMP+1}]
    s_cbranch_scc1 T_LOOP
T_DONE:
    s_mov_b64 exec, -1
    s_waitcnt vmcnt(0)
    @stamp 7
    @amp 5
K_PASS:
    v_and_b32 v9, 0x7ff, v{TW}
    v_bfe_u32 v15, v{TW}, 11, 11
    v_add_u32 v9, s{sR0}, v9
    v_mad_u32_u24 v9, v9, 12, v{RAD}
    v_subrev_u32 v15, s{sR0}, v15
    v_min_i32 v10, s{sR}, v15
    v_and_b32 v11, 3, v{TID}
    v_sub_u32 v10, v10, v11
    """)
    for r in range(RMAX):
        a(f"v_cmp_lt_i32 s[{sEX+2*r}:{sEX+2*r+1}], {4*r}, v10")
    a(f"v_cmp_lt_i32 vcc, s{sR}, v15")
    for r in range(RMAX):
        a(f"s_mov_b64 exec, s[{sEX+2*r}:{sEX+2*r+1}]")
        if r >= 2: a(f"s_cbranch_execz K_LD")
        w = 4 if "rx4" in OPT else 3
        a(f"buffer_load_dwordx{w} v[{32+4*r}:{31+4*r+w}], v9, s[{sREC}:{sREC+3}], 0 offen offset:{48*r} sc1")
    a(f"""
K_LD:
    s_mov_b64 exec, -1
    v_mov_b32 v13, 1
    v_lshrrev_b32 v14, 1, v{L8}
    s_cbranch_vccz K_NOMORE
    v_mov_b32 v9, 0
    ds_write_b32 v9, v13 offset:{FLG}
K_NOMORE:
    """)
    if PF2:
        a(f"""
        s_and_b32 s{sTMP}, s{sG}, 31
        s_lshl_b32 s{sTMP}, s{sTMP}, 4
        s_add_u32 s{sTMP}, s{sTMP}, s{sWV}
        s_lshr_b32 s{sTMP+1}, s{sG}, 5
        s_lshl_b32 s{sTMP+1}, s{sTMP+1}, 6
        s_add_u32 s{sTMP}, s{sTMP}, s{sTMP+1}
        s_and_b32 s{sTMP}, s{sTMP}, 511
        s_mul_i32 s{sTMP}, s{sTMP}, {PF2*128}
        s_add_u32 s{sTMP}, s{sTMP}, {(20000 - 512*PF2)*128 + WS_P}
        v_lshl_add_u32 v12, v{L8}, 4, s{sTMP}
        """)
    a(f"""
    s_cmp_eq_u32 s3, 0
    s_mov_b32 s3, 0
    s_cbranch_scc1 K_NOU
    {f"s_cmp_ge_u32 s{sWV}, 8" if Q1 else ""}
    {"s_cbranch_scc1 K_NOU" if Q1 else ""}
    ; first pass, column tile wv&7: waves 0..7 U = -log2e * (x @ Wupd_top)^T (rows = channels) -> registers,
    """)
    for ks in range(4):
        for h in range(2):
            a(f"ds_read_b64_tr_b16 v[{16+4*ks+2*h}:{17+4*ks+2*h}], v{WA} offset:{8192*ks + 1024*h}")
    XB0 = (52, 56, 60, 64); XB1 = (0, 4, 8, 68)
    def xr(xb, off):
        for ks in range(4): a(f"ds_read_b128 v[{xb[ks]}:{xb[ks]+3}], v{XA+ks} offset:{off}")
    xr(XB0, XS); xr(XB1, XS + 4096)
    a(f"s_mov_b32 s{sTMP+2}, {NLOG2E:#x}\ns_cmp_ge_u32 s{sWV}, 8\ns_cbranch_scc1 K_Q")
    for isq in (0, 1):
        if isq: a("K_Q:")
        def um(rt, xb):
            for ks in range(4):
                c = "0" if ks == 0 else f"v[{UA[rt]}:{UA[rt]+3}]"
                w = f"v[{16+4*ks}:{19+4*ks}]"; x = f"v[{xb[ks]}:{xb[ks]+3}]"
                a(f"v_mfma_f32_16x16x32_bf16 v[{UA[rt]}:{UA[rt]+3}], {x if isq else w}, {w if isq else x}, {c}")
        a("s_waitcnt lgkmcnt(4)")
        um(0, XB0)
        xr(XB0, XS + 8192)
        a("s_waitcnt lgkmcnt(4)")
        um(1, XB1)
        a("s_waitcnt lgkmcnt(0)")
        um(2, XB0)
        if not isq: a("s_nop 3")
        for rt in range(3):
            if rt == 2 and not isq: a("s_nop 1")
            for q in range(2):
                u = UA[rt] + 2*q
                a(f"v_pk_mul_f32 v[{u}:{u+1}], v[{u}:{u+1}], s[{sTMP+2}:{sTMP+3}] op_sel_hi:[1,0]")
            if isq:
                if rt == 2: a("s_mov_b32 exec_hi, 0")
                for r in range(4):
                    a(f"ds_write_b32 v{QAD}, v{UA[rt]+r} offset:{QS + rt*8192 + r*512}")
        a("s_mov_b64 exec, -1" if isq else "s_branch K_NOU")
    a("K_NOU:\ns_waitcnt vmcnt(0)\n@stamp 8\n@amp 6")
    if PF2:
        a(f"s_mov_b64 exec, {(1 << PF2) - 1:#x}\nglobal_load_dword v63, v12, s[{sWS}:{sWS+1}] sc1")
    for r in range(RMAX):
        a(f"s_mov_b64 exec, s[{sEX+2*r}:{sEX+2*r+1}]")
        if r >= 2: a(f"s_cbranch_execz K_HD")
        a(f"v_lshrrev_b32 v{r}, 16, v{34+4*r}\nds_add_rtn_u32 v{35+4*r}, v{r}, v13 offset:{CNT}")
    a(f"""
K_HD:
    s_mov_b64 exec, -1
    s_waitcnt lgkmcnt(0)
    s_barrier
    v_mov_b32 v9, 0
    ds_read_b32 v8, v14 offset:{CNT}
    ds_read_b32 v12, v9 offset:{FLG}
    s_waitcnt lgkmcnt(1)
    v_add_u32 v10, 7, v8
    v_lshrrev_b32 v11, 3, v10
    """)
    dpp_scan(a, 11, [f"v_cmp_ne_u32 s[{sNZ}:{sNZ+1}], 0, v8", f"v_and_b32 v{NCNT}, 7, v10", f"v_and_b32 v10, -8, v10", f"v_add_u32 v{NCNT}, 1, v{NCNT}"])
    a(f"""
    v_lshlrev_b32 v15, 3, v11
    v_sub_u32 v15, v15, v10
    v_readlane_b32 s{sTMP}, v11, 63
    s_waitcnt lgkmcnt(0)
    v_readfirstlane_b32 s{sTMP+1}, v12
    """)
    for r in range(RMAX):
        if r >= 2: a(f"s_cmp_eq_u64 s[{sEX+2*r}:{sEX+2*r+1}], 0\ns_cbranch_scc1 K_BD")
        a(f"ds_bpermute_b32 v{16+r}, v{r}, v15")
    a(f"""
K_BD:
    s_cmp_gt_u32 s{sTMP}, {CAP//8}
    s_cbranch_scc1 K_SHRINK
    s_or_b32 s{sMODE}, s{sMODE}, s{sTMP+1}
    s_mul_i32 s{sT0}, s{sTMP}, s{sRHO}
    s_add_u32 s{sTMP}, s{sT0}, s{sTMP}
    s_lshr_b32 s{sT0}, s{sT0}, 4
    s_lshr_b32 s{sTMP}, s{sTMP}, 4
    v_cmp_ge_u32 vcc, s{sT0}, v11
    s_sub_u32 s{sLEFT}, s{sTMP}, s{sT0}
    s_cmp_lg_u32 s{sWV}, 15
    s_cbranch_scc1 K_NOTF
    s_mov_b64 exec, s[{sNZ}:{sNZ+1}]
    ds_write_b8 v11, v13 offset:{TF - 1}
    s_mov_b64 exec, -1
    s_not_b64 s[{sTMP+2}:{sTMP+3}], s[{sNZ}:{sNZ+1}]
    s_and_b32 s{sTMP+3}, s{sTMP+3}, 0xff
K_ZL:
    s_ff1_i32_b64 s{sTMP}, s[{sTMP+2}:{sTMP+3}]
    s_cmp_lt_i32 s{sTMP}, 0
    s_cbranch_scc1 K_NOTF
    s_bitset0_b64 s[{sTMP+2}:{sTMP+3}], s{sTMP}
    s_mul_i32 s{sTMP}, s{sTMP}, 272
    v_xor_b32 v10, s{sTMP}, v{L4}
    ds_write_b32 v10, v9 offset:{AB}
    s_branch K_ZL
K_NOTF:
    s_waitcnt lgkmcnt(0)
    """)
    for r in range(RMAX):
        a(f"s_mov_b64 exec, s[{sEX+2*r}:{sEX+2*r+1}]")
        if r >= 2: a("s_cbranch_execz K_SD")
        a(f"""
        v_add_lshl_u32 v10, v{16+r}, v{35+4*r}, 3
        v_add_lshl_u32 v9, v{16+r}, v{35+4*r}, 1
        {f"v_and_b32 v{34+4*r}, {OPT['x_mask']}, v{34+4*r}" if "x_mask" in OPT else ""}
        ds_write_b64 v10, v[{32+4*r}:{33+4*r}] offset:{ES}
        ds_write_b16 v9, v{34+4*r} offset:{SS}
        """)
    a(f"""
K_SD:
    s_mov_b64 exec, -1
    s_bcnt1_i32_b64 s{sNC}, vcc
    s_min_u32 s{sNC}, s{sNC}, 61
    s_or_b32 s{sNZ+1}, s{sNZ+1}, 0xc0000000
    s_lshr_b64 s[{sNZ}:{sNZ+1}], s[{sNZ}:{sNZ+1}], s{sNC}
    s_lshl_b64 s[{sNZ}:{sNZ+1}], s[{sNZ}:{sNZ+1}], s{sNC}
    s_mov_b64 s[{sNZ2}:{sNZ2+1}], s[{sNZ}:{sNZ+1}]
    s_mov_b32 s{sNQ}, s{sNC}
    v_readlane_b32 s{sTMP}, v15, s{sNC}
    s_lshl_b32 s{sTMP+1}, s{sT0}, 3
    s_cmp_eq_u32 s{sMODE}, 0
    s_cselect_b32 s{sCVT}, 63, s{sWV}
    s_sub_u32 s{sPART}, s{sTMP+1}, s{sTMP}
    v_lshl_add_u32 v{EAD}, s{sT0}, 6, v{E8}
    v_lshl_add_u32 v{SAD}, s{sT0}, 4, v{G2}
    v_lshrrev_b32 v9, 2, v14
    v_add_u32 v9, s{sT0}, v9
    s_waitcnt lgkmcnt(0)
    s_barrier
    s_setprio 3
    @stamp 10
    @amp 7
    s_cmp_eq_u32 s{sLEFT}, 0
    s_cbranch_scc1 K_MAINDONE
    s_cmp_lg_u32 s{sMODE}, 0
    s_cbranch_scc1 S_START
    """)
    mainloop(a, False)
    a(f"""
K_MAINDONE:
    @stamp 11
    @amp 8
    s_waitcnt vmcnt(0)
    v_mov_b32 v17, {f2u(2.0**120):#x}
    v_add_f32 v18, v{NANC}, v{NANC+1}
    v_cmp_nle_f32 vcc, v{MAXC}, v17
    v_cmp_u_f32 s[{sTMP}:{sTMP+1}], v18, v18
    v_mov_b32 v{QAD}, 0
    s_or_b64 vcc, vcc, s[{sTMP}:{sTMP+1}]
    s_cbranch_scc0 K_NOOVF
    v_mov_b32 v20, 1
    ds_write_b32 v{QAD}, v20 offset:{FLG+4}
K_NOOVF:
    s_cmp_ge_u32 s{sWV}, 8
    s_cbranch_scc1 K_NOFA
    s_lshl_b32 s{sTMP}, s{sWV}, 12
    s_add_u32 s{sTMP}, s{sTMP}, {WS_F}
    v_lshl_add_u32 v{EAD}, v{L8}, 1, s{sTMP}
    """)
    for ks in range(4): a(f"global_load_dwordx4 v[{4*ks}:{4*ks+3}], v{EAD}, s[{sWS}:{sWS+1}] offset:{1024*ks} sc1")
    a(f"""
    v_xor_b32 v16, v{VG}, v{VJ}
    v_lshlrev_b32 v16, 4, v16
    v_lshl_add_u32 v{XA}, v{VJ}, 8, v16
    v_xor_b32 v{XA+1}, 64, v{XA}
    v_xor_b32 v{XA+2}, 128, v{XA}
    v_xor_b32 v{XA+3}, 192, v{XA}
    ; staging address: row*256 + ((2*ct + (g>>1)) ^ j)*16 + (g&1)*8, row = 16*rt + j
    s_lshl_b32 s{sTMP}, s{sWV}, 1
    v_lshrrev_b32 v{EAD}, 1, v{VG}
    v_or_b32 v{EAD}, s{sTMP}, v{EAD}
    v_xor_b32 v{EAD}, v{EAD}, v{VJ}
    v_and_b32 v16, 1, v{VG}
    v_lshl_or_b32 v{EAD}, v{EAD}, 1, v16
    v_lshlrev_b32 v{EAD}, 3, v{EAD}
    v_lshl_add_u32 v{EAD}, v{VJ}, 8, v{EAD}
K_NOFA:
    s_cmp_ge_u32 s{sWV}, 10
    s_cbranch_scc1 K_NOAD
    v_lshrrev_b32 v21, 4, v{TID}
    v_xor_b32 v24, v21, v{VJ}
    v_and_b32 v24, 15, v24
    v_lshlrev_b32 v24, 4, v24
    v_lshl_add_u32 v{SAD}, v21, 8, v24
    s_lshl_b32 s{sTMP}, s{sSTART}, 8
    v_lshl_add_u32 v{AAD}, v{TID}, 4, s{sTMP}
K_NOAD:
    s_waitcnt lgkmcnt(0)
    s_barrier
    @estamp 2
    ds_read_b64 v[24:25], v{QAD} offset:{FLG}
K_CV:
    s_cmp_gt_u32 s{sCVT}, 39
    s_cbranch_scc1 K_NOCV
    v_lshl_add_u32 v23, s{sCVT}, 10, v{L8}
    ds_read_b64 v[26:27], v23 offset:{AGG}
    ds_read_b64 v[28:29], v23 offset:{AGG+512}
    s_mul_i32 s{sTMP}, s{sCVT}, 272
    v_xor_b32 v23, s{sTMP}, v{L4}
    s_cmp_eq_u32 s{sMODE}, 0
    s_cselect_b32 s{sTMP}, 64, 16
    s_add_u32 s{sCVT}, s{sCVT}, s{sTMP}
    s_waitcnt lgkmcnt(0)
    v_cvt_f32_f64 v26, v[26:27]
    v_cvt_f32_f64 v28, v[28:29]
    v_cvt_pk_bf16_f32 v26, v26, v28
    ds_write_b32 v23, v26 offset:{AB}
    s_branch K_CV
K_NOCV:
    s_waitcnt lgkmcnt(0)
    v_or_b32 v27, v24, v25
    v_cmp_ne_u32 vcc, 0, v27
    s_cbranch_vccnz K_SLOW
K_FINAL:
    @estamp 3
    s_barrier
    @estamp 4
    s_cmp_ge_u32 s{sWV}, 10
    s_cbranch_scc1 {"K_OUT2" if AMP else "K_END2"}
    s_cmp_ge_u32 s{sWV}, 8
    s_cbranch_scc1 K_OUT
    """)
    for rt in range(3): xreads(a, 16 + 16*rt, AB + rt*4352)
    a(f"s_mov_b32 s{sTMP+2}, {f2u(-LOG2E/(1+float(OPT.get('eps', 0)))):#x}\ns_waitcnt vmcnt(0)")
    def fm(rt):
        a(f"s_waitcnt lgkmcnt({8 - 4*rt if not (rt == 2 and 'noeil' not in OPT) else 1})")
        mm16(a, UA[rt], 16 + 16*rt, 0, swap=True, first=False)
    def silu(rt):
        u = UA[rt]; t = 64
        a(f"""
        v_exp_f32 v{t}, v{u}
        v_exp_f32 v{t+1}, v{u+1}
        v_exp_f32 v{t+2}, v{u+2}
        v_exp_f32 v{t+3}, v{u+3}
        v_pk_fma_f32 v[{t}:{t+1}], v[{t}:{t+1}], s[{sTMP+2}:{sTMP+3}], s[{sTMP+2}:{sTMP+3}] op_sel_hi:[1,0,0]
        v_pk_fma_f32 v[{t+2}:{t+3}], v[{t+2}:{t+3}], s[{sTMP+2}:{sTMP+3}], s[{sTMP+2}:{sTMP+3}] op_sel_hi:[1,0,0]
        v_rcp_f32 v{t}, v{t}
        v_rcp_f32 v{t+1}, v{t+1}
        v_rcp_f32 v{t+2}, v{t+2}
        v_rcp_f32 v{t+3}, v{t+3}
        v_pk_mul_f32 v[{t}:{t+1}], v[{t}:{t+1}], v[{u}:{u+1}]
        v_pk_mul_f32 v[{t+2}:{t+3}], v[{t+2}:{t+3}], v[{u+2}:{u+3}]
        v_cvt_pk_bf16_f32 v{16+2*rt}, v{t}, v{t+1}
        v_cvt_pk_bf16_f32 v{17+2*rt}, v{t+2}, v{t+3}
        ds_write_b64 v{EAD}, v[{16+2*rt}:{17+2*rt}] offset:{OUTS + rt*4096}
        """)
    if "noeil" not in OPT:
        fm(0); fm(1); a("s_nop 2"); silu(0); fm(2); silu(1); silu(2)
    else:
        fm(0); fm(1); fm(2); a("@estamp 5"); silu(0); silu(1); silu(2)
    a(f"""
K_OUT:
    s_waitcnt lgkmcnt(0)
    @estamp 6
    s_barrier
    @estamp 7
    ds_read_b128 v[32:35], v{SAD} offset:{OUTS}
    s_waitcnt lgkmcnt(0)
    buffer_store_dwordx4 v[32:35], v{AAD}, s[{sO}:{sO+3}], 0 offen {OPT.get('ost', 'sc1').replace('+', ' ')}
    @estamp 8
    {"s_branch K_END2" if AMP else ""}
K_OUT2:
    {"s_barrier" if AMP else ""}
K_END2:
    """)
    if "x_spin" in OPT:
        a(f"""
        s_cmp_lg_u32 s22, 0
        s_cbranch_scc1 XS_DONE
        s_memrealtime s[68:69]
        s_waitcnt lgkmcnt(0)
XS_LOOP:
        s_memrealtime s[70:71]
        s_waitcnt lgkmcnt(0)
        s_sub_u32 s70, s70, s68
        s_cmp_lt_u32 s70, {OPT["x_spin"]}
        s_cbranch_scc1 XS_LOOP
XS_DONE:
        """)
    if "xcctest" in OPT:
        a(f"""
        s_lshl_b32 s3, s22, 8
        s_or_b32 s3, s3, s{sG}
        s_cmp_lg_u32 s3, 100
        s_cbranch_scc1 XT_DONE
        v_mov_b32 v30, {WS_REC + 15360 + 101*REC_STRIDE}
        global_load_dword v31, v30, s[{sWS}:{sWS+1}] sc1
        s_waitcnt vmcnt(0)
        v_readfirstlane_b32 s81, v31
        s_cmp_eq_u32 s81, s80
        s_cbranch_scc{OPT["xcctest"]} XT_DONE
        s_memrealtime s[76:77]
        s_waitcnt lgkmcnt(0)
XT_LOOP:
        s_memrealtime s[78:79]
        s_waitcnt lgkmcnt(0)
        s_sub_u32 s78, s78, s76
        s_cmp_lt_u32 s78, 2000
        s_cbranch_scc1 XT_LOOP
XT_DONE:
        """)
    a(f"""
    @store
K_END:
    s_endpgm
K_SHRINK:
    ; too many slots for one pass: redo this pass with at most 4 records per cell
    s_mov_b32 s{sR}, 4
    s_mov_b32 s{sMODE}, 1
    s_mov_b32 s{sTMP+1}, 0
    s_branch K_REINIT
K_SLOW:
    v_readfirstlane_b32 s{sTMP}, v24
    v_readfirstlane_b32 s{sTMP+1}, v25
    s_cmp_eq_u32 s{sMODE}, 0
    s_cselect_b32 s{sTMP+1}, s{sTMP+1}, 0
    s_or_b32 s{sTMP}, s{sTMP}, s{sTMP+1}
    s_cbranch_scc0 K_FINAL
    s_cmp_eq_u32 s{sTMP+1}, 0
    s_cselect_b32 s{sTMP}, s{sR}, 0
    s_add_u32 s{sR0}, s{sR0}, s{sTMP}
K_REINIT:
    s_waitcnt vmcnt(0) lgkmcnt(0)
    s_barrier
    v_lshrrev_b32 v9, 1, v{L8}
    v_mov_b32 v10, 0
    ds_write_b32 v9, v10 offset:{CNT}
    ds_write_b32 v9, v10 offset:{TF}
    ds_write_b32 v10, v10 offset:{FLG}
    ds_write_b32 v10, v10 offset:{FLG+4}
    v_lshlrev_b32 v9, 2, v{TID}
    v_mov_b32 v10, -1
    ds_write_b32 v9, v10 offset:{SS}
    s_cmp_eq_u32 s{sTMP+1}, 0
    s_cbranch_scc1 K_SLOW1
    s_mov_b32 s{sMODE}, 1
    v_lshlrev_b32 v9, 4, v{TID}
    v_add_u32 v9, {AGG}, v9
    v_mov_b64 v[4:5], 0
    v_mov_b64 v[6:7], 0
    ds_write_b128 v9, v[4:7]
    ds_write_b128 v9, v[4:7] offset:16384
    ds_write_b128 v9, v[4:7] offset:24576
K_SLOW1:
    s_waitcnt lgkmcnt(0)
    s_barrier
    s_branch K_PASS
    """)
    mainloop(a, True)
    return a.text()

HEADER = """; Kernarg layout for this problem (72 bytes, ptrs only, base s[0:1]):
;   offset  24: d_in[3] dst  shape=(320000,) dtype=int32
; One workgroup per CU (256 workgroups, 39-40 destination nodes each), one launch.
;   t[e] = c * (x[src] @ W1 + x[dst] @ W2 + e_attr @ W3) = P[src] + Q[dst] + e_attr @ (c W3),   silu = t / (c * (1 + 2^t))
; Phase A: every workgroup bins 1280 edges by destination group and computes P for its own rows; both are stored
; Phase B: a workgroup waits for the granules of its group, fetches its edges, sorts them by node in LDS and walks them
;   exp / rcp sigmoids (S_ loop), which also serves groups that need several passes.  Last: the update layer.
"""
def main():
    s = ("; opts " + " ".join(sys.argv[2:]) + "\n" if len(sys.argv) > 2 else "") + HEADER
    s += f"; @launch grid=({NG},1,1) block=(1024,1,1) lds={LDS_BYTES}\n"
    s += '.amdgcn_target "amdgcn-amd-amdhsa--gfx950"\n.text\n'
    s += f".globl {KN}\n.p2align 8\n.type {KN},@function\n" + kernel()
    s += f""".section .rodata,"a"
.p2align 6
.amdhsa_kernel {KN}
  .amdhsa_next_free_vgpr {NVGPR}
  .amdhsa_next_free_sgpr {100 if (DIAG or AMP or 'xcctest' in OPT) else NSGPR}
  .amdhsa_accum_offset {NVGPR}
  .amdhsa_group_segment_fixed_size 0
  .amdhsa_kernarg_size 72
  .amdhsa_user_sgpr_count 2
  .amdhsa_user_sgpr_kernarg_segment_ptr 1
  .amdhsa_system_sgpr_workgroup_id_x 1
.end_amdhsa_kernel
"""
    open(sys.argv[1], "w").write(s)
main()
```

```python
import sys, struct

N = 10000; E = 320000
NG = 256
EPW = 1280
NPROD = E // EPW
REC_STRIDE = EPW * 12 + 128
WS_P = 4096
WS_REC = 0x280000
WS_T = 0x650000
WS_F = 0x6D0000
WS_DIAG = 0xB00000
LOG2E = 1.4426950408889634
def f2u(x): return struct.unpack("<I", struct.pack("<f", x))[0]
NLOG2E = f2u(-LOG2E)
OPT = dict(a.split("=") if "=" in a else (a, "1") for a in sys.argv[2:])
DIAG = "diag" in OPT
AMP = int(OPT.get("amp", 0))
PF1 = int(OPT.get("pf1", 6)); PF2 = int(OPT.get("pf2", 12))
W2E = "w2late" not in OPT
RND = "rnd" in OPT
PSTG = "pstage" in OPT
Q1 = "q1" in OPT
KN = "gather_scatter__mpnn_edge_mlp__graph_kernel"
SPINMAX = 400000
RMAX = 5
CAP = 2048

CNT = 0; FLG = 256; NON = 272
TF = 512
SS = 1024
XS = SS + CAP*2 + 256
QS = XS + 40*256
ES = QS + 40*512
AGG = ES + CAP*8
RING = AGG + 40*1024
LDS_BYTES = RING + 65536
W1S = RING; W2S = RING + 32768; WTS = RING
STAGE = QS; HIST = ES; OFFS = ES + 1024; W3S = ES + 2048
AB = ES; OUTS = QS; PST = ES + 3072
D0, D1, QR, VU, BP, AE, ID, W3 = 0, 16, 32, 48, 64, 72, 76, 84
VA, NUM, DEN, NANC, MAXC = 88, 90, 92, 94, 96
EAD, SAD, PAD, IX0, IX1, QAD, AAD, L8, NCNT, TID, TW, RAD, E8 = 97, 98, 99, 100, 102, 104, 105, 106, 107, 108, 109, 110, 111
G2 = 81; LQ = 82
XA, WA = 88, 92
VG, VJ, VL = 126, 127, 97
UA = (112, 116, 120)
NVGPR = 128
sREC = 4; sR0 = 8; sMODE = 9; sLEFT = 10; sCNT = 11
sK1 = 12; sK2 = 13; sNL = 14; sNC = 15; sNQ = 16; sR = 17; sNZ2 = 18
sWS = 20; sWV = 22; sSTART = 23; sX = 24; sP = 24; sO = 28
sNZ = 32; sM0 = 34; sM1 = 36; sONE = 38; sRING = 40; sRHO = 42; sW = 40
sTMP = 44; sEV = 48; sG = 49; sEX = 50; sCM = 52
sNON = 60; sEND = 62; sSPIN = 63; sP2 = 64; sANY = 68; sT0 = 70; sVT = 71
NSGPR = 72
LDF = OPT.get('ldf', '').replace('+', ' ')
SE = int(OPT.get('se', 1))
SRCE = f"""    global_load_dwordx4 v[16:19], v8, s[8:9] {LDF}
    global_load_dwordx4 v[20:23], v9, s[6:7] {LDF}
    global_load_dwordx4 v[24:27], v9, s[6:7] offset:16 {LDF}
"""
WSOFF = f"s_add_u32 s{sWS}, s{sWS}, {int(OPT['wso']) << 20}\ns_addc_u32 s{sWS+1}, s{sWS+1}, 0" if 'wso' in OPT else ''
STF = OPT.get('stf', 'sc1').replace('+', ' ')
sST = 72

class Asm:
    def __init__(self): self.l = []
    def __call__(self, s):
        for ln in s.strip("\n").split("\n"):
            ln = ln.strip()
            if ln.startswith("@estamp"):
                if "epi" not in OPT: continue
                ln = ln.replace("@estamp", "@stamp")
            elif ln.startswith("@stamp") and "epi" in OPT and int(ln.split()[1]) in range(2, 10): continue
            if ln.startswith("@amp"):
                i = int(ln.split()[1])
                A0 = int(OPT.get("amp0", 0))
                if AMP == 99 and i == 0: self('s_memrealtime s[74:75]\ns_waitcnt lgkmcnt(0)'); continue
                if AMP and i in (A0, AMP): self(f"s_memrealtime s[{72+2*(i != A0)}:{73+2*(i != A0)}]\ns_waitcnt lgkmcnt(0)")
                continue
            if ln.startswith("@store") and AMP:
                self("""s_waitcnt vmcnt(0)
                @amp 9
                s_lshl_b32 s3, s22, 8
                """ + ("" if "ampall" in OPT else "s_or_b32 s3, s3, s2") + """
                s_cmp_lg_u32 s3, """ + OPT.get("ampwg", "0") + """
                s_cbranch_scc1 AMP_DONE
                """ + ("s_sub_u32 s72, s60, 200" if "ampnon" in OPT else "") + """
                s_sub_u32 s74, s74, s72
                s_lshl_b32 s74, s74, 4
                s_memrealtime s[76:77]
                s_waitcnt lgkmcnt(0)
AMP_LOOP:
                s_memrealtime s[78:79]
                s_waitcnt lgkmcnt(0)
                s_sub_u32 s78, s78, s76
                s_cmp_lt_u32 s78, s74
                s_cbranch_scc1 AMP_LOOP
AMP_DONE:""")
                continue
            if ln.startswith("@stamp"):
                i = int(ln.split()[1])
                if DIAG and ("st" not in OPT or i in (0, 13) or str(i) in OPT["st"].split(",")): self(f"{'s_memrealtime' if OPT['diag'] == 'rt' or i in (0, 13) else 's_memtime'} s[{sST+2*i}:{sST+2*i+1}]\ns_waitcnt lgkmcnt(0)")
                continue
            if ln.startswith("@store"):
                if DIAG:
                    self(f"s_waitcnt vmcnt(0)\n@stamp 12\n@stamp 13\ns_load_dwordx2 s[{sWS}:{sWS+1}], s[0:1], 64\ns_waitcnt lgkmcnt(0)\ns_mov_b64 exec, -1\nv_lshrrev_b32 v1, 6, v{TID}\ns_lshl_b32 s3, s2, 4\nv_add_u32 v1, s3, v1\nv_lshlrev_b32 v1, 6, v1\nv_add_u32 v1, {WS_DIAG}, v1")
                    for i in range(14): self(f"v_mov_b32 v2, s{sST+2*i}\nglobal_store_dword v1, v2, s[{sWS}:{sWS+1}] offset:{4*i}")
                continue
            if ln: self.l.append(ln if ln.endswith(":") else "    " + ln)
    def text(self): return "\n".join(self.l) + "\n"

def dpp_scan(a, v, fill=()):
    fill = list(fill)
    def pad():
        k = 0
        while k < 2 and fill: a(fill.pop(0)); k += 1
        if k < 2: a(f"s_nop {1-k}")
    for sh in (1, 2, 4, 8):
        pad(); a(f"v_add_u32_dpp v{v}, v{v}, v{v} row_shr:{sh} row_mask:0xf bank_mask:0xf bound_ctrl:0")
    pad(); a(f"v_add_u32_dpp v{v}, v{v}, v{v} row_bcast:15 row_mask:0xa bank_mask:0xf")
    pad(); a(f"v_add_u32_dpp v{v}, v{v}, v{v} row_bcast:31 row_mask:0xc bank_mask:0xf")
    for x in fill: a(x)

def mainloop(a, safe):
    L = "S" if safe else "F"
    FRESH = not safe and "nofresh" not in OPT
    RESET = f"v_mov_b64 v[{DEN}:{DEN+1}], s[{sONE}:{sONE+1}]\nv_mov_b64 v[{NUM}:{NUM+1}], 0"
    def ex(d, k): a(f"v_exp_f32 v{VU+k}, v{d+k}")
    def pk(d, e):
        t = d + 2*e; u = VU + 2*e
        if not safe:
            a(f"""
            v_pk_fma_f32 v[{VA}:{VA+1}], v[{t}:{t+1}], v[{DEN}:{DEN+1}], v[{NUM}:{NUM+1}]
            v_pk_fma_f32 v[{DEN}:{DEN+1}], v[{DEN}:{DEN+1}], v[{u}:{u+1}], v[{DEN}:{DEN+1}]
            v_pk_fma_f32 v[{NUM}:{NUM+1}], v[{NUM}:{NUM+1}], v[{u}:{u+1}], v[{VA}:{VA+1}]
            """)
        else:
            a(f"""
            v_pk_add_f32 v[{u}:{u+1}], v[{u}:{u+1}], 1.0 op_sel_hi:[1,0]
            v_rcp_f32 v{u}, v{u}
            v_rcp_f32 v{u+1}, v{u+1}
            s_nop 0
            v_pk_fma_f32 v[{NUM}:{NUM+1}], v[{t}:{t+1}], v[{u}:{u+1}], v[{NUM}:{NUM+1}]
            """)
    def flush():
        if not safe:
            a(f"""
            v_rcp_f32 v{VU}, v{DEN}
            v_rcp_f32 v{VU+1}, v{DEN+1}
            v_max3_f32 v{MAXC}, v{MAXC}, v{DEN}, v{DEN+1}
            v_pk_mul_f32 v[{VA}:{VA+1}], v[{NUM}:{NUM+1}], v[{VU}:{VU+1}]
            {"" if FRESH else RESET}
            v_cvt_f64_f32 v[{VU}:{VU+1}], v{VA}
            v_cvt_f64_f32 v[{VU+2}:{VU+3}], v{VA+1}
            v_pk_fma_f32 v[{NANC}:{NANC+1}], v[{VA}:{VA+1}], 0, v[{NANC}:{NANC+1}] op_sel_hi:[1,0,1]
            """)
        else:
            a(f"""
            v_cvt_f64_f32 v[{VU}:{VU+1}], v{NUM}
            v_cvt_f64_f32 v[{VU+2}:{VU+3}], v{NUM+1}
            v_mov_b64 v[{NUM}:{NUM+1}], 0
            """)
        a(f"ds_add_f64 v{AAD}, v[{VU}:{VU+1}] offset:{AGG}\nds_add_f64 v{AAD}, v[{VU+2}:{VU+3}] offset:{AGG+512}")
    def preads(slot):
        if "p2" in OPT:
            for q in range(2):
                a(f"ds_read2st64_b64 v[{BP+4*q}:{BP+4*q+3}], v{PAD} offset0:{slot*4 + 2*q} offset1:{slot*4 + 2*q + 1}")
            return
        for q in range(4):
            a(f"ds_read_b64 v[{BP+2*q}:{BP+2*q+1}], v{PAD} offset:{slot*2048 + q*512}")
    def ereads(v, off):
        a(f"""
        s_mov_b64 exec, s[{sM0}:{sM0+1}]
        ds_read_b64 v[{AE}:{AE+1}], v{v} offset:{ES+off}
        s_mov_b64 exec, s[{sM1}:{sM1+1}]
        ds_read_b64 v[{AE+2}:{AE+3}], v{v} offset:{ES+off}
        s_mov_b64 exec, -1
        """)
    def idxreads(v, off):
        a(f"ds_read_u16 v{IX0}, v{v} offset:{SS+off}\nds_read_u16 v{IX1}, v{v} offset:{SS+off+8}")
    def qreads(node):
        if "q2" in OPT:
            a(f"v_lshl_add_u32 v{QAD}, s{node}, 9, v{LQ}")
            for q in range(4):
                a(f"ds_read2_b64 v[{QR+4*q}:{QR+4*q+3}], v{QAD} offset0:0 offset1:0")
            return
        a(f"v_lshl_add_u32 v{QAD}, s{node}, 9, v{L8}")
        for q in range(8):
            a(f"ds_read_b64 v[{QR+2*q}:{QR+2*q+1}], v{QAD} offset:{QS}")
    def mfma(d, k):
        if k == 0: a(f"v_mfma_f32_32x32x16_bf16 v[{d}:{d+15}], v[{AE}:{AE+3}], v[{W3}:{W3+3}], v[{QR}:{QR+15}]")
        else: a(f"v_smfmac_f32_32x32x32_bf16 v[{d}:{d+15}], v[{ID}:{ID+3}], v[{BP}:{BP+7}], v{ID+4}")
    def dma(slot, f1="s_nop 0"):
        if "x_nodma" in OPT: a(f1); return
        a(f"""
        s_mov_b32 m0, s{sRING+slot}
        {f1}
        buffer_load_dwordx4 v[{IX0}:{IX0+1}], s[{sP}:{sP+3}], 0 idxen offen sc1 lds
        buffer_load_dwordx4 v[{IX1}:{IX1+1}], s[{sP2}:{sP2+3}], 0 idxen offen offset:1024 sc1 lds
        """)
    def qnext():
        a(f"s_bitset0_b64 s[{sNZ}:{sNZ+1}], s{sNQ}\ns_ff1_i32_b64 s{sNQ}, s[{sNZ}:{sNZ+1}]")
        qreads(sNQ)
    def tree(name, labels):
        a(f"""
{name}:
        s_cmp_gt_u32 s{sCNT}, 3
        s_cbranch_scc1 {name}_H
        s_cmp_eq_u32 s{sCNT}, 2
        s_cbranch_scc1 {labels[2]}
        s_cmp_eq_u32 s{sCNT}, 3
        s_cbranch_scc1 {labels[3]}
        s_branch {labels[1]}
{name}_H:
        s_cmp_gt_u32 s{sCNT}, 5
        s_cbranch_scc1 {name}_HH
        s_cmp_eq_u32 s{sCNT}, 4
        s_cbranch_scc1 {labels[4]}
        s_branch {labels[5]}
{name}_HH:
        s_cmp_eq_u32 s{sCNT}, 6
        s_cbranch_scc1 {labels[6]}
        s_branch {labels[7]}
        """)
    EV = int(OPT.get("ev", 5))
    a(f"{L}_START:")
    idxreads(SAD, 0)
    a(f"""
    ds_read_u8 v10, v9 offset:{TF}
    {"" if FRESH else RESET}
    s_waitcnt lgkmcnt(1)
    """)
    dma(0)
    idxreads(SAD, 16)
    qreads(sNQ)
    a(f"""
    s_waitcnt lgkmcnt({4 if "q2" in OPT else 8})
    v_cmp_ne_u32 vcc, 0, v10
    """)
    dma(1)
    idxreads(SAD, 32)
    ereads(EAD, 0)
    a(f"""
    ; sK1: one bit per tile from the top (ends a node, or one of the last tiles), then a marker; sK2: tile + 2 starts a node;
    s_brev_b32 s{sK1}, vcc_lo
    s_lshl_b32 s{sK2}, s{sK1}, 1
    s_sub_u32 s{sTMP}, 32, s{sLEFT}
    s_lshr_b32 s{sNL}, s{sK1}, s{sTMP}
    s_lshl_b32 s{sK1}, s{sNL}, s{sTMP}
    s_sub_u32 s{sTMP}, s{sTMP}, 1
    s_lshl_b32 s{sTMP}, {((7 | (1 << EV)) << 1) | 1}, s{sTMP}
    s_or_b32 s{sK1}, s{sK1}, s{sTMP}
    s_waitcnt vmcnt(2)
    """)
    preads(0)
    a("s_waitcnt lgkmcnt(0)\n@stamp 9")
    dma(0)
    for k in range(2): mfma(D0, k)
    ereads(EAD, 64)
    idxreads(SAD, 48)
    a(f"s_bitcmp0_b32 vcc_lo, 0\ns_cbranch_scc1 {L}_S4")
    qnext()
    a(f"{L}_S4:\ns_waitcnt vmcnt(2)")
    preads(1)
    a(f"s_branch {L}_{'G' if FRESH else 'L'}0B")
    K2 = f"s_add_u32 s{sK2}, s{sK2}, s{sK2}"
    def xphase(b, lab):
        dc, dn = (D0, D1) if b == 0 else (D1, D0)
        mfma(dn, 0)
        for e in range(7, -1, -1):
            if lab and e < 7: a(f"{L}_X{b}_{e+1}:")
            if e == 2: mfma(dn, 1)
            ex(dc, 2*e+1); ex(dc, 2*e)
    def mid(b, tag):
        a("s_waitcnt vmcnt(2)")
        preads(b)
        if tag == "E": a(K2)
        a(f"s_cbranch_scc1 {L}_ADV{tag}{b}\n{L}_RB{tag}{b}:")
        ereads(EAD, 64*(b+2))
        idxreads(SAD, 16*(b+4))
    def yphase(b, lab):
        dc = D0 if b == 0 else D1
        for e in range(7, -1, -1):
            if lab and e < 7: a(f"{L}_Y{b}_{e+1}:")
            pk(dc, e)
    for b in range(2):
        dc, dn = (D0, D1) if b == 0 else (D1, D0)
        a(f"""
{L}_TAIL{b}:
        s_setprio 2
        s_cmp_ge_u32 s{sLEFT}, 3
        s_cbranch_scc1 {L}_TD{b}
        s_setprio 1
        s_cmp_lg_u32 s{sLEFT}, 0
        s_cbranch_scc1 {L}_T1{b}
        s_setprio 0
{L}_T1{b}:
        s_waitcnt vmcnt(0)
        s_branch {L}_T2{b}
{L}_TD{b}:
        """)
        dma(1-b)
        a(f"""
{L}_T2{b}:
        s_bitcmp1_b32 s{sNL}, s{sLEFT}
        s_cbranch_scc1 {L}_ENDN{b}
        s_mov_b32 s{sCNT}, 8
        s_cmp_eq_u32 s{sLEFT}, 0
        s_cbranch_scc1 {L}_X{b}_8
        {K2}
        s_branch {L}_XB{b}
        """)
        for tag in "PE":
            a(f"{L}_ADV{tag}{b}:")
            qnext()
            a(f"s_branch {L}_RB{tag}{b}")
        tree(f"{L}_XD{b}", {c: f"{L}_XS{b}_{c}" for c in range(1, 8)})
        for c in range(1, 8):
            a(f"{L}_XS{b}_{c}:")
            mfma(dn, 0)
            if c <= 2: mfma(dn, 1)
            a(f"s_branch {L}_X{b}_{c}")
        tree(f"{L}_YD{b}", {c: f"{L}_Y{b}_{c}" for c in range(1, 8)})
        a(f"""
{L}_SP{b}:
        s_ff1_i32_b32 s{sLEFT}, s{sK1}
        s_sub_u32 s{sLEFT}, 31, s{sLEFT}
        s_cmp_le_u32 s{sLEFT}, {EV}
        s_cbranch_scc1 {L}_TAIL{b}
        """)
        dma(1-b)
        a(f"""
{L}_ENDN{b}:
        v_readlane_b32 s{sCNT}, v{NCNT}, s{sNC}
        s_bitset0_b64 s[{sNZ2}:{sNZ2+1}], s{sNC}
        s_ff1_i32_b64 s{sNC}, s[{sNZ2}:{sNZ2+1}]
        s_cmp_lt_u32 s{sCNT}, 8
        s_cbranch_scc1 {L}_XD{b}
{L}_X{b}_8:
        """)
        xphase(b, True)
        mid(b, "E")
        a(f"s_cmp_lt_u32 s{sCNT}, 8\ns_cbranch_scc1 {L}_YD{b}")
        yphase(b, True)
        flush()
        a(f"""
        s_cmp_eq_u32 s{sLEFT}, 0
        s_cbranch_scc1 K_MAINDONE
        v_lshl_add_u32 v{AAD}, s{sNC}, 10, v{L8}
        s_branch {L}_{"G" if FRESH else "L"}{1-b}
        """)
        if FRESH:
            a(f"{L}_GS{b}:\n{RESET}\ns_branch {L}_SP{b}")
            a(f"{L}_ADVG{b}:")
            qnext()
            a(f"s_branch {L}_RBG{b}")
            a(f"{L}_G{b}:")
            if b == 0:
                a(f"v_add_u32 v{EAD}, 128, v{EAD}\nv_add_u32 v{SAD}, 32, v{SAD}\n{L}_G0B:")
            a(f"""
            s_add_u32 s{sK1}, s{sK1}, s{sK1}
            s_waitcnt lgkmcnt(0)
            s_cbranch_scc1 {L}_GS{b}
            """)
            dma(1-b, K2)
            xphase(b, False)
            mid(b, "G")
            t7 = dc + 14; t6 = dc + 12; u7 = VU + 14; u6 = VU + 12
            a(f"""
            v_pk_add_f32 v[{DEN}:{DEN+1}], v[{u7}:{u7+1}], 1.0 op_sel_hi:[1,0]
            v_pk_fma_f32 v[{VA}:{VA+1}], v[{t6}:{t6+1}], v[{DEN}:{DEN+1}], v[{t7}:{t7+1}]
            v_pk_fma_f32 v[{DEN}:{DEN+1}], v[{DEN}:{DEN+1}], v[{u6}:{u6+1}], v[{DEN}:{DEN+1}]
            v_pk_fma_f32 v[{NUM}:{NUM+1}], v[{t7}:{t7+1}], v[{u6}:{u6+1}], v[{VA}:{VA+1}]
            s_branch {L}_YP{b}_6
            """)
    a(f".p2align {OPT.get('al', 6)}")
    if "alo" in OPT: a("\n".join(["s_nop 0"]*int(OPT["alo"])))
    for b in range(2):
        a(f"{L}_L{b}:")
        if b == 0:
            a(f"v_add_u32 v{EAD}, 128, v{EAD}\nv_add_u32 v{SAD}, 32, v{SAD}\n{L}_L0B:")
        a(f"""
        s_add_u32 s{sK1}, s{sK1}, s{sK1}
        s_waitcnt lgkmcnt(0)
        s_cbranch_scc1 {L}_SP{b}
        """)
        dma(1-b, K2)
        a(f"{L}_XB{b}:")
        xphase(b, False)
        mid(b, "P")
        for e in range(7, -1, -1):
            if e == 5: a(f"{L}_YP{b}_6:")
            pk(D0 if b == 0 else D1, e)
        if b == 1: a(f"s_branch {L}_L0")

def consts(a):
    a(f"""
    ; m = l&31, hk = l>>5, e = 2*(m>>3) + ((m>>1)&1), H = (m>>2)&1, c0 = m&1
    v_lshlrev_b32 v{L8}, 3, v{VL}
    v_add_u32 v{LQ}, {QS}, v{L8}
    v_lshlrev_b32 v{IX0+1}, 4, v{VJ}
    v_lshlrev_b32 v{IX1+1}, 4, v{VJ}
    v_lshlrev_b32 v{G2}, 1, v{VG}
    v_lshrrev_b32 v1, 5, v{VL}
    v_bfe_u32 v2, v{VL}, 2, 1
    v_and_b32 v3, 1, v{VL}
    v_bfe_u32 v4, v{VL}, 1, 1
    v_bfe_u32 v5, v{VL}, 3, 2
    v_lshl_add_u32 v5, v5, 1, v4
    v_mov_b64 v[{AE}:{AE+1}], 0
    v_mov_b64 v[{AE+2}:{AE+3}], 0
    v_xor_b32 v{ID}, v1, v2
    v_lshl_add_u32 v{ID}, v{ID}, 1, v3
    v_cmp_eq_u32 s[{sM0}:{sM0+1}], 0, v{ID}
    v_cmp_eq_u32 s[{sM1}:{sM1+1}], 1, v{ID}
    v_lshlrev_b32 v{E8}, 3, v5
    ; sparse selector: lane half e>>2, register q = 2*(e&1) + ((e>>1)&1) holds 1.0, index (2*H + c0) << 4*q
    v_lshrrev_b32 v{ID+1}, 2, v5
    v_cmp_eq_u32 vcc, v1, v{ID+1}
    v_bfe_u32 v5, v5, 1, 1
    v_lshl_add_u32 v5, v4, 1, v5
    v_lshl_add_u32 v2, v2, 1, v3
    v_cndmask_b32 v3, 0, v{W3}, vcc
    v_lshlrev_b32 v4, 2, v5
    v_lshlrev_b32 v{ID+4}, v4, v2
    """)
    for q in range(4): a(f"v_cmp_eq_u32 s[{sCM + 2*q}:{sCM + 2*q + 1}], {q}, v5")
    a(f"v_lshrrev_b32 v1, 2, v{TID}\nv_and_b32 v2, 3, v{TID}")
    for q in range(4): a(f"v_cndmask_b32 v{ID+q}, 0, v3, s[{sCM + 2*q}:{sCM + 2*q + 1}]")
    a(f"""
    s_movk_i32 s3, {REC_STRIDE}
    v_mul_u32_u24 v3, s3, v1
    v_mad_u32_u24 v{RAD}, v2, 12, v3
    s_lshl_b32 s3, s{sG}, 3
    s_add_u32 s3, s3, {WS_T}
    v_lshl_add_u32 v{AAD}, v1, 11, s3
    v_xor_b32 v1, v{VG}, v{VJ}
    v_lshlrev_b32 v1, 4, v1
    v_lshl_add_u32 v{XA}, v{VJ}, 8, v1
    v_xor_b32 v{XA+1}, 64, v{XA}
    v_xor_b32 v{XA+2}, 128, v{XA}
    v_xor_b32 v{XA+3}, 192, v{XA}
    v_bfe_u32 v1, v{VL}, 2, 2
    v_and_b32 v2, 1, v{VG}
    v_lshl_or_b32 v2, v2, 2, v1
    v_bfe_u32 v3, v{VL}, 1, 1
    v_lshl_or_b32 v2, v2, 1, v3
    v_and_b32 v3, 1, v{VL}
    v_lshl_or_b32 v2, v2, 1, v3
    v_lshl_add_u32 v1, v{VG}, 3, v1
    v_lshlrev_b32 v1, 8, v1
    v_lshl_add_u32 v{WA}, v2, 3, v1
    """)
def tagbase(a, v):
    a(f"""
    v_readfirstlane_b32 s{sNON}, v{v}
    v_readfirstlane_b32 s{sNON+1}, v{v+1}
    """)
    if RND:
        a(f"""
        s_bfe_u32 s3, s{sNON}, 0x50004
        s_lshl_b32 s3, s3, 23
        s_add_u32 s{sWS}, s{sWS}, s3
        s_addc_u32 s{sWS+1}, s{sWS+1}, 0
        """)
def wlane(a, v):
    a(f"""
    v_lshlrev_b32 v{v}, 1, v{VG}
    v_xor_b32 v{v}, v{v}, v{VJ}
    v_lshlrev_b32 v{v}, 4, v{v}
    v_lshl_add_u32 v{v}, v{VG}, 8, v{v}
    v_xor_b32 v{v+1}, 128, v{v}
    """)
def wdma(a, soff, v):
    a(f"""
    buffer_load_dwordx4 v{v}, s[{sW}:{sW+3}], s{soff} offen lds
    buffer_load_dwordx4 v{v}, s[{sW}:{sW+3}], s{soff} offen offset:1024 lds
    buffer_load_dwordx4 v{v+1}, s[{sW}:{sW+3}], s{soff} offen offset:2048 lds
    buffer_load_dwordx4 v{v+1}, s[{sW}:{sW+3}], s{soff} offen offset:3072 lds
    """)
def mm16(a, d, x, w, swap=False, first=True):
    for ks in range(4):
        c = "0" if (ks == 0 and first) else f"v[{d}:{d+3}]"
        xa = f"v[{x+4*ks}:{x+4*ks+3}]"; wa = f"v[{w+4*ks}:{w+4*ks+3}]"
        a(f"v_mfma_f32_16x16x32_bf16 v[{d}:{d+3}], {wa if swap else xa}, {xa if swap else wa}, {c}")
def xreads(a, dst, off):
    for ks in range(4): a(f"ds_read_b128 v[{dst+4*ks}:{dst+4*ks+3}], v{XA+ks} offset:{off}")

def kernel():
    a = Asm()
    a(f"""
{KN}:
    s_cmp_ge_u32 s2, {NG}
    s_cbranch_scc1 K_END
    @stamp 0
    @stamp 1
    @amp 0
    s_load_dwordx16 s[4:19], s[0:1], 0
    s_load_dwordx2 s[{sWS}:{sWS+1}], s[0:1], 64
    v_mov_b32 v{TID}, v0
    v_lshrrev_b32 v1, 6, v0
    v_and_b32 v{VL}, 63, v0
    v_readfirstlane_b32 s{sWV}, v1
    s_and_b32 s{sG}, s2, 7
    s_lshl_b32 s{sG}, s{sG}, 5
    s_lshr_b32 s3, s2, 3
    s_or_b32 s{sG}, s{sG}, s3
    v_lshrrev_b32 v{VG}, 4, v{VL}
    v_and_b32 v{VJ}, 15, v{VL}
    s_mul_i32 s3, s{sG}, 625
    s_add_u32 s{sSTART}, s3, 15
    s_lshr_b32 s{sSTART}, s{sSTART}, 4
    s_add_u32 s{sEND}, s3, {625+15}
    s_lshr_b32 s{sEND}, s{sEND}, 4
    v_mov_b32 v{W3}, 0x3f80
    s_mov_b32 s{sW+2}, 65536
    s_mov_b32 s{sW+3}, 0x20000
    s_cmp_ge_u32 s{sWV}, 5
    s_cbranch_scc1 A_N1
    ; ================= waves 0..4: bin the edges [1280*g, 1280*g+1280) by destination group (4 edges per thread)
    s_cmp_lt_u32 s{sG}, {NPROD}
    s_cselect_b32 s3, s{sG}, 0
    s_cselect_b64 s[{sEX}:{sEX+1}], -1, 0
    s_mul_i32 s3, s3, {EPW*4}
    v_lshl_add_u32 v8, v0, 4, s3
    v_lshlrev_b32 v9, 1, v8
    s_lshl_b32 s{sTMP}, s{sWV}, 3
    v_add_u32 v1, s{sTMP}, v{VG}
    v_xor_b32 v2, v1, v{VJ}
    v_and_b32 v2, 15, v2
    v_lshlrev_b32 v2, 4, v2
    v_lshl_add_u32 v2, v1, 8, v2
    v_xor_b32 v3, 64, v2
    s_lshl_b32 s{sTMP}, s{sWV}, 11
    s_add_u32 m0, s{sTMP}, {XS}
    s_lshl_b32 s{sTMP+2}, s{sSTART}, 8
    s_mov_b32 s{sX+2}, {N*256}
    s_mov_b32 s{sX+3}, 0x20000
    s_waitcnt lgkmcnt(0)
    global_load_dwordx4 v[12:15], v8, s[10:11] {LDF}
    {WSOFF}
    s_mov_b32 s{sX}, s4
    s_and_b32 s{sX+1}, s5, 0xffff
    buffer_load_dwordx4 v2, s[{sX}:{sX+3}], s{sTMP+2} offen {LDF} lds
    buffer_load_dwordx4 v3, s[{sX}:{sX+3}], s{sTMP+2} offen offset:1024 {LDF} lds
    {SRCE if SE == 0 else ""}
    s_barrier
    {SRCE if SE == 1 else ""}
    """)
    consts(a)
    a(f"""
    s_movk_i32 s{sTMP}, 625
    s_mov_b32 s{sTMP+1}, 214749
    v_mov_b32 v1, 1
    v_lshlrev_b32 v10, 4, v{VL}
    s_waitcnt vmcnt({2 if SE == 2 else 5})
    {SRCE if SE == 2 else ""}
    s_mov_b64 exec, s[{sEX}:{sEX+1}]
    """)
    for i in range(4):
        a(f"v_mul_u32_u24 v{28+i}, s{sTMP+1}, v{12+i}")
    for i in range(4):
        a(f"v_lshrrev_b32 v{28+i}, 23, v{28+i}\nv_lshlrev_b32 v{32+i}, 2, v{28+i}\nds_add_rtn_u32 v{36+i}, v{32+i}, v1 offset:{HIST}")
    a(f"""
    s_mov_b64 exec, -1
    s_waitcnt lgkmcnt(0)
    @stamp 2
    s_barrier
    ds_read_b128 v[40:43], v10 offset:{HIST}
    """)
    for i in range(4):
        a(f"v_mad_u32_u24 v{28+i}, v{28+i}, s{sTMP}, 15\nv_lshrrev_b32 v{28+i}, 4, v{28+i}\nv_sub_u32 v{28+i}, v{12+i}, v{28+i}")
    a(f"""
    s_waitcnt lgkmcnt(0)
    v_add_u32 v44, v40, v41
    v_add3_u32 v44, v44, v42, v43
    v_mov_b32 v45, v44
    """)
    dpp_scan(a, 45)
    a(f"""
    v_sub_u32 v48, v45, v44
    v_add_u32 v49, v48, v40
    v_add_u32 v50, v49, v41
    v_add_u32 v51, v50, v42
    ds_write_b128 v10, v[48:51] offset:{OFFS}
    s_mov_b32 s{sTMP}, {STAGE}
    s_mov_b64 exec, s[{sEX}:{sEX+1}]
    s_waitcnt lgkmcnt(0)
    """)
    for i in range(4):
        a(f"ds_read_b32 v{40+i}, v{32+i} offset:{OFFS}")
    a(f"""
    s_waitcnt vmcnt(3)
    @stamp 3
    s_barrier
    @amp 1
    s_waitcnt lgkmcnt(0)
    """)
    for i in range(4):
        a(f"v_add_u32 v{40+i}, v{40+i}, v{36+i}\nv_mad_u32_u24 v{40+i}, v{40+i}, 12, s{sTMP}")
    a("s_waitcnt vmcnt(2)")
    for i in range(4):
        a(f"v_lshl_or_b32 v{16+i}, v{28+i}, 18, v{16+i}\nds_write_b32 v{40+i}, v{16+i} offset:8")
    for i in range(4):
        if i % 2 == 0: a(f"s_waitcnt vmcnt({1 - i//2})")
        a(f"ds_write2_b32 v{40+i}, v{20+2*i}, v{21+2*i} offset0:0 offset1:1")
    a(f"""
    s_mov_b64 exec, -1
    s_branch A_JOIN
A_N1:
    ; ================= waves 5..15
    v_mov_b32 v8, 0
    """)
    wlane(a, 6)
    a(f"""
    s_sub_u32 s{sVT}, s{sWV}, 5
    s_lshl_b32 s{sVT}, s{sVT}, 12
    s_add_u32 m0, s{sVT}, {W1S}
    s_waitcnt lgkmcnt(0)
    s_mov_b32 s{sW}, s12
    s_and_b32 s{sW+1}, s13, 0xffff
    {WSOFF}
    s_cmp_ge_u32 s{sWV}, 13
    s_cbranch_scc1 A_N13
    """)
    if "w1late" not in OPT: wdma(a, sVT, 6)
    a(f"""
    s_cmp_ge_u32 s{sWV}, 10
    s_cbranch_scc1 A_N10
    ; waves 5..8: histogram = 0; wave 9: node counters and flags = 0
    s_mov_b32 s{sTMP+1}, {HIST - 320*4}
    s_cmp_eq_u32 s{sWV}, 9
    s_cselect_b32 s{sTMP+1}, {CNT - 576*4}, s{sTMP+1}
    v_lshl_add_u32 v3, v0, 2, s{sTMP+1}
    ds_write_b32 v3, v8
    ds_write_b32 v8, v8 offset:{FLG}
    ds_write_b32 v8, v8 offset:{FLG+4}
    s_cbranch_scc0 A_B0
    ds_write_b32 v3, v8 offset:{TF}
    s_branch A_B0
A_N13:
    s_cmp_eq_u32 s{sWV}, 15
    s_cbranch_scc1 A_N15
    s_and_b32 s{sTMP}, s{sG}, 31
    s_lshl_b32 s{sTMP}, s{sTMP}, 10
    s_cmp_eq_u32 s{sWV}, 13
    s_cselect_b32 s{sTMP+1}, 32768, 0
    s_cselect_b32 s{sTMP+2}, s12, s14
    s_cselect_b32 s{sTMP+3}, s13, s15
    s_add_u32 s{sTMP}, s{sTMP}, s{sTMP+1}
    v_lshl_add_u32 v3, v{VL}, 7, s{sTMP}
    s_mov_b64 exec, 0xff
    global_load_dword v40, v3, s[{sTMP+2}:{sTMP+3}]
    s_mov_b64 exec, -1
    s_cmp_eq_u32 s{sWV}, 14
    s_cbranch_scc0 A_N10
    """)
    if "bulk" in OPT:
        nl, fl = OPT["bulk"].split(":"); nl = int(nl); fl = fl.replace("+", " ").replace("-", "")
        a(f"""
        s_mul_i32 s3, s{sG}, {REC_STRIDE}
        s_add_u32 s3, s3, {WS_REC}
        v_lshl_add_u32 v3, v{VL}, 4, s3
        v_mov_b64 v[4:5], 0
        v_mov_b64 v[6:7], 0
        s_waitcnt vmcnt(0)
        s_sleep {OPT.get("bsl", 0)}
        @amp 12
        """)
        for k in range(nl): a(f"global_store_dwordx4 v3, v[4:7], s[{sWS}:{sWS+1}] {fl}\nv_add_u32 v3, 1024, v3")
        a(f"""
        s_waitcnt vmcnt(0)
        @amp 13
        """)
    if "probe" in OPT:
        kind, nl = OPT["probe"].split(":"); nl = int(nl)
        a(f"""
        s_mul_i32 s3, s{sG}, {REC_STRIDE}
        s_add_u32 s3, s3, {WS_REC}
        v_lshl_add_u32 v3, v{VL}, 7, s3
        v_mov_b32 v4, 0
        s_waitcnt vmcnt(0)
        @amp 12
        s_mov_b64 exec, {(1 << nl) - 1 if nl < 32 else -1}
        {"global_store_dword v3, v4" if kind == "st" else "global_load_dword v4, v3"}, s[{sWS}:{sWS+1}] sc1
        s_mov_b64 exec, -1
        s_waitcnt vmcnt(0)
        @amp 13
        """)
    if "tlb" in OPT:
        a(f"""
        v_mov_b32 v3, 0
        s_mov_b32 s3, {WS_REC - 128}
        v_writelane_b32 v3, s3, 1
        s_mov_b32 s3, {WS_REC + 200*REC_STRIDE - 128}
        v_writelane_b32 v3, s3, 2
        s_mov_b32 s3, {WS_F + 65536}
        v_writelane_b32 v3, s3, 3
        s_lshl_b32 s3, s{sSTART}, 8
        v_mov_b32 v4, s3
        v_mov_b32 v5, 128
        s_mov_b64 exec, 15
        global_load_dword v41, v3, s[{sWS}:{sWS+1}]
        s_mov_b64 exec, 1
        global_load_dword v42, v4, s[16:17]
        global_load_dword v43, v5, s[18:19]
        s_mov_b64 exec, -1
        """)
    a(f"""
    s_branch A_B0
A_N10:
    ; waves 10..13: src list = 0xffff (index out of range)
    v_lshlrev_b32 v3, 4, v0
    v_add_u32 v3, {SS - 640*16}, v3
    v_mov_b64 v[12:13], -1
    v_mov_b64 v[14:15], -1
    ds_write_b128 v3, v[12:15]
    s_branch A_B0
A_N15:
    s_cmp_lg_u32 s2, 0
    s_cbranch_scc1 A_B0
    s_memrealtime s[{sNON}:{sNON+1}]
    s_waitcnt lgkmcnt(0)
    s_or_b32 s{sNON}, s{sNON}, 1
    v_mov_b32 v10, s{sNON}
    v_mov_b32 v11, s{sNON+1}
    s_mov_b64 exec, 1
    global_store_dwordx2 v8, v[10:11], s[18:19] sc1
    s_mov_b64 exec, -1
A_B0:
    """)
    if "x_prew" in OPT:
        op = "global_atomic_or" if OPT["x_prew"] == "atom" else "global_store_dword"
        a(f"""
        s_sub_u32 s3, s{sWV}, 11
        s_cmp_gt_u32 s3, 3
        s_cbranch_scc1 X_NOPW
        s_mul_i32 s{sTMP}, s{sG}, {REC_STRIDE}
        s_add_u32 s{sTMP}, s{sTMP}, {WS_REC}
        s_lshl_b32 s{sTMP+1}, s{sSTART}, 8
        s_add_u32 s{sTMP+1}, s{sTMP+1}, {WS_P}
        s_cmp_lt_u32 s3, 2
        s_cselect_b32 s{sTMP}, s{sTMP}, s{sTMP+1}
        s_cselect_b32 s{sTMP+1}, 42, 0
        s_add_u32 s{sTMP+1}, s{sTMP+1}, 77
        s_and_b32 s3, s3, 1
        s_lshl_b32 s3, s3, 6
        v_add_u32 v3, s3, v{VL}
        v_cmp_ge_u32 vcc, s{sTMP+1}, v3
        v_lshl_add_u32 v3, v3, 7, s{sTMP}
        v_mov_b32 v4, 0
        s_mov_b64 exec, vcc
        {op} v3, v4, s[{sWS}:{sWS+1}] sc1
        s_mov_b64 exec, -1
        s_cmp_eq_u32 s{sWV}, 14
        s_cbranch_scc0 X_NOPW
        s_lshl_b32 s{sTMP}, s{sG}, 11
        s_add_u32 s{sTMP}, s{sTMP}, {WS_T}
        v_lshl_add_u32 v3, v{VL}, 7, s{sTMP}
        s_mov_b64 exec, 0xffff
        {op} v3, v4, s[{sWS}:{sWS+1}] offset:4 sc1
        s_mov_b64 exec, -1
X_NOPW:
        """)
    a(f"""
    s_cmp_eq_u32 s{sWV}, 15
    s_cbranch_scc1 A_B1
    v_lshlrev_b32 v3, 4, v0
    v_add_u32 v3, {AGG - 320*16}, v3
    v_mov_b64 v[12:13], 0
    v_mov_b64 v[14:15], 0
    ds_write_b128 v3, v[12:15]
    ds_write_b128 v3, v[12:15] offset:10240
    ds_write_b128 v3, v[12:15] offset:20480
    ds_write_b128 v3, v[12:15] offset:30720
A_B1:
    s_waitcnt lgkmcnt({"0" if "zearly" in OPT else "4"})
    s_barrier
    """)
    if "w1late" in OPT:
        a(f"s_cmp_ge_u32 s{sWV}, 13\ns_cbranch_scc1 A_NOW1")
        wdma(a, sVT, 6)
        a("A_NOW1:")
    a(f"""
    s_cmp_eq_u32 s{sWV}, 15
    s_cbranch_scc0 A_NO15
    v_bfe_u32 v9, v{VL}, 4, 1
    v_lshlrev_b32 v9, 6, v9
    v_lshrrev_b32 v10, 5, v{VL}
    v_lshl_add_u32 v9, v10, 5, v9
    v_add_u32 v9, v9, v{VJ}
    v_lshlrev_b32 v9, 1, v9
    v_add_u32 v8, {256*256}, v9
    """)
    for s in range(8):
        a(f"global_load_ushort v{16 + s}, v8, s[12:13] offset:{(s & 3)*256 + (s >> 2)*32}")
    a(f"""
    s_cmp_ge_u32 s{sG}, 32
    s_cbranch_scc1 A_NO15
    s_and_b32 s{sTMP}, s{sG}, 1
    s_lshl_b32 s{sTMP}, s{sTMP}, 3
    s_bfe_u32 s{sTMP+1}, s{sG}, 0x10001
    s_lshl_b32 s{sTMP+1}, s{sTMP+1}, 6
    s_add_u32 s{sTMP}, s{sTMP}, s{sTMP+1}
    s_add_u32 s{sTMP}, s{sTMP}, 128
    s_lshl_b32 s{sTMP}, s{sTMP}, 8
    s_bfe_u32 s{sTMP+1}, s{sG}, 0x30002
    s_lshl_b32 s{sTMP+1}, s{sTMP+1}, 5
    s_add_u32 s{sTMP}, s{sTMP}, s{sTMP+1}
    v_lshlrev_b32 v8, 9, v{VG}
    v_lshl_add_u32 v8, v{VJ}, 1, v8
    v_add_u32 v8, s{sTMP}, v8
    v_add_u32 v9, {32*256}, v8
    v_add_u32 v10, {16*256}, v8
    v_add_u32 v11, {48*256}, v8
    """)
    for s in range(8):
        a(f"global_load_ushort v{24 + s}, v{8 + (s >> 1)}, s[14:15] offset:{(s & 1)*256}")
    a(f"""
A_NO15:
    """)
    consts(a)
    a(f"""
    s_barrier
    s_cmp_ge_u32 s{sWV}, 11
    s_cbranch_scc1 A_G11
    ; ================= waves 5..10: P = -log2e * x @ W1 for this group's rows (rt = (wv-5)>>1, hf = (wv-5)&1)
    s_sub_u32 s3, s{sWV}, 5
    s_and_b32 s{sTMP+1}, s3, 1
    s_lshr_b32 s{sTMP}, s3, 1
    s_lshl_b32 s{sTMP+2}, s{sTMP}, 12
    v_add_u32 v0, s{sTMP+2}, v{XA}
    v_add_u32 v1, s{sTMP+2}, v{XA+1}
    v_add_u32 v2, s{sTMP+2}, v{XA+2}
    v_add_u32 v3, s{sTMP+2}, v{XA+3}
    s_lshl_b32 s{sTMP+1}, s{sTMP+1}, 7
    v_xor_b32 v4, s{sTMP+1}, v{WA}
    v_add_u32 v4, {W1S}, v4
    v_xor_b32 v5, 32, v4
    v_xor_b32 v6, 64, v4
    v_xor_b32 v7, 96, v4
    s_add_u32 s{sTMP+2}, s{sTMP+2}, s{sTMP+1}
    """)
    if not PSTG:
        a(f"""
        s_lshl_b32 s{sTMP+1}, s{sSTART}, 8
        s_add_u32 s{sTMP+2}, s{sTMP+2}, s{sTMP+1}
        s_add_u32 s{sTMP+2}, s{sTMP+2}, {WS_P}
        """)
    a(f"""
    v_lshlrev_b32 v{NANC}, 10, v{VG}
    v_lshl_add_u32 v{NANC}, v{VJ}, 3, v{NANC}
    v_add_u32 v{NANC}, s{sTMP+2}, v{NANC}
    s_mov_b32 s{sTMP+2}, {NLOG2E:#x}
    s_waitcnt vmcnt(0)
    @stamp 3
    s_barrier
    s_setprio 1
    """)
    def breads(ks):
        b = 8 + 16*(ks & 1)
        a(f"ds_read_b128 v[{40+4*ks}:{43+4*ks}], v{ks} offset:{XS}")
        for i in range(4):
            for h in range(2):
                a(f"ds_read_b64_tr_b16 v[{b+4*i+2*h}:{b+4*i+2*h+1}], v{4+i} offset:{8192*ks + 1024*h}")
    breads(0)
    for ks in range(4):
        if ks < 3:
            breads(ks+1)
            a("s_waitcnt lgkmcnt(9)")
        else:
            a("s_waitcnt lgkmcnt(0)")
        b = 8 + 16*(ks & 1)
        for i in range(4):
            c = "0" if ks == 0 else f"v[{56+4*i}:{59+4*i}]"
            a(f"v_mfma_f32_16x16x32_bf16 v[{56+4*i}:{59+4*i}], v[{40+4*ks}:{43+4*ks}], v[{b+4*i}:{b+4*i+3}], {c}")
    a(f"""
    s_cmp_eq_u32 s{sTMP}, 2
    s_cselect_b32 exec_hi, 0, -1
    s_nop 5
    """)
    a("@amp 14")
    for q in range(8):
        a(f"v_pk_mul_f32 v[{56+2*q}:{57+2*q}], v[{56+2*q}:{57+2*q}], s[{sTMP+2}:{sTMP+3}] op_sel_hi:[1,0]")
    for r in range(4):
        a(f"v_cvt_pk_bf16_f32 v{8+2*r}, v{56+r}, v{60+r}\nv_cvt_pk_bf16_f32 v{9+2*r}, v{64+r}, v{68+r}")
        if PSTG: a(f"ds_write_b64 v{NANC}, v[{8+2*r}:{9+2*r}] offset:{PST + 256*r}")
        else: a(f"global_store_dwordx2 v{NANC}, v[{8+2*r}:{9+2*r}], s[{sWS}:{sWS+1}] offset:{256*r} {STF}")
    a(f"""
    s_mov_b64 exec, -1
    {"s_waitcnt vmcnt(0)" if AMP == 15 else ""}
    @amp 15
    s_setprio 0
    s_branch A_JOIN
A_G11:
    s_cmp_eq_u32 s{sWV}, 15
    s_cbranch_scc1 A_G15
    """)
    if "x_prew" in OPT: a(f"s_cmp_ge_u32 s{sWV}, 13\ns_cbranch_scc1 X_NW\ns_waitcnt vmcnt(1)\nX_NW:")
    a(f"""
    s_waitcnt vmcnt({63 if "x_prew" in OPT else 0})
    @stamp 3
    s_barrier
    s_branch A_JOIN
A_G15:
    @stamp 3
    s_barrier
    v_mov_b32 v8, 0
    s_mov_b32 s{sSPIN}, {SPINMAX}
A_NLOOP:
    global_load_dwordx2 v[10:11], v8, s[18:19] sc1
    s_sub_u32 s{sSPIN}, s{sSPIN}, 1
    s_cbranch_scc1 A_NDONE
    s_waitcnt vmcnt(0)
    v_cmp_eq_u32 vcc, 0, v10
    s_cbranch_vccnz A_NLOOP
A_NDONE:
    s_waitcnt vmcnt(0)
    v_lshlrev_b32 v11, 22, v11
    ds_write_b64 v8, v[10:11] offset:{NON}
    s_mov_b32 s{sTMP}, {NLOG2E:#x}
    """)
    tagbase(a, 10)
    if "tlb2" in OPT:
        a(f"""
        v_mov_b32 v3, 0
        s_mov_b32 s3, {WS_REC - 128}
        v_writelane_b32 v3, s3, 1
        s_mov_b32 s3, {WS_REC + 200*REC_STRIDE - 128}
        v_writelane_b32 v3, s3, 2
        s_mov_b32 s3, {WS_F + 65536}
        v_writelane_b32 v3, s3, 3
        s_mov_b64 exec, 15
        global_load_dword v41, v3, s[{sWS}:{sWS+1}]
        s_mov_b64 exec, -1
        """)
    for s in range(8):
        a(f"v_lshlrev_b32 v{16+s}, 16, v{16+s}\nv_mul_f32 v{16+s}, s{sTMP}, v{16+s}")
    for q in range(4):
        a(f"v_cvt_pk_bf16_f32 v{12+q}, v{16+2*q}, v{17+2*q}")
    a(f"""
    v_lshlrev_b32 v8, 4, v{VL}
    ds_write_b128 v8, v[12:15] offset:{W3S}
    s_cmp_ge_u32 s{sG}, 32
    s_cbranch_scc1 A_JOIN
    """)
    for q in range(4):
        a(f"v_lshl_or_b32 v{32+q}, v{25+2*q}, 16, v{24+2*q}")
    a(f"""
    s_lshl_b32 s{sTMP}, s{sG}, 10
    s_add_u32 s{sTMP}, s{sTMP}, {WS_F}
    v_add_u32 v8, s{sTMP}, v8
    global_store_dwordx4 v8, v[32:35], s[{sWS}:{sWS+1}] sc1
A_JOIN:
    v_lshlrev_b32 v0, 4, v{TID}
    s_mul_i32 s{sTMP}, s{sG}, {REC_STRIDE}
    s_add_u32 s{sTMP}, s{sTMP}, {WS_REC}
    v_add_u32 v1, s{sTMP}, v0
    s_lshl_b32 s{sTMP}, s{sSTART}, 8
    s_add_u32 s{sTMP}, s{sTMP}, {WS_P - 384*16}
    v_add_u32 v2, s{sTMP}, v0
    v_mov_b32 v3, 0
    s_waitcnt lgkmcnt(0)
    @stamp 4
    s_barrier
    @amp 2
    """)
    if PSTG:
        a(f"""
        s_cmp_eq_u32 s{sWV}, 15
        s_cbranch_scc1 A_C0
        ds_read_b64 v[{SAD}:{SAD+1}], v3 offset:{NON}
        ds_read_b128 v[4:7], v0 offset:{STAGE}
        s_cmp_lt_u32 s{sWV}, 6
        s_cbranch_scc1 A_C1
        ds_read_b128 v[8:11], v0 offset:{PST - 384*16}
        s_waitcnt lgkmcnt(2)
        """)
        tagbase(a, SAD)
        a(f"""
        s_waitcnt lgkmcnt(1)
        global_store_dwordx4 v1, v[4:7], s[{sWS}:{sWS+1}] {STF}
        s_branch A_C0B
A_C0:
        ds_read_b128 v[8:11], v0 offset:{PST - 384*16}
A_C0B:
        s_waitcnt lgkmcnt(0)
        global_store_dwordx4 v2, v[8:11], s[{sWS}:{sWS+1}] {STF}
        s_branch A_C2
A_C1:
        s_waitcnt lgkmcnt(1)
        """)
        tagbase(a, SAD)
        a(f"""
        s_waitcnt lgkmcnt(0)
        global_store_dwordx4 v1, v[4:7], s[{sWS}:{sWS+1}] {STF}
        """)
    else:
        a(f"""
        s_cmp_eq_u32 s{sWV}, 15
        s_cbranch_scc1 A_C2
        ds_read_b128 v[4:7], v0 offset:{STAGE}
        ds_read_b64 v[{SAD}:{SAD+1}], v3 offset:{NON}
        s_waitcnt lgkmcnt(1)
        global_store_dwordx4 v1, v[4:7], s[{sWS}:{sWS+1}] {STF}
        s_waitcnt lgkmcnt(0)
        """)
        tagbase(a, SAD)
    a(f"""
A_C2:
    {"s_waitcnt vmcnt(0)" if AMP == 17 else ""}
    @amp 16
    @amp 17
    """)
    if "xcctest" in OPT:
        a(f"""
        s_getreg_b32 s80, hwreg(HW_REG_XCC_ID)
        s_and_b32 s80, s80, 15
        s_mul_i32 s3, s{sG}, {REC_STRIDE}
        s_add_u32 s3, s3, {WS_REC + 15360}
        v_mov_b32 v30, s3
        v_mov_b32 v31, s80
        global_store_dword v30, v31, s[{sWS}:{sWS+1}] sc1
        """)
    a(f"""
    v_lshlrev_b32 v3, 4, v{VL}
    ds_read_b128 v[{W3}:{W3+3}], v3 offset:{W3S}
    """)
    wlane(a, 14)
    a(f"""
    s_lshl_b32 s{sTMP}, s{sWV}, 12
    s_add_u32 s{sTMP+1}, s{sTMP}, 32768
    s_sub_u32 s{sTMP+2}, s{sTMP}, 32768
    s_add_u32 s{sTMP+3}, s{sTMP}, {W2S}
    s_add_u32 s{sTMP}, s{sTMP+2}, {WTS}
    s_cmp_lt_u32 s{sWV}, 8
    s_cselect_b32 s{sW}, s12, s14
    s_cselect_b32 s{sW+1}, s13, s15
    s_cselect_b32 s{sVT}, s{sTMP+1}, s{sTMP+2}
    s_cselect_b32 m0, s{sTMP+3}, s{sTMP}
    s_and_b32 s{sW+1}, s{sW+1}, 0xffff
    """)
    if W2E:
        a("s_barrier" if "wboth" in OPT else f"s_barrier\ns_cmp_ge_u32 s{sWV}, 8\ns_cbranch_scc1 A_C4")
        a("@amp 18")
        wdma(a, sVT, 14)
        a("A_C4:")
        a("@amp 19")
    a(f"""
    s_mov_b32 s{sO}, s16
    s_and_b32 s{sO+1}, s17, 0xffff
    s_lshl_b32 s{sO+2}, s{sEND}, 8
    s_mov_b32 s{sO+3}, 0x20000
    s_add_u32 s{sP}, s{sWS}, {WS_P}
    s_addc_u32 s{sP+1}, s{sWS+1}, 0
    s_and_b32 s{sP+1}, s{sP+1}, 0xffff
    s_or_b32 s{sP+1}, s{sP+1}, {256 << 16}
    s_mov_b32 s{sP+2}, {N}
    s_mov_b32 s{sP+3}, 0x20000
    s_sub_u32 s{sP2}, s{sP}, 1024
    s_subb_u32 s{sP2+1}, s{sP+1}, 0
    s_mov_b32 s{sP2+2}, {N}
    s_mov_b32 s{sP2+3}, 0x20000
    s_add_u32 s{sREC}, s{sWS}, {WS_REC}
    s_addc_u32 s{sREC+1}, s{sWS+1}, 0
    s_and_b32 s{sREC+1}, s{sREC+1}, 0xffff
    s_mov_b32 s{sREC+2}, {NG*REC_STRIDE}
    s_mov_b32 s{sREC+3}, 0x20000
    s_mov_b32 s{sMODE}, 0
    s_mov_b32 s{sR0}, 0
    s_mov_b32 s{sR}, {4*RMAX}
    s_mov_b32 s{sONE}, 1.0
    s_mov_b32 s{sONE+1}, 1.0
    s_mov_b32 s{sSPIN}, {SPINMAX}
    v_mov_b64 v[{NANC}:{NANC+1}], 0
    v_mov_b32 v{MAXC}, 0
    s_and_b32 s{sTMP}, s{sWV}, 7
    s_lshl_b32 s{sTMP}, s{sTMP}, 5
    v_xor_b32 v{WA}, s{sTMP}, v{WA}
    s_and_b32 s{sTMP}, s{sWV}, 8
    s_lshl_b32 s{sTMP}, s{sTMP}, 12
    s_add_u32 s{sTMP}, s{sTMP}, {WTS}
    v_add_u32 v{WA}, s{sTMP}, v{WA}
    s_bfe_u32 s{sTMP}, s{sWV}, 0x10002
    s_lshl_b32 s{sTMP}, s{sTMP}, 7
    s_bfe_u32 s{sTMP+1}, s{sWV}, 0x10001
    s_lshl_b32 s{sTMP+1}, s{sTMP+1}, 8
    s_add_u32 s{sTMP}, s{sTMP}, s{sTMP+1}
    s_and_b32 s{sTMP+1}, s{sWV}, 1
    s_lshl_b32 s{sTMP+1}, s{sTMP+1}, 2
    s_add_u32 s{sTMP}, s{sTMP}, s{sTMP+1}
    v_lshlrev_b32 v{QAD}, 11, v{VG}
    v_lshl_add_u32 v{QAD}, v{VJ}, 3, v{QAD}
    v_add_u32 v{QAD}, s{sTMP}, v{QAD}
    s_mov_b32 s{sTMP+2}, {NLOG2E:#x}
    """)
    if PF1:
        a(f"""
        ; this CU's share of the first {512*PF1} lines of P (pulled into the L2 behind the publish; speed only)
        s_and_b32 s{sTMP}, s{sG}, 31
        s_lshl_b32 s{sTMP}, s{sTMP}, 4
        s_add_u32 s{sTMP}, s{sTMP}, s{sWV}
        s_lshr_b32 s{sTMP+1}, s{sG}, 5
        s_lshl_b32 s{sTMP+1}, s{sTMP+1}, 6
        s_add_u32 s{sTMP}, s{sTMP}, s{sTMP+1}
        s_and_b32 s{sTMP}, s{sTMP}, 511
        s_mul_i32 s{sTMP}, s{sTMP}, {PF1*128}
        s_add_u32 s{sTMP}, s{sTMP}, {WS_P}
        v_lshl_add_u32 v3, v{L8}, 4, s{sTMP}
        """)
    a(f"""
    s_cmp_lt_u32 s{sWV}, 14
    s_cbranch_scc1 A_NOT
    ; waves 14, 15: granules (start | count<<11 | tag<<22, tag) of groups 2t, 2t+1 (t = tid - 896)
    v_lshlrev_b32 v8, 3, v{TID}
    ds_read_b64 v[10:11], v8 offset:{OFFS - 896*8}
    ds_read_b64 v[12:13], v8 offset:{HIST - 896*8}
    s_lshl_b32 s{sTMP}, s{sG}, 11
    s_add_u32 s{sTMP}, s{sTMP}, {WS_T - 896*16}
    v_lshl_add_u32 v8, v8, 1, s{sTMP}
    v_mov_b32 v5, s{sNON}
    v_mov_b32 v7, s{sNON}
    s_waitcnt lgkmcnt(0)
    v_lshl_or_b32 v4, v12, 11, v10
    v_lshl_or_b32 v6, v13, 11, v11
    v_or_b32 v4, s{sNON+1}, v4
    v_or_b32 v6, s{sNON+1}, v6
    s_waitcnt vmcnt({4 if "wboth" in OPT else 0})
    @stamp 5
    @amp 10
    s_barrier
    global_store_dwordx4 v8, v[4:7], s[{sWS}:{sWS+1}] sc1
    s_branch A_PUB
A_NOT:
    """)
    if "wboth" in OPT: a("s_waitcnt vmcnt(4)")
    elif W2E: a(f"s_cmp_lt_u32 s{sWV}, 8\ns_cbranch_scc1 A_WT4\ns_waitcnt vmcnt(0)\nA_WT4:\ns_waitcnt vmcnt(4)")
    else: a("s_waitcnt vmcnt(0)")
    a(f"""
    @stamp 5
    @amp 10
    s_barrier
    {"s_waitcnt vmcnt(0)" if Q1 else ""}
A_PUB:
    s_barrier
    @amp 3
    """)
    if W2E: a(f"s_cmp_lt_u32 s{sWV}, 8\ns_cbranch_scc1 A_NOWT")
    if "wboth" not in OPT: wdma(a, sVT, 14)
    if W2E and not Q1: a("A_NOWT:")
    if PF1:
        a(f"""
        s_barrier
        s_mov_b64 exec, {(1 << PF1) - 1:#x}
        global_load_dword v2, v3, s[{sWS}:{sWS+1}] sc1
        s_mov_b64 exec, -1
        """)
    if Q1:
        a(f"s_branch A_QD\nA_NOWT:\nv_add_u32 v2, 32768, v{WA}")
        for ks in range(4):
            for h in range(2):
                a(f"ds_read_b64_tr_b16 v[{16+4*ks+2*h}:{17+4*ks+2*h}], v2 offset:{8192*ks + 1024*h}")
        xreads(a, 32, XS); xreads(a, 48, XS + 4096); xreads(a, 0, XS + 8192)
        for rt in range(3):
            a(f"s_waitcnt lgkmcnt({8 - 4*rt})")
            mm16(a, UA[rt], (32, 48, 0)[rt], 16)
        for rt in range(3):
            for q in range(2):
                u = UA[rt] + 2*q
                a(f"v_pk_mul_f32 v[{u}:{u+1}], v[{u}:{u+1}], s[{sTMP+2}:{sTMP+3}] op_sel_hi:[1,0]")
            if rt == 2: a("s_mov_b32 exec_hi, 0")
            for r in range(4):
                a(f"ds_write_b32 v{QAD}, v{UA[rt]+r} offset:{QS + rt*8192 + r*512}")
        a("s_mov_b64 exec, -1")
    a(f"""
A_QD:
    s_lshl_b32 s{sRING}, s{sWV}, 12
    s_add_u32 s{sRING}, s{sRING}, {RING}
    s_add_u32 s{sRING+1}, s{sRING}, 2048
    s_and_b32 s{sRHO}, s{sWV}, 3
    s_lshl_b32 s{sRHO}, s{sRHO}, 2
    s_lshr_b32 s{sTMP}, s{sWV}, 2
    s_or_b32 s{sRHO}, s{sRHO}, s{sTMP}
    v_add_u32 v{PAD}, s{sRING}, v{L8}
    s_mov_b32 s3, 1
    v_mov_b32 v19, 0x3fffff
    s_waitcnt vmcnt({1 if PF1 else 0})
    @stamp 6
    @amp 11
    {"s_barrier" if "noqbar" not in OPT else ""}
    {f"s_sleep {OPT['sleep0']}" if "sleep0" in OPT else ""}
    @amp 4
T_LOOP:
    global_load_dwordx2 v[20:21], v{AAD}, s[{sWS}:{sWS+1}] sc1
    s_sub_u32 s{sSPIN}, s{sSPIN}, 1
    s_cbranch_scc1 T_DONE
    s_waitcnt vmcnt(0)
    v_xor_b32 v{TW}, s{sNON+1}, v20
    v_cmp_ne_u32 vcc, s{sNON}, v21
    v_cmp_lt_u32 s[{sTMP}:{sTMP+1}], v19, v{TW}
    s_or_b64 exec, vcc, s[{sTMP}:{sTMP+1}]
    s_cbranch_scc1 T_LOOP
T_DONE:
    s_mov_b64 exec, -1
    s_waitcnt vmcnt(0)
    @stamp 7
    @amp 5
K_PASS:
    v_and_b32 v9, 0x7ff, v{TW}
    v_bfe_u32 v15, v{TW}, 11, 11
    v_add_u32 v9, s{sR0}, v9
    v_mad_u32_u24 v9, v9, 12, v{RAD}
    v_subrev_u32 v15, s{sR0}, v15
    v_min_i32 v10, s{sR}, v15
    v_and_b32 v11, 3, v{TID}
    v_sub_u32 v10, v10, v11
    """)
    for r in range(RMAX):
        a(f"v_cmp_lt_i32 s[{sEX+2*r}:{sEX+2*r+1}], {4*r}, v10")
    a(f"v_cmp_lt_i32 vcc, s{sR}, v15")
    for r in range(RMAX):
        a(f"s_mov_b64 exec, s[{sEX+2*r}:{sEX+2*r+1}]")
        if r >= 2: a(f"s_cbranch_execz K_LD")
        w = 4 if "rx4" in OPT else 3
        a(f"buffer_load_dwordx{w} v[{32+4*r}:{31+4*r+w}], v9, s[{sREC}:{sREC+3}], 0 offen offset:{48*r} sc1")
    a(f"""
K_LD:
    s_mov_b64 exec, -1
    v_mov_b32 v13, 1
    v_lshrrev_b32 v14, 1, v{L8}
    s_cbranch_vccz K_NOMORE
    v_mov_b32 v9, 0
    ds_write_b32 v9, v13 offset:{FLG}
K_NOMORE:
    """)
    if PF2:
        a(f"""
        s_and_b32 s{sTMP}, s{sG}, 31
        s_lshl_b32 s{sTMP}, s{sTMP}, 4
        s_add_u32 s{sTMP}, s{sTMP}, s{sWV}
        s_lshr_b32 s{sTMP+1}, s{sG}, 5
        s_lshl_b32 s{sTMP+1}, s{sTMP+1}, 6
        s_add_u32 s{sTMP}, s{sTMP}, s{sTMP+1}
        s_and_b32 s{sTMP}, s{sTMP}, 511
        s_mul_i32 s{sTMP}, s{sTMP}, {PF2*128}
        s_add_u32 s{sTMP}, s{sTMP}, {(20000 - 512*PF2)*128 + WS_P}
        v_lshl_add_u32 v12, v{L8}, 4, s{sTMP}
        """)
    a(f"""
    s_cmp_eq_u32 s3, 0
    s_mov_b32 s3, 0
    s_cbranch_scc1 K_NOU
    {f"s_cmp_ge_u32 s{sWV}, 8" if Q1 else ""}
    {"s_cbranch_scc1 K_NOU" if Q1 else ""}
    ; first pass, column tile wv&7: waves 0..7 U = -log2e * (x @ Wupd_top)^T (rows = channels) -> registers,
    """)
    for ks in range(4):
        for h in range(2):
            a(f"ds_read_b64_tr_b16 v[{16+4*ks+2*h}:{17+4*ks+2*h}], v{WA} offset:{8192*ks + 1024*h}")
    XB0 = (52, 56, 60, 64); XB1 = (0, 4, 8, 68)
    def xr(xb, off):
        for ks in range(4): a(f"ds_read_b128 v[{xb[ks]}:{xb[ks]+3}], v{XA+ks} offset:{off}")
    xr(XB0, XS); xr(XB1, XS + 4096)
    a(f"s_mov_b32 s{sTMP+2}, {NLOG2E:#x}\ns_cmp_ge_u32 s{sWV}, 8\ns_cbranch_scc1 K_Q")
    for isq in (0, 1):
        if isq: a("K_Q:")
        def um(rt, xb):
            for ks in range(4):
                c = "0" if ks == 0 else f"v[{UA[rt]}:{UA[rt]+3}]"
                w = f"v[{16+4*ks}:{19+4*ks}]"; x = f"v[{xb[ks]}:{xb[ks]+3}]"
                a(f"v_mfma_f32_16x16x32_bf16 v[{UA[rt]}:{UA[rt]+3}], {x if isq else w}, {w if isq else x}, {c}")
        a("s_waitcnt lgkmcnt(4)")
        um(0, XB0)
        xr(XB0, XS + 8192)
        a("s_waitcnt lgkmcnt(4)")
        um(1, XB1)
        a("s_waitcnt lgkmcnt(0)")
        um(2, XB0)
        if not isq: a("s_nop 3")
        for rt in range(3):
            if rt == 2 and not isq: a("s_nop 1")
            for q in range(2):
                u = UA[rt] + 2*q
                a(f"v_pk_mul_f32 v[{u}:{u+1}], v[{u}:{u+1}], s[{sTMP+2}:{sTMP+3}] op_sel_hi:[1,0]")
            if isq:
                if rt == 2: a("s_mov_b32 exec_hi, 0")
                for r in range(4):
                    a(f"ds_write_b32 v{QAD}, v{UA[rt]+r} offset:{QS + rt*8192 + r*512}")
        a("s_mov_b64 exec, -1" if isq else "s_branch K_NOU")
    a("K_NOU:\ns_waitcnt vmcnt(0)\n@stamp 8\n@amp 6")
    if PF2:
        a(f"s_mov_b64 exec, {(1 << PF2) - 1:#x}\nglobal_load_dword v63, v12, s[{sWS}:{sWS+1}] sc1")
    for r in range(RMAX):
        a(f"s_mov_b64 exec, s[{sEX+2*r}:{sEX+2*r+1}]")
        if r >= 2: a(f"s_cbranch_execz K_HD")
        a(f"v_lshrrev_b32 v{r}, 16, v{34+4*r}\nds_add_rtn_u32 v{35+4*r}, v{r}, v13 offset:{CNT}")
    a(f"""
K_HD:
    s_mov_b64 exec, -1
    s_waitcnt lgkmcnt(0)
    s_barrier
    ds_read_b32 v8, v14 offset:{CNT}
    s_waitcnt lgkmcnt(0)
    v_add_u32 v10, 7, v8
    v_lshrrev_b32 v11, 3, v10
    """)
    dpp_scan(a, 11, [f"v_cmp_ne_u32 s[{sNZ}:{sNZ+1}], 0, v8", f"v_and_b32 v{NCNT}, 7, v10", f"v_and_b32 v10, -8, v10", f"v_add_u32 v{NCNT}, 1, v{NCNT}"])
    a(f"""
    v_lshlrev_b32 v15, 3, v11
    v_sub_u32 v15, v15, v10
    v_readlane_b32 s{sTMP}, v11, 63
    """)
    for r in range(RMAX):
        if r >= 2: a(f"s_cmp_eq_u64 s[{sEX+2*r}:{sEX+2*r+1}], 0\ns_cbranch_scc1 K_BD")
        a(f"ds_bpermute_b32 v{16+r}, v{r}, v15")
    a(f"""
K_BD:
    s_cmp_gt_u32 s{sTMP}, {CAP//8}
    s_cbranch_scc1 K_SHRINK
    s_mul_i32 s{sT0}, s{sTMP}, s{sRHO}
    s_add_u32 s{sTMP}, s{sT0}, s{sTMP}
    s_lshr_b32 s{sT0}, s{sT0}, 4
    s_lshr_b32 s{sTMP}, s{sTMP}, 4
    v_cmp_ge_u32 vcc, s{sT0}, v11
    s_sub_u32 s{sLEFT}, s{sTMP}, s{sT0}
    s_cmp_lg_u32 s{sWV}, 15
    s_cbranch_scc1 K_NOTF
    s_mov_b64 exec, s[{sNZ}:{sNZ+1}]
    ds_write_b8 v11, v13 offset:{TF - 1}
K_NOTF:
    s_waitcnt lgkmcnt(0)
    """)
    for r in range(RMAX):
        a(f"s_mov_b64 exec, s[{sEX+2*r}:{sEX+2*r+1}]")
        if r >= 2: a("s_cbranch_execz K_SD")
        a(f"""
        v_add_lshl_u32 v10, v{16+r}, v{35+4*r}, 3
        v_add_lshl_u32 v9, v{16+r}, v{35+4*r}, 1
        {f"v_and_b32 v{34+4*r}, {OPT['x_mask']}, v{34+4*r}" if "x_mask" in OPT else ""}
        ds_write_b64 v10, v[{32+4*r}:{33+4*r}] offset:{ES}
        ds_write_b16 v9, v{34+4*r} offset:{SS}
        """)
    a(f"""
K_SD:
    s_mov_b64 exec, -1
    s_bcnt1_i32_b64 s{sNC}, vcc
    s_min_u32 s{sNC}, s{sNC}, 61
    s_or_b32 s{sNZ+1}, s{sNZ+1}, 0xc0000000
    s_lshr_b64 s[{sNZ}:{sNZ+1}], s[{sNZ}:{sNZ+1}], s{sNC}
    s_lshl_b64 s[{sNZ}:{sNZ+1}], s[{sNZ}:{sNZ+1}], s{sNC}
    s_mov_b64 s[{sNZ2}:{sNZ2+1}], s[{sNZ}:{sNZ+1}]
    s_mov_b32 s{sNQ}, s{sNC}
    v_lshl_add_u32 v{AAD}, s{sNC}, 10, v{L8}
    v_lshl_add_u32 v{EAD}, s{sT0}, 6, v{E8}
    v_lshl_add_u32 v{SAD}, s{sT0}, 4, v{G2}
    v_lshrrev_b32 v9, 2, v14
    v_add_u32 v9, s{sT0}, v9
    s_waitcnt lgkmcnt(0)
    s_barrier
    s_setprio 3
    @stamp 10
    @amp 7
    s_cmp_eq_u32 s{sLEFT}, 0
    s_cbranch_scc1 K_MAINDONE
    s_cmp_lg_u32 s{sMODE}, 0
    s_cbranch_scc1 S_START
    """)
    mainloop(a, False)
    a(f"""
K_MAINDONE:
    @stamp 11
    @amp 8
    s_waitcnt vmcnt(0)
    v_mov_b32 v17, {f2u(2.0**120):#x}
    v_add_f32 v18, v{NANC}, v{NANC+1}
    v_cmp_nle_f32 vcc, v{MAXC}, v17
    v_cmp_u_f32 s[{sTMP}:{sTMP+1}], v18, v18
    v_mov_b32 v{QAD}, 0
    s_or_b64 vcc, vcc, s[{sTMP}:{sTMP+1}]
    s_cbranch_scc0 K_NOOVF
    v_mov_b32 v20, 1
    ds_write_b32 v{QAD}, v20 offset:{FLG+4}
K_NOOVF:
    s_cmp_ge_u32 s{sWV}, 8
    s_cbranch_scc1 K_NOFA
    s_lshl_b32 s{sTMP}, s{sWV}, 12
    s_add_u32 s{sTMP}, s{sTMP}, {WS_F}
    v_lshl_add_u32 v{EAD}, v{L8}, 1, s{sTMP}
    """)
    for ks in range(4): a(f"global_load_dwordx4 v[{4*ks}:{4*ks+3}], v{EAD}, s[{sWS}:{sWS+1}] offset:{1024*ks} sc1")
    a(f"""
    v_xor_b32 v16, v{VG}, v{VJ}
    v_lshlrev_b32 v16, 4, v16
    v_lshl_add_u32 v{XA}, v{VJ}, 8, v16
    v_xor_b32 v{XA+1}, 64, v{XA}
    v_xor_b32 v{XA+2}, 128, v{XA}
    v_xor_b32 v{XA+3}, 192, v{XA}
    ; staging address: row*256 + ((2*ct + (g>>1)) ^ j)*16 + (g&1)*8, row = 16*rt + j
    s_lshl_b32 s{sTMP}, s{sWV}, 1
    v_lshrrev_b32 v{EAD}, 1, v{VG}
    v_or_b32 v{EAD}, s{sTMP}, v{EAD}
    v_xor_b32 v{EAD}, v{EAD}, v{VJ}
    v_and_b32 v16, 1, v{VG}
    v_lshl_or_b32 v{EAD}, v{EAD}, 1, v16
    v_lshlrev_b32 v{EAD}, 3, v{EAD}
    v_lshl_add_u32 v{EAD}, v{VJ}, 8, v{EAD}
K_NOFA:
    v_lshrrev_b32 v21, 4, v{TID}
    v_lshlrev_b32 v23, 10, v21
    v_lshl_add_u32 v23, v{VJ}, 4, v23
    v_xor_b32 v24, v21, v{VJ}
    v_and_b32 v24, 15, v24
    v_lshlrev_b32 v24, 4, v24
    v_lshl_add_u32 v{SAD}, v21, 8, v24
    s_lshl_b32 s{sTMP}, s{sSTART}, 8
    v_lshl_add_u32 v{AAD}, v{TID}, 4, s{sTMP}
    s_waitcnt lgkmcnt(0)
    s_barrier
    @estamp 2
    ds_read_b64 v[24:25], v{QAD} offset:{FLG}
    s_cmp_ge_u32 s{sWV}, 10
    s_cbranch_scc1 K_NOCV
    ds_read_b128 v[36:39], v23 offset:{AGG}
    ds_read_b128 v[40:43], v23 offset:{AGG+256}
    ds_read_b128 v[44:47], v23 offset:{AGG+512}
    ds_read_b128 v[48:51], v23 offset:{AGG+768}
    """)
    for q in range(4):
        a(f"s_waitcnt lgkmcnt({3-q})\nv_cvt_f32_f64 v{28+2*q}, v[{36+4*q}:{37+4*q}]\nv_cvt_f32_f64 v{29+2*q}, v[{38+4*q}:{39+4*q}]")
    for q in range(4):
        a(f"v_cvt_pk_bf16_f32 v{28+q}, v{28+2*q}, v{29+2*q}")
    a(f"""
    ds_write_b128 v{SAD}, v[28:31] offset:{AB}
K_NOCV:
    s_waitcnt lgkmcnt(0)
    v_or_b32 v27, v24, v25
    v_cmp_ne_u32 vcc, 0, v27
    s_cbranch_vccnz K_SLOW
K_FINAL:
    @estamp 3
    s_barrier
    @estamp 4
    s_cmp_ge_u32 s{sWV}, 10
    s_cbranch_scc1 {"K_OUT2" if AMP else "K_END2"}
    s_cmp_ge_u32 s{sWV}, 8
    s_cbranch_scc1 K_OUT
    """)
    for rt in range(3): xreads(a, 16 + 16*rt, AB + rt*4096)
    a(f"s_mov_b32 s{sTMP+2}, {f2u(-LOG2E/(1+float(OPT.get('eps', 0)))):#x}\ns_waitcnt vmcnt(0)")
    def fm(rt):
        a(f"s_waitcnt lgkmcnt({8 - 4*rt if not (rt == 2 and 'noeil' not in OPT) else 1})")
        mm16(a, UA[rt], 16 + 16*rt, 0, swap=True, first=False)
    def silu(rt):
        u = UA[rt]; t = 64
        a(f"""
        v_exp_f32 v{t}, v{u}
        v_exp_f32 v{t+1}, v{u+1}
        v_exp_f32 v{t+2}, v{u+2}
        v_exp_f32 v{t+3}, v{u+3}
        v_pk_fma_f32 v[{t}:{t+1}], v[{t}:{t+1}], s[{sTMP+2}:{sTMP+3}], s[{sTMP+2}:{sTMP+3}] op_sel_hi:[1,0,0]
        v_pk_fma_f32 v[{t+2}:{t+3}], v[{t+2}:{t+3}], s[{sTMP+2}:{sTMP+3}], s[{sTMP+2}:{sTMP+3}] op_sel_hi:[1,0,0]
        v_rcp_f32 v{t}, v{t}
        v_rcp_f32 v{t+1}, v{t+1}
        v_rcp_f32 v{t+2}, v{t+2}
        v_rcp_f32 v{t+3}, v{t+3}
        v_pk_mul_f32 v[{t}:{t+1}], v[{t}:{t+1}], v[{u}:{u+1}]
        v_pk_mul_f32 v[{t+2}:{t+3}], v[{t+2}:{t+3}], v[{u+2}:{u+3}]
        v_cvt_pk_bf16_f32 v{16+2*rt}, v{t}, v{t+1}
        v_cvt_pk_bf16_f32 v{17+2*rt}, v{t+2}, v{t+3}
        ds_write_b64 v{EAD}, v[{16+2*rt}:{17+2*rt}] offset:{OUTS + rt*4096}
        """)
    if "noeil" not in OPT:
        fm(0); fm(1); a("s_nop 2"); silu(0); fm(2); silu(1); silu(2)
    else:
        fm(0); fm(1); fm(2); a("@estamp 5"); silu(0); silu(1); silu(2)
    a(f"""
K_OUT:
    s_waitcnt lgkmcnt(0)
    @estamp 6
    s_barrier
    @estamp 7
    ds_read_b128 v[32:35], v{SAD} offset:{OUTS}
    s_waitcnt lgkmcnt(0)
    buffer_store_dwordx4 v[32:35], v{AAD}, s[{sO}:{sO+3}], 0 offen {OPT.get('ost', 'sc1').replace('+', ' ')}
    @estamp 8
    {"s_branch K_END2" if AMP else ""}
K_OUT2:
    {"s_barrier" if AMP else ""}
K_END2:
    """)
    if "x_spin" in OPT:
        a(f"""
        s_cmp_lg_u32 s22, 0
        s_cbranch_scc1 XS_DONE
        s_memrealtime s[68:69]
        s_waitcnt lgkmcnt(0)
XS_LOOP:
        s_memrealtime s[70:71]
        s_waitcnt lgkmcnt(0)
        s_sub_u32 s70, s70, s68
        s_cmp_lt_u32 s70, {OPT["x_spin"]}
        s_cbranch_scc1 XS_LOOP
XS_DONE:
        """)
    if "xcctest" in OPT:
        a(f"""
        s_lshl_b32 s3, s22, 8
        s_or_b32 s3, s3, s{sG}
        s_cmp_lg_u32 s3, 100
        s_cbranch_scc1 XT_DONE
        v_mov_b32 v30, {WS_REC + 15360 + 101*REC_STRIDE}
        global_load_dword v31, v30, s[{sWS}:{sWS+1}] sc1
        s_waitcnt vmcnt(0)
        v_readfirstlane_b32 s81, v31
        s_cmp_eq_u32 s81, s80
        s_cbranch_scc{OPT["xcctest"]} XT_DONE
        s_memrealtime s[76:77]
        s_waitcnt lgkmcnt(0)
XT_LOOP:
        s_memrealtime s[78:79]
        s_waitcnt lgkmcnt(0)
        s_sub_u32 s78, s78, s76
        s_cmp_lt_u32 s78, 2000
        s_cbranch_scc1 XT_LOOP
XT_DONE:
        """)
    a(f"""
    @store
K_END:
    s_endpgm
K_SHRINK:
    ; too many slots for one pass: redo this pass with at most 4 records per cell
    s_mov_b32 s{sR}, 4
    s_mov_b32 s{sTMP+1}, 0
    s_branch K_REINIT
K_SLOW:
    v_readfirstlane_b32 s{sTMP}, v24
    v_readfirstlane_b32 s{sTMP+1}, v25
    s_cmp_eq_u32 s{sMODE}, 0
    s_cselect_b32 s{sTMP+1}, s{sTMP+1}, 0
    s_or_b32 s{sTMP}, s{sTMP}, s{sTMP+1}
    s_cbranch_scc0 K_FINAL
    s_add_u32 s{sR0}, s{sR0}, s{sR}
K_REINIT:
    s_waitcnt vmcnt(0) lgkmcnt(0)
    s_barrier
    v_lshrrev_b32 v9, 1, v{L8}
    v_mov_b32 v10, 0
    ds_write_b32 v9, v10 offset:{CNT}
    ds_write_b32 v9, v10 offset:{TF}
    ds_write_b32 v10, v10 offset:{FLG}
    ds_write_b32 v10, v10 offset:{FLG+4}
    v_lshlrev_b32 v9, 2, v{TID}
    v_mov_b32 v10, -1
    ds_write_b32 v9, v10 offset:{SS}
    s_cmp_eq_u32 s{sTMP+1}, 0
    s_cbranch_scc1 K_SLOW1
    s_mov_b32 s{sMODE}, 1
    s_mov_b32 s{sR0}, 0
    s_mov_b32 s{sR}, {4*RMAX}
    v_lshlrev_b32 v9, 4, v{TID}
    v_add_u32 v9, {AGG}, v9
    v_mov_b64 v[32:33], 0
    v_mov_b64 v[34:35], 0
    ds_write_b128 v9, v[32:35]
    ds_write_b128 v9, v[32:35] offset:16384
    ds_write_b128 v9, v[32:35] offset:24576
K_SLOW1:
    s_waitcnt lgkmcnt(0)
    s_barrier
    s_branch K_PASS
    """)
    mainloop(a, True)
    return a.text()

HEADER = """; Kernarg layout for this problem (72 bytes, ptrs only, base s[0:1]):
;   offset  24: d_in[3] dst  shape=(320000,) dtype=int32
; One workgroup per CU (256 workgroups, 39-40 destination nodes each).
; Phase A: bin 1280 edges by destination group, P = -log2e * x @ W1 for the own rows, publish both (write-through,
;          tagged granules).  Phase B: collect the group's edges, list them per node, evaluate the messages
"""
def main():
    s = ("; opts " + " ".join(sys.argv[2:]) + "\n" if len(sys.argv) > 2 else "") + HEADER
    s += f"; @launch grid=({NG},1,1) block=(1024,1,1) lds={LDS_BYTES}\n"
    s += '.amdgcn_target "amdgcn-amd-amdhsa--gfx950"\n.text\n'
    s += f".globl {KN}\n.p2align 8\n.type {KN},@function\n" + kernel()
    s += f""".section .rodata,"a"
.p2align 6
.amdhsa_kernel {KN}
  .amdhsa_next_free_vgpr {NVGPR}
  .amdhsa_next_free_sgpr {100 if (DIAG or AMP or 'xcctest' in OPT) else NSGPR}
  .amdhsa_accum_offset {NVGPR}
  .amdhsa_group_segment_fixed_size 0
  .amdhsa_kernarg_size 72
  .amdhsa_user_sgpr_count 2
  .amdhsa_user_sgpr_kernarg_segment_ptr 1
  .amdhsa_system_sgpr_workgroup_id_x 1
.end_amdhsa_kernel
"""
    open(sys.argv[1], "w").write(s)
main()
```

```python
import sys, struct

N = 10000; E = 320000
NG = 256
EPW = 1280
NPROD = E // EPW
REC_STRIDE = EPW * 12 + 128
WS_P = 4096
WS_REC = 0x280000
WS_T = 0x650000
WS_F = 0x6D0000
WS_DIAG = 0xB00000
LOG2E = 1.4426950408889634
def f2u(x): return struct.unpack("<I", struct.pack("<f", x))[0]
NLOG2E = f2u(-LOG2E)
OPT = dict(a.split("=") if "=" in a else (a, "1") for a in sys.argv[2:])
DIAG = "diag" in OPT
AMP = int(OPT.get("amp", 0))
PF1 = int(OPT.get("pf1", 0)); PF2 = int(OPT.get("pf2", 14))
W2E = "w2late" not in OPT
RND = "rnd" in OPT
F16 = "f8" not in OPT
SMP = int(OPT.get("smp", 2))
OPT.setdefault("sleep", "3")
PSTG = "pstage" in OPT
Q1 = "q1" in OPT
KN = "gather_scatter__mpnn_edge_mlp__graph_kernel"
SPINMAX = 400000
RMAX = 5
CAP = 2048

CNT = 0; FLG = 256; NON = 272
TF = 512
SS = 1024
XS = SS + CAP*2 + 256
QS = XS + 42*256
ES = QS + 40*512
AGG = ES + CAP*8
RING = AGG + 40*1024
LDS_BYTES = RING + 65536
W1S = RING; W2S = RING + 32768; WTS = RING
STAGE = QS; HIST = ES; OFFS = ES + 1024; W3S = ES + 2048
AB = XS; OUTS = QS; PST = ES + 3072
D0, D1, QR, VU, BP, AE, ID, W3 = 0, 16, 32, 48, 64, 72, 76, 84
VA, NUM, DEN, NANC, MAXC = 88, 90, 92, 94, 96
EAD, SAD, PAD, IX0, IX1, QAD, AAD, L8, NCNT, TID, TW, RAD, E8 = 97, 98, 99, 100, 102, 104, 105, 106, 107, 108, 109, 110, 111
G2 = 81; L4 = 82
XA, WA = 120, 92
OSA, ORA, OGA = 124, 125, 83
VG, VJ, VL = 126, 127, 97
UA = (112, 116, 88)
NVGPR = 128
sREC = 4; sR0 = 8; sMODE = 9; sLEFT = 10; sCNT = 11
sK1 = 12; sK2 = 13; sNL = 14; sNC = 15; sNQ = 16; sR = 17; sNZ2 = 18
sWS = 20; sWV = 22; sSTART = 23; sX = 24; sP = 24; sO = 28
sNZ = 32; sM0 = 34; sM1 = 36; sONE = 38; sRING = 40; sRHO = 42; sW = 40
sTMP = 44; sEV = 48; sG = 49; sEX = 50; sCM = 52
sNON = 60; sEND = 62; sSPIN = 63; sP2 = 64; sANY = 68; sT0 = 70; sVT = 71
NSGPR = 72
LDF = OPT.get('ldf', '').replace('+', ' ')
SE = int(OPT.get('se', 1))
SRCE = f"""    global_load_dwordx4 v[16:19], v8, s[8:9] {LDF}
    global_load_dwordx4 v[20:23], v9, s[6:7] {LDF}
    global_load_dwordx4 v[24:27], v9, s[6:7] offset:16 {LDF}
"""
WSOFF = f"s_add_u32 s{sWS}, s{sWS}, {int(OPT['wso']) << 20}\ns_addc_u32 s{sWS+1}, s{sWS+1}, 0" if 'wso' in OPT else ''
STF = OPT.get('stf', 'sc1').replace('+', ' ')
sST = 72
sPART = 68; sOLD = 69; sCVT = 48; sFA = 60; sFLIM = 63

class Asm:
    def __init__(self): self.l = []
    def __call__(self, s):
        for ln in s.strip("\n").split("\n"):
            ln = ln.strip()
            if ln.startswith("@estamp"):
                if "epi" not in OPT: continue
                ln = ln.replace("@estamp", "@stamp")
            elif ln.startswith("@stamp") and "epi" in OPT and int(ln.split()[1]) in range(2, 10): continue
            if ln.startswith("@amp"):
                i = int(ln.split()[1])
                A0 = int(OPT.get("amp0", 0))
                if AMP == 99 and i == 0: self('s_memrealtime s[74:75]\ns_waitcnt lgkmcnt(0)'); continue
                if AMP and i in (A0, AMP): self(f"s_memrealtime s[{72+2*(i != A0)}:{73+2*(i != A0)}]\ns_waitcnt lgkmcnt(0)")
                continue
            if ln.startswith("@store") and AMP:
                self("""s_waitcnt vmcnt(0)
                @amp 9
                s_lshl_b32 s3, s22, 8
                """ + ("" if "ampall" in OPT else "s_or_b32 s3, s3, s2") + """
                s_cmp_lg_u32 s3, """ + OPT.get("ampwg", "0") + """
                s_cbranch_scc1 AMP_DONE
                """ + ("s_sub_u32 s72, s60, 200" if "ampnon" in OPT else "") + """
                s_sub_u32 s74, s74, s72
                s_lshl_b32 s74, s74, 4
                s_memrealtime s[76:77]
                s_waitcnt lgkmcnt(0)
AMP_LOOP:
                s_memrealtime s[78:79]
                s_waitcnt lgkmcnt(0)
                s_sub_u32 s78, s78, s76
                s_cmp_lt_u32 s78, s74
                s_cbranch_scc1 AMP_LOOP
AMP_DONE:""")
                continue
            if ln.startswith("@stamp"):
                i = int(ln.split()[1])
                if DIAG and ("st" not in OPT or i in (0, 13) or str(i) in OPT["st"].split(",")): self(f"{'s_memrealtime' if OPT['diag'] == 'rt' or i in (0, 13) else 's_memtime'} s[{sST+2*i}:{sST+2*i+1}]\ns_waitcnt lgkmcnt(0)")
                continue
            if ln.startswith("@store"):
                if DIAG:
                    self(f"s_waitcnt vmcnt(0)\n@stamp 12\n@stamp 13\ns_load_dwordx2 s[{sWS}:{sWS+1}], s[0:1], 64\ns_waitcnt lgkmcnt(0)\ns_mov_b64 exec, -1\nv_lshrrev_b32 v1, 6, v{TID}\ns_lshl_b32 s3, s2, 4\nv_add_u32 v1, s3, v1\nv_lshlrev_b32 v1, 6, v1\nv_add_u32 v1, {WS_DIAG}, v1")
                    for i in range(14): self(f"v_mov_b32 v2, s{sST+2*i}\nglobal_store_dword v1, v2, s[{sWS}:{sWS+1}] offset:{4*i}")
                continue
            if ln: self.l.append(ln if ln.endswith(":") else "    " + ln)
    def text(self): return "\n".join(self.l) + "\n"

def dpp_scan(a, v, fill=()):
    fill = list(fill)
    def pad():
        k = 0
        while k < 2 and fill: a(fill.pop(0)); k += 1
        if k < 2: a(f"s_nop {1-k}")
    for sh in (1, 2, 4, 8):
        pad(); a(f"v_add_u32_dpp v{v}, v{v}, v{v} row_shr:{sh} row_mask:0xf bank_mask:0xf bound_ctrl:0")
    pad(); a(f"v_add_u32_dpp v{v}, v{v}, v{v} row_bcast:15 row_mask:0xa bank_mask:0xf")
    pad(); a(f"v_add_u32_dpp v{v}, v{v}, v{v} row_bcast:31 row_mask:0xc bank_mask:0xf")
    for x in fill: a(x)

def mainloop(a, safe):
    L = "S" if safe else "F"
    FRESH = not safe and "nofresh" not in OPT
    RESET = f"v_mov_b64 v[{DEN}:{DEN+1}], s[{sONE}:{sONE+1}]\nv_mov_b64 v[{NUM}:{NUM+1}], 0"
    def ex(d, k): a(f"v_exp_f32 v{VU+k}, v{d+k}")
    def pk(d, e):
        t = d + 2*e; u = VU + 2*e
        if not safe:
            a(f"""
            v_pk_fma_f32 v[{VA}:{VA+1}], v[{t}:{t+1}], v[{DEN}:{DEN+1}], v[{NUM}:{NUM+1}]
            v_pk_fma_f32 v[{DEN}:{DEN+1}], v[{DEN}:{DEN+1}], v[{u}:{u+1}], v[{DEN}:{DEN+1}]
            v_pk_fma_f32 v[{NUM}:{NUM+1}], v[{NUM}:{NUM+1}], v[{u}:{u+1}], v[{VA}:{VA+1}]
            """)
        else:
            a(f"""
            v_pk_add_f32 v[{u}:{u+1}], v[{u}:{u+1}], 1.0 op_sel_hi:[1,0]
            v_rcp_f32 v{u}, v{u}
            v_rcp_f32 v{u+1}, v{u+1}
            s_nop 0
            v_pk_fma_f32 v[{NUM}:{NUM+1}], v[{t}:{t+1}], v[{u}:{u+1}], v[{NUM}:{NUM+1}]
            """)
    def flush(b):
        if not safe:
            a(f"""
            v_rcp_f32 v{VU}, v{DEN}
            v_rcp_f32 v{VU+1}, v{DEN+1}
            v_max3_f32 v{MAXC}, v{MAXC}, v{DEN}, v{DEN+1}
            v_pk_mul_f32 v[{VA}:{VA+1}], v[{NUM}:{NUM+1}], v[{VU}:{VU+1}]
            {"" if FRESH else RESET}
            s_cmp_lg_u32 s{sPART}, 0
            s_cbranch_scc1 {L}_FA{b}
            s_mul_i32 s{sTMP}, s{sOLD}, 272
            v_cvt_pk_bf16_f32 v{VU}, v{VA}, v{VA+1}
            v_xor_b32 v{AAD}, s{sTMP}, v{L4}
            v_pk_fma_f32 v[{NANC}:{NANC+1}], v[{VA}:{VA+1}], 0, v[{NANC}:{NANC+1}] op_sel_hi:[1,0,1]
            ds_write_b32 v{AAD}, v{VU} offset:{AB}
{L}_FB{b}:
            """)
        else:
            a(f"""
            v_lshl_add_u32 v{AAD}, s{sOLD}, 10, v{L8}
            v_cvt_f64_f32 v[{VU}:{VU+1}], v{NUM}
            v_cvt_f64_f32 v[{VU+2}:{VU+3}], v{NUM+1}
            v_mov_b64 v[{NUM}:{NUM+1}], 0
            ds_add_f64 v{AAD}, v[{VU}:{VU+1}] offset:{AGG}
            ds_add_f64 v{AAD}, v[{VU+2}:{VU+3}] offset:{AGG+512}
            """)
    def flush_part(b):
        a(f"""
{L}_FA{b}:
        v_lshl_add_u32 v{AAD}, s{sOLD}, 10, v{L8}
        v_cvt_f64_f32 v[{VU}:{VU+1}], v{VA}
        v_cvt_f64_f32 v[{VU+2}:{VU+3}], v{VA+1}
        v_pk_fma_f32 v[{NANC}:{NANC+1}], v[{VA}:{VA+1}], 0, v[{NANC}:{NANC+1}] op_sel_hi:[1,0,1]
        ds_add_f64 v{AAD}, v[{VU}:{VU+1}] offset:{AGG}
        ds_add_f64 v{AAD}, v[{VU+2}:{VU+3}] offset:{AGG+512}
        s_bitcmp1_b32 s{sNL}, s{sLEFT}
        s_cselect_b32 s{sCVT}, s{sOLD}, s{sCVT}
        s_mov_b32 s{sPART}, 0
        s_branch {L}_FB{b}
        """)
    def preads(slot):
        if "p2" in OPT:
            for q in range(2):
                a(f"ds_read2st64_b64 v[{BP+4*q}:{BP+4*q+3}], v{PAD} offset0:{slot*4 + 2*q} offset1:{slot*4 + 2*q + 1}")
            return
        for q in range(4):
            a(f"ds_read_b64 v[{BP+2*q}:{BP+2*q+1}], v{PAD} offset:{slot*2048 + q*512}")
    def ereads(v, off):
        a(f"""
        s_mov_b64 exec, s[{sM0}:{sM0+1}]
        ds_read_b64 v[{AE}:{AE+1}], v{v} offset:{ES+off}
        s_mov_b64 exec, s[{sM1}:{sM1+1}]
        ds_read_b64 v[{AE+2}:{AE+3}], v{v} offset:{ES+off}
        s_mov_b64 exec, -1
        """)
    def idxreads(v, off):
        a(f"ds_read_u16 v{IX0}, v{v} offset:{SS+off}\nds_read_u16 v{IX1}, v{v} offset:{SS+off+8}")
    def qreads(node):
        if "q2" in OPT:
            a(f"v_lshl_add_u32 v{QAD}, s{node}, 9, v{LQ}")
            for q in range(4):
                a(f"ds_read2_b64 v[{QR+4*q}:{QR+4*q+3}], v{QAD} offset0:0 offset1:0")
            return
        a(f"v_lshl_add_u32 v{QAD}, s{node}, 9, v{L8}")
        for q in range(8):
            a(f"ds_read_b64 v[{QR+2*q}:{QR+2*q+1}], v{QAD} offset:{QS}")
    def mfma(d, k):
        if k == 0: a(f"v_mfma_f32_32x32x16_bf16 v[{d}:{d+15}], v[{AE}:{AE+3}], v[{W3}:{W3+3}], v[{QR}:{QR+15}]")
        else: a(f"v_smfmac_f32_32x32x32_bf16 v[{d}:{d+15}], v[{ID}:{ID+3}], v[{BP}:{BP+7}], v{ID+4}")
    def dma(slot, f1="s_nop 0"):
        if "x_nodma" in OPT: a(f1); return
        a(f"""
        s_mov_b32 m0, s{sRING+slot}
        {f1}
        buffer_load_dwordx4 v[{IX0}:{IX0+1}], s[{sP}:{sP+3}], 0 idxen offen sc1 lds
        buffer_load_dwordx4 v[{IX1}:{IX1+1}], s[{sP2}:{sP2+3}], 0 idxen offen offset:1024 sc1 lds
        """)
    def qnext():
        a(f"s_bitset0_b64 s[{sNZ}:{sNZ+1}], s{sNQ}\ns_ff1_i32_b64 s{sNQ}, s[{sNZ}:{sNZ+1}]")
        qreads(sNQ)
    def tree(name, labels):
        a(f"""
{name}:
        s_cmp_gt_u32 s{sCNT}, 3
        s_cbranch_scc1 {name}_H
        s_cmp_eq_u32 s{sCNT}, 2
        s_cbranch_scc1 {labels[2]}
        s_cmp_eq_u32 s{sCNT}, 3
        s_cbranch_scc1 {labels[3]}
        s_branch {labels[1]}
{name}_H:
        s_cmp_gt_u32 s{sCNT}, 5
        s_cbranch_scc1 {name}_HH
        s_cmp_eq_u32 s{sCNT}, 4
        s_cbranch_scc1 {labels[4]}
        s_branch {labels[5]}
{name}_HH:
        s_cmp_eq_u32 s{sCNT}, 6
        s_cbranch_scc1 {labels[6]}
        s_branch {labels[7]}
        """)
    EV = int(OPT.get("ev", 5))
    a(f"{L}_START:")
    a(f"""
    {"" if FRESH else RESET}
    s_waitcnt lgkmcnt(1)
    """)
    dma(0)
    idxreads(SAD, 16)
    qreads(sNQ)
    a(f"""
    s_waitcnt lgkmcnt({4 if "q2" in OPT else 8})
    v_cmp_ne_u32 vcc, 0, v16
    """)
    dma(1)
    idxreads(SAD, 32)
    ereads(EAD, 0)
    a(f"""
    ; sK1: one bit per tile from the top (ends a node, or one of the last tiles), then a marker; sK2: tile + 2 starts a node;
    s_brev_b32 s{sK1}, vcc_lo
    s_lshl_b32 s{sK2}, s{sK1}, 1
    s_sub_u32 s{sTMP}, 32, s{sLEFT}
    s_lshr_b32 s{sNL}, s{sK1}, s{sTMP}
    s_lshl_b32 s{sK1}, s{sNL}, s{sTMP}
    s_sub_u32 s{sTMP}, s{sTMP}, 1
    s_lshl_b32 s{sTMP}, {((7 | (1 << EV)) << 1) | 1}, s{sTMP}
    s_or_b32 s{sK1}, s{sK1}, s{sTMP}
    s_waitcnt vmcnt(2)
    """)
    preads(0)
    a("s_waitcnt lgkmcnt(0)\n@stamp 9")
    dma(0)
    for k in range(2): mfma(D0, k)
    ereads(EAD, 64)
    idxreads(SAD, 48)
    a(f"s_bitcmp0_b32 vcc_lo, 0\ns_cbranch_scc1 {L}_S4")
    qnext()
    a(f"{L}_S4:\ns_waitcnt vmcnt(2)")
    preads(1)
    a(f"s_branch {L}_{'G' if FRESH else 'L'}0B")
    K2 = f"s_add_u32 s{sK2}, s{sK2}, s{sK2}"
    def xphase(b, lab):
        dc, dn = (D0, D1) if b == 0 else (D1, D0)
        mfma(dn, 0)
        for e in range(7, -1, -1):
            if lab and e < 7: a(f"{L}_X{b}_{e+1}:")
            if e == SMP: mfma(dn, 1)
            ex(dc, 2*e+1); ex(dc, 2*e)
    def mid(b, tag):
        a("s_waitcnt vmcnt(2)")
        preads(b)
        if tag == "E": a(K2)
        a(f"s_cbranch_scc1 {L}_ADV{tag}{b}\n{L}_RB{tag}{b}:")
        ereads(EAD, 64*(b+2))
        idxreads(SAD, 16*(b+4))
    def yphase(b, lab):
        dc = D0 if b == 0 else D1
        for e in range(7, -1, -1):
            if lab and e < 7: a(f"{L}_Y{b}_{e+1}:")
            pk(dc, e)
    for b in range(2):
        dc, dn = (D0, D1) if b == 0 else (D1, D0)
        a(f"""
{L}_TAIL{b}:
        s_setprio 2
        s_cmp_ge_u32 s{sLEFT}, 3
        s_cbranch_scc1 {L}_TD{b}
        s_setprio 1
        s_cmp_gt_u32 s{sLEFT}, {OPT.get("p0", 0)}
        s_cbranch_scc1 {L}_T1{b}
        s_setprio 0
{L}_T1{b}:
        s_waitcnt vmcnt(0)
        s_branch {L}_T2{b}
{L}_TD{b}:
        """)
        dma(1-b)
        a(f"""
{L}_T2{b}:
        s_bitcmp1_b32 s{sNL}, s{sLEFT}
        s_cbranch_scc1 {L}_ENDN{b}
        s_cmp_eq_u32 s{sLEFT}, 0
        s_cbranch_scc1 {L}_RE{b}
        {K2}
        s_branch {L}_XB{b}
{L}_RE{b}:
        s_mov_b32 s{sCNT}, 8
        s_mov_b32 s{sOLD}, s{sNC}
        s_mov_b32 s{sPART}, 1
        s_branch {L}_X{b}_8
        """)
        if not safe: flush_part(b)
        for tag in "PE":
            a(f"{L}_ADV{tag}{b}:")
            qnext()
            a(f"s_branch {L}_RB{tag}{b}")
        tree(f"{L}_XD{b}", {c: f"{L}_XS{b}_{c}" for c in range(1, 8)})
        for c in range(1, 8):
            a(f"{L}_XS{b}_{c}:")
            mfma(dn, 0)
            if c <= SMP: mfma(dn, 1)
            a(f"s_branch {L}_X{b}_{c}")
        tree(f"{L}_YD{b}", {c: f"{L}_Y{b}_{c}" for c in range(1, 8)})
        a(f"""
{L}_SP{b}:
        s_ff1_i32_b32 s{sLEFT}, s{sK1}
        s_sub_u32 s{sLEFT}, 31, s{sLEFT}
        s_cmp_le_u32 s{sLEFT}, {EV}
        s_cbranch_scc1 {L}_TAIL{b}
        """)
        dma(1-b)
        a(f"""
{L}_ENDN{b}:
        v_readlane_b32 s{sCNT}, v{NCNT}, s{sNC}
        s_mov_b32 s{sOLD}, s{sNC}
        s_bitset0_b64 s[{sNZ2}:{sNZ2+1}], s{sNC}
        s_ff1_i32_b64 s{sNC}, s[{sNZ2}:{sNZ2+1}]
        s_cmp_lt_u32 s{sCNT}, 8
        s_cbranch_scc1 {L}_XD{b}
{L}_X{b}_8:
        """)
        xphase(b, True)
        mid(b, "E")
        a(f"s_cmp_lt_u32 s{sCNT}, 8\ns_cbranch_scc1 {L}_YD{b}")
        yphase(b, True)
        flush(b)
        a(f"""
        s_cmp_eq_u32 s{sLEFT}, 0
        s_cbranch_scc1 K_MAINDONE
        s_branch {L}_{"G" if FRESH else "L"}{1-b}
        """)
        if FRESH:
            a(f"{L}_GS{b}:\n{RESET}\ns_branch {L}_SP{b}")
            a(f"{L}_ADVG{b}:")
            qnext()
            a(f"s_branch {L}_RBG{b}")
            a(f"{L}_G{b}:")
            if b == 0:
                a(f"v_add_u32 v{EAD}, 128, v{EAD}\nv_add_u32 v{SAD}, 32, v{SAD}\n{L}_G0B:")
            a(f"""
            s_add_u32 s{sK1}, s{sK1}, s{sK1}
            s_waitcnt lgkmcnt(0)
            s_cbranch_scc1 {L}_GS{b}
            """)
            dma(1-b, K2)
            xphase(b, False)
            mid(b, "G")
            t7 = dc + 14; t6 = dc + 12; u7 = VU + 14; u6 = VU + 12
            a(f"""
            v_pk_add_f32 v[{DEN}:{DEN+1}], v[{u7}:{u7+1}], 1.0 op_sel_hi:[1,0]
            v_pk_fma_f32 v[{VA}:{VA+1}], v[{t6}:{t6+1}], v[{DEN}:{DEN+1}], v[{t7}:{t7+1}]
            v_pk_fma_f32 v[{DEN}:{DEN+1}], v[{DEN}:{DEN+1}], v[{u6}:{u6+1}], v[{DEN}:{DEN+1}]
            v_pk_fma_f32 v[{NUM}:{NUM+1}], v[{t7}:{t7+1}], v[{u6}:{u6+1}], v[{VA}:{VA+1}]
            s_branch {L}_YP{b}_6
            """)
    a(f".p2align {OPT.get('al', 6)}")
    if "alo" in OPT: a("\n".join(["s_nop 0"]*int(OPT["alo"])))
    for b in range(2):
        a(f"{L}_L{b}:")
        if b == 0:
            a(f"v_add_u32 v{EAD}, 128, v{EAD}\nv_add_u32 v{SAD}, 32, v{SAD}\n{L}_L0B:")
        a(f"""
        s_add_u32 s{sK1}, s{sK1}, s{sK1}
        s_waitcnt lgkmcnt(0)
        s_cbranch_scc1 {L}_SP{b}
        """)
        dma(1-b, K2)
        a(f"{L}_XB{b}:")
        xphase(b, False)
        mid(b, "P")
        for e in range(7, -1, -1):
            if e == 5: a(f"{L}_YP{b}_6:")
            pk(D0 if b == 0 else D1, e)
        if b == 1: a(f"s_branch {L}_L0")

def consts(a):
    a(f"""
    ; m = l&31, hk = l>>5, e = 2*(m>>3) + ((m>>1)&1), H = (m>>2)&1, c0 = m&1
    v_lshlrev_b32 v{L8}, 3, v{VL}
    {f'v_add_u32 v{LQ}, {QS}, v{L8}' if 'q2' in OPT else ''}
    v_lshlrev_b32 v{L4}, 2, v{VL}
    v_lshlrev_b32 v{IX0+1}, 4, v{VJ}
    v_lshlrev_b32 v{IX1+1}, 4, v{VJ}
    v_lshlrev_b32 v{G2}, 1, v{VG}
    v_lshrrev_b32 v1, 5, v{VL}
    v_bfe_u32 v2, v{VL}, 2, 1
    v_and_b32 v3, 1, v{VL}
    v_bfe_u32 v4, v{VL}, 1, 1
    v_bfe_u32 v5, v{VL}, 3, 2
    v_lshl_add_u32 v5, v5, 1, v4
    v_mov_b64 v[{AE}:{AE+1}], 0
    v_mov_b64 v[{AE+2}:{AE+3}], 0
    v_xor_b32 v{ID}, v1, v2
    v_lshl_add_u32 v{ID}, v{ID}, 1, v3
    v_cmp_eq_u32 s[{sM0}:{sM0+1}], 0, v{ID}
    v_cmp_eq_u32 s[{sM1}:{sM1+1}], 1, v{ID}
    v_lshlrev_b32 v{E8}, 3, v5
    ; sparse selector: lane half e>>2, register q = 2*(e&1) + ((e>>1)&1) holds 1.0, index (2*H + c0) << 4*q
    v_lshrrev_b32 v{ID+1}, 2, v5
    v_cmp_eq_u32 vcc, v1, v{ID+1}
    v_bfe_u32 v5, v5, 1, 1
    v_lshl_add_u32 v5, v4, 1, v5
    v_lshl_add_u32 v2, v2, 1, v3
    v_cndmask_b32 v3, 0, v{W3}, vcc
    v_lshlrev_b32 v4, 2, v5
    v_lshlrev_b32 v{ID+4}, v4, v2
    """)
    for q in range(4): a(f"v_cmp_eq_u32 s[{sCM + 2*q}:{sCM + 2*q + 1}], {q}, v5")
    a(f"v_lshrrev_b32 v1, 2, v{TID}\nv_and_b32 v2, 3, v{TID}")
    for q in range(4): a(f"v_cndmask_b32 v{ID+q}, 0, v3, s[{sCM + 2*q}:{sCM + 2*q + 1}]")
    a(f"""
    s_movk_i32 s3, {REC_STRIDE}
    v_mul_u32_u24 v3, s3, v1
    v_mad_u32_u24 v{RAD}, v2, 12, v3
    s_lshl_b32 s3, s{sG}, 3
    s_add_u32 s3, s3, {WS_T}
    v_lshl_add_u32 v{AAD}, v1, 11, s3
    ; x fragment addresses and the W transpose-read lane offset
    v_xor_b32 v1, v{VG}, v{VJ}
    v_lshlrev_b32 v1, 4, v1
    v_lshl_add_u32 v{XA}, v{VJ}, 8, v1
    v_xor_b32 v{XA+1}, 64, v{XA}
    v_xor_b32 v{XA+2}, 128, v{XA}
    v_xor_b32 v{XA+3}, 192, v{XA}
    v_bfe_u32 v1, v{VL}, 2, 2
    v_and_b32 v2, 1, v{VG}
    v_lshl_or_b32 v2, v2, 2, v1
    v_bfe_u32 v3, v{VL}, 1, 1
    v_lshl_or_b32 v2, v2, 1, v3
    v_and_b32 v3, 1, v{VL}
    v_lshl_or_b32 v2, v2, 1, v3
    v_lshl_add_u32 v1, v{VG}, 3, v1
    v_lshlrev_b32 v1, 8, v1
    v_lshl_add_u32 v{WA}, v2, 3, v1
    ; output staging: write row*256 + ((2*ct + (g>>1)) ^ j)*16 + (g&1)*8 (row = 16*rt + j, ct = wv&7), read / store 16 B per thread
    s_and_b32 s3, s{sWV}, 7
    s_lshl_b32 s3, s3, 1
    v_lshrrev_b32 v1, 1, v{VG}
    v_or_b32 v1, s3, v1
    v_xor_b32 v1, v1, v{VJ}
    v_and_b32 v2, 1, v{VG}
    v_lshl_or_b32 v1, v1, 1, v2
    v_lshlrev_b32 v1, 3, v1
    v_lshl_add_u32 v{OSA}, v{VJ}, 8, v1
    v_lshrrev_b32 v1, 4, v{TID}
    v_xor_b32 v2, v1, v{VJ}
    v_and_b32 v2, 15, v2
    v_lshlrev_b32 v2, 4, v2
    v_lshl_add_u32 v{ORA}, v1, 8, v2
    s_lshl_b32 s3, s{sSTART}, 8
    v_lshl_add_u32 v{OGA}, v{TID}, 4, s3
    """)
def tagbase(a, v):
    a(f"""
    v_readfirstlane_b32 s{sNON}, v{v}
    v_readfirstlane_b32 s{sNON+1}, v{v+1}
    """)
    if RND:
        a(f"""
        s_bfe_u32 s3, s{sNON}, 0x50004
        s_lshl_b32 s3, s3, 23
        s_add_u32 s{sWS}, s{sWS}, s3
        s_addc_u32 s{sWS+1}, s{sWS+1}, 0
        """)
def wlane(a, v):
    a(f"""
    v_lshlrev_b32 v{v}, 1, v{VG}
    v_xor_b32 v{v}, v{v}, v{VJ}
    v_lshlrev_b32 v{v}, 4, v{v}
    v_lshl_add_u32 v{v}, v{VG}, 8, v{v}
    v_xor_b32 v{v+1}, 128, v{v}
    """)
def wdma(a, soff, v):
    a(f"""
    buffer_load_dwordx4 v{v}, s[{sW}:{sW+3}], s{soff} offen lds
    buffer_load_dwordx4 v{v}, s[{sW}:{sW+3}], s{soff} offen offset:1024 lds
    buffer_load_dwordx4 v{v+1}, s[{sW}:{sW+3}], s{soff} offen offset:2048 lds
    buffer_load_dwordx4 v{v+1}, s[{sW}:{sW+3}], s{soff} offen offset:3072 lds
    """)
def mm16(a, d, x, w, swap=False, first=True):
    for ks in range(4):
        c = "0" if (ks == 0 and first) else f"v[{d}:{d+3}]"
        xa = f"v[{x+4*ks}:{x+4*ks+3}]"; wa = f"v[{w+4*ks}:{w+4*ks+3}]"
        a(f"v_mfma_f32_16x16x32_bf16 v[{d}:{d+3}], {wa if swap else xa}, {xa if swap else wa}, {c}")
def xreads(a, dst, off):
    for ks in range(4): a(f"ds_read_b128 v[{dst+4*ks}:{dst+4*ks+3}], v{XA+ks} offset:{off}")

def kernel():
    a = Asm()
    a(f"""
{KN}:
    @stamp 0
    @stamp 1
    @amp 0
    s_load_dwordx16 s[4:19], s[0:1], 0
    s_load_dwordx2 s[{sWS}:{sWS+1}], s[0:1], 64
    s_cmp_ge_u32 s2, {NG}
    s_cbranch_scc1 K_END
    v_mov_b32 v{TID}, v0
    v_lshrrev_b32 v1, 6, v0
    v_and_b32 v{VL}, 63, v0
    v_readfirstlane_b32 s{sWV}, v1
    ; group index: workgroups that are dealt to one XCD get neighbouring groups (speed only)
    s_and_b32 s{sG}, s2, 7
    s_lshl_b32 s{sG}, s{sG}, 5
    s_lshr_b32 s3, s2, 3
    s_or_b32 s{sG}, s{sG}, s3
    v_lshrrev_b32 v{VG}, 4, v{VL}
    v_and_b32 v{VJ}, 15, v{VL}
    s_mul_i32 s3, s{sG}, 625
    s_add_u32 s{sSTART}, s3, 15
    s_lshr_b32 s{sSTART}, s{sSTART}, 4
    s_add_u32 s{sEND}, s3, {625+15}
    s_lshr_b32 s{sEND}, s{sEND}, 4
    v_mov_b32 v{W3}, 0x3f80
    s_mov_b32 s{sW+2}, 65536
    s_mov_b32 s{sW+3}, 0x20000
    s_cmp_ge_u32 s{sWV}, 5
    s_cbranch_scc1 A_N1
    ; ================= waves 0..4: bin the edges [1280*g, 1280*g+1280) by destination group (4 edges per thread)
    {f"s_setprio {OPT['sp']}" if "sp" in OPT else ""}
    s_cmp_lt_u32 s{sG}, {NPROD}
    s_cselect_b32 s3, s{sG}, 0
    s_cselect_b64 s[{sEX}:{sEX+1}], -1, 0
    s_mul_i32 s3, s3, {EPW*4}
    v_lshl_add_u32 v8, v0, 4, s3
    v_lshlrev_b32 v9, 1, v8
    s_lshl_b32 s{sTMP}, s{sWV}, 3
    v_add_u32 v1, s{sTMP}, v{VG}
    v_xor_b32 v2, v1, v{VJ}
    v_and_b32 v2, 15, v2
    v_lshlrev_b32 v2, 4, v2
    v_lshl_add_u32 v2, v1, 8, v2
    v_xor_b32 v3, 64, v2
    s_lshl_b32 s{sTMP}, s{sWV}, 11
    s_add_u32 m0, s{sTMP}, {XS}
    s_lshl_b32 s{sTMP+2}, s{sSTART}, 8
    s_mov_b32 s{sX+2}, {N*256}
    s_mov_b32 s{sX+3}, 0x20000
    s_waitcnt lgkmcnt(0)
    global_load_dwordx4 v[12:15], v8, s[10:11] {LDF}
    {WSOFF}
    s_mov_b32 s{sX}, s4
    s_and_b32 s{sX+1}, s5, 0xffff
    buffer_load_dwordx4 v2, s[{sX}:{sX+3}], s{sTMP+2} offen {LDF} lds
    buffer_load_dwordx4 v3, s[{sX}:{sX+3}], s{sTMP+2} offen offset:1024 {LDF} lds
    {SRCE if SE == 0 else ""}
    s_barrier
    {SRCE if SE == 1 else ""}
    """)
    if "cearly" in OPT: consts(a)
    a(f"""
    s_movk_i32 s{sTMP}, 625
    s_mov_b32 s{sTMP+1}, 214749
    v_mov_b32 v1, 1
    v_lshlrev_b32 v10, 4, v{VL}
    s_waitcnt vmcnt({2 if SE == 2 else 5})
    {SRCE if SE == 2 else ""}
    s_mov_b64 exec, s[{sEX}:{sEX+1}]
    """)
    for i in range(4):
        a(f"v_mul_u32_u24 v{28+i}, s{sTMP+1}, v{12+i}")
    for i in range(4):
        a(f"v_lshrrev_b32 v{28+i}, 23, v{28+i}\nv_lshlrev_b32 v{32+i}, 2, v{28+i}\nds_add_rtn_u32 v{36+i}, v{32+i}, v1 offset:{HIST}")
    a(f"""
    s_mov_b64 exec, -1
    s_waitcnt lgkmcnt(0)
    @stamp 2
    s_barrier
    ds_read_b128 v[40:43], v10 offset:{HIST}
    """)
    for i in range(4):
        a(f"v_mad_u32_u24 v{28+i}, v{28+i}, s{sTMP}, 15\nv_lshrrev_b32 v{28+i}, 4, v{28+i}\nv_sub_u32 v{28+i}, v{12+i}, v{28+i}")
    a(f"""
    s_waitcnt lgkmcnt(0)
    v_add_u32 v44, v40, v41
    v_add3_u32 v44, v44, v42, v43
    v_mov_b32 v45, v44
    """)
    dpp_scan(a, 45)
    a(f"""
    v_sub_u32 v48, v45, v44
    v_add_u32 v49, v48, v40
    v_add_u32 v50, v49, v41
    v_add_u32 v51, v50, v42
    ds_write_b128 v10, v[48:51] offset:{OFFS}
    s_mov_b32 s{sTMP}, {STAGE}
    s_mov_b64 exec, s[{sEX}:{sEX+1}]
    s_waitcnt lgkmcnt(0)
    """)
    for i in range(4):
        a(f"ds_read_b32 v{40+i}, v{32+i} offset:{OFFS}")
    a(f"""
    s_waitcnt vmcnt(3)
    @stamp 3
    s_barrier
    @amp 1
    s_waitcnt lgkmcnt(0)
    """)
    for i in range(4):
        a(f"v_add_u32 v{40+i}, v{40+i}, v{36+i}\nv_mad_u32_u24 v{40+i}, v{40+i}, 12, s{sTMP}")
    a("s_waitcnt vmcnt(2)")
    for i in range(4):
        a(f"v_lshl_or_b32 v{16+i}, v{28+i}, 18, v{16+i}\nds_write_b32 v{40+i}, v{16+i} offset:8")
    for i in range(4):
        if i % 2 == 0: a(f"s_waitcnt vmcnt({1 - i//2})")
        a(f"ds_write2_b32 v{40+i}, v{20+2*i}, v{21+2*i} offset0:0 offset1:1")
    a(f"""
    s_mov_b64 exec, -1
    s_branch A_JOINC
A_N1:
    ; ================= waves 5..15
    v_mov_b32 v8, 0
    """)
    wlane(a, 6)
    a(f"""
    s_sub_u32 s{sVT}, s{sWV}, 5
    s_lshl_b32 s{sVT}, s{sVT}, 12
    s_add_u32 m0, s{sVT}, {W1S}
    s_waitcnt lgkmcnt(0)
    s_mov_b32 s{sW}, s12
    s_and_b32 s{sW+1}, s13, 0xffff
    {WSOFF}
    s_cmp_ge_u32 s{sWV}, 13
    s_cbranch_scc1 A_N13
    """)
    if "w1late" not in OPT: wdma(a, sVT, 6)
    a(f"""
    s_cmp_ge_u32 s{sWV}, 10
    s_cbranch_scc1 A_N10
    ; waves 5..8: histogram = 0; wave 9: node counters and flags = 0
    s_mov_b32 s{sTMP+1}, {HIST - 320*4}
    s_cmp_eq_u32 s{sWV}, 9
    s_cselect_b32 s{sTMP+1}, {CNT - 576*4}, s{sTMP+1}
    v_lshl_add_u32 v3, v0, 2, s{sTMP+1}
    ds_write_b32 v3, v8
    ds_write_b32 v8, v8 offset:{FLG}
    ds_write_b32 v8, v8 offset:{FLG+4}
    s_cbranch_scc0 A_B0
    ds_write_b32 v3, v8 offset:{TF}
    s_branch A_B0
A_N13:
    s_cmp_eq_u32 s{sWV}, 15
    s_cbranch_scc1 A_N15
    ; waves 13, 14: pull this CU's share of W2 / Wupd_top into the L2 (speed only)
    s_and_b32 s{sTMP}, s{sG}, 31
    s_lshl_b32 s{sTMP}, s{sTMP}, 10
    s_cmp_eq_u32 s{sWV}, 13
    s_cselect_b32 s{sTMP+1}, 32768, 0
    s_cselect_b32 s{sTMP+2}, s12, s14
    s_cselect_b32 s{sTMP+3}, s13, s15
    s_add_u32 s{sTMP}, s{sTMP}, s{sTMP+1}
    v_lshl_add_u32 v3, v{VL}, 7, s{sTMP}
    s_mov_b64 exec, 0xff
    {"" if "notouch" in OPT else f"global_load_dword v40, v3, s[{sTMP+2}:{sTMP+3}]"}
    s_mov_b64 exec, -1
    s_cmp_eq_u32 s{sWV}, 14
    s_cbranch_scc0 A_N10
    """)
    if "bulk" in OPT:
        nl, fl = OPT["bulk"].split(":"); nl = int(nl); fl = fl.replace("+", " ").replace("-", "")
        a(f"""
        s_mul_i32 s3, s{sG}, {REC_STRIDE}
        s_add_u32 s3, s3, {WS_REC}
        v_lshl_add_u32 v3, v{VL}, 4, s3
        v_mov_b64 v[4:5], 0
        v_mov_b64 v[6:7], 0
        s_waitcnt vmcnt(0)
        s_sleep {OPT.get("bsl", 0)}
        @amp 12
        """)
        for k in range(nl): a(f"global_store_dwordx4 v3, v[4:7], s[{sWS}:{sWS+1}] {fl}\nv_add_u32 v3, 1024, v3")
        a(f"""
        s_waitcnt vmcnt(0)
        @amp 13
        """)
    if "probe" in OPT:
        kind, nl = OPT["probe"].split(":"); nl = int(nl)
        a(f"""
        s_mul_i32 s3, s{sG}, {REC_STRIDE}
        s_add_u32 s3, s3, {WS_REC}
        v_lshl_add_u32 v3, v{VL}, 7, s3
        v_mov_b32 v4, 0
        s_waitcnt vmcnt(0)
        @amp 12
        s_mov_b64 exec, {(1 << nl) - 1 if nl < 32 else -1}
        {"global_store_dword v3, v4" if kind == "st" else "global_load_dword v4, v3"}, s[{sWS}:{sWS+1}] sc1
        s_mov_b64 exec, -1
        s_waitcnt vmcnt(0)
        @amp 13
        """)
    if "tlb" in OPT:
        a(f"""
        ; wave 14: touch lines nobody writes in the pages that are used later (address translation; speed only)
        v_mov_b32 v3, 0
        s_mov_b32 s3, {WS_REC - 128}
        v_writelane_b32 v3, s3, 1
        s_mov_b32 s3, {WS_REC + 200*REC_STRIDE - 128}
        v_writelane_b32 v3, s3, 2
        s_mov_b32 s3, {WS_F + 65536}
        v_writelane_b32 v3, s3, 3
        s_lshl_b32 s3, s{sSTART}, 8
        v_mov_b32 v4, s3
        v_mov_b32 v5, 128
        s_mov_b64 exec, 15
        global_load_dword v41, v3, s[{sWS}:{sWS+1}]
        s_mov_b64 exec, 1
        global_load_dword v42, v4, s[16:17]
        global_load_dword v43, v5, s[18:19]
        s_mov_b64 exec, -1
        """)
    a(f"""
    s_branch A_B0
A_N10:
    ; waves 10..13: src list = 0xffff (index out of range)
    v_lshlrev_b32 v3, 4, v0
    v_add_u32 v3, {SS - 640*16}, v3
    v_mov_b64 v[12:13], -1
    v_mov_b64 v[14:15], -1
    ds_write_b128 v3, v[12:15]
    s_branch A_B0
A_N15:
    """)
    a(f"""
    s_cmp_lg_u32 s2, 0
    s_cbranch_scc1 A_B0
    s_memrealtime s[{sNON}:{sNON+1}]
    s_waitcnt lgkmcnt(0)
    s_or_b32 s{sNON}, s{sNON}, 1
    v_mov_b32 v10, s{sNON}
    v_mov_b32 v11, s{sNON+1}
    s_mov_b64 exec, 1
    global_store_dwordx2 v8, v[10:11], s[18:19] sc1
    s_mov_b64 exec, -1
A_B0:
    s_cmp_eq_u32 s{sWV}, 15
    s_cbranch_scc1 A_B1
    v_lshlrev_b32 v3, 4, v0
    v_add_u32 v3, {AGG - 320*16}, v3
    v_mov_b64 v[12:13], 0
    v_mov_b64 v[14:15], 0
    ds_write_b128 v3, v[12:15]
    ds_write_b128 v3, v[12:15] offset:10240
    ds_write_b128 v3, v[12:15] offset:20480
    ds_write_b128 v3, v[12:15] offset:30720
A_B1:
    """)
    if "x_prew" in OPT:
        op = "global_atomic_or" if OPT["x_prew"] == "atom" else "global_store_dword"
        a(f"""
        s_sub_u32 s3, s{sWV}, 11
        s_cmp_gt_u32 s3, 3
        s_cbranch_scc1 X_NOPW
        s_mul_i32 s{sTMP}, s{sG}, {REC_STRIDE}
        s_add_u32 s{sTMP}, s{sTMP}, {WS_REC}
        s_lshl_b32 s{sTMP+1}, s{sSTART}, 8
        s_add_u32 s{sTMP+1}, s{sTMP+1}, {WS_P}
        s_cmp_lt_u32 s3, 2
        s_cselect_b32 s{sTMP}, s{sTMP}, s{sTMP+1}
        s_cselect_b32 s{sTMP+1}, 42, 0
        s_add_u32 s{sTMP+1}, s{sTMP+1}, 77
        s_and_b32 s3, s3, 1
        s_lshl_b32 s3, s3, 6
        v_add_u32 v3, s3, v{VL}
        v_cmp_ge_u32 vcc, s{sTMP+1}, v3
        v_lshl_add_u32 v3, v3, 7, s{sTMP}
        v_mov_b32 v4, 0
        s_mov_b64 exec, vcc
        {op} v3, v4, s[{sWS}:{sWS+1}] sc1
        s_mov_b64 exec, -1
        s_cmp_eq_u32 s{sWV}, 14
        s_cbranch_scc0 X_NOPW
        s_lshl_b32 s{sTMP}, s{sG}, 11
        s_add_u32 s{sTMP}, s{sTMP}, {WS_T}
        v_lshl_add_u32 v3, v{VL}, 7, s{sTMP}
        s_mov_b64 exec, 0xffff
        {op} v3, v4, s[{sWS}:{sWS+1}] offset:4 sc1
        s_mov_b64 exec, -1
X_NOPW:
        """)
    a(f"""
    s_waitcnt lgkmcnt(4)
    s_barrier
    """)
    if "w1late" in OPT:
        a(f"s_cmp_ge_u32 s{sWV}, 13\ns_cbranch_scc1 A_NOW1")
        wdma(a, sVT, 6)
        a("A_NOW1:")
    a(f"""
    """)
    def w15():
        a(f"""
    s_cmp_eq_u32 s{sWV}, 15
    s_cbranch_scc0 A_NO15
    v_bfe_u32 v9, v{VL}, 4, 1
    v_lshlrev_b32 v9, 6, v9
    v_lshrrev_b32 v10, 5, v{VL}
    v_lshl_add_u32 v9, v10, 5, v9
    v_add_u32 v9, v9, v{VJ}
    v_lshlrev_b32 v9, 1, v9
    v_add_u32 v8, {256*256}, v9
        """)
        for s in range(8):
            a(f"global_load_ushort v{16 + s}, v8, s[12:13] offset:{(s & 3)*256 + (s >> 2)*32}")
        a(f"""
    s_cmp_ge_u32 s{sG}, 32
    s_cbranch_scc1 A_NO15
    s_and_b32 s{sTMP}, s{sG}, 1
    s_lshl_b32 s{sTMP}, s{sTMP}, 6
    s_bfe_u32 s{sTMP+1}, s{sG}, 0x10001
    s_lshl_b32 s{sTMP+1}, s{sTMP+1}, 5
    s_add_u32 s{sTMP}, s{sTMP}, s{sTMP+1}
    s_add_u32 s{sTMP}, s{sTMP}, 128
    s_lshl_b32 s{sTMP}, s{sTMP}, 8
    s_bfe_u32 s{sTMP+1}, s{sG}, 0x30002
    s_lshl_b32 s{sTMP+1}, s{sTMP+1}, 5
    s_add_u32 s{sTMP}, s{sTMP}, s{sTMP+1}
    v_lshlrev_b32 v8, 10, v{VG}
    v_lshl_add_u32 v8, v{VJ}, 1, v8
    v_add_u32 v8, s{sTMP}, v8
    v_add_u32 v9, {16*256}, v8
        """)
        for s in range(8):
            a(f"global_load_ushort v{24 + s}, v{8 + (s & 1)}, s[14:15] offset:{(s >> 1)*256}")
        a(f"""
A_NO15:
        """)
    if "w3late" not in OPT: w15()
    a(f"""
    """)
    consts(a)
    a("s_barrier")
    if "w3late" in OPT: w15()
    a(f"""
    s_cmp_ge_u32 s{sWV}, 11
    s_cbranch_scc1 A_G11
    ; ================= waves 5..10: P = -log2e * x @ W1 for this group's rows (rt = (wv-5)>>1, hf = (wv-5)&1)
    s_sub_u32 s3, s{sWV}, 5
    s_and_b32 s{sTMP+1}, s3, 1
    s_lshr_b32 s{sTMP}, s3, 1
    s_lshl_b32 s{sTMP+2}, s{sTMP}, 12
    v_add_u32 v0, s{sTMP+2}, v{XA}
    v_add_u32 v1, s{sTMP+2}, v{XA+1}
    v_add_u32 v2, s{sTMP+2}, v{XA+2}
    v_add_u32 v3, s{sTMP+2}, v{XA+3}
    s_lshl_b32 s{sTMP+1}, s{sTMP+1}, 7
    v_xor_b32 v4, s{sTMP+1}, v{WA}
    v_add_u32 v4, {W1S}, v4
    v_xor_b32 v5, 32, v4
    v_xor_b32 v6, 64, v4
    v_xor_b32 v7, 96, v4
    s_add_u32 s{sTMP+2}, s{sTMP+2}, s{sTMP+1}
    """)
    if not PSTG:
        a(f"""
        s_lshl_b32 s{sTMP+1}, s{sSTART}, 8
        s_add_u32 s{sTMP+2}, s{sTMP+2}, s{sTMP+1}
        s_add_u32 s{sTMP+2}, s{sTMP+2}, {WS_P}
        """)
    a(f"""
    v_lshlrev_b32 v{NANC}, 10, v{VG}
    v_lshl_add_u32 v{NANC}, v{VJ}, 3, v{NANC}
    v_add_u32 v{NANC}, s{sTMP+2}, v{NANC}
    s_mov_b32 s{sTMP+2}, {NLOG2E:#x}
    s_waitcnt vmcnt(0)
    @stamp 3
    s_barrier
    s_setprio {OPT.get("gp", 1)}
    """)
    def breads(ks):
        b = 8 + 16*(ks & 1)
        a(f"ds_read_b128 v[{40+4*ks}:{43+4*ks}], v{ks} offset:{XS}")
        for i in range(4):
            for h in range(2):
                a(f"ds_read_b64_tr_b16 v[{b+4*i+2*h}:{b+4*i+2*h+1}], v{4+i} offset:{8192*ks + 1024*h}")
    breads(0)
    for ks in range(4):
        if ks < 3:
            breads(ks+1)
            a("s_waitcnt lgkmcnt(9)")
        else:
            a("s_waitcnt lgkmcnt(0)")
        b = 8 + 16*(ks & 1)
        for i in range(4):
            c = "0" if ks == 0 else f"v[{56+4*i}:{59+4*i}]"
            a(f"v_mfma_f32_16x16x32_bf16 v[{56+4*i}:{59+4*i}], v[{40+4*ks}:{43+4*ks}], v[{b+4*i}:{b+4*i+3}], {c}")
    a(f"""
    s_cmp_eq_u32 s{sTMP}, 2
    s_cselect_b32 exec_hi, 0, -1
    s_nop 5
    """)
    a("@amp 14")
    for q in range(8):
        a(f"v_pk_mul_f32 v[{56+2*q}:{57+2*q}], v[{56+2*q}:{57+2*q}], s[{sTMP+2}:{sTMP+3}] op_sel_hi:[1,0]")
    for r in range(4):
        a(f"v_cvt_pk_bf16_f32 v{8+2*r}, v{56+r}, v{60+r}\nv_cvt_pk_bf16_f32 v{9+2*r}, v{64+r}, v{68+r}")
        if PSTG: a(f"ds_write_b64 v{NANC}, v[{8+2*r}:{9+2*r}] offset:{PST + 256*r}")
        else: a(f"global_store_dwordx2 v{NANC}, v[{8+2*r}:{9+2*r}], s[{sWS}:{sWS+1}] offset:{256*r} {STF}")
    a(f"""
    s_mov_b64 exec, -1
    {"s_waitcnt vmcnt(0)" if AMP == 15 else ""}
    @amp 15
    s_setprio 0
    s_branch A_JOIN
A_G11:
    s_cmp_eq_u32 s{sWV}, 15
    s_cbranch_scc1 A_G15
    """)
    if "x_prew" in OPT: a(f"s_cmp_ge_u32 s{sWV}, 13\ns_cbranch_scc1 X_NW\ns_waitcnt vmcnt(1)\nX_NW:")
    a(f"""
    s_waitcnt vmcnt({63 if "x_prew" in OPT else 0})
    @stamp 3
    s_barrier
    """)
    if "cpf" in OPT:
        k = int(OPT["cpf"])
        a(f"""
        s_cmp_lg_u32 s{sWV}, 13
        s_cbranch_scc1 A_JOIN
        ; pull this CU's share of the kernel's code into the L2 (speed only)
        s_getpc_b64 s[{sTMP+2}:{sTMP+3}]
A_PC:
        s_and_b32 s{sTMP}, s{sG}, 31
        s_mul_i32 s{sTMP}, s{sTMP}, {k*128}
        v_lshl_add_u32 v3, v{VL}, 7, s{sTMP}
        v_min_u32 v3, S_START-A_PC-4, v3
        s_mov_b64 exec, {(1 << k) - 1}
        global_load_dword v40, v3, s[{sTMP+2}:{sTMP+3}]
        s_mov_b64 exec, -1
        """)
    a(f"""
    s_branch A_JOIN
A_G15:
    @stamp 3
    s_barrier
    v_mov_b32 v8, 0
    s_mov_b32 s{sSPIN}, {SPINMAX}
A_NLOOP:
    global_load_dwordx2 v[10:11], v8, s[18:19] sc1
    s_sub_u32 s{sSPIN}, s{sSPIN}, 1
    s_cbranch_scc1 A_NDONE
    s_waitcnt vmcnt(0)
    v_cmp_eq_u32 vcc, 0, v10
    s_cbranch_vccnz A_NLOOP
A_NDONE:
    s_waitcnt vmcnt(0)
    v_lshrrev_b32 v12, 4, v10
    v_xor_b32 v11, v11, v12
    v_lshlrev_b32 v11, 22, v11
    ds_write_b64 v8, v[10:11] offset:{NON}
    s_mov_b32 s{sTMP}, {NLOG2E:#x}
    """)
    if "tlb2" in OPT:
        a(f"""
        ; touch lines nobody writes in the pages of the scratch area (address translation; speed only)
        v_mov_b32 v3, 0
        s_mov_b32 s3, {WS_REC - 128}
        v_writelane_b32 v3, s3, 1
        s_mov_b32 s3, {WS_REC + 200*REC_STRIDE - 128}
        v_writelane_b32 v3, s3, 2
        s_mov_b32 s3, {WS_F + 65536}
        v_writelane_b32 v3, s3, 3
        s_mov_b64 exec, 15
        global_load_dword v41, v3, s[{sWS}:{sWS+1}]
        s_mov_b64 exec, -1
        """)
    for s in range(8):
        a(f"v_lshlrev_b32 v{16+s}, 16, v{16+s}\nv_mul_f32 v{16+s}, s{sTMP}, v{16+s}")
    for q in range(4):
        a(f"v_cvt_pk_bf16_f32 v{12+q}, v{16+2*q}, v{17+2*q}")
    a(f"""
    v_lshlrev_b32 v8, 4, v{VL}
    ds_write_b128 v8, v[12:15] offset:{W3S}
    s_cmp_ge_u32 s{sG}, 32
    s_cbranch_scc1 A_JOIN
    """)
    for q in range(4):
        a(f"v_lshl_or_b32 v{32+q}, v{25+2*q}, 16, v{24+2*q}")
    a(f"""
    s_lshl_b32 s{sTMP}, s{sG}, 10
    s_add_u32 s{sTMP}, s{sTMP}, {WS_F}
    v_add_u32 v8, s{sTMP}, v8
    global_store_dwordx4 v8, v[32:35], s[{sWS}:{sWS+1}] sc1
A_JOIN:
    s_cmp_lt_u32 s{sWV}, 8
    s_cbranch_scc1 A_JOINB
    v_lshlrev_b32 v0, 4, v{TID}
    s_mul_i32 s{sTMP}, s{sG}, {REC_STRIDE}
    s_add_u32 s{sTMP}, s{sTMP}, {WS_REC}
    v_add_u32 v1, s{sTMP}, v0
    v_mov_b32 v3, 0
    s_waitcnt lgkmcnt(0)
    @stamp 4
    s_barrier
    s_cmp_eq_u32 s{sWV}, 15
    s_cbranch_scc1 A_C15
    ds_read_b128 v[4:7], v0 offset:{STAGE}
    ds_read_b64 v[{SAD}:{SAD+1}], v3 offset:{NON}
    s_branch A_C8
    """)
    for lab in "BC":
        a(f"""
A_JOIN{lab}:
        ; waves {"5..7" if lab == "B" else "0..4"}: the same, then 16 rows of W2 -> LDS behind everybody's stores{"" if lab == "B" else ", lane constants"}
    v_lshlrev_b32 v0, 4, v{TID}
    s_mul_i32 s{sTMP}, s{sG}, {REC_STRIDE}
    s_add_u32 s{sTMP}, s{sTMP}, {WS_REC}
    v_add_u32 v1, s{sTMP}, v0
    v_mov_b32 v3, 0
        s_lshl_b32 s{sVT}, s{sWV}, 12
        s_add_u32 m0, s{sVT}, {W2S}
        s_add_u32 s{sVT}, s{sVT}, 32768
        s_mov_b32 s{sW}, s12
        s_and_b32 s{sW+1}, s13, 0xffff
        s_waitcnt lgkmcnt(0)
        @stamp 4
        s_barrier
        @amp 2
        ds_read_b128 v[4:7], v0 offset:{STAGE}
        ds_read_b64 v[{SAD}:{SAD+1}], v3 offset:{NON}
        s_waitcnt lgkmcnt(1)
        global_store_dwordx4 v1, v[4:7], s[{sWS}:{sWS+1}] sc1
        """)
        wlane(a, 14)
        a("s_barrier")
        wdma(a, sVT, 14)
        if lab == "C": consts(a)
        a(f"""
        s_waitcnt vmcnt(4)
        @stamp 5
        @amp 10
        s_barrier
        s_barrier
        @amp 3
        s_branch A_DESC
        """)
    a(f"""
A_C15:
    ds_read_b64 v[{SAD}:{SAD+1}], v3 offset:{NON}
    s_branch A_C9
A_C8:
    s_waitcnt lgkmcnt(1)
    global_store_dwordx4 v1, v[4:7], s[{sWS}:{sWS+1}] sc1
A_C9:
    s_barrier
    s_cmp_lt_u32 s{sWV}, 14
    s_cbranch_scc1 A_NOT
    ; waves 14, 15: granules (start | count<<11 | tag<<22, tag) of groups 2t, 2t+1 (t = tid - 896)
    s_setprio 1
    v_lshlrev_b32 v8, 3, v{TID}
    ds_read_b64 v[10:11], v8 offset:{OFFS - 896*8}
    ds_read_b64 v[12:13], v8 offset:{HIST - 896*8}
    s_lshl_b32 s{sTMP}, s{sG}, 11
    s_add_u32 s{sTMP}, s{sTMP}, {WS_T - 896*16}
    v_lshl_add_u32 v8, v8, 1, s{sTMP}
    s_waitcnt lgkmcnt(0)
    v_lshl_or_b32 v4, v12, 11, v10
    v_lshl_or_b32 v6, v13, 11, v11
    v_or_b32 v4, v{SAD+1}, v4
    v_or_b32 v6, v{SAD+1}, v6
    v_mov_b32 v5, v{SAD}
    v_mov_b32 v7, v{SAD}
A_NOT:
    s_lshl_b32 s{sVT}, s{sWV}, 12
    s_sub_u32 s{sVT}, s{sVT}, 32768
    s_add_u32 m0, s{sVT}, {WTS}
    s_mov_b32 s{sW}, s14
    s_and_b32 s{sW+1}, s15, 0xffff
    """)
    wlane(a, 14)
    a(f"""
    s_cmp_lt_u32 s{sWV}, 14
    s_waitcnt vmcnt(0)
    @stamp 5
    @amp 10
    s_barrier
    s_cbranch_scc1 A_PUB
    global_store_dwordx4 v8, v[4:7], s[{sWS}:{sWS+1}] sc1
    s_setprio 0
A_PUB:
    s_barrier
    @amp 3
    """)
    wdma(a, sVT, 14)
    a(f"""
A_DESC:
    v_lshlrev_b32 v3, 4, v{VL}
    ds_read_b128 v[{W3}:{W3+3}], v3 offset:{W3S}
    s_mov_b32 s{sO}, s16
    s_and_b32 s{sO+1}, s17, 0xffff
    s_lshl_b32 s{sO+2}, s{sEND}, 8
    s_mov_b32 s{sO+3}, 0x20000
    s_add_u32 s{sP}, s{sWS}, {WS_P}
    s_addc_u32 s{sP+1}, s{sWS+1}, 0
    s_and_b32 s{sP+1}, s{sP+1}, 0xffff
    s_or_b32 s{sP+1}, s{sP+1}, {256 << 16}
    s_mov_b32 s{sP+2}, {N}
    s_mov_b32 s{sP+3}, 0x20000
    s_sub_u32 s{sP2}, s{sP}, 1024
    s_subb_u32 s{sP2+1}, s{sP+1}, 0
    s_mov_b32 s{sP2+2}, {N}
    s_mov_b32 s{sP2+3}, 0x20000
    s_add_u32 s{sREC}, s{sWS}, {WS_REC}
    s_addc_u32 s{sREC+1}, s{sWS+1}, 0
    s_and_b32 s{sREC+1}, s{sREC+1}, 0xffff
    s_mov_b32 s{sREC+2}, {NG*REC_STRIDE}
    s_mov_b32 s{sREC+3}, 0x20000
    s_mov_b32 s{sMODE}, 0
    s_mov_b32 s{sR0}, 0
    s_mov_b32 s{sR}, {4*RMAX}
    s_mov_b32 s{sONE}, 1.0
    s_mov_b32 s{sONE+1}, 1.0
    s_mov_b32 s{sSPIN}, {SPINMAX}
    v_mov_b64 v[{NANC}:{NANC+1}], 0
    v_mov_b32 v{MAXC}, 0
    ; W2 transpose-read address of column tile ct = wv&7; Q address node*512 + 8*(32*H + 16*(ct>>2) + j) + 4*c0
    s_and_b32 s{sTMP}, s{sWV}, 7
    s_lshl_b32 s{sTMP}, s{sTMP}, 5
    v_xor_b32 v{WA}, s{sTMP}, v{WA}
    s_and_b32 s{sTMP}, s{sWV}, 8
    s_lshl_b32 s{sTMP}, s{sTMP}, 12
    s_add_u32 s{sTMP}, s{sTMP}, {WTS}
    v_add_u32 v{WA}, s{sTMP}, v{WA}
    s_bfe_u32 s{sTMP}, s{sWV}, 0x10002
    s_lshl_b32 s{sTMP}, s{sTMP}, 7
    s_bfe_u32 s{sTMP+1}, s{sWV}, 0x10001
    s_lshl_b32 s{sTMP+1}, s{sTMP+1}, 8
    s_add_u32 s{sTMP}, s{sTMP}, s{sTMP+1}
    s_and_b32 s{sTMP+1}, s{sWV}, 1
    s_lshl_b32 s{sTMP+1}, s{sTMP+1}, 2
    s_add_u32 s{sTMP}, s{sTMP}, s{sTMP+1}
    v_lshlrev_b32 v{QAD}, 11, v{VG}
    v_lshl_add_u32 v{QAD}, v{VJ}, 3, v{QAD}
    v_add_u32 v{QAD}, s{sTMP}, v{QAD}
    s_waitcnt lgkmcnt(1)
    v_readfirstlane_b32 s{sNON}, v{SAD}
    v_readfirstlane_b32 s{sNON+1}, v{SAD+1}
A_QD:
    s_lshl_b32 s{sRING}, s{sWV}, 12
    s_add_u32 s{sRING}, s{sRING}, {RING}
    s_add_u32 s{sRING+1}, s{sRING}, 2048
    s_and_b32 s{sRHO}, s{sWV}, 3
    s_lshl_b32 s{sRHO}, s{sRHO}, 2
    s_lshr_b32 s{sTMP}, s{sWV}, 2
    s_or_b32 s{sRHO}, s{sRHO}, s{sTMP}
    v_add_u32 v{PAD}, s{sRING}, v{L8}
    s_mov_b32 s3, 1
    v_mov_b32 v19, 0x3fffff
    v_and_b32 v22, 3, v{TID}
    s_waitcnt vmcnt({1 if PF1 else 0}) lgkmcnt(0)
    @stamp 6
    @amp 11
    {"s_barrier" if "noqbar" not in OPT else ""}
    {f"s_sleep {OPT['sleep0']}" if "sleep0" in OPT else ""}
    @amp 4
    """)
    OPT.setdefault("s2p", "8")
    if "s2p" in OPT and "s2q" not in OPT:
        a(f"""
        s_cmp_lt_u32 s{sWV}, {OPT["s2p"]}
        s_cbranch_scc1 A_P0
        s_setprio 1
A_P0:
        """)
    if "s2q" in OPT:
        a(f"""
        s_cmp_lt_u32 s{sWV}, 4
        s_cbranch_scc1 A_P0
        s_setprio 1
        s_cmp_lt_u32 s{sWV}, 8
        s_cbranch_scc1 A_P0
        s_setprio 2
        s_cmp_lt_u32 s{sWV}, 12
        s_cbranch_scc1 A_P0
        s_setprio 3
A_P0:
        """)
    a(f"""
T_LOOP:
    global_load_dwordx2 v[20:21], v{AAD}, s[{sWS}:{sWS+1}] sc1
    s_sub_u32 s{sSPIN}, s{sSPIN}, 1
    s_cbranch_scc1 T_DONE
    s_waitcnt vmcnt(0)
    v_xor_b32 v{TW}, s{sNON+1}, v20
    v_cmp_ne_u32 vcc, s{sNON}, v21
    v_cmp_lt_u32 s[{sTMP}:{sTMP+1}], v19, v{TW}
    s_or_b64 exec, vcc, s[{sTMP}:{sTMP+1}]
    {f"s_cbranch_scc0 T_DONE" if "sleep" in OPT else "s_cbranch_scc1 T_LOOP"}
    {f"s_sleep {OPT['sleep']}                              ; back off: lines that are being polled are slow to write" if "sleep" in OPT else ""}
    {"s_branch T_LOOP" if "sleep" in OPT else ""}
T_DONE:
    s_mov_b64 exec, -1
    s_waitcnt vmcnt(0)
    @stamp 7
    @amp 5
K_PASS:
    v_bfe_u32 v15, v{TW}, 11, 11
    v_and_b32 v9, 0x7ff, v{TW}
    v_subrev_u32 v15, s{sR0}, v15
    v_add_u32 v9, s{sR0}, v9
    v_cmp_gt_i32 s[{sEX}:{sEX+1}], v15, v22
    v_mad_u32_u24 v9, v9, 12, v{RAD}
    v_min_i32 v10, s{sR}, v15
    v_sub_u32 v10, v10, v22
    """)
    for r in range(RMAX):
        if r == 1:
            a("s_mov_b64 exec, -1")
            for q in range(1, RMAX): a(f"v_cmp_lt_i32 s[{sEX+2*q}:{sEX+2*q+1}], {4*q}, v10")
            a(f"v_cmp_lt_i32 vcc, s{sR}, v15")
        a(f"s_mov_b64 exec, s[{sEX+2*r}:{sEX+2*r+1}]")
        if r >= 2: a(f"s_cbranch_execz K_LD")
        a(f"buffer_load_dwordx3 v[{32+4*r}:{34+4*r}], v9, s[{sREC}:{sREC+3}], 0 offen offset:{48*r} sc1")
    a(f"""
K_LD:
    s_mov_b64 exec, -1
    v_mov_b32 v13, 1
    v_lshrrev_b32 v14, 1, v{L8}
    s_and_b32 s{sTMP}, s{sWV}, 7
    s_lshl_b32 s{sTMP}, s{sTMP}, 12
    s_add_u32 s{sTMP}, s{sTMP}, {WS_F}
    s_add_u32 s{sFA}, s{sWS}, s{sTMP}
    s_addc_u32 s{sFA+1}, s{sWS+1}, 0
    s_mov_b32 s{sFLIM}, {f2u(2.0**120):#x}
    s_cbranch_vccz K_NOMORE
    v_mov_b32 v9, 0
    ds_write_b32 v9, v13 offset:{FLG}
K_NOMORE:
    """)
    if PF2:
        a(f"""
        s_and_b32 s{sTMP}, s{sG}, 31
        s_lshl_b32 s{sTMP}, s{sTMP}, 4
        s_add_u32 s{sTMP}, s{sTMP}, s{sWV}
        s_lshr_b32 s{sTMP+1}, s{sG}, 5
        s_lshl_b32 s{sTMP+1}, s{sTMP+1}, 6
        s_add_u32 s{sTMP}, s{sTMP}, s{sTMP+1}
        s_and_b32 s{sTMP}, s{sTMP}, 511
        s_mul_i32 s{sTMP}, s{sTMP}, {PF2*128}
        s_add_u32 s{sTMP}, s{sTMP}, {(20000 - 512*PF2)*128 + WS_P}
        v_lshl_add_u32 v12, v{L8}, 4, s{sTMP}
        """)
    a(f"""
    s_cmp_eq_u32 s3, 0
    s_mov_b32 s3, 0
    s_cbranch_scc1 K_NOU
    {f"s_cmp_ge_u32 s{sWV}, 8" if Q1 else ""}
    {"s_cbranch_scc1 K_NOU" if Q1 else ""}
    ; first pass, column tile wv&7: waves 0..7 U = -log2e * (x @ Wupd_top)^T (rows = channels) -> registers,
    """)
    for ks in range(4):
        for h in range(2):
            a(f"ds_read_b64_tr_b16 v[{16+4*ks+2*h}:{17+4*ks+2*h}], v{WA} offset:{8192*ks + 1024*h}")
    XB0 = (52, 56, 60, 64); XB1 = (0, 4, 8, 68)
    def xr(xb, off):
        for ks in range(4): a(f"ds_read_b128 v[{xb[ks]}:{xb[ks]+3}], v{XA+ks} offset:{off}")
    def mmx(d, xb, swap):
        for ks in range(4):
            c = "0" if ks == 0 else f"v[{d}:{d+3}]"
            w = f"v[{16+4*ks}:{19+4*ks}]"; x = f"v[{xb[ks]}:{xb[ks]+3}]"
            a(f"v_mfma_f32_16x16x32_bf16 v[{d}:{d+3}], {w if swap else x}, {x if swap else w}, {c}")
    def scale(d):
        for q in range(2): a(f"v_pk_mul_f32 v[{d+2*q}:{d+2*q+1}], v[{d+2*q}:{d+2*q+1}], s[{sTMP+2}:{sTMP+3}] op_sel_hi:[1,0]")
    if F16:
        xr(XB0, XS)
        a(f"s_mov_b32 s{sTMP+2}, {NLOG2E:#x}\ns_cmp_ge_u32 s{sWV}, 8\ns_cbranch_scc1 K_Q")
        xr(XB1, XS + 8192)
        a("s_waitcnt lgkmcnt(4)")
        mmx(UA[0], XB0, True)
        a("s_waitcnt lgkmcnt(0)")
        mmx(UA[1], XB1, True)
        a("s_nop 2")
        scale(UA[0])
        a("s_nop 2")
        scale(UA[1])
        a("s_branch K_NOU\nK_Q:")
        xr(XB1, XS + 4096)
        a("s_waitcnt lgkmcnt(4)")
        mmx(UA[0], XB0, False)
        xr(XB0, XS + 8192)
        a("s_waitcnt lgkmcnt(4)")
        mmx(UA[1], XB1, False)
        a(f"s_waitcnt lgkmcnt(0)\nv_subrev_u32 v{WA}, 32768, v{WA}")
        mmx(UA[2], XB0, False)
        for ks in range(4):
            for h in range(2):
                a(f"ds_read_b64_tr_b16 v[{16+4*ks+2*h}:{17+4*ks+2*h}], v{WA} offset:{8192*ks + 1024*h}")
        for rt in range(3):
            scale(UA[rt])
            if rt == 2: a("s_mov_b32 exec_hi, 0")
            for r in range(4):
                a(f"ds_write_b32 v{QAD}, v{UA[rt]+r} offset:{QS + rt*8192 + r*512}")
        a("s_mov_b64 exec, -1\ns_waitcnt lgkmcnt(12)")
        mmx(UA[0], XB1, True)
        a("s_nop 7")
        scale(UA[0])
    else:
        xr(XB0, XS); xr(XB1, XS + 4096)
        a(f"s_mov_b32 s{sTMP+2}, {NLOG2E:#x}\ns_cmp_ge_u32 s{sWV}, 8\ns_cbranch_scc1 K_Q")
        for isq in (0, 1):
            if isq: a("K_Q:")
            def um(rt, xb):
                for ks in range(4):
                    c = "0" if ks == 0 else f"v[{UA[rt]}:{UA[rt]+3}]"
                    w = f"v[{16+4*ks}:{19+4*ks}]"; x = f"v[{xb[ks]}:{xb[ks]+3}]"
                    a(f"v_mfma_f32_16x16x32_bf16 v[{UA[rt]}:{UA[rt]+3}], {x if isq else w}, {w if isq else x}, {c}")
            a("s_waitcnt lgkmcnt(4)")
            um(0, XB0)
            xr(XB0, XS + 8192)
            a("s_waitcnt lgkmcnt(4)")
            um(1, XB1)
            a("s_waitcnt lgkmcnt(0)")
            um(2, XB0)
            if not isq: a("s_nop 3")
            for rt in range(3):
                if rt == 2 and not isq: a("s_nop 1")
                for q in range(2):
                    u = UA[rt] + 2*q
                    a(f"v_pk_mul_f32 v[{u}:{u+1}], v[{u}:{u+1}], s[{sTMP+2}:{sTMP+3}] op_sel_hi:[1,0]")
                if isq:
                    if rt == 2: a("s_mov_b32 exec_hi, 0")
                    for r in range(4):
                        a(f"ds_write_b32 v{QAD}, v{UA[rt]+r} offset:{QS + rt*8192 + r*512}")
            a("s_mov_b64 exec, -1" if isq else "s_branch K_NOU")
    a("K_NOU:\ns_waitcnt vmcnt(0)\n@stamp 8\n@amp 6")
    for r in range(RMAX):
        a(f"s_mov_b64 exec, s[{sEX+2*r}:{sEX+2*r+1}]")
        if r >= 2: a(f"s_cbranch_execz K_HD")
        a(f"v_lshrrev_b32 v{r}, 16, v{34+4*r}\nds_add_rtn_u32 v{35+4*r}, v{r}, v13 offset:{CNT}")
    a("K_HD:")
    if PF2:
        a(f"s_mov_b64 exec, {(1 << PF2) - 1:#x}\nglobal_load_dword v63, v12, s[{sWS}:{sWS+1}] sc1")
    a(f"""
    s_mov_b64 exec, -1
    s_waitcnt lgkmcnt(0)
    s_barrier
    v_mov_b32 v9, 0
    ds_read_b32 v8, v14 offset:{CNT}
    ds_read_b32 v12, v9 offset:{FLG}
    s_waitcnt lgkmcnt(1)
    v_add_u32 v10, 7, v8
    v_lshrrev_b32 v11, 3, v10
    """)
    dpp_scan(a, 11, [f"v_cmp_ne_u32 s[{sNZ}:{sNZ+1}], 0, v8", f"v_and_b32 v{NCNT}, 7, v10", f"v_and_b32 v10, -8, v10", f"v_add_u32 v{NCNT}, 1, v{NCNT}"])
    a(f"""
    v_lshlrev_b32 v15, 3, v11
    v_sub_u32 v15, v15, v10
    ds_bpermute_b32 v16, v0, v15
    ds_bpermute_b32 v17, v1, v15
    v_readlane_b32 s{sTMP}, v11, 63
    s_waitcnt lgkmcnt(2)
    v_readfirstlane_b32 s{sTMP+1}, v12
    """)
    for r in range(2, RMAX):
        a(f"s_cmp_eq_u64 s[{sEX+2*r}:{sEX+2*r+1}], 0\ns_cbranch_scc1 K_BD")
        a(f"ds_bpermute_b32 v{16+r}, v{r}, v15")
    a(f"""
K_BD:
    s_cmp_gt_u32 s{sTMP}, {CAP//8}
    s_cbranch_scc1 K_SHRINK
    s_or_b32 s{sMODE}, s{sMODE}, s{sTMP+1}
    s_mul_i32 s{sT0}, s{sTMP}, s{sRHO}
    s_add_u32 s{sTMP}, s{sT0}, s{sTMP}
    s_lshr_b32 s{sT0}, s{sT0}, 4
    s_lshr_b32 s{sTMP}, s{sTMP}, 4
    v_cmp_ge_u32 vcc, s{sT0}, v11
    s_sub_u32 s{sLEFT}, s{sTMP}, s{sT0}
    s_cmp_lg_u32 s{sWV}, 15
    s_cbranch_scc1 K_NOTF
    s_mov_b64 exec, s[{sNZ}:{sNZ+1}]
    ds_write_b8 v11, v13 offset:{TF - 1}
    s_mov_b64 exec, -1
    s_not_b64 s[{sTMP+2}:{sTMP+3}], s[{sNZ}:{sNZ+1}]
    s_and_b32 s{sTMP+3}, s{sTMP+3}, 0xff
K_ZL:
    s_ff1_i32_b64 s{sTMP}, s[{sTMP+2}:{sTMP+3}]
    s_cmp_lt_i32 s{sTMP}, 0
    s_cbranch_scc1 K_NOTF
    s_bitset0_b64 s[{sTMP+2}:{sTMP+3}], s{sTMP}
    s_mul_i32 s{sTMP}, s{sTMP}, 272
    v_xor_b32 v10, s{sTMP}, v{L4}
    ds_write_b32 v10, v9 offset:{AB}
    s_branch K_ZL
K_NOTF:
    s_waitcnt lgkmcnt(0)
    """)
    for r in range(RMAX):
        a(f"s_mov_b64 exec, s[{sEX+2*r}:{sEX+2*r+1}]")
        if r >= 2: a("s_cbranch_execz K_SD")
        a(f"""
        v_add_lshl_u32 v10, v{16+r}, v{35+4*r}, 3
        v_add_lshl_u32 v9, v{16+r}, v{35+4*r}, 1
        {f"v_and_b32 v{34+4*r}, {OPT['x_mask']}, v{34+4*r}" if "x_mask" in OPT else ""}
        ds_write_b64 v10, v[{32+4*r}:{33+4*r}] offset:{ES}
        ds_write_b16 v9, v{34+4*r} offset:{SS}
        """)
    a(f"""
K_SD:
    s_mov_b64 exec, -1
    s_bcnt1_i32_b64 s{sNC}, vcc
    s_min_u32 s{sNC}, s{sNC}, 61
    s_or_b32 s{sNZ+1}, s{sNZ+1}, 0xc0000000
    s_lshr_b64 s[{sNZ}:{sNZ+1}], s[{sNZ}:{sNZ+1}], s{sNC}
    s_lshl_b64 s[{sNZ}:{sNZ+1}], s[{sNZ}:{sNZ+1}], s{sNC}
    s_mov_b64 s[{sNZ2}:{sNZ2+1}], s[{sNZ}:{sNZ+1}]
    s_mov_b32 s{sNQ}, s{sNC}
    v_readlane_b32 s{sTMP}, v15, s{sNC}
    s_lshl_b32 s{sTMP+1}, s{sT0}, 3
    s_cmp_eq_u32 s{sMODE}, 0
    s_cselect_b32 s{sCVT}, 63, s{sWV}
    s_sub_u32 s{sPART}, s{sTMP+1}, s{sTMP}
    v_lshl_add_u32 v{EAD}, s{sT0}, 6, v{E8}
    v_lshl_add_u32 v{SAD}, s{sT0}, 4, v{G2}
    v_lshrrev_b32 v9, 2, v14
    v_add_u32 v9, s{sT0}, v9
    s_waitcnt lgkmcnt(0)
    s_barrier
    ds_read_u16 v{IX0}, v{SAD} offset:{SS}
    ds_read_u16 v{IX1}, v{SAD} offset:{SS+8}
    ds_read_u8 v16, v9 offset:{TF}
    s_setprio 3
    @stamp 10
    @amp 7
    s_cmp_eq_u32 s{sLEFT}, 0
    s_cbranch_scc1 K_MAINDONE
    s_cmp_lg_u32 s{sMODE}, 0
    s_cbranch_scc1 S_START
    """)
    mainloop(a, False)
    a(f"""
K_MAINDONE:
    @stamp 11
    @amp 8
    s_waitcnt vmcnt(0)
    v_lshlrev_b32 v{EAD}, 1, v{L8}
    v_cmp_nge_f32 vcc, s{sFLIM}, v{MAXC}
    v_cmp_u_f32 s[{sTMP}:{sTMP+1}], v{NANC}, v{NANC+1}
    """)
    for ks in range(4): a(f"global_load_dwordx4 v[{4*ks}:{4*ks+3}], v{EAD}, s[{sFA}:{sFA+1}] offset:{1024*ks} sc1")
    a(f"""
    s_or_b64 vcc, vcc, s[{sTMP}:{sTMP+1}]
    s_cbranch_scc1 K_OVF
K_NOOVF:
    s_waitcnt lgkmcnt(0)
    s_barrier
    @estamp 2
    ds_read_b64 v[24:25], v{L8} offset:{FLG}
K_CV:
    s_cmp_gt_u32 s{sCVT}, 39
    s_cbranch_scc1 K_NOCV
    v_lshl_add_u32 v23, s{sCVT}, 10, v{L8}
    ds_read_b64 v[26:27], v23 offset:{AGG}
    ds_read_b64 v[28:29], v23 offset:{AGG+512}
    s_mul_i32 s{sTMP}, s{sCVT}, 272
    v_xor_b32 v23, s{sTMP}, v{L4}
    s_add_u32 s{sCVT}, s{sCVT}, 16
    s_cmp_lg_u32 s{sMODE}, 0
    s_waitcnt lgkmcnt(0)
    v_cvt_f32_f64 v26, v[26:27]
    v_cvt_f32_f64 v28, v[28:29]
    v_cvt_pk_bf16_f32 v26, v26, v28
    ds_write_b32 v23, v26 offset:{AB}
    s_cbranch_scc1 K_CV
K_NOCV:
    s_waitcnt lgkmcnt(0)
    v_readfirstlane_b32 s{sTMP}, v24
    v_readfirstlane_b32 s{sTMP+1}, v25
    s_or_b32 s{sTMP+2}, s{sTMP}, s{sTMP+1}
    s_cbranch_scc1 K_SLOW
K_FINAL:
    @estamp 3
    s_barrier
    @estamp 4
    """)
    CC = f"s_mov_b32 s{sTMP+2}, {f2u(-LOG2E/(1+float(OPT.get('eps', 0)))):#x}\ns_waitcnt vmcnt(0)"
    if not F16:
        a(f"""
        s_cmp_ge_u32 s{sWV}, 10
        s_cbranch_scc1 {"K_OUT2" if AMP else "K_END2"}
        s_cmp_ge_u32 s{sWV}, 8
        s_cbranch_scc1 K_OUT
        """)
        for rt in range(3): xreads(a, 16 + 16*rt, AB + rt*4352)
        a(CC)
    def fm(rt):
        a(f"s_waitcnt lgkmcnt({8 - 4*rt if not (rt == 2 and 'noeil' not in OPT) else 1})")
        mm16(a, UA[rt], 16 + 16*rt, 0, swap=True, first=False)
    def silu(rt, u=None):
        u = UA[rt] if u is None else u; t = 64
        a(f"""
        v_exp_f32 v{t}, v{u}
        v_exp_f32 v{t+1}, v{u+1}
        v_exp_f32 v{t+2}, v{u+2}
        v_exp_f32 v{t+3}, v{u+3}
        v_pk_fma_f32 v[{t}:{t+1}], v[{t}:{t+1}], s[{sTMP+2}:{sTMP+3}], s[{sTMP+2}:{sTMP+3}] op_sel_hi:[1,0,0]
        v_pk_fma_f32 v[{t+2}:{t+3}], v[{t+2}:{t+3}], s[{sTMP+2}:{sTMP+3}], s[{sTMP+2}:{sTMP+3}] op_sel_hi:[1,0,0]
        v_rcp_f32 v{t}, v{t}
        v_rcp_f32 v{t+1}, v{t+1}
        v_rcp_f32 v{t+2}, v{t+2}
        v_rcp_f32 v{t+3}, v{t+3}
        v_pk_mul_f32 v[{t}:{t+1}], v[{t}:{t+1}], v[{u}:{u+1}]
        v_pk_mul_f32 v[{t+2}:{t+3}], v[{t+2}:{t+3}], v[{u+2}:{u+3}]
        v_cvt_pk_bf16_f32 v{16+2*rt}, v{t}, v{t+1}
        v_cvt_pk_bf16_f32 v{17+2*rt}, v{t+2}, v{t+3}
        ds_write_b64 v{OSA}, v[{16+2*rt}:{17+2*rt}] offset:{OUTS + rt*4096}
        """)
    if F16:
        a(f"s_cmp_ge_u32 s{sWV}, 8\ns_cbranch_scc1 K_F1")
        xreads(a, 16, AB); xreads(a, 32, AB + 2*4352)
        a(CC + "\ns_waitcnt lgkmcnt(4)")
        mm16(a, UA[0], 16, 0, swap=True, first=False)
        a("s_waitcnt lgkmcnt(0)")
        mm16(a, UA[1], 32, 0, swap=True, first=False)
        a("s_nop 2")
        silu(0, UA[0]); silu(2, UA[1])
        a("s_branch K_OUT\nK_F1:")
        xreads(a, 16, AB + 4352)
        a(CC + "\ns_waitcnt lgkmcnt(0)")
        mm16(a, UA[0], 16, 0, swap=True, first=False)
        a("s_nop 7")
        silu(1, UA[0])
    elif "noeil" not in OPT:
        fm(0); fm(1); a("s_nop 2"); silu(0); fm(2); silu(1); silu(2)
    else:
        fm(0); fm(1); fm(2); a("@estamp 5"); silu(0); silu(1); silu(2)
    a(f"""
K_OUT:
    s_waitcnt lgkmcnt(0)
    @estamp 6
    s_barrier
    @estamp 7
    {f"s_cmp_ge_u32 s{sWV}, 10" if F16 else ""}
    {"s_cbranch_scc1 K_END2" if F16 else ""}
    ds_read_b128 v[32:35], v{ORA} offset:{OUTS}
    s_waitcnt lgkmcnt(0)
    buffer_store_dwordx4 v[32:35], v{OGA}, s[{sO}:{sO+3}], 0 offen {OPT.get('ost', 'sc1').replace('+', ' ')}
    @estamp 8
    {"s_branch K_END2" if AMP else ""}
K_OUT2:
    {"s_barrier" if AMP else ""}
K_END2:
    """)
    if "x_spin" in OPT:
        a(f"""
        s_cmp_lg_u32 s22, 0
        s_cbranch_scc1 XS_DONE
        s_memrealtime s[68:69]
        s_waitcnt lgkmcnt(0)
XS_LOOP:
        s_memrealtime s[70:71]
        s_waitcnt lgkmcnt(0)
        s_sub_u32 s70, s70, s68
        s_cmp_lt_u32 s70, {OPT["x_spin"]}
        s_cbranch_scc1 XS_LOOP
XS_DONE:
        """)
    if "xcctest" in OPT:
        a(f"""
        s_lshl_b32 s3, s22, 8
        s_or_b32 s3, s3, s{sG}
        s_cmp_lg_u32 s3, 100
        s_cbranch_scc1 XT_DONE
        v_mov_b32 v30, {WS_REC + 15360 + 101*REC_STRIDE}
        global_load_dword v31, v30, s[{sWS}:{sWS+1}] sc1
        s_waitcnt vmcnt(0)
        v_readfirstlane_b32 s81, v31
        s_cmp_eq_u32 s81, s80
        s_cbranch_scc{OPT["xcctest"]} XT_DONE
        s_memrealtime s[76:77]
        s_waitcnt lgkmcnt(0)
XT_LOOP:
        s_memrealtime s[78:79]
        s_waitcnt lgkmcnt(0)
        s_sub_u32 s78, s78, s76
        s_cmp_lt_u32 s78, 2000
        s_cbranch_scc1 XT_LOOP
XT_DONE:
        """)
    a(f"""
    @store
K_END:
    s_endpgm
K_OVF:
    v_mov_b32 v19, 0
    v_mov_b32 v20, 1
    ds_write_b32 v19, v20 offset:{FLG+4}
    s_branch K_NOOVF
K_SHRINK:
    ; too many slots for one pass: redo this pass with at most 4 records per cell
    s_mov_b32 s{sR}, 4
    s_mov_b32 s{sMODE}, 1
    s_mov_b32 s{sTMP+1}, 0
    s_branch K_REINIT
K_SLOW:
    s_cmp_eq_u32 s{sMODE}, 0
    s_cselect_b32 s{sTMP+1}, s{sTMP+1}, 0
    s_or_b32 s{sTMP}, s{sTMP}, s{sTMP+1}
    s_cbranch_scc0 K_FINAL
    s_cmp_eq_u32 s{sTMP+1}, 0
    s_cselect_b32 s{sTMP}, s{sR}, 0
    s_add_u32 s{sR0}, s{sR0}, s{sTMP}
K_REINIT:
    s_waitcnt vmcnt(0) lgkmcnt(0)
    s_barrier
    v_lshrrev_b32 v9, 1, v{L8}
    v_mov_b32 v10, 0
    ds_write_b32 v9, v10 offset:{CNT}
    ds_write_b32 v9, v10 offset:{TF}
    ds_write_b32 v10, v10 offset:{FLG}
    ds_write_b32 v10, v10 offset:{FLG+4}
    v_lshlrev_b32 v9, 2, v{TID}
    v_mov_b32 v10, -1
    ds_write_b32 v9, v10 offset:{SS}
    s_cmp_eq_u32 s{sTMP+1}, 0
    s_cbranch_scc1 K_SLOW1
    s_mov_b32 s{sMODE}, 1
    v_lshlrev_b32 v9, 4, v{TID}
    v_add_u32 v9, {AGG}, v9
    v_mov_b64 v[4:5], 0
    v_mov_b64 v[6:7], 0
    ds_write_b128 v9, v[4:7]
    ds_write_b128 v9, v[4:7] offset:16384
    ds_write_b128 v9, v[4:7] offset:24576
K_SLOW1:
    v_and_b32 v22, 3, v{TID}
    s_waitcnt lgkmcnt(0)
    s_barrier
    s_branch K_PASS
    """)
    mainloop(a, True)
    return a.text()

HEADER = """; Kernarg layout for this problem (72 bytes, ptrs only, base s[0:1]):
;   offset  24: d_in[3] dst  shape=(320000,) dtype=int32
;   offset  64: d_ws      workspace
; One workgroup per CU (256 workgroups, 39-40 destination nodes each), one launch.
;   t[e] = c * (x[src] @ W1 + x[dst] @ W2 + e_attr @ W3) = P[src] + Q[dst] + e_attr @ (c W3),   silu = t / (c * (1 + 2^t))
; Phase A: every workgroup bins 1280 edges by destination group and computes P for its own rows; both are stored
; Phase B: a workgroup waits for the granules of its group, fetches its edges, sorts them by node in LDS and walks them
;   in tiles of 8: P rows are gathered into LDS, one MFMA (e_attr term + Q) and one sparse MFMA (row selector) give t
;   exp / rcp sigmoids (S_ loop), which also serves groups that need several passes.  Last: the update layer.
"""
def main():
    s = ("; opts " + " ".join(sys.argv[2:]) + "\n" if len(sys.argv) > 2 else "") + HEADER
    s += f"; @launch grid=({NG},1,1) block=(1024,1,1) lds={LDS_BYTES}\n"
    s += '.amdgcn_target "amdgcn-amd-amdhsa--gfx950"\n.text\n'
    s += f".globl {KN}\n.p2align 8\n.type {KN},@function\n" + kernel()
    s += f""".section .rodata,"a"
.p2align 6
.amdhsa_kernel {KN}
  .amdhsa_next_free_vgpr {NVGPR}
  .amdhsa_next_free_sgpr {100 if (DIAG or AMP or 'xcctest' in OPT) else NSGPR}
  .amdhsa_accum_offset {NVGPR}
  .amdhsa_group_segment_fixed_size 0
  .amdhsa_kernarg_size 72
  .amdhsa_user_sgpr_count 2
  .amdhsa_user_sgpr_kernarg_segment_ptr 1
  .amdhsa_system_sgpr_workgroup_id_x 1
.end_amdhsa_kernel
"""
    open(sys.argv[1], "w").write(s)
main()
```

```python
import sys, struct

N = 10000; E = 320000
NG = 256
EPW = 1280
NPROD = E // EPW
REC_STRIDE = EPW * 12 + 128
WS_P = 4096
WS_REC = 0x280000
WS_T = 0x650000
WS_F = 0x6D0000
WS_DIAG = 0xB00000
LOG2E = 1.4426950408889634
def f2u(x): return struct.unpack("<I", struct.pack("<f", x))[0]
NLOG2E = f2u(-LOG2E)
OPT = dict(a.split("=") if "=" in a else (a, "1") for a in sys.argv[2:])
DIAG = "diag" in OPT
AMP = int(OPT.get("amp", 0))
PF1 = int(OPT.get("pf1", 0)); PF2 = int(OPT.get("pf2", 14))
W2E = "w2late" not in OPT
RND = "rnd" in OPT
F16 = "f8" not in OPT
SMP = int(OPT.get("smp", 2))
OPT.setdefault("sleep", "no")
if OPT["sleep"] == "no": del OPT["sleep"]
PSTG = "pstage" in OPT
Q1 = "q1" in OPT
KN = "gather_scatter__mpnn_edge_mlp__graph_kernel"
SPINMAX = 400000
RMAX = 5
CAP = 2048

CNT = 0; FLG = 256; NON = 272
TF = 512
SS = 1024
XS = SS + CAP*2 + 256
QS = XS + 42*256
ES = QS + 40*512
AGG = ES + CAP*8
RING = AGG + 40*1024
LDS_BYTES = RING + 65536
W1S = RING; W2S = RING + 32768; WTS = RING
STAGE = QS; HIST = ES; OFFS = ES + 1024; W3S = ES + 2048
AB = XS; OUTS = QS; PST = ES + 3072
D0, D1, QR, VU, BP, AE, ID, W3 = 0, 16, 32, 48, 64, 72, 76, 84
VA, NUM, DEN, NANC, MAXC = 88, 90, 92, 94, 96
EAD, SAD, PAD, IX0, IX1, QAD, AAD, L8, NCNT, TID, TW, RAD, E8 = 97, 98, 99, 100, 102, 104, 105, 106, 107, 108, 109, 110, 111
G2 = 81; L4 = 82
XA, WA = 120, 92
OSA, ORA, OGA = 124, 125, 83
VG, VJ, VL = 126, 127, 97
UA = (112, 116, 88)
NVGPR = 128
sREC = 4; sR0 = 8; sMODE = 9; sLEFT = 10; sCNT = 11
sK1 = 12; sK2 = 13; sNL = 14; sNC = 15; sNQ = 16; sR = 17; sNZ2 = 18
sWS = 20; sWV = 22; sSTART = 23; sX = 24; sP = 24; sO = 28
sNZ = 32; sM0 = 34; sM1 = 36; sONE = 38; sRING = 40; sRHO = 42; sW = 40
sTMP = 44; sEV = 48; sG = 49; sEX = 50; sCM = 52
sNON = 60; sEND = 62; sSPIN = 63; sP2 = 64; sANY = 68; sT0 = 70; sVT = 71
NSGPR = 72
LDF = OPT.get('ldf', '').replace('+', ' ')
SE = int(OPT.get('se', 1))
SRCE = f"""    global_load_dwordx4 v[16:19], v8, s[8:9] {LDF}
    global_load_dwordx4 v[20:23], v9, s[6:7] {LDF}
    global_load_dwordx4 v[24:27], v9, s[6:7] offset:16 {LDF}
"""
WSOFF = f"s_add_u32 s{sWS}, s{sWS}, {int(OPT['wso']) << 20}\ns_addc_u32 s{sWS+1}, s{sWS+1}, 0" if 'wso' in OPT else ''
STF = OPT.get('stf', 'sc1').replace('+', ' ')
sST = 72
sPART = 68; sOLD = 69; sCVT = 48; sFA = 60; sFLIM = 63

class Asm:
    def __init__(self): self.l = []
    def __call__(self, s):
        for ln in s.strip("\n").split("\n"):
            ln = ln.strip()
            if ln.startswith("@estamp"):
                if "epi" not in OPT: continue
                ln = ln.replace("@estamp", "@stamp")
            elif ln.startswith("@stamp") and "epi" in OPT and int(ln.split()[1]) in range(2, 10): continue
            if ln.startswith("@amp"):
                i = int(ln.split()[1])
                A0 = int(OPT.get("amp0", 0))
                if AMP == 99 and i == 0: self('s_memrealtime s[74:75]\ns_waitcnt lgkmcnt(0)'); continue
                if AMP and i in (A0, AMP): self(f"s_memrealtime s[{72+2*(i != A0)}:{73+2*(i != A0)}]\ns_waitcnt lgkmcnt(0)")
                continue
            if ln.startswith("@store") and AMP:
                self("""s_waitcnt vmcnt(0)
                @amp 9
                s_lshl_b32 s3, s22, 8
                """ + ("" if "ampall" in OPT else "s_or_b32 s3, s3, s2") + """
                s_cmp_lg_u32 s3, """ + OPT.get("ampwg", "0") + """
                s_cbranch_scc1 AMP_DONE
                """ + ("s_sub_u32 s72, s60, 200" if "ampnon" in OPT else "") + """
                s_sub_u32 s74, s74, s72
                s_lshl_b32 s74, s74, 4
                s_memrealtime s[76:77]
                s_waitcnt lgkmcnt(0)
AMP_LOOP:
                s_memrealtime s[78:79]
                s_waitcnt lgkmcnt(0)
                s_sub_u32 s78, s78, s76
                s_cmp_lt_u32 s78, s74
                s_cbranch_scc1 AMP_LOOP
AMP_DONE:""")
                continue
            if ln.startswith("@stamp"):
                i = int(ln.split()[1])
                if DIAG and ("st" not in OPT or i in (0, 13) or str(i) in OPT["st"].split(",")): self(f"{'s_memrealtime' if OPT['diag'] == 'rt' or i in (0, 13) else 's_memtime'} s[{sST+2*i}:{sST+2*i+1}]\ns_waitcnt lgkmcnt(0)")
                continue
            if ln.startswith("@store"):
                if DIAG:
                    self(f"s_waitcnt vmcnt(0)\n@stamp 12\n@stamp 13\ns_load_dwordx2 s[{sWS}:{sWS+1}], s[0:1], 64\ns_waitcnt lgkmcnt(0)\ns_mov_b64 exec, -1\nv_lshrrev_b32 v1, 6, v{TID}\ns_lshl_b32 s3, s2, 4\nv_add_u32 v1, s3, v1\nv_lshlrev_b32 v1, 6, v1\nv_add_u32 v1, {WS_DIAG}, v1")
                    for i in range(14): self(f"v_mov_b32 v2, s{sST+2*i}\nglobal_store_dword v1, v2, s[{sWS}:{sWS+1}] offset:{4*i}")
                continue
            if ln: self.l.append(ln if ln.endswith(":") else "    " + ln)
    def text(self): return "\n".join(self.l) + "\n"

def dpp_scan(a, v, fill=()):
    fill = list(fill)
    def pad():
        k = 0
        while k < 2 and fill: a(fill.pop(0)); k += 1
        if k < 2: a(f"s_nop {1-k}")
    for sh in (1, 2, 4, 8):
        pad(); a(f"v_add_u32_dpp v{v}, v{v}, v{v} row_shr:{sh} row_mask:0xf bank_mask:0xf bound_ctrl:0")
    pad(); a(f"v_add_u32_dpp v{v}, v{v}, v{v} row_bcast:15 row_mask:0xa bank_mask:0xf")
    pad(); a(f"v_add_u32_dpp v{v}, v{v}, v{v} row_bcast:31 row_mask:0xc bank_mask:0xf")
    for x in fill: a(x)

def mainloop(a, safe):
    L = "S" if safe else "F"
    FRESH = not safe and "nofresh" not in OPT
    RESET = f"v_mov_b64 v[{DEN}:{DEN+1}], s[{sONE}:{sONE+1}]\nv_mov_b64 v[{NUM}:{NUM+1}], 0"
    def ex(d, k): a(f"v_exp_f32 v{VU+k}, v{d+k}")
    def pk(d, e):
        t = d + 2*e; u = VU + 2*e
        if not safe:
            a(f"""
            v_pk_fma_f32 v[{VA}:{VA+1}], v[{t}:{t+1}], v[{DEN}:{DEN+1}], v[{NUM}:{NUM+1}]
            v_pk_fma_f32 v[{DEN}:{DEN+1}], v[{DEN}:{DEN+1}], v[{u}:{u+1}], v[{DEN}:{DEN+1}]
            v_pk_fma_f32 v[{NUM}:{NUM+1}], v[{NUM}:{NUM+1}], v[{u}:{u+1}], v[{VA}:{VA+1}]
            """)
        else:
            a(f"""
            v_pk_add_f32 v[{u}:{u+1}], v[{u}:{u+1}], 1.0 op_sel_hi:[1,0]
            v_rcp_f32 v{u}, v{u}
            v_rcp_f32 v{u+1}, v{u+1}
            s_nop 0
            v_pk_fma_f32 v[{NUM}:{NUM+1}], v[{t}:{t+1}], v[{u}:{u+1}], v[{NUM}:{NUM+1}]
            """)
    def flush(b):
        if not safe:
            a(f"""
            v_rcp_f32 v{VU}, v{DEN}
            v_rcp_f32 v{VU+1}, v{DEN+1}
            v_max3_f32 v{MAXC}, v{MAXC}, v{DEN}, v{DEN+1}
            v_pk_mul_f32 v[{VA}:{VA+1}], v[{NUM}:{NUM+1}], v[{VU}:{VU+1}]
            {"" if FRESH else RESET}
            s_cmp_lg_u32 s{sPART}, 0
            s_cbranch_scc1 {L}_FA{b}
            ; the whole node was summed here: its row goes out as bf16
            s_mul_i32 s{sTMP}, s{sOLD}, 272
            v_cvt_pk_bf16_f32 v{VU}, v{VA}, v{VA+1}
            v_xor_b32 v{AAD}, s{sTMP}, v{L4}
            v_pk_fma_f32 v[{NANC}:{NANC+1}], v[{VA}:{VA+1}], 0, v[{NANC}:{NANC+1}] op_sel_hi:[1,0,1]
            ds_write_b32 v{AAD}, v{VU} offset:{AB}
{L}_FB{b}:
            """)
        else:
            a(f"""
            v_lshl_add_u32 v{AAD}, s{sOLD}, 10, v{L8}
            v_cvt_f64_f32 v[{VU}:{VU+1}], v{NUM}
            v_cvt_f64_f32 v[{VU+2}:{VU+3}], v{NUM+1}
            v_mov_b64 v[{NUM}:{NUM+1}], 0
            ds_add_f64 v{AAD}, v[{VU}:{VU+1}] offset:{AGG}
            ds_add_f64 v{AAD}, v[{VU+2}:{VU+3}] offset:{AGG+512}
            """)
    def flush_part(b):
        a(f"""
{L}_FA{b}:
        v_lshl_add_u32 v{AAD}, s{sOLD}, 10, v{L8}
        v_cvt_f64_f32 v[{VU}:{VU+1}], v{VA}
        v_cvt_f64_f32 v[{VU+2}:{VU+3}], v{VA+1}
        v_pk_fma_f32 v[{NANC}:{NANC+1}], v[{VA}:{VA+1}], 0, v[{NANC}:{NANC+1}] op_sel_hi:[1,0,1]
        ds_add_f64 v{AAD}, v[{VU}:{VU+1}] offset:{AGG}
        ds_add_f64 v{AAD}, v[{VU+2}:{VU+3}] offset:{AGG+512}
        s_bitcmp1_b32 s{sNL}, s{sLEFT}
        s_cselect_b32 s{sCVT}, s{sOLD}, s{sCVT}
        s_mov_b32 s{sPART}, 0
        s_branch {L}_FB{b}
        """)
    def preads(slot):
        if "p2" in OPT:
            for q in range(2):
                a(f"ds_read2st64_b64 v[{BP+4*q}:{BP+4*q+3}], v{PAD} offset0:{slot*4 + 2*q} offset1:{slot*4 + 2*q + 1}")
            return
        for q in range(4):
            a(f"ds_read_b64 v[{BP+2*q}:{BP+2*q+1}], v{PAD} offset:{slot*2048 + q*512}")
    def ereads(v, off):
        a(f"""
        s_mov_b64 exec, s[{sM0}:{sM0+1}]
        ds_read_b64 v[{AE}:{AE+1}], v{v} offset:{ES+off}
        s_mov_b64 exec, s[{sM1}:{sM1+1}]
        ds_read_b64 v[{AE+2}:{AE+3}], v{v} offset:{ES+off}
        s_mov_b64 exec, -1
        """)
    def idxreads(v, off):
        a(f"ds_read_u16 v{IX0}, v{v} offset:{SS+off}\nds_read_u16 v{IX1}, v{v} offset:{SS+off+8}")
    def qreads(node):
        if "q2" in OPT:
            a(f"v_lshl_add_u32 v{QAD}, s{node}, 9, v{LQ}")
            for q in range(4):
                a(f"ds_read2_b64 v[{QR+4*q}:{QR+4*q+3}], v{QAD} offset0:0 offset1:0")
            return
        a(f"v_lshl_add_u32 v{QAD}, s{node}, 9, v{L8}")
        for q in range(8):
            a(f"ds_read_b64 v[{QR+2*q}:{QR+2*q+1}], v{QAD} offset:{QS}")
    def mfma(d, k):
        if k == 0: a(f"v_mfma_f32_32x32x16_bf16 v[{d}:{d+15}], v[{AE}:{AE+3}], v[{W3}:{W3+3}], v[{QR}:{QR+15}]")
        else: a(f"v_smfmac_f32_32x32x32_bf16 v[{d}:{d+15}], v[{ID}:{ID+3}], v[{BP}:{BP+7}], v{ID+4}")
    def dma(slot, f1="s_nop 0"):
        if "x_nodma" in OPT: a(f1); return
        a(f"""
        s_mov_b32 m0, s{sRING+slot}
        {f1}
        buffer_load_dwordx4 v[{IX0}:{IX0+1}], s[{sP}:{sP+3}], 0 idxen offen sc1 lds
        buffer_load_dwordx4 v[{IX1}:{IX1+1}], s[{sP2}:{sP2+3}], 0 idxen offen offset:1024 sc1 lds
        """)
    def qnext():
        a(f"s_bitset0_b64 s[{sNZ}:{sNZ+1}], s{sNQ}\ns_ff1_i32_b64 s{sNQ}, s[{sNZ}:{sNZ+1}]")
        qreads(sNQ)
    def tree(name, labels):
        a(f"""
{name}:
        s_cmp_gt_u32 s{sCNT}, 3
        s_cbranch_scc1 {name}_H
        s_cmp_eq_u32 s{sCNT}, 2
        s_cbranch_scc1 {labels[2]}
        s_cmp_eq_u32 s{sCNT}, 3
        s_cbranch_scc1 {labels[3]}
        s_branch {labels[1]}
{name}_H:
        s_cmp_gt_u32 s{sCNT}, 5
        s_cbranch_scc1 {name}_HH
        s_cmp_eq_u32 s{sCNT}, 4
        s_cbranch_scc1 {labels[4]}
        s_branch {labels[5]}
{name}_HH:
        s_cmp_eq_u32 s{sCNT}, 6
        s_cbranch_scc1 {labels[6]}
        s_branch {labels[7]}
        """)
    EV = int(OPT.get("ev", 5))
    a(f"{L}_START:")
    a(f"""
    {"" if FRESH else RESET}
    s_waitcnt lgkmcnt(1)
    """)
    dma(0)
    idxreads(SAD, 16)
    qreads(sNQ)
    a(f"""
    s_waitcnt lgkmcnt({4 if "q2" in OPT else 8})
    v_cmp_ne_u32 vcc, 0, v16
    """)
    dma(1)
    idxreads(SAD, 32)
    ereads(EAD, 0)
    a(f"""
    ; sK1: one bit per tile from the top (ends a node, or one of the last tiles), then a marker; sK2: tile + 2 starts a node;
    ; sNL: bit k = the tile with k tiles behind it ends a node
    s_brev_b32 s{sK1}, vcc_lo
    s_lshl_b32 s{sK2}, s{sK1}, 1
    s_sub_u32 s{sTMP}, 32, s{sLEFT}
    s_lshr_b32 s{sNL}, s{sK1}, s{sTMP}
    s_lshl_b32 s{sK1}, s{sNL}, s{sTMP}
    s_sub_u32 s{sTMP}, s{sTMP}, 1
    s_lshl_b32 s{sTMP}, {((7 | (1 << EV)) << 1) | 1}, s{sTMP}
    s_or_b32 s{sK1}, s{sK1}, s{sTMP}
    s_waitcnt vmcnt(2)
    """)
    preads(0)
    a("s_waitcnt lgkmcnt(0)\n@stamp 9")
    dma(0)
    for k in range(2): mfma(D0, k)
    ereads(EAD, 64)
    idxreads(SAD, 48)
    a(f"s_bitcmp0_b32 vcc_lo, 0\ns_cbranch_scc1 {L}_S4")
    qnext()
    a(f"{L}_S4:\ns_waitcnt vmcnt(2)")
    preads(1)
    a(f"s_branch {L}_{'G' if FRESH else 'L'}0B")
    K2 = f"s_add_u32 s{sK2}, s{sK2}, s{sK2}"
    def xphase(b, lab):
        dc, dn = (D0, D1) if b == 0 else (D1, D0)
        mfma(dn, 0)
        for e in range(7, -1, -1):
            if lab and e < 7: a(f"{L}_X{b}_{e+1}:")
            if e == SMP: mfma(dn, 1)
            ex(dc, 2*e+1); ex(dc, 2*e)
    def mid(b, tag):
        a("s_waitcnt vmcnt(2)")
        preads(b)
        if tag == "E": a(K2)
        a(f"s_cbranch_scc1 {L}_ADV{tag}{b}\n{L}_RB{tag}{b}:")
        ereads(EAD, 64*(b+2))
        idxreads(SAD, 16*(b+4))
    def yphase(b, lab):
        dc = D0 if b == 0 else D1
        for e in range(7, -1, -1):
            if lab and e < 7: a(f"{L}_Y{b}_{e+1}:")
            pk(dc, e)
    for b in range(2):
        dc, dn = (D0, D1) if b == 0 else (D1, D0)
        a(f"""
{L}_TAIL{b}:
        s_setprio 2
        s_cmp_ge_u32 s{sLEFT}, 3
        s_cbranch_scc1 {L}_TD{b}
        s_setprio 1
        s_cmp_gt_u32 s{sLEFT}, {OPT.get("p0", 0)}
        s_cbranch_scc1 {L}_T1{b}
        s_setprio 0
{L}_T1{b}:
        s_waitcnt vmcnt(0)
        s_branch {L}_T2{b}
{L}_TD{b}:
        """)
        dma(1-b)
        a(f"""
{L}_T2{b}:
        s_bitcmp1_b32 s{sNL}, s{sLEFT}
        s_cbranch_scc1 {L}_ENDN{b}
        s_cmp_eq_u32 s{sLEFT}, 0
        s_cbranch_scc1 {L}_RE{b}
        {K2}
        s_branch {L}_XB{b}
{L}_RE{b}:
        s_mov_b32 s{sCNT}, 8
        s_mov_b32 s{sOLD}, s{sNC}
        s_mov_b32 s{sPART}, 1
        s_branch {L}_X{b}_8
        """)
        if not safe: flush_part(b)
        for tag in "PE":
            a(f"{L}_ADV{tag}{b}:")
            qnext()
            a(f"s_branch {L}_RB{tag}{b}")
        tree(f"{L}_XD{b}", {c: f"{L}_XS{b}_{c}" for c in range(1, 8)})
        for c in range(1, 8):
            a(f"{L}_XS{b}_{c}:")
            mfma(dn, 0)
            if c <= SMP: mfma(dn, 1)
            a(f"s_branch {L}_X{b}_{c}")
        tree(f"{L}_YD{b}", {c: f"{L}_Y{b}_{c}" for c in range(1, 8)})
        a(f"""
{L}_SP{b}:
        s_ff1_i32_b32 s{sLEFT}, s{sK1}
        s_sub_u32 s{sLEFT}, 31, s{sLEFT}
        s_cmp_le_u32 s{sLEFT}, {EV}
        s_cbranch_scc1 {L}_TAIL{b}
        """)
        dma(1-b)
        a(f"""
{L}_ENDN{b}:
        v_readlane_b32 s{sCNT}, v{NCNT}, s{sNC}
        s_mov_b32 s{sOLD}, s{sNC}
        s_bitset0_b64 s[{sNZ2}:{sNZ2+1}], s{sNC}
        s_ff1_i32_b64 s{sNC}, s[{sNZ2}:{sNZ2+1}]
        s_cmp_lt_u32 s{sCNT}, 8
        s_cbranch_scc1 {L}_XD{b}
{L}_X{b}_8:
        """)
        xphase(b, True)
        mid(b, "E")
        a(f"s_cmp_lt_u32 s{sCNT}, 8\ns_cbranch_scc1 {L}_YD{b}")
        yphase(b, True)
        flush(b)
        a(f"""
        s_cmp_eq_u32 s{sLEFT}, 0
        s_cbranch_scc1 K_MAINDONE
        s_branch {L}_{"G" if FRESH else "L"}{1-b}
        """)
        if FRESH:
            a(f"{L}_GS{b}:\n{RESET}\ns_branch {L}_SP{b}")
            a(f"{L}_ADVG{b}:")
            qnext()
            a(f"s_branch {L}_RBG{b}")
            a(f"{L}_G{b}:")
            if b == 0:
                a(f"v_add_u32 v{EAD}, 128, v{EAD}\nv_add_u32 v{SAD}, 32, v{SAD}\n{L}_G0B:")
            a(f"""
            s_add_u32 s{sK1}, s{sK1}, s{sK1}
            s_waitcnt lgkmcnt(0)
            s_cbranch_scc1 {L}_GS{b}
            """)
            dma(1-b, K2)
            xphase(b, False)
            mid(b, "G")
            t7 = dc + 14; t6 = dc + 12; u7 = VU + 14; u6 = VU + 12
            a(f"""
            v_pk_add_f32 v[{DEN}:{DEN+1}], v[{u7}:{u7+1}], 1.0 op_sel_hi:[1,0]
            v_pk_fma_f32 v[{VA}:{VA+1}], v[{t6}:{t6+1}], v[{DEN}:{DEN+1}], v[{t7}:{t7+1}]
            v_pk_fma_f32 v[{DEN}:{DEN+1}], v[{DEN}:{DEN+1}], v[{u6}:{u6+1}], v[{DEN}:{DEN+1}]
            v_pk_fma_f32 v[{NUM}:{NUM+1}], v[{t7}:{t7+1}], v[{u6}:{u6+1}], v[{VA}:{VA+1}]
            s_branch {L}_YP{b}_6
            """)
    a(f".p2align {OPT.get('al', 6)}")
    if "alo" in OPT: a("\n".join(["s_nop 0"]*int(OPT["alo"])))
    for b in range(2):
        a(f"{L}_L{b}:")
        if b == 0:
            a(f"v_add_u32 v{EAD}, 128, v{EAD}\nv_add_u32 v{SAD}, 32, v{SAD}\n{L}_L0B:")
        a(f"""
        s_add_u32 s{sK1}, s{sK1}, s{sK1}
        s_waitcnt lgkmcnt(0)
        s_cbranch_scc1 {L}_SP{b}
        """)
        dma(1-b, K2)
        a(f"{L}_XB{b}:")
        xphase(b, False)
        mid(b, "P")
        for e in range(7, -1, -1):
            if e == 5: a(f"{L}_YP{b}_6:")
            pk(D0 if b == 0 else D1, e)
        if b == 1: a(f"s_branch {L}_L0")

def consts(a):
    a(f"""
    ; m = l&31, hk = l>>5, e = 2*(m>>3) + ((m>>1)&1), H = (m>>2)&1, c0 = m&1
    v_lshlrev_b32 v{L8}, 3, v{VL}
    {f'v_add_u32 v{LQ}, {QS}, v{L8}' if 'q2' in OPT else ''}
    v_lshlrev_b32 v{L4}, 2, v{VL}
    v_lshlrev_b32 v{IX0+1}, 4, v{VJ}
    v_lshlrev_b32 v{IX1+1}, 4, v{VJ}
    v_lshlrev_b32 v{G2}, 1, v{VG}
    v_lshrrev_b32 v1, 5, v{VL}
    v_bfe_u32 v2, v{VL}, 2, 1
    v_and_b32 v3, 1, v{VL}
    v_bfe_u32 v4, v{VL}, 1, 1
    v_bfe_u32 v5, v{VL}, 3, 2
    v_lshl_add_u32 v5, v5, 1, v4
    v_mov_b64 v[{AE}:{AE+1}], 0
    v_mov_b64 v[{AE+2}:{AE+3}], 0
    v_xor_b32 v{ID}, v1, v2
    v_lshl_add_u32 v{ID}, v{ID}, 1, v3
    v_cmp_eq_u32 s[{sM0}:{sM0+1}], 0, v{ID}
    v_cmp_eq_u32 s[{sM1}:{sM1+1}], 1, v{ID}
    v_lshlrev_b32 v{E8}, 3, v5
    ; sparse selector: lane half e>>2, register q = 2*(e&1) + ((e>>1)&1) holds 1.0, index (2*H + c0) << 4*q
    v_lshrrev_b32 v{ID+1}, 2, v5
    v_cmp_eq_u32 vcc, v1, v{ID+1}
    v_bfe_u32 v5, v5, 1, 1
    v_lshl_add_u32 v5, v4, 1, v5
    v_lshl_add_u32 v2, v2, 1, v3
    v_cndmask_b32 v3, 0, v{W3}, vcc
    v_lshlrev_b32 v4, 2, v5
    v_lshlrev_b32 v{ID+4}, v4, v2
    """)
    for q in range(4): a(f"v_cmp_eq_u32 s[{sCM + 2*q}:{sCM + 2*q + 1}], {q}, v5")
    a(f"v_lshrrev_b32 v1, 2, v{TID}\nv_and_b32 v2, 3, v{TID}")
    for q in range(4): a(f"v_cndmask_b32 v{ID+q}, 0, v3, s[{sCM + 2*q}:{sCM + 2*q + 1}]")
    a(f"""
    s_movk_i32 s3, {REC_STRIDE}
    v_mul_u32_u24 v3, s3, v1
    v_mad_u32_u24 v{RAD}, v2, 12, v3
    s_lshl_b32 s3, s{sG}, 3
    s_add_u32 s3, s3, {WS_T}
    v_lshl_add_u32 v{AAD}, v1, 11, s3
    ; x fragment addresses and the W transpose-read lane offset
    v_xor_b32 v1, v{VG}, v{VJ}
    v_lshlrev_b32 v1, 4, v1
    v_lshl_add_u32 v{XA}, v{VJ}, 8, v1
    v_xor_b32 v{XA+1}, 64, v{XA}
    v_xor_b32 v{XA+2}, 128, v{XA}
    v_xor_b32 v{XA+3}, 192, v{XA}
    v_bfe_u32 v1, v{VL}, 2, 2
    v_and_b32 v2, 1, v{VG}
    v_lshl_or_b32 v2, v2, 2, v1
    v_bfe_u32 v3, v{VL}, 1, 1
    v_lshl_or_b32 v2, v2, 1, v3
    v_and_b32 v3, 1, v{VL}
    v_lshl_or_b32 v2, v2, 1, v3
    v_lshl_add_u32 v1, v{VG}, 3, v1
    v_lshlrev_b32 v1, 8, v1
    v_lshl_add_u32 v{WA}, v2, 3, v1
    ; output staging: write row*256 + ((2*ct + (g>>1)) ^ j)*16 + (g&1)*8 (row = 16*rt + j, ct = wv&7), read / store 16 B per thread
    s_and_b32 s3, s{sWV}, 7
    s_lshl_b32 s3, s3, 1
    v_lshrrev_b32 v1, 1, v{VG}
    v_or_b32 v1, s3, v1
    v_xor_b32 v1, v1, v{VJ}
    v_and_b32 v2, 1, v{VG}
    v_lshl_or_b32 v1, v1, 1, v2
    v_lshlrev_b32 v1, 3, v1
    v_lshl_add_u32 v{OSA}, v{VJ}, 8, v1
    v_lshrrev_b32 v1, 4, v{TID}
    v_xor_b32 v2, v1, v{VJ}
    v_and_b32 v2, 15, v2
    v_lshlrev_b32 v2, 4, v2
    v_lshl_add_u32 v{ORA}, v1, 8, v2
    s_lshl_b32 s3, s{sSTART}, 8
    v_lshl_add_u32 v{OGA}, v{TID}, 4, s3
    """)
def tagbase(a, v):
    a(f"""
    v_readfirstlane_b32 s{sNON}, v{v}
    v_readfirstlane_b32 s{sNON+1}, v{v+1}
    """)
    if RND:
        a(f"""
        s_bfe_u32 s3, s{sNON}, 0x50004
        s_lshl_b32 s3, s3, 23
        s_add_u32 s{sWS}, s{sWS}, s3
        s_addc_u32 s{sWS+1}, s{sWS+1}, 0
        """)
def wlane(a, v):
    a(f"""
    v_lshlrev_b32 v{v}, 1, v{VG}
    v_xor_b32 v{v}, v{v}, v{VJ}
    v_lshlrev_b32 v{v}, 4, v{v}
    v_lshl_add_u32 v{v}, v{VG}, 8, v{v}
    v_xor_b32 v{v+1}, 128, v{v}
    """)
def wdma(a, soff, v):
    a(f"""
    buffer_load_dwordx4 v{v}, s[{sW}:{sW+3}], s{soff} offen lds
    buffer_load_dwordx4 v{v}, s[{sW}:{sW+3}], s{soff} offen offset:1024 lds
    buffer_load_dwordx4 v{v+1}, s[{sW}:{sW+3}], s{soff} offen offset:2048 lds
    buffer_load_dwordx4 v{v+1}, s[{sW}:{sW+3}], s{soff} offen offset:3072 lds
    """)
def mm16(a, d, x, w, swap=False, first=True):
    for ks in range(4):
        c = "0" if (ks == 0 and first) else f"v[{d}:{d+3}]"
        xa = f"v[{x+4*ks}:{x+4*ks+3}]"; wa = f"v[{w+4*ks}:{w+4*ks+3}]"
        a(f"v_mfma_f32_16x16x32_bf16 v[{d}:{d+3}], {wa if swap else xa}, {xa if swap else wa}, {c}")
def xreads(a, dst, off):
    for ks in range(4): a(f"ds_read_b128 v[{dst+4*ks}:{dst+4*ks+3}], v{XA+ks} offset:{off}")

def kernel():
    a = Asm()
    a(f"""
{KN}:
    @stamp 0
    @stamp 1
    @amp 0
    s_load_dwordx16 s[4:19], s[0:1], 0
    s_load_dwordx2 s[{sWS}:{sWS+1}], s[0:1], 64
    s_cmp_ge_u32 s2, {NG}
    s_cbranch_scc1 K_END
    v_mov_b32 v{TID}, v0
    v_lshrrev_b32 v1, 6, v0
    v_and_b32 v{VL}, 63, v0
    v_readfirstlane_b32 s{sWV}, v1
    ; group index: workgroups that are dealt to one XCD get neighbouring groups (speed only)
    s_and_b32 s{sG}, s2, 7
    s_lshl_b32 s{sG}, s{sG}, 5
    s_lshr_b32 s3, s2, 3
    s_or_b32 s{sG}, s{sG}, s3
    v_lshrrev_b32 v{VG}, 4, v{VL}
    v_and_b32 v{VJ}, 15, v{VL}
    s_mul_i32 s3, s{sG}, 625
    s_add_u32 s{sSTART}, s3, 15
    s_lshr_b32 s{sSTART}, s{sSTART}, 4
    s_add_u32 s{sEND}, s3, {625+15}
    s_lshr_b32 s{sEND}, s{sEND}, 4
    v_mov_b32 v{W3}, 0x3f80
    s_mov_b32 s{sW+2}, 65536
    s_mov_b32 s{sW+3}, 0x20000
    s_cmp_ge_u32 s{sWV}, 5
    s_cbranch_scc1 A_N1
    ; ================= waves 0..4: bin the edges [1280*g, 1280*g+1280) by destination group (4 edges per thread)
    {f"s_setprio {OPT['sp']}" if "sp" in OPT else ""}
    s_cmp_lt_u32 s{sG}, {NPROD}
    s_cselect_b32 s3, s{sG}, 0
    s_cselect_b64 s[{sEX}:{sEX+1}], -1, 0
    s_mul_i32 s3, s3, {EPW*4}
    v_lshl_add_u32 v8, v0, 4, s3
    v_lshlrev_b32 v9, 1, v8
    s_lshl_b32 s{sTMP}, s{sWV}, 3
    v_add_u32 v1, s{sTMP}, v{VG}
    v_xor_b32 v2, v1, v{VJ}
    v_and_b32 v2, 15, v2
    v_lshlrev_b32 v2, 4, v2
    v_lshl_add_u32 v2, v1, 8, v2
    v_xor_b32 v3, 64, v2
    s_lshl_b32 s{sTMP}, s{sWV}, 11
    s_add_u32 m0, s{sTMP}, {XS}
    s_lshl_b32 s{sTMP+2}, s{sSTART}, 8
    s_mov_b32 s{sX+2}, {N*256}
    s_mov_b32 s{sX+3}, 0x20000
    s_waitcnt lgkmcnt(0)
    global_load_dwordx4 v[12:15], v8, s[10:11] {LDF}
    {WSOFF}
    s_mov_b32 s{sX}, s4
    s_and_b32 s{sX+1}, s5, 0xffff
    buffer_load_dwordx4 v2, s[{sX}:{sX+3}], s{sTMP+2} offen {LDF} lds
    buffer_load_dwordx4 v3, s[{sX}:{sX+3}], s{sTMP+2} offen offset:1024 {LDF} lds
    {SRCE if SE == 0 else ""}
    s_barrier
    {SRCE if SE == 1 else ""}
    """)
    if "cearly" in OPT: consts(a)
    a(f"""
    s_movk_i32 s{sTMP}, 625
    s_mov_b32 s{sTMP+1}, 214749
    v_mov_b32 v1, 1
    v_lshlrev_b32 v10, 4, v{VL}
    s_waitcnt vmcnt({2 if SE == 2 else 5})
    {SRCE if SE == 2 else ""}
    s_mov_b64 exec, s[{sEX}:{sEX+1}]
    """)
    for i in range(4):
        a(f"v_mul_u32_u24 v{28+i}, s{sTMP+1}, v{12+i}")
    for i in range(4):
        a(f"v_lshrrev_b32 v{28+i}, 23, v{28+i}\nv_lshlrev_b32 v{32+i}, 2, v{28+i}\nds_add_rtn_u32 v{36+i}, v{32+i}, v1 offset:{HIST}")
    a(f"""
    s_mov_b64 exec, -1
    s_waitcnt lgkmcnt(0)
    @stamp 2
    s_barrier
    ds_read_b128 v[40:43], v10 offset:{HIST}
    """)
    for i in range(4):
        a(f"v_mad_u32_u24 v{28+i}, v{28+i}, s{sTMP}, 15\nv_lshrrev_b32 v{28+i}, 4, v{28+i}\nv_sub_u32 v{28+i}, v{12+i}, v{28+i}")
    a(f"""
    s_waitcnt lgkmcnt(0)
    v_add_u32 v44, v40, v41
    v_add3_u32 v44, v44, v42, v43
    v_mov_b32 v45, v44
    """)
    dpp_scan(a, 45)
    a(f"""
    v_sub_u32 v48, v45, v44
    v_add_u32 v49, v48, v40
    v_add_u32 v50, v49, v41
    v_add_u32 v51, v50, v42
    ds_write_b128 v10, v[48:51] offset:{OFFS}
    s_mov_b32 s{sTMP}, {STAGE}
    s_mov_b64 exec, s[{sEX}:{sEX+1}]
    s_waitcnt lgkmcnt(0)
    """)
    for i in range(4):
        a(f"ds_read_b32 v{40+i}, v{32+i} offset:{OFFS}")
    a(f"""
    s_waitcnt vmcnt(3)
    @stamp 3
    s_barrier
    @amp 1
    s_waitcnt lgkmcnt(0)
    """)
    for i in range(4):
        a(f"v_add_u32 v{40+i}, v{40+i}, v{36+i}\nv_mad_u32_u24 v{40+i}, v{40+i}, 12, s{sTMP}")
    a("s_waitcnt vmcnt(2)")
    for i in range(4):
        a(f"v_lshl_or_b32 v{16+i}, v{28+i}, 18, v{16+i}\nds_write_b32 v{40+i}, v{16+i} offset:8")
    for i in range(4):
        if i % 2 == 0: a(f"s_waitcnt vmcnt({1 - i//2})")
        a(f"ds_write2_b32 v{40+i}, v{20+2*i}, v{21+2*i} offset0:0 offset1:1")
    a(f"""
    s_mov_b64 exec, -1
    s_branch A_JOINC
A_N1:
    ; ================= waves 5..15
    v_mov_b32 v8, 0
    """)
    wlane(a, 6)
    a(f"""
    s_sub_u32 s{sVT}, s{sWV}, 5
    s_lshl_b32 s{sVT}, s{sVT}, 12
    s_add_u32 m0, s{sVT}, {W1S}
    s_waitcnt lgkmcnt(0)
    s_mov_b32 s{sW}, s12
    s_and_b32 s{sW+1}, s13, 0xffff
    {WSOFF}
    s_cmp_ge_u32 s{sWV}, 13
    s_cbranch_scc1 A_N13
    """)
    if "w1late" not in OPT: wdma(a, sVT, 6)
    a(f"""
    s_cmp_ge_u32 s{sWV}, 10
    s_cbranch_scc1 A_N10
    ; waves 5..8: histogram = 0; wave 9: node counters and flags = 0
    s_mov_b32 s{sTMP+1}, {HIST - 320*4}
    s_cmp_eq_u32 s{sWV}, 9
    s_cselect_b32 s{sTMP+1}, {CNT - 576*4}, s{sTMP+1}
    v_lshl_add_u32 v3, v0, 2, s{sTMP+1}
    ds_write_b32 v3, v8
    ds_write_b32 v8, v8 offset:{FLG}
    ds_write_b32 v8, v8 offset:{FLG+4}
    s_cbranch_scc0 A_B0
    ds_write_b32 v3, v8 offset:{TF}
    s_branch A_B0
A_N13:
    s_cmp_eq_u32 s{sWV}, 15
    s_cbranch_scc1 A_N15
    ; waves 13, 14: pull this CU's share of W2 / Wupd_top into the L2 (speed only)
    s_and_b32 s{sTMP}, s{sG}, 31
    s_lshl_b32 s{sTMP}, s{sTMP}, 10
    s_cmp_eq_u32 s{sWV}, 13
    s_cselect_b32 s{sTMP+1}, 32768, 0
    s_cselect_b32 s{sTMP+2}, s12, s14
    s_cselect_b32 s{sTMP+3}, s13, s15
    s_add_u32 s{sTMP}, s{sTMP}, s{sTMP+1}
    v_lshl_add_u32 v3, v{VL}, 7, s{sTMP}
    s_mov_b64 exec, 0xff
    {"" if "notouch" in OPT else f"global_load_dword v40, v3, s[{sTMP+2}:{sTMP+3}]"}
    s_mov_b64 exec, -1
    s_cmp_eq_u32 s{sWV}, 14
    s_cbranch_scc0 A_N10
    """)
    if "bulk" in OPT:
        nl, fl = OPT["bulk"].split(":"); nl = int(nl); fl = fl.replace("+", " ").replace("-", "")
        a(f"""
        s_mul_i32 s3, s{sG}, {REC_STRIDE}
        s_add_u32 s3, s3, {WS_REC}
        v_lshl_add_u32 v3, v{VL}, 4, s3
        v_mov_b64 v[4:5], 0
        v_mov_b64 v[6:7], 0
        s_waitcnt vmcnt(0)
        s_sleep {OPT.get("bsl", 0)}
        @amp 12
        """)
        for k in range(nl): a(f"global_store_dwordx4 v3, v[4:7], s[{sWS}:{sWS+1}] {fl}\nv_add_u32 v3, 1024, v3")
        a(f"""
        s_waitcnt vmcnt(0)
        @amp 13
        """)
    if "probe" in OPT:
        kind, nl = OPT["probe"].split(":"); nl = int(nl)
        a(f"""
        s_mul_i32 s3, s{sG}, {REC_STRIDE}
        s_add_u32 s3, s3, {WS_REC}
        v_lshl_add_u32 v3, v{VL}, 7, s3
        v_mov_b32 v4, 0
        s_waitcnt vmcnt(0)
        @amp 12
        s_mov_b64 exec, {(1 << nl) - 1 if nl < 32 else -1}
        {"global_store_dword v3, v4" if kind == "st" else "global_load_dword v4, v3"}, s[{sWS}:{sWS+1}] sc1
        s_mov_b64 exec, -1
        s_waitcnt vmcnt(0)
        @amp 13
        """)
    if "tlb" in OPT:
        a(f"""
        ; wave 14: touch lines nobody writes in the pages that are used later (address translation; speed only)
        v_mov_b32 v3, 0
        s_mov_b32 s3, {WS_REC - 128}
        v_writelane_b32 v3, s3, 1
        s_mov_b32 s3, {WS_REC + 200*REC_STRIDE - 128}
        v_writelane_b32 v3, s3, 2
        s_mov_b32 s3, {WS_F + 65536}
        v_writelane_b32 v3, s3, 3
        s_lshl_b32 s3, s{sSTART}, 8
        v_mov_b32 v4, s3
        v_mov_b32 v5, 128
        s_mov_b64 exec, 15
        global_load_dword v41, v3, s[{sWS}:{sWS+1}]
        s_mov_b64 exec, 1
        global_load_dword v42, v4, s[16:17]
        global_load_dword v43, v5, s[18:19]
        s_mov_b64 exec, -1
        """)
    a(f"""
    s_branch A_B0
A_N10:
    ; waves 10..13: src list = 0xffff (index out of range)
    v_lshlrev_b32 v3, 4, v0
    v_add_u32 v3, {SS - 640*16}, v3
    v_mov_b64 v[12:13], -1
    v_mov_b64 v[14:15], -1
    ds_write_b128 v3, v[12:15]
    s_branch A_B0
A_N15:
    """)
    a(f"""
    s_cmp_lg_u32 s2, 0
    s_cbranch_scc1 A_B0
    s_memrealtime s[{sNON}:{sNON+1}]
    s_waitcnt lgkmcnt(0)
    s_or_b32 s{sNON}, s{sNON}, 1
    v_mov_b32 v10, s{sNON}
    v_mov_b32 v11, s{sNON+1}
    s_mov_b64 exec, 1
    global_store_dwordx2 v8, v[10:11], s[18:19] sc1
    s_mov_b64 exec, -1
A_B0:
    s_cmp_eq_u32 s{sWV}, 15
    s_cbranch_scc1 A_B1
    v_lshlrev_b32 v3, 4, v0
    v_add_u32 v3, {AGG - 320*16}, v3
    v_mov_b64 v[12:13], 0
    v_mov_b64 v[14:15], 0
    ds_write_b128 v3, v[12:15]
    ds_write_b128 v3, v[12:15] offset:10240
    ds_write_b128 v3, v[12:15] offset:20480
    ds_write_b128 v3, v[12:15] offset:30720
A_B1:
    """)
    if "x_prew" in OPT:
        op = "global_atomic_or" if OPT["x_prew"] == "atom" else "global_store_dword"
        a(f"""
        s_sub_u32 s3, s{sWV}, 11
        s_cmp_gt_u32 s3, 3
        s_cbranch_scc1 X_NOPW
        s_mul_i32 s{sTMP}, s{sG}, {REC_STRIDE}
        s_add_u32 s{sTMP}, s{sTMP}, {WS_REC}
        s_lshl_b32 s{sTMP+1}, s{sSTART}, 8
        s_add_u32 s{sTMP+1}, s{sTMP+1}, {WS_P}
        s_cmp_lt_u32 s3, 2
        s_cselect_b32 s{sTMP}, s{sTMP}, s{sTMP+1}
        s_cselect_b32 s{sTMP+1}, 42, 0
        s_add_u32 s{sTMP+1}, s{sTMP+1}, 77
        s_and_b32 s3, s3, 1
        s_lshl_b32 s3, s3, 6
        v_add_u32 v3, s3, v{VL}
        v_cmp_ge_u32 vcc, s{sTMP+1}, v3
        v_lshl_add_u32 v3, v3, 7, s{sTMP}
        v_mov_b32 v4, 0
        s_mov_b64 exec, vcc
        {op} v3, v4, s[{sWS}:{sWS+1}] sc1
        s_mov_b64 exec, -1
        s_cmp_eq_u32 s{sWV}, 14
        s_cbranch_scc0 X_NOPW
        s_lshl_b32 s{sTMP}, s{sG}, 11
        s_add_u32 s{sTMP}, s{sTMP}, {WS_T}
        v_lshl_add_u32 v3, v{VL}, 7, s{sTMP}
        s_mov_b64 exec, 0xffff
        {op} v3, v4, s[{sWS}:{sWS+1}] offset:4 sc1
        s_mov_b64 exec, -1
X_NOPW:
        """)
    a(f"""
    s_waitcnt lgkmcnt(4)
    s_barrier
    """)
    if "w1late" in OPT:
        a(f"s_cmp_ge_u32 s{sWV}, 13\ns_cbranch_scc1 A_NOW1")
        wdma(a, sVT, 6)
        a("A_NOW1:")
    a(f"""
    """)
    def w15():
        a(f"""
    s_cmp_eq_u32 s{sWV}, 15
    s_cbranch_scc0 A_NO15
    v_bfe_u32 v9, v{VL}, 4, 1
    v_lshlrev_b32 v9, 6, v9
    v_lshrrev_b32 v10, 5, v{VL}
    v_lshl_add_u32 v9, v10, 5, v9
    v_add_u32 v9, v9, v{VJ}
    v_lshlrev_b32 v9, 1, v9
    v_add_u32 v8, {256*256}, v9
        """)
        for s in range(8):
            a(f"global_load_ushort v{16 + s}, v8, s[12:13] offset:{(s & 3)*256 + (s >> 2)*32}")
        a(f"""
    s_cmp_ge_u32 s{sG}, 32
    s_cbranch_scc1 A_NO15
    s_and_b32 s{sTMP}, s{sG}, 1
    s_lshl_b32 s{sTMP}, s{sTMP}, 6
    s_bfe_u32 s{sTMP+1}, s{sG}, 0x10001
    s_lshl_b32 s{sTMP+1}, s{sTMP+1}, 5
    s_add_u32 s{sTMP}, s{sTMP}, s{sTMP+1}
    s_add_u32 s{sTMP}, s{sTMP}, 128
    s_lshl_b32 s{sTMP}, s{sTMP}, 8
    s_bfe_u32 s{sTMP+1}, s{sG}, 0x30002
    s_lshl_b32 s{sTMP+1}, s{sTMP+1}, 5
    s_add_u32 s{sTMP}, s{sTMP}, s{sTMP+1}
    v_lshlrev_b32 v8, 10, v{VG}
    v_lshl_add_u32 v8, v{VJ}, 1, v8
    v_add_u32 v8, s{sTMP}, v8
    v_add_u32 v9, {16*256}, v8
        """)
        for s in range(8):
            a(f"global_load_ushort v{24 + s}, v{8 + (s & 1)}, s[14:15] offset:{(s >> 1)*256}")
        a(f"""
A_NO15:
        """)
    if "w3late" not in OPT: w15()
    a(f"""
    """)
    consts(a)
    a("s_barrier")
    if "w3late" in OPT: w15()
    a(f"""
    s_cmp_ge_u32 s{sWV}, 11
    s_cbranch_scc1 A_G11
    ; ================= waves 5..10: P = -log2e * x @ W1 for this group's rows (rt = (wv-5)>>1, hf = (wv-5)&1)
    s_sub_u32 s3, s{sWV}, 5
    s_and_b32 s{sTMP+1}, s3, 1
    s_lshr_b32 s{sTMP}, s3, 1
    s_lshl_b32 s{sTMP+2}, s{sTMP}, 12
    v_add_u32 v0, s{sTMP+2}, v{XA}
    v_add_u32 v1, s{sTMP+2}, v{XA+1}
    v_add_u32 v2, s{sTMP+2}, v{XA+2}
    v_add_u32 v3, s{sTMP+2}, v{XA+3}
    s_lshl_b32 s{sTMP+1}, s{sTMP+1}, 7
    v_xor_b32 v4, s{sTMP+1}, v{WA}
    v_add_u32 v4, {W1S}, v4
    v_xor_b32 v5, 32, v4
    v_xor_b32 v6, 64, v4
    v_xor_b32 v7, 96, v4
    s_add_u32 s{sTMP+2}, s{sTMP+2}, s{sTMP+1}
    """)
    if not PSTG:
        a(f"""
        s_lshl_b32 s{sTMP+1}, s{sSTART}, 8
        s_add_u32 s{sTMP+2}, s{sTMP+2}, s{sTMP+1}
        s_add_u32 s{sTMP+2}, s{sTMP+2}, {WS_P}
        """)
    a(f"""
    v_lshlrev_b32 v{NANC}, 10, v{VG}
    v_lshl_add_u32 v{NANC}, v{VJ}, 3, v{NANC}
    v_add_u32 v{NANC}, s{sTMP+2}, v{NANC}
    s_mov_b32 s{sTMP+2}, {NLOG2E:#x}
    s_waitcnt vmcnt(0)
    @stamp 3
    s_barrier
    s_setprio {OPT.get("gp", 1)}
    """)
    def breads(ks):
        b = 8 + 16*(ks & 1)
        a(f"ds_read_b128 v[{40+4*ks}:{43+4*ks}], v{ks} offset:{XS}")
        for i in range(4):
            for h in range(2):
                a(f"ds_read_b64_tr_b16 v[{b+4*i+2*h}:{b+4*i+2*h+1}], v{4+i} offset:{8192*ks + 1024*h}")
    breads(0)
    for ks in range(4):
        if ks < 3:
            breads(ks+1)
            a("s_waitcnt lgkmcnt(9)")
        else:
            a("s_waitcnt lgkmcnt(0)")
        b = 8 + 16*(ks & 1)
        for i in range(4):
            c = "0" if ks == 0 else f"v[{56+4*i}:{59+4*i}]"
            a(f"v_mfma_f32_16x16x32_bf16 v[{56+4*i}:{59+4*i}], v[{40+4*ks}:{43+4*ks}], v[{b+4*i}:{b+4*i+3}], {c}")
    a(f"""
    s_cmp_eq_u32 s{sTMP}, 2
    s_cselect_b32 exec_hi, 0, -1
    s_nop 5
    """)
    a("@amp 14")
    for q in range(8):
        a(f"v_pk_mul_f32 v[{56+2*q}:{57+2*q}], v[{56+2*q}:{57+2*q}], s[{sTMP+2}:{sTMP+3}] op_sel_hi:[1,0]")
    for r in range(4):
        a(f"v_cvt_pk_bf16_f32 v{8+2*r}, v{56+r}, v{60+r}\nv_cvt_pk_bf16_f32 v{9+2*r}, v{64+r}, v{68+r}")
        if PSTG: a(f"ds_write_b64 v{NANC}, v[{8+2*r}:{9+2*r}] offset:{PST + 256*r}")
        else: a(f"global_store_dwordx2 v{NANC}, v[{8+2*r}:{9+2*r}], s[{sWS}:{sWS+1}] offset:{256*r} {STF}")
    a(f"""
    s_mov_b64 exec, -1
    {"s_waitcnt vmcnt(0)" if AMP == 15 else ""}
    @amp 15
    s_setprio 0
    s_branch A_JOIN
A_G11:
    s_cmp_eq_u32 s{sWV}, 15
    s_cbranch_scc1 A_G15
    """)
    if "x_prew" in OPT: a(f"s_cmp_ge_u32 s{sWV}, 13\ns_cbranch_scc1 X_NW\ns_waitcnt vmcnt(1)\nX_NW:")
    a(f"""
    s_waitcnt vmcnt({63 if "x_prew" in OPT else 0})
    @stamp 3
    s_barrier
    """)
    if "cpf" in OPT:
        k = int(OPT["cpf"])
        a(f"""
        s_cmp_lg_u32 s{sWV}, 13
        s_cbranch_scc1 A_JOIN
        ; pull this CU's share of the kernel's code into the L2 (speed only)
        s_getpc_b64 s[{sTMP+2}:{sTMP+3}]
A_PC:
        s_and_b32 s{sTMP}, s{sG}, 31
        s_mul_i32 s{sTMP}, s{sTMP}, {k*128}
        v_lshl_add_u32 v3, v{VL}, 7, s{sTMP}
        v_min_u32 v3, S_START-A_PC-4, v3
        s_mov_b64 exec, {(1 << k) - 1}
        global_load_dword v40, v3, s[{sTMP+2}:{sTMP+3}]
        s_mov_b64 exec, -1
        """)
    a(f"""
    s_branch A_JOIN
A_G15:
    @stamp 3
    s_barrier
    v_mov_b32 v8, 0
    s_mov_b32 s{sSPIN}, {SPINMAX}
A_NLOOP:
    global_load_dwordx2 v[10:11], v8, s[18:19] sc1
    s_sub_u32 s{sSPIN}, s{sSPIN}, 1
    s_cbranch_scc1 A_NDONE
    s_waitcnt vmcnt(0)
    v_cmp_eq_u32 vcc, 0, v10
    s_cbranch_vccnz A_NLOOP
A_NDONE:
    s_waitcnt vmcnt(0)
    v_lshrrev_b32 v12, 4, v10
    v_xor_b32 v11, v11, v12
    v_lshlrev_b32 v11, 22, v11
    ds_write_b64 v8, v[10:11] offset:{NON}
    s_mov_b32 s{sTMP}, {NLOG2E:#x}
    """)
    if "tlb2" in OPT:
        a(f"""
        ; touch lines nobody writes in the pages of the scratch area (address translation; speed only)
        v_mov_b32 v3, 0
        s_mov_b32 s3, {WS_REC - 128}
        v_writelane_b32 v3, s3, 1
        s_mov_b32 s3, {WS_REC + 200*REC_STRIDE - 128}
        v_writelane_b32 v3, s3, 2
        s_mov_b32 s3, {WS_F + 65536}
        v_writelane_b32 v3, s3, 3
        s_mov_b64 exec, 15
        global_load_dword v41, v3, s[{sWS}:{sWS+1}]
        s_mov_b64 exec, -1
        """)
    for s in range(8):
        a(f"v_lshlrev_b32 v{16+s}, 16, v{16+s}\nv_mul_f32 v{16+s}, s{sTMP}, v{16+s}")
    for q in range(4):
        a(f"v_cvt_pk_bf16_f32 v{12+q}, v{16+2*q}, v{17+2*q}")
    a(f"""
    v_lshlrev_b32 v8, 4, v{VL}
    ds_write_b128 v8, v[12:15] offset:{W3S}
    s_cmp_ge_u32 s{sG}, 32
    s_cbranch_scc1 A_JOIN
    """)
    for q in range(4):
        a(f"v_lshl_or_b32 v{32+q}, v{25+2*q}, 16, v{24+2*q}")
    a(f"""
    s_lshl_b32 s{sTMP}, s{sG}, 10
    s_add_u32 s{sTMP}, s{sTMP}, {WS_F}
    v_add_u32 v8, s{sTMP}, v8
    global_store_dwordx4 v8, v[32:35], s[{sWS}:{sWS+1}] sc1
A_JOIN:
    s_cmp_lt_u32 s{sWV}, 8
    s_cbranch_scc1 A_JOINB
    v_lshlrev_b32 v0, 4, v{TID}
    s_mul_i32 s{sTMP}, s{sG}, {REC_STRIDE}
    s_add_u32 s{sTMP}, s{sTMP}, {WS_REC}
    v_add_u32 v1, s{sTMP}, v0
    v_mov_b32 v3, 0
    s_waitcnt lgkmcnt(0)
    @stamp 4
    s_barrier
    s_cmp_eq_u32 s{sWV}, 15
    s_cbranch_scc1 A_C15
    ds_read_b128 v[4:7], v0 offset:{STAGE}
    ds_read_b64 v[{SAD}:{SAD+1}], v3 offset:{NON}
    s_branch A_C8
    """)
    for lab in "BC":
        a(f"""
A_JOIN{lab}:
        ; waves {"5..7" if lab == "B" else "0..4"}: the same, then 16 rows of W2 -> LDS behind everybody's stores{"" if lab == "B" else ", lane constants"}
    v_lshlrev_b32 v0, 4, v{TID}
    s_mul_i32 s{sTMP}, s{sG}, {REC_STRIDE}
    s_add_u32 s{sTMP}, s{sTMP}, {WS_REC}
    v_add_u32 v1, s{sTMP}, v0
    v_mov_b32 v3, 0
        s_lshl_b32 s{sVT}, s{sWV}, 12
        s_add_u32 m0, s{sVT}, {W2S}
        s_add_u32 s{sVT}, s{sVT}, 32768
        s_mov_b32 s{sW}, s12
        s_and_b32 s{sW+1}, s13, 0xffff
        s_waitcnt lgkmcnt(0)
        @stamp 4
        s_barrier
        @amp 2
        ds_read_b128 v[4:7], v0 offset:{STAGE}
        ds_read_b64 v[{SAD}:{SAD+1}], v3 offset:{NON}
        s_waitcnt lgkmcnt(1)
        global_store_dwordx4 v1, v[4:7], s[{sWS}:{sWS+1}] sc1
        """)
        wlane(a, 14)
        a("s_barrier")
        wdma(a, sVT, 14)
        if lab == "C": consts(a)
        a(f"""
        s_waitcnt vmcnt(4)
        @stamp 5
        @amp 10
        s_barrier
        s_barrier
        @amp 3
        s_branch A_DESC
        """)
    a(f"""
A_C15:
    ds_read_b64 v[{SAD}:{SAD+1}], v3 offset:{NON}
    s_branch A_C9
A_C8:
    s_waitcnt lgkmcnt(1)
    global_store_dwordx4 v1, v[4:7], s[{sWS}:{sWS+1}] sc1
A_C9:
    s_barrier
    s_cmp_lt_u32 s{sWV}, 14
    s_cbranch_scc1 A_NOT
    ; waves 14, 15: granules (start | count<<11 | tag<<22, tag) of groups 2t, 2t+1 (t = tid - 896)
    s_setprio 1
    v_lshlrev_b32 v8, 3, v{TID}
    ds_read_b64 v[10:11], v8 offset:{OFFS - 896*8}
    ds_read_b64 v[12:13], v8 offset:{HIST - 896*8}
    s_lshl_b32 s{sTMP}, s{sG}, 11
    s_add_u32 s{sTMP}, s{sTMP}, {WS_T - 896*16}
    v_lshl_add_u32 v8, v8, 1, s{sTMP}
    s_waitcnt lgkmcnt(0)
    v_lshl_or_b32 v4, v12, 11, v10
    v_lshl_or_b32 v6, v13, 11, v11
    v_or_b32 v4, v{SAD+1}, v4
    v_or_b32 v6, v{SAD+1}, v6
    v_mov_b32 v5, v{SAD}
    v_mov_b32 v7, v{SAD}
A_NOT:
    s_lshl_b32 s{sVT}, s{sWV}, 12
    s_sub_u32 s{sVT}, s{sVT}, 32768
    s_add_u32 m0, s{sVT}, {WTS}
    s_mov_b32 s{sW}, s14
    s_and_b32 s{sW+1}, s15, 0xffff
    """)
    wlane(a, 14)
    a(f"""
    s_cmp_lt_u32 s{sWV}, 14
    s_waitcnt vmcnt(0)
    @stamp 5
    @amp 10
    s_barrier
    s_cbranch_scc1 A_PUB
    global_store_dwordx4 v8, v[4:7], s[{sWS}:{sWS+1}] sc1
    s_setprio 0
A_PUB:
    s_barrier
    @amp 3
    """)
    wdma(a, sVT, 14)
    a(f"""
A_DESC:
    v_lshlrev_b32 v3, 4, v{VL}
    ds_read_b128 v[{W3}:{W3+3}], v3 offset:{W3S}
    s_mov_b32 s{sO}, s16
    s_and_b32 s{sO+1}, s17, 0xffff
    s_lshl_b32 s{sO+2}, s{sEND}, 8
    s_mov_b32 s{sO+3}, 0x20000
    s_add_u32 s{sP}, s{sWS}, {WS_P}
    s_addc_u32 s{sP+1}, s{sWS+1}, 0
    s_and_b32 s{sP+1}, s{sP+1}, 0xffff
    s_or_b32 s{sP+1}, s{sP+1}, {256 << 16}
    s_mov_b32 s{sP+2}, {N}
    s_mov_b32 s{sP+3}, 0x20000
    s_sub_u32 s{sP2}, s{sP}, 1024
    s_subb_u32 s{sP2+1}, s{sP+1}, 0
    s_mov_b32 s{sP2+2}, {N}
    s_mov_b32 s{sP2+3}, 0x20000
    s_add_u32 s{sREC}, s{sWS}, {WS_REC}
    s_addc_u32 s{sREC+1}, s{sWS+1}, 0
    s_and_b32 s{sREC+1}, s{sREC+1}, 0xffff
    s_mov_b32 s{sREC+2}, {NG*REC_STRIDE}
    s_mov_b32 s{sREC+3}, 0x20000
    s_mov_b32 s{sMODE}, 0
    s_mov_b32 s{sR0}, 0
    s_mov_b32 s{sR}, {4*RMAX}
    s_mov_b32 s{sONE}, 1.0
    s_mov_b32 s{sONE+1}, 1.0
    s_mov_b32 s{sSPIN}, {SPINMAX}
    v_mov_b64 v[{NANC}:{NANC+1}], 0
    v_mov_b32 v{MAXC}, 0
    ; W2 transpose-read address of column tile ct = wv&7; Q address node*512 + 8*(32*H + 16*(ct>>2) + j) + 4*c0
    s_and_b32 s{sTMP}, s{sWV}, 7
    s_lshl_b32 s{sTMP}, s{sTMP}, 5
    v_xor_b32 v{WA}, s{sTMP}, v{WA}
    s_and_b32 s{sTMP}, s{sWV}, 8
    s_lshl_b32 s{sTMP}, s{sTMP}, 12
    s_add_u32 s{sTMP}, s{sTMP}, {WTS}
    v_add_u32 v{WA}, s{sTMP}, v{WA}
    s_bfe_u32 s{sTMP}, s{sWV}, 0x10002
    s_lshl_b32 s{sTMP}, s{sTMP}, 7
    s_bfe_u32 s{sTMP+1}, s{sWV}, 0x10001
    s_lshl_b32 s{sTMP+1}, s{sTMP+1}, 8
    s_add_u32 s{sTMP}, s{sTMP}, s{sTMP+1}
    s_and_b32 s{sTMP+1}, s{sWV}, 1
    s_lshl_b32 s{sTMP+1}, s{sTMP+1}, 2
    s_add_u32 s{sTMP}, s{sTMP}, s{sTMP+1}
    v_lshlrev_b32 v{QAD}, 11, v{VG}
    v_lshl_add_u32 v{QAD}, v{VJ}, 3, v{QAD}
    v_add_u32 v{QAD}, s{sTMP}, v{QAD}
    s_waitcnt lgkmcnt(1)
    v_readfirstlane_b32 s{sNON}, v{SAD}
    v_readfirstlane_b32 s{sNON+1}, v{SAD+1}
A_QD:
    s_lshl_b32 s{sRING}, s{sWV}, 12
    s_add_u32 s{sRING}, s{sRING}, {RING}
    s_add_u32 s{sRING+1}, s{sRING}, 2048
    s_and_b32 s{sRHO}, s{sWV}, 3
    s_lshl_b32 s{sRHO}, s{sRHO}, 2
    s_lshr_b32 s{sTMP}, s{sWV}, 2
    s_or_b32 s{sRHO}, s{sRHO}, s{sTMP}
    v_add_u32 v{PAD}, s{sRING}, v{L8}
    s_mov_b32 s3, 1
    v_mov_b32 v19, 0x3fffff
    v_and_b32 v22, 3, v{TID}
    s_waitcnt vmcnt({1 if PF1 else 0}) lgkmcnt(0)
    @stamp 6
    @amp 11
    {"s_barrier" if "noqbar" not in OPT else ""}
    {f"s_sleep {OPT['sleep0']}" if "sleep0" in OPT else ""}
    @amp 4
    """)
    OPT.setdefault("s2p", "8")
    if "s2p" in OPT and "s2q" not in OPT:
        a(f"""
        s_cmp_lt_u32 s{sWV}, {OPT["s2p"]}
        s_cbranch_scc1 A_P0
        s_setprio 1
A_P0:
        """)
    if "s2q" in OPT:
        a(f"""
        s_cmp_lt_u32 s{sWV}, 4
        s_cbranch_scc1 A_P0
        s_setprio 1
        s_cmp_lt_u32 s{sWV}, 8
        s_cbranch_scc1 A_P0
        s_setprio 2
        s_cmp_lt_u32 s{sWV}, 12
        s_cbranch_scc1 A_P0
        s_setprio 3
A_P0:
        """)
    a(f"""
T_LOOP:
    global_load_dwordx2 v[20:21], v{AAD}, s[{sWS}:{sWS+1}] sc1
    s_sub_u32 s{sSPIN}, s{sSPIN}, 1
    s_cbranch_scc1 T_DONE
    s_waitcnt vmcnt(0)
    v_xor_b32 v{TW}, s{sNON+1}, v20
    v_cmp_ne_u32 vcc, s{sNON}, v21
    v_cmp_lt_u32 s[{sTMP}:{sTMP+1}], v19, v{TW}
    s_or_b64 exec, vcc, s[{sTMP}:{sTMP+1}]
    {f"s_cbranch_scc0 T_DONE" if "sleep" in OPT else "s_cbranch_scc1 T_LOOP"}
    {f"s_sleep {OPT['sleep']}                              ; back off: lines that are being polled are slow to write" if "sleep" in OPT else ""}
    {"s_branch T_LOOP" if "sleep" in OPT else ""}
T_DONE:
    s_mov_b64 exec, -1
    s_waitcnt vmcnt(0)
    @stamp 7
    @amp 5
K_PASS:
    v_bfe_u32 v15, v{TW}, 11, 11
    v_and_b32 v9, 0x7ff, v{TW}
    v_subrev_u32 v15, s{sR0}, v15
    v_add_u32 v9, s{sR0}, v9
    v_cmp_gt_i32 s[{sEX}:{sEX+1}], v15, v22
    v_mad_u32_u24 v9, v9, 12, v{RAD}
    v_min_i32 v10, s{sR}, v15
    v_sub_u32 v10, v10, v22
    """)
    for r in range(RMAX):
        if r == 1:
            a("s_mov_b64 exec, -1")
            for q in range(1, RMAX): a(f"v_cmp_lt_i32 s[{sEX+2*q}:{sEX+2*q+1}], {4*q}, v10")
            a(f"v_cmp_lt_i32 vcc, s{sR}, v15")
        a(f"s_mov_b64 exec, s[{sEX+2*r}:{sEX+2*r+1}]")
        if r >= 2: a(f"s_cbranch_execz K_LD")
        a(f"buffer_load_dwordx3 v[{32+4*r}:{34+4*r}], v9, s[{sREC}:{sREC+3}], 0 offen offset:{48*r} sc1")
    a(f"""
K_LD:
    s_mov_b64 exec, -1
    v_mov_b32 v13, 1
    v_lshrrev_b32 v14, 1, v{L8}
    s_and_b32 s{sTMP}, s{sWV}, 7
    s_lshl_b32 s{sTMP}, s{sTMP}, 12
    s_add_u32 s{sTMP}, s{sTMP}, {WS_F}
    s_add_u32 s{sFA}, s{sWS}, s{sTMP}
    s_addc_u32 s{sFA+1}, s{sWS+1}, 0
    s_mov_b32 s{sFLIM}, {f2u(2.0**120):#x}
    s_cbranch_vccz K_NOMORE
    v_mov_b32 v9, 0
    ds_write_b32 v9, v13 offset:{FLG}
K_NOMORE:
    """)
    if PF2:
        a(f"""
        s_and_b32 s{sTMP}, s{sG}, 31
        s_lshl_b32 s{sTMP}, s{sTMP}, 4
        s_add_u32 s{sTMP}, s{sTMP}, s{sWV}
        s_lshr_b32 s{sTMP+1}, s{sG}, 5
        s_lshl_b32 s{sTMP+1}, s{sTMP+1}, 6
        s_add_u32 s{sTMP}, s{sTMP}, s{sTMP+1}
        s_and_b32 s{sTMP}, s{sTMP}, 511
        s_mul_i32 s{sTMP}, s{sTMP}, {PF2*128}
        s_add_u32 s{sTMP}, s{sTMP}, {(20000 - 512*PF2)*128 + WS_P}
        v_lshl_add_u32 v12, v{L8}, 4, s{sTMP}
        """)
    a(f"""
    s_cmp_eq_u32 s3, 0
    s_mov_b32 s3, 0
    s_cbranch_scc1 K_NOU
    {f"s_cmp_ge_u32 s{sWV}, 8" if Q1 else ""}
    {"s_cbranch_scc1 K_NOU" if Q1 else ""}
    ; first pass, column tile wv&7: waves 0..7 U = -log2e * (x @ Wupd_top)^T (rows = channels) -> registers,
    ;                               waves 8..15 Q = -log2e * x @ W2 (rows = nodes) -> LDS
    """)
    for ks in range(4):
        for h in range(2):
            a(f"ds_read_b64_tr_b16 v[{16+4*ks+2*h}:{17+4*ks+2*h}], v{WA} offset:{8192*ks + 1024*h}")
    XB0 = (52, 56, 60, 64); XB1 = (0, 4, 8, 68)
    def xr(xb, off):
        for ks in range(4): a(f"ds_read_b128 v[{xb[ks]}:{xb[ks]+3}], v{XA+ks} offset:{off}")
    def mmx(d, xb, swap):
        for ks in range(4):
            c = "0" if ks == 0 else f"v[{d}:{d+3}]"
            w = f"v[{16+4*ks}:{19+4*ks}]"; x = f"v[{xb[ks]}:{xb[ks]+3}]"
            a(f"v_mfma_f32_16x16x32_bf16 v[{d}:{d+3}], {w if swap else x}, {x if swap else w}, {c}")
    def scale(d):
        for q in range(2): a(f"v_pk_mul_f32 v[{d+2*q}:{d+2*q+1}], v[{d+2*q}:{d+2*q+1}], s[{sTMP+2}:{sTMP+3}] op_sel_hi:[1,0]")
    if F16:
        xr(XB0, XS)
        a(f"s_mov_b32 s{sTMP+2}, {NLOG2E:#x}\ns_cmp_ge_u32 s{sWV}, 8\ns_cbranch_scc1 K_Q")
        xr(XB1, XS + 8192)
        a("s_waitcnt lgkmcnt(4)")
        mmx(UA[0], XB0, True)
        a("s_waitcnt lgkmcnt(0)")
        mmx(UA[1], XB1, True)
        a("s_nop 2")
        scale(UA[0])
        a("s_nop 2")
        scale(UA[1])
        a("s_branch K_NOU\nK_Q:")
        xr(XB1, XS + 4096)
        a("s_waitcnt lgkmcnt(4)")
        mmx(UA[0], XB0, False)
        xr(XB0, XS + 8192)
        a("s_waitcnt lgkmcnt(4)")
        mmx(UA[1], XB1, False)
        a(f"s_waitcnt lgkmcnt(0)\nv_subrev_u32 v{WA}, 32768, v{WA}")
        mmx(UA[2], XB0, False)
        for ks in range(4):
            for h in range(2):
                a(f"ds_read_b64_tr_b16 v[{16+4*ks+2*h}:{17+4*ks+2*h}], v{WA} offset:{8192*ks + 1024*h}")
        for rt in range(3):
            scale(UA[rt])
            if rt == 2: a("s_mov_b32 exec_hi, 0")
            for r in range(4):
                a(f"ds_write_b32 v{QAD}, v{UA[rt]+r} offset:{QS + rt*8192 + r*512}")
        a("s_mov_b64 exec, -1\ns_waitcnt lgkmcnt(12)")
        mmx(UA[0], XB1, True)
        a("s_nop 7")
        scale(UA[0])
    else:
        xr(XB0, XS); xr(XB1, XS + 4096)
        a(f"s_mov_b32 s{sTMP+2}, {NLOG2E:#x}\ns_cmp_ge_u32 s{sWV}, 8\ns_cbranch_scc1 K_Q")
        for isq in (0, 1):
            if isq: a("K_Q:")
            def um(rt, xb):
                for ks in range(4):
                    c = "0" if ks == 0 else f"v[{UA[rt]}:{UA[rt]+3}]"
                    w = f"v[{16+4*ks}:{19+4*ks}]"; x = f"v[{xb[ks]}:{xb[ks]+3}]"
                    a(f"v_mfma_f32_16x16x32_bf16 v[{UA[rt]}:{UA[rt]+3}], {x if isq else w}, {w if isq else x}, {c}")
            a("s_waitcnt lgkmcnt(4)")
            um(0, XB0)
            xr(XB0, XS + 8192)
            a("s_waitcnt lgkmcnt(4)")
            um(1, XB1)
            a("s_waitcnt lgkmcnt(0)")
            um(2, XB0)
            if not isq: a("s_nop 3")
            for rt in range(3):
                if rt == 2 and not isq: a("s_nop 1")
                for q in range(2):
                    u = UA[rt] + 2*q
                    a(f"v_pk_mul_f32 v[{u}:{u+1}], v[{u}:{u+1}], s[{sTMP+2}:{sTMP+3}] op_sel_hi:[1,0]")
                if isq:
                    if rt == 2: a("s_mov_b32 exec_hi, 0")
                    for r in range(4):
                        a(f"ds_write_b32 v{QAD}, v{UA[rt]+r} offset:{QS + rt*8192 + r*512}")
            a("s_mov_b64 exec, -1" if isq else "s_branch K_NOU")
    a("K_NOU:\ns_waitcnt vmcnt(0)\n@stamp 8\n@amp 6")
    for r in range(RMAX):
        a(f"s_mov_b64 exec, s[{sEX+2*r}:{sEX+2*r+1}]")
        if r >= 2: a(f"s_cbranch_execz K_HD")
        a(f"v_lshrrev_b32 v{r}, 16, v{34+4*r}\nds_add_rtn_u32 v{35+4*r}, v{r}, v13 offset:{CNT}")
    a("K_HD:")
    if PF2:
        a(f"s_mov_b64 exec, {(1 << PF2) - 1:#x}\nglobal_load_dword v63, v12, s[{sWS}:{sWS+1}] sc1")
    a(f"""
    s_mov_b64 exec, -1
    s_waitcnt lgkmcnt(0)
    s_barrier
    v_mov_b32 v9, 0
    ds_read_b32 v8, v14 offset:{CNT}
    ds_read_b32 v12, v9 offset:{FLG}
    s_waitcnt lgkmcnt(1)
    v_add_u32 v10, 7, v8
    v_lshrrev_b32 v11, 3, v10
    """)
    dpp_scan(a, 11, [f"v_cmp_ne_u32 s[{sNZ}:{sNZ+1}], 0, v8", f"v_and_b32 v{NCNT}, 7, v10", f"v_and_b32 v10, -8, v10", f"v_add_u32 v{NCNT}, 1, v{NCNT}"])
    a(f"""
    v_lshlrev_b32 v15, 3, v11
    v_sub_u32 v15, v15, v10
    ds_bpermute_b32 v16, v0, v15
    ds_bpermute_b32 v17, v1, v15
    v_readlane_b32 s{sTMP}, v11, 63
    s_waitcnt lgkmcnt(2)
    v_readfirstlane_b32 s{sTMP+1}, v12
    """)
    for r in range(2, RMAX):
        a(f"s_cmp_eq_u64 s[{sEX+2*r}:{sEX+2*r+1}], 0\ns_cbranch_scc1 K_BD")
        a(f"ds_bpermute_b32 v{16+r}, v{r}, v15")
    a(f"""
K_BD:
    s_cmp_gt_u32 s{sTMP}, {CAP//8}
    s_cbranch_scc1 K_SHRINK
    s_or_b32 s{sMODE}, s{sMODE}, s{sTMP+1}
    s_mul_i32 s{sT0}, s{sTMP}, s{sRHO}
    s_add_u32 s{sTMP}, s{sT0}, s{sTMP}
    s_lshr_b32 s{sT0}, s{sT0}, 4
    s_lshr_b32 s{sTMP}, s{sTMP}, 4
    v_cmp_ge_u32 vcc, s{sT0}, v11
    s_sub_u32 s{sLEFT}, s{sTMP}, s{sT0}
    s_cmp_lg_u32 s{sWV}, 15
    s_cbranch_scc1 K_NOTF
    s_mov_b64 exec, s[{sNZ}:{sNZ+1}]
    ds_write_b8 v11, v13 offset:{TF - 1}
    ; rows of nodes without edges are zero
    s_mov_b64 exec, -1
    s_not_b64 s[{sTMP+2}:{sTMP+3}], s[{sNZ}:{sNZ+1}]
    s_and_b32 s{sTMP+3}, s{sTMP+3}, 0xff
K_ZL:
    s_ff1_i32_b64 s{sTMP}, s[{sTMP+2}:{sTMP+3}]
    s_cmp_lt_i32 s{sTMP}, 0
    s_cbranch_scc1 K_NOTF
    s_bitset0_b64 s[{sTMP+2}:{sTMP+3}], s{sTMP}
    s_mul_i32 s{sTMP}, s{sTMP}, 272
    v_xor_b32 v10, s{sTMP}, v{L4}
    ds_write_b32 v10, v9 offset:{AB}
    s_branch K_ZL
K_NOTF:
    s_waitcnt lgkmcnt(0)
    """)
    for r in range(RMAX):
        a(f"s_mov_b64 exec, s[{sEX+2*r}:{sEX+2*r+1}]")
        if r >= 2: a("s_cbranch_execz K_SD")
        a(f"""
        v_add_lshl_u32 v10, v{16+r}, v{35+4*r}, 3
        v_add_lshl_u32 v9, v{16+r}, v{35+4*r}, 1
        {f"v_and_b32 v{34+4*r}, {OPT['x_mask']}, v{34+4*r}" if "x_mask" in OPT else ""}
        ds_write_b64 v10, v[{32+4*r}:{33+4*r}] offset:{ES}
        ds_write_b16 v9, v{34+4*r} offset:{SS}
        """)
    a(f"""
K_SD:
    s_mov_b64 exec, -1
    s_bcnt1_i32_b64 s{sNC}, vcc
    s_min_u32 s{sNC}, s{sNC}, 61
    s_or_b32 s{sNZ+1}, s{sNZ+1}, 0xc0000000
    s_lshr_b64 s[{sNZ}:{sNZ+1}], s[{sNZ}:{sNZ+1}], s{sNC}
    s_lshl_b64 s[{sNZ}:{sNZ+1}], s[{sNZ}:{sNZ+1}], s{sNC}
    s_mov_b64 s[{sNZ2}:{sNZ2+1}], s[{sNZ}:{sNZ+1}]
    s_mov_b32 s{sNQ}, s{sNC}
    v_readlane_b32 s{sTMP}, v15, s{sNC}
    s_lshl_b32 s{sTMP+1}, s{sT0}, 3
    s_cmp_eq_u32 s{sMODE}, 0
    s_cselect_b32 s{sCVT}, 63, s{sWV}
    s_sub_u32 s{sPART}, s{sTMP+1}, s{sTMP}
    v_lshl_add_u32 v{EAD}, s{sT0}, 6, v{E8}
    v_lshl_add_u32 v{SAD}, s{sT0}, 4, v{G2}
    v_lshrrev_b32 v9, 2, v14
    v_add_u32 v9, s{sT0}, v9
    s_waitcnt lgkmcnt(0)
    s_barrier
    ds_read_u16 v{IX0}, v{SAD} offset:{SS}
    ds_read_u16 v{IX1}, v{SAD} offset:{SS+8}
    ds_read_u8 v16, v9 offset:{TF}
    s_setprio 3
    @stamp 10
    @amp 7
    s_cmp_eq_u32 s{sLEFT}, 0
    s_cbranch_scc1 K_MAINDONE
    s_cmp_lg_u32 s{sMODE}, 0
    s_cbranch_scc1 S_START
    """)
    mainloop(a, False)
    a(f"""
K_MAINDONE:
    @stamp 11
    @amp 8
    s_waitcnt vmcnt(0)
    v_lshlrev_b32 v{EAD}, 1, v{L8}
    v_cmp_nge_f32 vcc, s{sFLIM}, v{MAXC}
    v_cmp_u_f32 s[{sTMP}:{sTMP+1}], v{NANC}, v{NANC+1}
    """)
    for ks in range(4): a(f"global_load_dwordx4 v[{4*ks}:{4*ks+3}], v{EAD}, s[{sFA}:{sFA+1}] offset:{1024*ks} sc1")
    a(f"""
    s_or_b64 vcc, vcc, s[{sTMP}:{sTMP+1}]
    s_cbranch_scc1 K_OVF
K_NOOVF:
    s_waitcnt lgkmcnt(0)
    s_barrier
    @estamp 2
    ds_read_b64 v[24:25], v{L8} offset:{FLG}
K_CV:
    s_cmp_gt_u32 s{sCVT}, 39
    s_cbranch_scc1 K_NOCV
    v_lshl_add_u32 v23, s{sCVT}, 10, v{L8}
    ds_read_b64 v[26:27], v23 offset:{AGG}
    ds_read_b64 v[28:29], v23 offset:{AGG+512}
    s_mul_i32 s{sTMP}, s{sCVT}, 272
    v_xor_b32 v23, s{sTMP}, v{L4}
    s_add_u32 s{sCVT}, s{sCVT}, 16
    s_cmp_lg_u32 s{sMODE}, 0
    s_waitcnt lgkmcnt(0)
    v_cvt_f32_f64 v26, v[26:27]
    v_cvt_f32_f64 v28, v[28:29]
    v_cvt_pk_bf16_f32 v26, v26, v28
    ds_write_b32 v23, v26 offset:{AB}
    s_cbranch_scc1 K_CV
K_NOCV:
    s_waitcnt lgkmcnt(0)
    v_readfirstlane_b32 s{sTMP}, v24
    v_readfirstlane_b32 s{sTMP+1}, v25
    s_or_b32 s{sTMP+2}, s{sTMP}, s{sTMP+1}
    s_cbranch_scc1 K_SLOW
K_FINAL:
    @estamp 3
    s_barrier
    @estamp 4
    """)
    CC = f"s_mov_b32 s{sTMP+2}, {f2u(-LOG2E/(1+float(OPT.get('eps', 0)))):#x}\ns_waitcnt vmcnt(0)"
    if not F16:
        a(f"""
        s_cmp_ge_u32 s{sWV}, 10
        s_cbranch_scc1 {"K_OUT2" if AMP else "K_END2"}
        s_cmp_ge_u32 s{sWV}, 8
        s_cbranch_scc1 K_OUT
        """)
        for rt in range(3): xreads(a, 16 + 16*rt, AB + rt*4352)
        a(CC)
    def fm(rt):
        a(f"s_waitcnt lgkmcnt({8 - 4*rt if not (rt == 2 and 'noeil' not in OPT) else 1})")
        mm16(a, UA[rt], 16 + 16*rt, 0, swap=True, first=False)
    def silu(rt, u=None):
        u = UA[rt] if u is None else u; t = 64
        a(f"""
        v_exp_f32 v{t}, v{u}
        v_exp_f32 v{t+1}, v{u+1}
        v_exp_f32 v{t+2}, v{u+2}
        v_exp_f32 v{t+3}, v{u+3}
        v_pk_fma_f32 v[{t}:{t+1}], v[{t}:{t+1}], s[{sTMP+2}:{sTMP+3}], s[{sTMP+2}:{sTMP+3}] op_sel_hi:[1,0,0]
        v_pk_fma_f32 v[{t+2}:{t+3}], v[{t+2}:{t+3}], s[{sTMP+2}:{sTMP+3}], s[{sTMP+2}:{sTMP+3}] op_sel_hi:[1,0,0]
        v_rcp_f32 v{t}, v{t}
        v_rcp_f32 v{t+1}, v{t+1}
        v_rcp_f32 v{t+2}, v{t+2}
        v_rcp_f32 v{t+3}, v{t+3}
        v_pk_mul_f32 v[{t}:{t+1}], v[{t}:{t+1}], v[{u}:{u+1}]
        v_pk_mul_f32 v[{t+2}:{t+3}], v[{t+2}:{t+3}], v[{u+2}:{u+3}]
        v_cvt_pk_bf16_f32 v{16+2*rt}, v{t}, v{t+1}
        v_cvt_pk_bf16_f32 v{17+2*rt}, v{t+2}, v{t+3}
        ds_write_b64 v{OSA}, v[{16+2*rt}:{17+2*rt}] offset:{OUTS + rt*4096}
        """)
    if F16:
        a(f"s_cmp_ge_u32 s{sWV}, 8\ns_cbranch_scc1 K_F1")
        xreads(a, 16, AB); xreads(a, 32, AB + 2*4352)
        a(CC + "\ns_waitcnt lgkmcnt(4)")
        mm16(a, UA[0], 16, 0, swap=True, first=False)
        a("s_waitcnt lgkmcnt(0)")
        mm16(a, UA[1], 32, 0, swap=True, first=False)
        a("s_nop 2")
        silu(0, UA[0]); silu(2, UA[1])
        a("s_branch K_OUT\nK_F1:")
        xreads(a, 16, AB + 4352)
        a(CC + "\ns_waitcnt lgkmcnt(0)")
        mm16(a, UA[0], 16, 0, swap=True, first=False)
        a("s_nop 7")
        silu(1, UA[0])
    elif "noeil" not in OPT:
        fm(0); fm(1); a("s_nop 2"); silu(0); fm(2); silu(1); silu(2)
    else:
        fm(0); fm(1); fm(2); a("@estamp 5"); silu(0); silu(1); silu(2)
    a(f"""
K_OUT:
    s_waitcnt lgkmcnt(0)
    @estamp 6
    s_barrier
    @estamp 7
    {f"s_cmp_ge_u32 s{sWV}, 10" if F16 else ""}
    {"s_cbranch_scc1 K_END2" if F16 else ""}
    ds_read_b128 v[32:35], v{ORA} offset:{OUTS}
    s_waitcnt lgkmcnt(0)
    buffer_store_dwordx4 v[32:35], v{OGA}, s[{sO}:{sO+3}], 0 offen {OPT.get('ost', 'sc1').replace('+', ' ')}
    @estamp 8
    {"s_branch K_END2" if AMP else ""}
K_OUT2:
    {"s_barrier" if AMP else ""}
K_END2:
    """)
    if "x_spin" in OPT:
        a(f"""
        s_cmp_lg_u32 s22, 0
        s_cbranch_scc1 XS_DONE
        s_memrealtime s[68:69]
        s_waitcnt lgkmcnt(0)
XS_LOOP:
        s_memrealtime s[70:71]
        s_waitcnt lgkmcnt(0)
        s_sub_u32 s70, s70, s68
        s_cmp_lt_u32 s70, {OPT["x_spin"]}
        s_cbranch_scc1 XS_LOOP
XS_DONE:
        """)
    if "xcctest" in OPT:
        a(f"""
        s_lshl_b32 s3, s22, 8
        s_or_b32 s3, s3, s{sG}
        s_cmp_lg_u32 s3, 100
        s_cbranch_scc1 XT_DONE
        v_mov_b32 v30, {WS_REC + 15360 + 101*REC_STRIDE}
        global_load_dword v31, v30, s[{sWS}:{sWS+1}] sc1
        s_waitcnt vmcnt(0)
        v_readfirstlane_b32 s81, v31
        s_cmp_eq_u32 s81, s80
        s_cbranch_scc{OPT["xcctest"]} XT_DONE
        s_memrealtime s[76:77]
        s_waitcnt lgkmcnt(0)
XT_LOOP:
        s_memrealtime s[78:79]
        s_waitcnt lgkmcnt(0)
        s_sub_u32 s78, s78, s76
        s_cmp_lt_u32 s78, 2000
        s_cbranch_scc1 XT_LOOP
XT_DONE:
        """)
    a(f"""
    @store
K_END:
    s_endpgm
K_OVF:
    v_mov_b32 v19, 0
    v_mov_b32 v20, 1
    ds_write_b32 v19, v20 offset:{FLG+4}
    s_branch K_NOOVF
K_SHRINK:
    ; too many slots for one pass: redo this pass with at most 4 records per cell
    s_mov_b32 s{sR}, 4
    s_mov_b32 s{sMODE}, 1
    s_mov_b32 s{sTMP+1}, 0
    s_branch K_REINIT
K_SLOW:
    s_cmp_eq_u32 s{sMODE}, 0
    s_cselect_b32 s{sTMP+1}, s{sTMP+1}, 0
    s_or_b32 s{sTMP}, s{sTMP}, s{sTMP+1}
    s_cbranch_scc0 K_FINAL
    s_cmp_eq_u32 s{sTMP+1}, 0
    s_cselect_b32 s{sTMP}, s{sR}, 0
    s_add_u32 s{sR0}, s{sR0}, s{sTMP}
K_REINIT:
    s_waitcnt vmcnt(0) lgkmcnt(0)
    s_barrier
    v_lshrrev_b32 v9, 1, v{L8}
    v_mov_b32 v10, 0
    ds_write_b32 v9, v10 offset:{CNT}
    ds_write_b32 v9, v10 offset:{TF}
    ds_write_b32 v10, v10 offset:{FLG}
    ds_write_b32 v10, v10 offset:{FLG+4}
    v_lshlrev_b32 v9, 2, v{TID}
    v_mov_b32 v10, -1
    ds_write_b32 v9, v10 offset:{SS}
    s_cmp_eq_u32 s{sTMP+1}, 0
    s_cbranch_scc1 K_SLOW1
    s_mov_b32 s{sMODE}, 1
    v_lshlrev_b32 v9, 4, v{TID}
    v_add_u32 v9, {AGG}, v9
    v_mov_b64 v[4:5], 0
    v_mov_b64 v[6:7], 0
    ds_write_b128 v9, v[4:7]
    ds_write_b128 v9, v[4:7] offset:16384
    ds_write_b128 v9, v[4:7] offset:24576
K_SLOW1:
    v_and_b32 v22, 3, v{TID}
    s_waitcnt lgkmcnt(0)
    s_barrier
    s_branch K_PASS
    """)
    mainloop(a, True)
    return a.text()

HEADER = """; Kernarg layout for this problem (72 bytes, ptrs only, base s[0:1]):
;   offset  24: d_in[3] dst  shape=(320000,) dtype=int32
;   offset  64: d_ws      workspace
; One workgroup per CU (256 workgroups, 39-40 destination nodes each), one launch.
;   t[e] = c * (x[src] @ W1 + x[dst] @ W2 + e_attr @ W3) = P[src] + Q[dst] + e_attr @ (c W3),   silu = t / (c * (1 + 2^t))
; Phase A: every workgroup bins 1280 edges by destination group and computes P for its own rows; both are stored
;   write-through and then announced with tagged 8-byte granules (tag = clock value drawn once per launch, handed out
; Phase B: a workgroup waits for the granules of its group, fetches its edges, sorts them by node in LDS and walks them
;   in tiles of 8: P rows are gathered into LDS, one MFMA (e_attr term + Q) and one sparse MFMA (row selector) give t
;   with lane = channel pair; sum t/(1+u), u = 2^t, is kept exactly as a fraction num/den (one exp, no reciprocal per
;   element).  If a denominator leaves the safe range or a result is not finite the group is redone with plain
;   exp / rcp sigmoids (S_ loop), which also serves groups that need several passes.  Last: the update layer.
"""
def main():
    s = ("; opts " + " ".join(sys.argv[2:]) + "\n" if len(sys.argv) > 2 else "") + HEADER
    s += f"; @launch grid=({NG},1,1) block=(1024,1,1) lds={LDS_BYTES}\n"
    s += '.amdgcn_target "amdgcn-amd-amdhsa--gfx950"\n.text\n'
    s += f".globl {KN}\n.p2align 8\n.type {KN},@function\n" + kernel()
    s += f""".section .rodata,"a"
.p2align 6
.amdhsa_kernel {KN}
  .amdhsa_next_free_vgpr {NVGPR}
  .amdhsa_next_free_sgpr {100 if (DIAG or AMP or 'xcctest' in OPT) else NSGPR}
  .amdhsa_accum_offset {NVGPR}
  .amdhsa_group_segment_fixed_size 0
  .amdhsa_kernarg_size 72
  .amdhsa_user_sgpr_count 2
  .amdhsa_user_sgpr_kernarg_segment_ptr 1
  .amdhsa_system_sgpr_workgroup_id_x 1
.end_amdhsa_kernel
"""
    open(sys.argv[1], "w").write(s)
main()
```

```python
import sys, struct

N = 10000; E = 320000
NG = 256
EPW = 1280
NPROD = E // EPW
REC_STRIDE = EPW * 12 + 128
WS_P = 4096
WS_REC = 0x280000
WS_T = 0x650000
WS_F = 0x6D0000
WS_DIAG = 0xB00000
LOG2E = 1.4426950408889634
def f2u(x): return struct.unpack("<I", struct.pack("<f", x))[0]
NLOG2E = f2u(-LOG2E)
OPT = dict(a.split("=") if "=" in a else (a, "1") for a in sys.argv[2:])
DIAG = "diag" in OPT
AMP = int(OPT.get("amp", 0))
PF1 = int(OPT.get("pf1", 0)); PF2 = int(OPT.get("pf2", 12)); PF3 = int(OPT.get("pf3", 0))
W2E = "w2late" not in OPT
RND = "rnd" in OPT
F16 = "f8" not in OPT
B1E = int(OPT.get("b1e", 1))
B1B = """    s_waitcnt vmcnt(3)
    @stamp 3
    s_barrier
    @amp 1
"""
SMP = int(OPT.get("smp", 2))
OPT.setdefault("sleep", "no")
if OPT["sleep"] == "no": del OPT["sleep"]
PSTG = "pstage" in OPT
Q1 = "q1" in OPT
KN = "gather_scatter__mpnn_edge_mlp__graph_kernel"
SPINMAX = 400000
RMAX = 5
CAP = 2048

CNT = 0; FLG = 256; NON = 272
TF = 512
SS = 1024
XS = SS + CAP*2 + 256
QS = XS + 42*256
ES = QS + 40*512
AGG = ES + CAP*8
RING = AGG + 40*1024
LDS_BYTES = RING + 65536
W1S = RING; W2S = RING + 32768; WTS = RING
STAGE = QS; HIST = ES; OFFS = ES + 1024; W3S = ES + 2048
AB = XS; OUTS = QS; PST = ES + 3072
D0, D1, QR, VU, BP, AE, ID, W3 = 0, 16, 32, 48, 64, 72, 76, 84
VA, NUM, DEN, NANC, MAXC = 88, 90, 92, 94, 96
EAD, SAD, PAD, IX0, IX1, QAD, AAD, L8, NCNT, TID, TW, RAD, E8 = 97, 98, 99, 100, 102, 104, 105, 106, 107, 108, 109, 110, 111
G2 = 81; L4 = 82
XA, WA = 120, 92
OSA, ORA, OGA = 124, 125, 83
VG, VJ, VL = 126, 127, 97
UA = (112, 116, 88)
NVGPR = 128
sREC = 4; sR0 = 8; sMODE = 9; sLEFT = 10; sCNT = 11
sK1 = 12; sK2 = 13; sNL = 14; sNC = 15; sNQ = 16; sR = 17; sNZ2 = 18
sWS = 20; sWV = 22; sSTART = 23; sX = 24; sP = 24; sO = 28
sNZ = 32; sM0 = 34; sM1 = 36; sONE = 38; sRING = 40; sRHO = 42; sW = 40
sTMP = 44; sEV = 48; sG = 49; sEX = 50; sCM = 52
sNON = 60; sEND = 62; sSPIN = 63; sP2 = 64; sANY = 68; sT0 = 70; sVT = 71
NSGPR = 72
LDF = OPT.get('ldf', '').replace('+', ' ')
SE = int(OPT.get('se', 1))
SRCE = f"""    global_load_dwordx4 v[16:19], v8, s[8:9] {LDF}
    global_load_dwordx4 v[20:23], v9, s[6:7] {LDF}
    global_load_dwordx4 v[24:27], v9, s[6:7] offset:16 {LDF}
"""
WSOFF = f"s_add_u32 s{sWS}, s{sWS}, {int(OPT['wso']) << 20}\ns_addc_u32 s{sWS+1}, s{sWS+1}, 0" if 'wso' in OPT else ''
STF = OPT.get('stf', 'sc1').replace('+', ' ')
sST = 72
sPART = 68; sOLD = 69; sCVT = 48; sFA = 60; sFLIM = 63

class Asm:
    def __init__(self): self.l = []
    def __call__(self, s):
        for ln in s.strip("\n").split("\n"):
            ln = ln.strip()
            if ln.startswith("@estamp"):
                if "epi" not in OPT: continue
                ln = ln.replace("@estamp", "@stamp")
            elif ln.startswith("@stamp") and "epi" in OPT and int(ln.split()[1]) in range(2, 10): continue
            if ln.startswith("@amp"):
                i = int(ln.split()[1])
                A0 = int(OPT.get("amp0", 0))
                if AMP == 99 and i == 0: self('s_memrealtime s[74:75]\ns_waitcnt lgkmcnt(0)'); continue
                if AMP and i in (A0, AMP): self(f"s_memrealtime s[{72+2*(i != A0)}:{73+2*(i != A0)}]\ns_waitcnt lgkmcnt(0)")
                continue
            if ln.startswith("@store") and AMP:
                self("""s_waitcnt vmcnt(0)
                @amp 9
                s_lshl_b32 s3, s22, 8
                """ + ("" if "ampall" in OPT else "s_or_b32 s3, s3, s2") + """
                s_cmp_lg_u32 s3, """ + OPT.get("ampwg", "0") + """
                s_cbranch_scc1 AMP_DONE
                """ + ("s_sub_u32 s72, s60, 200" if "ampnon" in OPT else "") + """
                s_sub_u32 s74, s74, s72
                s_lshl_b32 s74, s74, 4
                s_memrealtime s[76:77]
                s_waitcnt lgkmcnt(0)
AMP_LOOP:
                s_memrealtime s[78:79]
                s_waitcnt lgkmcnt(0)
                s_sub_u32 s78, s78, s76
                s_cmp_lt_u32 s78, s74
                s_cbranch_scc1 AMP_LOOP
AMP_DONE:""")
                continue
            if ln.startswith("@stamp"):
                i = int(ln.split()[1])
                if DIAG and ("st" not in OPT or i in (0, 13) or str(i) in OPT["st"].split(",")): self(f"{'s_memrealtime' if OPT['diag'] == 'rt' or i in (0, 13) else 's_memtime'} s[{sST+2*i}:{sST+2*i+1}]\ns_waitcnt lgkmcnt(0)")
                continue
            if ln.startswith("@store"):
                if DIAG:
                    self(f"s_waitcnt vmcnt(0)\n@stamp 12\n@stamp 13\ns_load_dwordx2 s[{sWS}:{sWS+1}], s[0:1], 64\ns_waitcnt lgkmcnt(0)\ns_mov_b64 exec, -1\nv_lshrrev_b32 v1, 6, v{TID}\ns_lshl_b32 s3, s2, 4\nv_add_u32 v1, s3, v1\nv_lshlrev_b32 v1, 6, v1\nv_add_u32 v1, {WS_DIAG}, v1")
                    for i in range(14): self(f"v_mov_b32 v2, s{sST+2*i}\nglobal_store_dword v1, v2, s[{sWS}:{sWS+1}] offset:{4*i}")
                continue
            if ln: self.l.append(ln if ln.endswith(":") else "    " + ln)
    def text(self): return "\n".join(self.l) + "\n"

def dpp_scan(a, v, fill=()):
    fill = list(fill)
    def pad():
        k = 0
        while k < 2 and fill: a(fill.pop(0)); k += 1
        if k < 2: a(f"s_nop {1-k}")
    for sh in (1, 2, 4, 8):
        pad(); a(f"v_add_u32_dpp v{v}, v{v}, v{v} row_shr:{sh} row_mask:0xf bank_mask:0xf bound_ctrl:0")
    pad(); a(f"v_add_u32_dpp v{v}, v{v}, v{v} row_bcast:15 row_mask:0xa bank_mask:0xf")
    pad(); a(f"v_add_u32_dpp v{v}, v{v}, v{v} row_bcast:31 row_mask:0xc bank_mask:0xf")
    for x in fill: a(x)

def mainloop(a, safe):
    L = "S" if safe else "F"
    FRESH = not safe and "nofresh" not in OPT
    RESET = f"v_mov_b64 v[{DEN}:{DEN+1}], s[{sONE}:{sONE+1}]\nv_mov_b64 v[{NUM}:{NUM+1}], 0"
    def ex(d, k): a(f"v_exp_f32 v{VU+k}, v{d+k}")
    def pk(d, e):
        t = d + 2*e; u = VU + 2*e
        if not safe:
            a(f"""
            v_pk_fma_f32 v[{VA}:{VA+1}], v[{t}:{t+1}], v[{DEN}:{DEN+1}], v[{NUM}:{NUM+1}]
            v_pk_fma_f32 v[{DEN}:{DEN+1}], v[{DEN}:{DEN+1}], v[{u}:{u+1}], v[{DEN}:{DEN+1}]
            v_pk_fma_f32 v[{NUM}:{NUM+1}], v[{NUM}:{NUM+1}], v[{u}:{u+1}], v[{VA}:{VA+1}]
            """)
        else:
            a(f"""
            v_pk_add_f32 v[{u}:{u+1}], v[{u}:{u+1}], 1.0 op_sel_hi:[1,0]
            v_rcp_f32 v{u}, v{u}
            v_rcp_f32 v{u+1}, v{u+1}
            s_nop 0
            v_pk_fma_f32 v[{NUM}:{NUM+1}], v[{t}:{t+1}], v[{u}:{u+1}], v[{NUM}:{NUM+1}]
            """)
    def flush(b):
        if not safe:
            a(f"""
            v_rcp_f32 v{VU}, v{DEN}
            v_rcp_f32 v{VU+1}, v{DEN+1}
            v_max3_f32 v{MAXC}, v{MAXC}, v{DEN}, v{DEN+1}
            v_pk_mul_f32 v[{VA}:{VA+1}], v[{NUM}:{NUM+1}], v[{VU}:{VU+1}]
            {"" if FRESH else RESET}
            s_cmp_lg_u32 s{sPART}, 0
            s_cbranch_scc1 {L}_FA{b}
            ; the whole node was summed here: its row goes out as bf16
            s_mul_i32 s{sTMP}, s{sOLD}, 272
            v_cvt_pk_bf16_f32 v{VU}, v{VA}, v{VA+1}
            v_xor_b32 v{AAD}, s{sTMP}, v{L4}
            v_pk_fma_f32 v[{NANC}:{NANC+1}], v[{VA}:{VA+1}], 0, v[{NANC}:{NANC+1}] op_sel_hi:[1,0,1]
            ds_write_b32 v{AAD}, v{VU} offset:{AB}
{L}_FB{b}:
            """)
        else:
            a(f"""
            v_lshl_add_u32 v{AAD}, s{sOLD}, 10, v{L8}
            v_cvt_f64_f32 v[{VU}:{VU+1}], v{NUM}
            v_cvt_f64_f32 v[{VU+2}:{VU+3}], v{NUM+1}
            v_mov_b64 v[{NUM}:{NUM+1}], 0
            ds_add_f64 v{AAD}, v[{VU}:{VU+1}] offset:{AGG}
            ds_add_f64 v{AAD}, v[{VU+2}:{VU+3}] offset:{AGG+512}
            """)
    def flush_part(b):
        a(f"""
{L}_FA{b}:
        v_lshl_add_u32 v{AAD}, s{sOLD}, 10, v{L8}
        v_cvt_f64_f32 v[{VU}:{VU+1}], v{VA}
        v_cvt_f64_f32 v[{VU+2}:{VU+3}], v{VA+1}
        v_pk_fma_f32 v[{NANC}:{NANC+1}], v[{VA}:{VA+1}], 0, v[{NANC}:{NANC+1}] op_sel_hi:[1,0,1]
        ds_add_f64 v{AAD}, v[{VU}:{VU+1}] offset:{AGG}
        ds_add_f64 v{AAD}, v[{VU+2}:{VU+3}] offset:{AGG+512}
        s_bitcmp1_b32 s{sNL}, s{sLEFT}
        s_cselect_b32 s{sCVT}, s{sOLD}, s{sCVT}
        s_mov_b32 s{sPART}, 0
        s_branch {L}_FB{b}
        """)
    def preads(slot):
        if "p2" in OPT:
            for q in range(2):
                a(f"ds_read2st64_b64 v[{BP+4*q}:{BP+4*q+3}], v{PAD} offset0:{slot*4 + 2*q} offset1:{slot*4 + 2*q + 1}")
            return
        for q in range(4):
            a(f"ds_read_b64 v[{BP+2*q}:{BP+2*q+1}], v{PAD} offset:{slot*2048 + q*512}")
    def ereads(v, off):
        a(f"""
        s_mov_b64 exec, s[{sM0}:{sM0+1}]
        ds_read_b64 v[{AE}:{AE+1}], v{v} offset:{ES+off}
        s_mov_b64 exec, s[{sM1}:{sM1+1}]
        ds_read_b64 v[{AE+2}:{AE+3}], v{v} offset:{ES+off}
        s_mov_b64 exec, -1
        """)
    def idxreads(v, off):
        a(f"ds_read_u16 v{IX0}, v{v} offset:{SS+off}\nds_read_u16 v{IX1}, v{v} offset:{SS+off+8}")
    def qreads(node):
        if "q2" in OPT:
            a(f"v_lshl_add_u32 v{QAD}, s{node}, 9, v{LQ}")
            for q in range(4):
                a(f"ds_read2_b64 v[{QR+4*q}:{QR+4*q+3}], v{QAD} offset0:0 offset1:0")
            return
        a(f"v_lshl_add_u32 v{QAD}, s{node}, 9, v{L8}")
        for q in range(8):
            a(f"ds_read_b64 v[{QR+2*q}:{QR+2*q+1}], v{QAD} offset:{QS}")
    def mfma(d, k):
        if k == 0: a(f"v_mfma_f32_32x32x16_bf16 v[{d}:{d+15}], v[{AE}:{AE+3}], v[{W3}:{W3+3}], v[{QR}:{QR+15}]")
        else: a(f"v_smfmac_f32_32x32x32_bf16 v[{d}:{d+15}], v[{ID}:{ID+3}], v[{BP}:{BP+7}], v{ID+4}")
    def dma(slot, f1="s_nop 0"):
        if "x_nodma" in OPT: a(f1); return
        a(f"""
        s_mov_b32 m0, s{sRING+slot}
        {f1}
        buffer_load_dwordx4 v[{IX0}:{IX0+1}], s[{sP}:{sP+3}], 0 idxen offen sc1 lds
        buffer_load_dwordx4 v[{IX1}:{IX1+1}], s[{sP2}:{sP2+3}], 0 idxen offen offset:1024 sc1 lds
        """)
    def qnext():
        a(f"s_bitset0_b64 s[{sNZ}:{sNZ+1}], s{sNQ}\ns_ff1_i32_b64 s{sNQ}, s[{sNZ}:{sNZ+1}]")
        qreads(sNQ)
    def tree(name, labels):
        a(f"""
{name}:
        s_cmp_gt_u32 s{sCNT}, 3
        s_cbranch_scc1 {name}_H
        s_cmp_eq_u32 s{sCNT}, 2
        s_cbranch_scc1 {labels[2]}
        s_cmp_eq_u32 s{sCNT}, 3
        s_cbranch_scc1 {labels[3]}
        s_branch {labels[1]}
{name}_H:
        s_cmp_gt_u32 s{sCNT}, 5
        s_cbranch_scc1 {name}_HH
        s_cmp_eq_u32 s{sCNT}, 4
        s_cbranch_scc1 {labels[4]}
        s_branch {labels[5]}
{name}_HH:
        s_cmp_eq_u32 s{sCNT}, 6
        s_cbranch_scc1 {labels[6]}
        s_branch {labels[7]}
        """)
    EV = int(OPT.get("ev", 5))
    a(f"{L}_START:")
    a(f"""
    {"" if FRESH else RESET}
    s_waitcnt lgkmcnt(1)
    """)
    dma(0)
    idxreads(SAD, 16)
    qreads(sNQ)
    a(f"""
    s_waitcnt lgkmcnt({4 if "q2" in OPT else 8})
    v_cmp_ne_u32 vcc, 0, v16
    """)
    if 't1late' not in OPT:
        dma(1)
        idxreads(SAD, 32)
    ereads(EAD, 0)
    a(f"""
    ; sK1: one bit per tile from the top (ends a node, or one of the last tiles), then a marker; sK2: tile + 2 starts a node;
    ; sNL: bit k = the tile with k tiles behind it ends a node
    s_brev_b32 s{sK1}, vcc_lo
    s_lshl_b32 s{sK2}, s{sK1}, 1
    s_sub_u32 s{sTMP}, 32, s{sLEFT}
    s_lshr_b32 s{sNL}, s{sK1}, s{sTMP}
    s_lshl_b32 s{sK1}, s{sNL}, s{sTMP}
    s_sub_u32 s{sTMP}, s{sTMP}, 1
    s_lshl_b32 s{sTMP}, {((7 | (1 << EV)) << 1) | 1}, s{sTMP}
    s_or_b32 s{sK1}, s{sK1}, s{sTMP}
    s_waitcnt vmcnt({0 if 't1late' in OPT else 2})
    """)
    preads(0)
    if 't1late' in OPT:
        dma(1)
        idxreads(SAD, 32)
    a("s_waitcnt lgkmcnt(0)\n@stamp 9")
    dma(0)
    for k in range(2): mfma(D0, k)
    ereads(EAD, 64)
    idxreads(SAD, 48)
    a(f"s_bitcmp0_b32 vcc_lo, 0\ns_cbranch_scc1 {L}_S4")
    qnext()
    a(f"{L}_S4:\ns_waitcnt vmcnt(2)")
    preads(1)
    a(f"s_branch {L}_{'G' if FRESH else 'L'}0B")
    K2 = f"s_add_u32 s{sK2}, s{sK2}, s{sK2}"
    def xphase(b, lab):
        dc, dn = (D0, D1) if b == 0 else (D1, D0)
        mfma(dn, 0)
        for e in range(7, -1, -1):
            if lab and e < 7: a(f"{L}_X{b}_{e+1}:")
            if e == SMP: mfma(dn, 1)
            ex(dc, 2*e+1); ex(dc, 2*e)
    def mid(b, tag):
        a("s_waitcnt vmcnt(2)")
        preads(b)
        if tag == "E": a(K2)
        a(f"s_cbranch_scc1 {L}_ADV{tag}{b}\n{L}_RB{tag}{b}:")
        ereads(EAD, 64*(b+2))
        idxreads(SAD, 16*(b+4))
    def yphase(b, lab):
        dc = D0 if b == 0 else D1
        for e in range(7, -1, -1):
            if lab and e < 7: a(f"{L}_Y{b}_{e+1}:")
            pk(dc, e)
    for b in range(2):
        dc, dn = (D0, D1) if b == 0 else (D1, D0)
        a(f"""
{L}_TAIL{b}:
        s_setprio 2
        s_cmp_ge_u32 s{sLEFT}, 3
        s_cbranch_scc1 {L}_TD{b}
        s_setprio 1
        s_cmp_gt_u32 s{sLEFT}, {OPT.get("p0", 0)}
        s_cbranch_scc1 {L}_T1{b}
        s_setprio 0
{L}_T1{b}:
        s_waitcnt vmcnt(0)
        s_branch {L}_T2{b}
{L}_TD{b}:
        """)
        dma(1-b)
        a(f"""
{L}_T2{b}:
        s_bitcmp1_b32 s{sNL}, s{sLEFT}
        s_cbranch_scc1 {L}_ENDN{b}
        s_cmp_eq_u32 s{sLEFT}, 0
        s_cbranch_scc1 {L}_RE{b}
        {K2}
        s_branch {L}_XB{b}
{L}_RE{b}:
        s_mov_b32 s{sCNT}, 8
        s_mov_b32 s{sOLD}, s{sNC}
        s_mov_b32 s{sPART}, 1
        s_branch {L}_X{b}_8
        """)
        if not safe: flush_part(b)
        for tag in "PE":
            a(f"{L}_ADV{tag}{b}:")
            qnext()
            a(f"s_branch {L}_RB{tag}{b}")
        tree(f"{L}_XD{b}", {c: f"{L}_XS{b}_{c}" for c in range(1, 8)})
        for c in range(1, 8):
            a(f"{L}_XS{b}_{c}:")
            mfma(dn, 0)
            if c <= SMP: mfma(dn, 1)
            a(f"s_branch {L}_X{b}_{c}")
        tree(f"{L}_YD{b}", {c: f"{L}_Y{b}_{c}" for c in range(1, 8)})
        a(f"""
{L}_SP{b}:
        s_ff1_i32_b32 s{sLEFT}, s{sK1}
        s_sub_u32 s{sLEFT}, 31, s{sLEFT}
        s_cmp_le_u32 s{sLEFT}, {EV}
        s_cbranch_scc1 {L}_TAIL{b}
        """)
        dma(1-b)
        a(f"""
{L}_ENDN{b}:
        v_readlane_b32 s{sCNT}, v{NCNT}, s{sNC}
        s_mov_b32 s{sOLD}, s{sNC}
        s_bitset0_b64 s[{sNZ2}:{sNZ2+1}], s{sNC}
        s_ff1_i32_b64 s{sNC}, s[{sNZ2}:{sNZ2+1}]
        s_cmp_lt_u32 s{sCNT}, 8
        s_cbranch_scc1 {L}_XD{b}
{L}_X{b}_8:
        """)
        xphase(b, True)
        mid(b, "E")
        a(f"s_cmp_lt_u32 s{sCNT}, 8\ns_cbranch_scc1 {L}_YD{b}")
        yphase(b, True)
        flush(b)
        a(f"""
        s_cmp_eq_u32 s{sLEFT}, 0
        s_cbranch_scc1 K_MAINDONE
        s_branch {L}_{"G" if FRESH else "L"}{1-b}
        """)
        if FRESH:
            a(f"{L}_GS{b}:\n{RESET}\ns_branch {L}_SP{b}")
            a(f"{L}_ADVG{b}:")
            qnext()
            a(f"s_branch {L}_RBG{b}")
            a(f"{L}_G{b}:")
            if b == 0:
                a(f"v_add_u32 v{EAD}, 128, v{EAD}\nv_add_u32 v{SAD}, 32, v{SAD}\n{L}_G0B:")
            a(f"""
            s_add_u32 s{sK1}, s{sK1}, s{sK1}
            s_waitcnt lgkmcnt(0)
            s_cbranch_scc1 {L}_GS{b}
            """)
            dma(1-b, K2)
            xphase(b, False)
            mid(b, "G")
            t7 = dc + 14; t6 = dc + 12; u7 = VU + 14; u6 = VU + 12
            a(f"""
            v_pk_add_f32 v[{DEN}:{DEN+1}], v[{u7}:{u7+1}], 1.0 op_sel_hi:[1,0]
            v_pk_fma_f32 v[{VA}:{VA+1}], v[{t6}:{t6+1}], v[{DEN}:{DEN+1}], v[{t7}:{t7+1}]
            v_pk_fma_f32 v[{DEN}:{DEN+1}], v[{DEN}:{DEN+1}], v[{u6}:{u6+1}], v[{DEN}:{DEN+1}]
            v_pk_fma_f32 v[{NUM}:{NUM+1}], v[{t7}:{t7+1}], v[{u6}:{u6+1}], v[{VA}:{VA+1}]
            s_branch {L}_YP{b}_6
            """)
    a(f".p2align {OPT.get('al', 6)}")
    if "alo" in OPT: a("\n".join(["s_nop 0"]*int(OPT["alo"])))
    for b in range(2):
        a(f"{L}_L{b}:")
        if b == 0:
            a(f"v_add_u32 v{EAD}, 128, v{EAD}\nv_add_u32 v{SAD}, 32, v{SAD}\n{L}_L0B:")
        a(f"""
        s_add_u32 s{sK1}, s{sK1}, s{sK1}
        s_waitcnt lgkmcnt(0)
        s_cbranch_scc1 {L}_SP{b}
        """)
        dma(1-b, K2)
        a(f"{L}_XB{b}:")
        xphase(b, False)
        mid(b, "P")
        for e in range(7, -1, -1):
            if e == 5: a(f"{L}_YP{b}_6:")
            pk(D0 if b == 0 else D1, e)
        if b == 1: a(f"s_branch {L}_L0")

def consts(a):
    a(f"""
    ; m = l&31, hk = l>>5, e = 2*(m>>3) + ((m>>1)&1), H = (m>>2)&1, c0 = m&1
    v_lshlrev_b32 v{L8}, 3, v{VL}
    {f'v_add_u32 v{LQ}, {QS}, v{L8}' if 'q2' in OPT else ''}
    v_lshlrev_b32 v{L4}, 2, v{VL}
    v_lshlrev_b32 v{IX0+1}, 4, v{VJ}
    v_lshlrev_b32 v{IX1+1}, 4, v{VJ}
    v_lshlrev_b32 v{G2}, 1, v{VG}
    v_lshrrev_b32 v1, 5, v{VL}
    v_bfe_u32 v2, v{VL}, 2, 1
    v_and_b32 v3, 1, v{VL}
    v_bfe_u32 v4, v{VL}, 1, 1
    v_bfe_u32 v5, v{VL}, 3, 2
    v_lshl_add_u32 v5, v5, 1, v4
    v_mov_b64 v[{AE}:{AE+1}], 0
    v_mov_b64 v[{AE+2}:{AE+3}], 0
    v_xor_b32 v{ID}, v1, v2
    v_lshl_add_u32 v{ID}, v{ID}, 1, v3
    v_cmp_eq_u32 s[{sM0}:{sM0+1}], 0, v{ID}
    v_cmp_eq_u32 s[{sM1}:{sM1+1}], 1, v{ID}
    v_lshlrev_b32 v{E8}, 3, v5
    ; sparse selector: lane half e>>2, register q = 2*(e&1) + ((e>>1)&1) holds 1.0, index (2*H + c0) << 4*q
    v_lshrrev_b32 v{ID+1}, 2, v5
    v_cmp_eq_u32 vcc, v1, v{ID+1}
    v_bfe_u32 v5, v5, 1, 1
    v_lshl_add_u32 v5, v4, 1, v5
    v_lshl_add_u32 v2, v2, 1, v3
    v_cndmask_b32 v3, 0, v{W3}, vcc
    v_lshlrev_b32 v4, 2, v5
    v_lshlrev_b32 v{ID+4}, v4, v2
    """)
    for q in range(4): a(f"v_cmp_eq_u32 s[{sCM + 2*q}:{sCM + 2*q + 1}], {q}, v5")
    a(f"v_lshrrev_b32 v1, 2, v{TID}\nv_and_b32 v2, 3, v{TID}")
    for q in range(4): a(f"v_cndmask_b32 v{ID+q}, 0, v3, s[{sCM + 2*q}:{sCM + 2*q + 1}]")
    a(f"""
    s_movk_i32 s3, {REC_STRIDE}
    v_mul_u32_u24 v3, s3, v1
    v_mad_u32_u24 v{RAD}, v2, 12, v3
    s_lshl_b32 s3, s{sG}, 3
    s_add_u32 s3, s3, {WS_T}
    v_lshl_add_u32 v{AAD}, v1, 11, s3
    ; x fragment addresses and the W transpose-read lane offset
    v_xor_b32 v1, v{VG}, v{VJ}
    v_lshlrev_b32 v1, 4, v1
    v_lshl_add_u32 v{XA}, v{VJ}, 8, v1
    v_xor_b32 v{XA+1}, 64, v{XA}
    v_xor_b32 v{XA+2}, 128, v{XA}
    v_xor_b32 v{XA+3}, 192, v{XA}
    v_bfe_u32 v1, v{VL}, 2, 2
    v_and_b32 v2, 1, v{VG}
    v_lshl_or_b32 v2, v2, 2, v1
    v_bfe_u32 v3, v{VL}, 1, 1
    v_lshl_or_b32 v2, v2, 1, v3
    v_and_b32 v3, 1, v{VL}
    v_lshl_or_b32 v2, v2, 1, v3
    v_lshl_add_u32 v1, v{VG}, 3, v1
    v_lshlrev_b32 v1, 8, v1
    v_lshl_add_u32 v{WA}, v2, 3, v1
    ; output staging: write row*256 + ((2*ct + (g>>1)) ^ j)*16 + (g&1)*8 (row = 16*rt + j, ct = wv&7), read / store 16 B per thread
    s_and_b32 s3, s{sWV}, 7
    s_lshl_b32 s3, s3, 1
    v_lshrrev_b32 v1, 1, v{VG}
    v_or_b32 v1, s3, v1
    v_xor_b32 v1, v1, v{VJ}
    v_and_b32 v2, 1, v{VG}
    v_lshl_or_b32 v1, v1, 1, v2
    v_lshlrev_b32 v1, 3, v1
    v_lshl_add_u32 v{OSA}, v{VJ}, 8, v1
    v_lshrrev_b32 v1, 4, v{TID}
    v_xor_b32 v2, v1, v{VJ}
    v_and_b32 v2, 15, v2
    v_lshlrev_b32 v2, 4, v2
    v_lshl_add_u32 v{ORA}, v1, 8, v2
    s_lshl_b32 s3, s{sSTART}, 8
    v_lshl_add_u32 v{OGA}, v{TID}, 4, s3
    """)
def tagbase(a, v):
    a(f"""
    v_readfirstlane_b32 s{sNON}, v{v}
    v_readfirstlane_b32 s{sNON+1}, v{v+1}
    """)
    if RND:
        a(f"""
        s_bfe_u32 s3, s{sNON}, 0x50004
        s_lshl_b32 s3, s3, 23
        s_add_u32 s{sWS}, s{sWS}, s3
        s_addc_u32 s{sWS+1}, s{sWS+1}, 0
        """)
def wlane(a, v):
    a(f"""
    v_lshlrev_b32 v{v}, 1, v{VG}
    v_xor_b32 v{v}, v{v}, v{VJ}
    v_lshlrev_b32 v{v}, 4, v{v}
    v_lshl_add_u32 v{v}, v{VG}, 8, v{v}
    v_xor_b32 v{v+1}, 128, v{v}
    """)
def wdma(a, soff, v):
    a(f"""
    buffer_load_dwordx4 v{v}, s[{sW}:{sW+3}], s{soff} offen lds
    buffer_load_dwordx4 v{v}, s[{sW}:{sW+3}], s{soff} offen offset:1024 lds
    buffer_load_dwordx4 v{v+1}, s[{sW}:{sW+3}], s{soff} offen offset:2048 lds
    buffer_load_dwordx4 v{v+1}, s[{sW}:{sW+3}], s{soff} offen offset:3072 lds
    """)
def mm16(a, d, x, w, swap=False, first=True):
    for ks in range(4):
        c = "0" if (ks == 0 and first) else f"v[{d}:{d+3}]"
        xa = f"v[{x+4*ks}:{x+4*ks+3}]"; wa = f"v[{w+4*ks}:{w+4*ks+3}]"
        a(f"v_mfma_f32_16x16x32_bf16 v[{d}:{d+3}], {wa if swap else xa}, {xa if swap else wa}, {c}")
def xreads(a, dst, off):
    for ks in range(4): a(f"ds_read_b128 v[{dst+4*ks}:{dst+4*ks+3}], v{XA+ks} offset:{off}")

def kernel():
    a = Asm()
    a(f"""
{KN}:
    @stamp 0
    @stamp 1
    @amp 0
    s_load_dwordx16 s[4:19], s[0:1], 0
    s_load_dwordx2 s[{sWS}:{sWS+1}], s[0:1], 64
    s_cmp_ge_u32 s2, {NG}
    s_cbranch_scc1 K_END
    v_mov_b32 v{TID}, v0
    v_lshrrev_b32 v1, 6, v0
    v_and_b32 v{VL}, 63, v0
    v_readfirstlane_b32 s{sWV}, v1
    ; group index: workgroups that are dealt to one XCD get neighbouring groups (speed only)
    s_and_b32 s{sG}, s2, 7
    s_lshl_b32 s{sG}, s{sG}, 5
    s_lshr_b32 s3, s2, 3
    s_or_b32 s{sG}, s{sG}, s3
    v_lshrrev_b32 v{VG}, 4, v{VL}
    v_and_b32 v{VJ}, 15, v{VL}
    s_mul_i32 s3, s{sG}, 625
    s_add_u32 s{sSTART}, s3, 15
    s_lshr_b32 s{sSTART}, s{sSTART}, 4
    s_add_u32 s{sEND}, s3, {625+15}
    s_lshr_b32 s{sEND}, s{sEND}, 4
    v_mov_b32 v{W3}, 0x3f80
    s_mov_b32 s{sW+2}, 65536
    s_mov_b32 s{sW+3}, 0x20000
    s_cmp_ge_u32 s{sWV}, 5
    s_cbranch_scc1 A_N1
    ; ================= waves 0..4: bin the edges [1280*g, 1280*g+1280) by destination group (4 edges per thread)
    {f"s_setprio {OPT['sp']}" if "sp" in OPT else ""}
    s_cmp_lt_u32 s{sG}, {NPROD}
    s_cselect_b32 s3, s{sG}, 0
    s_cselect_b64 s[{sEX}:{sEX+1}], -1, 0
    s_mul_i32 s3, s3, {EPW*4}
    v_lshl_add_u32 v8, v0, 4, s3
    v_lshlrev_b32 v9, 1, v8
    s_lshl_b32 s{sTMP}, s{sWV}, 3
    v_add_u32 v1, s{sTMP}, v{VG}
    v_xor_b32 v2, v1, v{VJ}
    v_and_b32 v2, 15, v2
    v_lshlrev_b32 v2, 4, v2
    v_lshl_add_u32 v2, v1, 8, v2
    v_xor_b32 v3, 64, v2
    s_lshl_b32 s{sTMP}, s{sWV}, 11
    s_add_u32 m0, s{sTMP}, {XS}
    s_lshl_b32 s{sTMP+2}, s{sSTART}, 8
    s_mov_b32 s{sX+2}, {N*256}
    s_mov_b32 s{sX+3}, 0x20000
    s_waitcnt lgkmcnt(0)
    global_load_dwordx4 v[12:15], v8, s[10:11] {LDF}
    {WSOFF}
    s_mov_b32 s{sX}, s4
    s_and_b32 s{sX+1}, s5, 0xffff
    buffer_load_dwordx4 v2, s[{sX}:{sX+3}], s{sTMP+2} offen {LDF} lds
    buffer_load_dwordx4 v3, s[{sX}:{sX+3}], s{sTMP+2} offen offset:1024 {LDF} lds
    {SRCE if SE == 0 else ""}
    s_barrier
    {SRCE if SE == 1 else ""}
    """)
    if "cearly" in OPT: consts(a)
    a(f"""
    s_movk_i32 s{sTMP}, 625
    s_mov_b32 s{sTMP+1}, 214749
    v_mov_b32 v1, 1
    v_lshlrev_b32 v10, 4, v{VL}
    s_waitcnt vmcnt({2 if SE == 2 else 5})
    {SRCE if SE == 2 else ""}
    s_mov_b64 exec, s[{sEX}:{sEX+1}]
    """)
    for i in range(4):
        a(f"v_mul_u32_u24 v{28+i}, s{sTMP+1}, v{12+i}")
    for i in range(4):
        a(f"v_lshrrev_b32 v{28+i}, 23, v{28+i}\nv_lshlrev_b32 v{32+i}, 2, v{28+i}\nds_add_rtn_u32 v{36+i}, v{32+i}, v1 offset:{HIST}")
    a(f"""
    s_mov_b64 exec, -1
    s_waitcnt {"vmcnt(3) " if B1E == 3 else ""}lgkmcnt(0)
    @stamp 2
    {"@stamp 3" if B1E == 3 else ""}
    s_barrier
    ds_read_b128 v[40:43], v10 offset:{HIST}
    """)
    for i in range(4):
        a(f"v_mad_u32_u24 v{28+i}, v{28+i}, s{sTMP}, 15\nv_lshrrev_b32 v{28+i}, 4, v{28+i}\nv_sub_u32 v{28+i}, v{12+i}, v{28+i}")
    a(f"""
    {B1B if B1E == 1 else ""}
    s_waitcnt lgkmcnt(0)
    v_add_u32 v44, v40, v41
    v_add3_u32 v44, v44, v42, v43
    v_mov_b32 v45, v44
    """)
    dpp_scan(a, 45)
    a(f"""
    v_sub_u32 v48, v45, v44
    v_add_u32 v49, v48, v40
    v_add_u32 v50, v49, v41
    v_add_u32 v51, v50, v42
    ds_write_b128 v10, v[48:51] offset:{OFFS}
    {B1B if B1E == 2 else ""}
    s_mov_b32 s{sTMP}, {STAGE}
    s_mov_b64 exec, s[{sEX}:{sEX+1}]
    s_waitcnt lgkmcnt(0)
    """)
    for i in range(4):
        a(f"ds_read_b32 v{40+i}, v{32+i} offset:{OFFS}")
    a(f"""
    {"" if B1E else B1B}
    s_waitcnt lgkmcnt(0)
    """)
    for i in range(4):
        a(f"v_add_u32 v{40+i}, v{40+i}, v{36+i}\nv_mad_u32_u24 v{40+i}, v{40+i}, 12, s{sTMP}")
    a("s_waitcnt vmcnt(2)")
    for i in range(4):
        a(f"v_lshl_or_b32 v{16+i}, v{28+i}, 18, v{16+i}\nds_write_b32 v{40+i}, v{16+i} offset:8")
    for i in range(4):
        if i % 2 == 0: a(f"s_waitcnt vmcnt({1 - i//2})")
        a(f"ds_write2_b32 v{40+i}, v{20+2*i}, v{21+2*i} offset0:0 offset1:1")
    a(f"""
    s_mov_b64 exec, -1
    s_branch A_JOINC
A_N1:
    ; ================= waves 5..15
    v_mov_b32 v8, 0
    """)
    wlane(a, 6)
    a(f"""
    s_sub_u32 s{sVT}, s{sWV}, 5
    s_lshl_b32 s{sVT}, s{sVT}, 12
    s_add_u32 m0, s{sVT}, {W1S}
    s_waitcnt lgkmcnt(0)
    s_mov_b32 s{sW}, s12
    s_and_b32 s{sW+1}, s13, 0xffff
    {WSOFF}
    s_cmp_ge_u32 s{sWV}, 13
    s_cbranch_scc1 A_N13
    """)
    if "w1late" not in OPT: wdma(a, sVT, 6)
    a(f"""
    s_cmp_ge_u32 s{sWV}, 10
    s_cbranch_scc1 A_N10
    ; waves 5..8: histogram = 0; wave 9: node counters and flags = 0
    s_mov_b32 s{sTMP+1}, {HIST - 320*4}
    s_cmp_eq_u32 s{sWV}, 9
    s_cselect_b32 s{sTMP+1}, {CNT - 576*4}, s{sTMP+1}
    v_lshl_add_u32 v3, v0, 2, s{sTMP+1}
    ds_write_b32 v3, v8
    ds_write_b32 v8, v8 offset:{FLG}
    ds_write_b32 v8, v8 offset:{FLG+4}
    s_cbranch_scc0 A_B0
    ds_write_b32 v3, v8 offset:{TF}
    s_branch A_B0
A_N13:
    s_cmp_eq_u32 s{sWV}, 15
    s_cbranch_scc1 A_N15
    ; waves 13, 14: pull this CU's share of W2 / Wupd_top into the L2 (speed only)
    s_and_b32 s{sTMP}, s{sG}, 31
    s_lshl_b32 s{sTMP}, s{sTMP}, 10
    s_cmp_eq_u32 s{sWV}, 13
    s_cselect_b32 s{sTMP+1}, 32768, 0
    s_cselect_b32 s{sTMP+2}, s12, s14
    s_cselect_b32 s{sTMP+3}, s13, s15
    s_add_u32 s{sTMP}, s{sTMP}, s{sTMP+1}
    v_lshl_add_u32 v3, v{VL}, 7, s{sTMP}
    s_mov_b64 exec, 0xff
    {"" if "notouch" in OPT else f"global_load_dword v40, v3, s[{sTMP+2}:{sTMP+3}]"}
    s_mov_b64 exec, -1
    s_cmp_eq_u32 s{sWV}, 14
    s_cbranch_scc0 A_N10
    """)
    if "bulk" in OPT:
        nl, fl = OPT["bulk"].split(":"); nl = int(nl); fl = fl.replace("+", " ").replace("-", "")
        a(f"""
        s_mul_i32 s3, s{sG}, {REC_STRIDE}
        s_add_u32 s3, s3, {WS_REC}
        v_lshl_add_u32 v3, v{VL}, 4, s3
        v_mov_b64 v[4:5], 0
        v_mov_b64 v[6:7], 0
        s_waitcnt vmcnt(0)
        s_sleep {OPT.get("bsl", 0)}
        @amp 12
        """)
        for k in range(nl): a(f"global_store_dwordx4 v3, v[4:7], s[{sWS}:{sWS+1}] {fl}\nv_add_u32 v3, 1024, v3")
        a(f"""
        s_waitcnt vmcnt(0)
        @amp 13
        """)
    if "probe" in OPT:
        kind, nl = OPT["probe"].split(":"); nl = int(nl)
        a(f"""
        s_mul_i32 s3, s{sG}, {REC_STRIDE}
        s_add_u32 s3, s3, {WS_REC}
        v_lshl_add_u32 v3, v{VL}, 7, s3
        v_mov_b32 v4, 0
        s_waitcnt vmcnt(0)
        @amp 12
        s_mov_b64 exec, {(1 << nl) - 1 if nl < 32 else -1}
        {"global_store_dword v3, v4" if kind == "st" else "global_load_dword v4, v3"}, s[{sWS}:{sWS+1}] sc1
        s_mov_b64 exec, -1
        s_waitcnt vmcnt(0)
        @amp 13
        """)
    if "tlb" in OPT:
        a(f"""
        ; wave 14: touch lines nobody writes in the pages that are used later (address translation; speed only)
        v_mov_b32 v3, 0
        s_mov_b32 s3, {WS_REC - 128}
        v_writelane_b32 v3, s3, 1
        s_mov_b32 s3, {WS_REC + 200*REC_STRIDE - 128}
        v_writelane_b32 v3, s3, 2
        s_mov_b32 s3, {WS_F + 65536}
        v_writelane_b32 v3, s3, 3
        s_lshl_b32 s3, s{sSTART}, 8
        v_mov_b32 v4, s3
        v_mov_b32 v5, 128
        s_mov_b64 exec, 15
        global_load_dword v41, v3, s[{sWS}:{sWS+1}]
        s_mov_b64 exec, 1
        global_load_dword v42, v4, s[16:17]
        global_load_dword v43, v5, s[18:19]
        s_mov_b64 exec, -1
        """)
    a(f"""
    s_branch A_B0
A_N10:
    ; waves 10..13: src list = 0xffff (index out of range)
    v_lshlrev_b32 v3, 4, v0
    v_add_u32 v3, {SS - 640*16}, v3
    v_mov_b64 v[12:13], -1
    v_mov_b64 v[14:15], -1
    ds_write_b128 v3, v[12:15]
    s_branch A_B0
A_N15:
    """)
    a(f"""
    s_cmp_lg_u32 s2, 0
    s_cbranch_scc1 A_B0
    s_memrealtime s[{sNON}:{sNON+1}]
    s_waitcnt lgkmcnt(0)
    s_or_b32 s{sNON}, s{sNON}, 1
    v_mov_b32 v10, s{sNON}
    v_mov_b32 v11, s{sNON+1}
    s_mov_b64 exec, 1
    global_store_dwordx2 v8, v[10:11], s[18:19] sc1
    s_mov_b64 exec, -1
A_B0:
    s_cmp_eq_u32 s{sWV}, 15
    s_cbranch_scc1 A_B1
    v_lshlrev_b32 v3, 4, v0
    v_add_u32 v3, {AGG - 320*16}, v3
    v_mov_b64 v[12:13], 0
    v_mov_b64 v[14:15], 0
    ds_write_b128 v3, v[12:15]
    ds_write_b128 v3, v[12:15] offset:10240
    ds_write_b128 v3, v[12:15] offset:20480
    ds_write_b128 v3, v[12:15] offset:30720
A_B1:
    """)
    if "x_prew" in OPT:
        op = "global_atomic_or" if OPT["x_prew"] == "atom" else "global_store_dword"
        a(f"""
        s_sub_u32 s3, s{sWV}, 11
        s_cmp_gt_u32 s3, 3
        s_cbranch_scc1 X_NOPW
        s_mul_i32 s{sTMP}, s{sG}, {REC_STRIDE}
        s_add_u32 s{sTMP}, s{sTMP}, {WS_REC}
        s_lshl_b32 s{sTMP+1}, s{sSTART}, 8
        s_add_u32 s{sTMP+1}, s{sTMP+1}, {WS_P}
        s_cmp_lt_u32 s3, 2
        s_cselect_b32 s{sTMP}, s{sTMP}, s{sTMP+1}
        s_cselect_b32 s{sTMP+1}, 42, 0
        s_add_u32 s{sTMP+1}, s{sTMP+1}, 77
        s_and_b32 s3, s3, 1
        s_lshl_b32 s3, s3, 6
        v_add_u32 v3, s3, v{VL}
        v_cmp_ge_u32 vcc, s{sTMP+1}, v3
        v_lshl_add_u32 v3, v3, 7, s{sTMP}
        v_mov_b32 v4, 0
        s_mov_b64 exec, vcc
        {op} v3, v4, s[{sWS}:{sWS+1}] sc1
        s_mov_b64 exec, -1
        s_cmp_eq_u32 s{sWV}, 14
        s_cbranch_scc0 X_NOPW
        s_lshl_b32 s{sTMP}, s{sG}, 11
        s_add_u32 s{sTMP}, s{sTMP}, {WS_T}
        v_lshl_add_u32 v3, v{VL}, 7, s{sTMP}
        s_mov_b64 exec, 0xffff
        {op} v3, v4, s[{sWS}:{sWS+1}] offset:4 sc1
        s_mov_b64 exec, -1
X_NOPW:
        """)
    a(f"""
    s_waitcnt lgkmcnt(4)
    s_barrier
    """)
    if "w1late" in OPT:
        a(f"s_cmp_ge_u32 s{sWV}, 13\ns_cbranch_scc1 A_NOW1")
        wdma(a, sVT, 6)
        a("A_NOW1:")
    a(f"""
    """)
    def w15():
        a(f"""
    s_cmp_eq_u32 s{sWV}, 15
    s_cbranch_scc0 A_NO15
    v_bfe_u32 v9, v{VL}, 4, 1
    v_lshlrev_b32 v9, 6, v9
    v_lshrrev_b32 v10, 5, v{VL}
    v_lshl_add_u32 v9, v10, 5, v9
    v_add_u32 v9, v9, v{VJ}
    v_lshlrev_b32 v9, 1, v9
    v_add_u32 v8, {256*256}, v9
        """)
        for s in range(8):
            a(f"global_load_ushort v{16 + s}, v8, s[12:13] offset:{(s & 3)*256 + (s >> 2)*32}")
        a(f"""
    s_cmp_ge_u32 s{sG}, 32
    s_cbranch_scc1 A_NO15
    s_and_b32 s{sTMP}, s{sG}, 1
    s_lshl_b32 s{sTMP}, s{sTMP}, 6
    s_bfe_u32 s{sTMP+1}, s{sG}, 0x10001
    s_lshl_b32 s{sTMP+1}, s{sTMP+1}, 5
    s_add_u32 s{sTMP}, s{sTMP}, s{sTMP+1}
    s_add_u32 s{sTMP}, s{sTMP}, 128
    s_lshl_b32 s{sTMP}, s{sTMP}, 8
    s_bfe_u32 s{sTMP+1}, s{sG}, 0x30002
    s_lshl_b32 s{sTMP+1}, s{sTMP+1}, 5
    s_add_u32 s{sTMP}, s{sTMP}, s{sTMP+1}
    v_lshlrev_b32 v8, 10, v{VG}
    v_lshl_add_u32 v8, v{VJ}, 1, v8
    v_add_u32 v8, s{sTMP}, v8
    v_add_u32 v9, {16*256}, v8
        """)
        for s in range(8):
            a(f"global_load_ushort v{24 + s}, v{8 + (s & 1)}, s[14:15] offset:{(s >> 1)*256}")
        a(f"""
A_NO15:
        """)
    if "w3late" not in OPT: w15()
    a(f"""
    """)
    consts(a)
    if B1E != 3: a("s_barrier")
    if "w3late" in OPT: w15()
    a(f"""
    s_cmp_ge_u32 s{sWV}, 11
    s_cbranch_scc1 A_G11
    ; ================= waves 5..10: P = -log2e * x @ W1 for this group's rows (rt = (wv-5)>>1, hf = (wv-5)&1)
    s_sub_u32 s3, s{sWV}, 5
    s_and_b32 s{sTMP+1}, s3, 1
    s_lshr_b32 s{sTMP}, s3, 1
    s_lshl_b32 s{sTMP+2}, s{sTMP}, 12
    v_add_u32 v0, s{sTMP+2}, v{XA}
    v_add_u32 v1, s{sTMP+2}, v{XA+1}
    v_add_u32 v2, s{sTMP+2}, v{XA+2}
    v_add_u32 v3, s{sTMP+2}, v{XA+3}
    s_lshl_b32 s{sTMP+1}, s{sTMP+1}, 7
    v_xor_b32 v4, s{sTMP+1}, v{WA}
    v_add_u32 v4, {W1S}, v4
    v_xor_b32 v5, 32, v4
    v_xor_b32 v6, 64, v4
    v_xor_b32 v7, 96, v4
    s_add_u32 s{sTMP+2}, s{sTMP+2}, s{sTMP+1}
    """)
    if not PSTG:
        a(f"""
        s_lshl_b32 s{sTMP+1}, s{sSTART}, 8
        s_add_u32 s{sTMP+2}, s{sTMP+2}, s{sTMP+1}
        s_add_u32 s{sTMP+2}, s{sTMP+2}, {WS_P}
        """)
    a(f"""
    v_lshlrev_b32 v{NANC}, 10, v{VG}
    v_lshl_add_u32 v{NANC}, v{VJ}, 3, v{NANC}
    v_add_u32 v{NANC}, s{sTMP+2}, v{NANC}
    s_mov_b32 s{sTMP+2}, {NLOG2E:#x}
    s_waitcnt vmcnt(0)
    @stamp 3
    s_barrier
    s_setprio {OPT.get("gp", 1)}
    """)
    def breads(ks):
        b = 8 + 16*(ks & 1)
        a(f"ds_read_b128 v[{40+4*ks}:{43+4*ks}], v{ks} offset:{XS}")
        for i in range(4):
            for h in range(2):
                a(f"ds_read_b64_tr_b16 v[{b+4*i+2*h}:{b+4*i+2*h+1}], v{4+i} offset:{8192*ks + 1024*h}")
    breads(0)
    for ks in range(4):
        if ks < 3:
            breads(ks+1)
            a("s_waitcnt lgkmcnt(9)")
        else:
            a("s_waitcnt lgkmcnt(0)")
        b = 8 + 16*(ks & 1)
        for i in range(4):
            c = "0" if ks == 0 else f"v[{56+4*i}:{59+4*i}]"
            a(f"v_mfma_f32_16x16x32_bf16 v[{56+4*i}:{59+4*i}], v[{40+4*ks}:{43+4*ks}], v[{b+4*i}:{b+4*i+3}], {c}")
    a(f"""
    s_cmp_eq_u32 s{sTMP}, 2
    s_cselect_b32 exec_hi, 0, -1
    s_nop 5
    """)
    a("@amp 14")
    for q in range(8):
        a(f"v_pk_mul_f32 v[{56+2*q}:{57+2*q}], v[{56+2*q}:{57+2*q}], s[{sTMP+2}:{sTMP+3}] op_sel_hi:[1,0]")
    for r in range(4):
        a(f"v_cvt_pk_bf16_f32 v{8+2*r}, v{56+r}, v{60+r}\nv_cvt_pk_bf16_f32 v{9+2*r}, v{64+r}, v{68+r}")
        if PSTG: a(f"ds_write_b64 v{NANC}, v[{8+2*r}:{9+2*r}] offset:{PST + 256*r}")
        else: a(f"global_store_dwordx2 v{NANC}, v[{8+2*r}:{9+2*r}], s[{sWS}:{sWS+1}] offset:{256*r} {STF}")
    a(f"""
    s_mov_b64 exec, -1
    {"s_waitcnt vmcnt(0)" if AMP == 15 else ""}
    @amp 15
    s_setprio 0
    s_branch A_JOIN
A_G11:
    s_cmp_eq_u32 s{sWV}, 15
    s_cbranch_scc1 A_G15
    """)
    if "x_prew" in OPT: a(f"s_cmp_ge_u32 s{sWV}, 13\ns_cbranch_scc1 X_NW\ns_waitcnt vmcnt(1)\nX_NW:")
    a(f"""
    s_waitcnt vmcnt({63 if "x_prew" in OPT else 0})
    @stamp 3
    s_barrier
    """)
    if "cpf" in OPT:
        k = int(OPT["cpf"])
        a(f"""
        s_cmp_lg_u32 s{sWV}, 13
        s_cbranch_scc1 A_JOIN
        ; pull this CU's share of the kernel's code into the L2 (speed only)
        s_getpc_b64 s[{sTMP+2}:{sTMP+3}]
A_PC:
        s_and_b32 s{sTMP}, s{sG}, 31
        s_mul_i32 s{sTMP}, s{sTMP}, {k*128}
        v_lshl_add_u32 v3, v{VL}, 7, s{sTMP}
        v_min_u32 v3, S_START-A_PC-4, v3
        s_mov_b64 exec, {(1 << k) - 1}
        global_load_dword v40, v3, s[{sTMP+2}:{sTMP+3}]
        s_mov_b64 exec, -1
        """)
    a(f"""
    s_branch A_JOIN
A_G15:
    @stamp 3
    s_barrier
    v_mov_b32 v8, 0
    s_mov_b32 s{sSPIN}, {SPINMAX}
A_NLOOP:
    global_load_dwordx2 v[10:11], v8, s[18:19] sc1
    s_sub_u32 s{sSPIN}, s{sSPIN}, 1
    s_cbranch_scc1 A_NDONE
    s_waitcnt vmcnt(0)
    v_cmp_eq_u32 vcc, 0, v10
    s_cbranch_vccnz A_NLOOP
A_NDONE:
    s_waitcnt vmcnt(0)
    v_lshrrev_b32 v12, 4, v10
    v_xor_b32 v11, v11, v12
    v_lshlrev_b32 v11, 22, v11
    ds_write_b64 v8, v[10:11] offset:{NON}
    s_mov_b32 s{sTMP}, {NLOG2E:#x}
    """)
    if "tlb2" in OPT:
        a(f"""
        ; touch lines nobody writes in the pages of the scratch area (address translation; speed only)
        v_mov_b32 v3, 0
        s_mov_b32 s3, {WS_REC - 128}
        v_writelane_b32 v3, s3, 1
        s_mov_b32 s3, {WS_REC + 200*REC_STRIDE - 128}
        v_writelane_b32 v3, s3, 2
        s_mov_b32 s3, {WS_F + 65536}
        v_writelane_b32 v3, s3, 3
        s_mov_b64 exec, 15
        global_load_dword v41, v3, s[{sWS}:{sWS+1}]
        s_mov_b64 exec, -1
        """)
    for s in range(8):
        a(f"v_lshlrev_b32 v{16+s}, 16, v{16+s}\nv_mul_f32 v{16+s}, s{sTMP}, v{16+s}")
    for q in range(4):
        a(f"v_cvt_pk_bf16_f32 v{12+q}, v{16+2*q}, v{17+2*q}")
    a(f"""
    v_lshlrev_b32 v8, 4, v{VL}
    ds_write_b128 v8, v[12:15] offset:{W3S}
    s_cmp_ge_u32 s{sG}, 32
    s_cbranch_scc1 A_JOIN
    """)
    for q in range(4):
        a(f"v_lshl_or_b32 v{32+q}, v{25+2*q}, 16, v{24+2*q}")
    a(f"""
    s_lshl_b32 s{sTMP}, s{sG}, 10
    s_add_u32 s{sTMP}, s{sTMP}, {WS_F}
    v_add_u32 v8, s{sTMP}, v8
    global_store_dwordx4 v8, v[32:35], s[{sWS}:{sWS+1}] sc1
A_JOIN:
    s_cmp_lt_u32 s{sWV}, 8
    s_cbranch_scc1 A_JOINB
    v_lshlrev_b32 v0, 4, v{TID}
    s_mul_i32 s{sTMP}, s{sG}, {REC_STRIDE}
    s_add_u32 s{sTMP}, s{sTMP}, {WS_REC}
    v_add_u32 v1, s{sTMP}, v0
    v_mov_b32 v3, 0
    s_waitcnt lgkmcnt(0)
    @stamp 4
    s_barrier
    s_cmp_eq_u32 s{sWV}, 15
    s_cbranch_scc1 A_C15
    ds_read_b128 v[4:7], v0 offset:{STAGE}
    ds_read_b64 v[{SAD}:{SAD+1}], v3 offset:{NON}
    s_branch A_C8
    """)
    for lab in "BC":
        a(f"""
A_JOIN{lab}:
        ; waves {"5..7" if lab == "B" else "0..4"}: the same, then 16 rows of W2 -> LDS behind everybody's stores{"" if lab == "B" else ", lane constants"}
    v_lshlrev_b32 v0, 4, v{TID}
    s_mul_i32 s{sTMP}, s{sG}, {REC_STRIDE}
    s_add_u32 s{sTMP}, s{sTMP}, {WS_REC}
    v_add_u32 v1, s{sTMP}, v0
    v_mov_b32 v3, 0
        s_lshl_b32 s{sVT}, s{sWV}, 12
        s_add_u32 m0, s{sVT}, {W2S}
        s_add_u32 s{sVT}, s{sVT}, 32768
        s_mov_b32 s{sW}, s12
        s_and_b32 s{sW+1}, s13, 0xffff
        s_waitcnt lgkmcnt(0)
        @stamp 4
        s_barrier
        @amp 2
        ds_read_b128 v[4:7], v0 offset:{STAGE}
        ds_read_b64 v[{SAD}:{SAD+1}], v3 offset:{NON}
        s_waitcnt lgkmcnt(1)
        global_store_dwordx4 v1, v[4:7], s[{sWS}:{sWS+1}] sc1
        """)
        wlane(a, 14)
        a("s_barrier")
        wdma(a, sVT, 14)
        if lab == "C": consts(a)
        a(f"""
        s_waitcnt vmcnt(4)
        @stamp 5
        @amp 10
        s_barrier
        s_barrier
        @amp 3
        s_branch A_DESC
        """)
    a(f"""
A_C15:
    ds_read_b64 v[{SAD}:{SAD+1}], v3 offset:{NON}
    s_branch A_C9
A_C8:
    s_waitcnt lgkmcnt(1)
    global_store_dwordx4 v1, v[4:7], s[{sWS}:{sWS+1}] sc1
A_C9:
    s_barrier
    s_cmp_lt_u32 s{sWV}, 14
    s_cbranch_scc1 A_NOT
    ; waves 14, 15: granules (start | count<<11 | tag<<22, tag) of groups 2t, 2t+1 (t = tid - 896)
    s_setprio 1
    v_lshlrev_b32 v8, 3, v{TID}
    ds_read_b64 v[10:11], v8 offset:{OFFS - 896*8}
    ds_read_b64 v[12:13], v8 offset:{HIST - 896*8}
    s_lshl_b32 s{sTMP}, s{sG}, 11
    s_add_u32 s{sTMP}, s{sTMP}, {WS_T - 896*16}
    v_lshl_add_u32 v8, v8, 1, s{sTMP}
    s_waitcnt lgkmcnt(0)
    v_lshl_or_b32 v4, v12, 11, v10
    v_lshl_or_b32 v6, v13, 11, v11
    v_or_b32 v4, v{SAD+1}, v4
    v_or_b32 v6, v{SAD+1}, v6
    v_mov_b32 v5, v{SAD}
    v_mov_b32 v7, v{SAD}
A_NOT:
    s_lshl_b32 s{sVT}, s{sWV}, 12
    s_sub_u32 s{sVT}, s{sVT}, 32768
    s_add_u32 m0, s{sVT}, {WTS}
    s_mov_b32 s{sW}, s14
    s_and_b32 s{sW+1}, s15, 0xffff
    """)
    wlane(a, 14)
    a(f"""
    s_cmp_lt_u32 s{sWV}, 14
    s_waitcnt vmcnt(0)
    @stamp 5
    @amp 10
    s_barrier
    s_cbranch_scc1 A_PUB
    global_store_dwordx4 v8, v[4:7], s[{sWS}:{sWS+1}] sc1
    s_setprio 0
A_PUB:
    s_barrier
    @amp 3
    """)
    wdma(a, sVT, 14)
    a(f"""
A_DESC:
    v_lshlrev_b32 v3, 4, v{VL}
    ds_read_b128 v[{W3}:{W3+3}], v3 offset:{W3S}
    s_mov_b32 s{sO}, s16
    s_and_b32 s{sO+1}, s17, 0xffff
    s_lshl_b32 s{sO+2}, s{sEND}, 8
    s_mov_b32 s{sO+3}, 0x20000
    s_add_u32 s{sP}, s{sWS}, {WS_P}
    s_addc_u32 s{sP+1}, s{sWS+1}, 0
    s_and_b32 s{sP+1}, s{sP+1}, 0xffff
    s_or_b32 s{sP+1}, s{sP+1}, {256 << 16}
    s_mov_b32 s{sP+2}, {N}
    s_mov_b32 s{sP+3}, 0x20000
    s_sub_u32 s{sP2}, s{sP}, 1024
    s_subb_u32 s{sP2+1}, s{sP+1}, 0
    s_mov_b32 s{sP2+2}, {N}
    s_mov_b32 s{sP2+3}, 0x20000
    s_add_u32 s{sREC}, s{sWS}, {WS_REC}
    s_addc_u32 s{sREC+1}, s{sWS+1}, 0
    s_and_b32 s{sREC+1}, s{sREC+1}, 0xffff
    s_mov_b32 s{sREC+2}, {NG*REC_STRIDE}
    s_mov_b32 s{sREC+3}, 0x20000
    s_mov_b32 s{sMODE}, 0
    s_mov_b32 s{sR0}, 0
    s_mov_b32 s{sR}, {4*RMAX}
    s_mov_b32 s{sONE}, 1.0
    s_mov_b32 s{sONE+1}, 1.0
    s_mov_b32 s{sSPIN}, {SPINMAX}
    v_mov_b64 v[{NANC}:{NANC+1}], 0
    v_mov_b32 v{MAXC}, 0
    ; W2 transpose-read address of column tile ct = wv&7; Q address node*512 + 8*(32*H + 16*(ct>>2) + j) + 4*c0
    s_and_b32 s{sTMP}, s{sWV}, 7
    s_lshl_b32 s{sTMP}, s{sTMP}, 5
    v_xor_b32 v{WA}, s{sTMP}, v{WA}
    s_and_b32 s{sTMP}, s{sWV}, 8
    s_lshl_b32 s{sTMP}, s{sTMP}, 12
    s_add_u32 s{sTMP}, s{sTMP}, {WTS}
    v_add_u32 v{WA}, s{sTMP}, v{WA}
    s_bfe_u32 s{sTMP}, s{sWV}, 0x10002
    s_lshl_b32 s{sTMP}, s{sTMP}, 7
    s_bfe_u32 s{sTMP+1}, s{sWV}, 0x10001
    s_lshl_b32 s{sTMP+1}, s{sTMP+1}, 8
    s_add_u32 s{sTMP}, s{sTMP}, s{sTMP+1}
    s_and_b32 s{sTMP+1}, s{sWV}, 1
    s_lshl_b32 s{sTMP+1}, s{sTMP+1}, 2
    s_add_u32 s{sTMP}, s{sTMP}, s{sTMP+1}
    v_lshlrev_b32 v{QAD}, 11, v{VG}
    v_lshl_add_u32 v{QAD}, v{VJ}, 3, v{QAD}
    v_add_u32 v{QAD}, s{sTMP}, v{QAD}
    s_waitcnt lgkmcnt(1)
    v_readfirstlane_b32 s{sNON}, v{SAD}
    v_readfirstlane_b32 s{sNON+1}, v{SAD+1}
A_QD:
    s_lshl_b32 s{sRING}, s{sWV}, 12
    s_add_u32 s{sRING}, s{sRING}, {RING}
    s_add_u32 s{sRING+1}, s{sRING}, 2048
    s_and_b32 s{sRHO}, s{sWV}, 3
    s_lshl_b32 s{sRHO}, s{sRHO}, 2
    s_lshr_b32 s{sTMP}, s{sWV}, 2
    s_or_b32 s{sRHO}, s{sRHO}, s{sTMP}
    v_add_u32 v{PAD}, s{sRING}, v{L8}
    s_mov_b32 s3, 1
    v_mov_b32 v19, 0x3fffff
    v_and_b32 v22, 3, v{TID}
    s_waitcnt vmcnt({1 if PF1 else 0}) lgkmcnt(0)
    @stamp 6
    @amp 11
    {"s_barrier" if "noqbar" not in OPT else ""}
    {f"s_sleep {OPT['sleep0']}" if "sleep0" in OPT else ""}
    @amp 4
    """)
    OPT.setdefault("s2p", "8")
    if "s2p" in OPT and "s2q" not in OPT:
        a(f"""
        s_cmp_lt_u32 s{sWV}, {OPT["s2p"]}
        s_cbranch_scc1 A_P0
        s_setprio 1
A_P0:
        """)
    if "s2q" in OPT:
        a(f"""
        s_cmp_lt_u32 s{sWV}, 4
        s_cbranch_scc1 A_P0
        s_setprio 1
        s_cmp_lt_u32 s{sWV}, 8
        s_cbranch_scc1 A_P0
        s_setprio 2
        s_cmp_lt_u32 s{sWV}, 12
        s_cbranch_scc1 A_P0
        s_setprio 3
A_P0:
        """)
    a(f"""
T_LOOP:
    global_load_dwordx2 v[20:21], v{AAD}, s[{sWS}:{sWS+1}] sc1
    s_sub_u32 s{sSPIN}, s{sSPIN}, 1
    s_cbranch_scc1 T_DONE
    s_waitcnt vmcnt(0)
    v_xor_b32 v{TW}, s{sNON+1}, v20
    v_cmp_ne_u32 vcc, s{sNON}, v21
    v_cmp_lt_u32 s[{sTMP}:{sTMP+1}], v19, v{TW}
    s_or_b64 exec, vcc, s[{sTMP}:{sTMP+1}]
    {f"s_cbranch_scc0 T_DONE" if "sleep" in OPT else "s_cbranch_scc1 T_LOOP"}
    {f"s_sleep {OPT['sleep']}                              ; back off: lines that are being polled are slow to write" if "sleep" in OPT else ""}
    {"s_branch T_LOOP" if "sleep" in OPT else ""}
T_DONE:
    s_mov_b64 exec, -1
    s_waitcnt vmcnt(0)
    @stamp 7
    @amp 5
K_PASS:
    v_bfe_u32 v15, v{TW}, 11, 11
    v_and_b32 v9, 0x7ff, v{TW}
    v_subrev_u32 v15, s{sR0}, v15
    v_add_u32 v9, s{sR0}, v9
    v_cmp_gt_i32 s[{sEX}:{sEX+1}], v15, v22
    v_mad_u32_u24 v9, v9, 12, v{RAD}
    v_min_i32 v10, s{sR}, v15
    v_sub_u32 v10, v10, v22
    """)
    for r in range(RMAX):
        if r == 1:
            a("s_mov_b64 exec, -1")
            for q in range(1, RMAX): a(f"v_cmp_lt_i32 s[{sEX+2*q}:{sEX+2*q+1}], {4*q}, v10")
            a(f"v_cmp_lt_i32 vcc, s{sR}, v15")
        a(f"s_mov_b64 exec, s[{sEX+2*r}:{sEX+2*r+1}]")
        if r >= 2: a(f"s_cbranch_execz K_LD")
        a(f"buffer_load_dwordx3 v[{32+4*r}:{34+4*r}], v9, s[{sREC}:{sREC+3}], 0 offen offset:{48*r} sc1")
    a(f"""
K_LD:
    s_mov_b64 exec, -1
    v_mov_b32 v13, 1
    v_lshrrev_b32 v14, 1, v{L8}
    s_and_b32 s{sTMP}, s{sWV}, 7
    s_lshl_b32 s{sTMP}, s{sTMP}, 12
    s_add_u32 s{sTMP}, s{sTMP}, {WS_F}
    s_add_u32 s{sFA}, s{sWS}, s{sTMP}
    s_addc_u32 s{sFA+1}, s{sWS+1}, 0
    s_mov_b32 s{sFLIM}, {f2u(2.0**120):#x}
    s_cbranch_vccz K_NOMORE
    v_mov_b32 v9, 0
    ds_write_b32 v9, v13 offset:{FLG}
K_NOMORE:
    """)
    if "pfe" in OPT:
        w0, nw, k = [int(x) for x in OPT["pfe"].split(",")]
        a(f"""
        s_sub_u32 s{sTMP+1}, s{sWV}, {w0}
        s_cmp_ge_u32 s{sTMP+1}, {nw}
        s_cbranch_scc1 K_NOPFE
        s_and_b32 s{sTMP}, s{sG}, 31
        s_lshr_b32 s{sTMP+2}, s{sG}, 5
        s_lshl_b32 s{sTMP+2}, s{sTMP+2}, 2
        s_add_u32 s{sTMP}, s{sTMP}, s{sTMP+2}
        s_and_b32 s{sTMP}, s{sTMP}, 31
        s_mul_i32 s{sTMP}, s{sTMP}, {nw}
        s_add_u32 s{sTMP}, s{sTMP}, s{sTMP+1}
        s_mul_i32 s{sTMP}, s{sTMP}, {k*128}
        s_add_u32 s{sTMP}, s{sTMP}, {WS_P}
        v_lshl_add_u32 v12, v{L8}, 4, s{sTMP}
        s_mov_b32 exec_lo, {min((1 << k) - 1, 0xffffffff):#x}
        s_mov_b32 exec_hi, {((1 << k) - 1) >> 32:#x}
        global_load_dword v15, v12, s[{sWS}:{sWS+1}] sc1
        s_mov_b64 exec, -1
        s_mov_b32 s{sPART}, 1
        s_branch K_PFE2
K_NOPFE:
        s_mov_b32 s{sPART}, 0
K_PFE2:
        """)
    if PF2:
        a(f"""
        ; this CU's share of {512*PF2} lines of P, pulled into the L2 once the records are in (speed only)
        s_and_b32 s{sTMP}, s{sG}, 31
        s_lshl_b32 s{sTMP}, s{sTMP}, 4
        s_add_u32 s{sTMP}, s{sTMP}, s{sWV}
        s_lshr_b32 s{sTMP+1}, s{sG}, 5
        s_lshl_b32 s{sTMP+1}, s{sTMP+1}, 6
        s_add_u32 s{sTMP}, s{sTMP}, s{sTMP+1}
        s_and_b32 s{sTMP}, s{sTMP}, 511
        s_mul_i32 s{sTMP}, s{sTMP}, {(PF2+PF3)*128}
        s_add_u32 s{sTMP}, s{sTMP}, {(20000 - 512*(PF2+PF3))*128 + WS_P}
        v_lshl_add_u32 v12, v{L8}, 4, s{sTMP}
        """)
    a(f"""
    s_cmp_eq_u32 s3, 0
    s_mov_b32 s3, 0
    s_cbranch_scc1 K_NOU
    {f"s_cmp_ge_u32 s{sWV}, 8" if Q1 else ""}
    {"s_cbranch_scc1 K_NOU" if Q1 else ""}
    ; first pass, column tile wv&7: U = -log2e * (x @ Wupd_top)^T (rows = channels) -> registers: waves 0..7 node
    ; tiles 0 and 2, waves 8..15 node tile 1; waves 8..15 also Q = -log2e * x @ W2 (rows = nodes) -> LDS
    """)
    for ks in range(4):
        for h in range(2):
            a(f"ds_read_b64_tr_b16 v[{16+4*ks+2*h}:{17+4*ks+2*h}], v{WA} offset:{8192*ks + 1024*h}")
    XB0 = (52, 56, 60, 64); XB1 = (0, 4, 8, 68)
    def xr(xb, off):
        for ks in range(4): a(f"ds_read_b128 v[{xb[ks]}:{xb[ks]+3}], v{XA+ks} offset:{off}")
    def mmx(d, xb, swap):
        for ks in range(4):
            c = "0" if ks == 0 else f"v[{d}:{d+3}]"
            w = f"v[{16+4*ks}:{19+4*ks}]"; x = f"v[{xb[ks]}:{xb[ks]+3}]"
            a(f"v_mfma_f32_16x16x32_bf16 v[{d}:{d+3}], {w if swap else x}, {x if swap else w}, {c}")
    def scale(d):
        for q in range(2): a(f"v_pk_mul_f32 v[{d+2*q}:{d+2*q+1}], v[{d+2*q}:{d+2*q+1}], s[{sTMP+2}:{sTMP+3}] op_sel_hi:[1,0]")
    if F16:
        xr(XB0, XS)
        a(f"s_mov_b32 s{sTMP+2}, {NLOG2E:#x}\ns_cmp_ge_u32 s{sWV}, 8\ns_cbranch_scc1 K_Q")
        xr(XB1, XS + 8192)
        a("s_waitcnt lgkmcnt(4)")
        mmx(UA[0], XB0, True)
        a("s_waitcnt lgkmcnt(0)")
        mmx(UA[1], XB1, True)
        a("s_nop 2")
        scale(UA[0])
        a("s_nop 2")
        scale(UA[1])
        a("s_branch K_NOU\nK_Q:")
        xr(XB1, XS + 4096)
        a("s_waitcnt lgkmcnt(4)")
        mmx(UA[0], XB0, False)
        xr(XB0, XS + 8192)
        a("s_waitcnt lgkmcnt(4)")
        mmx(UA[1], XB1, False)
        a(f"s_waitcnt lgkmcnt(0)\nv_subrev_u32 v{WA}, 32768, v{WA}")
        mmx(UA[2], XB0, False)
        for ks in range(4):
            for h in range(2):
                a(f"ds_read_b64_tr_b16 v[{16+4*ks+2*h}:{17+4*ks+2*h}], v{WA} offset:{8192*ks + 1024*h}")
        for rt in range(3):
            scale(UA[rt])
            if rt == 2: a("s_mov_b32 exec_hi, 0")
            for r in range(4):
                a(f"ds_write_b32 v{QAD}, v{UA[rt]+r} offset:{QS + rt*8192 + r*512}")
        a("s_mov_b64 exec, -1\ns_waitcnt lgkmcnt(12)")
        mmx(UA[0], XB1, True)
        a("s_nop 7")
        scale(UA[0])
    else:
        xr(XB0, XS); xr(XB1, XS + 4096)
        a(f"s_mov_b32 s{sTMP+2}, {NLOG2E:#x}\ns_cmp_ge_u32 s{sWV}, 8\ns_cbranch_scc1 K_Q")
        for isq in (0, 1):
            if isq: a("K_Q:")
            def um(rt, xb):
                for ks in range(4):
                    c = "0" if ks == 0 else f"v[{UA[rt]}:{UA[rt]+3}]"
                    w = f"v[{16+4*ks}:{19+4*ks}]"; x = f"v[{xb[ks]}:{xb[ks]+3}]"
                    a(f"v_mfma_f32_16x16x32_bf16 v[{UA[rt]}:{UA[rt]+3}], {x if isq else w}, {w if isq else x}, {c}")
            a("s_waitcnt lgkmcnt(4)")
            um(0, XB0)
            xr(XB0, XS + 8192)
            a("s_waitcnt lgkmcnt(4)")
            um(1, XB1)
            a("s_waitcnt lgkmcnt(0)")
            um(2, XB0)
            if not isq: a("s_nop 3")
            for rt in range(3):
                if rt == 2 and not isq: a("s_nop 1")
                for q in range(2):
                    u = UA[rt] + 2*q
                    a(f"v_pk_mul_f32 v[{u}:{u+1}], v[{u}:{u+1}], s[{sTMP+2}:{sTMP+3}] op_sel_hi:[1,0]")
                if isq:
                    if rt == 2: a("s_mov_b32 exec_hi, 0")
                    for r in range(4):
                        a(f"ds_write_b32 v{QAD}, v{UA[rt]+r} offset:{QS + rt*8192 + r*512}")
            a("s_mov_b64 exec, -1" if isq else "s_branch K_NOU")
    if "pfe" in OPT:
        a(f"K_NOU:\ns_cmp_eq_u32 s{sPART}, 0\ns_waitcnt vmcnt(1)\ns_cbranch_scc0 K_NOU2\ns_waitcnt vmcnt(0)\nK_NOU2:\n@stamp 8")
    else:
        a("K_NOU:\ns_waitcnt vmcnt(0)\n@stamp 8\n@amp 6")
    for r in range(RMAX):
        a(f"s_mov_b64 exec, s[{sEX+2*r}:{sEX+2*r+1}]")
        if r >= 2: a(f"s_cbranch_execz K_HD")
        a(f"v_lshrrev_b32 v{r}, 16, v{34+4*r}\nds_add_rtn_u32 v{35+4*r}, v{r}, v13 offset:{CNT}")
    a("K_HD:")
    if PF2:
        a(f"s_mov_b64 exec, {(1 << PF2) - 1:#x}\nglobal_load_dword v63, v12, s[{sWS}:{sWS+1}] sc1")
    a(f"""
    s_mov_b64 exec, -1
    s_waitcnt lgkmcnt(0)
    s_barrier
    v_mov_b32 v9, 0
    ds_read_b32 v8, v14 offset:{CNT}
    {f"s_mov_b64 exec, {((1 << PF3) - 1) << PF2:#x}" if PF3 else ""}
    {f"global_load_dword v62, v12, s[{sWS}:{sWS+1}] sc1" if PF3 else ""}
    {"s_mov_b64 exec, -1" if PF3 else ""}
    ds_read_b32 v12, v9 offset:{FLG}
    s_waitcnt lgkmcnt(1)
    v_add_u32 v10, 7, v8
    v_lshrrev_b32 v11, 3, v10
    """)
    dpp_scan(a, 11, [f"v_cmp_ne_u32 s[{sNZ}:{sNZ+1}], 0, v8", f"v_and_b32 v{NCNT}, 7, v10", f"v_and_b32 v10, -8, v10", f"v_add_u32 v{NCNT}, 1, v{NCNT}"])
    a(f"""
    v_lshlrev_b32 v15, 3, v11
    v_sub_u32 v15, v15, v10
    ds_bpermute_b32 v16, v0, v15
    ds_bpermute_b32 v17, v1, v15
    v_readlane_b32 s{sTMP}, v11, 63
    s_waitcnt lgkmcnt(2)
    v_readfirstlane_b32 s{sTMP+1}, v12
    """)
    for r in range(2, RMAX):
        a(f"s_cmp_eq_u64 s[{sEX+2*r}:{sEX+2*r+1}], 0\ns_cbranch_scc1 K_BD")
        a(f"ds_bpermute_b32 v{16+r}, v{r}, v15")
    a(f"""
K_BD:
    s_cmp_gt_u32 s{sTMP}, {CAP//8}
    s_cbranch_scc1 K_SHRINK
    s_or_b32 s{sMODE}, s{sMODE}, s{sTMP+1}
    s_mul_i32 s{sT0}, s{sTMP}, s{sRHO}
    s_add_u32 s{sTMP}, s{sT0}, s{sTMP}
    s_lshr_b32 s{sT0}, s{sT0}, 4
    s_lshr_b32 s{sTMP}, s{sTMP}, 4
    v_cmp_ge_u32 vcc, s{sT0}, v11
    s_sub_u32 s{sLEFT}, s{sTMP}, s{sT0}
    s_cmp_lg_u32 s{sWV}, 15
    s_cbranch_scc1 K_NOTF
    s_mov_b64 exec, s[{sNZ}:{sNZ+1}]
    ds_write_b8 v11, v13 offset:{TF - 1}
    ; rows of nodes without edges are zero
    s_mov_b64 exec, -1
    s_not_b64 s[{sTMP+2}:{sTMP+3}], s[{sNZ}:{sNZ+1}]
    s_and_b32 s{sTMP+3}, s{sTMP+3}, 0xff
K_ZL:
    s_ff1_i32_b64 s{sTMP}, s[{sTMP+2}:{sTMP+3}]
    s_cmp_lt_i32 s{sTMP}, 0
    s_cbranch_scc1 K_NOTF
    s_bitset0_b64 s[{sTMP+2}:{sTMP+3}], s{sTMP}
    s_mul_i32 s{sTMP}, s{sTMP}, 272
    v_xor_b32 v10, s{sTMP}, v{L4}
    ds_write_b32 v10, v9 offset:{AB}
    s_branch K_ZL
K_NOTF:
    s_waitcnt lgkmcnt(0)
    """)
    for r in range(RMAX):
        a(f"s_mov_b64 exec, s[{sEX+2*r}:{sEX+2*r+1}]")
        if r >= 2: a("s_cbranch_execz K_SD")
        a(f"""
        v_add_lshl_u32 v10, v{16+r}, v{35+4*r}, 3
        v_add_lshl_u32 v9, v{16+r}, v{35+4*r}, 1
        {f"v_and_b32 v{34+4*r}, {OPT['x_mask']}, v{34+4*r}" if "x_mask" in OPT else ""}
        ds_write_b64 v10, v[{32+4*r}:{33+4*r}] offset:{ES}
        ds_write_b16 v9, v{34+4*r} offset:{SS}
        """)
    a(f"""
K_SD:
    s_mov_b64 exec, -1
    s_bcnt1_i32_b64 s{sNC}, vcc
    s_min_u32 s{sNC}, s{sNC}, 61
    s_or_b32 s{sNZ+1}, s{sNZ+1}, 0xc0000000
    s_lshr_b64 s[{sNZ}:{sNZ+1}], s[{sNZ}:{sNZ+1}], s{sNC}
    s_lshl_b64 s[{sNZ}:{sNZ+1}], s[{sNZ}:{sNZ+1}], s{sNC}
    s_mov_b64 s[{sNZ2}:{sNZ2+1}], s[{sNZ}:{sNZ+1}]
    s_mov_b32 s{sNQ}, s{sNC}
    v_readlane_b32 s{sTMP}, v15, s{sNC}
    s_lshl_b32 s{sTMP+1}, s{sT0}, 3
    s_cmp_eq_u32 s{sMODE}, 0
    s_cselect_b32 s{sCVT}, 63, s{sWV}
    s_sub_u32 s{sPART}, s{sTMP+1}, s{sTMP}
    v_lshl_add_u32 v{EAD}, s{sT0}, 6, v{E8}
    v_lshl_add_u32 v{SAD}, s{sT0}, 4, v{G2}
    v_lshrrev_b32 v9, 2, v14
    v_add_u32 v9, s{sT0}, v9
    s_waitcnt lgkmcnt(0)
    s_barrier
    ds_read_u16 v{IX0}, v{SAD} offset:{SS}
    ds_read_u16 v{IX1}, v{SAD} offset:{SS+8}
    ds_read_u8 v16, v9 offset:{TF}
    s_setprio 3
    @stamp 10
    @amp 7
    s_cmp_eq_u32 s{sLEFT}, 0
    s_cbranch_scc1 K_MAINDONE
    s_cmp_lg_u32 s{sMODE}, 0
    s_cbranch_scc1 S_START
    """)
    mainloop(a, False)
    a(f"""
K_MAINDONE:
    @stamp 11
    @amp 8
    s_waitcnt vmcnt(0)
    v_lshlrev_b32 v{EAD}, 1, v{L8}
    v_cmp_nge_f32 vcc, s{sFLIM}, v{MAXC}
    v_cmp_u_f32 s[{sTMP}:{sTMP+1}], v{NANC}, v{NANC+1}
    """)
    for ks in range(4): a(f"global_load_dwordx4 v[{4*ks}:{4*ks+3}], v{EAD}, s[{sFA}:{sFA+1}] offset:{1024*ks} sc1")
    a(f"""
    s_or_b64 vcc, vcc, s[{sTMP}:{sTMP+1}]
    s_cbranch_scc1 K_OVF
K_NOOVF:
    s_waitcnt lgkmcnt(0)
    s_barrier
    @estamp 2
    ds_read_b64 v[24:25], v{L8} offset:{FLG}
K_CV:
    s_cmp_gt_u32 s{sCVT}, 39
    s_cbranch_scc1 K_NOCV
    v_lshl_add_u32 v23, s{sCVT}, 10, v{L8}
    ds_read_b64 v[26:27], v23 offset:{AGG}
    ds_read_b64 v[28:29], v23 offset:{AGG+512}
    s_mul_i32 s{sTMP}, s{sCVT}, 272
    v_xor_b32 v23, s{sTMP}, v{L4}
    s_add_u32 s{sCVT}, s{sCVT}, 16
    s_cmp_lg_u32 s{sMODE}, 0
    s_waitcnt lgkmcnt(0)
    v_cvt_f32_f64 v26, v[26:27]
    v_cvt_f32_f64 v28, v[28:29]
    v_cvt_pk_bf16_f32 v26, v26, v28
    ds_write_b32 v23, v26 offset:{AB}
    s_cbranch_scc1 K_CV
K_NOCV:
    s_waitcnt lgkmcnt(0)
    v_readfirstlane_b32 s{sTMP}, v24
    v_readfirstlane_b32 s{sTMP+1}, v25
    s_or_b32 s{sTMP+2}, s{sTMP}, s{sTMP+1}
    s_cbranch_scc1 K_SLOW
K_FINAL:
    @estamp 3
    s_barrier
    @estamp 4
    """)
    CC = f"s_mov_b32 s{sTMP+2}, {f2u(-LOG2E/(1+float(OPT.get('eps', 0)))):#x}\ns_waitcnt vmcnt(0)"
    if not F16:
        a(f"""
        s_cmp_ge_u32 s{sWV}, 10
        s_cbranch_scc1 {"K_OUT2" if AMP else "K_END2"}
        s_cmp_ge_u32 s{sWV}, 8
        s_cbranch_scc1 K_OUT
        """)
        for rt in range(3): xreads(a, 16 + 16*rt, AB + rt*4352)
        a(CC)
    def fm(rt):
        a(f"s_waitcnt lgkmcnt({8 - 4*rt if not (rt == 2 and 'noeil' not in OPT) else 1})")
        mm16(a, UA[rt], 16 + 16*rt, 0, swap=True, first=False)
    def silu(rt, u=None):
        u = UA[rt] if u is None else u; t = 64
        a(f"""
        v_exp_f32 v{t}, v{u}
        v_exp_f32 v{t+1}, v{u+1}
        v_exp_f32 v{t+2}, v{u+2}
        v_exp_f32 v{t+3}, v{u+3}
        v_pk_fma_f32 v[{t}:{t+1}], v[{t}:{t+1}], s[{sTMP+2}:{sTMP+3}], s[{sTMP+2}:{sTMP+3}] op_sel_hi:[1,0,0]
        v_pk_fma_f32 v[{t+2}:{t+3}], v[{t+2}:{t+3}], s[{sTMP+2}:{sTMP+3}], s[{sTMP+2}:{sTMP+3}] op_sel_hi:[1,0,0]
        v_rcp_f32 v{t}, v{t}
        v_rcp_f32 v{t+1}, v{t+1}
        v_rcp_f32 v{t+2}, v{t+2}
        v_rcp_f32 v{t+3}, v{t+3}
        v_pk_mul_f32 v[{t}:{t+1}], v[{t}:{t+1}], v[{u}:{u+1}]
        v_pk_mul_f32 v[{t+2}:{t+3}], v[{t+2}:{t+3}], v[{u+2}:{u+3}]
        v_cvt_pk_bf16_f32 v{16+2*rt}, v{t}, v{t+1}
        v_cvt_pk_bf16_f32 v{17+2*rt}, v{t+2}, v{t+3}
        ds_write_b64 v{OSA}, v[{16+2*rt}:{17+2*rt}] offset:{OUTS + rt*4096}
        """)
    if F16:
        a(f"s_cmp_ge_u32 s{sWV}, 8\ns_cbranch_scc1 K_F1")
        xreads(a, 16, AB); xreads(a, 32, AB + 2*4352)
        a(CC + "\ns_waitcnt lgkmcnt(4)")
        mm16(a, UA[0], 16, 0, swap=True, first=False)
        a("s_waitcnt lgkmcnt(0)")
        mm16(a, UA[1], 32, 0, swap=True, first=False)
        a("s_nop 2")
        silu(0, UA[0]); silu(2, UA[1])
        a("s_branch K_OUT\nK_F1:")
        xreads(a, 16, AB + 4352)
        a(CC + "\ns_waitcnt lgkmcnt(0)")
        mm16(a, UA[0], 16, 0, swap=True, first=False)
        a("s_nop 7")
        silu(1, UA[0])
    elif "noeil" not in OPT:
        fm(0); fm(1); a("s_nop 2"); silu(0); fm(2); silu(1); silu(2)
    else:
        fm(0); fm(1); fm(2); a("@estamp 5"); silu(0); silu(1); silu(2)
    a(f"""
K_OUT:
    s_waitcnt lgkmcnt(0)
    @estamp 6
    s_barrier
    @estamp 7
    {f"s_cmp_ge_u32 s{sWV}, 10" if F16 else ""}
    {"s_cbranch_scc1 K_END2" if F16 else ""}
    ds_read_b128 v[32:35], v{ORA} offset:{OUTS}
    s_waitcnt lgkmcnt(0)
    buffer_store_dwordx4 v[32:35], v{OGA}, s[{sO}:{sO+3}], 0 offen {OPT.get('ost', 'sc1').replace('+', ' ')}
    @estamp 8
    {"s_branch K_END2" if AMP else ""}
K_OUT2:
    {"s_barrier" if AMP else ""}
K_END2:
    """)
    if "x_spin" in OPT:
        a(f"""
        s_cmp_lg_u32 s22, 0
        s_cbranch_scc1 XS_DONE
        s_memrealtime s[68:69]
        s_waitcnt lgkmcnt(0)
XS_LOOP:
        s_memrealtime s[70:71]
        s_waitcnt lgkmcnt(0)
        s_sub_u32 s70, s70, s68
        s_cmp_lt_u32 s70, {OPT["x_spin"]}
        s_cbranch_scc1 XS_LOOP
XS_DONE:
        """)
    if "xcctest" in OPT:
        a(f"""
        s_lshl_b32 s3, s22, 8
        s_or_b32 s3, s3, s{sG}
        s_cmp_lg_u32 s3, 100
        s_cbranch_scc1 XT_DONE
        v_mov_b32 v30, {WS_REC + 15360 + 101*REC_STRIDE}
        global_load_dword v31, v30, s[{sWS}:{sWS+1}] sc1
        s_waitcnt vmcnt(0)
        v_readfirstlane_b32 s81, v31
        s_cmp_eq_u32 s81, s80
        s_cbranch_scc{OPT["xcctest"]} XT_DONE
        s_memrealtime s[76:77]
        s_waitcnt lgkmcnt(0)
XT_LOOP:
        s_memrealtime s[78:79]
        s_waitcnt lgkmcnt(0)
        s_sub_u32 s78, s78, s76
        s_cmp_lt_u32 s78, 2000
        s_cbranch_scc1 XT_LOOP
XT_DONE:
        """)
    a(f"""
    @store
K_END:
    s_endpgm
K_OVF:
    v_mov_b32 v19, 0
    v_mov_b32 v20, 1
    ds_write_b32 v19, v20 offset:{FLG+4}
    s_branch K_NOOVF
K_SHRINK:
    ; too many slots for one pass: redo this pass with at most 4 records per cell
    s_mov_b32 s{sR}, 4
    s_mov_b32 s{sMODE}, 1
    s_mov_b32 s{sTMP+1}, 0
    s_branch K_REINIT
K_SLOW:
    s_cmp_eq_u32 s{sMODE}, 0
    s_cselect_b32 s{sTMP+1}, s{sTMP+1}, 0
    s_or_b32 s{sTMP}, s{sTMP}, s{sTMP+1}
    s_cbranch_scc0 K_FINAL
    s_cmp_eq_u32 s{sTMP+1}, 0
    s_cselect_b32 s{sTMP}, s{sR}, 0
    s_add_u32 s{sR0}, s{sR0}, s{sTMP}
K_REINIT:
    s_waitcnt vmcnt(0) lgkmcnt(0)
    s_barrier
    v_lshrrev_b32 v9, 1, v{L8}
    v_mov_b32 v10, 0
    ds_write_b32 v9, v10 offset:{CNT}
    ds_write_b32 v9, v10 offset:{TF}
    ds_write_b32 v10, v10 offset:{FLG}
    ds_write_b32 v10, v10 offset:{FLG+4}
    v_lshlrev_b32 v9, 2, v{TID}
    v_mov_b32 v10, -1
    ds_write_b32 v9, v10 offset:{SS}
    s_cmp_eq_u32 s{sTMP+1}, 0
    s_cbranch_scc1 K_SLOW1
    s_mov_b32 s{sMODE}, 1
    v_lshlrev_b32 v9, 4, v{TID}
    v_add_u32 v9, {AGG}, v9
    v_mov_b64 v[4:5], 0
    v_mov_b64 v[6:7], 0
    ds_write_b128 v9, v[4:7]
    ds_write_b128 v9, v[4:7] offset:16384
    ds_write_b128 v9, v[4:7] offset:24576
K_SLOW1:
    v_and_b32 v22, 3, v{TID}
    s_waitcnt lgkmcnt(0)
    s_barrier
    s_branch K_PASS
    """)
    mainloop(a, True)
    return a.text()

HEADER = """; Kernarg layout for this problem (72 bytes, ptrs only, base s[0:1]):
;   offset  24: d_in[3] dst  shape=(320000,) dtype=int32
;   offset  64: d_ws      workspace
; One workgroup per CU (256 workgroups, 39-40 destination nodes each), one launch.
;   t[e] = c * (x[src] @ W1 + x[dst] @ W2 + e_attr @ W3) = P[src] + Q[dst] + e_attr @ (c W3),   silu = t / (c * (1 + 2^t))
; Phase A: every workgroup bins 1280 edges by destination group and computes P for its own rows; both are stored
;   write-through and then announced with tagged 8-byte granules (tag = clock value drawn once per launch, handed out
; Phase B: a workgroup waits for the granules of its group, fetches its edges, sorts them by node in LDS and walks them
;   in tiles of 8: P rows are gathered into LDS, one MFMA (e_attr term + Q) and one sparse MFMA (row selector) give t
;   with lane = channel pair; sum t/(1+u), u = 2^t, is kept exactly as a fraction num/den (one exp, no reciprocal per
;   element).  If a denominator leaves the safe range or a result is not finite the group is redone with plain
;   exp / rcp sigmoids (S_ loop), which also serves groups that need several passes.  Last: the update layer.
"""
def main():
    s = ("; opts " + " ".join(sys.argv[2:]) + "\n" if len(sys.argv) > 2 else "") + HEADER
    s += f"; @launch grid=({NG},1,1) block=(1024,1,1) lds={LDS_BYTES}\n"
    s += '.amdgcn_target "amdgcn-amd-amdhsa--gfx950"\n.text\n'
    s += f".globl {KN}\n.p2align 8\n.type {KN},@function\n" + kernel()
    s += f""".section .rodata,"a"
.p2align 6
.amdhsa_kernel {KN}
  .amdhsa_next_free_vgpr {NVGPR}
  .amdhsa_next_free_sgpr {100 if (DIAG or AMP or 'xcctest' in OPT) else NSGPR}
  .amdhsa_accum_offset {NVGPR}
  .amdhsa_group_segment_fixed_size 0
  .amdhsa_kernarg_size 72
  .amdhsa_user_sgpr_count 2
  .amdhsa_user_sgpr_kernarg_segment_ptr 1
  .amdhsa_system_sgpr_workgroup_id_x 1
.end_amdhsa_kernel
"""
    open(sys.argv[1], "w").write(s)
main()
```
